```python
import torch

def _softmax(x, axis=-1):
    return torch.softmax(x, dim=axis)
def _gelu(x):
    return torch.nn.functional.gelu(x, approximate="tanh")
def _silu(x):
    return torch.nn.functional.silu(x)
def _sigmoid(x):
    return torch.sigmoid(x)
def _layernorm(x, axis=-1, eps=1e-5):
    m = x.mean(dim=axis, keepdim=True)
    v = x.var(dim=axis, keepdim=True, unbiased=False)
    return (x - m) / torch.sqrt(v + eps)
def _scatter_add(tgt, idx, src, axis=0):
    return tgt.clone().index_add_(axis, idx, src)
def _segment_sum(src, seg, n):
    out = torch.zeros((n,) + src.shape[1:], dtype=src.dtype)
    return out.index_add_(0, seg, src)
def _pad(x, pw):
    flat = tuple(v for pair in reversed(pw) for v in pair)
    return torch.nn.functional.pad(x, flat)

kernel_name = 'recurrent_scan__linear_attn_block__dense_activation_silu__prompt'

def setup_inputs():

    _w = (lambda a: (lambda t: t.to(torch.bfloat16) if t.is_floating_point() else t)(torch.as_tensor(a)))
    def _A_setup():
        B, S, D = 1, 2048, 640
        return {
            "x": _w((lambda *s: torch.randn(*s, dtype=torch.bfloat16) * 0.05)(B, S, D)),
            "wqkv": _w((lambda *s: torch.randn(*s, dtype=torch.bfloat16) * 0.2)(D, 3 * D)),
            "wo": _w((lambda *s: torch.randn(*s, dtype=torch.bfloat16) * 0.2)(D, D)),
        }
    _A_in = _A_setup()

    def _B_setup():
        B, S, D, F = 1, 2048, 640, 1728
        return {
            "x": _w((lambda *s: torch.randn(*s, dtype=torch.bfloat16) * 0.05)(B, S, D)),
            "w1": _w((lambda *s: torch.randn(*s, dtype=torch.bfloat16) * 0.8)(D, F) * (D ** -0.5)),
            "w2": _w((lambda *s: torch.randn(*s, dtype=torch.bfloat16) * 0.1)(F, D) * (F ** -0.5)),
        }
    _B_in = _B_setup()

    return {
        "A_x": _A_in["x"],
        "A_wqkv": _A_in["wqkv"],
        "A_wo": _A_in["wo"],
        "B_x": _B_in["x"],
        "B_w1": _B_in["w1"],
        "B_w2": _B_in["w2"],
    }

def reference(A_x, A_wqkv, A_wo, B_x, B_w1, B_w2):
    def _A_ref(x, wqkv, wo):
        B, S, D = x.shape
        H = 32; Dh = D // H
        qkv = (lambda x, *d: x.permute(*d))((x @ wqkv).reshape(B, S, 3, H, Dh), 2, 0, 3, 1, 4)
        q, k, v = qkv[0], qkv[1], qkv[2]
        phi = lambda t: torch.where(t > 0, t + 1, torch.exp(t)) + 1e-6
        pq, pk = phi(q), phi(k)
        kv = torch.einsum("bhsd,bhse->bhde", pk, v)
        z = torch.einsum("bhsd->bhd", pk)
        num = torch.einsum("bhqd,bhde->bhqe", pq, kv)
        den = torch.einsum("bhqd,bhd->bhq", pq, z)[..., None] + 1e-6
        o = num / den
        return (lambda x, *d: x.permute(*d))(o, 0, 2, 1, 3).reshape(B, S, D) @ wo

    def _B_ref(x, w1, w2):
        h = torch.einsum("bsd,df->bsf", x, w1)
        h = _silu(h)
        out = torch.einsum("bsf,fd->bsd", h, w2)
        return out

    x = A_x
    xn = _layernorm(x, axis=-1)
    s = _A_ref(xn, A_wqkv, A_wo)
    g = _silu(_B_ref(xn, B_w1, B_w2))
    return x + s * g
```

```python
class Asm:
    def __init__(self): self.l = []
    def __call__(self, s=""):
        for x in s.split("\n"): self.l.append(x)
    def text(self): return "\n".join(self.l) + "\n"

def kd(name, vgpr, accum, sgpr=96):
    return f""".amdhsa_kernel {name}
  .amdhsa_next_free_vgpr {vgpr}
  .amdhsa_next_free_sgpr {sgpr}
  .amdhsa_accum_offset {accum}
  .amdhsa_group_segment_fixed_size 0
  .amdhsa_kernarg_size 72
  .amdhsa_user_sgpr_count 2
  .amdhsa_user_sgpr_kernarg_segment_ptr 1
  .amdhsa_system_sgpr_workgroup_id_x 1
.end_amdhsa_kernel
"""
def khead(name):
    return f""".globl {name}
.p2align 8
.type {name},@function
{name}:"""
```

```python
import re
TRANS = ("v_exp_f32", "v_log_f32", "v_rcp_f32", "v_rsq_f32", "v_sqrt_f32", "v_sin_f32", "v_cos_f32")
def regs(op):
    op = op.strip()
    op = re.sub(r"^-|^abs\(|\)$|^\|", "", op).strip("|")
    m = re.fullmatch(r"([vas])(\d+)", op)
    if m: return {(m.group(1), int(m.group(2)))}
    m = re.fullmatch(r"([vas])\[(\d+):(\d+)\]", op)
    if m: return {(m.group(1), i) for i in range(int(m.group(2)), int(m.group(3)) + 1)}
    if op == "vcc": return {("s", 106), ("s", 107)}
    if op == "exec": return {("s", 126), ("s", 127)}
    if op == "m0": return {("s", 124)}
    return set()
class I:
    def __init__(self, text):
        self.text = text
        t = text.split(";")[0].strip()
        self.op = None; self.w = set(); self.r = set(); self.cls = "none"; self.ws = 0
        self.srcc = set(); self.ab = set(); self.passes = 0; self.sdata = set(); self.lds = False
        if not t or t.endswith(":") or t.startswith("."): return
        parts = t.split(None, 1)
        op = parts[0]; self.op = op
        for suf in ("_e32", "_e64", "_dpp", "_sdwa"):
            if op.endswith(suf): op = op[:-len(suf)]
        self.base = op
        rest = parts[1] if len(parts) > 1 else ""
        ops = [o.strip() for o in rest.split(",")]
        mods = ""
        if ops:
            out = []
            for o in ops:
                f = o.split()
                out.append(f[0] if f else ""); mods += " " + " ".join(f[1:])
            ops = out
        self.dpp = ("row_" in rest or "quad_perm" in rest or "wave_" in rest)
        self.ws = 1
        R = [regs(o) for o in ops]
        U = lambda l: set().union(*l) if l else set()
        if op == "s_nop": self.ws = int(ops[0], 0) + 1; self.cls = "nop"
        elif op.startswith("v_mfma"):
            self.cls = "mfma"; self.w = R[0]; self.ab = R[1] | R[2]; self.srcc = R[3]; self.r = self.ab | self.srcc
            self.passes = 8 if "32x32" in op else 4
        elif op.startswith("v_"):
            self.cls = "valu"
            if op.startswith("v_swap") or "_swap_" in op: self.w = R[0] | R[1]; self.r = R[0] | R[1]
            elif op.startswith(("v_add_co", "v_sub_co", "v_addc_co", "v_subb_co", "v_mad_u64")): self.w = R[0] | R[1]; self.r = U(R[2:])
            else:
                self.w = R[0]; self.r = U(R[1:])
                if op.startswith(("v_fmac", "v_dot2c", "v_writelane")) or self.dpp: self.r |= R[0]
            if op.startswith("v_cmpx"): self.w |= regs("exec")
        elif op.startswith(("buffer_", "global_")):
            self.cls = "vmem"; self.lds = (" lds" in mods) or "_lds_" in op
            if op in ("buffer_wbl2", "buffer_inv"): pass
            elif self.lds: self.r = U(R) | regs("m0")
            elif op.startswith("buffer_load"): self.w = R[0]; self.r = U(R[1:])
            elif op.startswith("global_load"): self.w = R[0]; self.r = U(R[1:])
            else:
                self.r = U(R)
                d = R[0] if op.startswith("buffer") else R[1]
                if "x4" in op or "x3" in op: self.sdata = d
                if "atomic" in op and "sc0" in mods: self.w = R[0]
        elif op.startswith("ds_"):
            self.cls = "ds"
            if op.startswith(("ds_read", "ds_bpermute", "ds_permute", "ds_swizzle")): self.w = R[0]; self.r = U(R[1:])
            else: self.r = U(R)
        elif op.startswith("s_"):
            self.cls = "salu"
            if op.startswith(("s_cmp", "s_cbranch", "s_branch", "s_waitcnt", "s_barrier", "s_endpgm", "s_sleep", "s_setprio", "s_bitcmp")):
                self.r = U(R)
            else:
                self.w = R[0] if R else set(); self.r = U(R[1:])
                if "saveexec" in op: self.w |= regs("exec")
        else: raise ValueError("unknown instr: " + text)
def V(s): return {x for x in s if x[0] != "s"}
def S(s): return {x for x in s if x[0] == "s"}
EX = regs("exec")
def need(p, c):
    n = 0
    if p.cls == "valu":
        vw = V(p.w); sw = S(p.w)
        if c.cls == "mfma" and vw & c.r: n = max(n, 2)
        if c.cls == "mfma" and sw & EX: n = max(n, 4)
        if c.cls == "valu":
            if c.base in ("v_readfirstlane_b32", "v_readlane_b32") and vw & c.r: n = max(n, 1)
            if "permlane" in c.base and vw & c.r: n = max(n, 2)
            if c.dpp and vw & c.r: n = max(n, 2)
            if c.dpp and sw & EX: n = max(n, 5)
            if sw & c.r: n = max(n, 4 if c.base in ("v_readlane_b32", "v_writelane_b32") else 2)
            if p.base in TRANS and c.base not in TRANS and vw & c.r: n = max(n, 1)
            if "sdwa" in p.op and vw & (c.r | c.w): n = max(n, 1)
            if sw & EX and ("permlane" in c.base or "readlane" in c.base or "readfirstlane" in c.base): n = max(n, 4)
        if p.base in TRANS and c.cls in ("vmem", "ds") and vw & c.r: n = max(n, 1)
        if c.cls == "vmem" and sw & c.r: n = max(n, 5)
        if c.cls == "salu" and sw & c.r: n = max(n, 1)
    if p.cls == "mfma":
        big = {4: 8, 8: 12}[p.passes]
        if c.cls == "mfma":
            if p.w & c.ab: n = max(n, big)
            if p.w & c.srcc and not (p.w == c.srcc and p.passes == c.passes): n = max(n, big - 2)
            if p.w & c.w and not (p.w & c.srcc): n = max(n, big)
        elif c.cls in ("valu", "vmem", "ds"):
            if p.w & (c.r | c.w): n = max(n, big)
            if c.cls == "valu" and p.srcc & c.w: n = max(n, p.passes - 1)
    if p.cls == "vmem" and p.sdata & c.w: n = max(n, 2)
    if p.cls == "salu" and (p.w & regs("m0")) and c.cls == "vmem" and c.lds: n = max(n, 1)
    return n
def fix(lines, verbose=False):
    out = []; hist = []
    pos = 0; added = 0
    for t in lines:
        c = I(t)
        if c.ws == 0: out.append(t); continue
        req = 0
        for p, pp in hist[-24:]:
            n = need(p, c)
            if n:
                have = pos - pp
                if n - have > req: req = n - have; why = p.text
        if req > 0:
            if verbose: print(f"haz: +{req} before [{t.strip()}] after [{why.strip()}]")
            out.append(f"  s_nop {req-1}"); pos += req; added += req
        pos += c.ws
        hist.append((c, pos)); out.append(t)
    return out, added
def check(lines):
    o, a = fix(lines, True)
    return a
```

```python
import sys, re
from asmlib import kd, khead
import haz

S, D, F = 2048, 640, 1728
STATS = 0x10000
KVP   = 0x40000
PQ    = 0x100000
OO    = 0x400000
HH    = 0x800000
WP    = 0x1000000
WS_USED = WP + 8*74*5120
LOG2E = 0x3fb8aa3b
STAGE = 45056; WOFF = 24576; SPARE = 3*STAGE

class A(list):
    def __call__(self, s):
        for x in s.strip("\n").split("\n"):
            x = x.strip()
            m = re.match(r"s_cselect_b32 (s\d+), (\d+|0x[0-9a-f]+), (\d+|0x[0-9a-f]+)\s*(;.*)?$", x)
            if m and int(m.group(2), 0) > 64 and int(m.group(3), 0) > 64:
                self.append(f"  s_mov_b32 {m.group(1)}, {m.group(3)}")
                x = f"s_cselect_b32 {m.group(1)}, {m.group(2)}, {m.group(1)}"
            if x: self.append(("" if x.endswith(":") else "  ") + x)
        return self
def vr(b, n=4): return f"v[{b}:{b+n-1}]" if n > 1 else f"v{b}"
def ar(b, n=4): return f"a[{b}:{b+n-1}]" if n > 1 else f"a{b}"
def srd(d, lo, hi, nbytes, off=0):
    a = A()
    if off:
        a(f"s_add_u32 s{d}, s{lo}, {off}\ns_addc_u32 s{d+1}, s{hi}, 0")
        a(f"s_and_b32 s{d+1}, s{d+1}, 0xffff")
    else:
        a(f"s_mov_b32 s{d}, s{lo}\ns_and_b32 s{d+1}, s{hi}, 0xffff")
    a(f"s_mov_b32 s{d+2}, {nbytes}\ns_mov_b32 s{d+3}, 0x20000")
    return a
def weave(M, fill, start=0, end=None):
    out = []; end = len(M) if end is None else end
    k = 0; nf = len(fill); n = end - start
    for i, m in enumerate(M):
        out.append(m)
        if start <= i < end:
            tgt = (i - start + 1) * nf // n
            while k < tgt: out.append(fill[k]); k += 1
    return out

def k_prep(name):
    a = A()
    a(f"""
    s_cmp_ge_u32 s2, 256
    s_cbranch_scc1 {name}_end
    s_load_dwordx2 s[4:5], s[0:1], 0
    s_load_dwordx2 s[6:7], s[0:1], 16
    s_load_dwordx2 s[24:25], s[0:1], 40
    s_load_dwordx2 s[26:27], s[0:1], 64
    v_lshrrev_b32 v1, 6, v0
    v_and_b32 v0, 63, v0
    v_readfirstlane_b32 s20, v1
    s_waitcnt lgkmcnt(0)
    """)
    a += srd(8, 4, 5, S*D*2)
    a += srd(16, 26, 27, WS_USED)
    a(f"""
    s_lshl_b32 s21, s20, 8
    s_add_u32 s21, s21, s2              ; job
    s_mul_i32 s22, s21, 6554
    s_lshr_b32 s22, s22, 16
    s_mul_i32 s23, s22, 10
    s_sub_u32 s23, s21, s23             ; line
    s_cmp_lt_u32 s22, 54
    s_cselect_b32 s12, s24, s6
    s_cselect_b32 s13, s25, s7
    s_cselect_b32 s14, {F*D*2}, {D*D*2}
    s_cselect_b32 s28, 0, 54
    s_and_b32 s13, s13, 0xffff
    s_mov_b32 s15, 0x20000
    s_cmp_ge_u32 s21, 740
    s_cbranch_scc1 {name}_stats
    s_sub_u32 s28, s22, s28
    s_mul_i32 s28, s28, {32*1280}
    s_lshl_b32 s29, s23, 7
    s_add_u32 s28, s28, s29
    v_lshrrev_b32 v1, 3, v0
    v_mul_u32_u24 v1, 1280, v1
    v_and_b32 v2, 7, v0
    v_lshl_add_u32 v1, v2, 4, v1        ; voffset
    s_lshl_b32 s29, s20, 12
    s_mov_b32 m0, s29
    """)
    for i in range(4):
        a(f"buffer_load_dwordx4 v1, s[12:15], s28 offen offset:{1024*i} lds")
        if i < 3: a(f"s_add_u32 s28, s28, 9216")
    a(f"""
    s_mul_i32 s30, s22, 205
    s_lshr_b32 s30, s30, 10
    s_mul_i32 s30, s30, 5
    s_sub_u32 s30, s22, s30             ; ks % 5  (valid for ks<74)
    s_cmp_eq_u32 s30, 2
    s_cselect_b32 s31, 1, 0
    s_cmp_ge_u32 s22, 54
    s_cselect_b32 s31, 1, s31
    s_add_u32 s32, s31, 9
    s_cmp_eq_u32 s31, 1
    s_cselect_b32 s33, 512, 2048
    v_lshrrev_b32 v2, 4, v0
    v_lshlrev_b32 v2, s32, v2
    v_bfe_u32 v3, v0, 2, 2
    v_lshl_add_u32 v2, v3, 7, v2
    v_and_b32 v3, 3, v0
    v_lshl_add_u32 v2, v3, 3, v2
    v_add_u32 v2, s29, v2               ; addr1
    v_add_u32 v3, s33, v2               ; addr2
    v_lshlrev_b32 v4, 4, v0             ; lane*16
    s_waitcnt vmcnt(0)
    """)
    for t in range(4):
        a(f"ds_read_b64_tr_b16 v[{8+4*t}:{9+4*t}], v2 offset:{32*t}")
        a(f"ds_read_b64_tr_b16 v[{10+4*t}:{11+4*t}], v3 offset:{32*t}")
    a(f"s_mul_i32 s34, s22, 5120\ns_add_u32 s34, s34, {WP}\ns_lshl_b32 s35, s23, 2\ns_waitcnt lgkmcnt(0)")
    for t in range(4):
        a(f"""
        s_add_u32 s36, s35, {t}
        s_mul_i32 s37, s36, 205
        s_lshr_b32 s37, s37, 10          ; ct
        s_mul_i32 s38, s37, {74*5120 - 5*1024}
        s_lshl_b32 s36, s36, 10
        s_add_u32 s36, s36, s38
        s_add_u32 s36, s36, s34
        buffer_store_dwordx4 {vr(8+4*t)}, v4, s[16:19], s36 offen
        """)
    a(f"""
    {name}_stats:
    s_cmp_lt_u32 s20, 2
    s_cbranch_scc1 {name}_end
    s_lshl_b32 s21, s2, 1
    s_add_u32 s21, s21, s20
    s_sub_u32 s21, s21, 2
    s_mul_i32 s22, s21, {4*1280}
    v_lshrrev_b32 v1, 4, v0
    v_and_b32 v2, 15, v0
    v_mul_u32_u24 v3, 1280, v1
    v_lshl_add_u32 v3, v2, 4, v3
    """)
    for j in range(5): a(f"buffer_load_dwordx4 {vr(32+4*j)}, v3, s[8:11], s22 offen offset:{256*j}")
    a("s_waitcnt vmcnt(0)")
    a += stats_math(32, 56, 4)
    a(f"""
    s_lshl_b32 s22, s21, 6
    s_add_u32 s22, s22, {STATS}
    v_lshlrev_b32 v1, 4, v1
    v_cmp_eq_u32 vcc, 0, v2
    v_mov_b32 v3, 0x40000000
    v_cndmask_b32 v1, v3, v1, vcc
    v_mov_b32 v5, 0
    v_mov_b32 v7, 0
    buffer_store_dwordx4 v[4:7], v1, s[16:19], s22 offen
    {name}_end:
    s_endpgm
    """)
    return a

def stats_math(src, tmp, dst):
    a = A()
    for i in range(20):
        a(f"v_lshlrev_b32 v{tmp+2*i}, 16, v{src+i}")
        a(f"v_and_b32 v{tmp+2*i+1}, 0xffff0000, v{src+i}")
    acc = tmp + 40
    a(f"v_pk_add_f32 {vr(acc,2)}, {vr(tmp,2)}, {vr(tmp+2,2)}")
    for i in range(2, 20): a(f"v_pk_add_f32 {vr(acc,2)}, {vr(acc,2)}, {vr(tmp+2*i,2)}")
    a(f"v_add_f32 v{acc}, v{acc}, v{acc+1}")
    for r in (8, 4, 2, 1): a(f"v_add_f32_dpp v{acc}, v{acc}, v{acc} row_ror:{r} row_mask:0xf bank_mask:0xf")
    a(f"v_mul_f32 v{dst}, 0x3acccccd, v{acc}")
    for i in range(20): a(f"v_pk_add_f32 {vr(tmp+2*i,2)}, {vr(tmp+2*i,2)}, {vr(dst,2)} op_sel_hi:[1,0] neg_lo:[0,1] neg_hi:[0,1]")
    a(f"v_pk_mul_f32 {vr(acc,2)}, {vr(tmp,2)}, {vr(tmp,2)}")
    for i in range(1, 20): a(f"v_pk_fma_f32 {vr(acc,2)}, {vr(tmp+2*i,2)}, {vr(tmp+2*i,2)}, {vr(acc,2)}")
    a(f"v_add_f32 v{acc}, v{acc}, v{acc+1}")
    for r in (8, 4, 2, 1): a(f"v_add_f32_dpp v{acc}, v{acc}, v{acc} row_ror:{r} row_mask:0xf bank_mask:0xf")
    a(f"v_mov_b32 v{acc+1}, 0x3727c5ac")
    a(f"v_fmac_f32 v{acc+1}, 0x3acccccd, v{acc}")
    a(f"v_rsq_f32 v{dst+2}, v{acc+1}")
    return a

ACC = 8; CS = 128; AB = [148, 172]; BB = [196, 216]; VX = 236; VW = 242; LA = 247; LB = 249
def acc(T, t): return ACC + (T*5 + t)*4
def g1_mfma(buf, transposed, first, cs):
    M = []
    for T in range(6):
        ts = range(5) if T % 2 == 0 else range(4, -1, -1)
        for t in ts:
            x = vr(AB[buf] + 4*T); w = vr(BB[buf] + 4*t); d = vr(acc(T, t))
            p, q = (w, x) if transposed else (x, w)
            M.append(f"  v_mfma_f32_16x16x32_bf16 {d}, {p}, {q}, {'0' if first else d}")
    if cs:
        for t in range(5):
            w = vr(BB[buf] + 4*t); d = vr(CS + 4*t)
            p, q = (w, "a[0:3]") if transposed else ("a[0:3]", w)
            M.append(f"  v_mfma_f32_16x16x32_bf16 {d}, {p}, {q}, {'0' if first else d}")
    return M
def g1_reads(buf, ks):
    R = []
    def b(t):
        base = LB + (2 if t == 4 else (t & 1)); off = ks*10240 + (64 if t in (2, 3) else 0)
        return [f"  ds_read_b64_tr_b16 {vr(BB[buf]+4*t,2)}, v{base} offset:{off}",
                f"  ds_read_b64_tr_b16 {vr(BB[buf]+4*t+2,2)}, v{base} offset:{off+1280}"]
    def x(T): return [f"  ds_read_b128 {vr(AB[buf]+4*T)}, v{LA+ks} offset:{T*2048}"]
    R += x(0)
    for t in range(5): R += b(t)
    for T in range(1, 6): R += x(T)
    return R
def g1_dma():
    Dm = []
    for j in range(6):
        if j == 0: Dm.append("  s_mov_b32 m0, s40")
        if j == 4: Dm.append("  s_add_u32 m0, s40, 4096")
        Dm.append(f"  buffer_load_dwordx4 v{VX+j}, s[8:11], s42 offen offset:{1024*(j%4)} lds")
    for j in range(5):
        if j == 0: Dm.append("  s_mov_b32 m0, s41")
        if j == 4: Dm.append("  s_add_u32 m0, s41, 4096")
        Dm.append(f"  buffer_load_dwordx4 v{VW+j}, s[12:15], s43 offen offset:{1024*(j%4)} lds")
    return Dm
def g1_dma_adv():
    return A()(f"""
    s_add_u32 s42, s42, 128
    s_add_u32 s43, s43, s45
    s_cmp_eq_u32 s44, {2*STAGE}
    s_cselect_b32 s46, {-2*STAGE & 0xffffffff}, s53
    s_add_u32 s44, s44, s46
    s_add_u32 s40, s40, s46
    s_add_u32 s41, s41, s46
    """)
def g1_rd_adv():
    a = A()(f"""
    s_cmp_eq_u32 s47, {2*STAGE}
    s_cselect_b32 s48, {-2*STAGE & 0xffffffff}, s53
    s_add_u32 s47, s47, s48
    """)
    for r in range(LA, LA+5): a(f"v_add_u32 v{r}, s48, v{r}")
    return a
def mixf(*ls):
    keyed = []
    for li, l in enumerate(ls):
        for j, x in enumerate(l): keyed.append(((j + 0.5)/len(l), li, j, x))
    keyed.sort(key=lambda t: t[:3])
    return [x[3] for x in keyed]
def g1_main(name, tr, cs=True):
    a = A()
    a("s_waitcnt vmcnt(22)\ns_barrier")
    a += g1_reads(0, 0)
    a("s_waitcnt lgkmcnt(0)")
    M = g1_mfma(0, tr, True, cs)
    a += weave(M, g1_reads(1, 1) + g1_rd_adv(), 0, 26)
    def body(dma, vm):
        b = A()
        b(f"s_waitcnt vmcnt({vm}) lgkmcnt(0)\ns_barrier")
        Dm = g1_dma() if dma else []
        d1 = Dm[:8]; d2 = Dm[8:] + (list(g1_dma_adv()) if dma else [])
        M = g1_mfma(1, tr, False, cs)
        f = mixf(g1_reads(0, 0), d1) if dma else g1_reads(0, 0)
        b += weave(M, f, 0, 26)
        b("s_waitcnt lgkmcnt(0)")
        M = g1_mfma(0, tr, False, cs)
        f = (mixf(g1_reads(1, 1), d2[:7]) + g1_rd_adv() + d2[7:]) if dma else (g1_reads(1, 1) + g1_rd_adv())
        b += weave(M, f, 0, len(M) - 1)
        return b
    a(f"s_mov_b32 s49, 7\n{name}_loop:")
    bd = body(True, 11)
    assert haz.check(bd + bd) == 0
    a += bd
    a(f"s_sub_u32 s49, s49, 1\ns_cmp_lg_u32 s49, 0\ns_cbranch_scc1 {name}_loop")
    a += body(False, 11)
    a += body(False, 0)
    a("s_waitcnt lgkmcnt(0)")
    a += g1_mfma(1, tr, False, cs)
    return a

def k_gemm1(name):
    a = A()
    a(f"""
    s_and_b32 s3, s2, 7
    s_lshl_b32 s3, s3, 5
    s_lshr_b32 s21, s2, 3
    s_add_u32 s3, s3, s21               ; lin
    s_cmp_ge_u32 s2, 256
    s_cbranch_scc1 {name}_end
    s_cmp_ge_u32 s3, 253
    s_cbranch_scc1 {name}_end
    s_load_dwordx4 s[4:7], s[0:1], 0     ; x, wqkv
    s_load_dwordx2 s[24:25], s[0:1], 32  ; w1
    s_load_dwordx2 s[26:27], s[0:1], 64  ; ws
    v_lshrrev_b32 v1, 6, v0
    v_and_b32 v7, 63, v0                 ; lane
    v_readfirstlane_b32 s20, v1          ; wave
    s_cmp_lt_u32 s3, 138
    s_cselect_b32 s28, 0, 138
    s_cselect_b32 s29, 10923, 13108      ; 1/6 , 1/5 (<<16)
    s_cselect_b32 s30, 6, 5
    s_cselect_b32 s31, 0, 6
    s_sub_u32 s3, s3, s28
    s_mul_i32 s22, s3, s29
    s_lshr_b32 s22, s22, 16              ; ctq
    s_mul_i32 s30, s22, s30
    s_sub_u32 s21, s3, s30
    s_add_u32 s21, s21, s31              ; rb
    s_waitcnt lgkmcnt(0)
    """)
    a += srd(8, 4, 5, S*D*2)
    a += srd(16, 26, 27, WS_USED)
    a(f"""
    s_cmp_lt_u32 s22, 12
    s_cselect_b32 s12, s6, s24
    s_cselect_b32 s13, s7, s25
    s_cselect_b32 s14, {D*3*D*2}, {D*F*2}
    s_cselect_b32 s50, 3840, 3456
    s_cselect_b32 s28, 8, 12
    s_and_b32 s13, s13, 0xffff
    s_mov_b32 s15, 0x20000
    s_lshl_b32 s45, s50, 6
    s_sub_u32 s23, s22, s28
    s_lshr_b32 s51, s20, 1               ; wr
    s_and_b32 s52, s20, 1                ; wc
    s_mul_i32 s28, s21, {192*16}
    s_add_u32 s28, s28, {STATS}
    v_lshlrev_b32 v1, 4, v0
    buffer_load_dwordx4 v[{AB[1]}:{AB[1]+3}], v1, s[16:19], s28 offen
    s_mul_i32 s28, s21, 192
    s_mul_i32 s29, s20, 48
    s_add_u32 s28, s28, s29
    s_mul_i32 s28, s28, 1280
    v_lshrrev_b32 v1, 3, v7              ; r8
    v_lshrrev_b32 v2, 1, v1              ; r8>>1
    v_and_b32 v3, 7, v7
    v_xor_b32 v2, v2, v3
    v_mul_u32_u24 v1, 1280, v1
    v_add_u32 v1, s28, v1
    v_lshl_add_u32 v3, v2, 4, v1         ; even j
    v_xor_b32 v2, 4, v2
    v_lshl_add_u32 v4, v2, 4, v1         ; odd j
    """)
    for j in range(6):
        a(f"v_add_u32 v{VX+j}, {j*10240 - 1024*(j%4)}, v{3 + (j&1)}")
    a(f"""
    s_mul_i32 s28, s20, 320
    s_mul_i32 s29, s23, 320
    s_mul_i32 s30, s22, 160
    s_add_u32 s30, s30, 1280
    """)
    for j in range(5):
        a(f"""
        v_add_u32 v1, s28, v7
        v_add_u32 v1, {64*j}, v1          ; q
        v_mul_u32_u24 v2, 3277, v1
        v_lshrrev_b32 v2, 16, v2          ; row
        v_mul_u32_u24 v3, 20, v2
        v_sub_u32 v3, v1, v3              ; c
        v_bfe_u32 v4, v2, 3, 1
        v_lshlrev_b32 v4, 1, v4
        v_xor_b32 v3, v3, v4              ; c'
        v_mul_lo_u32 v2, v2, s50
        v_lshl_add_u32 v2, v3, 4, v2
        v_mul_u32_u24 v4, 205, v3
        v_lshrrev_b32 v4, 10, v4          ; seg
        v_and_b32 v5, 1, v4
        v_mul_u32_u24 v5, 1200, v5        ; +1280 (v) - 80
        v_lshrrev_b32 v4, 1, v4
        v_mul_u32_u24 v4, 80, v4          ; -160 + 80
        v_sub_u32 v5, v5, v4
        v_add_u32 v5, s30, v5
        v_mov_b32 v4, s29
        s_cmp_lt_u32 s22, 8
        s_cselect_b64 vcc, -1, 0
        v_cndmask_b32 v4, v4, v5, vcc
        v_add_u32 v2, v2, v4
        v_subrev_u32 v{VW+j}, {1024*(j%4)}, v2
        """)
    a(f"""
    s_mul_i32 s40, s20, 6144
    s_mul_i32 s41, s20, 5120
    s_add_u32 s41, s41, {WOFF}
    s_mov_b32 s42, 0
    s_mov_b32 s43, 0
    s_mov_b32 s44, 0
    s_mov_b32 s47, 0
    s_mov_b32 s53, {STAGE}
    """)
    for c in range(3):
        a += g1_dma(); a += g1_dma_adv()
    a(f"""
    v_and_b32 v1, 15, v7                 ; m
    v_lshrrev_b32 v2, 4, v7              ; g
    v_lshrrev_b32 v3, 1, v1
    v_xor_b32 v3, v3, v2
    s_mul_i32 s28, s51, 12288
    v_lshl_add_u32 v4, v1, 7, s28
    v_lshl_add_u32 v{LA}, v3, 4, v4
    v_xor_b32 v3, 4, v3
    v_lshl_add_u32 v{LA+1}, v3, 4, v4
    v_bfe_u32 v3, v7, 2, 2
    v_lshl_add_u32 v3, v2, 3, v3
    v_mul_u32_u24 v3, 320, v3
    v_and_b32 v4, 3, v7
    v_lshl_add_u32 v3, v4, 3, v3
    v_add_u32 v3, {WOFF}, v3
    v_and_b32 v5, 1, v2                  ; g&1
    s_cmp_lt_u32 s22, 8
    s_cselect_b32 s28, 5, 6
    s_cselect_b32 s29, 9, 5
    s_cmp_eq_u32 s52, 0
    s_cselect_b32 s28, 0, s28
    s_cselect_b32 s29, 4, s29
    s_add_u32 s30, s28, 1
    v_xor_b32 v4, s28, v5
    v_lshl_add_u32 v{LB}, v4, 5, v3
    v_xor_b32 v4, s30, v5
    v_lshl_add_u32 v{LB+1}, v4, 5, v3
    v_xor_b32 v4, s29, v5
    v_lshl_add_u32 v{LB+2}, v4, 5, v3
    v_mov_b32 v4, 0x3f803f80
    v_accvgpr_write_b32 a0, v4
    v_accvgpr_write_b32 a1, v4
    v_accvgpr_write_b32 a2, v4
    v_accvgpr_write_b32 a3, v4
    s_waitcnt vmcnt(33)
    v_lshlrev_b32 v4, 2, v0
    v_add_u32 v4, {SPARE}, v4
    v_sub_f32 v5, 0, v{AB[1]}
    ds_write_b32 v4, v5
    ds_write_b32 v4, v{AB[1]+2} offset:1024
    s_waitcnt lgkmcnt(0)
    s_cmp_lt_u32 s22, 8
    s_cbranch_scc1 {name}_kv
    """)
    a += g1_main(name + "_t", True)
    RC = AB[0]
    a(f"""
    v_and_b32 v1, 15, v7
    v_lshrrev_b32 v2, 4, v7
    s_mul_i32 s28, s51, 384
    s_add_u32 s28, s28, {SPARE}
    v_lshl_add_u32 v3, v1, 2, s28
    """)
    for T in range(6):
        a(f"ds_read_b32 v{RC+4*T}, v3 offset:{64*T}\nds_read_b32 v{RC+4*T+1}, v3 offset:{1024+64*T}")
    a(f"""
    v_lshlrev_b32 v4, 4, v7
    v_and_b32 v5, 1, v2
    v_lshlrev_b32 v5, 10, v5
    v_lshrrev_b32 v6, 1, v2
    v_lshl_add_u32 v5, v6, 8, v5
    v_lshl_add_u32 v5, v1, 4, v5
    s_lshl_b32 s28, s52, 9
    v_add_u32 v5, s28, v5
    s_cmp_lt_u32 s22, 12
    s_cselect_b32 s28, {PQ}, {HH}
    s_cselect_b32 s54, {20*4096}, {54*4096}
    s_add_u32 s56, s26, s28
    s_addc_u32 s57, s27, 0
    s_and_b32 s57, s57, 0xffff
    s_lshl_b32 s58, s54, 5
    s_mov_b32 s59, 0x20000
    s_mul_i32 s60, s21, 12
    s_mul_i32 s28, s51, 6
    s_add_u32 s60, s60, s28              ; GT0
    s_mul_i32 s61, s23, {5*4096}
    s_mul_i32 s28, s52, {3*4096}
    s_add_u32 s62, s61, s28
    s_add_u32 s63, s62, 4096             ; pair1
    s_add_u32 s61, s61, 8192             ; mixed
    s_cmp_ge_u32 s63, s54
    s_cselect_b32 s63, 0x40000000, s63
    s_waitcnt lgkmcnt(0)
    s_cmp_lt_u32 s22, 12
    s_cbranch_scc1 {name}_q
    """)
    def tbase(T):
        return A()(f"""
        s_add_u32 s28, s60, {T}
        s_lshr_b32 s29, s28, 2
        s_mul_i32 s29, s29, s54
        s_and_b32 s28, s28, 3
        s_lshl_b32 s28, s28, 10
        s_add_u32 s64, s28, s29
        s_add_u32 s65, s64, s62
        s_add_u32 s66, s64, s63
        s_add_u32 s67, s64, s61
        """)
    TMP = BB[0]
    PK = AB[1]
    def epi(kind):
        e = A()
        e(f"s_mov_b32 s30, {LOG2E | (0x80000000 if kind == 'silu' else 0)}\ns_mov_b32 s31, 0x358637bd")
        for T in range(6):
            c = RC + 4*T
            e(f"v_mul_f32 v{c+2}, s30, v{c+1}")
            if kind == "silu": e(f"v_rcp_f32 v{c+3}, v{c+1}")
        if kind == "phi": e(f"v_mov_b32 v{TMP+20}, s31\nv_mov_b32 v{TMP+21}, s31")
        for T in range(6):
            c = RC + 4*T; u0 = acc(T, 0)
            e += tbase(T)
            for i in range(10):
                e(f"v_pk_fma_f32 {vr(u0+2*i,2)}, {vr(CS+2*i,2)}, {vr(c,2)}, {vr(u0+2*i,2)} op_sel_hi:[1,0,1]")
            for i in range(10):
                e(f"v_pk_mul_f32 {vr(TMP+2*i,2)}, {vr(u0+2*i,2)}, {vr(c+2,2)} op_sel_hi:[1,0]")
            if kind == "silu":
                for i in range(20): e(f"v_exp_f32 v{TMP+i}, v{TMP+i}")
                for i in range(10): e(f"v_pk_fma_f32 {vr(TMP+2*i,2)}, {vr(TMP+2*i,2)}, {vr(c+2,2)}, {vr(c+2,2)} op_sel:[0,1,1] op_sel_hi:[1,1,1]")
                for i in range(20): e(f"v_rcp_f32 v{TMP+i}, v{TMP+i}")
                for i in range(10): e(f"v_pk_mul_f32 {vr(u0+2*i,2)}, {vr(u0+2*i,2)}, {vr(TMP+2*i,2)}")
            else:
                for i in range(20): e(f"v_exp_f32_e64 v{TMP+i}, v{TMP+i} clamp")
                for i in range(10): e(f"v_pk_fma_f32 {vr(u0+2*i,2)}, {vr(u0+2*i,2)}, {vr(c,2)}, 1.0 op_sel:[0,1,0] op_sel_hi:[1,1,0]")
                for i in range(20): e(f"v_max_f32 v{u0+i}, v{u0+i}, v{TMP+i}")
                for i in range(10): e(f"v_pk_add_f32 {vr(u0+2*i,2)}, {vr(u0+2*i,2)}, {vr(TMP+20,2)}")
            p = PK + 8*(T & 1); mx = PK + 16 + 2*(T & 1)
            for i in range(8): e(f"v_cvt_pk_bf16_f32 v{p+i}, v{u0+2*i}, v{u0+2*i+1}")
            for i in range(2): e(f"v_cvt_pk_bf16_f32 v{mx+i}, v{u0+16+2*i}, v{u0+17+2*i}")
            e(f"buffer_store_dwordx4 {vr(p)}, v4, s[56:59], s65 offen")
            e(f"buffer_store_dwordx4 {vr(p+4)}, v4, s[56:59], s66 offen")
            if T & 1:
                e(f"s_sub_u32 s67, s67, 1024")
                e(f"v_permlane16_swap_b32 v{PK+16}, v{PK+18}\nv_permlane16_swap_b32 v{PK+17}, v{PK+19}")
                e(f"buffer_store_dwordx4 {vr(PK+16)}, v5, s[56:59], s67 offen")
        return e
    a += epi("silu")
    a(f"s_endpgm\n{name}_q:")
    a += epi("phi")
    a(f"s_endpgm\n{name}_kv:")
    a += g1_main(name + "_n", False)
    NM = AB[0]; RS = AB[1]; TMP = BB[0]
    a(f"""
    v_and_b32 v1, 15, v7
    v_lshrrev_b32 v2, 4, v7
    s_mul_i32 s28, s51, 384
    s_add_u32 s28, s28, {SPARE}
    v_lshl_add_u32 v3, v2, 4, s28
    """)
    for T in range(6):
        a(f"ds_read_b128 {vr(NM+4*T)}, v3 offset:{64*T}\nds_read_b128 {vr(RS+4*T)}, v3 offset:{1024+64*T}")
    a(f"""
    s_mov_b32 s30, {LOG2E}
    s_mov_b32 s31, {LOG2E}
    v_mov_b32 v{TMP+20}, 0x358637bd
    v_mov_b32 v{TMP+21}, 0x358637bd
    v_mov_b32 v{TMP+22}, 0x3f803f80
    v_cmp_gt_u32 s[32:33], 8, v1
    s_waitcnt lgkmcnt(0)
    """)
    FR = 232
    prods = [(0,3),(0,4),(1,3),(1,4),(1,5),(2,3),(2,4),(2,5)]
    for P in range(3):
        if P == 1:
            a(f"""
            s_cmp_eq_u32 s21, 10
            s_cselect_b32 s28, s51, 0
            s_cmp_eq_u32 s28, 1
            s_cbranch_scc1 {name}_kvdone
            """)
        for h in range(2):
            T = 2*P + h; u0 = acc(T, 0); nm = NM + 4*T; rs = RS + 4*T
            for t in range(5):
                for i in range(2):
                    r = u0 + 4*t + 2*i
                    a(f"v_pk_fma_f32 {vr(r,2)}, {vr(nm+2*i,2)}, {vr(CS+4*t,2)}, {vr(r,2)} op_sel_hi:[1,0,1]")
            for t in range(5):
                for i in range(2):
                    r = u0 + 4*t + 2*i
                    a(f"v_pk_mul_f32 {vr(r,2)}, {vr(r,2)}, {vr(rs+2*i,2)}")
            for i in range(6): a(f"v_pk_mul_f32 {vr(TMP+2*i,2)}, {vr(u0+2*i,2)}, s[30:31]")
            for i in range(12): a(f"v_exp_f32_e64 v{TMP+i}, v{TMP+i} clamp")
            for t in range(2, 5):
                for i in range(2): a(f"v_cvt_pk_bf16_f32 v{FR+4*(t+1)+2*h+i}, v{u0+4*t+2*i}, v{u0+4*t+2*i+1}")
            for i in range(2): a(f"v_cndmask_b32 v{FR+12+2*h+i}, v{FR+12+2*h+i}, v{TMP+22}, s[32:33]")
            for i in range(6): a(f"v_pk_add_f32 {vr(u0+2*i,2)}, {vr(u0+2*i,2)}, 1.0 op_sel_hi:[1,0]")
            for i in range(12): a(f"v_max_f32 v{u0+i}, v{u0+i}, v{TMP+i}")
            for i in range(6): a(f"v_pk_add_f32 {vr(u0+2*i,2)}, {vr(u0+2*i,2)}, {vr(TMP+20,2)}")
            for t in range(3):
                for i in range(2): a(f"v_cvt_pk_bf16_f32 v{FR+4*t+2*h+i}, v{u0+4*t+2*i}, v{u0+4*t+2*i+1}")
        for n, (kx, vy) in enumerate(prods):
            d = ar(4 + 4*n)
            a(f"v_mfma_f32_16x16x32_bf16 {d}, {vr(FR+4*kx)}, {vr(FR+4*vy)}, {'0' if P == 0 else d}")
    a(f"{name}_kvdone:")
    for n, (kx, vy) in enumerate(prods):
        eoff = {3: -8, 4: 8, 5: 24}[vy]
        a(f"""
        v_add_u32 v3, {4*kx}, v2            ; dc
        v_cmp_le_u32 vcc, 5, v3
        v_cndmask_b32 v4, 0, 20, vcc        ; 20*head
        v_add_u32 v5, {eoff}, v1
        v_sub_u32 v5, v5, v4                ; e local
        """)
        if vy == 3:
            a(f"v_cmp_eq_u32 vcc, 0, v1\nv_cndmask_b32 v6, v5, 0, vcc\nv_cndmask_b32 v5, v5, 20, vcc")
        else:
            a(f"v_mov_b32 v6, v5")
        a(f"""
        v_mad_u32_u24 v5, v3, 21, v5
        v_cmp_gt_u32 vcc, 20, v6
        v_cmp_gt_u32 s[34:35], 10, v3
        s_and_b64 vcc, vcc, s[34:35]
        v_mov_b32 v6, 255
        v_cndmask_b32 v5, v6, v5, vcc
        v_lshlrev_b32 v{8+n}, 4, v5
        """)
    a(f"""
    s_lshl_b32 s28, s52, 12
    s_add_u32 s28, s28, {SPARE + 2048}
    """)
    for n in range(8): a(f"v_add_u32 v{16+n}, s28, v{8+n}")
    a(f"s_cmp_eq_u32 s51, 0\ns_cbranch_scc1 {name}_kv0")
    for n in range(8): a(f"ds_write_b128 v{16+n}, {ar(4+4*n)}")
    a(f"s_waitcnt lgkmcnt(0)\ns_barrier\ns_endpgm\n{name}_kv0:\ns_barrier")
    for n in range(8): a(f"ds_read_b128 {vr(32+4*n)}, v{16+n}")
    for n in range(32): a(f"v_accvgpr_read_b32 v{64+n}, a{4+n}")
    a(f"""
    s_lshl_b32 s28, s22, 1
    s_add_u32 s28, s28, s52              ; hp
    s_mul_i32 s28, s28, 11
    s_add_u32 s28, s28, s21
    s_lshl_b32 s28, s28, 12
    s_add_u32 s28, s28, {KVP}
    s_waitcnt lgkmcnt(0)
    """)
    for n in range(16): a(f"v_pk_add_f32 {vr(32+2*n,2)}, {vr(32+2*n,2)}, {vr(64+2*n,2)}")
    for n in range(8): a(f"buffer_store_dwordx4 {vr(32+4*n)}, v{8+n}, s[16:19], s28 offen")
    a(f"{name}_end:\ns_endpgm")
    return a

def k_oph(name):
    a = A()
    a(f"""
    s_cmp_ge_u32 s2, 256
    s_cbranch_scc1 {name}_end
    s_load_dwordx2 s[26:27], s[0:1], 64
    v_lshrrev_b32 v1, 6, v0
    v_and_b32 v7, 63, v0
    v_readfirstlane_b32 s20, v1
    s_and_b32 s21, s2, 15                ; hp
    s_lshr_b32 s22, s2, 4
    s_waitcnt lgkmcnt(0)
    """)
    a += srd(16, 26, 27, WS_USED)
    a(f"""
    s_mul_i32 s28, s21, {11*4096}
    s_add_u32 s28, s28, {KVP}
    v_lshlrev_b32 v1, 4, v0
    v_cmp_gt_u32 vcc, 210, v0
    v_mov_b32 v2, 0x40000000
    v_cndmask_b32 v1, v2, v1, vcc
    """)
    for i in range(11):
        a(f"buffer_load_dwordx4 {vr(16+4*i)}, v1, s[16:19], s28 offen")
        if i < 10: a("s_add_u32 s28, s28, 4096")
    a(f"""
    s_mul_i32 s23, s21, 5
    s_lshr_b32 s23, s23, 2               ; ksA
    s_lshl_b32 s29, s22, 1
    s_lshr_b32 s30, s20, 1
    s_add_u32 s29, s29, s30              ; rb64
    s_mul_i32 s29, s29, {20*4096}
    s_lshl_b32 s30, s23, 12
    s_add_u32 s29, s29, s30
    s_and_b32 s30, s20, 1
    s_lshl_b32 s30, s30, 11
    s_add_u32 s29, s29, s30
    s_add_u32 s29, s29, {PQ}
    s_add_u32 s30, s29, 4096
    v_lshlrev_b32 v4, 4, v7
    buffer_load_dwordx4 v[64:67], v4, s[16:19], s29 offen
    buffer_load_dwordx4 v[68:71], v4, s[16:19], s30 offen
    buffer_load_dwordx4 v[72:75], v4, s[16:19], s29 offen offset:1024
    buffer_load_dwordx4 v[76:79], v4, s[16:19], s30 offen offset:1024
    v_and_b32 v1, 15, v7                 ; i
    v_lshrrev_b32 v2, 4, v7              ; g
    """)
    a(f"""
    v_lshrrev_b32 v3, 2, v1              ; i>>2
    v_and_b32 v5, 3, v1                  ; i&3
    v_lshl_add_u32 v6, v3, 3, v5         ; e0 = 8*(i>>2) + (i&3)
    v_cmp_le_u32 vcc, 20, v6
    v_cndmask_b32 v8, 0, 5, vcc
    v_lshlrev_b32 v12, 2, v8
    v_sub_u32 v12, v6, v12
    v_add_u32 v6, 4, v6
    v_cmp_le_u32 vcc, 20, v6
    v_cndmask_b32 v9, 0, 5, vcc
    v_lshlrev_b32 v13, 2, v9
    v_sub_u32 v13, v6, v13
    v_cmp_gt_u32 vcc, 8, v1
    v_cndmask_b32 v10, 64, 5, vcc
    v_add_u32 v14, 12, v1
    v_add_u32 v6, v3, v5                 ; r=0: g>=3 ; r=1: g>=2 ; r>=2: b
    v_cmp_le_u32 vcc, 3, v6
    v_cmp_le_u32 s[34:35], 2, v5
    s_or_b64 vcc, vcc, s[34:35]
    v_cndmask_b32 v11, 0, 5, vcc
    v_mov_b32 v15, 20
    """)
    for k in range(2):
        a(f"""
        s_add_u32 s31, s23, {k}
        s_mul_i32 s32, s31, 205
        s_lshr_b32 s32, s32, 10
        s_mul_i32 s32, s32, 5
        s_sub_u32 s32, s31, s32
        s_cmp_eq_u32 s32, 2
        s_cselect_b32 s33, 1, 0
        s_cselect_b32 s36, 1, 4
        s_lshl_b32 s31, s31, 3
        s_mul_i32 s32, s21, 10
        s_sub_u32 s31, s31, s32
        v_lshlrev_b32 v3, s33, v2
        v_add_u32 v3, s31, v3             ; dc (j=0)
        """)
        for j in range(2):
            if j: a("v_add_u32 v3, s36, v3")
            for tl in range(4):
                a(f"""
                v_sub_u32 v5, v3, v{8+tl}
                v_cmp_gt_u32 vcc, 5, v5
                v_mad_u32_u24 v5, v3, 21, v{12+tl}
                v_mov_b32 v6, 255
                v_cndmask_b32 v5, v6, v5, vcc
                v_lshlrev_b32 v{80+tl*4+k*2+j}, 3, v5
                """)
    a("s_waitcnt vmcnt(4)")
    for i in range(1, 11):
        a(f"v_pk_add_f32 v[16:17], v[16:17], {vr(16+4*i,2)}\nv_pk_add_f32 v[18:19], v[18:19], {vr(18+4*i,2)}")
    a(f"""
    v_cvt_pk_bf16_f32 v16, v16, v17
    v_cvt_pk_bf16_f32 v17, v18, v19
    v_lshlrev_b32 v3, 3, v0
    ds_write_b64 v3, v[16:17]
    s_waitcnt lgkmcnt(0)
    s_barrier
    """)
    for n in range(16): a(f"ds_read_b64 {vr(16+2*n,2)}, v{80+n}")
    a(f"""
    s_lshl_b32 s28, s22, 3
    s_lshl_b32 s29, s20, 1
    s_add_u32 s28, s28, s29
    s_mul_i32 s28, s28, 20480
    s_mul_i32 s29, s21, 1280
    s_add_u32 s28, s28, s29
    s_add_u32 s28, s28, {OO}
    v_lshlrev_b32 v5, 4, v1
    v_lshl_add_u32 v5, v2, 3, v5
    v_cmp_gt_u32 vcc, 2, v2
    v_mov_b32 v6, 0x40000000
    v_cndmask_b32 v5, v6, v5, vcc
    s_waitcnt vmcnt(0) lgkmcnt(0)
    """)
    for T in range(2):
        for k in range(2):
            for tl in range(4):
                d = vr(96 + T*16 + tl*4)
                a(f"v_mfma_f32_16x16x32_bf16 {d}, {vr(16+tl*8+k*4)}, {vr(64+T*8+k*4)}, {'0' if k == 0 else d}")
    for T in range(2):
        b = 96 + T*16
        for r in range(3): a(f"v_add_f32 v{b+12+r}, 0x358637bd, v{b+12+r}")
        for r in range(3): a(f"v_rcp_f32 v{b+12+r}, v{b+12+r}")
        for tl in range(3):
            for r in range(4): a(f"v_mul_f32 v{b+4*tl+r}, v{b+4*tl+r}, v{b+12+tl}")
        for i in range(6): a(f"v_cvt_pk_bf16_f32 v{48+8*T+i}, v{b+2*i}, v{b+2*i+1}")
        a(f"buffer_store_dwordx4 {vr(48+8*T)}, v4, s[16:19], s28 offen")
        a(f"buffer_store_dwordx2 {vr(52+8*T,2)}, v5, s[16:19], s28 offen offset:1024")
        if T == 0: a("s_add_u32 s28, s28, 20480")
    a(f"{name}_end:\ns_endpgm")
    return a

def k_gemm2(name):
    a = A()
    G = 8
    AR = 88
    NA = 5
    BV = 168
    def breg(s, t): return ar(s*20 + 4*t) if s < 12 else vr(BV + (s-12)*20 + 4*t)
    SA = 208
    XB = 228
    RED = 102400
    a(f"""
    s_cmp_ge_u32 s2, 256
    s_cbranch_scc1 {name}_end
    s_load_dwordx2 s[4:5], s[0:1], 0
    s_load_dwordx2 s[6:7], s[0:1], 48
    s_load_dwordx2 s[26:27], s[0:1], 64
    v_lshrrev_b32 v1, 6, v0
    v_and_b32 v7, 63, v0
    v_readfirstlane_b32 s20, v1
    s_and_b32 s21, s2, 7
    s_lshl_b32 s21, s21, 2
    s_lshr_b32 s22, s2, 6
    s_add_u32 s21, s21, s22              ; rb64
    s_bfe_u32 s22, s2, 0x30003           ; ct
    s_waitcnt lgkmcnt(0)
    """)
    a += srd(8, 4, 5, S*D*2)
    a += srd(12, 6, 7, S*D*2)
    a += srd(16, 26, 27, WS_USED)
    a(f"""
    s_mul_i32 s23, s20, 13
    s_min_u32 s28, s20, 2
    s_add_u32 s23, s23, s28
    s_mul_i32 s40, s21, {54*4096}
    s_lshl_b32 s28, s23, 12
    s_add_u32 s40, s40, s28
    s_add_u32 s40, s40, {HH}             ; A soffset
    s_mul_i32 s42, s22, {74*5120}
    s_add_u32 s42, s42, {WP}
    s_mul_i32 s28, s23, 5120
    s_add_u32 s41, s42, s28              ; B soffset
    v_lshlrev_b32 v4, 4, v7
    v_add_u32 v5, 4096, v4
    """)
    def ldB(s):
        L = [f"  buffer_load_dwordx4 {breg(s,t)}, v4, s[16:19], s41 offen offset:{1024*t}" for t in range(4)]
        L.append(f"  buffer_load_dwordx4 {breg(s,4)}, v5, s[16:19], s41 offen")
        L.append("  s_add_u32 s41, s41, 5120")
        return L
    def ldA(s):
        L = [f"  buffer_load_dwordx4 {vr(AR+(s%NA)*16+4*T)}, v4, s[16:19], s40 offen offset:{1024*T}" for T in range(4)]
        L.append("  s_add_u32 s40, s40, 4096")
        return L
    for s in range(NA - 1): a += ldA(s) + ldB(s)
    a(f"""
    s_mul_i32 s43, s20, 25600
    s_add_u32 s44, s42, {54*5120}
    s_add_u32 s44, s44, s43              ; src
    """)
    def dmaW(i0, n):
        L = []
        for i in range(i0, i0 + n):
            if i % 4 == 0: L += [f"  s_add_u32 m0, s43, {1024*i}", f"  s_add_u32 s45, s44, {1024*i}"]
            L.append(f"  buffer_load_dwordx4 v4, s[16:19], s45 offen offset:{1024*(i%4)} lds")
        return L
    def ldO(i0, n):
        L = []
        for i in range(i0, i0 + n):
            if i % 4 == 0: L.append(f"  s_add_u32 s47, s46, {1024*i}")
            L.append(f"  buffer_load_dwordx4 {ar(4*i)}, v4, s[16:19], s47 offen offset:{1024*(i%4)}")
        return L
    a(f"""
    s_lshl_b32 s46, s21, 2
    s_add_u32 s46, s46, s20
    s_mul_i32 s48, s46, {16*1280}
    s_mul_i32 s28, s22, 160
    s_add_u32 s48, s48, s28
    s_mul_i32 s46, s46, 20480
    s_add_u32 s46, s46, {OO}
    """)
    for i in range(3):
        a(f"""
        v_add_u32 v6, {64*i}, v7
        v_mul_u32_u24 v243, 6554, v6
        v_lshrrev_b32 v243, 16, v243
        v_mul_u32_u24 v244, 10, v243
        v_sub_u32 v244, v6, v244
        v_mul_u32_u24 v245, 1280, v243
        v_lshl_add_u32 v245, v244, 4, v245
        v_cmp_gt_u32 vcc, 160, v6
        v_mov_b32 v246, 0x40000000
        v_cndmask_b32 v{1+i}, v246, v245, vcc
        v_mul_u32_u24 v245, 336, v243
        v_lshl_add_u32 v245, v244, 5, v245
        v_cndmask_b32 v{240+i}, 0, v245, vcc
        """)
    issued = []
    for s in range(NA - 1): issued += [("A", s)]*4 + [("B", s)]*5
    extra = {10: dmaW(0, 12), 11: dmaW(12, 13) , 12: ldO(0, 10), 13: ldO(10, 10)}
    for s in range(14):
        nxt = s + NA - 1
        fill = []
        if nxt < 14:
            if nxt == 13:
                fill += ["  s_cmp_lt_u32 s20, 2", "  s_cselect_b32 s40, s40, 0x40000000"]
            fill += ldA(nxt) + ldB(nxt)
        fill += extra.get(s, [])
        last = max(i for i, tg in enumerate(issued) if tg[1] == s and tg[0] in "AB")
        a(f"s_waitcnt vmcnt({len(issued) - 1 - last})")
        M = []
        for T in range(4):
            for t in (range(5) if T % 2 == 0 else range(4, -1, -1)):
                d = vr(G + (T*5+t)*4)
                M.append(f"  v_mfma_f32_16x16x32_bf16 {d}, {breg(s,t)}, {vr(AR+(s%NA)*16+4*T)}, {'0' if s == 0 else d}")
        a += weave(M, fill)
        for f in fill:
            if "buffer_load" in f: issued.append(("A" if nxt < 14 else "X", nxt))
    for i in range(3): a(f"buffer_load_dwordx4 {vr(XB+4*i)}, v{1+i}, s[8:11], s48 offen")
    for T in range(4):
        a(f"""
        s_sub_u32 s28, s20, {T+1}
        s_and_b32 s28, s28, 3
        s_cmp_eq_u32 s28, 3
        s_cbranch_scc1 {name}_own{T}
        s_mul_i32 s28, s28, 5120
        s_add_u32 s28, s28, {RED + T*15360}
        v_add_u32 v6, s28, v4
        """)
        if T == 0: a("s_nop 4")
        for t in range(5): a(f"ds_write_b128 v6, {vr(G+(T*5+t)*4)} offset:{1024*t}")
        a(f"s_branch {name}_nx{T}\n{name}_own{T}:")
        if T == 0: a("s_nop 7")
        for i in range(20): a(f"v_mov_b32 v{AR+60+i}, v{G+T*20+i}")
        a(f"{name}_nx{T}:")
    a(f"""
    s_mul_i32 s28, s20, 15360
    s_add_u32 s28, s28, {RED}
    v_add_u32 v6, s28, v4
    v_add_u32 v5, 51200, v4
    s_waitcnt vmcnt(23) lgkmcnt(0)
    s_barrier
    """)
    for j in range(15): a(f"ds_read_b128 {vr(AR+4*j)}, v6 offset:{1024*j}")
    def rdB(s):
        return [f"  ds_read_b128 {vr(G+(s%3)*20+4*t)}, v{4 if s < 10 else 5} offset:{(s%10)*5120+1024*t}" for t in range(5)]
    a += rdB(0) + rdB(1)
    g0 = AR + 60
    V = []
    for j in range(3):
        for i in range(10): V.append(f"  v_pk_add_f32 {vr(g0+2*i,2)}, {vr(g0+2*i,2)}, {vr(AR+20*j+2*i,2)}")
    V.append(f"  s_mov_b32 s30, {LOG2E|0x80000000}"); V.append(f"  s_mov_b32 s31, {LOG2E|0x80000000}")
    for i in range(10): V.append(f"  v_pk_mul_f32 {vr(AR+2*i,2)}, {vr(g0+2*i,2)}, s[30:31]")
    for i in range(20): V.append(f"  v_exp_f32 v{AR+i}, v{AR+i}")
    for i in range(10): V.append(f"  v_pk_add_f32 {vr(AR+2*i,2)}, {vr(AR+2*i,2)}, 1.0 op_sel_hi:[1,0]")
    for i in range(20): V.append(f"  v_rcp_f32 v{AR+i}, v{AR+i}")
    for i in range(10): V.append(f"  v_pk_mul_f32 {vr(g0+2*i,2)}, {vr(g0+2*i,2)}, {vr(AR+2*i,2)}")
    per = (len(V) + 19)//20
    for s in range(20):
        vm = 3 + 19 - s
        a(f"s_waitcnt vmcnt({vm}) lgkmcnt({5 if s < 19 else 0})")
        M = [f"  v_mfma_f32_16x16x32_bf16 {vr(SA+4*t)}, {vr(G+(s%3)*20+4*t)}, {ar(4*s)}, {'0' if s == 0 else vr(SA+4*t)}" for t in range(5)]
        fill = mixf(rdB(s+2), V[s*per:(s+1)*per]) if (s + 2 < 20 and V[s*per:(s+1)*per]) else ((rdB(s+2) if s+2 < 20 else []) + V[s*per:(s+1)*per])
        a += weave(M, fill)
    a(f"""
    v_and_b32 v243, 15, v7
    v_lshrrev_b32 v244, 4, v7
    v_mul_u32_u24 v243, 336, v243
    v_lshl_add_u32 v243, v244, 4, v243
    v_add_u32 v243, s28, v243
    """)
    for i in range(3): a(f"v_add_u32 v{240+i}, s28, v{240+i}")
    for i in range(10): a(f"v_pk_mul_f32 {vr(SA+2*i,2)}, {vr(SA+2*i,2)}, {vr(g0+2*i,2)}")
    for t in range(5): a(f"ds_write_b128 v243, {vr(SA+4*t)} offset:{64*t}")
    a("s_waitcnt lgkmcnt(0)")
    for i in range(3): a(f"ds_read_b128 {vr(G+8*i)}, v{240+i}\nds_read_b128 {vr(G+8*i+4)}, v{240+i} offset:16")
    a("s_waitcnt vmcnt(0)")
    for i in range(12):
        a(f"v_lshlrev_b32 v{AR+2*i}, 16, v{XB+i}\nv_and_b32 v{AR+2*i+1}, 0xffff0000, v{XB+i}")
    a("s_waitcnt lgkmcnt(0)")
    for i in range(12): a(f"v_pk_add_f32 {vr(G+2*i,2)}, {vr(G+2*i,2)}, {vr(AR+2*i,2)}")
    for i in range(12): a(f"v_cvt_pk_bf16_f32 v{XB+i}, v{G+2*i}, v{G+2*i+1}")
    for i in range(3): a(f"buffer_store_dwordx4 {vr(XB+4*i)}, v{1+i}, s[12:15], s48 offen")
    a(f"{name}_end:\ns_endpgm")
    return a

def build():
    K = [("prep_kernel", k_prep, 128, 128, 16384), ("gemm1_kernel", k_gemm1, 296, 256, 163840),
         ("oph_kernel", k_oph, 128, 128, 4096), ("gemm2_kernel", k_gemm2, 512, 256, 163840)]
    out = []
    for n, f, v, ac, lds in K: out.append(f"; @launch kernel={n} grid=(256,1,1) block=(256,1,1) lds={lds}")
    out.append('.amdgcn_target "amdgcn-amd-amdhsa--gfx950"\n.text')
    for n, f, v, ac, lds in K:
        body, added = haz.fix(f(n))
        print(n, "instrs", len(body), "nops added", added, file=sys.stderr)
        out.append(khead(n)); out += body
    out.append('.section .rodata,"a"')
    for n, f, v, ac, lds in K: out.append(".p2align 6\n" + kd(n, v, ac))
    return "\n".join(out) + "\n"
if __name__ == "__main__":
    open(sys.argv[1] if len(sys.argv) > 1 else "v1.s", "w").write(build())
```

```python
import sys, re
from asmlib import kd, khead
import haz, align

NAME = "recurrent_scan__linear_attn_block__dense_activation_silu__prompt_kernel"
S, D, F = 2048, 640, 1728
FA = 0x1000; F1 = 0x2000; FK = 0x3000; FO = 0x4000
NEGM = 0x10000; RSTD = 0x12000
KVP   = 0x40000
PQ    = 0x100000
OO    = 0x380000
HH    = 0x600000
WP    = 0xCC0000
WS_USED = WP + 8*74*5120
TS = 0x1400000
LOG2E = 0x3fb8aa3b
OOB = 0x40000000
STAGE = 45056; WOFF = 24576; SPARE = 3*STAGE
PACKL = SPARE + 4096
CSX = SPARE + 4096
KVX = SPARE + 4096
RED = 102400
DIAG = False
OPT = dict(chunk2_early=True, tail=(15, 15, 10), epi_groups=5, gap1=12, spin=200000)

def stamp(i): return [f"  s_memrealtime s[{76+2*i}:{77+2*i}]"] if DIAG else []
def stamp_out(n):
    if not DIAG: return []
    L = ["  s_waitcnt vmcnt(0)", f"  s_memrealtime s[{76+2*(n-1)}:{77+2*(n-1)}]", "  s_waitcnt lgkmcnt(0)",
         "  s_lshl_b32 s28, s2, 2", "  s_add_u32 s28, s28, s20", "  s_lshl_b32 s28, s28, 6",
         f"  s_add_u32 s28, s28, {TS}", "  v_mov_b32 v1, s28"]
    for i in range(n):
        L += [f"  v_mov_b32 v3, s{76+2*i}", f"  global_store_dword v1, v3, s[26:27] offset:{4*i}"]
    L += ["  v_mov_b32 v3, s22", "  global_store_dword v1, v3, s[26:27] offset:60"]
    return L
class A(list):
    def __call__(self, s):
        for x in s.strip("\n").split("\n"):
            x = x.strip()
            m = re.match(r"s_cselect_b32 (s\d+), (\d+|0x[0-9a-f]+), (\d+|0x[0-9a-f]+)\s*(;.*)?$", x)
            if m and int(m.group(2), 0) > 64 and int(m.group(3), 0) > 64:
                self.append(f"  s_mov_b32 {m.group(1)}, {m.group(3)}")
                x = f"s_cselect_b32 {m.group(1)}, {m.group(2)}, {m.group(1)}"
            if x: self.append(("" if x.endswith(":") else "  ") + x)
        return self
def L(s): return list(A()(s))
def vr(b, n=4): return f"v[{b}:{b+n-1}]" if n > 1 else f"v{b}"
def ar(b, n=4): return f"a[{b}:{b+n-1}]" if n > 1 else f"a{b}"
def srd(d, lo, nbytes):
    return L(f"s_mov_b32 s{d}, s{lo}\ns_and_b32 s{d+1}, s{lo+1}, 0xffff\ns_mov_b32 s{d+2}, {nbytes}\ns_mov_b32 s{d+3}, 0x20000")
def weave(M, fill, start=0, end=None):
    out = []; end = len(M) if end is None else end
    k = 0; nf = len(fill); n = end - start
    for i, m in enumerate(M):
        out.append(m)
        if start <= i < end:
            tgt = (i - start + 1) * nf // n
            while k < tgt: out.append(fill[k]); k += 1
    return out
def mixf(*ls):
    keyed = []
    for li, l in enumerate(ls):
        for j, x in enumerate(l): keyed.append(((j + 0.5)/len(l), li, j, x))
    keyed.sort(key=lambda t: t[:3])
    return [x[3] for x in keyed]
def nvm(lines): return sum(1 for x in lines if x.strip().startswith(("buffer_", "global_")))
OUTL = A()
def spin(tag, vaddr, vdst, first_done):
    a = A()
    if not first_done:
        a(f"buffer_load_dword v{vdst}, v{vaddr}, s[16:19], 0 offen sc1\ns_waitcnt vmcnt(0)")
    a(f"v_cmp_ne_u32 vcc, s39, v{vdst}\ns_nop 1\ns_cmp_lg_u64 vcc, 0\ns_cbranch_scc1 {tag}_slow\n{tag}_ok:")
    OUTL(f"""
    {tag}_slow:
    s_mov_b32 s38, {OPT['spin']}
    {tag}_again:
    buffer_load_dword v{vdst}, v{vaddr}, s[16:19], 0 offen sc1
    s_sub_u32 s38, s38, 1
    s_cmp_eq_u32 s38, 0
    s_cbranch_scc1 {tag}_ok
    s_waitcnt vmcnt(0)
    v_cmp_ne_u32 vcc, s39, v{vdst}
    s_nop 1
    s_cmp_lg_u64 vcc, 0
    s_cbranch_scc1 {tag}_again
    s_branch {tag}_ok
    """)
    return a

ACC = 8; CS = 128; AB = [148, 172]; BB = [196, 216]; VX = 236; VW = 242; LA = 247; LB = 249; VF = 255
ONES = 240
def acc(T, t): return ACC + (T*5 + t)*4
def g1_mfma(buf, transposed, first):
    M = []
    for T in range(6):
        ts = range(5) if T % 2 == 0 else range(4, -1, -1)
        for t in ts:
            x = vr(AB[buf] + 4*T); w = vr(BB[buf] + 4*t); d = vr(acc(T, t))
            p, q = (w, x) if transposed else (x, w)
            M.append(f"  v_mfma_f32_16x16x32_bf16 {d}, {p}, {q}, {'0' if first else d}")
    if buf == 0:
        for t in range(5):
            w = vr(BB[buf] + 4*t); d = vr(CS + 4*t)
            p, q = (w, ar(ONES)) if transposed else (ar(ONES), w)
            M.append(f"  v_mfma_f32_16x16x32_bf16 {d}, {p}, {q}, {'0' if first else d}")
    return M
def g1_reads(buf):
    R = []
    def b(t):
        base = LB + 3*buf + (2 if t == 4 else (t & 1)); off = 1024 if t in (2, 3) else 0
        return [f"  ds_read_b64_tr_b16 {vr(BB[buf]+4*t,2)}, v{base} offset:{off}",
                f"  ds_read_b64_tr_b16 {vr(BB[buf]+4*t+2,2)}, v{base} offset:{off+256}"]
    def x(T): return [f"  ds_read_b128 {vr(AB[buf]+4*T)}, v{LA+buf} offset:{T*2048}"]
    R += x(0)
    for t in range(5): R += b(t)
    for T in range(1, 6): R += x(T)
    return R
def g1_dma_x():
    Dm = []
    for j in range(6):
        if j == 0: Dm.append("  s_mov_b32 m0, s40")
        if j == 4: Dm.append("  s_add_u32 m0, s40, 4096")
        Dm.append(f"  buffer_load_dwordx4 v{VX+j}, s[8:11], s42 offen offset:{1024*(j%4)} lds")
    return Dm
def g1_dma_w():
    Dm = []
    for j in range(5):
        Dm.append("  s_mov_b32 m0, s41" if j == 0 else f"  s_add_u32 m0, s41, {1024*j}")
        Dm.append(f"  buffer_load_dwordx4 v{VW+j}, s[12:15], s43 offen lds")
    return Dm
def g1_dma_adv():
    return L(f"""
    s_add_u32 s42, s42, 128
    s_add_u32 s43, s43, s45
    s_cmp_eq_u32 s44, {2*STAGE}
    s_cselect_b32 s46, {-2*STAGE & 0xffffffff}, s53
    s_add_u32 s44, s44, s46
    s_add_u32 s40, s40, s46
    s_add_u32 s41, s41, s46
    """)
def g1_rd_adv_s():
    return L(f"s_cmp_eq_u32 s47, {2*STAGE}\ns_cselect_b32 s48, {-2*STAGE & 0xffffffff}, s53\ns_add_u32 s47, s47, s48")
def g1_rd_adv_v(buf):
    return [f"  v_add_u32 v{r}, s48, v{r}" for r in [LA+buf] + list(range(LB+3*buf, LB+3*buf+3))]

BV = 168
def breg(s, t): return ar(s*20 + 4*t) if s < 12 else vr(BV + (s-12)*20 + 4*t)
def bstream(i0, n):
    out = []
    for i in range(i0, i0 + n):
        s, t = divmod(i, 5)
        if t < 4: out.append(f"  buffer_load_dwordx4 {breg(s,t)}, v4, s[16:19], s68 offen offset:{1024*t} sc1")
        else: out += [f"  buffer_load_dwordx4 {breg(s,t)}, v5, s[16:19], s68 offen sc1", "  s_add_u32 s68, s68, 5120"]
    return out
def wo_dma(i0, n):
    out = []
    for i in range(i0, i0 + n):
        if i % 4 == 0 or i == i0:
            b = i - i % 4
            out += [f"  s_add_u32 m0, s69, {1024*b}", f"  s_add_u32 s71, s70, {1024*b}"]
        out.append(f"  buffer_load_dwordx4 v4, s[16:19], s71 offen offset:{1024*(i%4)} sc1 lds")
    return out

def g1_main(tg, tr):
    a = A()
    late2 = [] if OPT["chunk2_early"] else g1_dma_x() + g1_dma_w() + g1_dma_adv()
    a += stamp(1)
    a(f"s_waitcnt vmcnt({23 if OPT['chunk2_early'] else 12})\ns_barrier")
    a += stamp(2)
    a += g1_reads(0)
    a("s_waitcnt lgkmcnt(0)")
    pk_r = []
    for t in range(4):
        pk_r += [f"  ds_read_b64_tr_b16 {ar(16+4*t,2)}, v2 offset:{32*t}", f"  ds_read_b64_tr_b16 {ar(18+4*t,2)}, v3 offset:{32*t}"]
    pk_s = [f"  buffer_store_dwordx4 {ar(16+4*t)}, v4, s[16:19], s{60+t} offen sc1" for t in range(4)]
    f = pk_r + g1_reads(1) + g1_rd_adv_s() + ["  s_waitcnt lgkmcnt(8)"] + mixf(pk_s, g1_rd_adv_v(0) + g1_rd_adv_v(1))
    M = g1_mfma(0, tr, True)
    if late2:
        d = late2[:-7]
        f = mixf(f, d) + late2[-7:]
        i = f.index(g1_rd_adv_s()[0]); j = f.index(g1_rd_adv_s()[1]); x = f.pop(j); f.insert(i+1, x)
    a += weave(M, f, 0, len(M) - 1)
    def body(dma, vm, pre=[], post=[], x1=[], x2=[]):
        b = A()
        b(f"s_waitcnt vmcnt({vm}) lgkmcnt(0)")
        b += pre
        b("s_barrier")
        b += post
        M = g1_mfma(1, tr, False)
        f = mixf(g1_reads(0), g1_dma_x() if dma else x1) + g1_rd_adv_s()
        b += weave(M, f, 0, len(M) - 2)
        b("s_waitcnt lgkmcnt(0)")
        M = g1_mfma(0, tr, False)
        f = mixf(g1_reads(1), g1_dma_w() if dma else x2, g1_rd_adv_v(0)) + g1_rd_adv_v(1) + (g1_dma_adv() if dma else [])
        b += weave(M, f, 0, len(M) - 1)
        return b
    a(f"s_mov_b32 s49, 7\n.p2align 3\n{tg}_loop:")
    post = L(f"s_cmp_eq_u32 s49, s55\ns_cbranch_scc1 {tg}_flag\n{tg}_flagr:\ns_cmp_eq_u32 s49, 1\ns_cbranch_scc1 {tg}_poll\n{tg}_pollr:")
    OUTL(f"""
    {tg}_flag:
    s_lshl_b32 s28, s2, 2
    s_add_u32 s28, s28, {FA}
    v_mov_b32 v1, s39
    v_mov_b32 v6, 0
    s_mov_b64 exec, 1
    buffer_store_dword v1, v6, s[16:19], s28 offen sc1
    s_mov_b64 exec, -1
    s_nop 3
    s_branch {tg}_flagr
    {tg}_poll:
    v_lshlrev_b32 v6, 2, v0
    v_add_u32 v6, {FA}, v6
    buffer_load_dword v{VF}, v6, s[16:19], 0 offen sc1
    s_branch {tg}_pollr
    """)
    bd = body(True, 11, post=post)
    assert haz.check(bd + bd) == 0
    a += bd
    a(f"s_sub_u32 s49, s49, 1\ns_cmp_lg_u32 s49, 0\ns_cbranch_scc1 {tg}_loop")
    a += stamp(3)
    n1, n2, n3 = OPT["tail"]
    aux = L(f"""
    s_mov_b32 m0, s72
    s_cmp_eq_u32 s73, 0
    buffer_load_dwordx4 v1, s[16:19], 0 offen sc1 lds
    s_cbranch_scc1 {tg}_ep
    {tg}_epr:
    """)
    OUTL(f"""
    {tg}_ep:
    v_mov_b32 v1, s39
    v_mov_b32 v6, 0
    s_mov_b64 exec, 1
    buffer_store_dword v1, v6, s[16:19], 0 offen sc1
    s_mov_b64 exec, -1
    s_nop 3
    s_branch {tg}_epr
    """)
    pre = spin(tg + "_sa", 6, VF, True) + L(f"""
    v_cmp_gt_u32 vcc, 48, v7
    v_add_u32 v1, s74, v4
    v_mov_b32 v6, {OOB}
    v_cndmask_b32 v1, v6, v1, vcc
    """)
    h = n1//2
    a += body(False, 11, pre=pre, post=aux, x1=bstream(0, h), x2=bstream(h, n1 - h))
    h = n2//2
    a += body(False, n1, x1=bstream(n1, h), x2=bstream(n1 + h, n2 - h))
    a("s_waitcnt lgkmcnt(0)")
    M = g1_mfma(1, tr, False)
    w = L(f"s_mul_i32 s28, s20, 5120\ns_add_u32 s28, s28, {CSX}\nv_add_u32 v6, s28, v4") + \
        [f"  ds_write_b128 v6, {vr(CS+4*t)} offset:{1024*t}" for t in range(5)] + \
        L(f"s_xor_b32 s28, s20, 2\ns_mul_i32 s28, s28, 5120\ns_add_u32 s28, s28, {CSX}\nv_add_u32 v6, s28, v4")
    a += weave(M, mixf(w, bstream(n1 + n2, n3)), 4, len(M) - 2)
    a("s_waitcnt lgkmcnt(0)\ns_barrier")
    for t in range(5): a(f"ds_read_b128 {vr(BB[0]+4*t)}, v6 offset:{1024*t}")
    a += stamp(4)
    return a
def cs_add(): return [f"  v_pk_add_f32 {vr(CS+2*i,2)}, {vr(CS+2*i,2)}, {vr(BB[0]+2*i,2)}" for i in range(10)]

def stats_block():
    a = A(); src = 8; tmp = 20; ac = 44
    a("s_waitcnt vmcnt(%d)" % (11 + 4 + 11 + (11 if OPT["chunk2_early"] else 0)))
    for i in range(12):
        a(f"v_lshlrev_b32 v{tmp+2*i}, 16, v{src+i}\nv_and_b32 v{tmp+2*i+1}, 0xffff0000, v{src+i}")
    a(f"v_pk_add_f32 {vr(ac,2)}, {vr(tmp,2)}, {vr(tmp+2,2)}")
    for i in range(2, 12): a(f"v_pk_add_f32 {vr(ac,2)}, {vr(ac,2)}, {vr(tmp+2*i,2)}")
    def red():
        a(f"v_add_f32 v{ac}, v{ac}, v{ac+1}")
        for r in (8, 4, 2, 1): a(f"v_add_f32_dpp v{ac}, v{ac}, v{ac} row_ror:{r} row_mask:0xf bank_mask:0xf")
        a(f"v_mov_b32 v{ac+1}, v{ac}\nv_permlane16_swap_b32 v{ac}, v{ac+1}\nv_add_f32 v{ac}, v{ac}, v{ac+1}")
    red()
    a(f"v_mul_f32 v46, 0xbacccccd, v{ac}")
    a(f"v_cndmask_b32 v47, 0, v46, s[32:33]")
    for i in range(8): a(f"v_pk_add_f32 {vr(tmp+2*i,2)}, {vr(tmp+2*i,2)}, v[46:47] op_sel_hi:[1,0]")
    for i in range(8, 12): a(f"v_pk_add_f32 {vr(tmp+2*i,2)}, {vr(tmp+2*i,2)}, v[46:47] op_sel:[0,1] op_sel_hi:[1,1]")
    a(f"v_pk_mul_f32 {vr(ac,2)}, {vr(tmp,2)}, {vr(tmp,2)}")
    for i in range(1, 12): a(f"v_pk_fma_f32 {vr(ac,2)}, {vr(tmp+2*i,2)}, {vr(tmp+2*i,2)}, {vr(ac,2)}")
    red()
    a(f"""
    v_mov_b32 v{ac+1}, 0x3727c5ac
    v_fmac_f32 v{ac+1}, 0x3acccccd, v{ac}
    v_rsq_f32 v{ac+1}, v{ac+1}
    v_and_b32 v48, 31, v7
    v_cmp_eq_u32 vcc, 0, v48
    v_lshrrev_b32 v49, 5, v7
    v_lshlrev_b32 v49, 2, v49
    v_cndmask_b32 v46, v{ac+1}, v46, vcc
    v_lshl_add_u32 v49, v48, 13, v49
    v_cmp_gt_u32 vcc, 2, v48
    v_mov_b32 v50, {OOB}
    s_lshl_b32 s28, s34, 3
    s_add_u32 s28, s28, {NEGM}
    v_cndmask_b32 v49, v50, v49, vcc
    buffer_store_dword v46, v49, s[16:19], s28 offen sc1
    """)
    return a

def prologue():
    a = A()
    a += stamp(0)
    a(f"""
    s_cmp_ge_u32 s2, 256
    s_cbranch_scc1 k_end
    s_load_dwordx16 s[60:75], s[0:1], 0
    s_load_dwordx2 s[26:27], s[0:1], 64
    v_lshrrev_b32 v1, 6, v0
    v_and_b32 v7, 63, v0                 ; lane
    v_readfirstlane_b32 s20, v1          ; wave
    s_and_b32 s3, s2, 7
    s_lshl_b32 s24, s3, 2
    s_lshr_b32 s28, s2, 6
    s_add_u32 s24, s24, s28
    s_bfe_u32 s25, s2, 0x30003
    s_lshl_b32 s3, s3, 5
    s_lshr_b32 s21, s2, 3
    s_add_u32 s3, s3, s21                ; lin
    s_cmp_lt_u32 s3, 138
    s_cselect_b32 s28, 0, 138
    s_cselect_b32 s29, 10923, 13108
    s_cselect_b32 s30, 6, 5
    s_cselect_b32 s31, 0, 6
    s_sub_u32 s28, s3, s28
    s_mul_i32 s22, s28, s29
    s_lshr_b32 s22, s22, 16              ; ctq
    s_mul_i32 s30, s22, s30
    s_sub_u32 s21, s28, s30
    s_add_u32 s21, s21, s31              ; rb
    s_cmp_ge_u32 s3, 253
    s_cselect_b32 s21, 11, s21
    s_cselect_b32 s22, 22, s22
    s_cmp_lt_u32 s22, 12
    s_cselect_b32 s50, 3840, 3456
    s_cselect_b32 s28, 8, 12
    s_lshl_b32 s45, s50, 6
    s_sub_u32 s23, s22, s28
    s_lshr_b32 s51, s20, 1               ; wr
    s_and_b32 s52, s20, 1                ; wc
    v_lshlrev_b32 v4, 4, v7
    v_add_u32 v5, 4096, v4
    s_lshl_b32 s34, s2, 2
    s_add_u32 s34, s34, s20
    s_mul_i32 s35, s34, 2560
    v_lshrrev_b32 v1, 5, v7
    v_mul_u32_u24 v1, {1280-512}, v1
    v_add_u32 v52, v1, v4                ; row*1280 + i*16
    v_and_b32 v1, 16, v7
    v_cmp_eq_u32 s[32:33], 0, v1
    v_mov_b32 v2, {OOB}
    s_mul_i32 s28, s21, 192
    s_mul_i32 s29, s20, 48
    s_add_u32 s28, s28, s29
    s_mul_i32 s28, s28, 1280
    v_cndmask_b32 v53, v2, v52, s[32:33]
    v_lshrrev_b32 v1, 3, v7              ; r8
    v_lshrrev_b32 v2, 1, v1
    v_and_b32 v3, 7, v7
    v_xor_b32 v2, v2, v3
    v_mul_u32_u24 v1, 1280, v1
    v_lshl_add_u32 v54, v3, 4, v1
    v_add_u32 v1, s28, v1
    v_lshl_add_u32 v3, v2, 4, v1
    v_xor_b32 v2, 4, v2
    v_lshl_add_u32 v6, v2, 4, v1
    """)
    for j in range(6): a(f"v_add_u32 v{VX+j}, {j*10240 - 1024*(j%4)}, v{6 if j & 1 else 3}")
    a(f"""
    s_lshl_b32 s28, s20, 4
    v_lshrrev_b32 v1, 2, v7
    v_add_u32 v1, s28, v1
    v_mul_lo_u32 v1, v1, s50             ; row*stride
    v_lshrrev_b32 v2, 4, v7
    v_and_b32 v2, 2, v2
    v_and_b32 v3, 3, v7
    v_xor_b32 v2, v2, v3                 ; p'
    v_lshl_add_u32 v1, v2, 4, v1
    s_mul_i32 s29, s23, 320
    s_mul_i32 s30, s22, 160
    s_add_u32 s30, s30, 1280
    s_cmp_lt_u32 s22, 8
    s_cselect_b32 s29, s30, s29
    s_cselect_b32 s30, 1200, 0
    s_cselect_b32 s31, -1280, 0
    v_add_u32 v{VW}, s29, v1
    """)
    a(f"""
    v_mov_b32 v1, s30
    v_mov_b32 v3, s31
    v_cmp_le_u32 vcc, 1, v2
    s_add_u32 s28, s30, 128
    s_add_u32 s29, s28, s31
    v_cndmask_b32 v6, 0, v1, vcc
    v_cmp_le_u32 vcc, 2, v2
    v_add3_u32 v{VW+1}, v{VW}, 64, v6
    s_add_u32 s29, s29, 64
    v_cndmask_b32 v6, 0, v3, vcc
    v_cmp_le_u32 vcc, 3, v2
    v_add3_u32 v{VW+2}, v{VW}, s28, v6
    s_add_u32 s28, s29, s30
    v_cndmask_b32 v6, 0, v1, vcc
    s_add_u32 s28, s28, 64
    v_add3_u32 v{VW+3}, v{VW}, s29, v6
    v_add_u32 v{VW+4}, s28, v{VW}
    s_mul_i32 s40, s20, 6144
    s_mul_i32 s41, s20, 5120
    s_add_u32 s41, s41, {WOFF}
    s_mov_b32 s42, 0
    s_mov_b32 s43, 0
    s_mov_b32 s44, 0
    s_mov_b32 s47, 0
    s_mov_b32 s53, {STAGE}
    s_lshl_b32 s36, s20, 8
    s_add_u32 s36, s36, s2               ; job
    s_mul_i32 s37, s36, 6554
    s_lshr_b32 s37, s37, 16              ; ks
    s_mul_i32 s28, s37, 10
    s_sub_u32 s38, s36, s28              ; line
    s_waitcnt lgkmcnt(0)
    s_load_dword s39, s[26:27], 0
    """)
    a += srd(8, 60, S*D*2)
    for j in range(3): a(f"buffer_load_dwordx4 {vr(8+4*j)}, v{53 if j == 2 else 52}, s[8:11], s35 offen offset:{512*j}")
    a(f"""
    s_cmp_lt_u32 s22, 12
    s_cselect_b32 s12, s62, s68
    s_cselect_b32 s13, s63, s69
    s_cselect_b32 s14, {D*3*D*2}, {D*F*2}
    s_and_b32 s13, s13, 0xffff
    s_mov_b32 s15, 0x20000
    """)
    a += g1_dma_x() + g1_dma_w() + g1_dma_adv()
    a(f"""
    s_cmp_lt_u32 s37, 54
    s_cselect_b32 s56, s70, s64
    s_cselect_b32 s57, s71, s65
    s_cselect_b32 s58, {F*D*2}, {D*D*2}
    s_cselect_b32 s28, 0, 54
    s_and_b32 s57, s57, 0xffff
    s_mov_b32 s59, 0x20000
    s_sub_u32 s28, s37, s28
    s_mul_i32 s28, s28, {32*1280}
    s_lshl_b32 s29, s38, 7
    s_add_u32 s28, s28, s29
    s_lshl_b32 s29, s20, 12
    s_add_u32 s29, s29, {PACKL}
    s_mov_b32 m0, s29
    """)
    for i in range(4):
        a(f"buffer_load_dwordx4 v54, s[56:59], s28 offen offset:{1024*i} lds")
        if i < 3: a("s_add_u32 s28, s28, 9216")
    a += srd(4, 72, S*D*2)
    a += srd(16, 26, WS_USED)
    a += g1_dma_x() + g1_dma_w() + g1_dma_adv()
    if OPT["chunk2_early"]: a += g1_dma_x() + g1_dma_w() + g1_dma_adv()
    a(f"""
    s_mul_i32 s30, s37, 205
    s_lshr_b32 s30, s30, 10
    s_mul_i32 s30, s30, 5
    s_sub_u32 s30, s37, s30
    s_cmp_eq_u32 s30, 2
    s_cselect_b32 s31, 1, 0
    s_cmp_ge_u32 s37, 54
    s_cselect_b32 s31, 1, s31
    s_add_u32 s28, s31, 9
    s_cmp_eq_u32 s31, 1
    s_cselect_b32 s30, 512, 2048
    v_lshrrev_b32 v55, 4, v7             ; g
    v_bfe_u32 v56, v7, 2, 2              ; rr
    v_and_b32 v57, 3, v7                 ; c4
    v_lshlrev_b32 v2, s28, v55
    v_lshl_add_u32 v2, v56, 7, v2
    v_lshl_add_u32 v2, v57, 3, v2
    v_add_u32 v2, s29, v2
    v_add_u32 v3, s30, v2
    s_mul_i32 s28, s37, 5120
    s_add_u32 s28, s28, {WP}
    s_cmp_ge_u32 s36, 740
    s_cselect_b32 s28, {OOB}, s28
    s_lshl_b32 s29, s38, 2
    """)
    for t in range(4):
        a(f"""
        s_add_u32 s30, s29, {t}
        s_mul_i32 s31, s30, 205
        s_lshr_b32 s31, s31, 10
        s_mul_i32 s31, s31, {74*5120 - 5*1024}
        s_lshl_b32 s30, s30, 10
        s_add_u32 s30, s30, s31
        s_add_u32 s{60+t}, s30, s28
        """)
    a(f"""
    v_and_b32 v1, 15, v7                 ; m
    v_lshrrev_b32 v6, 1, v1
    v_xor_b32 v6, v6, v55
    s_lshl_b32 s29, s51, 2
    v_xor_b32 v6, s29, v6
    s_mul_i32 s28, s51, 12288
    v_lshl_add_u32 v1, v1, 7, s28
    v_lshl_add_u32 v{LA}, v6, 4, v1
    v_xor_b32 v6, 4, v6
    v_lshl_add_u32 v{LA+1}, v6, 4, v1
    v_and_b32 v58, 1, v55                ; g&1
    v_lshrrev_b32 v1, 1, v55
    v_mul_u32_u24 v1, 5120, v1
    v_lshl_add_u32 v1, v58, 9, v1
    v_lshl_add_u32 v1, v56, 6, v1
    v_lshl_add_u32 v1, v57, 3, v1
    s_mul_i32 s31, s51, 10240
    s_add_u32 s31, s31, {WOFF}
    v_add_u32 v1, s31, v1
    s_cmp_lt_u32 s22, 8
    s_cselect_b32 s28, 5, 6
    s_cselect_b32 s29, 9, 5
    s_cmp_eq_u32 s52, 0
    s_cselect_b32 s28, 0, s28
    s_cselect_b32 s29, 4, s29
    s_add_u32 s30, s28, 1
    s_cmp_eq_u32 s51, 0
    s_cselect_b32 s31, 10240, {-10240 & 0xffffffff}
    """)
    for i, sreg in enumerate((28, 30, 29)):
        a(f"""
        s_and_b32 s64, s{sreg}, 1
        s_lshr_b32 s65, s{sreg}, 1
        s_lshl_b32 s65, s65, 10
        v_xor_b32 v6, s64, v58
        v_lshl_add_u32 v6, v6, 5, v1
        v_add_u32 v{LB+i}, s65, v6
        v_add_u32 v{LB+3+i}, s31, v{LB+i}
        """)
    a(f"""
    v_mov_b32 v6, 0x3f803f80
    v_accvgpr_write_b32 a{ONES}, v6
    v_accvgpr_write_b32 a{ONES+1}, v6
    v_accvgpr_write_b32 a{ONES+2}, v6
    v_accvgpr_write_b32 a{ONES+3}, v6
    s_cmp_eq_u32 s20, 0
    s_cselect_b32 s55, 6, 64
    s_mul_i32 s28, s20, 13
    s_min_u32 s29, s20, 2
    s_add_u32 s75, s28, s29
    s_mul_i32 s29, s25, {74*5120}
    s_add_u32 s29, s29, {WP}
    s_mul_i32 s28, s75, 5120
    s_add_u32 s68, s29, s28
    s_mul_i32 s69, s20, 25600
    s_add_u32 s70, s29, {54*5120}
    s_add_u32 s70, s70, s69
    s_lshl_b32 s72, s20, 10
    s_add_u32 s72, s72, {SPARE}
    s_add_u32 s73, s2, s20
    s_mul_i32 s74, s21, 768
    s_lshl_b32 s28, s20, 13
    s_add_u32 s74, s74, s28
    s_add_u32 s74, s74, {NEGM}
    s_cmp_ge_u32 s20, 2
    s_cselect_b32 s74, {OOB}, s74
    s_waitcnt lgkmcnt(0)
    s_mul_i32 s39, s39, 1664525
    s_add_u32 s39, s39, 1013904223
    """)
    a += stats_block()
    return a

def epi_t():
    a = A()
    RC = AB[0]; TMP = BB[1]; PK = AB[1]
    a(f"""
    v_and_b32 v1, 15, v7
    v_lshrrev_b32 v2, 4, v7
    s_mul_i32 s28, s51, 384
    s_add_u32 s28, s28, {SPARE}
    v_lshl_add_u32 v3, v1, 2, s28
    """)
    for T in range(6):
        a(f"ds_read_b32 v{RC+4*T}, v3 offset:{64*T}\nds_read_b32 v{RC+4*T+1}, v3 offset:{1024+64*T}")
    a(f"""
    s_cmp_lt_u32 s22, 12
    s_cselect_b32 s28, {PQ}, {HH}
    s_cselect_b32 s54, {20*4096}, {54*4096}
    s_add_u32 s56, s26, s28
    s_addc_u32 s57, s27, 0
    s_and_b32 s57, s57, 0xffff
    s_lshl_b32 s58, s54, 5
    s_mov_b32 s59, 0x20000
    s_mul_i32 s64, s21, 3
    s_add_u32 s64, s64, s51
    s_mul_i32 s64, s64, s54
    s_lshl_b32 s28, s51, 11
    s_add_u32 s64, s64, s28
    s_sub_u32 s28, s54, 3072
    s_cmp_eq_u32 s51, 0
    s_cselect_b32 s65, 1024, s28
    s_cselect_b32 s66, s28, 1024
    s_mul_i32 s61, s23, {5*4096}
    s_mul_i32 s28, s52, {3*4096}
    s_add_u32 s62, s61, s28
    s_add_u32 s63, s62, 4096
    s_cmp_ge_u32 s63, s54
    s_cselect_b32 s63, {OOB}, s63
    s_lshl_b32 s28, s52, 9
    s_add_u32 s61, s61, s28
    s_add_u32 s61, s61, {8192 - 1024}
    v_add_u32 v{VX}, s62, v4
    v_add_u32 v{VX+1}, s63, v4
    v_and_b32 v3, 1, v2
    v_lshlrev_b32 v3, 10, v3
    v_lshrrev_b32 v6, 1, v2
    v_lshl_add_u32 v3, v6, 8, v3
    v_lshl_add_u32 v3, v1, 4, v3
    v_add_u32 v{VX+2}, s61, v3
    s_lshl_b32 s67, s21, 8
    s_lshl_b32 s28, s22, 4
    s_add_u32 s67, s67, s28
    s_lshl_b32 s28, s20, 2
    s_add_u32 s67, s67, s28
    s_add_u32 s67, s67, {F1 - 128}
    s_waitcnt lgkmcnt(0)
    """)
    a += cs_add()
    a("s_cmp_lt_u32 s22, 12\ns_cbranch_scc1 k_q")
    nb = sum(OPT["tail"])
    def epi(kind):
        e = A()
        e(f"s_mov_b32 s30, {LOG2E | (0x80000000 if kind == 'silu' else 0)}")
        for T in range(6):
            c = RC + 4*T
            e(f"v_mul_f32 v{c+2}, s30, v{c+1}")
            if kind == "silu": e(f"v_rcp_f32 v{c+3}, v{c+1}")
        if kind == "phi": e(f"v_mov_b32 v{VX+4}, 0x358637bd\nv_mov_b32 v{VX+5}, 0x358637bd")
        pend = []
        for T in range(6):
            c = RC + 4*T; u0 = acc(T, 0)
            V = []
            for i in range(10): V.append(f"  v_pk_fma_f32 {vr(u0+2*i,2)}, {vr(CS+2*i,2)}, {vr(c,2)}, {vr(u0+2*i,2)} op_sel_hi:[1,0,1]")
            for i in range(10): V.append(f"  v_pk_mul_f32 {vr(TMP+2*i,2)}, {vr(u0+2*i,2)}, {vr(c+2,2)} op_sel_hi:[1,0]")
            if kind == "silu":
                for i in range(20): V.append(f"  v_exp_f32 v{TMP+i}, v{TMP+i}")
                for i in range(10): V.append(f"  v_pk_fma_f32 {vr(TMP+2*i,2)}, {vr(TMP+2*i,2)}, {vr(c+2,2)}, {vr(c+2,2)} op_sel:[0,1,1] op_sel_hi:[1,1,1]")
                for i in range(20): V.append(f"  v_rcp_f32 v{TMP+i}, v{TMP+i}")
                for i in range(10): V.append(f"  v_pk_mul_f32 {vr(u0+2*i,2)}, {vr(u0+2*i,2)}, {vr(TMP+2*i,2)}")
            else:
                for i in range(20): V.append(f"  v_exp_f32_e64 v{TMP+i}, v{TMP+i} clamp")
                for i in range(10): V.append(f"  v_pk_fma_f32 {vr(u0+2*i,2)}, {vr(u0+2*i,2)}, {vr(c,2)}, 1.0 op_sel:[0,1,0] op_sel_hi:[1,1,0]")
                for i in range(20): V.append(f"  v_max_f32 v{u0+i}, v{u0+i}, v{TMP+i}")
                for i in range(10): V.append(f"  v_pk_add_f32 {vr(u0+2*i,2)}, {vr(u0+2*i,2)}, {vr(VX+4,2)}")
            ins = {}
            for k, st in enumerate(pend): ins[6 + 14*k] = st
            if T < OPT["epi_groups"]: ins[56] = bstream(nb + 4*T, 4)
            for i, v in enumerate(V):
                e.append(v)
                if i in ins: e += ins[i]
            p = PK + 8*(T & 1); mx = PK + 16 + 2*(T & 1)
            for i in range(2): e(f"v_cvt_pk_bf16_f32 v{mx+i}, v{u0+16+2*i}, v{u0+17+2*i}")
            for i in range(8): e(f"v_cvt_pk_bf16_f32 v{p+i}, v{u0+2*i}, v{u0+2*i+1}")
            pend = [[f"  buffer_store_dwordx4 {vr(p)}, v{VX}, s[56:59], s64 offen sc1"],
                    [f"  buffer_store_dwordx4 {vr(p+4)}, v{VX+1}, s[56:59], s64 offen sc1"]]
            if T & 1:
                e(f"v_permlane16_swap_b32 v{PK+16}, v{PK+18}\nv_permlane16_swap_b32 v{PK+17}, v{PK+19}")
                pend.append([f"  buffer_store_dwordx4 {vr(PK+16)}, v{VX+2}, s[56:59], s64 offen sc1"])
            if T < 5: pend[-1].append(f"  s_add_u32 s64, s64, {'s65' if T == 1 else 's66' if T == 3 else 1024}")
        for st in pend: e += st
        return e
    a += epi("silu")
    a("s_branch k_p2\nk_q:")
    a += epi("phi")
    a("s_branch k_p2")
    return a

def epi_kv():
    a = A()
    NM = AB[0]; RS = AB[1]; TMP = BB[1]; FR = 232; DD = ACC
    a(f"""
    v_and_b32 v1, 15, v7
    v_lshrrev_b32 v2, 4, v7
    s_mul_i32 s28, s51, 384
    s_add_u32 s28, s28, {SPARE}
    v_lshl_add_u32 v3, v2, 4, s28
    """)
    for T in range(6):
        a(f"ds_read_b128 {vr(NM+4*T)}, v3 offset:{64*T}\nds_read_b128 {vr(RS+4*T)}, v3 offset:{1024+64*T}")
    a(f"""
    s_mov_b32 s30, {LOG2E}
    s_mov_b32 s31, {LOG2E}
    v_mov_b32 v{TMP+12}, 0x358637bd
    v_mov_b32 v{TMP+13}, 0x358637bd
    v_mov_b32 v{TMP+14}, 0x3f803f80
    v_cmp_gt_u32 s[32:33], 8, v1
    s_cmp_eq_u32 s21, 10
    s_cselect_b32 s36, s51, 0
    s_lshl_b32 s28, s22, 1
    s_add_u32 s28, s28, s52              ; hp
    s_lshl_b32 s67, s28, 6
    s_lshl_b32 s29, s21, 2
    s_add_u32 s67, s67, s29
    s_add_u32 s67, s67, {FK}
    s_cmp_eq_u32 s51, 0
    s_cselect_b32 s67, s67, {OOB}
    s_mul_i32 s28, s28, 11
    s_add_u32 s28, s28, s21
    s_lshl_b32 s28, s28, 12
    s_add_u32 s37, s28, {KVP}
    s_waitcnt lgkmcnt(0)
    s_barrier
    """)
    a += cs_add()
    prods = [(0,3),(0,4),(1,3),(1,4),(1,5),(2,3),(2,4),(2,5)]
    nb = sum(OPT["tail"])
    for P in range(3):
        if P == 1: a("s_cmp_eq_u32 s36, 1\ns_cbranch_scc1 k_kvdone")
        for h in range(2):
            T = 2*P + h; u0 = acc(T, 0); nm = NM + 4*T; rs = RS + 4*T
            for t in range(5):
                for i in range(2):
                    r = u0 + 4*t + 2*i
                    a(f"v_pk_fma_f32 {vr(r,2)}, {vr(nm+2*i,2)}, {vr(CS+4*t,2)}, {vr(r,2)} op_sel_hi:[1,0,1]")
            for t in range(5):
                for i in range(2):
                    r = u0 + 4*t + 2*i
                    a(f"v_pk_mul_f32 {vr(r,2)}, {vr(r,2)}, {vr(rs+2*i,2)}")
            for i in range(6): a(f"v_pk_mul_f32 {vr(TMP+2*i,2)}, {vr(u0+2*i,2)}, s[30:31]")
            for i in range(12): a(f"v_exp_f32_e64 v{TMP+i}, v{TMP+i} clamp")
            for t in range(2, 5):
                for i in range(2): a(f"v_cvt_pk_bf16_f32 v{FR+4*(t+1)+2*h+i}, v{u0+4*t+2*i}, v{u0+4*t+2*i+1}")
            for i in range(2): a(f"v_cndmask_b32 v{FR+12+2*h+i}, v{FR+12+2*h+i}, v{TMP+14}, s[32:33]")
            for i in range(6): a(f"v_pk_add_f32 {vr(u0+2*i,2)}, {vr(u0+2*i,2)}, 1.0 op_sel_hi:[1,0]")
            for i in range(12): a(f"v_max_f32 v{u0+i}, v{u0+i}, v{TMP+i}")
            for i in range(6): a(f"v_pk_add_f32 {vr(u0+2*i,2)}, {vr(u0+2*i,2)}, {vr(TMP+12,2)}")
            for t in range(3):
                for i in range(2): a(f"v_cvt_pk_bf16_f32 v{FR+4*t+2*h+i}, v{u0+4*t+2*i}, v{u0+4*t+2*i+1}")
        for n, (kx, vy) in enumerate(prods):
            d = vr(DD + 4*n)
            a(f"v_mfma_f32_16x16x32_bf16 {d}, {vr(FR+4*kx)}, {vr(FR+4*vy)}, {'0' if P == 0 else d}")
    a("k_kvdone:")
    OF = 48
    for n, (kx, vy) in enumerate(prods):
        eoff = {3: -8, 4: 8, 5: 24}[vy]
        a(f"""
        v_add_u32 v3, {4*kx}, v2
        v_cmp_le_u32 vcc, 5, v3
        v_add_u32 v64, {eoff}, v1
        v_cmp_gt_u32 s[34:35], 10, v3
        v_cndmask_b32 v6, 0, 20, vcc
        v_sub_u32 v64, v64, v6
        """)
        if vy == 3: a("v_cmp_eq_u32 vcc, 0, v1\nv_cndmask_b32 v6, v64, 0, vcc\nv_cndmask_b32 v64, v64, 20, vcc")
        else: a("v_mov_b32 v6, v64")
        a(f"""
        v_cmp_gt_u32 vcc, 20, v6
        v_mad_u32_u24 v64, v3, 21, v64
        v_mov_b32 v6, 255
        s_and_b64 vcc, vcc, s[34:35]
        v_cndmask_b32 v64, v6, v64, vcc
        v_lshlrev_b32 v{OF+n}, 4, v64
        """)
    a(f"s_lshl_b32 s28, s52, 12\ns_add_u32 s28, s28, {KVX}")
    for n in range(8): a(f"v_add_u32 v{OF+8+n}, s28, v{OF+n}")
    a("s_cmp_eq_u32 s51, 0\ns_cbranch_scc1 k_kv0")
    for n in range(8): a(f"ds_write_b128 v{OF+8+n}, {vr(DD+4*n)}")
    a("s_waitcnt lgkmcnt(0)\ns_barrier\ns_branch k_kv1\nk_kv0:\ns_barrier")
    for n in range(8): a(f"ds_read_b128 {vr(72+4*n)}, v{OF+8+n}")
    a("s_waitcnt lgkmcnt(0)")
    for n in range(16): a(f"v_pk_add_f32 {vr(72+2*n,2)}, {vr(72+2*n,2)}, {vr(DD+2*n,2)}")
    for n in range(8): a(f"buffer_store_dwordx4 {vr(72+4*n)}, v{OF+n}, s[16:19], s37 offen sc1")
    a("k_kv1:")
    return a, bstream(nb, 4*OPT["epi_groups"])

def phase2(kvfix):
    a = A()
    G = 8; AR = 88; NA = 5; SA = 208; XB = 228
    nb = sum(OPT["tail"]) + 4*OPT["epi_groups"]
    g1 = OPT["gap1"]
    a += kvfix
    a(f"s_waitcnt vmcnt({nvm(kvfix)})")
    flag = L("v_mov_b32 v1, s39\nv_mov_b32 v6, 0\ns_mov_b64 exec, 1\nbuffer_store_dword v1, v6, s[16:19], s67 offen sc1\ns_mov_b64 exec, -1")
    a += flag
    a(f"s_mov_b32 s67, {OOB}\nk_p2:")
    a += stamp(5)
    a += wo_dma(0, g1)
    a(f"""
    s_and_b32 s21, s2, 15                ; hp
    s_lshr_b32 s23, s2, 4                ; rg
    s_mul_i32 s28, s24, 21846
    s_lshr_b32 s28, s28, 16
    s_lshl_b32 s28, s28, 8
    s_add_u32 s28, s28, {F1 + 64}        ; W1 flags
    s_lshl_b32 s29, s21, 6
    s_add_u32 s29, s29, {FK - 44*4}
    s_lshl_b32 s30, s23, 1
    s_mul_i32 s31, s30, 21846
    s_lshr_b32 s31, s31, 16
    s_add_u32 s30, s30, 1
    s_mul_i32 s30, s30, 21846
    s_lshr_b32 s30, s30, 16
    s_lshr_b32 s34, s21, 2
    s_lshl_b32 s34, s34, 4
    s_lshl_b32 s31, s31, 8
    s_add_u32 s31, s31, s34
    s_add_u32 s31, s31, {F1 - 55*4}
    s_lshl_b32 s30, s30, 8
    s_add_u32 s30, s30, s34
    s_add_u32 s30, s30, {F1 - 59*4}
    v_min_u32 v1, 62, v7
    v_mov_b32 v2, s28
    v_mov_b32 v3, s29
    v_cmp_le_u32 vcc, 44, v1
    v_cndmask_b32 v2, v2, v3, vcc
    v_mov_b32 v3, s31
    v_cmp_le_u32 vcc, 55, v1
    v_cndmask_b32 v2, v2, v3, vcc
    v_mov_b32 v3, s30
    v_cmp_le_u32 vcc, 59, v1
    v_cndmask_b32 v2, v2, v3, vcc
    v_lshl_add_u32 v{VF-1}, v1, 2, v2
    s_waitcnt vmcnt({g1})
    """)
    a += flag
    a += stamp(6)
    rest = wo_dma(g1, 25 - g1) + bstream(nb, 60 - nb)
    P0 = 168; PQR = 212; GA = 228
    su = A()
    su(f"""
    v_and_b32 v1, 15, v7                 ; i / m
    v_lshrrev_b32 v2, 4, v7              ; g
    v_lshrrev_b32 v3, 2, v1
    v_and_b32 v8, 3, v1
    v_lshl_add_u32 v6, v3, 3, v8
    v_cmp_le_u32 vcc, 20, v6
    v_cndmask_b32 v12, 0, 5, vcc
    v_lshlrev_b32 v16, 2, v12
    v_sub_u32 v16, v6, v16
    v_add_u32 v6, 4, v6
    v_cmp_le_u32 vcc, 20, v6
    v_cndmask_b32 v13, 0, 5, vcc
    v_lshlrev_b32 v17, 2, v13
    v_sub_u32 v17, v6, v17
    v_cmp_gt_u32 vcc, 8, v1
    v_cndmask_b32 v14, 64, 5, vcc
    v_add_u32 v18, 12, v1
    v_add_u32 v6, v3, v8
    v_cmp_le_u32 vcc, 3, v6
    v_cmp_le_u32 s[34:35], 2, v8
    s_or_b64 vcc, vcc, s[34:35]
    v_cndmask_b32 v15, 0, 5, vcc
    v_mov_b32 v19, 20
    v_mov_b32 v9, 255
    s_mul_i32 s54, s21, 5
    s_lshr_b32 s54, s54, 2               ; ksA
    s_mov_b32 s37, {RED}
    """)
    for k in range(2):
        su(f"""
        s_add_u32 s31, s54, {k}
        s_mul_i32 s32, s31, 205
        s_lshr_b32 s32, s32, 10
        s_mul_i32 s32, s32, 5
        s_sub_u32 s32, s31, s32
        s_cmp_eq_u32 s32, 2 ;KEEP
        s_cselect_b32 s33, 1, 0 ;KEEP
        s_cselect_b32 s36, 1, 4
        s_lshl_b32 s31, s31, 3
        s_mul_i32 s32, s21, 10
        s_sub_u32 s31, s31, s32
        v_lshlrev_b32 v3, s33, v2
        v_add_u32 v3, s31, v3
        """)
        for j in range(2):
            if j: su("v_add_u32 v3, s36, v3")
            for tl in range(4):
                su(f"""
                v_sub_u32 v8, v3, v{12+tl}
                v_cmp_gt_u32 vcc, 5, v8
                v_mad_u32_u24 v8, v3, 21, v{16+tl}
                v_cndmask_b32 v8, v9, v8, vcc
                v_lshl_add_u32 v{GA+tl*4+k*2+j}, v8, 3, s37
                """)
    su(f"""
    s_mul_i32 s60, s21, {11*4096}
    s_add_u32 s60, s60, {KVP}
    v_lshlrev_b32 v10, 4, v0
    v_cmp_gt_u32 vcc, 210, v0
    v_mov_b32 v6, {OOB}
    v_cndmask_b32 v248, v6, v10, vcc
    s_lshl_b32 s29, s23, 1
    s_add_u32 s29, s29, s51
    s_mul_i32 s29, s29, {20*4096}
    s_lshl_b32 s30, s54, 12
    s_add_u32 s29, s29, s30
    s_lshl_b32 s30, s52, 11
    s_add_u32 s29, s29, s30
    s_add_u32 s61, s29, {PQ}
    s_add_u32 s62, s61, 4096
    s_lshl_b32 s28, s23, 2
    s_add_u32 s28, s28, s20              ; rt2
    s_lshl_b32 s64, s28, 6
    s_lshl_b32 s29, s21, 2
    s_add_u32 s64, s64, s29
    s_add_u32 s64, s64, {FO}
    s_mul_i32 s28, s28, 40960
    s_mul_i32 s29, s21, 1280
    s_add_u32 s28, s28, s29
    s_add_u32 s63, s28, {OO}
    v_lshlrev_b32 v3, 4, v1
    v_lshl_add_u32 v3, v2, 3, v3
    v_cmp_gt_u32 vcc, 2, v2
    v_cndmask_b32 v249, v6, v3, vcc
    v_lshl_add_u32 v250, v0, 3, s37
    s_mul_i32 s40, s24, {54*4096}
    s_lshl_b32 s28, s75, 12
    s_add_u32 s40, s40, s28
    s_add_u32 s40, s40, {HH}
    """)
    AV = [244, 245, 246, 247]
    for T in range(4):
        su(f"s_add_u32 s28, s20, {T}\ns_and_b32 s28, s28, 3\ns_lshl_b32 s28, s28, 10\nv_add_u32 v{AV[T]}, s28, v4")
    groups = []; cur = []
    for x in rest:
        cur.append(x)
        if nvm(cur) == 4 and x.strip().startswith("buffer"): groups.append(cur); cur = []
    if cur: groups.append(cur)
    step = max(1, len(su)//(len(groups) + 1)); gi = 0
    for i, x in enumerate(su):
        a.append(x)
        if gi < len(groups) and i >= step*gi and ";KEEP" not in x:
            a += groups[gi]; gi += 1
    while gi < len(groups): a += groups[gi]; gi += 1
    a += stamp(7)
    a += spin("k_sb", VF-1, VF, False)
    a += stamp(8)
    issued = []
    def iss(lines, tag):
        for x in lines:
            if x.strip().startswith("buffer_"): issued.append(tag)
        return lines
    def wait(*tags):
        last = max(i for i, t in enumerate(issued) if t in tags)
        return len(issued) - 1 - last
    o1 = []
    for i in range(11):
        o1.append(f"  buffer_load_dwordx4 {vr(P0+4*i)}, v248, s[16:19], s60 offen sc1")
        if i < 10: o1.append("  s_add_u32 s60, s60, 4096")
    o2 = L(f"""
    buffer_load_dwordx4 {vr(PQR)}, v4, s[16:19], s61 offen sc1
    buffer_load_dwordx4 {vr(PQR+4)}, v4, s[16:19], s62 offen sc1
    buffer_load_dwordx4 {vr(PQR+8)}, v4, s[16:19], s61 offen offset:1024 sc1
    buffer_load_dwordx4 {vr(PQR+12)}, v4, s[16:19], s62 offen offset:1024 sc1
    """)
    def ldA(s):
        r = [f"  buffer_load_dwordx4 {vr(AR+(s%NA)*16+4*T)}, v{AV[T]}, s[16:19], s40 offen sc1" for T in range(4)]
        return r + ["  s_add_u32 s40, s40, 4096"]
    a += iss(ldA(0), "A0") + iss(o1, "P") + iss(ldA(1), "A1") + iss(o2, "Q") + iss(ldA(2), "A2") + iss(ldA(3), "A3")
    osum = []
    for i in range(1, 11):
        osum += [f"  v_pk_add_f32 {vr(P0,2)}, {vr(P0,2)}, {vr(P0+4*i,2)}", f"  v_pk_add_f32 {vr(P0+2,2)}, {vr(P0+2,2)}, {vr(P0+4*i+2,2)}"]
    osum += L(f"v_cvt_pk_bf16_f32 v{P0+40}, v{P0}, v{P0+1}\nv_cvt_pk_bf16_f32 v{P0+41}, v{P0+2}, v{P0+3}\nds_write_b64 v250, {vr(P0+40,2)}")
    ogat = [f"  ds_read_b64 {vr(P0+2*n,2)}, v{GA+n}" for n in range(16)]
    DB = [200, 204, 208, 228, 232, 236, 240, 251]
    DB[7] = 252
    omf = []
    for k in range(2):
        for T in range(2):
            for tl in range(4):
                d = vr(DB[T*4+tl])
                omf.append(f"  v_mfma_f32_16x16x32_bf16 {d}, {vr(P0+tl*8+k*4)}, {vr(PQR+T*8+k*4)}, {'0' if k == 0 else d}")
    ofin = [[], []]
    for T in range(2):
        z = DB[T*4+3]; o = ofin[T]; pk = P0 + 8*T
        for r in range(3): o.append(f"  v_add_f32 v{z+r}, 0x358637bd, v{z+r}")
        for r in range(3): o.append(f"  v_rcp_f32 v{z+r}, v{z+r}")
        for tl in range(3):
            for r in range(4): o.append(f"  v_mul_f32 v{DB[T*4+tl]+r}, v{DB[T*4+tl]+r}, v{z+tl}")
        for tl in range(3):
            for i in range(2): o.append(f"  v_cvt_pk_bf16_f32 v{pk+2*tl+i}, v{DB[T*4+tl]+2*i}, v{DB[T*4+tl]+2*i+1}")
        o.append(f"  buffer_store_dwordx4 {vr(pk)}, v4, s[16:19], s63 offen sc1")
        o.append(f"  buffer_store_dwordx2 {vr(pk+4,2)}, v249, s[16:19], s63 offen offset:1024 sc1")
        if T == 0: o.append("  s_add_u32 s63, s63, 20480")
    oflag = L("v_mov_b32 v1, s39\nv_mov_b32 v6, 0\ns_mov_b64 exec, 1\nbuffer_store_dword v1, v6, s[16:19], s64 offen sc1\ns_mov_b64 exec, -1\ns_nop 3")
    fs = A()
    fs(f"""
    s_lshl_b32 s46, s24, 2
    s_add_u32 s46, s46, s20
    s_lshr_b32 s28, s46, 1
    s_lshl_b32 s28, s28, 6
    s_add_u32 s28, s28, {FO}
    v_and_b32 v6, 15, v7
    v_lshl_add_u32 v{VF-1}, v6, 2, s28
    s_mul_i32 s48, s46, {16*1280}
    s_mul_i32 s28, s25, 160
    s_add_u32 s48, s48, s28
    s_mul_i32 s46, s46, 20480
    s_add_u32 s46, s46, {OO}
    s_mul_i32 s49, s20, 15360
    s_add_u32 s49, s49, {RED}
    """)
    for i in range(3):
        fs(f"""
        v_add_u32 v6, {64*i}, v7
        v_mul_u32_u24 v243, 6554, v6
        v_lshrrev_b32 v243, 16, v243
        v_mul_u32_u24 v248, 10, v243
        v_sub_u32 v248, v6, v248
        v_mul_u32_u24 v249, 1280, v243
        v_lshl_add_u32 v249, v248, 4, v249
        v_cmp_gt_u32 vcc, 160, v6
        v_mov_b32 v6, {OOB}
        v_mul_u32_u24 v243, 336, v243
        v_cndmask_b32 v{1+i}, v6, v249, vcc
        v_lshl_add_u32 v243, v248, 5, v243
        v_cndmask_b32 v243, 0, v243, vcc
        v_add_u32 v{240+i}, s49, v243
        """)
    RW = [248, 249, 250]
    for T in range(1, 4):
        fs(f"s_add_u32 s28, s20, {T}\ns_and_b32 s28, s28, 3\ns_mul_i32 s28, s28, 15360\ns_add_u32 s28, s28, {RED + (T-1)*5120}\nv_add_u32 v{RW[T-1]}, s28, v4")
    fs(f"""
    v_add_u32 v251, s49, v4
    v_add_u32 v5, 51200, v4
    v_and_b32 v243, 15, v7
    v_lshrrev_b32 v6, 4, v7
    v_mul_u32_u24 v243, 336, v243
    v_lshl_add_u32 v243, v6, 4, v243
    v_add_u32 v243, s49, v243
    """)
    def ldO(i0, n):
        r = []
        for i in range(i0, i0 + n):
            if i % 4 == 0: r.append(f"  s_add_u32 s47, s46, {1024*i}")
            r.append(f"  buffer_load_dwordx4 {ar(4*i)}, v4, s[16:19], s47 offen offset:{1024*(i%4)} sc1")
        return r
    ldX = [f"  buffer_load_dwordx4 {vr(XB+4*i)}, v{1+i}, s[8:11], s48 offen" for i in range(3)]
    opoll = [f"  buffer_load_dword v{VF}, v{VF-1}, s[16:19], 0 offen sc1"]
    for s in range(14):
        nxt = s + NA - 1
        pre = []; fill = []; extraM = []; tags = [f"A{s}"]
        if s == 1: tags.append("P")
        if s == 3: tags.append("Q")
        if s == 8: tags.append("OS")
        if s == 12: tags += ["OP", "B12"]
        if s == 13: tags += ["B13"]
        lg = " lgkmcnt(0)" if s in (2, 3) else ""
        a(f"s_waitcnt vmcnt({wait(*tags)}){lg}")
        if s == 0: a += stamp(9)
        if s in (2, 3): a("s_barrier")
        if s == 8: a += iss(oflag, "OF")
        if s == 12:
            a += spin("k_so", VF-1, VF, True)
        v = []
        if nxt < 14:
            if nxt == 13: v += ["  s_cmp_lt_u32 s20, 2", f"  s_cselect_b32 s40, s40, {OOB}"]
            v += [(x, f"A{nxt}") for x in ldA(nxt)]
        v = [x if isinstance(x, tuple) else (x, None) for x in v]
        other = []
        if s == 1: other = [(x, None) for x in osum]
        if s == 2: other = [(x, None) for x in ogat]
        if s == 4: other = [(x, "OS") for x in ofin[0]]
        if s == 5: other = [(x, "OS") for x in ofin[1]]
        if s == 6: other = [(x, "B12") for x in bstream(60, 5)]
        if s == 7: other = [(x, "B13") for x in bstream(65, 5)]
        if s == 8: other = [(x, None) for x in fs[:len(fs)//2]]
        if s == 10: other = [(x, None) for x in fs[len(fs)//2:]] + [(x, "X") for x in ldX]
        if s == 11: other = [(x, "OP") for x in opoll]
        if s == 12: other = [(x, "O") for x in ldO(0, 10)]
        if s == 13: other = [(x, "O") for x in ldO(10, 10)]
        if nxt == 13 or not v or not other: fl = v + other
        else: fl = mixf(v, other)
        M = []
        for T in range(4):
            for t in (range(5) if T % 2 == 0 else range(4, -1, -1)):
                d = vr(G + (T*5+t)*4)
                M.append(f"  v_mfma_f32_16x16x32_bf16 {d}, {breg(s,t)}, {vr(AR+(s%NA)*16+4*T)}, {'0' if s == 0 else d}")
        if s == 3: M = omf + M
        a += weave(M, [x for x, _ in fl])
        for x, tg in fl:
            if x.strip().startswith("buffer_"): issued.append(tg)
    a += stamp(10)
    if DIAG: a("s_waitcnt lgkmcnt(0)")
    SB = [AR, AR + 20, AR + 60]
    SB = [AR, AR + 20, AR + 40]
    def rdB(s): return [f"  ds_read_b128 {vr(SB[s%3]+4*t)}, v{4 if s < 10 else 5} offset:{(s%10)*5120+1024*t}" for t in range(5)]
    wr_ = [f"  ds_write_b128 v{RW[T-1]}, {vr(G+(T*5+t)*4)} offset:{1024*t}" for T in range(1, 4) for t in range(5)]
    rd_ = [f"  ds_read_b128 {vr(G+20+4*j)}, v251 offset:{1024*j}" for j in range(15)]
    V = []
    for j in range(3):
        for i in range(10): V.append(f"  v_pk_add_f32 {vr(G+2*i,2)}, {vr(G+2*i,2)}, {vr(G+20+20*j+2*i,2)}")
    E = G + 20
    V += L(f"s_mov_b32 s30, {LOG2E|0x80000000}\ns_mov_b32 s31, {LOG2E|0x80000000}")
    for i in range(10): V.append(f"  v_pk_mul_f32 {vr(E+2*i,2)}, {vr(G+2*i,2)}, s[30:31]")
    for i in range(20): V.append(f"  v_exp_f32 v{E+i}, v{E+i}")
    for i in range(10): V.append(f"  v_pk_add_f32 {vr(E+2*i,2)}, {vr(E+2*i,2)}, 1.0 op_sel_hi:[1,0]")
    for i in range(20): V.append(f"  v_rcp_f32 v{E+i}, v{E+i}")
    for i in range(10): V.append(f"  v_pk_mul_f32 {vr(G+2*i,2)}, {vr(G+2*i,2)}, {vr(E+2*i,2)}")
    XU = G + 40
    for i in range(12): V += [f"  v_lshlrev_b32 v{XU+2*i}, 16, v{XB+i}", f"  v_and_b32 v{XU+2*i+1}, 0xffff0000, v{XB+i}"]
    lds = []
    def liss(lines, tag):
        for x in lines: lds.append(tag)
        return lines
    def lwait(*tags):
        last = max(i for i, t in enumerate(lds) if t in tags)
        return min(15, len(lds) - 1 - last)
    a += liss(rdB(0), "b0") + liss(rdB(1), "b1")
    V0 = 11; per = (len(V) + (20 - V0) - 1)//(20 - V0)
    for s in range(20):
        tags = [f"b{s}"]
        if s == 6: tags.append("w")
        if s == V0: tags.append("r")
        a(f"s_waitcnt vmcnt({19 - s}) lgkmcnt({lwait(*tags)})")
        if s == 6: a("s_barrier")
        M = [f"  v_mfma_f32_16x16x32_bf16 {vr(SA+4*t)}, {vr(SB[s%3]+4*t)}, {ar(4*s)}, {'0' if s == 0 else vr(SA+4*t)}" for t in range(5)]
        fl = [(x, f"b{s+2}") for x in rdB(s+2)] if s + 2 < 20 else []
        ex = []
        if s < 5: ex = [(x, "w") for x in wr_[3*s:3*s+3]]
        if 6 <= s < 10: ex = [(x, "r") for x in rd_[4*(s-6):4*(s-6)+4]]
        if s >= V0: ex = [(x, None) for x in V[(s-V0)*per:(s-V0+1)*per]]
        fl = mixf(fl, ex) if fl and ex else fl + ex
        a += weave(M, [x for x, _ in fl])
        for x, tg in fl:
            if x.strip().startswith("ds_"): lds.append(tg)
    a += stamp(11)
    for i in range(10): a(f"v_pk_mul_f32 {vr(SA+2*i,2)}, {vr(SA+2*i,2)}, {vr(G+2*i,2)}")
    for t in range(5): a(f"ds_write_b128 v243, {vr(SA+4*t)} offset:{64*t}")
    a("s_waitcnt lgkmcnt(0)")
    for i in range(3): a(f"ds_read_b128 {vr(AR+8*i)}, v{240+i}\nds_read_b128 {vr(AR+8*i+4)}, v{240+i} offset:16")
    for i in range(3):
        a(f"s_waitcnt lgkmcnt({4-2*i})")
        for j in range(4): a(f"v_pk_add_f32 {vr(AR+8*i+2*j,2)}, {vr(AR+8*i+2*j,2)}, {vr(XU+8*i+2*j,2)}")
        for j in range(4): a(f"v_cvt_pk_bf16_f32 v{XB+4*i+j}, v{AR+8*i+2*j}, v{AR+8*i+2*j+1}")
        a(f"buffer_store_dwordx4 {vr(XB+4*i)}, v{1+i}, s[4:7], s48 offen")
    a += stamp_out(13)
    return a

def build():
    OUTL.clear()
    a = A()
    a += prologue()
    a("s_cmp_lt_u32 s22, 8\ns_cbranch_scc1 k_kv")
    a += g1_main("k_t", True)
    a += epi_t()
    a("k_kv:")
    a += g1_main("k_n", False)
    e, kvfix = epi_kv()
    a += e
    a += phase2(kvfix)
    a("k_end:\ns_endpgm")
    a += OUTL
    body, added = haz.fix(a)
    body, nbytes, nn, npm = align.align(body)
    print("instrs", len(body), "nops added", added, "bytes", nbytes, "align nops", nn, "promoted", npm, file=sys.stderr)
    out = ["; @launch grid=(256,1,1) block=(256,1,1) lds=163840",
           '.amdgcn_target "amdgcn-amd-amdhsa--gfx950"\n.text', khead(NAME)] + body
    out.append('.section .rodata,"a"\n.p2align 6\n' + kd(NAME, 512, 256, 102))
    return "\n".join(out) + "\n"
if __name__ == "__main__":
    for x in sys.argv[2:]:
        if x == "d": DIAG = True
        else:
            k, v = x.split("="); OPT[k] = eval(v)
    open(sys.argv[1], "w").write(build())
```

```python
import sys, re
from asmlib import kd, khead
import haz, align

NAME = "recurrent_scan__linear_attn_block__dense_activation_silu__prompt_kernel"
S, D, F = 2048, 640, 1728
FA = 0x1000; F1 = 0x2000; FK = 0x3000; FO = 0x4000
NEGM = 0x10000; RSTD = 0x12000
KVP   = 0x40000
PQ    = 0x100000
OO    = 0x380000
HH    = 0x600000
WP    = 0xCC0000
WS_USED = WP + 8*74*5120
TS = 0x1400000
LOG2E = 0x3fb8aa3b
OOB = 0x40000000
STAGE = 45056; WOFF = 24576; SPARE = 3*STAGE
PACKL = SPARE + 4096
CSX = SPARE + 4096
KVX = SPARE + 4096
RED = 102400
DIAG = False
OPT = dict(chunk2_early=True, tail=(15, 15, 10), epi_groups=5, gap1=12, spin=200000)

def stamp(i): return [f"  s_memrealtime s[{76+2*i}:{77+2*i}]"] if DIAG else []
def stamp_out(n):
    if not DIAG: return []
    if OPT.get("echo") is not None:
        i = OPT["echo"]
        return A()(f"""
        s_waitcnt vmcnt(0)
        s_memrealtime s[{76+2*(n-1)}:{77+2*(n-1)}]
        s_waitcnt lgkmcnt(0)
        s_sub_u32 s28, s{76+2*i}, s76
        s_min_u32 s28, s28, 10000
        s_add_u32 s28, s28, 5000
        s_and_b32 s29, s2, {OPT.get("emask", 0)}
        s_cmp_lg_u32 s29, {OPT.get("eval", 0)}
        s_cselect_b32 s28, 0, s28
        k_echo:
        s_memrealtime s[30:31]
        s_waitcnt lgkmcnt(0)
        s_sub_u32 s29, s30, s76
        s_cmp_lt_u32 s29, s28
        s_cbranch_scc1 k_echo
        """)
    L = ["  s_waitcnt vmcnt(0)", f"  s_memrealtime s[{76+2*(n-1)}:{77+2*(n-1)}]", "  s_waitcnt lgkmcnt(0)",
         "  s_lshl_b32 s28, s2, 2", "  s_add_u32 s28, s28, s20", "  s_lshl_b32 s28, s28, 6",
         f"  s_add_u32 s28, s28, {TS}", "  v_mov_b32 v1, s28"]
    for i in range(n):
        L += [f"  v_mov_b32 v3, s{76+2*i}", f"  global_store_dword v1, v3, s[26:27] offset:{4*i}"]
    L += ["  v_mov_b32 v3, s22", "  global_store_dword v1, v3, s[26:27] offset:60"]
    return L
class A(list):
    def __call__(self, s):
        for x in s.strip("\n").split("\n"):
            x = x.strip()
            m = re.match(r"s_cselect_b32 (s\d+), (\d+|0x[0-9a-f]+), (\d+|0x[0-9a-f]+)\s*(;.*)?$", x)
            if m and int(m.group(2), 0) > 64 and int(m.group(3), 0) > 64:
                self.append(f"  s_mov_b32 {m.group(1)}, {m.group(3)}")
                x = f"s_cselect_b32 {m.group(1)}, {m.group(2)}, {m.group(1)}"
            if x: self.append(("" if x.endswith(":") else "  ") + x)
        return self
def L(s): return list(A()(s))
def vr(b, n=4): return f"v[{b}:{b+n-1}]" if n > 1 else f"v{b}"
def ar(b, n=4): return f"a[{b}:{b+n-1}]" if n > 1 else f"a{b}"
def srd(d, lo, nbytes):
    return L(f"s_mov_b32 s{d}, s{lo}\ns_and_b32 s{d+1}, s{lo+1}, 0xffff\ns_mov_b32 s{d+2}, {nbytes}\ns_mov_b32 s{d+3}, 0x20000")
def weave(M, fill, start=0, end=None):
    out = []; end = len(M) if end is None else end
    k = 0; nf = len(fill); n = end - start
    for i, m in enumerate(M):
        out.append(m)
        if start <= i < end:
            tgt = (i - start + 1) * nf // n
            while k < tgt: out.append(fill[k]); k += 1
    return out
def mixf(*ls):
    keyed = []
    for li, l in enumerate(ls):
        for j, x in enumerate(l): keyed.append(((j + 0.5)/len(l), li, j, x))
    keyed.sort(key=lambda t: t[:3])
    return [x[3] for x in keyed]
def nvm(lines): return sum(1 for x in lines if x.strip().startswith(("buffer_", "global_")))
OUTL = A()
def spin(tag, vaddr, vdst, first_done):
    a = A()
    if not first_done:
        a(f"buffer_load_dword v{vdst}, v{vaddr}, s[16:19], 0 offen sc1\ns_waitcnt vmcnt(0)")
    a(f"v_cmp_ne_u32 vcc, s39, v{vdst}\ns_nop 1\ns_cmp_lg_u64 vcc, 0\ns_cbranch_scc1 {tag}_slow\n{tag}_ok:")
    OUTL(f"""
    {tag}_slow:
    s_mov_b32 s38, {OPT['spin']}
    {tag}_again:
    buffer_load_dword v{vdst}, v{vaddr}, s[16:19], 0 offen sc1
    s_sub_u32 s38, s38, 1
    s_cmp_eq_u32 s38, 0
    s_cbranch_scc1 {tag}_ok
    s_waitcnt vmcnt(0)
    v_cmp_ne_u32 vcc, s39, v{vdst}
    s_nop 1
    s_cmp_lg_u64 vcc, 0
    s_cbranch_scc1 {tag}_again
    s_branch {tag}_ok
    """)
    return a

ACC = 8; CS = 128; AB = [148, 172]; BB = [196, 216]; VX = 236; VW = 242; LA = 247; LB = 249; VF = 255
ONES = 240
def acc(T, t): return ACC + (T*5 + t)*4
def g1_mfma(buf, transposed, first):
    M = []
    for T in range(6):
        ts = range(5) if T % 2 == 0 else range(4, -1, -1)
        for t in ts:
            x = vr(AB[buf] + 4*T); w = vr(BB[buf] + 4*t); d = vr(acc(T, t))
            p, q = (w, x) if transposed else (x, w)
            M.append(f"  v_mfma_f32_16x16x32_bf16 {d}, {p}, {q}, {'0' if first else d}")
    if buf == 0:
        for t in range(5):
            w = vr(BB[buf] + 4*t); d = vr(CS + 4*t)
            p, q = (w, ar(ONES)) if transposed else (ar(ONES), w)
            M.append(f"  v_mfma_f32_16x16x32_bf16 {d}, {p}, {q}, {'0' if first else d}")
    return M
def g1_reads(buf):
    R = []
    def b(t):
        base = LB + 3*buf + (2 if t == 4 else (t & 1)); off = 1024 if t in (2, 3) else 0
        return [f"  ds_read_b64_tr_b16 {vr(BB[buf]+4*t,2)}, v{base} offset:{off}",
                f"  ds_read_b64_tr_b16 {vr(BB[buf]+4*t+2,2)}, v{base} offset:{off+256}"]
    def x(T): return [f"  ds_read_b128 {vr(AB[buf]+4*T)}, v{LA+buf} offset:{T*2048}"]
    R += x(0)
    for t in range(5): R += b(t)
    for T in range(1, 6): R += x(T)
    return R
def g1_dma_x():
    Dm = []
    for j in range(6):
        if j == 0: Dm.append("  s_mov_b32 m0, s40")
        if j == 4: Dm.append("  s_add_u32 m0, s40, 4096")
        Dm.append(f"  buffer_load_dwordx4 v{VX+j}, s[8:11], s42 offen offset:{1024*(j%4)} lds")
    return Dm
def g1_dma_w():
    Dm = []
    for j in range(5):
        Dm.append("  s_mov_b32 m0, s41" if j == 0 else f"  s_add_u32 m0, s41, {1024*j}")
        Dm.append(f"  buffer_load_dwordx4 v{VW+j}, s[12:15], s43 offen lds")
    return Dm
def g1_dma_adv():
    return L(f"""
    s_add_u32 s42, s42, 128
    s_add_u32 s43, s43, s45
    s_cmp_eq_u32 s44, {2*STAGE}
    s_cselect_b32 s46, {-2*STAGE & 0xffffffff}, s53
    s_add_u32 s44, s44, s46
    s_add_u32 s40, s40, s46
    s_add_u32 s41, s41, s46
    """)
def g1_rd_adv_s():
    return L(f"s_cmp_eq_u32 s47, {2*STAGE}\ns_cselect_b32 s48, {-2*STAGE & 0xffffffff}, s53\ns_add_u32 s47, s47, s48")
def g1_rd_adv_v(buf):
    return [f"  v_add_u32 v{r}, s48, v{r}" for r in [LA+buf] + list(range(LB+3*buf, LB+3*buf+3))]

BV = 168
def breg(s, t): return ar(s*20 + 4*t) if s < 12 else vr(BV + (s-12)*20 + 4*t)
def bstream(i0, n):
    out = []
    for i in range(i0, i0 + n):
        s, t = divmod(i, 5)
        if t < 4: out.append(f"  buffer_load_dwordx4 {breg(s,t)}, v4, s[16:19], s68 offen offset:{1024*t} sc1")
        else: out += [f"  buffer_load_dwordx4 {breg(s,t)}, v5, s[16:19], s68 offen sc1", "  s_add_u32 s68, s68, 5120"]
    return out
def wo_dma(i0, n):
    out = []
    for i in range(i0, i0 + n):
        if i % 4 == 0 or i == i0:
            b = i - i % 4
            out += [f"  s_add_u32 m0, s69, {1024*b}", f"  s_add_u32 s71, s70, {1024*b}"]
        out.append(f"  buffer_load_dwordx4 v4, s[16:19], s71 offen offset:{1024*(i%4)} sc1 lds")
    return out

def g1_main(tg, tr):
    a = A()
    late2 = [] if OPT["chunk2_early"] else g1_dma_x() + g1_dma_w() + g1_dma_adv()
    a += stamp(1)
    a(f"s_waitcnt vmcnt({23 if OPT['chunk2_early'] else 12})\ns_barrier")
    a += stamp(2)
    a += g1_reads(0)
    a("s_waitcnt lgkmcnt(0)")
    pk_r = []
    for t in range(4):
        pk_r += [f"  ds_read_b64_tr_b16 {ar(16+4*t,2)}, v2 offset:{32*t}", f"  ds_read_b64_tr_b16 {ar(18+4*t,2)}, v3 offset:{32*t}"]
    pk_s = [f"  buffer_store_dwordx4 {ar(16+4*t)}, v4, s[16:19], s{60+t} offen sc1" for t in range(4)]
    f = pk_r + g1_reads(1) + g1_rd_adv_s() + ["  s_waitcnt lgkmcnt(8)"] + mixf(pk_s, g1_rd_adv_v(0) + g1_rd_adv_v(1))
    M = g1_mfma(0, tr, True)
    if late2:
        d = late2[:-7]
        f = mixf(f, d) + late2[-7:]
        i = f.index(g1_rd_adv_s()[0]); j = f.index(g1_rd_adv_s()[1]); x = f.pop(j); f.insert(i+1, x)
    a += weave(M, f, 0, len(M) - 1)
    def body(dma, vm, pre=[], post=[], x1=[], x2=[]):
        b = A()
        b(f"s_waitcnt vmcnt({vm}) lgkmcnt(0)")
        b += pre
        b("s_barrier")
        b += post
        M = g1_mfma(1, tr, False)
        f = mixf(g1_reads(0), g1_dma_x() if dma else x1) + g1_rd_adv_s()
        b += weave(M, f, 0, len(M) - 2)
        b("s_waitcnt lgkmcnt(0)")
        M = g1_mfma(0, tr, False)
        f = mixf(g1_reads(1), g1_dma_w() if dma else x2, g1_rd_adv_v(0)) + g1_rd_adv_v(1) + (g1_dma_adv() if dma else [])
        b += weave(M, f, 0, len(M) - 1)
        return b
    a(f"s_mov_b32 s49, 7\n.p2align 3\n{tg}_loop:")
    post = L(f"s_cmp_eq_u32 s49, s55\ns_cbranch_scc1 {tg}_flag\n{tg}_flagr:\ns_cmp_eq_u32 s49, 1\ns_cbranch_scc1 {tg}_poll\n{tg}_pollr:")
    OUTL(f"""
    {tg}_flag:
    s_lshl_b32 s28, s2, 2
    s_add_u32 s28, s28, {FA}
    v_mov_b32 v1, s39
    v_mov_b32 v6, 0
    s_mov_b64 exec, 1
    buffer_store_dword v1, v6, s[16:19], s28 offen sc1
    s_mov_b64 exec, -1
    s_nop 3
    s_branch {tg}_flagr
    {tg}_poll:
    v_lshlrev_b32 v6, 2, v0
    v_add_u32 v6, {FA}, v6
    buffer_load_dword v{VF}, v6, s[16:19], 0 offen sc1
    s_branch {tg}_pollr
    """)
    bd = body(True, 11, post=post)
    assert haz.check(bd + bd) == 0
    a += bd
    a(f"s_sub_u32 s49, s49, 1\ns_cmp_lg_u32 s49, 0\ns_cbranch_scc1 {tg}_loop")
    a += stamp(3)
    n1, n2, n3 = OPT["tail"]
    aux = L(f"""
    s_mov_b32 m0, s72
    s_cmp_eq_u32 s73, 0
    buffer_load_dwordx4 v1, s[16:19], 0 offen sc1 lds
    s_cbranch_scc1 {tg}_ep
    {tg}_epr:
    """)
    OUTL(f"""
    {tg}_ep:
    v_mov_b32 v1, s39
    v_mov_b32 v6, 0
    s_mov_b64 exec, 1
    buffer_store_dword v1, v6, s[16:19], 0 offen sc1
    s_mov_b64 exec, -1
    s_nop 3
    s_branch {tg}_epr
    """)
    pre = spin(tg + "_sa", 6, VF, True) + L(f"""
    v_cmp_gt_u32 vcc, 48, v7
    v_add_u32 v1, s74, v4
    v_mov_b32 v6, {OOB}
    v_cndmask_b32 v1, v6, v1, vcc
    """)
    h = n1//2
    a += body(False, 11, pre=pre, post=aux, x1=bstream(0, h), x2=bstream(h, n1 - h))
    h = n2//2
    a += body(False, n1, x1=bstream(n1, h), x2=bstream(n1 + h, n2 - h))
    a("s_waitcnt lgkmcnt(0)")
    M = g1_mfma(1, tr, False)
    w = L(f"s_mul_i32 s28, s20, 5120\ns_add_u32 s28, s28, {CSX}\nv_add_u32 v6, s28, v4") + \
        [f"  ds_write_b128 v6, {vr(CS+4*t)} offset:{1024*t}" for t in range(5)] + \
        L(f"s_xor_b32 s28, s20, 2\ns_mul_i32 s28, s28, 5120\ns_add_u32 s28, s28, {CSX}\nv_add_u32 v6, s28, v4")
    a += weave(M, mixf(w, bstream(n1 + n2, n3)), 4, len(M) - 2)
    a("s_waitcnt lgkmcnt(0)\ns_barrier")
    for t in range(5): a(f"ds_read_b128 {vr(BB[0]+4*t)}, v6 offset:{1024*t}")
    a += stamp(4)
    return a
def cs_add(): return [f"  v_pk_add_f32 {vr(CS+2*i,2)}, {vr(CS+2*i,2)}, {vr(BB[0]+2*i,2)}" for i in range(10)]

def stats_block():
    a = A(); src = 8; tmp = 20; ac = 44
    a("s_waitcnt vmcnt(%d)" % (11 + 4 + 11 + (11 if OPT["chunk2_early"] else 0)))
    for i in range(12):
        a(f"v_lshlrev_b32 v{tmp+2*i}, 16, v{src+i}\nv_and_b32 v{tmp+2*i+1}, 0xffff0000, v{src+i}")
    a(f"v_pk_add_f32 {vr(ac,2)}, {vr(tmp,2)}, {vr(tmp+2,2)}")
    for i in range(2, 12): a(f"v_pk_add_f32 {vr(ac,2)}, {vr(ac,2)}, {vr(tmp+2*i,2)}")
    def red():
        a(f"v_add_f32 v{ac}, v{ac}, v{ac+1}")
        for r in (8, 4, 2, 1): a(f"v_add_f32_dpp v{ac}, v{ac}, v{ac} row_ror:{r} row_mask:0xf bank_mask:0xf")
        a(f"v_mov_b32 v{ac+1}, v{ac}\nv_permlane16_swap_b32 v{ac}, v{ac+1}\nv_add_f32 v{ac}, v{ac}, v{ac+1}")
    red()
    a(f"v_mul_f32 v46, 0xbacccccd, v{ac}")
    a(f"v_cndmask_b32 v47, 0, v46, s[32:33]")
    for i in range(8): a(f"v_pk_add_f32 {vr(tmp+2*i,2)}, {vr(tmp+2*i,2)}, v[46:47] op_sel_hi:[1,0]")
    for i in range(8, 12): a(f"v_pk_add_f32 {vr(tmp+2*i,2)}, {vr(tmp+2*i,2)}, v[46:47] op_sel:[0,1] op_sel_hi:[1,1]")
    a(f"v_pk_mul_f32 {vr(ac,2)}, {vr(tmp,2)}, {vr(tmp,2)}")
    for i in range(1, 12): a(f"v_pk_fma_f32 {vr(ac,2)}, {vr(tmp+2*i,2)}, {vr(tmp+2*i,2)}, {vr(ac,2)}")
    red()
    a(f"""
    v_mov_b32 v{ac+1}, 0x3727c5ac
    v_fmac_f32 v{ac+1}, 0x3acccccd, v{ac}
    v_rsq_f32 v{ac+1}, v{ac+1}
    v_and_b32 v48, 31, v7
    v_cmp_eq_u32 vcc, 0, v48
    v_lshrrev_b32 v49, 5, v7
    v_lshlrev_b32 v49, 2, v49
    v_cndmask_b32 v46, v{ac+1}, v46, vcc
    v_lshl_add_u32 v49, v48, 13, v49
    v_cmp_gt_u32 vcc, 2, v48
    v_mov_b32 v50, {OOB}
    s_lshl_b32 s28, s34, 3
    s_add_u32 s28, s28, {NEGM}
    v_cndmask_b32 v49, v50, v49, vcc
    buffer_store_dword v46, v49, s[16:19], s28 offen sc1
    """)
    return a

def prologue():
    a = A()
    a += stamp(0)
    a(f"""
    s_cmp_ge_u32 s2, 256
    s_cbranch_scc1 k_end
    s_load_dwordx16 s[60:75], s[0:1], 0
    s_load_dwordx2 s[26:27], s[0:1], 64
    v_lshrrev_b32 v1, 6, v0
    v_and_b32 v7, 63, v0                 ; lane
    v_readfirstlane_b32 s20, v1          ; wave
    s_and_b32 s3, s2, 7
    s_lshl_b32 s24, s3, 2
    s_lshr_b32 s28, s2, 6
    s_add_u32 s24, s24, s28
    s_bfe_u32 s25, s2, 0x30003
    s_lshl_b32 s3, s3, 5
    s_lshr_b32 s21, s2, 3
    s_add_u32 s3, s3, s21                ; lin
    s_cmp_lt_u32 s3, 138
    s_cselect_b32 s28, 0, 138
    s_cselect_b32 s29, 10923, 13108
    s_cselect_b32 s30, 6, 5
    s_cselect_b32 s31, 0, 6
    s_sub_u32 s28, s3, s28
    s_mul_i32 s22, s28, s29
    s_lshr_b32 s22, s22, 16              ; ctq
    s_mul_i32 s30, s22, s30
    s_sub_u32 s21, s28, s30
    s_add_u32 s21, s21, s31              ; rb
    s_cmp_ge_u32 s3, 253
    s_cselect_b32 s21, 11, s21
    s_cselect_b32 s22, 22, s22
    s_cmp_lt_u32 s22, 12
    s_cselect_b32 s50, 3840, 3456
    s_cselect_b32 s28, 8, 12
    s_lshl_b32 s45, s50, 6
    s_sub_u32 s23, s22, s28
    s_lshr_b32 s51, s20, 1               ; wr
    s_and_b32 s52, s20, 1                ; wc
    v_lshlrev_b32 v4, 4, v7
    v_add_u32 v5, 4096, v4
    s_lshl_b32 s34, s2, 2
    s_add_u32 s34, s34, s20
    s_mul_i32 s35, s34, 2560
    v_lshrrev_b32 v1, 5, v7
    v_mul_u32_u24 v1, {1280-512}, v1
    v_add_u32 v52, v1, v4                ; row*1280 + i*16
    v_and_b32 v1, 16, v7
    v_cmp_eq_u32 s[32:33], 0, v1
    v_mov_b32 v2, {OOB}
    s_mul_i32 s28, s21, 192
    s_mul_i32 s29, s20, 48
    s_add_u32 s28, s28, s29
    s_mul_i32 s28, s28, 1280
    v_cndmask_b32 v53, v2, v52, s[32:33]
    v_lshrrev_b32 v1, 3, v7              ; r8
    v_lshrrev_b32 v2, 1, v1
    v_and_b32 v3, 7, v7
    v_xor_b32 v2, v2, v3
    v_mul_u32_u24 v1, 1280, v1
    v_lshl_add_u32 v54, v3, 4, v1
    v_add_u32 v1, s28, v1
    v_lshl_add_u32 v3, v2, 4, v1
    v_xor_b32 v2, 4, v2
    v_lshl_add_u32 v6, v2, 4, v1
    """)
    for j in range(6): a(f"v_add_u32 v{VX+j}, {j*10240 - 1024*(j%4)}, v{6 if j & 1 else 3}")
    a(f"""
    s_lshl_b32 s28, s20, 4
    v_lshrrev_b32 v1, 2, v7
    v_add_u32 v1, s28, v1
    v_mul_lo_u32 v1, v1, s50             ; row*stride
    v_lshrrev_b32 v2, 4, v7
    v_and_b32 v2, 2, v2
    v_and_b32 v3, 3, v7
    v_xor_b32 v2, v2, v3                 ; p'
    v_lshl_add_u32 v1, v2, 4, v1
    s_mul_i32 s29, s23, 320
    s_mul_i32 s30, s22, 160
    s_add_u32 s30, s30, 1280
    s_cmp_lt_u32 s22, 8
    s_cselect_b32 s29, s30, s29
    s_cselect_b32 s30, 1200, 0
    s_cselect_b32 s31, -1280, 0
    v_add_u32 v{VW}, s29, v1
    """)
    a(f"""
    v_mov_b32 v1, s30
    v_mov_b32 v3, s31
    v_cmp_le_u32 vcc, 1, v2
    s_add_u32 s28, s30, 128
    s_add_u32 s29, s28, s31
    v_cndmask_b32 v6, 0, v1, vcc
    v_cmp_le_u32 vcc, 2, v2
    v_add3_u32 v{VW+1}, v{VW}, 64, v6
    s_add_u32 s29, s29, 64
    v_cndmask_b32 v6, 0, v3, vcc
    v_cmp_le_u32 vcc, 3, v2
    v_add3_u32 v{VW+2}, v{VW}, s28, v6
    s_add_u32 s28, s29, s30
    v_cndmask_b32 v6, 0, v1, vcc
    s_add_u32 s28, s28, 64
    v_add3_u32 v{VW+3}, v{VW}, s29, v6
    v_add_u32 v{VW+4}, s28, v{VW}
    s_mul_i32 s40, s20, 6144
    s_mul_i32 s41, s20, 5120
    s_add_u32 s41, s41, {WOFF}
    s_mov_b32 s42, 0
    s_mov_b32 s43, 0
    s_mov_b32 s44, 0
    s_mov_b32 s47, 0
    s_mov_b32 s53, {STAGE}
    s_lshl_b32 s36, s20, 8
    s_add_u32 s36, s36, s2               ; job
    s_mul_i32 s37, s36, 6554
    s_lshr_b32 s37, s37, 16              ; ks
    s_mul_i32 s28, s37, 10
    s_sub_u32 s38, s36, s28              ; line
    s_waitcnt lgkmcnt(0)
    s_load_dword s39, s[26:27], 0
    """)
    a += srd(8, 60, S*D*2)
    for j in range(3): a(f"buffer_load_dwordx4 {vr(8+4*j)}, v{53 if j == 2 else 52}, s[8:11], s35 offen offset:{512*j}")
    a(f"""
    s_cmp_lt_u32 s22, 12
    s_cselect_b32 s12, s62, s68
    s_cselect_b32 s13, s63, s69
    s_cselect_b32 s14, {D*3*D*2}, {D*F*2}
    s_and_b32 s13, s13, 0xffff
    s_mov_b32 s15, 0x20000
    """)
    a += g1_dma_x() + g1_dma_w() + g1_dma_adv()
    a(f"""
    s_cmp_lt_u32 s37, 54
    s_cselect_b32 s56, s70, s64
    s_cselect_b32 s57, s71, s65
    s_cselect_b32 s58, {F*D*2}, {D*D*2}
    s_cselect_b32 s28, 0, 54
    s_and_b32 s57, s57, 0xffff
    s_mov_b32 s59, 0x20000
    s_sub_u32 s28, s37, s28
    s_mul_i32 s28, s28, {32*1280}
    s_lshl_b32 s29, s38, 7
    s_add_u32 s28, s28, s29
    s_lshl_b32 s29, s20, 12
    s_add_u32 s29, s29, {PACKL}
    s_mov_b32 m0, s29
    """)
    for i in range(4):
        a(f"buffer_load_dwordx4 v54, s[56:59], s28 offen offset:{1024*i} lds")
        if i < 3: a("s_add_u32 s28, s28, 9216")
    a += srd(4, 72, S*D*2)
    a += srd(16, 26, WS_USED)
    a += g1_dma_x() + g1_dma_w() + g1_dma_adv()
    if OPT["chunk2_early"]: a += g1_dma_x() + g1_dma_w() + g1_dma_adv()
    a(f"""
    s_mul_i32 s30, s37, 205
    s_lshr_b32 s30, s30, 10
    s_mul_i32 s30, s30, 5
    s_sub_u32 s30, s37, s30
    s_cmp_eq_u32 s30, 2
    s_cselect_b32 s31, 1, 0
    s_cmp_ge_u32 s37, 54
    s_cselect_b32 s31, 1, s31
    s_add_u32 s28, s31, 9
    s_cmp_eq_u32 s31, 1
    s_cselect_b32 s30, 512, 2048
    v_lshrrev_b32 v55, 4, v7             ; g
    v_bfe_u32 v56, v7, 2, 2              ; rr
    v_and_b32 v57, 3, v7                 ; c4
    v_lshlrev_b32 v2, s28, v55
    v_lshl_add_u32 v2, v56, 7, v2
    v_lshl_add_u32 v2, v57, 3, v2
    v_add_u32 v2, s29, v2
    v_add_u32 v3, s30, v2
    s_mul_i32 s28, s37, 5120
    s_add_u32 s28, s28, {WP}
    s_cmp_ge_u32 s36, 740
    s_cselect_b32 s28, {OOB}, s28
    s_lshl_b32 s29, s38, 2
    """)
    for t in range(4):
        a(f"""
        s_add_u32 s30, s29, {t}
        s_mul_i32 s31, s30, 205
        s_lshr_b32 s31, s31, 10
        s_mul_i32 s31, s31, {74*5120 - 5*1024}
        s_lshl_b32 s30, s30, 10
        s_add_u32 s30, s30, s31
        s_add_u32 s{60+t}, s30, s28
        """)
    a(f"""
    v_and_b32 v1, 15, v7                 ; m
    v_lshrrev_b32 v6, 1, v1
    v_xor_b32 v6, v6, v55
    s_lshl_b32 s29, s51, 2
    v_xor_b32 v6, s29, v6
    s_mul_i32 s28, s51, 12288
    v_lshl_add_u32 v1, v1, 7, s28
    v_lshl_add_u32 v{LA}, v6, 4, v1
    v_xor_b32 v6, 4, v6
    v_lshl_add_u32 v{LA+1}, v6, 4, v1
    v_and_b32 v58, 1, v55                ; g&1
    v_lshrrev_b32 v1, 1, v55
    v_mul_u32_u24 v1, 5120, v1
    v_lshl_add_u32 v1, v58, 9, v1
    v_lshl_add_u32 v1, v56, 6, v1
    v_lshl_add_u32 v1, v57, 3, v1
    s_mul_i32 s31, s51, 10240
    s_add_u32 s31, s31, {WOFF}
    v_add_u32 v1, s31, v1
    s_cmp_lt_u32 s22, 8
    s_cselect_b32 s28, 5, 6
    s_cselect_b32 s29, 9, 5
    s_cmp_eq_u32 s52, 0
    s_cselect_b32 s28, 0, s28
    s_cselect_b32 s29, 4, s29
    s_add_u32 s30, s28, 1
    s_cmp_eq_u32 s51, 0
    s_cselect_b32 s31, 10240, {-10240 & 0xffffffff}
    """)
    for i, sreg in enumerate((28, 30, 29)):
        a(f"""
        s_and_b32 s64, s{sreg}, 1
        s_lshr_b32 s65, s{sreg}, 1
        s_lshl_b32 s65, s65, 10
        v_xor_b32 v6, s64, v58
        v_lshl_add_u32 v6, v6, 5, v1
        v_add_u32 v{LB+i}, s65, v6
        v_add_u32 v{LB+3+i}, s31, v{LB+i}
        """)
    a(f"""
    v_mov_b32 v6, 0x3f803f80
    v_accvgpr_write_b32 a{ONES}, v6
    v_accvgpr_write_b32 a{ONES+1}, v6
    v_accvgpr_write_b32 a{ONES+2}, v6
    v_accvgpr_write_b32 a{ONES+3}, v6
    s_cmp_eq_u32 s20, 0
    s_cselect_b32 s55, 6, 64
    s_mul_i32 s28, s20, 13
    s_min_u32 s29, s20, 2
    s_add_u32 s75, s28, s29
    s_mul_i32 s29, s25, {74*5120}
    s_add_u32 s29, s29, {WP}
    s_mul_i32 s28, s75, 5120
    s_add_u32 s68, s29, s28
    s_mul_i32 s69, s20, 25600
    s_add_u32 s70, s29, {54*5120}
    s_add_u32 s70, s70, s69
    s_lshl_b32 s72, s20, 10
    s_add_u32 s72, s72, {SPARE}
    s_add_u32 s73, s2, s20
    s_mul_i32 s74, s21, 768
    s_lshl_b32 s28, s20, 13
    s_add_u32 s74, s74, s28
    s_add_u32 s74, s74, {NEGM}
    s_cmp_ge_u32 s20, 2
    s_cselect_b32 s74, {OOB}, s74
    s_waitcnt lgkmcnt(0)
    s_mul_i32 s39, s39, 1664525
    s_add_u32 s39, s39, 1013904223
    """)
    a += stats_block()
    return a

def epi_t():
    a = A()
    RC = AB[0]; TMP = BB[1]; PK = AB[1]
    a(f"""
    v_and_b32 v1, 15, v7
    v_lshrrev_b32 v2, 4, v7
    s_mul_i32 s28, s51, 384
    s_add_u32 s28, s28, {SPARE}
    v_lshl_add_u32 v3, v1, 2, s28
    """)
    for T in range(6):
        a(f"ds_read_b32 v{RC+4*T}, v3 offset:{64*T}\nds_read_b32 v{RC+4*T+1}, v3 offset:{1024+64*T}")
    a(f"""
    s_cmp_lt_u32 s22, 12
    s_cselect_b32 s28, {PQ}, {HH}
    s_cselect_b32 s54, {20*4096}, {54*4096}
    s_add_u32 s56, s26, s28
    s_addc_u32 s57, s27, 0
    s_and_b32 s57, s57, 0xffff
    s_lshl_b32 s58, s54, 5
    s_mov_b32 s59, 0x20000
    s_mul_i32 s64, s21, 3
    s_add_u32 s64, s64, s51
    s_mul_i32 s64, s64, s54
    s_lshl_b32 s28, s51, 11
    s_add_u32 s64, s64, s28
    s_sub_u32 s28, s54, 3072
    s_cmp_eq_u32 s51, 0
    s_cselect_b32 s65, 1024, s28
    s_cselect_b32 s66, s28, 1024
    s_mul_i32 s61, s23, {5*4096}
    s_mul_i32 s28, s52, {3*4096}
    s_add_u32 s62, s61, s28
    s_add_u32 s63, s62, 4096
    s_cmp_ge_u32 s63, s54
    s_cselect_b32 s63, {OOB}, s63
    s_lshl_b32 s28, s52, 9
    s_add_u32 s61, s61, s28
    s_add_u32 s61, s61, {8192 - 1024}
    v_add_u32 v{VX}, s62, v4
    v_add_u32 v{VX+1}, s63, v4
    v_and_b32 v3, 1, v2
    v_lshlrev_b32 v3, 10, v3
    v_lshrrev_b32 v6, 1, v2
    v_lshl_add_u32 v3, v6, 8, v3
    v_lshl_add_u32 v3, v1, 4, v3
    v_add_u32 v{VX+2}, s61, v3
    s_lshl_b32 s67, s21, 8
    s_lshl_b32 s28, s22, 4
    s_add_u32 s67, s67, s28
    s_lshl_b32 s28, s20, 2
    s_add_u32 s67, s67, s28
    s_add_u32 s67, s67, {F1 - 128}
    s_waitcnt lgkmcnt(0)
    """)
    a += cs_add()
    a("s_cmp_lt_u32 s22, 12\ns_cbranch_scc1 k_q")
    nb = sum(OPT["tail"])
    def epi(kind):
        e = A()
        e(f"s_mov_b32 s30, {LOG2E | (0x80000000 if kind == 'silu' else 0)}")
        for T in range(6):
            c = RC + 4*T
            e(f"v_mul_f32 v{c+2}, s30, v{c+1}")
            if kind == "silu": e(f"v_rcp_f32 v{c+3}, v{c+1}")
        if kind == "phi": e(f"v_mov_b32 v{VX+4}, 0x358637bd\nv_mov_b32 v{VX+5}, 0x358637bd")
        pend = []
        for T in range(6):
            c = RC + 4*T; u0 = acc(T, 0)
            V = []
            for i in range(10): V.append(f"  v_pk_fma_f32 {vr(u0+2*i,2)}, {vr(CS+2*i,2)}, {vr(c,2)}, {vr(u0+2*i,2)} op_sel_hi:[1,0,1]")
            for i in range(10): V.append(f"  v_pk_mul_f32 {vr(TMP+2*i,2)}, {vr(u0+2*i,2)}, {vr(c+2,2)} op_sel_hi:[1,0]")
            if kind == "silu":
                for i in range(20): V.append(f"  v_exp_f32 v{TMP+i}, v{TMP+i}")
                for i in range(10): V.append(f"  v_pk_fma_f32 {vr(TMP+2*i,2)}, {vr(TMP+2*i,2)}, {vr(c+2,2)}, {vr(c+2,2)} op_sel:[0,1,1] op_sel_hi:[1,1,1]")
                for i in range(20): V.append(f"  v_rcp_f32 v{TMP+i}, v{TMP+i}")
                for i in range(10): V.append(f"  v_pk_mul_f32 {vr(u0+2*i,2)}, {vr(u0+2*i,2)}, {vr(TMP+2*i,2)}")
            else:
                for i in range(20): V.append(f"  v_exp_f32_e64 v{TMP+i}, v{TMP+i} clamp")
                for i in range(10): V.append(f"  v_pk_fma_f32 {vr(u0+2*i,2)}, {vr(u0+2*i,2)}, {vr(c,2)}, 1.0 op_sel:[0,1,0] op_sel_hi:[1,1,0]")
                for i in range(20): V.append(f"  v_max_f32 v{u0+i}, v{u0+i}, v{TMP+i}")
                for i in range(10): V.append(f"  v_pk_add_f32 {vr(u0+2*i,2)}, {vr(u0+2*i,2)}, {vr(VX+4,2)}")
            ins = {}
            for k, st in enumerate(pend): ins[6 + 14*k] = st
            if T < OPT["epi_groups"]: ins[56] = bstream(nb + 4*T, 4)
            for i, v in enumerate(V):
                e.append(v)
                if i in ins: e += ins[i]
            p = PK + 8*(T & 1); mx = PK + 16 + 2*(T & 1)
            for i in range(2): e(f"v_cvt_pk_bf16_f32 v{mx+i}, v{u0+16+2*i}, v{u0+17+2*i}")
            for i in range(8): e(f"v_cvt_pk_bf16_f32 v{p+i}, v{u0+2*i}, v{u0+2*i+1}")
            pend = [[f"  buffer_store_dwordx4 {vr(p)}, v{VX}, s[56:59], s64 offen sc1"],
                    [f"  buffer_store_dwordx4 {vr(p+4)}, v{VX+1}, s[56:59], s64 offen sc1"]]
            if T & 1:
                e(f"v_permlane16_swap_b32 v{PK+16}, v{PK+18}\nv_permlane16_swap_b32 v{PK+17}, v{PK+19}")
                pend.append([f"  buffer_store_dwordx4 {vr(PK+16)}, v{VX+2}, s[56:59], s64 offen sc1"])
            if T < 5: pend[-1].append(f"  s_add_u32 s64, s64, {'s65' if T == 1 else 's66' if T == 3 else 1024}")
        for st in pend: e += st
        return e
    a += epi("silu")
    a("s_branch k_p2\nk_q:")
    a += epi("phi")
    a("s_branch k_p2")
    return a

def epi_kv():
    a = A()
    NM = AB[0]; RS = AB[1]; TMP = BB[1]; FR = 232; DD = ACC
    a(f"""
    v_and_b32 v1, 15, v7
    v_lshrrev_b32 v2, 4, v7
    s_mul_i32 s28, s51, 384
    s_add_u32 s28, s28, {SPARE}
    v_lshl_add_u32 v3, v2, 4, s28
    """)
    for T in range(6):
        a(f"ds_read_b128 {vr(NM+4*T)}, v3 offset:{64*T}\nds_read_b128 {vr(RS+4*T)}, v3 offset:{1024+64*T}")
    a(f"""
    s_mov_b32 s30, {LOG2E}
    s_mov_b32 s31, {LOG2E}
    v_mov_b32 v{TMP+12}, 0x358637bd
    v_mov_b32 v{TMP+13}, 0x358637bd
    v_mov_b32 v{TMP+14}, 0x3f803f80
    v_cmp_gt_u32 s[32:33], 8, v1
    s_cmp_eq_u32 s21, 10
    s_cselect_b32 s36, s51, 0
    s_lshl_b32 s28, s22, 1
    s_add_u32 s28, s28, s52              ; hp
    s_lshl_b32 s67, s28, 6
    s_lshl_b32 s29, s21, 2
    s_add_u32 s67, s67, s29
    s_add_u32 s67, s67, {FK}
    s_cmp_eq_u32 s51, 0
    s_cselect_b32 s67, s67, {OOB}
    s_mul_i32 s28, s28, 11
    s_add_u32 s28, s28, s21
    s_lshl_b32 s28, s28, 12
    s_add_u32 s37, s28, {KVP}
    s_waitcnt lgkmcnt(0)
    s_barrier
    """)
    a += cs_add()
    prods = [(0,3),(0,4),(1,3),(1,4),(1,5),(2,3),(2,4),(2,5)]
    nb = sum(OPT["tail"])
    for P in range(3):
        if P == 1: a("s_cmp_eq_u32 s36, 1\ns_cbranch_scc1 k_kvdone")
        for h in range(2):
            T = 2*P + h; u0 = acc(T, 0); nm = NM + 4*T; rs = RS + 4*T
            for t in range(5):
                for i in range(2):
                    r = u0 + 4*t + 2*i
                    a(f"v_pk_fma_f32 {vr(r,2)}, {vr(nm+2*i,2)}, {vr(CS+4*t,2)}, {vr(r,2)} op_sel_hi:[1,0,1]")
            for t in range(5):
                for i in range(2):
                    r = u0 + 4*t + 2*i
                    a(f"v_pk_mul_f32 {vr(r,2)}, {vr(r,2)}, {vr(rs+2*i,2)}")
            for i in range(6): a(f"v_pk_mul_f32 {vr(TMP+2*i,2)}, {vr(u0+2*i,2)}, s[30:31]")
            for i in range(12): a(f"v_exp_f32_e64 v{TMP+i}, v{TMP+i} clamp")
            for t in range(2, 5):
                for i in range(2): a(f"v_cvt_pk_bf16_f32 v{FR+4*(t+1)+2*h+i}, v{u0+4*t+2*i}, v{u0+4*t+2*i+1}")
            for i in range(2): a(f"v_cndmask_b32 v{FR+12+2*h+i}, v{FR+12+2*h+i}, v{TMP+14}, s[32:33]")
            for i in range(6): a(f"v_pk_add_f32 {vr(u0+2*i,2)}, {vr(u0+2*i,2)}, 1.0 op_sel_hi:[1,0]")
            for i in range(12): a(f"v_max_f32 v{u0+i}, v{u0+i}, v{TMP+i}")
            for i in range(6): a(f"v_pk_add_f32 {vr(u0+2*i,2)}, {vr(u0+2*i,2)}, {vr(TMP+12,2)}")
            for t in range(3):
                for i in range(2): a(f"v_cvt_pk_bf16_f32 v{FR+4*t+2*h+i}, v{u0+4*t+2*i}, v{u0+4*t+2*i+1}")
        for n, (kx, vy) in enumerate(prods):
            d = vr(DD + 4*n)
            a(f"v_mfma_f32_16x16x32_bf16 {d}, {vr(FR+4*kx)}, {vr(FR+4*vy)}, {'0' if P == 0 else d}")
    a("k_kvdone:")
    OF = 48
    for n, (kx, vy) in enumerate(prods):
        eoff = {3: -8, 4: 8, 5: 24}[vy]
        a(f"""
        v_add_u32 v3, {4*kx}, v2
        v_cmp_le_u32 vcc, 5, v3
        v_add_u32 v64, {eoff}, v1
        v_cmp_gt_u32 s[34:35], 10, v3
        v_cndmask_b32 v6, 0, 20, vcc
        v_sub_u32 v64, v64, v6
        """)
        if vy == 3: a("v_cmp_eq_u32 vcc, 0, v1\nv_cndmask_b32 v6, v64, 0, vcc\nv_cndmask_b32 v64, v64, 20, vcc")
        else: a("v_mov_b32 v6, v64")
        a(f"""
        v_cmp_gt_u32 vcc, 20, v6
        v_mad_u32_u24 v64, v3, 21, v64
        v_mov_b32 v6, 255
        s_and_b64 vcc, vcc, s[34:35]
        v_cndmask_b32 v64, v6, v64, vcc
        v_lshlrev_b32 v{OF+n}, 4, v64
        """)
    a(f"s_lshl_b32 s28, s52, 12\ns_add_u32 s28, s28, {KVX}")
    for n in range(8): a(f"v_add_u32 v{OF+8+n}, s28, v{OF+n}")
    a("s_cmp_eq_u32 s51, 0\ns_cbranch_scc1 k_kv0")
    for n in range(8): a(f"ds_write_b128 v{OF+8+n}, {vr(DD+4*n)}")
    a("s_waitcnt lgkmcnt(0)\ns_barrier\ns_branch k_kv1\nk_kv0:\ns_barrier")
    for n in range(8): a(f"ds_read_b128 {vr(72+4*n)}, v{OF+8+n}")
    a("s_waitcnt lgkmcnt(0)")
    for n in range(16): a(f"v_pk_add_f32 {vr(72+2*n,2)}, {vr(72+2*n,2)}, {vr(DD+2*n,2)}")
    for n in range(8): a(f"buffer_store_dwordx4 {vr(72+4*n)}, v{OF+n}, s[16:19], s37 offen sc1")
    a("k_kv1:")
    return a, bstream(nb, 4*OPT["epi_groups"])

def phase2(kvfix):
    a = A()
    G = 8; AR = 88; NA = 5; SA = 208; XB = 228
    nb = sum(OPT["tail"]) + 4*OPT["epi_groups"]
    g1 = OPT["gap1"]
    a += kvfix
    a(f"s_waitcnt vmcnt({nvm(kvfix)})")
    flag = L("v_mov_b32 v1, s39\nv_mov_b32 v6, 0\ns_mov_b64 exec, 1\nbuffer_store_dword v1, v6, s[16:19], s67 offen sc1\ns_mov_b64 exec, -1")
    a += flag
    a(f"s_mov_b32 s67, {OOB}\nk_p2:")
    a += stamp(5)
    a += wo_dma(0, g1)
    a(f"""
    s_and_b32 s21, s2, 15                ; hp
    s_lshr_b32 s23, s2, 4                ; rg
    s_mul_i32 s28, s24, 21846
    s_lshr_b32 s28, s28, 16
    s_lshl_b32 s28, s28, 8
    s_add_u32 s28, s28, {F1 + 64}        ; W1 flags
    s_lshl_b32 s29, s21, 6
    s_add_u32 s29, s29, {FK - 44*4}
    s_lshl_b32 s30, s23, 1
    s_mul_i32 s31, s30, 21846
    s_lshr_b32 s31, s31, 16
    s_add_u32 s30, s30, 1
    s_mul_i32 s30, s30, 21846
    s_lshr_b32 s30, s30, 16
    s_lshr_b32 s34, s21, 2
    s_lshl_b32 s34, s34, 4
    s_lshl_b32 s31, s31, 8
    s_add_u32 s31, s31, s34
    s_add_u32 s31, s31, {F1 - 55*4}
    s_lshl_b32 s30, s30, 8
    s_add_u32 s30, s30, s34
    s_add_u32 s30, s30, {F1 - 59*4}
    v_min_u32 v1, 62, v7
    v_mov_b32 v2, s28
    v_mov_b32 v3, s29
    v_cmp_le_u32 vcc, 44, v1
    v_cndmask_b32 v2, v2, v3, vcc
    v_mov_b32 v3, s31
    v_cmp_le_u32 vcc, 55, v1
    v_cndmask_b32 v2, v2, v3, vcc
    v_mov_b32 v3, s30
    v_cmp_le_u32 vcc, 59, v1
    v_cndmask_b32 v2, v2, v3, vcc
    v_lshl_add_u32 v{VF-1}, v1, 2, v2
    s_waitcnt vmcnt({g1})
    """)
    a += flag
    a += stamp(6)
    rest = wo_dma(g1, 25 - g1) + bstream(nb, 60 - nb)
    P0 = 168; PQR = 212; GA = 228
    su = A()
    su(f"""
    v_and_b32 v1, 15, v7                 ; i / m
    v_lshrrev_b32 v2, 4, v7              ; g
    v_lshrrev_b32 v3, 2, v1
    v_and_b32 v8, 3, v1
    v_lshl_add_u32 v6, v3, 3, v8
    v_cmp_le_u32 vcc, 20, v6
    v_cndmask_b32 v12, 0, 5, vcc
    v_lshlrev_b32 v16, 2, v12
    v_sub_u32 v16, v6, v16
    v_add_u32 v6, 4, v6
    v_cmp_le_u32 vcc, 20, v6
    v_cndmask_b32 v13, 0, 5, vcc
    v_lshlrev_b32 v17, 2, v13
    v_sub_u32 v17, v6, v17
    v_cmp_gt_u32 vcc, 8, v1
    v_cndmask_b32 v14, 64, 5, vcc
    v_add_u32 v18, 12, v1
    v_add_u32 v6, v3, v8
    v_cmp_le_u32 vcc, 3, v6
    v_cmp_le_u32 s[34:35], 2, v8
    s_or_b64 vcc, vcc, s[34:35]
    v_cndmask_b32 v15, 0, 5, vcc
    v_mov_b32 v19, 20
    v_mov_b32 v9, 255
    s_mul_i32 s54, s21, 5
    s_lshr_b32 s54, s54, 2               ; ksA
    s_mov_b32 s37, {RED}
    """)
    for k in range(2):
        su(f"""
        s_add_u32 s31, s54, {k}
        s_mul_i32 s32, s31, 205
        s_lshr_b32 s32, s32, 10
        s_mul_i32 s32, s32, 5
        s_sub_u32 s32, s31, s32
        s_cmp_eq_u32 s32, 2 ;KEEP
        s_cselect_b32 s33, 1, 0 ;KEEP
        s_cselect_b32 s36, 1, 4
        s_lshl_b32 s31, s31, 3
        s_mul_i32 s32, s21, 10
        s_sub_u32 s31, s31, s32
        v_lshlrev_b32 v3, s33, v2
        v_add_u32 v3, s31, v3
        """)
        for j in range(2):
            if j: su("v_add_u32 v3, s36, v3")
            for tl in range(4):
                su(f"""
                v_sub_u32 v8, v3, v{12+tl}
                v_cmp_gt_u32 vcc, 5, v8
                v_mad_u32_u24 v8, v3, 21, v{16+tl}
                v_cndmask_b32 v8, v9, v8, vcc
                v_lshl_add_u32 v{GA+tl*4+k*2+j}, v8, 3, s37
                """)
    su(f"""
    s_mul_i32 s60, s21, {11*4096}
    s_add_u32 s60, s60, {KVP}
    v_lshlrev_b32 v10, 4, v0
    v_cmp_gt_u32 vcc, 210, v0
    v_mov_b32 v6, {OOB}
    v_cndmask_b32 v248, v6, v10, vcc
    s_lshl_b32 s29, s23, 1
    s_add_u32 s29, s29, s51
    s_mul_i32 s29, s29, {20*4096}
    s_lshl_b32 s30, s54, 12
    s_add_u32 s29, s29, s30
    s_lshl_b32 s30, s52, 11
    s_add_u32 s29, s29, s30
    s_add_u32 s61, s29, {PQ}
    s_add_u32 s62, s61, 4096
    s_lshl_b32 s28, s23, 2
    s_add_u32 s28, s28, s20              ; rt2
    s_lshl_b32 s64, s28, 6
    s_lshl_b32 s29, s21, 2
    s_add_u32 s64, s64, s29
    s_add_u32 s64, s64, {FO}
    s_mul_i32 s28, s28, 40960
    s_mul_i32 s29, s21, 1280
    s_add_u32 s28, s28, s29
    s_add_u32 s63, s28, {OO}
    v_lshlrev_b32 v3, 4, v1
    v_lshl_add_u32 v3, v2, 3, v3
    v_cmp_gt_u32 vcc, 2, v2
    v_cndmask_b32 v249, v6, v3, vcc
    v_lshl_add_u32 v250, v0, 3, s37
    s_mul_i32 s40, s24, {54*4096}
    s_lshl_b32 s28, s75, 12
    s_add_u32 s40, s40, s28
    s_add_u32 s40, s40, {HH}
    """)
    AV = [244, 245, 246, 247]
    for T in range(4):
        su(f"s_add_u32 s28, s20, {T}\ns_and_b32 s28, s28, 3\ns_lshl_b32 s28, s28, 10\nv_add_u32 v{AV[T]}, s28, v4")
    groups = []; cur = []
    for x in rest:
        cur.append(x)
        if nvm(cur) == 4 and x.strip().startswith("buffer"): groups.append(cur); cur = []
    if cur: groups.append(cur)
    step = max(1, len(su)//(len(groups) + 1)); gi = 0
    for i, x in enumerate(su):
        a.append(x)
        if gi < len(groups) and i >= step*gi and ";KEEP" not in x:
            a += groups[gi]; gi += 1
    while gi < len(groups): a += groups[gi]; gi += 1
    a += stamp(7)
    a += spin("k_sb", VF-1, VF, False)
    a += stamp(8)
    issued = []
    def iss(lines, tag):
        for x in lines:
            if x.strip().startswith("buffer_"): issued.append(tag)
        return lines
    def wait(*tags):
        last = max(i for i, t in enumerate(issued) if t in tags)
        return len(issued) - 1 - last
    o1 = []
    for i in range(11):
        o1.append(f"  buffer_load_dwordx4 {vr(P0+4*i)}, v248, s[16:19], s60 offen sc1")
        if i < 10: o1.append("  s_add_u32 s60, s60, 4096")
    o2 = L(f"""
    buffer_load_dwordx4 {vr(PQR)}, v4, s[16:19], s61 offen sc1
    buffer_load_dwordx4 {vr(PQR+4)}, v4, s[16:19], s62 offen sc1
    buffer_load_dwordx4 {vr(PQR+8)}, v4, s[16:19], s61 offen offset:1024 sc1
    buffer_load_dwordx4 {vr(PQR+12)}, v4, s[16:19], s62 offen offset:1024 sc1
    """)
    def ldA(s):
        r = [f"  buffer_load_dwordx4 {vr(AR+(s%NA)*16+4*T)}, v{AV[T]}, s[16:19], s40 offen sc1" for T in range(4)]
        return r + ["  s_add_u32 s40, s40, 4096"]
    a += iss(ldA(0), "A0") + iss(o1, "P") + iss(ldA(1), "A1") + iss(o2, "Q") + iss(ldA(2), "A2") + iss(ldA(3), "A3")
    osum = []
    for i in range(1, 11):
        osum += [f"  v_pk_add_f32 {vr(P0,2)}, {vr(P0,2)}, {vr(P0+4*i,2)}", f"  v_pk_add_f32 {vr(P0+2,2)}, {vr(P0+2,2)}, {vr(P0+4*i+2,2)}"]
    osum += L(f"v_cvt_pk_bf16_f32 v{P0+40}, v{P0}, v{P0+1}\nv_cvt_pk_bf16_f32 v{P0+41}, v{P0+2}, v{P0+3}\nds_write_b64 v250, {vr(P0+40,2)}")
    ogat = [f"  ds_read_b64 {vr(P0+2*n,2)}, v{GA+n}" for n in range(16)]
    DB = [200, 204, 208, 228, 232, 236, 240, 251]
    DB[7] = 252
    omf = []
    for k in range(2):
        for T in range(2):
            for tl in range(4):
                d = vr(DB[T*4+tl])
                omf.append(f"  v_mfma_f32_16x16x32_bf16 {d}, {vr(P0+tl*8+k*4)}, {vr(PQR+T*8+k*4)}, {'0' if k == 0 else d}")
    ofin = [[], []]
    for T in range(2):
        z = DB[T*4+3]; o = ofin[T]; pk = P0 + 8*T
        for r in range(3): o.append(f"  v_add_f32 v{z+r}, 0x358637bd, v{z+r}")
        for r in range(3): o.append(f"  v_rcp_f32 v{z+r}, v{z+r}")
        for tl in range(3):
            for r in range(4): o.append(f"  v_mul_f32 v{DB[T*4+tl]+r}, v{DB[T*4+tl]+r}, v{z+tl}")
        for tl in range(3):
            for i in range(2): o.append(f"  v_cvt_pk_bf16_f32 v{pk+2*tl+i}, v{DB[T*4+tl]+2*i}, v{DB[T*4+tl]+2*i+1}")
        o.append(f"  buffer_store_dwordx4 {vr(pk)}, v4, s[16:19], s63 offen sc1")
        o.append(f"  buffer_store_dwordx2 {vr(pk+4,2)}, v249, s[16:19], s63 offen offset:1024 sc1")
        if T == 0: o.append("  s_add_u32 s63, s63, 20480")
    oflag = L("v_mov_b32 v1, s39\nv_mov_b32 v6, 0\ns_mov_b64 exec, 1\nbuffer_store_dword v1, v6, s[16:19], s64 offen sc1\ns_mov_b64 exec, -1\ns_nop 3")
    fs = A()
    fs(f"""
    s_lshl_b32 s46, s24, 2
    s_add_u32 s46, s46, s20
    s_lshr_b32 s28, s46, 1
    s_lshl_b32 s28, s28, 6
    s_add_u32 s28, s28, {FO}
    v_and_b32 v6, 15, v7
    v_lshl_add_u32 v{VF-1}, v6, 2, s28
    s_mul_i32 s48, s46, {16*1280}
    s_mul_i32 s28, s25, 160
    s_add_u32 s48, s48, s28
    s_mul_i32 s46, s46, 20480
    s_add_u32 s46, s46, {OO}
    s_mul_i32 s49, s20, 15360
    s_add_u32 s49, s49, {RED}
    """)
    for i in range(3):
        fs(f"""
        v_add_u32 v6, {64*i}, v7
        v_mul_u32_u24 v243, 6554, v6
        v_lshrrev_b32 v243, 16, v243
        v_mul_u32_u24 v248, 10, v243
        v_sub_u32 v248, v6, v248
        v_mul_u32_u24 v249, 1280, v243
        v_lshl_add_u32 v249, v248, 4, v249
        v_cmp_gt_u32 vcc, 160, v6
        v_mov_b32 v6, {OOB}
        v_mul_u32_u24 v243, 336, v243
        v_cndmask_b32 v{1+i}, v6, v249, vcc
        v_lshl_add_u32 v243, v248, 5, v243
        v_cndmask_b32 v243, 0, v243, vcc
        v_add_u32 v{240+i}, s49, v243
        """)
    RW = [248, 249, 250]
    for T in range(1, 4):
        fs(f"s_add_u32 s28, s20, {T}\ns_and_b32 s28, s28, 3\ns_mul_i32 s28, s28, 15360\ns_add_u32 s28, s28, {RED + (T-1)*5120}\nv_add_u32 v{RW[T-1]}, s28, v4")
    fs(f"""
    v_add_u32 v251, s49, v4
    v_add_u32 v5, 51200, v4
    v_and_b32 v243, 15, v7
    v_lshrrev_b32 v6, 4, v7
    v_mul_u32_u24 v243, 336, v243
    v_lshl_add_u32 v243, v6, 4, v243
    v_add_u32 v243, s49, v243
    """)
    def ldO(i0, n):
        r = []
        for i in range(i0, i0 + n):
            if i % 4 == 0: r.append(f"  s_add_u32 s47, s46, {1024*i}")
            r.append(f"  buffer_load_dwordx4 {ar(4*i)}, v4, s[16:19], s47 offen offset:{1024*(i%4)} sc1")
        return r
    ldX = [f"  buffer_load_dwordx4 {vr(XB+4*i)}, v{1+i}, s[8:11], s48 offen" for i in range(3)]
    opoll = [f"  buffer_load_dword v{VF}, v{VF-1}, s[16:19], 0 offen sc1"]
    for s in range(14):
        nxt = s + NA - 1
        pre = []; fill = []; extraM = []; tags = [f"A{s}"]
        if s == 1: tags.append("P")
        if s == 3: tags.append("Q")
        if s == 8: tags.append("OS")
        if s == 12: tags += ["OP", "B12"]
        if s == 13: tags += ["B13"]
        lg = " lgkmcnt(0)" if s in (2, 3) else ""
        a(f"s_waitcnt vmcnt({wait(*tags)}){lg}")
        if s == 0: a += stamp(9)
        if s in (2, 3): a("s_barrier")
        if s == 8: a += iss(oflag, "OF")
        if s == 12:
            a += spin("k_so", VF-1, VF, True)
        v = []
        if nxt < 14:
            if nxt == 13: v += ["  s_cmp_lt_u32 s20, 2", f"  s_cselect_b32 s40, s40, {OOB}"]
            v += [(x, f"A{nxt}") for x in ldA(nxt)]
        v = [x if isinstance(x, tuple) else (x, None) for x in v]
        other = []
        if s == 1: other = [(x, None) for x in osum]
        if s == 2: other = [(x, None) for x in ogat]
        if s == 4: other = [(x, "OS") for x in ofin[0]]
        if s == 5: other = [(x, "OS") for x in ofin[1]]
        if s == 6: other = [(x, "B12") for x in bstream(60, 5)]
        if s == 7: other = [(x, "B13") for x in bstream(65, 5)]
        if s == 8: other = [(x, None) for x in fs[:len(fs)//2]]
        if s == 10: other = [(x, None) for x in fs[len(fs)//2:]] + [(x, "X") for x in ldX]
        if s == 11: other = [(x, "OP") for x in opoll]
        if s == 12: other = [(x, "O") for x in ldO(0, 10)]
        if s == 13: other = [(x, "O") for x in ldO(10, 10)]
        if nxt == 13 or not v or not other: fl = v + other
        else: fl = mixf(v, other)
        M = []
        for T in range(4):
            for t in (range(5) if T % 2 == 0 else range(4, -1, -1)):
                d = vr(G + (T*5+t)*4)
                M.append(f"  v_mfma_f32_16x16x32_bf16 {d}, {breg(s,t)}, {vr(AR+(s%NA)*16+4*T)}, {'0' if s == 0 else d}")
        if s == 3: M = omf + M
        a += weave(M, [x for x, _ in fl])
        for x, tg in fl:
            if x.strip().startswith("buffer_"): issued.append(tg)
    a += stamp(10)
    if DIAG: a("s_waitcnt lgkmcnt(0)")
    SB = [AR, AR + 20, AR + 60]
    SB = [AR, AR + 20, AR + 40]
    def rdB(s): return [f"  ds_read_b128 {vr(SB[s%3]+4*t)}, v{4 if s < 10 else 5} offset:{(s%10)*5120+1024*t}" for t in range(5)]
    wr_ = [f"  ds_write_b128 v{RW[T-1]}, {vr(G+(T*5+t)*4)} offset:{1024*t}" for T in range(1, 4) for t in range(5)]
    rd_ = [f"  ds_read_b128 {vr(G+20+4*j)}, v251 offset:{1024*j}" for j in range(15)]
    V = []
    for j in range(3):
        for i in range(10): V.append(f"  v_pk_add_f32 {vr(G+2*i,2)}, {vr(G+2*i,2)}, {vr(G+20+20*j+2*i,2)}")
    E = G + 20
    V += L(f"s_mov_b32 s30, {LOG2E|0x80000000}\ns_mov_b32 s31, {LOG2E|0x80000000}")
    for i in range(10): V.append(f"  v_pk_mul_f32 {vr(E+2*i,2)}, {vr(G+2*i,2)}, s[30:31]")
    for i in range(20): V.append(f"  v_exp_f32 v{E+i}, v{E+i}")
    for i in range(10): V.append(f"  v_pk_add_f32 {vr(E+2*i,2)}, {vr(E+2*i,2)}, 1.0 op_sel_hi:[1,0]")
    for i in range(20): V.append(f"  v_rcp_f32 v{E+i}, v{E+i}")
    for i in range(10): V.append(f"  v_pk_mul_f32 {vr(G+2*i,2)}, {vr(G+2*i,2)}, {vr(E+2*i,2)}")
    XU = G + 40
    for i in range(12): V += [f"  v_lshlrev_b32 v{XU+2*i}, 16, v{XB+i}", f"  v_and_b32 v{XU+2*i+1}, 0xffff0000, v{XB+i}"]
    lds = []
    def liss(lines, tag):
        for x in lines: lds.append(tag)
        return lines
    def lwait(*tags):
        last = max(i for i, t in enumerate(lds) if t in tags)
        return min(15, len(lds) - 1 - last)
    a += liss(rdB(0), "b0") + liss(rdB(1), "b1")
    V0 = 11; per = (len(V) + (20 - V0) - 1)//(20 - V0)
    for s in range(20):
        tags = [f"b{s}"]
        if s == 6: tags.append("w")
        if s == V0: tags.append("r")
        a(f"s_waitcnt vmcnt({19 - s}) lgkmcnt({lwait(*tags)})")
        if s == 6: a("s_barrier")
        M = [f"  v_mfma_f32_16x16x32_bf16 {vr(SA+4*t)}, {vr(SB[s%3]+4*t)}, {ar(4*s)}, {'0' if s == 0 else vr(SA+4*t)}" for t in range(5)]
        fl = [(x, f"b{s+2}") for x in rdB(s+2)] if s + 2 < 20 else []
        ex = []
        if s < 5: ex = [(x, "w") for x in wr_[3*s:3*s+3]]
        if 6 <= s < 10: ex = [(x, "r") for x in rd_[4*(s-6):4*(s-6)+4]]
        if s >= V0: ex = [(x, None) for x in V[(s-V0)*per:(s-V0+1)*per]]
        fl = mixf(fl, ex) if fl and ex else fl + ex
        a += weave(M, [x for x, _ in fl])
        for x, tg in fl:
            if x.strip().startswith("ds_"): lds.append(tg)
    a += stamp(11)
    for i in range(10): a(f"v_pk_mul_f32 {vr(SA+2*i,2)}, {vr(SA+2*i,2)}, {vr(G+2*i,2)}")
    for t in range(5): a(f"ds_write_b128 v243, {vr(SA+4*t)} offset:{64*t}")
    a("s_waitcnt lgkmcnt(0)")
    for i in range(3): a(f"ds_read_b128 {vr(AR+8*i)}, v{240+i}\nds_read_b128 {vr(AR+8*i+4)}, v{240+i} offset:16")
    for i in range(3):
        a(f"s_waitcnt lgkmcnt({4-2*i})")
        for j in range(4): a(f"v_pk_add_f32 {vr(AR+8*i+2*j,2)}, {vr(AR+8*i+2*j,2)}, {vr(XU+8*i+2*j,2)}")
        for j in range(4): a(f"v_cvt_pk_bf16_f32 v{XB+4*i+j}, v{AR+8*i+2*j}, v{AR+8*i+2*j+1}")
        a(f"buffer_store_dwordx4 {vr(XB+4*i)}, v{1+i}, s[4:7], s48 offen")
    a += stamp_out(13)
    return a

def build():
    OUTL.clear()
    a = A()
    a += prologue()
    a("s_cmp_lt_u32 s22, 8\ns_cbranch_scc1 k_kv")
    a += g1_main("k_t", True)
    a += epi_t()
    a("k_kv:")
    a += g1_main("k_n", False)
    e, kvfix = epi_kv()
    a += e
    a += phase2(kvfix)
    a("k_end:\ns_endpgm")
    a += OUTL
    body, added = haz.fix(a)
    body, nbytes, nn, npm = align.align(body)
    print("instrs", len(body), "nops added", added, "bytes", nbytes, "align nops", nn, "promoted", npm, file=sys.stderr)
    out = ["; @launch grid=(256,1,1) block=(256,1,1) lds=163840",
           '.amdgcn_target "amdgcn-amd-amdhsa--gfx950"\n.text', khead(NAME)] + body
    out.append('.section .rodata,"a"\n.p2align 6\n' + kd(NAME, 512, 256, 102))
    return "\n".join(out) + "\n"
if __name__ == "__main__":
    for x in sys.argv[2:]:
        if x == "d": DIAG = True
        else:
            k, v = x.split("="); OPT[k] = eval(v)
    open(sys.argv[1], "w").write(build())
```

```python
import sys, re
from asmlib import kd, khead
import haz, align

NAME = "recurrent_scan__linear_attn_block__dense_activation_silu__prompt_kernel"
S, D, F = 2048, 640, 1728
FA = 0x8000
FP = 0xF0000
FO = 0x38000
NEGM = 0x10000; RSTD = 0x12000
CSP = 0x14000
KVP   = 0x40000
PQ    = 0x100000
OO    = 0x380000
HH    = 0x600000
WP    = 0xCC0000
WS_USED = WP + 8*74*5120
TS = 0x1400000
LOG2E = 0x3fb8aa3b
OOB = 0x40000000
STAGE = 45056; WOFF = 24576; SPARE = 3*STAGE
AUXC = SPARE; AUXM = SPARE + 6400
CSL = SPARE + 8192
PACKL = SPARE
KVX = SPARE + 10240
RED = 102400
DIAG = False
OPT = dict(spin=200000, pkd=1, pkr=3, pks={4: 3, 5: 2}, flagb=3, flagb_n=2, pollb=6,
           pf_t={15: 7, 16: 7, 17: 7, 18: 7, 19: 7}, pf_n={15: 7, 16: 7, 17: 7, 18: 7, 19: 7}, epi_n=[4, 3, 3, 3, 3, 0], kv_first=0,
           epi=[4, 3, 3, 3, 3, 0], gap1=8, wo_oc=0, wsched={11:4,12:1,14:1,15:1,16:1,17:1,18:1,19:1,20:1,21:1,22:1,23:1}, poll_early=3, xs=[9, 10, 11], po=10, ofs=7, acatch=3,
           osched={12:4,13:5,14:1,15:1,16:1,17:1,18:1,19:1,20:1,21:1,22:1,23:1,24:1}, nbuf=3, v0=6, nopk=1, adist=3, p2map=1, su_pre=200, su_pre_n=160, sleep=2, rot=0, snake=1, krot=0, fash=4, wtrail={2:2,3:10,4:14},
           st=["tail", "lend", "eend", "flag", "pre", "w1", "gend"])

class A(list):
    def __call__(self, s):
        for x in s.strip("\n").split("\n"):
            x = x.strip()
            m = re.match(r"s_cselect_b32 (s\d+), (\d+|0x[0-9a-f]+), (\d+|0x[0-9a-f]+)\s*(;.*)?$", x)
            if m and int(m.group(2), 0) > 64 and int(m.group(3), 0) > 64:
                self.append(f"  s_mov_b32 {m.group(1)}, {m.group(3)}")
                x = f"s_cselect_b32 {m.group(1)}, {m.group(2)}, {m.group(1)}"
            if x: self.append(("" if x.endswith(":") else "  ") + x)
        return self
def L(s): return list(A()(s))
def stamp(name):
    if not DIAG: return []
    if name == "entry": i = 0
    elif name in OPT["st"][:7]: i = 1 + OPT["st"].index(name)
    else: return []
    return [f"  s_memrealtime s[{84+2*i}:{85+2*i}]"]
def stamp_out():
    if not DIAG: return []
    if OPT.get("echo") is not None:
        i = OPT["echo"]
        return L(f"""
        s_waitcnt vmcnt(0)
        s_memrealtime s[100:101]
        s_waitcnt lgkmcnt(0)
        s_sub_u32 s28, s{84+2*i}, s84
        s_min_u32 s28, s28, 10000
        s_add_u32 s28, s28, 5000
        k_echo:
        s_memrealtime s[30:31]
        s_waitcnt lgkmcnt(0)
        s_sub_u32 s29, s30, s84
        s_cmp_lt_u32 s29, s28
        s_cbranch_scc1 k_echo
        """)
    r = L(f"""
    s_waitcnt vmcnt(0)
    s_memrealtime s[100:101]
    s_waitcnt lgkmcnt(0)
    s_lshl_b32 s28, s2, 2
    s_add_u32 s28, s28, s20
    s_lshl_b32 s28, s28, 6
    s_add_u32 s28, s28, {TS}
    v_mov_b32 v1, s28
    """)
    for i in range(9): r += [f"  v_mov_b32 v3, s{84+2*i}", f"  global_store_dword v1, v3, s[26:27] offset:{4*i if i < 8 else 48}"]
    r += ["  v_mov_b32 v3, s22", "  global_store_dword v1, v3, s[26:27] offset:60"]
    return r
def vr(b, n=4): return f"v[{b}:{b+n-1}]" if n > 1 else f"v{b}"
def ar(b, n=4): return f"a[{b}:{b+n-1}]" if n > 1 else f"a{b}"
def srd(d, lo, nbytes):
    return L(f"s_mov_b32 s{d}, s{lo}\ns_and_b32 s{d+1}, s{lo+1}, 0xffff\ns_mov_b32 s{d+2}, {nbytes}\ns_mov_b32 s{d+3}, 0x20000")
def isvm(x): return x.strip().startswith(("buffer_", "global_"))
def islg(x): return x.strip().startswith("ds_")
def tag(lines, t): return [x + f" ;#{t}" if (isvm(x) or islg(x)) else x for x in lines]
def W(vm=(), lg=()):
    vm = [vm] if isinstance(vm, str) else list(vm); lg = [lg] if isinstance(lg, str) else list(lg)
    return [f"  ;WAIT vm={','.join(vm)} lg={','.join(lg)}"]
def resolve(lines):
    out = []; vm = []; lg = []
    for x in lines:
        t = x.strip()
        if t.startswith(";MARK"):
            nm = t.split()[1]; vm.append(("m", nm)); lg.append(("m", nm)); continue
        if t.startswith(";WAIT"):
            m = re.match(r";WAIT vm=(\S*) lg=(\S*)", t); parts = []
            for names, hist, cn, mx in ((m.group(1), vm, "vmcnt", 63), (m.group(2), lg, "lgkmcnt", 15)):
                if not names: continue
                names = names.split(",")
                if names == ["*"]: parts.append(f"{cn}(0)"); continue
                idx = [i for i, h in enumerate(hist) if h[1] in names]
                for nme in names: assert any(h[1] == nme for h in hist), ("unknown tag", nme)
                n = sum(1 for h in hist[max(idx)+1:] if h[0] == "o")
                parts.append(f"{cn}({min(n, mx)})")
            out.append("  s_waitcnt " + " ".join(parts)); continue
        tg = re.search(r";#(\S+)", t); nm = tg.group(1) if tg else None
        kind = "n" if ";nocount" in t else "o"
        if isvm(x): vm.append((kind, nm))
        elif islg(x): lg.append((kind, nm))
        out.append(x)
    return out
def glue(lines):
    out = []; cur = []
    for x in lines:
        t = x.strip()
        if cur and not t.startswith(("s_cselect", "s_addc", "s_cbranch", "s_mov_b32")) and not t.endswith(":"):
            out.append(cur); cur = []
        if t.startswith(("s_cmp", "s_bitcmp")) or cur or (t.startswith("s_add_u32") and ";C" in t): cur.append(x)
        else: out.append([x])
    if cur: out.append(cur)
    return out
def place(M, lists):
    gaps = [[] for _ in M]
    for items, g0, g1 in lists:
        if not items: continue
        items = glue(items); n = g1 - g0 + 1
        for k, x in enumerate(items): gaps[g0 + k*n//len(items)] += x
    out = []
    for m, g in zip(M, gaps): out += [m] + g
    return out
def inter(main, groups, first=0):
    main = glue(main); out = []; n = len(main); G = len(groups); gi = 0
    for i, x in enumerate(main):
        while gi < G and i >= first + gi*(n - first)//G: out += groups[gi]; gi += 1
        out += x
    while gi < G: out += groups[gi]; gi += 1
    return out
def grp(lines, k):
    out = []; cur = []
    for x in lines:
        if isvm(x) and sum(map(isvm, cur)) == k:
            tail = []
            while cur and not isvm(cur[-1]): tail.insert(0, cur.pop())
            out.append(cur); cur = tail
        cur.append(x)
    if cur: out.append(cur)
    return out
OUTL = A()
def check(tg, vaddr, vdst, lead=False):
    if lead: a = L(f"v_cmp_ne_u32 vcc, s39, v{vdst}\ns_nop 1\ns_and_b64 vcc, vcc, s[56:57]\ns_cbranch_scc1 {tg}_slow\n{tg}_ok:\ns_barrier")
    else: a = L(f"v_cmp_ne_u32 vcc, s39, v{vdst}\ns_nop 1\ns_cmp_lg_u64 vcc, 0\ns_cbranch_scc1 {tg}_slow\n{tg}_ok:")
    OUTL(f"""
    {tg}_slow:
    s_mov_b32 s38, {OPT['spin']}
    {tg}_again:
    s_sleep {OPT.get('sleep', 4)}
    buffer_load_dword v{vdst}, v{vaddr}, s[16:19], 0 offen sc1
    s_sub_u32 s38, s38, 1
    s_cmp_eq_u32 s38, 0
    s_cbranch_scc1 {tg}_ok
    s_waitcnt vmcnt(0)
    v_cmp_ne_u32 vcc, s39, v{vdst}
    s_nop 1
    s_cmp_lg_u64 vcc, 0
    s_cbranch_scc1 {tg}_again
    s_branch {tg}_ok
    """)
    return a
def poll(vaddr, vdst, t, so="0"): return [f"  buffer_load_dword v{vdst}, v{vaddr}, s[16:19], {so} offen sc1 ;#{t}"]
def flag(soff, r=None):
    d, o = (3, 6) if r is None else (r, r + 1)
    return L(f"v_mov_b32 v{d}, s39\nv_lshlrev_b32 v{o}, 25, v7\nbuffer_store_dword v{d}, v{o}, s[16:19], {soff} offen sc1")

ACC = 8; CS = 128; AB = [148, 172]; BB = [196, 216]; VX = 236; VW = 242; LA = 247; LB = 249; VF = 255
L2B = CS
ONES = 240
def acc(T, t): return ACC + (T*5 + t)*4
def g1_mfma(buf, tr, first):
    M = []
    for T in range(6):
        for t in (range(5) if T % 2 == 0 else range(4, -1, -1)):
            x = vr(AB[buf] + 4*T); w = vr(BB[buf] + 4*t); d = vr(acc(T, t))
            p, q = (w, x) if tr else (x, w)
            M.append(f"  v_mfma_f32_16x16x32_bf16 {d}, {p}, {q}, {'0' if first else d}")
    return M
def g1_cs(buf):
    return [f"  v_mfma_f32_16x16x32_bf16 {vr(CS+4*t)}, {ar(ONES)}, {vr(BB[buf]+4*t)}, {'0' if buf == 0 else vr(CS+4*t)}" for t in range(5)]
def g1_reads(k):
    buf = k & 1; st = (k//2) % 3
    la, lb, so = (LA, LB, st*STAGE) if st < 2 else (L2B, L2B + 2, 0)
    R = []
    def b(t):
        base = lb + (2 if t == 4 else (t & 1)); off = so + buf*10240 + (1024 if t in (2, 3) else 0)
        return [f"  ds_read_b64_tr_b16 {vr(BB[buf]+4*t,2)}, v{base} offset:{off}",
                f"  ds_read_b64_tr_b16 {vr(BB[buf]+4*t+2,2)}, v{base} offset:{off+256}"]
    def x(T): return [f"  ds_read_b128 {vr(AB[buf]+4*T)}, v{la+buf} offset:{so+T*2048}"]
    R += x(0)
    for t in range(5): R += b(t)
    for T in range(1, 6): R += x(T)
    return tag(R, f"r{k}")
def dma_x(c):
    so = (c % 3)*STAGE; Dm = []
    for j in range(6):
        if j in (0, 4): Dm.append(f"  s_add_u32 m0, s40, {so + 1024*j}")
        Dm.append(f"  buffer_load_dwordx4 v{VX+j}, s[8:11], s42 offen offset:{1024*(j%4)} lds")
    return tag(Dm, f"c{c}")
def dma_w(c):
    so = (c % 3)*STAGE; Dm = []
    for j in range(5):
        Dm.append(f"  s_add_u32 m0, s41, {so + 1024*j}")
        Dm.append(f"  buffer_load_dwordx4 v{VW+j}, s[12:15], s43 offen lds")
    return tag(Dm, f"c{c}")
def dma_next(c):
    if OPT["krot"]:
        first = "s_mov_b32 s44, s67" if c == 1 else "s_add_u32 s44, s44, 1\ns_cmp_eq_u32 s44, 10\ns_cselect_b32 s44, 0, s44"
        return L(first + f"""
        s_cmp_eq_u32 s44, s54
        s_addc_u32 s44, s44, 0
        s_cmp_eq_u32 s44, 10
        s_cselect_b32 s44, 0, s44
        s_lshl_b32 s42, s44, 7
        s_mul_i32 s43, s44, s45""")
    return L(f"s_cmp_le_u32 s54, {c-1}\ns_cselect_b32 s44, {c}, {c-1}\ns_lshl_b32 s42, s44, 7\ns_mul_i32 s43, s44, s45")
BV = 168
def breg(s, t): return ar(s*20 + 4*t) if s < 12 else vr(BV + (s-12)*20 + 4*t)
def kadv(reg, stride, s, lo, hi):
    if not OPT["rot"]: return [f"  s_add_u32 s{reg}, s{reg}, {stride}"]
    if s == 12: return [f"  s_mov_b32 s{reg}, s{hi}"]
    return L(f"s_add_u32 s{reg}, s{reg}, {stride}\ns_cmp_eq_u32 s{reg}, s{hi}\ns_cselect_b32 s{reg}, s{lo}, s{reg}")
def bset(s):
    if not OPT["rot"] or s == 13: return [f"  s_add_u32 s68, s46, {5120*s}"]
    return L(f"s_add_u32 s68, s50, {5120*s}\ns_cmp_ge_u32 s68, s47\ns_cselect_b32 s71, {13*5120}, 0\ns_sub_u32 s68, s68, s71")
def bstream(i0, n):
    out = []
    for i in range(i0, i0 + n):
        s, t = divmod(i, 5)
        if t == 0 or i == i0: out += bset(s)
        if t < 4: out.append(f"  buffer_load_dwordx4 {breg(s,t)}, v4, s[16:19], s68 offen offset:{1024*t} sc1")
        else: out.append(f"  buffer_load_dwordx4 {breg(s,t)}, v5, s[16:19], s68 offen sc1")
    return tag(out, "B")
class Stream:
    def __init__(self, items): self.items = list(items)
    def take(self, n):
        it, self.items = self.items[:n], self.items[n:]
        assert len(it) == n
        out = []; k = 0
        while k < len(it):
            j = k
            while j + 1 < len(it) and it[j+1] == (it[j][0], it[j][1] + 1): j += 1
            out += (bstream if it[k][0] == "B" else wo_dma)(it[k][1], j - k + 1); k = j + 1
        return out
def wo_dma(i0, n):
    out = []
    for i in range(i0, i0 + n):
        out += [f"  s_add_u32 m0, s69, {4096*i}", f"  s_add_u32 s71, s70, {4096*i}",
                f"  buffer_load_dwordx4 v4, s[16:19], s71 offen sc1 lds ;#wo{i//5}"]
    return out
PRODS = [(0,3),(0,4),(1,3),(1,4),(1,5),(2,3),(2,4),(2,5)]
KVOF = [240, 241, 242, 243, 244, 245, 246, 255]

def setup_s():
    return L(f"""
    s_cmp_lt_u32 s22, 12
    s_cselect_b32 s28, {PQ}, {HH}
    s_cselect_b32 s29, {20*4096}, {54*4096}
    s_cselect_b32 s83, {LOG2E}, {LOG2E | 0x80000000}
    s_add_u32 s76, s26, s28 ;C
    s_addc_u32 s77, s27, 0
    s_and_b32 s77, s77, 0xffff
    s_lshl_b32 s78, s29, 5
    s_mov_b32 s79, 0x20000
    s_mul_i32 s80, s21, 3
    s_add_u32 s80, s80, s51
    s_mul_i32 s80, s80, s29
    s_lshl_b32 s28, s51, 11
    s_add_u32 s80, s80, s28
    s_sub_u32 s28, s29, 3072
    s_cmp_eq_u32 s51, 0
    s_cselect_b32 s81, 1024, s28
    s_cselect_b32 s82, s28, 1024
    s_mul_i32 s61, s23, {5*4096}
    s_mul_i32 s28, s52, {3*4096}
    s_add_u32 s62, s61, s28
    s_add_u32 s63, s62, 4096
    s_cmp_ge_u32 s63, s29
    s_cselect_b32 s63, {OOB}, s63
    s_lshl_b32 s28, s52, 9
    s_add_u32 s61, s61, s28
    s_add_u32 s61, s61, {8192 - 1024}
    s_mul_i32 s67, s22, 12
    s_add_u32 s67, s67, s21
    s_lshl_b32 s67, s67, 7
    s_add_u32 s67, s67, {FP}
    s_cmp_eq_u32 s20, 0
    s_cselect_b32 s67, s67, {OOB}
    """)
def setup_t():
    return L(f"""
    v_add_u32 v{VX}, s62, v4
    v_add_u32 v{VX+1}, s63, v4
    v_and_b32 v3, 1, v2
    v_lshlrev_b32 v3, 10, v3
    v_lshrrev_b32 v254, 1, v2
    v_lshl_add_u32 v3, v254, 8, v3
    v_lshl_add_u32 v3, v1, 4, v3
    v_add_u32 v{VX+2}, s61, v3
    v_mov_b32 v{VX+4}, 0x358637bd
    v_mov_b32 v{VX+5}, 0x358637bd
    """)
def setup_n0():
    a = A()
    a(f"""
    v_and_b32 v1, 15, v7
    v_lshrrev_b32 v2, 4, v7
    v_cmp_gt_u32 s[32:33], 8, v1
    s_cmp_eq_u32 s21, 10
    s_cselect_b32 s36, s51, 0
    s_lshl_b32 s37, s22, 1
    s_add_u32 s37, s37, s52
    s_mul_i32 s37, s37, 11
    s_add_u32 s37, s37, s21
    s_lshl_b32 s37, s37, 12
    s_add_u32 s37, s37, {KVP}
    s_lshl_b32 s60, s20, 12
    s_add_u32 s60, s60, {KVX}
    v_and_b32 v254, 31, v7
    v_add_u32 v254, 224, v254
    """)
    for n, (kx, vy) in enumerate(PRODS):
        eoff = {3: -8, 4: 8, 5: 24}[vy]; o = 252
        a(f"""
        v_add_u32 v3, {4*kx}, v2
        v_cmp_le_u32 vcc, 5, v3
        v_add_u32 v{o}, {eoff}, v1
        v_cmp_gt_u32 s[62:63], 10, v3
        v_cndmask_b32 v253, 0, 20, vcc
        v_sub_u32 v{o}, v{o}, v253
        """)
        if vy == 3: a(f"v_cmp_eq_u32 vcc, 0, v1\nv_cndmask_b32 v253, v{o}, 0, vcc\nv_cndmask_b32 v{o}, v{o}, 20, vcc\nv_cmp_gt_u32 vcc, 20, v253")
        else: a(f"v_cmp_gt_u32 vcc, 20, v{o}")
        a(f"""
        v_mad_u32_u24 v{o}, v3, 21, v{o}
        s_and_b64 vcc, vcc, s[62:63]
        v_cndmask_b32 v{o}, v254, v{o}, vcc
        v_lshl_add_u32 v{o}, v{o}, 4, s60
        v_accvgpr_write_b32 a{244+n}, v{o}
        """)
    return list(a)
def setup_n():
    return L(f"s_mov_b32 s30, {LOG2E}\ns_mov_b32 s31, {LOG2E}") + [f"  v_accvgpr_read_b32 v{KVOF[n]}, a{244+n}" for n in range(8)]

def g1_main(tg, tr, st):
    a = A()
    pf = OPT["pf_t"] if tr else OPT["pf_n"]
    a += W("c0"); a("s_barrier"); a += stamp("k0")
    a += g1_reads(0) + W(lg="r0")
    a += place(g1_mfma(0, tr, True) + g1_cs(0), [(g1_reads(1), 0, 17), (dma_x(2) + dma_w(2), 0, 33)])
    a += W(lg="r1")
    a += g1_cs(1)
    PKD, PKR, PKS = (OPT["pkd"], OPT["pkr"], OPT["pks"]) if tr else (None, None, {})
    pk_d = []
    for i in range(5):
        pk_d += [f"  s_add_u32 m0, s53, {896*i}", f"  buffer_load_dwordx4 v252, s[56:59], s55 offen offset:{128*i} nt lds ;#pk"]
    pk_r = []
    for t in range(5):
        if t: pk_r += L(f"s_cmp_eq_u32 s20, {4-t}\ns_cselect_b32 s28, 896, 0\nv_add_u32 v1, s28, v1\nv_add_u32 v2, s28, v2")
        pk_r += [f"  ds_read_b64_tr_b16 {ar(16+4*t,2)}, v1 offset:{32*t}", f"  ds_read_b64_tr_b16 {ar(18+4*t,2)}, v2 offset:{32*t}"]
    pk_s = [f"  buffer_store_dwordx4 {ar(16+4*t)}, v{4 if t < 4 else 5}, s[16:19], s60 offen offset:{1024*(t%4)} sc1 ;#ps" for t in range(5)]
    cs_st = L(f"""
    v_cmp_le_u32 vcc, 16, v7
    v_cmp_le_u32 s[28:29], 32, v7
    v_cmp_le_u32 s[30:31], 48, v7
    v_cndmask_b32 v{CS+17}, v{CS}, v{CS+4}, vcc
    v_cndmask_b32 v{CS+17}, v{CS+17}, v{CS+8}, s[28:29]
    v_cndmask_b32 v{CS+17}, v{CS+17}, v{CS+12}, s[30:31]
    buffer_store_dword v{CS+17}, v253, s[16:19], s64 offen sc1 ;#cs
    buffer_store_dword v{CS+16}, v254, s[16:19], s64 offen sc1 ;#cs
    """) + [f"  v_add_u32 v{L2B+i}, {2*STAGE}, v{LA+i}" for i in range(5)]
    auxa = L(f"""
    v_lshlrev_b32 v3, 4, v0
    v_add_u32 v252, s74, v3
    v_add_u32 v253, 4096, v252
    v_cmp_le_u32 vcc, 144, v0
    v_add_u32 v3, s65, v3
    v_cmp_le_u32 s[28:29], s66, v0
    v_cndmask_b32 v253, v253, v3, vcc
    v_add_u32 v3, {RSTD - NEGM - 768}, v3
    v_cmp_le_u32 vcc, 240, v0
    v_cndmask_b32 v253, v253, v3, s[28:29]
    v_mov_b32 v3, {OOB}
    v_cndmask_b32 v253, v253, v3, vcc
    v_and_b32 v1, 15, v7
    v_lshrrev_b32 v2, 4, v7
    """)
    aux = L(f"""
    s_mov_b32 m0, s72
    s_nop 0
    buffer_load_dwordx4 v252, s[16:19], 0 offen sc1 lds ;#aux
    s_add_u32 m0, s72, 4096
    s_nop 0
    buffer_load_dwordx4 v253, s[16:19], 0 offen sc1 lds ;#aux
    """) + flag("s73")
    y1 = L(f"v_lshlrev_b32 v252, 2, v0\nv_add_u32 v252, {AUXC}, v252") + tag([f"  ds_read_b32 v{CS+i}, v252 offset:{640*i}" for i in range(10)], "y1")
    y2 = [f"  v_add_f32 v{CS}, v{CS}, v{CS+i}" for i in range(1, 10)] + [f"  ds_write_b32 v252, v{CS} offset:{CSL-AUXC} ;#y2"]
    rd = L("s_mul_i32 s28, s51, 384\ns_add_u32 s28, s28, %d" % AUXM)
    if tr:
        rd += L(f"v_lshlrev_b32 v6, 4, v2\nv_add_u32 v252, s34, v6\nv_add_u32 v253, s35, v6\nv_lshl_add_u32 v3, v1, 2, s28")
        rd += [f"  ds_read_b128 {vr(CS+4*t)}, v252 offset:{64*t}" for t in range(4)] + [f"  ds_read_b128 {vr(CS+16)}, v253"]
        for T in range(6): rd += [f"  ds_read_b32 v{AB[0]+4*T}, v3 offset:{64*T}", f"  ds_read_b32 v{AB[0]+4*T+1}, v3 offset:{768+64*T}"]
    else:
        rd += L(f"v_lshlrev_b32 v6, 2, v1\nv_add_u32 v252, s34, v6\nv_lshl_add_u32 v3, v2, 4, s28")
        rd += [f"  ds_read_b32 v{CS+4*t}, v252 offset:{64*t}" for t in range(5)]
        for T in range(6): rd += [f"  ds_read_b128 {vr(AB[0]+4*T)}, v3 offset:{64*T}"]
        for T in range(5): rd += [f"  ds_read_b128 {vr(BB[0]+4*T)}, v3 offset:{768+64*T}"]
        rd += [f"  ds_read_b128 {vr(VX)}, v3 offset:{768+64*5}"]
    su = setup_t() if tr else setup_n()
    e0 = glue(setup_n0()); early = {} if tr else {6 + i: sum(e0[i*len(e0)//6:(i+1)*len(e0)//6], []) for i in range(6)}
    nb = 0; fb, pb = (OPT["flagb"] if tr else OPT["flagb_n"]), OPT["pollb"]; nps = 0
    for k in range(1, 20):
        c = (k - 1)//2
        M = g1_mfma(k & 1, tr, False)
        ls = []
        if k & 1:
            if k > 1: a += W(lg=[f"r{k}"] + (["y2"] if k == 19 else []) + (["pr"] if k - 1 == PKR else []))
            a.append(M.pop(0))
            vm = [f"c{c+1}"] if c < 9 else []
            if c == fb: vm += ["cs", "ss"] + (["ps"] if tr else [])
            if k == PKR: vm += ["pk"]
            if c == pb + 1: vm += ["pa"]
            if c == 8: vm += ["aux"]
            if vm: a += W(vm)
            if c == pb + 1: a += check(tg + "_sa", 6, VF)
            a("s_barrier")
            if c == 0: a += stamp("b0")
            if c == 7: a += stamp("tail")
            a += stamp(f"b{c}") if c > 0 else []
            if c == fb: ls.append((flag("s49"), 0, 2))
            if c == pb: ls.append((L(f"v_lshlrev_b32 v6, {OPT['fash']}, v0\nv_add_u32 v6, {FA}, v6") + poll(6, VF, "pa"), 0, 2))
            if c == 7: ls.append(([x for x in aux], 0, 2))
            dx, dw = (dma_next(c+3) + dma_x(c+3), dma_w(c+3)) if c + 3 <= 9 else ([], [])
            if k == PKD: ls += [(pk_d, 0, 9), (dx[:-4], 14, 28)]
            else: ls.append((dx, 1, 27))
            if k == PKR: ls.append((tag(pk_r, "pr"), 10, 26))
            if c == 0: ls.append((cs_st, 12, 27))
            if c == 8: ls.append((y1, 8, 22))
        else:
            a += W(lg=[f"r{k}"] + (["y1"] if c == 8 else []) + (["pr"] if k - 1 == PKR else []))
            if k - 1 == PKD: ls.append((dx[-4:] + dw, 0, 28))
            else: ls.append((dw, 1, 27))
            if c == 6: ls.append((auxa, 17, 28))
            if c == 8: ls.append((y2, 0, 12))
        if PKS.get(k): ls.append((pk_s[nps:nps+PKS[k]], 2, 28 if nps + PKS[k] < 5 else 16)); nps += PKS[k]
        if k < 19: ls.insert(0, (g1_reads(k+1), 1 if k & 1 else 0, 17))
        else: ls.insert(0, (rd, 0, 22))
        if k == 16: ls.append((su, 18, 28))
        if k in early: ls.append((early[k], 4, 28))
        if pf.get(k):
            assert c > pb
            assert all(x[0] == "B" and x[1] < 60 for x in st.items[:pf[k]])
            ls.append((st.take(pf[k]), 3, 28))
        a += place(M, ls)
    a += stamp("lend")
    return a

def stats_math():
    a = A(); src = 8; tmp = 20; ac = 44
    for i in range(12):
        a(f"v_lshlrev_b32 v{tmp+2*i}, 16, v{src+i}\nv_and_b32 v{tmp+2*i+1}, 0xffff0000, v{src+i}")
    a(f"v_pk_add_f32 {vr(ac,2)}, {vr(tmp,2)}, {vr(tmp+2,2)}")
    for i in range(2, 12): a(f"v_pk_add_f32 {vr(ac,2)}, {vr(ac,2)}, {vr(tmp+2*i,2)}")
    def red():
        a(f"v_add_f32 v{ac}, v{ac}, v{ac+1}")
        for r in (8, 4, 2, 1): a(f"v_add_f32_dpp v{ac}, v{ac}, v{ac} row_ror:{r} row_mask:0xf bank_mask:0xf")
        a(f"v_mov_b32 v{ac+1}, v{ac}\nv_permlane16_swap_b32 v{ac}, v{ac+1}\nv_add_f32 v{ac}, v{ac}, v{ac+1}")
    red()
    a(f"v_mul_f32 v46, 0xbacccccd, v{ac}")
    a(f"v_cndmask_b32 v47, 0, v46, s[32:33]")
    for i in range(8): a(f"v_pk_add_f32 {vr(tmp+2*i,2)}, {vr(tmp+2*i,2)}, v[46:47] op_sel_hi:[1,0]")
    for i in range(8, 12): a(f"v_pk_add_f32 {vr(tmp+2*i,2)}, {vr(tmp+2*i,2)}, v[46:47] op_sel:[0,1] op_sel_hi:[1,1]")
    a(f"v_pk_mul_f32 {vr(ac,2)}, {vr(tmp,2)}, {vr(tmp,2)}")
    for i in range(1, 12): a(f"v_pk_fma_f32 {vr(ac,2)}, {vr(tmp+2*i,2)}, {vr(tmp+2*i,2)}, {vr(ac,2)}")
    red()
    a(f"""
    v_mov_b32 v{ac+1}, 0x3727c5ac
    v_fmac_f32 v{ac+1}, 0x3acccccd, v{ac}
    v_rsq_f32 v{ac+1}, v{ac+1}
    v_and_b32 v48, 31, v7
    v_cmp_eq_u32 vcc, 0, v48
    v_lshrrev_b32 v49, 5, v7
    v_lshlrev_b32 v49, 2, v49
    v_cndmask_b32 v46, v{ac+1}, v46, vcc
    v_lshl_add_u32 v49, v48, 13, v49
    v_cmp_gt_u32 vcc, 2, v48
    v_mov_b32 v50, {OOB}
    s_lshl_b32 s28, s48, 3
    s_add_u32 s28, s28, {NEGM}
    v_cndmask_b32 v49, v50, v49, vcc
    buffer_store_dword v46, v49, s[16:19], s28 offen sc1 ;#ss
    """)
    return list(a)

def prologue():
    a = A()
    a += stamp("entry")
    a(f"""
    s_cmp_ge_u32 s2, 256
    s_cbranch_scc1 k_end
    s_load_dwordx16 s[60:75], s[0:1], 0
    s_load_dwordx2 s[26:27], s[0:1], 64
    s_getpc_b64 s[36:37]
    v_lshrrev_b32 v1, 6, v0
    v_and_b32 v7, 63, v0                 ; lane
    v_readfirstlane_b32 s20, v1          ; wave
    v_lshlrev_b32 v4, 4, v7
    v_lshrrev_b32 v1, 5, v7
    v_mul_u32_u24 v1, {1280-512}, v1
    v_add_u32 v52, v1, v4
    v_and_b32 v1, 16, v7
    v_cmp_eq_u32 s[32:33], 0, v1
    v_mov_b32 v2, {OOB}
    s_lshl_b32 s48, s2, 2
    s_add_u32 s48, s48, s20              ; stats job
    s_mul_i32 s35, s48, 2560
    v_cndmask_b32 v53, v2, v52, s[32:33]
    s_and_b32 s3, s2, 7
    s_lshl_b32 s3, s3, 5
    s_lshr_b32 s21, s2, 3
    s_add_u32 s3, s3, s21                ; lin
    s_cmp_lt_u32 s3, 138
    s_cselect_b32 s28, 0, 138
    s_cselect_b32 s29, 10923, 13108
    s_cselect_b32 s30, 6, 5
    s_cselect_b32 s31, 0, 6
    s_sub_u32 s28, s3, s28
    s_mul_i32 s22, s28, s29
    s_lshr_b32 s22, s22, 16              ; ctq
    s_mul_i32 s30, s22, s30
    s_sub_u32 s21, s28, s30
    s_add_u32 s21, s21, s31              ; rb
    """)
    if OPT["snake"]: a("s_sub_u32 s28, 22, s22\ns_cmp_lt_u32 s3, 138\ns_cselect_b32 s22, s22, s28")
    a("s_add_u32 s44, s21, s22")
    if OPT.get("mix", 1):
        a("""
        s_mul_i32 s28, s22, 43
        s_lshr_b32 s28, s28, 8               ; g = p/6
        s_mul_i32 s29, s28, 6
        s_sub_u32 s29, s22, s29              ; r
        s_mul_i32 s30, s28, 3
        s_add_u32 s30, s30, s29
        s_add_u32 s30, s30, 9                ; w1: 12+3g+r-3
        s_lshl_b32 s31, s28, 1
        s_add_u32 s31, s31, s29
        s_sub_u32 s31, s31, 1                ; kv: 2g+r-1
        s_add_u32 s28, s28, 8                ; q
        s_cmp_lt_u32 s29, 3
        s_cselect_b32 s22, s31, s30
        s_cmp_eq_u32 s29, 0
        s_cselect_b32 s22, s28, s22
        """)
    a(f"""
    s_cmp_ge_u32 s3, 253
    s_cselect_b32 s21, 11, s21
    s_cselect_b32 s22, 12, s22
    s_waitcnt lgkmcnt(0)
    """)
    a += stamp("karg")
    a += srd(8, 60, S*D*2)
    for j in range(3): a(f"buffer_load_dwordx4 {vr(8+4*j)}, v{53 if j == 2 else 52}, s[8:11], s35 offen offset:{512*j} ;#sl")
    a(f"""
    s_load_dword s39, s[26:27], 0
    s_cmp_ge_u32 s21, 10
    s_cselect_b32 s54, 0, s21            ; start chunk
    s_mul_i32 s28, s21, 192
    s_mul_i32 s29, s20, 48
    s_add_u32 s28, s28, s29
    s_mul_i32 s28, s28, 1280
    v_lshrrev_b32 v1, 3, v7              ; r8
    v_lshrrev_b32 v2, 1, v1
    v_and_b32 v3, 7, v7
    v_xor_b32 v2, v2, v3
    v_mul_u32_u24 v1, 1280, v1
    v_lshl_add_u32 v252, v3, 4, v1
    v_add_u32 v1, s28, v1
    v_lshl_add_u32 v3, v2, 4, v1
    v_xor_b32 v2, 4, v2
    v_lshl_add_u32 v6, v2, 4, v1
    """)
    for j in range(6): a(f"v_add_u32 v{VX+j}, {j*10240 - 1024*(j%4)}, v{6 if j & 1 else 3}")
    a("s_mul_i32 s40, s20, 6144\ns_lshl_b32 s42, s54, 7")
    a += dma_x(0)
    a(f"""
    s_cmp_lt_u32 s22, 12
    s_cselect_b32 s12, s62, s68
    s_cselect_b32 s13, s63, s69
    s_cselect_b32 s14, {D*3*D*2}, {D*F*2}
    s_cselect_b32 s50, 3840, 3456        ; W row stride
    s_cselect_b32 s28, 8, 12
    s_and_b32 s13, s13, 0xffff
    s_mov_b32 s15, 0x20000
    s_lshl_b32 s45, s50, 6
    s_sub_u32 s23, s22, s28
    s_lshl_b32 s28, s20, 4
    v_lshrrev_b32 v1, 2, v7
    v_add_u32 v1, s28, v1
    v_mul_lo_u32 v1, v1, s50             ; row*stride
    v_lshrrev_b32 v2, 4, v7
    v_and_b32 v2, 2, v2
    v_and_b32 v3, 3, v7
    v_xor_b32 v2, v2, v3                 ; p'
    v_lshl_add_u32 v1, v2, 4, v1
    s_mul_i32 s29, s23, 320
    s_mul_i32 s30, s22, 160
    s_add_u32 s30, s30, 1280
    s_cmp_lt_u32 s22, 8
    s_cselect_b32 s29, s30, s29
    s_cselect_b32 s30, 1200, 0
    s_cselect_b32 s31, -1280, 0
    v_add_u32 v{VW}, s29, v1
    v_mov_b32 v1, s30
    v_mov_b32 v3, s31
    v_cmp_le_u32 vcc, 1, v2
    s_add_u32 s28, s30, 128
    s_add_u32 s29, s28, s31
    v_cndmask_b32 v6, 0, v1, vcc
    v_cmp_le_u32 vcc, 2, v2
    v_add3_u32 v{VW+1}, v{VW}, 64, v6
    s_add_u32 s29, s29, 64
    v_cndmask_b32 v6, 0, v3, vcc
    v_cmp_le_u32 vcc, 3, v2
    v_add3_u32 v{VW+2}, v{VW}, s28, v6
    s_add_u32 s28, s29, s30
    v_cndmask_b32 v6, 0, v1, vcc
    s_add_u32 s28, s28, 64
    v_add3_u32 v{VW+3}, v{VW}, s29, v6
    v_add_u32 v{VW+4}, s28, v{VW}
    s_mul_i32 s41, s20, 5120
    s_add_u32 s41, s41, {WOFF}
    s_mul_i32 s43, s54, s45
    s_and_b32 s36, s36, 0xffffff00
    s_lshr_b32 s28, s2, 3
    s_lshl_b32 s29, s20, 5
    s_add_u32 s28, s28, s29
    s_add_u32 s28, s28, 2
    s_cmp_ge_u32 s28, CODE_KB
    s_cbranch_scc1 k_nocp
    s_lshl_b32 s28, s28, 10
    v_add_u32 v1, s28, v4
    global_load_dwordx4 v[128:131], v1, s[36:37] ;nocount
    k_nocp:
    """)
    su = A()
    su += srd(16, 26, WS_USED)
    su += srd(4, 72, S*D*2)
    su(f"""
    v_add_u32 v5, 4096, v4
    s_lshr_b32 s51, s20, 1               ; wr
    s_and_b32 s52, s20, 1                ; wc
    s_sub_u32 s36, s22, 8
    s_mul_i32 s36, s36, 11
    s_add_u32 s36, s36, s21
    s_cmp_ge_u32 s21, 11
    s_cselect_b32 s36, 160, s36
    s_lshr_b32 s37, s36, 1               ; ks
    s_and_b32 s38, s36, 1
    s_cmp_lt_u32 s37, 54
    s_cselect_b32 s56, s70, s64
    s_cselect_b32 s57, s71, s65
    s_cselect_b32 s58, {F*D*2}, {D*D*2}
    s_cselect_b32 s28, 0, 54
    s_and_b32 s57, s57, 0xffff
    s_mov_b32 s59, 0x20000
    s_sub_u32 s28, s37, s28
    s_mul_i32 s28, s28, {32*1280}
    s_mul_i32 s29, s38, 640
    s_add_u32 s55, s28, s29
    s_mul_i32 s29, s20, 10240
    s_add_u32 s55, s55, s29
    s_mul_i32 s53, s20, 5120
    s_add_u32 s53, s53, {PACKL}
    s_and_b32 s3, s2, 7
    """)
    if OPT["p2map"] == 0:
        su("s_lshl_b32 s24, s3, 2\ns_lshr_b32 s28, s2, 6\ns_add_u32 s24, s24, s28\ns_bfe_u32 s25, s2, 0x30003")
    else:
        su("s_lshr_b32 s24, s3, 1\ns_lshl_b32 s24, s24, 3\ns_lshr_b32 s28, s2, 5\ns_add_u32 s24, s24, s28\ns_bfe_u32 s25, s2, 0x20003\ns_and_b32 s28, s3, 1\ns_lshl_b32 s28, s28, 2\ns_add_u32 s25, s25, s28")
    su(f"""
    s_mul_i32 s30, s37, 205
    s_lshr_b32 s30, s30, 10
    s_mul_i32 s30, s30, 5
    s_sub_u32 s30, s37, s30
    s_cmp_eq_u32 s30, 2
    s_cselect_b32 s31, 1, 0
    s_cmp_ge_u32 s37, 54
    s_cselect_b32 s31, 1, s31
    s_cmp_eq_u32 s31, 1
    s_cselect_b32 s28, 10240, 5120       ; per g>>1
    s_cselect_b32 s29, 5120, 512         ; per g&1
    s_cselect_b32 s30, 512, 10240
    v_lshrrev_b32 v59, 4, v7             ; g
    v_bfe_u32 v56, v7, 2, 2              ; rr
    v_and_b32 v57, 3, v7                 ; c4
    v_and_b32 v58, 1, v59                ; g&1
    v_lshrrev_b32 v55, 1, v59
    v_mul_u32_u24 v1, s28, v55
    v_mad_u32_u24 v1, v58, s29, v1
    v_lshl_add_u32 v1, v56, 7, v1
    v_lshl_add_u32 v1, v57, 3, v1
    s_mul_i32 s28, s20, 1056
    s_add_u32 s28, s28, {PACKL}
    v_add_u32 v1, s28, v1
    v_add_u32 v2, s30, v1
    s_lshl_b32 s28, s38, 2
    s_add_u32 s28, s28, s20              ; ct
    s_mul_i32 s28, s28, {74*5120}
    s_mul_i32 s29, s37, 5120
    s_add_u32 s28, s28, s29
    s_add_u32 s28, s28, {WP}
    s_cmp_ge_u32 s36, 148
    s_cselect_b32 s60, {OOB}, s28
    """)
    su(f"""
    v_and_b32 v3, 15, v7                 ; m
    v_lshrrev_b32 v6, 1, v3
    v_xor_b32 v6, v6, v59
    s_mul_i32 s28, s51, 12288
    v_lshl_add_u32 v55, v3, 7, s28
    v_lshl_add_u32 v{LA}, v6, 4, v55
    v_xor_b32 v6, 4, v6
    v_lshl_add_u32 v{LA+1}, v6, 4, v55
    v_lshrrev_b32 v55, 1, v59
    v_mul_u32_u24 v55, 5120, v55
    v_lshl_add_u32 v55, v58, 9, v55
    v_lshl_add_u32 v55, v56, 6, v55
    v_lshl_add_u32 v55, v57, 3, v55
    v_add_u32 v55, {WOFF}, v55
    s_cmp_lt_u32 s22, 8
    s_cselect_b32 s28, 5, 6
    s_cselect_b32 s29, 9, 5
    s_cmp_eq_u32 s52, 0
    s_cselect_b32 s28, 0, s28
    s_cselect_b32 s29, 4, s29
    s_add_u32 s30, s28, 1
    """)
    for i, sreg in enumerate((28, 30, 29)):
        su(f"""
        s_and_b32 s64, s{sreg}, 1
        s_lshr_b32 s65, s{sreg}, 1
        s_lshl_b32 s65, s65, 10
        v_xor_b32 v6, s64, v58
        v_lshl_add_u32 v6, v6, 5, v55
        v_add_u32 v{LB+i}, s65, v6
        """)
    su(f"""
    s_lshl_b32 s28, s28, 6
    s_lshl_b32 s29, s29, 6
    v_lshl_add_u32 v253, v7, 2, s28
    v_lshl_add_u32 v254, v7, 2, s29
    v_cmp_gt_u32 vcc, 16, v7
    v_mov_b32 v6, {OOB}
    s_add_u32 s34, s28, {CSL}
    s_add_u32 s35, s29, {CSL}
    v_cndmask_b32 v254, v6, v254, vcc
    s_mul_i32 s74, s22, 6400
    s_add_u32 s74, s74, {CSP}
    s_mul_i32 s64, s21, 640
    s_add_u32 s64, s64, s74
    s_cmp_ge_u32 s21, 10
    s_cselect_b32 s64, {OOB}, s64
    s_cmp_eq_u32 s51, 1
    s_cselect_b32 s64, {OOB}, s64
    v_mov_b32 v6, 0x3f803f80
    v_accvgpr_write_b32 a{ONES}, v6
    v_accvgpr_write_b32 a{ONES+1}, v6
    v_accvgpr_write_b32 a{ONES+2}, v6
    v_accvgpr_write_b32 a{ONES+3}, v6
    s_lshl_b32 s49, s2, {OPT['fash']}
    s_add_u32 s49, s49, {FA}
    s_cmp_eq_u32 s20, 0
    s_cselect_b32 s49, s49, {OOB}
    s_add_u32 s73, s2, s20
    s_cmp_eq_u32 s73, 0
    s_cselect_b32 s73, 0, {OOB}
    s_mul_i32 s28, s20, 13
    s_min_u32 s29, s20, 2
    s_add_u32 s75, s28, s29              ; first ks of this wave
    s_mul_i32 s29, s25, {74*5120}
    s_add_u32 s29, s29, {WP}
    s_mul_i32 s28, s75, 5120
    s_add_u32 s46, s29, s28              ; B stream first
    s_add_u32 s47, s46, {13*5120}
    s_lshl_b32 s69, s20, 10
    s_add_u32 s70, s29, {54*5120}
    s_add_u32 s70, s70, s69
    s_lshl_b32 s72, s20, 10
    s_add_u32 s72, s72, {AUXC}
    s_mul_i32 s65, s21, 768
    s_add_u32 s65, s65, {NEGM - 144*16}
    s_movk_i32 s66, 192
    """)
    if OPT["krot"] == 2: su("s_and_b32 s67, s44, 1\ns_mul_i32 s67, s67, 5")
    if OPT["krot"] == 3: su("s_mul_i32 s28, s44, 86\ns_lshr_b32 s28, s28, 8\ns_mul_i32 s28, s28, 3\ns_sub_u32 s28, s44, s28\ns_mul_i32 s67, s28, 7\ns_lshr_b32 s67, s67, 1")
    if OPT["krot"] == 5: su("s_mul_i32 s28, s44, 52\ns_lshr_b32 s28, s28, 8\ns_mul_i32 s28, s28, 5\ns_sub_u32 s28, s44, s28\ns_lshl_b32 s67, s28, 1")
    if OPT["rot"] == 0: su("s_mov_b32 s3, 0")
    else:
        src = "s25" if OPT["rot"] == 1 else "s24"
        su(f"s_mul_i32 s28, {src}, 86\ns_lshr_b32 s28, s28, 8\ns_mul_i32 s28, s28, 3\ns_sub_u32 s28, {src}, s28\ns_mul_i32 s3, s28, 9\ns_lshr_b32 s3, s3, 1")
    su("s_mul_i32 s28, s3, 5120\ns_add_u32 s50, s46, s28")
    a += inter(su, grp(dma_w(0), 1))
    a += stamp("c0i")
    a += dma_next(1)
    a += W("sl")
    a += stamp("sl")
    a += inter(setup_s() + stats_math(), grp(dma_x(1) + dma_w(1), 1))
    a += dma_next(2)
    a("s_waitcnt lgkmcnt(0)\ns_mul_i32 s39, s39, 1664525\ns_add_u32 s39, s39, 1013904223")
    a += stamp("pend")
    return a

def zipw(*ls):
    keyed = []
    for li, l in enumerate(ls):
        for j, x in enumerate(l): keyed.append(((j + 0.5)/len(l), li, j, x))
    keyed.sort(key=lambda t: t[:3])
    return [y for k in keyed for y in k[3]]
def epi_t(kind, st):
    RC = AB[0]; PK = AB[1]; TM = [BB[1], BB[0]]
    e = A()
    for T in range(6):
        c = RC + 4*T
        e(f"v_mul_f32 v{c+2}, s83, v{c+1}")
        if kind == "silu": e(f"v_rcp_f32 v{c+3}, v{c+1}")
    def S1(T):
        c = RC + 4*T; u0 = acc(T, 0); TMP = TM[T & 1]
        return [[f"  v_pk_fma_f32 {vr(u0+2*i,2)}, {vr(CS+2*i,2)}, {vr(c,2)}, {vr(u0+2*i,2)} op_sel_hi:[1,0,1]"] for i in range(10)] + \
               [[f"  v_pk_mul_f32 {vr(TMP+2*i,2)}, {vr(u0+2*i,2)}, {vr(c+2,2)} op_sel_hi:[1,0]"] for i in range(10)]
    def X1(T):
        c = RC + 4*T; u0 = acc(T, 0); TMP = TM[T & 1]; g = []
        ex = (lambda r: f"  v_exp_f32 v{r}, v{r}") if kind == "silu" else (lambda r: f"  v_exp_f32_e64 v{r}, v{r} clamp")
        if kind == "silu": nx = lambda i: f"  v_pk_fma_f32 {vr(TMP+2*i,2)}, {vr(TMP+2*i,2)}, {vr(c+2,2)}, {vr(c+2,2)} op_sel:[0,1,1] op_sel_hi:[1,1,1]"
        else: nx = lambda i: f"  v_pk_fma_f32 {vr(u0+2*i,2)}, {vr(u0+2*i,2)}, {vr(c,2)}, 1.0 op_sel:[0,1,0] op_sel_hi:[1,1,0]"
        for i in range(10): g.append([ex(TMP+2*i), ex(TMP+2*i+1)] + ([nx(i-1)] if i else []))
        g.append([nx(9)])
        return g
    def X2(T):
        u0 = acc(T, 0); TMP = TM[T & 1]
        if kind == "silu": return [[f"  v_rcp_f32 v{TMP+2*i}, v{TMP+2*i}", f"  v_rcp_f32 v{TMP+2*i+1}, v{TMP+2*i+1}"] for i in range(10)]
        return [[f"  v_max_f32 v{u0+2*i}, v{u0+2*i}, v{TMP+2*i}", f"  v_max_f32 v{u0+2*i+1}, v{u0+2*i+1}, v{TMP+2*i+1}"] for i in range(10)]
    def S5(T):
        u0 = acc(T, 0); TMP = TM[T & 1]; p = PK + 8*(T & 1); mx = PK + 16 + 2*(T & 1); g = []
        for i in (8, 9, 0, 1, 2, 3, 4, 5, 6, 7):
            if kind == "silu": g.append([f"  v_pk_mul_f32 {vr(u0+2*i,2)}, {vr(u0+2*i,2)}, {vr(TMP+2*i,2)}"])
            else: g.append([f"  v_pk_add_f32 {vr(u0+2*i,2)}, {vr(u0+2*i,2)}, {vr(VX+4,2)}"])
            g.append([f"  v_cvt_pk_bf16_f32 v{mx+i-8 if i >= 8 else p+i}, v{u0+2*i}, v{u0+2*i+1}"])
        if T & 1: g.insert(8, [f"  v_permlane16_swap_b32 v{PK+16}, v{PK+18}", f"  v_permlane16_swap_b32 v{PK+17}, v{PK+19}"])
        return g
    def ST(T):
        p = PK + 8*(T & 1)
        r = [[f"  buffer_store_dwordx4 {vr(p)}, v{VX}, s[76:79], s80 offen sc1"],
             [f"  buffer_store_dwordx4 {vr(p+4)}, v{VX+1}, s[76:79], s80 offen sc1"]]
        if T & 1: r.insert(0, [f"  buffer_store_dwordx4 {vr(PK+16)}, v{VX+2}, s[76:79], s80 offen sc1"])
        if T < 5: r[-1].append(f"  s_add_u32 s80, s80, {'s81' if T == 1 else 's82' if T == 3 else 1024}")
        return r
    e += sum(S1(0), [])
    for T in range(6):
        ld = grp(st.take(OPT["epi"][T]), 1)
        ls = [X1(T)] + ([S5(T-1)] if T else []) + ([ld] if ld else [])
        blk = zipw(*ls)
        if T and OPT.get("early_st", 1):
            stv = ST(T-1); early, late = stv[:-1], stv[-1:]
            p = PK + 8*((T-1) & 1)
            k = max(i for i, x in enumerate(blk) if x.startswith(f"  v_cvt_pk_bf16_f32 v{p+3},"))
            blk[k+2:k+2] = early[-1]
            if len(early) == 2:
                k = max(i for i, x in enumerate(blk) if "permlane" in x); blk[k+2:k+2] = early[0]
        else: late = ST(T-1) if T else []
        e += blk
        ls = [X2(T)] + ([S1(T+1)] if T < 5 else []) + ([late] if late else [])
        e += zipw(*ls)
    blk = sum(S5(5), []); stv = ST(5)
    k = max(i for i, x in enumerate(blk) if x.startswith(f"  v_cvt_pk_bf16_f32 v{PK+8+3},")); blk[k+2:k+2] = stv[1]
    k = max(i for i, x in enumerate(blk) if "permlane" in x); blk[k+2:k+2] = stv[0]
    e += blk + stv[2]
    return e

def epi_kv(st):
    a = A()
    NM = AB[0]; TMP = BB[1]; FR = AB[1]; DD = ACC
    def RSf(T): return BB[0] + 4*T if T < 5 else VX
    a(f"""
    v_mov_b32 v{TMP+12}, 0x358637bd
    v_mov_b32 v{TMP+13}, 0x358637bd
    v_mov_b32 v{TMP+14}, 0x3f803f80
    s_waitcnt lgkmcnt(0)
    """)
    for P in range(3):
        for h in range(2):
            T = 2*P + h; u0 = acc(T, 0); nm = NM + 4*T; rs = RSf(T); b = A()
            for t in range(5):
                for i in range(2):
                    r = u0 + 4*t + 2*i
                    b(f"v_pk_fma_f32 {vr(r,2)}, {vr(nm+2*i,2)}, {vr(CS+4*t,2)}, {vr(r,2)} op_sel_hi:[1,0,1]")
            for t in range(5):
                for i in range(2):
                    r = u0 + 4*t + 2*i
                    b(f"v_pk_mul_f32 {vr(r,2)}, {vr(r,2)}, {vr(rs+2*i,2)}")
            for i in range(6): b(f"v_pk_mul_f32 {vr(TMP+2*i,2)}, {vr(u0+2*i,2)}, s[30:31]")
            for i in range(12): b(f"v_exp_f32_e64 v{TMP+i}, v{TMP+i} clamp")
            for t in range(2, 5):
                for i in range(2): b(f"v_cvt_pk_bf16_f32 v{FR+4*(t+1)+2*h+i}, v{u0+4*t+2*i}, v{u0+4*t+2*i+1}")
            for i in range(2): b(f"v_cndmask_b32 v{FR+12+2*h+i}, v{FR+12+2*h+i}, v{TMP+14}, s[32:33]")
            for i in range(6): b(f"v_pk_add_f32 {vr(u0+2*i,2)}, {vr(u0+2*i,2)}, 1.0 op_sel_hi:[1,0]")
            for i in range(12): b(f"v_max_f32 v{u0+i}, v{u0+i}, v{TMP+i}")
            for i in range(6): b(f"v_pk_add_f32 {vr(u0+2*i,2)}, {vr(u0+2*i,2)}, {vr(TMP+12,2)}")
            for t in range(3):
                for i in range(2): b(f"v_cvt_pk_bf16_f32 v{FR+4*t+2*h+i}, v{u0+4*t+2*i}, v{u0+4*t+2*i+1}")
            n = OPT["epi_n"][T]
            a += inter(b, grp(st.take(n), 1), 2) if n else b
        if P: a(f"s_cmp_eq_u32 s36, 1\ns_cbranch_scc1 k_kvs{P}")
        for n, (kx, vy) in enumerate(PRODS):
            d = vr(DD + 4*n)
            a(f"v_mfma_f32_16x16x32_bf16 {d}, {vr(FR+4*kx)}, {vr(FR+4*vy)}, {'0' if P == 0 else d}")
        if P: a(f"k_kvs{P}:")
    a(f"""
    s_lshl_b32 s28, s51, 11
    s_add_u32 s37, s37, s28
    s_lshl_b32 s29, s52, 12
    s_add_u32 s28, s28, s29
    s_add_u32 s28, s28, {KVX}
    v_add_u32 v3, s28, v4
    s_cmp_eq_u32 s51, 0
    s_cselect_b32 s28, 64, 24
    v_cmp_gt_u32 vcc, s28, v7
    v_mov_b32 v6, {OOB}
    """)
    for n in range(8): a(f"ds_write_b128 v{KVOF[n]}, {vr(DD+4*n)}")
    a("v_cndmask_b32 v6, v6, v4, vcc\ns_waitcnt lgkmcnt(0)\ns_barrier")
    for n in range(2): a(f"ds_read_b128 {vr(72+4*n)}, v3 offset:{1024*n}\nds_read_b128 {vr(88+4*n)}, v3 offset:{8192+1024*n}")
    for n in range(2):
        a(f"s_waitcnt lgkmcnt({2-2*n})")
        for i in range(2): a(f"v_pk_add_f32 {vr(72+4*n+2*i,2)}, {vr(72+4*n+2*i,2)}, {vr(88+4*n+2*i,2)}")
        a(f"buffer_store_dwordx4 {vr(72+4*n)}, v{6 if n == 1 else 4}, s[16:19], s37 offen offset:{1024*n} sc1")
    a += stamp("kvs")
    return a

def phase2(st_t, st_n):
    a = A()
    G = 8; AR = 88; NA = 4; SA = 208; XB = 228
    AV = [244, 245, 246, 247]; RW = [248, 249, 250]; XA = [251, 252, 253]
    GA = 152; DB = 208; KA = 236; OA = 0; UA = 237; FW = 238
    PR = [208 + 4*i for i in range(7)] + [136 + 4*i for i in range(4)]
    g1 = OPT["gap1"]; wsched = OPT["wsched"]; woc = OPT["wo_oc"]; wog = woc + sum(wsched.values()); wtr = OPT["wtrail"]
    s1 = L(f"""
    s_cmp_eq_u32 s20, 0
    s_cselect_b32 s55, 0, {OOB}
    s_and_b32 s21, s2, 7
    s_lshl_b32 s21, s21, 1
    s_bfe_u32 s28, s2, 0x10003
    s_add_u32 s21, s21, s28              ; hp
    s_lshr_b32 s23, s2, 4                ; rg
    s_mul_i32 s28, s24, 21846
    s_lshr_b32 s28, s28, 16
    s_add_u32 s28, s28, 144
    s_lshr_b32 s29, s21, 1
    s_mul_i32 s29, s29, 12
    s_sub_u32 s29, s29, 11
    s_lshl_b32 s30, s23, 1
    s_mul_i32 s31, s30, 21846
    s_lshr_b32 s31, s31, 16
    s_add_u32 s30, s30, 1
    s_mul_i32 s30, s30, 21846
    s_lshr_b32 s30, s30, 16
    s_lshr_b32 s34, s21, 2
    s_mul_i32 s34, s34, 12
    s_add_u32 s34, s34, 96
    s_add_u32 s31, s31, s34              ; Q line, first row block (lane 22)
    s_add_u32 s30, s30, s34
    v_mad_u32_u24 v2, v7, 12, s28
    v_add_u32 v3, s29, v7
    v_cmp_le_u32 vcc, 11, v7
    v_cndmask_b32 v2, v2, v3, vcc
    v_mov_b32 v3, s31
    v_cmp_le_u32 vcc, 22, v7
    v_cndmask_b32 v2, v2, v3, vcc
    v_mov_b32 v3, s30
    v_cmp_le_u32 vcc, 23, v7
    v_cndmask_b32 v2, v2, v3, vcc
    v_lshlrev_b32 v2, 7, v2
    v_add_u32 v{FW}, {FP}, v2
    s_mul_i32 s54, s21, 5
    s_lshr_b32 s54, s54, 2               ; ksA
    s_mul_i32 s60, s21, {11*4096}
    s_add_u32 s60, s60, {KVP}
    v_lshlrev_b32 v3, 4, v0
    v_cmp_gt_u32 vcc, 210, v0
    v_mov_b32 v6, {OOB}
    v_cndmask_b32 v{KA}, v6, v3, vcc
    s_lshl_b32 s29, s23, 1
    s_add_u32 s29, s29, s51
    s_mul_i32 s29, s29, {20*4096}
    s_lshl_b32 s30, s54, 12
    s_add_u32 s29, s29, s30
    s_lshl_b32 s30, s52, 11
    s_add_u32 s29, s29, s30
    s_add_u32 s61, s29, {PQ}
    s_add_u32 s62, s61, 4096
    """)
    s2 = A()
    s2(f"""
    v_and_b32 v1, 15, v7                 ; i / m
    v_lshrrev_b32 v2, 4, v7              ; g
    v_lshrrev_b32 v3, 2, v1
    v_and_b32 v124, 3, v1
    v_lshl_add_u32 v6, v3, 3, v124
    v_cmp_le_u32 vcc, 20, v6
    v_cndmask_b32 v128, 0, 5, vcc
    v_lshlrev_b32 v132, 2, v128
    v_sub_u32 v132, v6, v132
    v_add_u32 v6, 4, v6
    v_cmp_le_u32 vcc, 20, v6
    v_cndmask_b32 v129, 0, 5, vcc
    v_lshlrev_b32 v133, 2, v129
    v_sub_u32 v133, v6, v133
    v_cmp_gt_u32 vcc, 8, v1
    v_cndmask_b32 v130, 64, 5, vcc
    v_add_u32 v134, 12, v1
    v_add_u32 v6, v3, v124
    v_cmp_le_u32 vcc, 3, v6
    v_cmp_le_u32 s[34:35], 2, v124
    s_or_b64 vcc, vcc, s[34:35]
    v_cndmask_b32 v131, 0, 5, vcc
    v_mov_b32 v135, 20
    v_mov_b32 v125, 255
    s_mov_b32 s37, {RED}
    """)
    for k in range(2):
        s2(f"""
        s_add_u32 s31, s54, {k}
        s_mul_i32 s32, s31, 205
        s_lshr_b32 s32, s32, 10
        s_mul_i32 s32, s32, 5
        s_sub_u32 s32, s31, s32
        s_cmp_eq_u32 s32, 2
        s_cselect_b32 s33, 1, 0
        s_cselect_b32 s36, 1, 4
        s_lshl_b32 s31, s31, 3
        s_mul_i32 s32, s21, 10
        s_sub_u32 s31, s31, s32
        v_lshlrev_b32 v3, s33, v2
        v_add_u32 v3, s31, v3
        """)
        for j in range(2):
            if j: s2("v_add_u32 v3, s36, v3")
            for tl in range(4):
                s2(f"""
                v_sub_u32 v124, v3, v{128+tl}
                v_cmp_gt_u32 vcc, 5, v124
                v_mad_u32_u24 v124, v3, 21, v{132+tl}
                v_cndmask_b32 v124, v125, v124, vcc
                v_lshl_add_u32 v{GA+tl*4+k*2+j}, v124, 3, s37
                """)
    ol = A()
    for i in range(11):
        ol(f"buffer_load_dwordx4 {vr(PR[i])}, v{KA}, s[16:19], s60 offen sc1 ;#P")
        if i < 10: ol("s_add_u32 s60, s60, 4096")
    ql = L(f"""
    buffer_load_dwordx4 a[240:243], v4, s[16:19], s61 offen sc1 ;#Q
    buffer_load_dwordx4 a[244:247], v4, s[16:19], s62 offen sc1 ;#Q
    buffer_load_dwordx4 a[248:251], v4, s[16:19], s61 offen offset:1024 sc1 ;#Q
    buffer_load_dwordx4 a[252:255], v4, s[16:19], s62 offen offset:1024 sc1 ;#Q
    """)
    s3 = A()
    s3(f"""
    s_lshl_b32 s28, s23, 2
    s_add_u32 s28, s28, s20              ; rt2
    s_lshl_b32 s64, s23, 4
    s_add_u32 s64, s64, s21
    s_lshl_b32 s64, s64, 7
    s_add_u32 s64, s64, {FO}
    s_add_u32 s64, s64, s55
    s_mul_i32 s28, s28, 40960
    s_mul_i32 s29, s21, 1280
    s_add_u32 s28, s28, s29
    s_add_u32 s63, s28, {OO}
    v_lshlrev_b32 v3, 4, v1
    v_lshl_add_u32 v3, v2, 3, v3
    v_cmp_gt_u32 vcc, 2, v2
    v_mov_b32 v6, {OOB}
    v_lshl_add_u32 v{UA}, v0, 3, s37
    v_cndmask_b32 v{OA}, v6, v3, vcc
    s_mul_i32 s44, s24, {54*4096}
    s_lshl_b32 s28, s75, 12
    s_add_u32 s44, s44, s28
    s_add_u32 s44, s44, {HH}             ; A first
    s_add_u32 s45, s44, {13*4096}
    s_lshl_b32 s28, s3, 12
    s_add_u32 s40, s44, s28
    """)
    for T in range(4):
        s3(f"s_add_u32 s28, s20, {T}\ns_and_b32 s28, s28, 3\ns_lshl_b32 s28, s28, 10\nv_add_u32 v{AV[T]}, s28, v4")
    osum = A(); p0 = PR[0]
    for i in range(1, 11):
        osum += [f"  v_pk_add_f32 {vr(p0,2)}, {vr(p0,2)}, {vr(PR[i],2)}", f"  v_pk_add_f32 {vr(p0+2,2)}, {vr(p0+2,2)}, {vr(PR[i]+2,2)}"]
    osum(f"v_cvt_pk_bf16_f32 v{p0}, v{p0}, v{p0+1}\nv_cvt_pk_bf16_f32 v{p0+1}, v{p0+2}, v{p0+3}\nds_write_b64 v{UA}, {vr(p0,2)}")
    ogat = [f"  ds_read_b64 {ar(2*n,2)}, v{GA+n}" for n in range(16)]
    om = []
    for k in range(2):
        for T in range(2):
            for tl in (3, 0, 1, 2):
                d = vr(DB + 16*T + 4*tl)
                om.append(f"  v_mfma_f32_16x16x32_bf16 {d}, {ar(tl*8+k*4)}, {ar(240+T*8+k*4)}, {'0' if k == 0 else d}")
    ofin = []
    for T in range(2):
        o = A(); b = DB + 16*T; z = b + 12; pk = GA + 6*T
        for r in range(3): o(f"v_add_f32 v{z+r}, 0x358637bd, v{z+r}")
        for r in range(3): o(f"v_rcp_f32 v{z+r}, v{z+r}")
        for tl in range(3):
            for r in range(4): o(f"v_mul_f32 v{b+4*tl+r}, v{b+4*tl+r}, v{z+tl}")
        for i in range(6): o(f"v_cvt_pk_bf16_f32 v{pk+i}, v{b+2*i}, v{b+2*i+1}")
        o(f"buffer_store_dwordx4 {vr(pk)}, v4, s[16:19], s63 offen sc1 ;#OS")
        o(f"buffer_store_dwordx2 {vr(pk+4,2)}, v{OA}, s[16:19], s63 offen offset:1024 sc1 ;#OS")
        if T == 0: o("s_add_u32 s63, s63, 20480")
        ofin.append(list(o))
    fs = A()
    fs(f"""
    s_lshl_b32 s42, s24, 2
    s_add_u32 s42, s42, s20
    s_lshr_b32 s28, s24, 1
    s_lshl_b32 s28, s28, 11
    s_add_u32 s28, s28, {FO}
    v_min_u32 v6, 15, v7
    v_lshl_add_u32 v{VF-1}, v6, 7, s28
    s_mul_i32 s48, s42, {16*1280}
    s_mul_i32 s28, s25, 160
    s_add_u32 s48, s48, s28
    s_mul_i32 s42, s42, 20480
    s_add_u32 s42, s42, {OO}
    s_mul_i32 s49, s20, 15360
    s_add_u32 s49, s49, {RED}
    v_mul_u32_u24 v243, 336, v1
    v_lshl_add_u32 v243, v2, 4, v243
    v_add_u32 v243, s49, v243
    """)
    for i in range(3):
        fs(f"""
        v_add_u32 v6, {64*i}, v7
        v_mul_u32_u24 v1, 6554, v6
        v_lshrrev_b32 v1, 16, v1
        v_mul_u32_u24 v2, 10, v1
        v_sub_u32 v2, v6, v2
        v_mul_u32_u24 v3, 1280, v1
        v_lshl_add_u32 v3, v2, 4, v3
        v_cmp_gt_u32 vcc, 160, v6
        v_mov_b32 v6, {OOB}
        v_mul_u32_u24 v1, 336, v1
        v_cndmask_b32 v{XA[i]}, v6, v3, vcc
        v_lshl_add_u32 v1, v2, 5, v1
        v_cndmask_b32 v1, 0, v1, vcc
        v_add_u32 v{240+i}, s49, v1
        """)
    for T in range(1, 4):
        fs(f"s_add_u32 s28, s20, {T}\ns_and_b32 s28, s28, 3\ns_mul_i32 s28, s28, 15360\ns_add_u32 s28, s28, {RED + (T-1)*5120}\nv_add_u32 v{RW[T-1]}, s28, v4")
    fs("v_add_u32 v1, s49, v4\nv_add_u32 v2, 51200, v4")
    def gap(st, kv):
        g = A()
        g(";MARK ep")
        g += stamp("eend")
        n1 = 0 if kv else g1
        allsu = glue(s1 + s2 + s3 + fs); cutp = OPT["su_pre_n" if kv else "su_pre"]
        sua, sub = sum(allsu[:cutp], []), sum(allsu[cutp:], [])
        g += inter(sua, grp(st.take(n1), 2)) if n1 else sua
        g += W("ep") + L("s_barrier") + flag("s67", 126) + stamp("flag")
        g("s_cmp_eq_u32 s20, 0\ns_cselect_b64 s[56:57], -1, 0")
        rest = grp(st.take(len(st.items)), 2)
        rest.insert(len(rest) - OPT["poll_early"], poll(FW, VF, "w1", "s55"))
        g += inter(sub, rest)
        g += stamp("pre")
        g += W("w1")
        return resolve(g)
    gt, gn = gap(st_t, False), gap(st_n, True)
    a("k_p2:\n;MARK wo0\n;MARK wo1\n;MARK wo2\n;MARK wo3\n;MARK wo4")
    a += check("k_sw", FW, VF, True) + stamp("w1")
    def ldA(s):
        r = [f"  buffer_load_dwordx4 {vr(AR+(s%NA)*16+4*T)}, v{AV[T]}, s[16:19], s40 offen sc1 ;#A{s}" for T in range(4)]
        r += kadv(40, 4096, s, 44, 45)
        if s == 12: r += L(f"s_cmp_lt_u32 s20, 2\ns_cselect_b32 s40, s40, {OOB}")
        return r
    def ldO(i0, n):
        r = []
        for i in range(i0, i0 + n):
            if i % 4 == 0 or i == i0: r.append(f"  s_add_u32 s43, s42, {1024*(i - i%4)}")
            r.append(f"  buffer_load_dwordx4 {ar(4*i)}, v4, s[16:19], s43 offen offset:{1024*(i%4)} sc1 ;#O{i}")
        return r
    ldX = [f"  buffer_load_dwordx4 {vr(XB+4*i)}, v{XA[i]}, s[8:11], s48 offen ;#X" for i in range(3)]
    a += ldA(0) + ol + ldA(1)
    NB = 3; SB = [AR + 32, AR + 52, AR]
    def rdB(s): return tag([f"  ds_read_b128 {vr(SB[s%NB]+4*t)}, v{4 if s < 10 else 2} offset:{(s%10)*5120+1024*t}" for t in range(5)], f"b{s}")
    wr_ = tag([f"  ds_write_b128 v{RW[T-1]}, {vr(G+(T*5+t)*4)} offset:{1024*t}" for T in range(1, 4) for t in range(5)], "w")
    rd_ = tag([f"  ds_read_b128 {vr(G+20+4*j)}, v1 offset:{1024*j}" for j in range(15)], "r")
    plan = {}; nx = 2
    for s in range(14):
        n = 2 if s == OPT["acatch"] else 1
        plan[s] = [x for x in range(nx, nx + n) if x < 14]; nx += n
    OFS = OPT["ofs"]
    PO = OPT["po"]
    osched = OPT["osched"]
    no = 0; nw = 25 - wog
    for s in range(14):
        if s == 1: a += W("P") + osum + stamp("osum")
        vm = [f"A{s}"] + (["op"] if s == PO + 2 else []) + ([f"wo{g}" for g in range(5) if g not in wtr] if s == 12 else []) + (["OS"] if s == OFS else []) + (["Q"] if s == 3 else [])
        a += W(vm, "*" if s in (2, 3) else ())
        a += stamp(f"g{s}")
        if s == PO + 2: a += check("k_so", VF-1, VF, True) + stamp("op")
        if s == 2 or s == OFS or (s == 12 and PO + 2 != 12): a("s_barrier")
        ls = []
        v = sum((ldA(x) for x in plan.get(s, [])), [])
        if s == 0: v = ql + v
        if s == OFS: v = flag("s64") + v
        if s == PO: v = poll(VF-1, VF, "op", "s55") + v
        if s in OPT["xs"]: v += [ldX[OPT["xs"].index(s)]]
        if wsched.get(s): v += wo_dma(nw, wsched[s]); nw += wsched[s]
        if osched.get(s): v += ldO(no, osched[s]); no += osched[s]
        if s == 3: a += place(om, [(v, 0, 15)]); ls.append((ofin[0], 0, 19))
        else: ls.append((v, 0, 18))
        if s == 2: ls.insert(0, (ogat, 0, 12))
        if s == 4: ls.append((ofin[1], 0, 19))
        order = (0, 1, 2, 3) if s < 13 else (1, 2, 3, 0)
        M = []
        for j, T in enumerate(order):
            for t in (range(5) if j % 2 == 0 else range(4, -1, -1)):
                d = vr(G + (T*5+t)*4)
                M.append(f"  v_mfma_f32_16x16x32_bf16 {d}, {breg(s,t)}, {vr(AR+(s%NA)*16+4*T)}, {'0' if s == 0 else d}")
        if s == 13: ls += [(rdB(0) + rdB(1) + (rdB(2) if NB == 4 else []), 0, 9 if NB == 3 else 14), (wr_[:5], 10, 14), (wr_[5:10], 15, 19)]
        a += place(M, ls)
    a += stamp("gend")
    V = []
    for j in range(3):
        for i in range(10): V.append(f"  v_pk_add_f32 {vr(G+2*i,2)}, {vr(G+2*i,2)}, {vr(G+20+20*j+2*i,2)}")
    E = G + 20
    V += L(f"s_mov_b32 s30, {LOG2E|0x80000000}\ns_mov_b32 s31, {LOG2E|0x80000000}")
    for i in range(10): V.append(f"  v_pk_mul_f32 {vr(E+2*i,2)}, {vr(G+2*i,2)}, s[30:31]")
    for i in range(20): V.append(f"  v_exp_f32 v{E+i}, v{E+i}")
    for i in range(10): V.append(f"  v_pk_add_f32 {vr(E+2*i,2)}, {vr(E+2*i,2)}, 1.0 op_sel_hi:[1,0]")
    for i in range(20): V.append(f"  v_rcp_f32 v{E+i}, v{E+i}")
    for i in range(10): V.append(f"  v_pk_mul_f32 {vr(G+2*i,2)}, {vr(G+2*i,2)}, {vr(E+2*i,2)}")
    XU = BV if NB == 3 else None
    def xur(i): return (BV + 2*i) if NB == 3 else ((AR + 60 + 2*i) if i < 10 else (BV + 20 + 2*(i - 10)))
    xu = []
    for i in range(12): xu += [f"  v_lshlrev_b32 v{xur(i)}, 16, v{XB+i}", f"  v_and_b32 v{xur(i)+1}, 0xffff0000, v{XB+i}"]
    if OPT.get("nopk"):
        V2 = []
        for x in V:
            m = re.match(r"\s*v_pk_(add|mul)_f32 v\[(\d+):\d+\], v\[(\d+):\d+\], (\S+)", x)
            if not m: V2.append(x); continue
            op, d, p, q = m.group(1), int(m.group(2)), int(m.group(3)), m.group(4)
            for h in range(2):
                qq = "1.0" if q == "1.0" else ("s30" if q.startswith("s[") else f"v{int(q[2:].split(':')[0]) + h}")
                V2.append(f"  v_{op}_f32 v{d+h}, {qq}, v{p+h}")
        V = V2
    V0 = OPT["v0"]; per = (len(V) + (20 - V0) - 1)//(20 - V0); LK = NB - 1
    for s in range(20):
        wg = [g for g, st_ in wtr.items() if st_ == s]
        for g in wg: assert s + LK <= 4*g and nw >= 5*g + 5
        a += W([f"O{s}"] + (["X"] if s == 1 else []) + [f"wo{g}" for g in wg], [f"b{s}"] + (["w"] if s == 2 else []) + (["r"] if s == V0 else []))
        if s == 2 or wg: a("s_barrier")
        a += stamp(f"s{s}")
        M = [f"  v_mfma_f32_16x16x32_bf16 {vr(SA+4*t)}, {vr(SB[s%NB]+4*t)}, {ar(4*s)}, {'0' if s == 0 else vr(SA+4*t)}" for t in range(5)]
        ls = []
        if s == 0: ls.append((wr_[10:], 0, 4))
        if s + LK < 20: ls.append((rdB(s+LK), 0, 4))
        v = []
        if wsched.get(14 + s): v += wo_dma(nw, wsched[14 + s]); nw += wsched[14 + s]
        if osched.get(14 + s): v += ldO(no, osched[14 + s]); no += osched[14 + s]
        ls.append((v, 0, 4))
        if 2 <= s < 5: ls.append((rd_[5*(s-2):5*(s-2)+5], 0, 4))
        if s in (1, 5): ls.append((xu[:12] if s == 1 else xu[12:], 0, 4))
        if s >= V0: ls.append((V[(s-V0)*per:(s-V0+1)*per], 0, 4))
        a += place(M, ls)
    assert no == 20 and nw == 25
    a += stamp("send")
    for i in range(10): a(f"v_pk_mul_f32 {vr(SA+2*i,2)}, {vr(SA+2*i,2)}, {vr(G+2*i,2)}")
    for t in range(5): a(f"ds_write_b128 v243, {vr(SA+4*t)} offset:{64*t}")
    a("s_waitcnt lgkmcnt(0)")
    for i in range(3): a(f"ds_read_b128 {vr(AR+8*i)}, v{240+i}\nds_read_b128 {vr(AR+8*i+4)}, v{240+i} offset:16")
    for i in range(3):
        a(f"s_waitcnt lgkmcnt({4-2*i})")
        for j in range(4): a(f"v_pk_add_f32 {vr(AR+8*i+2*j,2)}, {vr(AR+8*i+2*j,2)}, {vr(xur(4*i+j),2)}")
        for j in range(4): a(f"v_cvt_pk_bf16_f32 v{XB+4*i+j}, v{AR+8*i+2*j}, v{AR+8*i+2*j+1}")
        a(f"buffer_store_dwordx4 {vr(XB+4*i)}, v{XA[i]}, s[4:7], s48 offen")
    a += stamp_out()
    return gt, gn, resolve(a)

def build():
    OUTL.clear()
    pro = prologue()
    br = L("s_cmp_lt_u32 s22, 8\ns_cbranch_scc1 k_kv")
    wog = OPT["wo_oc"] + sum(OPT["wsched"].values())
    Bs = [("B", i) for i in range(70)]; Ws = [("W", i) for i in range(25 - wog)]
    st_t = Stream(Bs[:60] + Ws + Bs[60:])
    kb0 = OPT["kv_first"]
    st_n = Stream(Bs[kb0:60] + Ws + Bs[60:] + Bs[:kb0])
    mt = g1_main("k_t", True, st_t)
    mt += L("s_waitcnt lgkmcnt(0)\ns_cmp_lt_u32 s22, 12\ns_cbranch_scc1 k_q")
    eq = epi_t("phi", Stream(st_t.items)); es = epi_t("silu", st_t)
    assert ("B", 60) in st_t.items
    mn = g1_main("k_n", False, st_n)
    ek = epi_kv(st_n)
    assert ("B", 60) in st_n.items
    gt, gn, p2 = phase2(st_t, st_n)
    n0 = len(resolve(pro + br))
    a = resolve(pro + br + mt) + es + L("k_gt:") + gt + p2 + L("s_endpgm\nk_q:") + eq + L("s_branch k_gt\nk_kv:") + resolve(pro + br + mn + ek)[n0:] + gn + L("s_branch k_p2")
    a += L("k_end:\ns_endpgm") + OUTL
    body, added = haz.fix(a)
    body, nbytes, nn, npm = align.align([x.replace("CODE_KB", "40") for x in body])
    kb = nbytes//1024; assert kb <= 64
    body = [x.replace("s_cmp_ge_u32 s28, 40", f"s_cmp_ge_u32 s28, {kb if OPT.get('cpf', 1) else 0}") for x in body]
    body = [re.sub(r"\s*;(#\S+|nocount|C)$", "", x) for x in body]
    print("instrs", len(body), "nops added", added, "bytes", nbytes, "align nops", nn, "promoted", npm, file=sys.stderr)
    if OPT.get("nost"): body = [x for x in body if not ("buffer_store_dwordx4" in x and "s[76:79]" in x)]
    if OPT.get("cyc"): body = [x.replace("s_memrealtime", "s_memtime") for x in body]
    out = ["; @launch grid=(256,1,1) block=(256,1,1) lds=163840",
           '.amdgcn_target "amdgcn-amd-amdhsa--gfx950"\n.text', khead(NAME)] + body
    if DIAG: out.append(";ST " + " ".join(OPT["st"][:7]) + "\n;OPTS " + " ".join(x for x in sys.argv[3:] if not x.startswith("st=")))
    out.append('.section .rodata,"a"\n.p2align 6\n' + kd(NAME, 512, 256, 102))
    return "\n".join(out) + "\n"
if __name__ == "__main__":
    for x in sys.argv[2:]:
        if x == "d": DIAG = True
        else:
            k, v = x.split("=", 1); OPT[k] = eval(v)
    src = build()
    open(sys.argv[1], "w").write(src)
```

```python
import sys, re
from asmlib import kd, khead
import haz, align

NAME = "recurrent_scan__linear_attn_block__dense_activation_silu__prompt_kernel"
S, D, F = 2048, 640, 1728
FA = 0x8000
FP = 0xF0000
FPD = 0x9000 - 144*128
FO = 0x38000
NEGM = 0x10000; RSTD = 0x12000
CSP = 0x14000
KVP   = 0x40000
PG = 1 << 21
WPP = 1
HOF = 74*16384; HSZ = 27*16384
QPP = 9; QSZ = 10*16384
WS_USED = 13*PG
TS = 0x1C00000
def blk(dst, rb, kind, t0, t1):
    sh, pg, msk, sz, of = (1, WPP, 1, HSZ, HOF) if kind == "h" else (2, QPP, 3, 2*QSZ, QSZ if kind == "o" else 0)
    return L(f"""
    s_and_b32 s{t0}, s{rb}, 15
    s_lshr_b32 s{t0}, s{t0}, {sh}
    s_add_u32 s{t0}, s{t0}, {pg}
    s_lshr_b32 s{t1}, s{rb}, 4
    s_xor_b32 s{t1}, s{t1}, s{t0}
    s_and_b32 s{t1}, s{t1}, 1
    s_lshl_b32 s{t1}, s{t1}, {12 if OPT["mode"] in ("cols", "none") else 13}
    s_lshl_b32 s{t0}, s{t0}, 21
    s_add_u32 s{t0}, s{t0}, s{t1}
    s_and_b32 s{t1}, s{rb}, {msk}
    s_mul_i32 s{t1}, s{t1}, {sz}
    s_add_u32 s{t0}, s{t0}, s{t1}
    s_add_u32 s{dst}, s{t0}, {of}
    """)
def cell(dst, idx, t0):
    return L(f"s_lshr_b32 s{t0}, s{idx}, 1\ns_lshl_b32 s{t0}, s{t0}, 14\ns_and_b32 s{dst}, s{idx}, 1\ns_lshl_b32 s{dst}, s{dst}, {13 if OPT['mode'] in ('cols', 'none') else 12}\ns_add_u32 s{dst}, s{dst}, s{t0}")
LOG2E = 0x3fb8aa3b
OOB = 0x40000000
STAGE = 45056; WOFF = 24576; SPARE = 3*STAGE
AUXC = SPARE; AUXM = SPARE + 6400
CSL = SPARE + 8192
PACKL = SPARE
KVX = SPARE + 10240
RED = 102400
DIAG = False
OPT = dict(spin=200000, pkd=1, pkr=3, pks={4: 3, 5: 2}, flagb=3, flagb_n=2, pollb=6,
           pf_t={15: 7, 16: 7, 17: 7, 18: 7, 19: 7}, pf_n={15: 5, 16: 5, 17: 5, 18: 5, 19: 5}, epi_n=[6, 5, 5, 5, 5, 0], kv_first=0,
           epi=[4, 2, 2, 2, 2, 2, 2], f1blk=5, f1pos=0, gap1=8, poll_early=1, c2=3, pom=2,
           aplan={0: [3], 1: [4], 3: [5, 6], 4: [7], 5: [8], 6: [9], 7: [10, 13], 8: [11], 9: [12]},
           mg=11, wb=14, xr=11, rb=1, burst=1, su1=200, su2=340, pp2=1,
           psched={0:3,1:2,2:7,5:1,10:5,11:3,12:3,15:1,16:1,17:1,18:1,19:1,20:1,21:1,22:1,23:1,24:1},
           xs=[8, 8, 9], ofs=9, po=11, pc=14,
           osched={14:5,15:3,16:2,17:2,18:1,19:1,20:1,21:1,22:1,23:1,24:1,25:1}, nbuf=3, v0=5, nopk=1, adist=3, p2map=1, su_pre=200, su_pre_n=160, sleep=2, rot=0, snake=1, krot=0, fash=4, wtrail={2:1,3:10,4:14}, wrow=1, cmaj=0, pol=1, mode="none", cpf2=12,
           st=["eend", "w1", "g11", "op", "gend", "s5", "send"])

class A(list):
    def __call__(self, s):
        for x in s.strip("\n").split("\n"):
            x = x.strip()
            m = re.match(r"s_cselect_b32 (s\d+), (\d+|0x[0-9a-f]+), (\d+|0x[0-9a-f]+)\s*(;.*)?$", x)
            if m and int(m.group(2), 0) > 64 and int(m.group(3), 0) > 64:
                self.append(f"  s_mov_b32 {m.group(1)}, {m.group(3)}")
                x = f"s_cselect_b32 {m.group(1)}, {m.group(2)}, {m.group(1)}"
            if x: self.append(("" if x.endswith(":") else "  ") + x)
        return self
def L(s): return list(A()(s))
def stamp(name):
    if not DIAG: return []
    if name == "entry": i = 0
    elif name in OPT["st"][:7]: i = 1 + OPT["st"].index(name)
    else: return []
    return [f"  s_memrealtime s[{84+2*i}:{85+2*i}]"]
def stamp_out():
    if not DIAG: return []
    if OPT.get("echo") is not None:
        i = OPT["echo"]
        return L(f"""
        s_waitcnt vmcnt(0)
        s_memrealtime s[100:101]
        s_waitcnt lgkmcnt(0)
        s_sub_u32 s28, s{84+2*i}, s84
        s_min_u32 s28, s28, 10000
        s_add_u32 s28, s28, 5000
        k_echo:
        s_memrealtime s[30:31]
        s_waitcnt lgkmcnt(0)
        s_sub_u32 s29, s30, s84
        s_cmp_lt_u32 s29, s28
        s_cbranch_scc1 k_echo
        """)
    r = L(f"""
    s_waitcnt vmcnt(0)
    s_memrealtime s[100:101]
    s_waitcnt lgkmcnt(0)
    s_lshl_b32 s28, s2, 2
    s_add_u32 s28, s28, s20
    s_lshl_b32 s28, s28, 6
    s_add_u32 s28, s28, {TS}
    v_mov_b32 v1, s28
    """)
    for i in range(9): r += [f"  v_mov_b32 v3, s{84+2*i}", f"  global_store_dword v1, v3, s[26:27] offset:{4*i if i < 8 else 48}"]
    r += ["  v_mov_b32 v3, s22", "  global_store_dword v1, v3, s[26:27] offset:60"]
    return r
def vr(b, n=4): return f"v[{b}:{b+n-1}]" if n > 1 else f"v{b}"
def ar(b, n=4): return f"a[{b}:{b+n-1}]" if n > 1 else f"a{b}"
def srd(d, lo, nbytes):
    return L(f"s_mov_b32 s{d}, s{lo}\ns_and_b32 s{d+1}, s{lo+1}, 0xffff\ns_mov_b32 s{d+2}, {nbytes}\ns_mov_b32 s{d+3}, 0x20000")
def isvm(x): return x.strip().startswith(("buffer_", "global_"))
def islg(x): return x.strip().startswith("ds_")
def tag(lines, t): return [x + f" ;#{t}" if (isvm(x) or islg(x)) else x for x in lines]
def W(vm=(), lg=()):
    vm = [vm] if isinstance(vm, str) else list(vm); lg = [lg] if isinstance(lg, str) else list(lg)
    return [f"  ;WAIT vm={','.join(vm)} lg={','.join(lg)}"]
def resolve(lines):
    out = []; vm = []; lg = []
    for x in lines:
        t = x.strip()
        if t.startswith(";MARK"):
            nm = t.split()[1]; vm.append(("m", nm)); lg.append(("m", nm)); continue
        if t.startswith(";WAIT"):
            m = re.match(r";WAIT vm=(\S*) lg=(\S*)", t); parts = []
            for names, hist, cn, mx in ((m.group(1), vm, "vmcnt", 63), (m.group(2), lg, "lgkmcnt", 15)):
                if not names: continue
                names = names.split(",")
                if names == ["*"]: parts.append(f"{cn}(0)"); continue
                idx = [i for i, h in enumerate(hist) if h[1] in names]
                for nme in names: assert any(h[1] == nme for h in hist), ("unknown tag", nme)
                n = sum(1 for h in hist[max(idx)+1:] if h[0] == "o")
                parts.append(f"{cn}({min(n, mx)})")
            out.append("  s_waitcnt " + " ".join(parts)); continue
        tg = re.search(r";#(\S+)", t); nm = tg.group(1) if tg else None
        kind = "n" if ";nocount" in t else "o"
        if isvm(x): vm.append((kind, nm))
        elif islg(x): lg.append((kind, nm))
        out.append(x)
    return out
def glue(lines):
    out = []; cur = []
    for x in lines:
        t = x.strip()
        if cur and not t.startswith(("s_cselect", "s_addc", "s_cbranch", "s_mov_b32")) and not t.endswith(":"):
            out.append(cur); cur = []
        if t.startswith(("s_cmp", "s_bitcmp")) or cur or (t.startswith("s_add_u32") and ";C" in t): cur.append(x)
        else: out.append([x])
    if cur: out.append(cur)
    return out
def place(M, lists):
    gaps = [[] for _ in M]
    for items, g0, g1 in lists:
        if not items: continue
        items = glue(items); n = g1 - g0 + 1
        for k, x in enumerate(items): gaps[g0 + k*n//len(items)] += x
    out = []
    for m, g in zip(M, gaps): out += [m] + g
    return out
def inter(main, groups, first=0):
    main = glue(main); out = []; n = len(main); G = len(groups); gi = 0
    for i, x in enumerate(main):
        while gi < G and i >= first + gi*(n - first)//G: out += groups[gi]; gi += 1
        out += x
    while gi < G: out += groups[gi]; gi += 1
    return out
def grp(lines, k):
    out = []; cur = []
    for x in lines:
        if isvm(x) and sum(map(isvm, cur)) == k:
            tail = []
            while cur and not isvm(cur[-1]): tail.insert(0, cur.pop())
            out.append(cur); cur = tail
        cur.append(x)
    if cur: out.append(cur)
    return out
OUTL = A()
def check(tg, vaddr, vdst, lead=False):
    if lead: a = L(f"v_cmp_ne_u32 vcc, s39, v{vdst}\ns_nop 1\ns_and_b64 vcc, vcc, s[56:57]\ns_cbranch_scc1 {tg}_slow\n{tg}_ok:\ns_barrier")
    else: a = L(f"v_cmp_ne_u32 vcc, s39, v{vdst}\ns_nop 1\ns_cmp_lg_u64 vcc, 0\ns_cbranch_scc1 {tg}_slow\n{tg}_ok:")
    OUTL(f"""
    {tg}_slow:
    s_mov_b32 s38, {OPT['spin']}
    {tg}_again:
    s_sleep {OPT.get('sleep', 4)}
    buffer_load_dword v{vdst}, v{vaddr}, s[16:19], 0 offen sc1
    s_sub_u32 s38, s38, 1
    s_cmp_eq_u32 s38, 0
    s_cbranch_scc1 {tg}_ok
    s_waitcnt vmcnt(0)
    v_cmp_ne_u32 vcc, s39, v{vdst}
    s_nop 1
    s_cmp_lg_u64 vcc, 0
    s_cbranch_scc1 {tg}_again
    s_branch {tg}_ok
    """)
    return a
def poll(vaddr, vdst, t, so="0"): return [f"  buffer_load_dword v{vdst}, v{vaddr}, s[16:19], {so} offen sc1 ;#{t}"]
def flag(soff, r=None):
    d, o = (3, 6) if r is None else (r, r + 1)
    return L(f"v_mov_b32 v{d}, s39\nv_lshlrev_b32 v{o}, 25, v7\nbuffer_store_dword v{d}, v{o}, s[16:19], {soff} offen sc1")

ACC = 8; CS = 128; AB = [148, 172]; BB = [196, 216]; VX = 236; VW = 242; LA = 247; LB = 249; VF = 255
L2B = CS
ONES = 240
def acc(T, t): return ACC + (T*5 + t)*4
def g1_mfma(buf, tr, first):
    M = []
    for T in range(6):
        for t in (range(5) if T % 2 == 0 else range(4, -1, -1)):
            x = vr(AB[buf] + 4*T); w = vr(BB[buf] + 4*t); d = vr(acc(T, t))
            p, q = (w, x) if tr else (x, w)
            M.append(f"  v_mfma_f32_16x16x32_bf16 {d}, {p}, {q}, {'0' if first else d}")
    return M
def g1_cs(buf):
    return [f"  v_mfma_f32_16x16x32_bf16 {vr(CS+4*t)}, {ar(ONES)}, {vr(BB[buf]+4*t)}, {'0' if buf == 0 else vr(CS+4*t)}" for t in range(5)]
def g1_reads(k):
    buf = k & 1; st = (k//2) % 3
    la, lb, so = (LA, LB, st*STAGE) if st < 2 else (L2B, L2B + 2, 0)
    R = []
    def b(t):
        u2, h2 = (64, 1280) if OPT["wrow"] else (1024, 256)
        base = lb + (2 if t == 4 else (t & 1)); off = so + buf*10240 + (u2 if t in (2, 3) else 0)
        return [f"  ds_read_b64_tr_b16 {vr(BB[buf]+4*t,2)}, v{base} offset:{off}",
                f"  ds_read_b64_tr_b16 {vr(BB[buf]+4*t+2,2)}, v{base} offset:{off+h2}"]
    def x(T): return [f"  ds_read_b128 {vr(AB[buf]+4*T)}, v{la+buf} offset:{so+T*2048}"]
    R += x(0)
    for t in range(5): R += b(t)
    for T in range(1, 6): R += x(T)
    return tag(R, f"r{k}")
def dma_x(c):
    so = (c % 3)*STAGE; Dm = []
    for j in range(6):
        if j in (0, 4): Dm.append(f"  s_add_u32 m0, s40, {so + 1024*j}")
        Dm.append(f"  buffer_load_dwordx4 v{VX+j}, s[8:11], s42 offen offset:{1024*(j%4)} lds")
    return tag(Dm, f"c{c}")
def dma_w(c):
    so = (c % 3)*STAGE; Dm = []
    for j in range(5):
        if OPT["wrow"]:
            if j in (0, 4): Dm.append(f"  s_add_u32 m0, s41, {so + 1024*j}")
            Dm.append(f"  buffer_load_dwordx4 v{VW+j}, s[12:15], s43 offen offset:{1024*(j%4)}{' nt' if (c == 0 and OPT.get('wnt')) else ''} lds")
            continue
        Dm.append(f"  s_add_u32 m0, s41, {so + 1024*j}")
        Dm.append(f"  buffer_load_dwordx4 v{VW+j}, s[12:15], s43 offen lds")
    return tag(Dm, f"c{c}")
def dma_next(c):
    if OPT["krot"]:
        first = "s_mov_b32 s44, s67" if c == 1 else "s_add_u32 s44, s44, 1\ns_cmp_eq_u32 s44, 10\ns_cselect_b32 s44, 0, s44"
        return L(first + f"""
        s_cmp_eq_u32 s44, s54
        s_addc_u32 s44, s44, 0
        s_cmp_eq_u32 s44, 10
        s_cselect_b32 s44, 0, s44
        s_lshl_b32 s42, s44, 7
        s_mul_i32 s43, s44, s45""")
    return L(f"s_cmp_le_u32 s54, {c-1}\ns_cselect_b32 s44, {c}, {c-1}\ns_lshl_b32 s42, s44, 7\ns_mul_i32 s43, s44, s45")
BV = 168
def breg(s, t): return ar(s*20 + 4*t) if s < 12 else vr(BV + (s-12)*20 + 4*t)
def bstream(i0, n):
    out = []
    for i in range(i0, i0 + n):
        s, t = divmod(i, 5)
        if t == 0 or i == i0:
            out.append(f"  s_add_u32 s68, s46, {4*16384*s}")
            if s == 13: out += L(f"s_cmp_lt_u32 s20, 2\ns_cselect_b32 s68, s68, {OOB}")
        if t < 4: out.append(f"  buffer_load_dwordx4 {breg(s,t)}, v4, s[16:19], s68 offen offset:{1024*t} sc1 ;#B{s}")
        else: out.append(f"  buffer_load_dwordx4 {breg(s,t)}, v5, s[16:19], s68 offen sc1 ;#B{s}")
    return out
class Stream:
    def __init__(self, items): self.items = list(items)
    def take(self, n):
        it, self.items = self.items[:n], self.items[n:]
        assert len(it) == n
        out = []; k = 0
        while k < len(it):
            j = k
            while j + 1 < len(it) and it[j+1] == (it[j][0], it[j][1] + 1): j += 1
            out += (bstream if it[k][0] == "B" else wo_dma)(it[k][1], j - k + 1); k = j + 1
        return out
def wo_dma(i0, n):
    out = []
    for i in range(i0, i0 + n):
        j, t = divmod(i, 5)
        if t == 0 or i == i0: out.append(f"  s_add_u32 s71, s70, {65536*j}")
        if t in (0, 4) or i == i0 or OPT.get("m0each", 1): out += [f"  s_add_u32 m0, s69, {20480*j + (4096 if t == 4 else 0)}"]
        out.append(f"  buffer_load_dwordx4 v{4 if t < 4 else 5}, s[16:19], s71 offen offset:{1024*(t%4)} sc1 lds ;#wo{j}")
    return out
PRODS = [(0,3),(0,4),(1,3),(1,4),(1,5),(2,3),(2,4),(2,5)]
KVOF = [240, 241, 242, 243, 244, 245, 246, 255]

def setup_s():
    return L(f"""
    s_cmp_lt_u32 s22, 12
    s_cselect_b32 s83, {LOG2E}, {LOG2E | 0x80000000}
    s_mul_i32 s76, s21, 3
    s_add_u32 s76, s76, s51
    s_add_u32 s77, s76, 1
    """) + blk(80, 76, "h", 28, 29) + blk(81, 77, "h", 28, 29) + blk(78, 76, "q", 28, 29) + blk(79, 77, "q", 28, 29) + L(f"""
    s_cmp_lt_u32 s22, 12
    s_cselect_b32 s80, s78, s80
    s_cselect_b32 s81, s79, s81
    s_cmp_ge_u32 s76, 32
    s_cselect_b32 s80, {OOB}, s80
    s_cmp_ge_u32 s77, 32
    s_cselect_b32 s81, {OOB}, s81
    s_lshl_b32 s28, s51, 11
    s_add_u32 s82, s81, s28              ; row tile 4
    s_add_u32 s29, s80, 2048
    s_add_u32 s80, s80, s28              ; row tile 0
    s_cmp_eq_u32 s51, 0
    s_cselect_b32 s81, s29, s81          ; row tile 2
    s_mul_i32 s61, s23, 5
    s_mul_i32 s28, s52, 3
    s_add_u32 s62, s61, s28
    s_add_u32 s63, s62, 1
    s_add_u32 s61, s61, 2
    s_lshl_b32 s28, s23, 1
    s_add_u32 s28, s28, s52
    s_add_u32 s29, s28, 22
    s_add_u32 s30, s23, 43
    s_cmp_lt_u32 s22, 12
    s_cselect_b32 s62, s62, s28
    s_cselect_b32 s63, s63, s29
    s_cselect_b32 s61, s61, s30
    s_cselect_b32 s75, {OOB}, {FPD}
    s_cmp_eq_u32 s63, 43
    s_cselect_b32 s63, {OOB >> 13}, s63
    """) + cell(62, 62, 28) + cell(63, 63, 28) + cell(61, 61, 28) + L(f"""
    s_lshl_b32 s28, s52, 9
    s_add_u32 s61, s61, s28
    s_mul_i32 s67, s22, 12
    s_add_u32 s67, s67, s21
    s_lshl_b32 s67, s67, 7
    s_add_u32 s67, s67, {FP}
    s_cmp_eq_u32 s20, 0
    s_cselect_b32 s67, s67, {OOB}
    s_add_u32 s75, s75, s67
    """)
def setup_t():
    return L(f"""
    v_add_u32 v{VX}, s62, v4
    v_add_u32 v{VX+1}, s63, v4
    v_and_b32 v3, 1, v2
    v_lshlrev_b32 v3, 10, v3
    v_lshrrev_b32 v254, 1, v2
    v_lshl_add_u32 v3, v254, 8, v3
    v_lshl_add_u32 v3, v1, 4, v3
    v_add_u32 v{VX+2}, s61, v3
    v_mov_b32 v{VX+4}, 0x358637bd
    v_mov_b32 v{VX+5}, 0x358637bd
    """)
def setup_n0():
    a = A()
    a(f"""
    v_and_b32 v1, 15, v7
    v_lshrrev_b32 v2, 4, v7
    v_cmp_gt_u32 s[32:33], 8, v1
    s_cmp_eq_u32 s21, 10
    s_cselect_b32 s36, s51, 0
    s_lshl_b32 s37, s22, 1
    s_add_u32 s37, s37, s52
    s_lshl_b32 s37, s37, 12
    s_add_u32 s37, s37, {KVP}
    s_lshl_b32 s60, s20, 12
    s_add_u32 s60, s60, {KVX}
    v_and_b32 v254, 31, v7
    v_add_u32 v254, 224, v254
    """)
    for n, (kx, vy) in enumerate(PRODS):
        eoff = {3: -8, 4: 8, 5: 24}[vy]; o = 252
        a(f"""
        v_add_u32 v3, {4*kx}, v2
        v_cmp_le_u32 vcc, 5, v3
        v_add_u32 v{o}, {eoff}, v1
        v_cmp_gt_u32 s[62:63], 10, v3
        v_cndmask_b32 v253, 0, 20, vcc
        v_sub_u32 v{o}, v{o}, v253
        """)
        if vy == 3: a(f"v_cmp_eq_u32 vcc, 0, v1\nv_cndmask_b32 v253, v{o}, 0, vcc\nv_cndmask_b32 v{o}, v{o}, 20, vcc\nv_cmp_gt_u32 vcc, 20, v253")
        else: a(f"v_cmp_gt_u32 vcc, 20, v{o}")
        a(f"""
        v_mad_u32_u24 v{o}, v3, 21, v{o}
        s_and_b64 vcc, vcc, s[62:63]
        v_cndmask_b32 v{o}, v254, v{o}, vcc
        v_lshl_add_u32 v{o}, v{o}, 4, s60
        v_accvgpr_write_b32 a{244+n}, v{o}
        """)
    return list(a)
def setup_n():
    return L(f"s_mov_b32 s30, {LOG2E}\ns_mov_b32 s31, {LOG2E}") + [f"  v_accvgpr_read_b32 v{KVOF[n]}, a{244+n}" for n in range(8)]

def g1_main(tg, tr, st):
    a = A()
    pf = OPT["pf_t"] if tr else OPT["pf_n"]
    a += W("c0"); a("s_barrier"); a += stamp("k0")
    a += g1_reads(0) + W(lg="r0")
    a += place(g1_mfma(0, tr, True) + g1_cs(0), [(g1_reads(1), 0, 17), (dma_x(2) + dma_w(2), 0, 33)])
    a += W(lg="r1")
    a += g1_cs(1)
    PKD, PKR, PKS = (OPT["pkd"], OPT["pkr"], OPT["pks"]) if tr else (None, None, {})
    pk_d = []
    for i in range(5):
        pk_d += [f"  s_add_u32 m0, s53, {896*i}", f"  buffer_load_dwordx4 v252, s[56:59], s55 offen offset:{128*i} nt lds ;#pk"]
    pk_r = []
    for t in range(5):
        if t: pk_r += L(f"s_cmp_eq_u32 s20, {4-t}\ns_cselect_b32 s28, 896, 0\nv_add_u32 v1, s28, v1\nv_add_u32 v2, s28, v2")
        pk_r += [f"  ds_read_b64_tr_b16 {ar(16+4*t,2)}, v1 offset:{32*t}", f"  ds_read_b64_tr_b16 {ar(18+4*t,2)}, v2 offset:{32*t}"]
    pk_s = [f"  buffer_store_dwordx4 {ar(16+4*t)}, v{4 if t < 4 else 5}, s[16:19], s{60 if c == 0 else 53} offen offset:{1024*(t%4)} sc1 ;#ps" for t in range(5) for c in range(2 if OPT["mode"] == "dup" else 1)]
    pk_r.append("  s_add_u32 s53, s60, 8192")
    cs_st = L(f"""
    v_cmp_le_u32 vcc, 16, v7
    v_cmp_le_u32 s[28:29], 32, v7
    v_cmp_le_u32 s[30:31], 48, v7
    v_cndmask_b32 v{CS+17}, v{CS}, v{CS+4}, vcc
    v_cndmask_b32 v{CS+17}, v{CS+17}, v{CS+8}, s[28:29]
    v_cndmask_b32 v{CS+17}, v{CS+17}, v{CS+12}, s[30:31]
    buffer_store_dword v{CS+17}, v253, s[16:19], s64 offen sc1 ;#cs
    buffer_store_dword v{CS+16}, v254, s[16:19], s64 offen sc1 ;#cs
    """) + [f"  v_add_u32 v{L2B+i}, {2*STAGE}, v{LA+i}" for i in range(5)]
    auxa = L(f"""
    v_lshlrev_b32 v3, 4, v0
    v_add_u32 v252, s74, v3
    v_add_u32 v253, 4096, v252
    v_cmp_le_u32 vcc, 144, v0
    v_add_u32 v3, s65, v3
    v_cmp_le_u32 s[28:29], s66, v0
    v_cndmask_b32 v253, v253, v3, vcc
    v_add_u32 v3, {RSTD - NEGM - 768}, v3
    v_cmp_le_u32 vcc, 240, v0
    v_cndmask_b32 v253, v253, v3, s[28:29]
    v_mov_b32 v3, {OOB}
    v_cndmask_b32 v253, v253, v3, vcc
    v_and_b32 v1, 15, v7
    v_lshrrev_b32 v2, 4, v7
    """)
    polx = [f"  s_xor_b32 s{r}, s{r}, s3" for r in ((46, 70, 80, 81, 82) if OPT["mode"] == "dup" else (80, 81, 82))]
    aux = L(f"""
    s_mov_b32 m0, s72
    s_nop 0
    buffer_load_dwordx4 v252, s[16:19], 0 offen sc1 lds ;#aux
    s_add_u32 m0, s72, 4096
    s_nop 0
    buffer_load_dwordx4 v253, s[16:19], 0 offen sc1 lds ;#aux
    """) + flag("s73")
    y1 = L(f"v_lshlrev_b32 v252, 2, v0\nv_add_u32 v252, {AUXC}, v252") + tag([f"  ds_read_b32 v{CS+i}, v252 offset:{640*i}" for i in range(10)], "y1")
    y2 = [f"  v_add_f32 v{CS}, v{CS}, v{CS+i}" for i in range(1, 10)] + [f"  ds_write_b32 v252, v{CS} offset:{CSL-AUXC} ;#y2"]
    rd = L("s_mul_i32 s28, s51, 384\ns_add_u32 s28, s28, %d" % AUXM)
    if tr:
        rd += L(f"v_lshlrev_b32 v6, 4, v2\nv_add_u32 v252, s34, v6\nv_add_u32 v253, s35, v6\nv_lshl_add_u32 v3, v1, 2, s28")
        rd += [f"  ds_read_b128 {vr(CS+4*t)}, v252 offset:{64*t}" for t in range(4)] + [f"  ds_read_b128 {vr(CS+16)}, v253"]
        for T in range(6): rd += [f"  ds_read_b32 v{AB[0]+4*T}, v3 offset:{64*T}", f"  ds_read_b32 v{AB[0]+4*T+1}, v3 offset:{768+64*T}"]
    else:
        rd += L(f"v_lshlrev_b32 v6, 2, v1\nv_add_u32 v252, s34, v6\nv_lshl_add_u32 v3, v2, 4, s28")
        rd += [f"  ds_read_b32 v{CS+4*t}, v252 offset:{64*t}" for t in range(5)]
        for T in range(6): rd += [f"  ds_read_b128 {vr(AB[0]+4*T)}, v3 offset:{64*T}"]
        for T in range(5): rd += [f"  ds_read_b128 {vr(BB[0]+4*T)}, v3 offset:{768+64*T}"]
        rd += [f"  ds_read_b128 {vr(VX)}, v3 offset:{768+64*5}"]
    su = setup_t() if tr else setup_n()
    e0 = glue(setup_n0()); early = {} if tr else {6 + i: sum(e0[i*len(e0)//6:(i+1)*len(e0)//6], []) for i in range(6)}
    nb = 0; fb, pb = (OPT["flagb"] if tr else OPT["flagb_n"]), OPT["pollb"]; nps = 0
    for k in range(1, 20):
        c = (k - 1)//2
        M = g1_mfma(k & 1, tr, False)
        ls = []
        if k & 1:
            if k > 1: a += W(lg=[f"r{k}"] + (["y2"] if k == 19 else []) + (["pr"] if k - 1 == PKR else []))
            a.append(M.pop(0))
            vm = [f"c{c+1}"] if c < 9 else []
            if c == fb: vm += ["cs", "ss"] + (["ps"] if tr else [])
            if k == PKR: vm += ["pk"]
            if c == pb + 1: vm += ["pa"]
            if c == 8: vm += ["aux"]
            if vm: a += W(vm)
            if c == pb + 1: a += check(tg + "_sa", 6, VF)
            a("s_barrier")
            if c == 0: a += stamp("b0")
            if c == 7: a += stamp("tail")
            a += stamp(f"b{c}") if c > 0 else []
            if c == fb: ls.append((flag("s49"), 0, 2))
            if c == pb: ls.append((L(f"v_lshlrev_b32 v6, {OPT['fash']}, v0\nv_add_u32 v6, {FA}, v6") + poll(6, VF, "pa"), 0, 2))
            if c == pb + 1: ls.append((polx, 0, 2))
            if c == 7: ls.append(([x for x in aux], 0, 2))
            dx, dw = (dma_next(c+3) + dma_x(c+3), dma_w(c+3)) if c + 3 <= 9 else ([], [])
            if k == PKD: ls += [(pk_d, 0, 9), (dx[:-4], 14, 28)]
            else: ls.append((dx, 1, 27))
            if k == PKR: ls.append((tag(pk_r, "pr"), 10, 26))
            if c == 0: ls.append((cs_st, 12, 27))
            if c == 8: ls.append((y1, 8, 22))
        else:
            a += W(lg=[f"r{k}"] + (["y1"] if c == 8 else []) + (["pr"] if k - 1 == PKR else []))
            if k - 1 == PKD: ls.append((dx[-4:] + dw, 0, 28))
            else: ls.append((dw, 1, 27))
            if c == 6: ls.append((auxa, 17, 28))
            if c == 8: ls.append((y2, 0, 12))
        if PKS.get(k): ls.append((pk_s[nps:nps+PKS[k]], 2, 28 if nps + PKS[k] < len(pk_s) else 18)); nps += PKS[k]
        if k < 19: ls.insert(0, (g1_reads(k+1), 1 if k & 1 else 0, 17))
        else: ls.insert(0, (rd, 0, 22))
        if k == 16: ls.append((su, 18, 28))
        if k in early: ls.append((early[k], 4, 28))
        if k == OPT["cpf2"]:
            ls.append((L(f"v_add_u32 v{CS+8}, s50, v4\nv_min_u32 v{CS+8}, CODE_MAX, v{CS+8}\ns_cmp_gt_u32 s50, CODE_MAX\ns_cbranch_scc1 {tg}_c2\nglobal_load_dwordx4 {vr(CS+12)}, v{CS+8}, s[0:1] ;nocount\n{tg}_c2:"), 29 - (k & 1), 29 - (k & 1)))
        if pf.get(k):
            assert c > pb
            assert all(x[0] == "B" and x[1] < 60 for x in st.items[:pf[k]])
            ls.append((st.take(pf[k]), 3, 28))
        a += place(M, ls)
    a += stamp("lend")
    return a

def stats_math():
    a = A(); src = 8; tmp = 20; ac = 44
    for i in range(12):
        a(f"v_lshlrev_b32 v{tmp+2*i}, 16, v{src+i}\nv_and_b32 v{tmp+2*i+1}, 0xffff0000, v{src+i}")
    a(f"v_pk_add_f32 {vr(ac,2)}, {vr(tmp,2)}, {vr(tmp+2,2)}")
    for i in range(2, 12): a(f"v_pk_add_f32 {vr(ac,2)}, {vr(ac,2)}, {vr(tmp+2*i,2)}")
    def red():
        a(f"v_add_f32 v{ac}, v{ac}, v{ac+1}")
        for r in (8, 4, 2, 1): a(f"v_add_f32_dpp v{ac}, v{ac}, v{ac} row_ror:{r} row_mask:0xf bank_mask:0xf")
        a(f"v_mov_b32 v{ac+1}, v{ac}\nv_permlane16_swap_b32 v{ac}, v{ac+1}\nv_add_f32 v{ac}, v{ac}, v{ac+1}")
    red()
    a(f"v_mul_f32 v46, 0xbacccccd, v{ac}")
    a(f"v_cndmask_b32 v47, 0, v46, s[32:33]")
    for i in range(8): a(f"v_pk_add_f32 {vr(tmp+2*i,2)}, {vr(tmp+2*i,2)}, v[46:47] op_sel_hi:[1,0]")
    for i in range(8, 12): a(f"v_pk_add_f32 {vr(tmp+2*i,2)}, {vr(tmp+2*i,2)}, v[46:47] op_sel:[0,1] op_sel_hi:[1,1]")
    a(f"v_pk_mul_f32 {vr(ac,2)}, {vr(tmp,2)}, {vr(tmp,2)}")
    for i in range(1, 12): a(f"v_pk_fma_f32 {vr(ac,2)}, {vr(tmp+2*i,2)}, {vr(tmp+2*i,2)}, {vr(ac,2)}")
    red()
    a(f"""
    v_mov_b32 v{ac+1}, 0x3727c5ac
    v_fmac_f32 v{ac+1}, 0x3acccccd, v{ac}
    v_rsq_f32 v{ac+1}, v{ac+1}
    v_and_b32 v48, 31, v7
    v_cmp_eq_u32 vcc, 0, v48
    v_lshrrev_b32 v49, 5, v7
    v_lshlrev_b32 v49, 2, v49
    v_cndmask_b32 v46, v{ac+1}, v46, vcc
    v_lshl_add_u32 v49, v48, 13, v49
    v_cmp_gt_u32 vcc, 2, v48
    v_mov_b32 v50, {OOB}
    s_lshl_b32 s28, s48, 3
    s_add_u32 s28, s28, {NEGM}
    v_cndmask_b32 v49, v50, v49, vcc
    buffer_store_dword v46, v49, s[16:19], s28 offen sc1 ;#ss
    s_lshl_b32 s28, s2, 8
    s_add_u32 s28, s28, {KVP}
    s_cmp_eq_u32 s20, 1
    s_cselect_b32 s28, s28, {OOB}
    v_lshlrev_b32 v49, 2, v7
    v_mov_b32 v50, 0
    buffer_store_dword v50, v49, s[16:19], s28 offen sc1 ;#ss
    """)
    return list(a)

def prologue():
    a = A()
    a += stamp("entry")
    a(f"""
    s_cmp_ge_u32 s2, 256
    s_cbranch_scc1 k_end
    s_load_dwordx16 s[60:75], s[0:1], 0
    s_load_dwordx2 s[26:27], s[0:1], 64
    s_getpc_b64 s[36:37]
    v_lshrrev_b32 v1, 6, v0
    v_and_b32 v7, 63, v0                 ; lane
    v_readfirstlane_b32 s20, v1          ; wave
    v_lshlrev_b32 v4, 4, v7
    v_lshrrev_b32 v1, 5, v7
    v_mul_u32_u24 v1, {1280-512}, v1
    v_add_u32 v52, v1, v4
    v_and_b32 v1, 16, v7
    v_cmp_eq_u32 s[32:33], 0, v1
    v_mov_b32 v2, {OOB}
    s_lshl_b32 s48, s2, 2
    s_add_u32 s48, s48, s20              ; stats job
    s_mul_i32 s35, s48, 2560
    v_cndmask_b32 v53, v2, v52, s[32:33]
    s_and_b32 s3, s2, 7
    s_lshl_b32 s3, s3, 5
    s_lshr_b32 s21, s2, 3
    s_add_u32 s3, s3, s21                ; lin
    """)
    if OPT["cmaj"]:
        a("""
        s_mul_i32 s28, s3, 5958
        s_lshr_b32 s28, s28, 16              ; p = lin/11
        s_mul_i32 s29, s28, 11
        s_sub_u32 s21, s3, s29               ; rb
        s_add_u32 s44, s21, s28
        s_mul_i32 s29, s28, 86
        s_lshr_b32 s29, s29, 8               ; g = p/3
        s_sub_u32 s22, s28, s29
        s_add_u32 s22, s22, 7                ; 8 + 2g + r - 1
        s_mul_i32 s30, s29, 3
        s_cmp_eq_u32 s30, s28
        s_cselect_b32 s22, s29, s22
        """)
    else:
        a(f"""
    s_cmp_lt_u32 s3, 138
    s_cselect_b32 s28, 0, 138
    s_cselect_b32 s29, 10923, 13108
    s_cselect_b32 s30, 6, 5
    s_cselect_b32 s31, 0, 6
    s_sub_u32 s28, s3, s28
    s_mul_i32 s22, s28, s29
    s_lshr_b32 s22, s22, 16              ; ctq
    s_mul_i32 s30, s22, s30
    s_sub_u32 s21, s28, s30
    s_add_u32 s21, s21, s31              ; rb
    """)
        if OPT["snake"]: a("s_sub_u32 s28, 22, s22\ns_cmp_lt_u32 s3, 138\ns_cselect_b32 s22, s22, s28")
        a("s_add_u32 s44, s21, s22")
        if OPT.get("mix", 1):
            a("""
        s_mul_i32 s28, s22, 43
        s_lshr_b32 s28, s28, 8               ; g = p/6
        s_mul_i32 s29, s28, 6
        s_sub_u32 s29, s22, s29              ; r
        s_mul_i32 s30, s28, 3
        s_add_u32 s30, s30, s29
        s_add_u32 s30, s30, 9                ; w1: 12+3g+r-3
        s_lshl_b32 s31, s28, 1
        s_add_u32 s31, s31, s29
        s_sub_u32 s31, s31, 1                ; kv: 2g+r-1
        s_add_u32 s28, s28, 8                ; q
        s_cmp_lt_u32 s29, 3
        s_cselect_b32 s22, s31, s30
        s_cmp_eq_u32 s29, 0
        s_cselect_b32 s22, s28, s22
        """)
    a(f"""
    s_cmp_ge_u32 s3, 253
    s_cselect_b32 s21, 11, s21
    s_cselect_b32 s22, 12, s22
    s_waitcnt lgkmcnt(0)
    """)
    a += stamp("karg")
    a += srd(8, 60, S*D*2)
    for j in range(3): a(f"buffer_load_dwordx4 {vr(8+4*j)}, v{53 if j == 2 else 52}, s[8:11], s35 offen offset:{512*j} ;#sl")
    a(f"""
    s_load_dword s39, s[26:27], 0
    s_cmp_ge_u32 s21, 10
    s_cselect_b32 s54, 9, s21            ; start chunk
    s_mul_i32 s28, s21, 192
    s_mul_i32 s29, s20, 48
    s_add_u32 s28, s28, s29
    s_mul_i32 s28, s28, 1280
    v_lshrrev_b32 v1, 3, v7              ; r8
    v_lshrrev_b32 v2, 1, v1
    v_and_b32 v3, 7, v7
    v_xor_b32 v2, v2, v3
    v_mul_u32_u24 v1, 1280, v1
    v_lshl_add_u32 v252, v3, 4, v1
    v_add_u32 v1, s28, v1
    v_lshl_add_u32 v3, v2, 4, v1
    v_xor_b32 v2, 4, v2
    v_lshl_add_u32 v6, v2, 4, v1
    """)
    for j in range(6): a(f"v_add_u32 v{VX+j}, {j*10240 - 1024*(j%4)}, v{6 if j & 1 else 3}")
    a("s_mul_i32 s40, s20, 6144\ns_lshl_b32 s42, s54, 7")
    a += dma_x(0)
    a(f"""
    s_cmp_lt_u32 s22, 12
    s_cselect_b32 s12, s62, s68
    s_cselect_b32 s13, s63, s69
    s_cselect_b32 s14, {D*3*D*2}, {D*F*2}
    s_cselect_b32 s50, 3840, 3456        ; W row stride
    s_cselect_b32 s28, 8, 12
    s_and_b32 s13, s13, 0xffff
    s_mov_b32 s15, 0x20000
    s_lshl_b32 s45, s50, 6
    s_sub_u32 s23, s22, s28
    """)
    if not OPT["wrow"]:
        a(f"""
    s_lshl_b32 s28, s20, 4
    v_lshrrev_b32 v1, 2, v7
    v_add_u32 v1, s28, v1
    v_mul_lo_u32 v1, v1, s50             ; row*stride
    v_lshrrev_b32 v2, 4, v7
    v_and_b32 v2, 2, v2
    v_and_b32 v3, 3, v7
    v_xor_b32 v2, v2, v3                 ; p'
    v_lshl_add_u32 v1, v2, 4, v1
    s_mul_i32 s29, s23, 320
    s_mul_i32 s30, s22, 160
    s_add_u32 s30, s30, 1280
    s_cmp_lt_u32 s22, 8
    s_cselect_b32 s29, s30, s29
    s_cselect_b32 s30, 1200, 0
    s_cselect_b32 s31, -1280, 0
    v_add_u32 v{VW}, s29, v1
    v_mov_b32 v1, s30
    v_mov_b32 v3, s31
    v_cmp_le_u32 vcc, 1, v2
    s_add_u32 s28, s30, 128
    s_add_u32 s29, s28, s31
    v_cndmask_b32 v6, 0, v1, vcc
    v_cmp_le_u32 vcc, 2, v2
    v_add3_u32 v{VW+1}, v{VW}, 64, v6
    s_add_u32 s29, s29, 64
    v_cndmask_b32 v6, 0, v3, vcc
    v_cmp_le_u32 vcc, 3, v2
    v_add3_u32 v{VW+2}, v{VW}, s28, v6
    s_add_u32 s28, s29, s30
    v_cndmask_b32 v6, 0, v1, vcc
    s_add_u32 s28, s28, 64
    v_add3_u32 v{VW+3}, v{VW}, s29, v6
    v_add_u32 v{VW+4}, s28, v{VW}
    """)
    else:
        a(f"""
        s_mul_i32 s29, s23, 320
        s_mul_i32 s30, s22, 160
        s_add_u32 s30, s30, 1280
        s_cmp_lt_u32 s22, 8
        s_cselect_b32 s29, s30, s29
        s_cselect_b32 s30, 1200, 0
        s_cselect_b32 s31, -80, 0
        s_lshl_b32 s28, s20, 4
        s_mul_i32 s28, s28, s50
        s_add_u32 s29, s29, s28
        """)
        for jj in range(5):
            a(f"""
            v_add_u32 v1, {64*jj}, v7
            v_mul_u32_u24 v2, 3277, v1
            v_lshrrev_b32 v2, 16, v2
            v_mul_u32_u24 v3, 20, v2
            v_sub_u32 v3, v1, v3
            v_lshrrev_b32 v1, 2, v2
            v_and_b32 v1, 2, v1
            v_xor_b32 v3, v3, v1              ; c'
            v_mul_u32_u24 v2, s50, v2
            v_lshl_add_u32 v2, v3, 4, v2
            v_mul_u32_u24 v3, 205, v3
            v_bfe_u32 v1, v3, 10, 1
            v_lshrrev_b32 v3, 11, v3
            v_mad_u32_u24 v2, v1, s30, v2
            v_mad_i32_i24 v2, v3, s31, v2
            v_add_u32 v2, s29, v2
            v_subrev_u32 v{VW+jj}, {1024*(jj%4)}, v2
            """)
    a(f"""
    s_mul_i32 s41, s20, 5120
    s_add_u32 s41, s41, {WOFF}
    s_mul_i32 s43, s54, s45
    s_and_b32 s36, s36, 0xffffff00
    s_lshr_b32 s28, s2, 3
    s_lshl_b32 s29, s20, 5
    s_add_u32 s28, s28, s29
    s_add_u32 s28, s28, 2
    s_mov_b64 s[0:1], s[36:37]
    s_lshl_b32 s50, s28, 10
    s_cmp_ge_u32 s28, CODE_KB
    s_cbranch_scc1 k_nocp
    v_add_u32 v1, s50, v4
    v_min_u32 v1, CODE_MAX, v1
    global_load_dwordx4 v[128:131], v1, s[0:1] ;nocount
    k_nocp:
    """)
    su = A()
    su += srd(16, 26, WS_USED)
    su += srd(4, 72, S*D*2)
    su(f"""
    v_add_u32 v5, 4096, v4
    s_lshr_b32 s51, s20, 1               ; wr
    s_and_b32 s52, s20, 1                ; wc
    s_sub_u32 s36, s22, 8
    s_mul_i32 s36, s36, 11
    s_add_u32 s36, s36, s21
    s_cmp_ge_u32 s21, 11
    s_cselect_b32 s36, 160, s36
    s_lshr_b32 s37, s36, 1               ; ks
    s_and_b32 s38, s36, 1
    s_cmp_lt_u32 s37, 54
    s_cselect_b32 s56, s70, s64
    s_cselect_b32 s57, s71, s65
    s_cselect_b32 s58, {F*D*2}, {D*D*2}
    s_cselect_b32 s28, 0, 54
    s_and_b32 s57, s57, 0xffff
    s_mov_b32 s59, 0x20000
    s_sub_u32 s28, s37, s28
    s_mul_i32 s28, s28, {32*1280}
    s_mul_i32 s29, s38, 640
    s_add_u32 s55, s28, s29
    s_mul_i32 s29, s20, 10240
    s_add_u32 s55, s55, s29              ; pack src (8 rows per wave)
    s_mul_i32 s53, s20, 5120
    s_add_u32 s53, s53, {PACKL}
    s_and_b32 s3, s2, 7
    """)
    if OPT["mode"] == "cols":
        su(f"s_and_b32 s24, s3, 3\ns_lshl_b32 s24, s24, 3\ns_lshr_b32 s28, s2, 5\ns_add_u32 s24, s24, s28\ns_bfe_u32 s25, s2, 0x20003\ns_and_b32 s28, s3, 4\ns_xor_b32 s28, s28, {4*OPT['pol']}\ns_add_u32 s25, s25, s28")
    elif OPT["p2map"] == 0:
        su("s_lshl_b32 s24, s3, 2\ns_lshr_b32 s28, s2, 6\ns_add_u32 s24, s24, s28\ns_bfe_u32 s25, s2, 0x30003")
    else:
        su("s_lshr_b32 s24, s3, 1\ns_lshl_b32 s24, s24, 3\ns_lshr_b32 s28, s2, 5\ns_add_u32 s24, s24, s28\ns_bfe_u32 s25, s2, 0x20003\ns_and_b32 s28, s3, 1\ns_lshl_b32 s28, s28, 2\ns_add_u32 s25, s25, s28")
    su(f"""
    s_mul_i32 s28, s37, 205
    s_lshr_b32 s28, s28, 10              ; c
    s_mul_i32 s30, s28, 5
    s_sub_u32 s30, s37, s30              ; r
    s_lshl_b32 s29, s30, 3
    s_mov_b32 s47, 0x01001600            ; r -> 0, 22, -, 1
    s_lshr_b32 s47, s47, s29
    s_and_b32 s47, s47, 255
    s_cmp_eq_u32 s30, 4
    s_cselect_b32 s47, 23, s47
    s_lshl_b32 s29, s28, 1
    s_add_u32 s47, s47, s29
    s_add_u32 s28, s28, 43
    s_cmp_eq_u32 s30, 2
    s_cselect_b32 s31, 1, 0
    s_cselect_b32 s47, s28, s47
    s_cmp_ge_u32 s37, 54
    s_cselect_b32 s31, 1, s31
    s_cselect_b32 s47, s37, s47          ; storage index
    s_cmp_eq_u32 s31, 1
    s_cselect_b32 s28, 10240, 5120       ; per g>>1
    s_cselect_b32 s29, 5120, 512         ; per g&1
    s_cselect_b32 s30, 512, 10240
    v_lshrrev_b32 v59, 4, v7             ; g
    v_bfe_u32 v56, v7, 2, 2              ; rr
    v_and_b32 v57, 3, v7                 ; c4
    v_and_b32 v58, 1, v59                ; g&1
    v_lshrrev_b32 v55, 1, v59
    v_mul_u32_u24 v1, s28, v55
    v_mad_u32_u24 v1, v58, s29, v1
    v_lshl_add_u32 v1, v56, 7, v1
    v_lshl_add_u32 v1, v57, 3, v1
    s_mul_i32 s28, s20, 1056
    s_add_u32 s28, s28, {PACKL}
    v_add_u32 v1, s28, v1
    v_add_u32 v2, s30, v1
    s_lshl_b32 s28, s38, 2
    s_add_u32 s28, s28, s20              ; ct
    s_add_u32 s28, s28, {WPP}
    s_lshl_b32 s28, s28, 21
    s_lshl_b32 s29, s47, 14
    s_add_u32 s28, s28, s29
    s_bfe_u32 s29, s47, 0x10001
    s_mul_i32 s29, s29, 3072
    s_add_u32 s28, s28, s29
    """)
    if OPT["mode"] in ("rows", "none"): su("s_bfe_u32 s29, s47, 0x10001\ns_lshl_b32 s29, s29, 13\ns_add_u32 s28, s28, s29")
    if OPT["mode"] == "cols": su(f"s_lshr_b32 s29, s28, 21\ns_xor_b32 s29, s29, s38\ns_and_b32 s29, s29, 1\ns_lshl_b32 s29, s29, 13\ns_add_u32 s28, s28, s29")
    su(f"""
    s_cmp_ge_u32 s36, 148
    s_cselect_b32 s60, {OOB}, s28
    """)
    su(f"""
    v_and_b32 v3, 15, v7                 ; m
    v_lshrrev_b32 v6, 1, v3
    v_xor_b32 v6, v6, v59
    s_mul_i32 s28, s51, 12288
    v_lshl_add_u32 v55, v3, 7, s28
    v_lshl_add_u32 v{LA}, v6, 4, v55
    v_xor_b32 v6, 4, v6
    v_lshl_add_u32 v{LA+1}, v6, 4, v55
    """)
    if OPT["wrow"]: su("v_lshl_add_u32 v55, v59, 3, v56\nv_mul_u32_u24 v55, 320, v55")
    else: su("v_lshrrev_b32 v55, 1, v59\nv_mul_u32_u24 v55, 5120, v55\nv_lshl_add_u32 v55, v58, 9, v55\nv_lshl_add_u32 v55, v56, 6, v55")
    su(f"""
    v_lshl_add_u32 v55, v57, 3, v55
    v_add_u32 v55, {WOFF}, v55
    s_cmp_lt_u32 s22, 8
    s_cselect_b32 s28, 5, 6
    s_cselect_b32 s29, 9, 5
    s_cmp_eq_u32 s52, 0
    s_cselect_b32 s28, 0, s28
    s_cselect_b32 s29, 4, s29
    s_add_u32 s30, s28, 1
    """)
    for i, sreg in enumerate((28, 30, 29)):
        su(f"""
        s_and_b32 s64, s{sreg}, 1
        s_lshr_b32 s65, s{sreg}, 1
        s_lshl_b32 s65, s65, {6 if OPT["wrow"] else 10}
        v_xor_b32 v6, s64, v58
        v_lshl_add_u32 v6, v6, 5, v55
        v_add_u32 v{LB+i}, s65, v6
        """)
    su(f"""
    s_lshl_b32 s28, s28, 6
    s_lshl_b32 s29, s29, 6
    v_lshl_add_u32 v253, v7, 2, s28
    v_lshl_add_u32 v254, v7, 2, s29
    v_cmp_gt_u32 vcc, 16, v7
    v_mov_b32 v6, {OOB}
    s_add_u32 s34, s28, {CSL}
    s_add_u32 s35, s29, {CSL}
    v_cndmask_b32 v254, v6, v254, vcc
    s_mul_i32 s74, s22, 6400
    s_add_u32 s74, s74, {CSP}
    s_mul_i32 s64, s21, 640
    s_add_u32 s64, s64, s74
    s_cmp_ge_u32 s21, 10
    s_cselect_b32 s64, {OOB}, s64
    s_cmp_eq_u32 s51, 1
    s_cselect_b32 s64, {OOB}, s64
    v_mov_b32 v6, 0x3f803f80
    v_accvgpr_write_b32 a{ONES}, v6
    v_accvgpr_write_b32 a{ONES+1}, v6
    v_accvgpr_write_b32 a{ONES+2}, v6
    v_accvgpr_write_b32 a{ONES+3}, v6
    s_lshl_b32 s49, s2, {OPT['fash']}
    s_add_u32 s49, s49, {FA}
    s_cmp_eq_u32 s20, 0
    s_cselect_b32 s49, s49, {OOB}
    s_add_u32 s73, s2, s20
    s_cmp_eq_u32 s73, 0
    s_cselect_b32 s73, 0, {OOB}
    s_add_u32 s29, s25, {WPP}
    s_lshr_b32 s28, {"s25, 2" if OPT["mode"] == "cols" else "s24, 4"}
    s_xor_b32 s28, s28, s29
    s_and_b32 s28, s28, {0 if OPT["mode"] in ("rows", "none") else 1}
    s_lshl_b32 s28, s28, 13
    s_lshl_b32 s29, s29, 21
    s_add_u32 s29, s29, s28
    s_lshl_b32 s28, s20, 14
    s_add_u32 s29, s29, s28
    s_mul_i32 s28, s51, {3072 + (8192 if OPT["mode"] in ("rows", "none") else 0)}
    s_add_u32 s46, s29, s28              ; B stream first
    s_sub_u32 s70, s29, s28
    s_add_u32 s70, s70, {54*16384 + 3072 + (8192 if OPT["mode"] in ("rows", "none") else 0)}
    s_mul_i32 s69, s20, 5120
    s_mov_b32 s3, {0 if OPT["mode"] in ("cols", "none") else OPT["pol"] << 13}
    s_lshl_b32 s72, s20, 10
    s_add_u32 s72, s72, {AUXC}
    s_mul_i32 s65, s21, 768
    s_add_u32 s65, s65, {NEGM - 144*16}
    s_movk_i32 s66, 192
    """)
    if OPT["krot"] == 2: su("s_and_b32 s67, s44, 1\ns_mul_i32 s67, s67, 5")
    if OPT["krot"] == 3: su("s_mul_i32 s28, s44, 86\ns_lshr_b32 s28, s28, 8\ns_mul_i32 s28, s28, 3\ns_sub_u32 s28, s44, s28\ns_mul_i32 s67, s28, 7\ns_lshr_b32 s67, s67, 1")
    if OPT["krot"] == 5: su("s_mul_i32 s28, s44, 52\ns_lshr_b32 s28, s28, 8\ns_mul_i32 s28, s28, 5\ns_sub_u32 s28, s44, s28\ns_lshl_b32 s67, s28, 1")
    a += inter(su, grp(dma_w(0), 1))
    a += stamp("c0i")
    a += dma_next(1)
    a += W("sl")
    a += stamp("sl")
    a += inter(setup_s() + stats_math(), grp(dma_x(1) + dma_w(1), 1))
    a += dma_next(2)
    a("s_waitcnt lgkmcnt(0)\ns_mul_i32 s39, s39, 1664525\ns_add_u32 s39, s39, 1013904223")
    a += stamp("pend")
    return a

def zipw(*ls):
    keyed = []
    for li, l in enumerate(ls):
        for j, x in enumerate(l): keyed.append(((j + 0.5)/len(l), li, j, x))
    keyed.sort(key=lambda t: t[:3])
    return [y for k in keyed for y in k[3]]
def epi_t(kind, st):
    RC = AB[0]; PK = AB[1]; TMP = BB[0]
    e = A()
    for T in range(6):
        c = RC + 4*T
        e(f"v_mul_f32 v{c+2}, s83, v{c+1}")
        if kind == "silu": e(f"v_rcp_f32 v{c+3}, v{c+1}")
    blocks = [[(T, i) for T in Ts for i in idx] for idx in ((0, 1, 2, 3), (4, 5, 6, 7)) for Ts in ((0, 1), (2, 3), (4, 5))]
    blocks.append([(T, i) for T in range(6) for i in (8, 9)])
    nxt = lambda T: f"  s_mov_b32 s48, s{81 if T == 1 else 82}" if T in (1, 3) else "  s_add_u32 s48, s48, 1024"
    pend = []
    for bi, blk in enumerate(blocks):
        V = []; n = len(blk)
        u = lambda k: acc(blk[k][0], 0) + 2*blk[k][1]
        c = lambda k: RC + 4*blk[k][0]
        for k in range(n): V.append(f"  v_pk_fma_f32 {vr(u(k),2)}, {vr(CS+2*blk[k][1],2)}, {vr(c(k),2)}, {vr(u(k),2)} op_sel_hi:[1,0,1]")
        for k in range(n): V.append(f"  v_pk_mul_f32 {vr(TMP+2*k,2)}, {vr(u(k),2)}, {vr(c(k)+2,2)} op_sel_hi:[1,0]")
        if kind == "silu":
            for k in range(2*n): V.append(f"  v_exp_f32 v{TMP+k}, v{TMP+k}")
            for k in range(n): V.append(f"  v_pk_fma_f32 {vr(TMP+2*k,2)}, {vr(TMP+2*k,2)}, {vr(c(k)+2,2)}, {vr(c(k)+2,2)} op_sel:[0,1,1] op_sel_hi:[1,1,1]")
            for k in range(2*n): V.append(f"  v_rcp_f32 v{TMP+k}, v{TMP+k}")
            fin = lambda k: f"  v_pk_mul_f32 {vr(u(k),2)}, {vr(u(k),2)}, {vr(TMP+2*k,2)}"
        else:
            for k in range(2*n): V.append(f"  v_exp_f32_e64 v{TMP+k}, v{TMP+k} clamp")
            for k in range(n): V.append(f"  v_pk_fma_f32 {vr(u(k),2)}, {vr(u(k),2)}, {vr(c(k),2)}, 1.0 op_sel:[0,1,0] op_sel_hi:[1,1,0]")
            for k in range(2*n): V.append(f"  v_max_f32 v{u(k//2)+(k&1)}, v{u(k//2)+(k&1)}, v{TMP+k}")
            fin = lambda k: f"  v_pk_add_f32 {vr(u(k),2)}, {vr(u(k),2)}, {vr(VX+4,2)}"
        items = pend + grp(st.take(OPT["epi"][bi]), 1)
        if bi == OPT["f1blk"]: items.insert(len(pend) + OPT["f1pos"], W("sa") + L("s_barrier") + flag("s75") + stamp("f1"))
        ins = {}
        for k, x in enumerate(items): ins[5 + (k*(len(V) - 6)//len(items))//2*2] = x
        for i, v in enumerate(V):
            e.append(v)
            if i in ins: e += ins[i]
        p = PK + 12*(bi & 1); tg = " ;#sa" if bi < 3 else ""
        if bi in (0, 3, 6): e("s_mov_b32 s48, s80")
        pend = []
        for q in range(n//4):
            for k in range(4*q, 4*q + 4): e.append(fin(k))
            for k in range(4*q, 4*q + 4): e(f"v_cvt_pk_bf16_f32 v{p+k}, v{u(k)}, v{u(k)+1}")
            if bi < 6:
                T = blk[4*q][0]
                stv = [f"  buffer_store_dwordx4 {vr(p+4*q)}, v{VX + bi//3}, s[16:19], s48 offen sc1{tg}"]
                if T < 5: stv.append(nxt(T))
                if q == 0: e += stv
                else: pend.append(stv)
            else:
                e(f"v_permlane16_swap_b32 v{p+4*q}, v{p+4*q+2}\nv_permlane16_swap_b32 v{p+4*q+1}, v{p+4*q+3}")
                e(f"buffer_store_dwordx4 {vr(p+4*q)}, v{VX+2}, s[16:19], s48 offen sc1")
                if q < 2: e.append(nxt(2*q+1))
    return resolve(e)

def epi_kv(st):
    a = A()
    NM = AB[0]; TMP = BB[1]; FR = AB[1]; DD = ACC
    def RSf(T): return BB[0] + 4*T if T < 5 else VX
    a(f"""
    v_mov_b32 v{TMP+12}, 0x358637bd
    v_mov_b32 v{TMP+13}, 0x358637bd
    v_mov_b32 v{TMP+14}, 0x3f803f80
    s_waitcnt lgkmcnt(0)
    """)
    def kvm(P): return [f"  v_mfma_f32_16x16x32_bf16 {vr(DD+4*n)}, {vr(FR+4*kx)}, {vr(FR+4*vy)}, {'0' if P == 0 else vr(DD+4*n)}" for n, (kx, vy) in enumerate(PRODS)]
    for P in range(3):
        for h in range(2):
            T = 2*P + h; u0 = acc(T, 0); nm = NM + 4*T; rs = RSf(T); b = A()
            for t in range(5):
                for i in range(2):
                    r = u0 + 4*t + 2*i
                    b(f"v_pk_fma_f32 {vr(r,2)}, {vr(nm+2*i,2)}, {vr(CS+4*t,2)}, {vr(r,2)} op_sel_hi:[1,0,1]")
            for t in range(5):
                for i in range(2):
                    r = u0 + 4*t + 2*i
                    b(f"v_pk_mul_f32 {vr(r,2)}, {vr(r,2)}, {vr(rs+2*i,2)}")
            for i in range(6): b(f"v_pk_mul_f32 {vr(TMP+2*i,2)}, {vr(u0+2*i,2)}, s[30:31]")
            for i in range(12): b(f"v_exp_f32_e64 v{TMP+i}, v{TMP+i} clamp")
            for t in range(2, 5):
                for i in range(2): b(f"v_cvt_pk_bf16_f32 v{FR+4*(t+1)+2*h+i}, v{u0+4*t+2*i}, v{u0+4*t+2*i+1}")
            for i in range(2): b(f"v_cndmask_b32 v{FR+12+2*h+i}, v{FR+12+2*h+i}, v{TMP+14}, s[32:33]")
            for i in range(6): b(f"v_pk_add_f32 {vr(u0+2*i,2)}, {vr(u0+2*i,2)}, 1.0 op_sel_hi:[1,0]")
            for i in range(12): b(f"v_max_f32 v{u0+i}, v{u0+i}, v{TMP+i}")
            for i in range(6): b(f"v_pk_add_f32 {vr(u0+2*i,2)}, {vr(u0+2*i,2)}, {vr(TMP+12,2)}")
            for t in range(3):
                for i in range(2): b(f"v_cvt_pk_bf16_f32 v{FR+4*t+2*h+i}, v{u0+4*t+2*i}, v{u0+4*t+2*i+1}")
            n = OPT["epi_n"][T]
            a += inter(b, grp(st.take(n), 1), 2) if n else b
        if P: a(f"s_cmp_eq_u32 s36, 1\ns_cbranch_scc1 k_kvs{P}")
        for n, (kx, vy) in enumerate(PRODS):
            d = vr(DD + 4*n)
            a(f"v_mfma_f32_16x16x32_bf16 {d}, {vr(FR+4*kx)}, {vr(FR+4*vy)}, {'0' if P == 0 else d}")
        if P: a(f"k_kvs{P}:")
    a += stamp("kvv")
    a(f"""
    s_mul_i32 s28, s51, 1792
    s_add_u32 s37, s37, s28
    s_lshl_b32 s29, s52, 12
    s_add_u32 s28, s28, s29
    s_add_u32 s28, s28, {KVX}
    v_lshlrev_b32 v2, 2, v7
    v_add_u32 v3, s28, v2
    s_cmp_eq_u32 s51, 0
    s_cselect_b32 s28, 64, 8
    v_cmp_gt_u32 vcc, s28, v7
    v_mov_b32 v6, {OOB}
    """)
    for n in range(8): a(f"ds_write_b128 v{KVOF[n]}, {vr(DD+4*n)}")
    a("v_cndmask_b32 v6, v6, v2, vcc\ns_waitcnt lgkmcnt(0)\ns_barrier")
    for n in range(7): a(f"ds_read2st64_b32 {vr(72+2*n,2)}, v3 offset0:{n} offset1:{32+n}")
    for n in range(7):
        a(f"s_waitcnt lgkmcnt({6-n})\nv_add_f32 v{72+2*n}, v{72+2*n}, v{73+2*n}")
        a(f"buffer_atomic_add_f32 v{72+2*n}, v{6 if n == 6 else 2}, s[16:19], s37 offen offset:{256*n}")
    a += stamp("kvs")
    return a

def phase2(st):
    a = A()
    G = 8; AR = 88; NA = 4; SA = 208; XB = 228
    AV = [244, 245, 246, 247]; RW = [248, 249, 250]; XA = [251, 252, 253]
    GA = 152; DB = 208; KA = 236; OA = 0; UA = 237; FW = 238
    g1 = OPT["gap1"]; psched = OPT["psched"]; wtr = OPT["wtrail"]; F1A = 239; OB = 235
    s1 = L(f"""
    s_cmp_eq_u32 s20, 0
    s_cselect_b32 s55, 0, {OOB}
    s_cselect_b64 s[56:57], -1, 0
    s_and_b32 s21, s2, 3
    s_lshl_b32 s21, s21, 2
    s_bfe_u32 s28, s2, 0x20003
    s_add_u32 s21, s21, s28              ; hp
    s_and_b32 s23, s2, 4
    s_lshl_b32 s23, s23, 1
    s_lshr_b32 s28, s2, 5
    s_add_u32 s23, s23, s28              ; rg
    s_mul_i32 s28, s24, 21846
    s_lshr_b32 s28, s28, 16
    s_add_u32 s28, s28, 144              ; W1 lines: (12+i)*12 + rb, lanes 0..10
    s_lshr_b32 s29, s21, 1
    s_mul_i32 s29, s29, 12
    s_sub_u32 s29, s29, 11               ; KV lines: kvct*12 + (i-11), lanes 11..21
    s_lshl_b32 s30, s23, 1
    s_mul_i32 s31, s30, 21846
    s_lshr_b32 s31, s31, 16
    s_add_u32 s30, s30, 1
    s_mul_i32 s30, s30, 21846
    s_lshr_b32 s30, s30, 16
    s_lshr_b32 s34, s21, 2
    s_mul_i32 s34, s34, 12
    s_add_u32 s34, s34, 96
    s_add_u32 s31, s31, s34              ; Q line, first row block (lane 22)
    s_add_u32 s30, s30, s34              ; Q line, second row block (lanes 23..)
    v_min_u32 v2, 10, v7
    v_mad_u32_u24 v2, v2, 12, s28
    v_lshlrev_b32 v3, 7, v2
    v_add_u32 v{F1A}, {FP + FPD}, v3
    v_add_u32 v3, s29, v7
    v_cmp_le_u32 vcc, 11, v7
    v_cndmask_b32 v2, v2, v3, vcc
    v_mov_b32 v3, s31
    v_cmp_le_u32 vcc, 22, v7
    v_cndmask_b32 v2, v2, v3, vcc
    v_mov_b32 v3, s30
    v_cmp_le_u32 vcc, 23, v7
    v_cndmask_b32 v2, v2, v3, vcc
    v_lshlrev_b32 v2, 7, v2
    v_add_u32 v{FW}, {FP}, v2
    s_mul_i32 s54, s21, 5
    s_lshr_b32 s54, s54, 2               ; ksA
    s_lshl_b32 s60, s21, 12
    s_add_u32 s60, s60, {KVP}
    v_lshlrev_b32 v3, 4, v0
    v_cmp_gt_u32 vcc, 210, v0
    v_mov_b32 v6, {OOB}
    v_cndmask_b32 v{KA}, v6, v3, vcc
    s_lshl_b32 s76, s23, 1
    s_add_u32 s76, s76, s51
    """) + blk(63, 76, "q", 28, 29) + L(f"""
    s_xor_b32 s63, s63, s3
    s_lshl_b32 s30, s52, 11
    s_add_u32 s63, s63, s30
    s_add_u32 s62, s54, 1
    """) + cell(61, 54, 28) + cell(62, 62, 28) + L(f"""
    s_add_u32 s61, s61, s63
    s_add_u32 s62, s62, s63
    s_add_u32 s63, s63, {QSZ}
    """)
    s2 = A()
    s2(f"""
    v_and_b32 v1, 15, v7                 ; i / m
    v_lshrrev_b32 v2, 4, v7              ; g
    v_lshrrev_b32 v3, 2, v1
    v_and_b32 v212, 3, v1
    v_lshl_add_u32 v6, v3, 3, v212
    v_cmp_le_u32 vcc, 20, v6
    v_cndmask_b32 v216, 0, 5, vcc
    v_lshlrev_b32 v220, 2, v216
    v_sub_u32 v220, v6, v220
    v_add_u32 v6, 4, v6
    v_cmp_le_u32 vcc, 20, v6
    v_cndmask_b32 v217, 0, 5, vcc
    v_lshlrev_b32 v221, 2, v217
    v_sub_u32 v221, v6, v221
    v_cmp_gt_u32 vcc, 8, v1
    v_cndmask_b32 v218, 64, 5, vcc
    v_add_u32 v222, 12, v1
    v_add_u32 v6, v3, v212
    v_cmp_le_u32 vcc, 3, v6
    v_cmp_le_u32 s[34:35], 2, v212
    s_or_b64 vcc, vcc, s[34:35]
    v_cndmask_b32 v219, 0, 5, vcc
    v_mov_b32 v223, 20
    v_mov_b32 v213, 255
    s_mov_b32 s37, {RED}
    """)
    for k in range(2):
        s2(f"""
        s_add_u32 s31, s54, {k}
        s_mul_i32 s32, s31, 205
        s_lshr_b32 s32, s32, 10
        s_mul_i32 s32, s32, 5
        s_sub_u32 s32, s31, s32
        s_cmp_eq_u32 s32, 2
        s_cselect_b32 s33, 1, 0
        s_cselect_b32 s36, 1, 4
        s_lshl_b32 s31, s31, 3
        s_mul_i32 s32, s21, 10
        s_sub_u32 s31, s31, s32
        v_lshlrev_b32 v3, s33, v2
        v_add_u32 v3, s31, v3
        """)
        for j in range(2):
            if j: s2("v_add_u32 v3, s36, v3")
            for tl in range(4):
                s2(f"""
                v_sub_u32 v212, v3, v{216+tl}
                v_cmp_gt_u32 vcc, 5, v212
                v_mad_u32_u24 v212, v3, 21, v{220+tl}
                v_cndmask_b32 v212, v213, v212, vcc
                v_lshl_add_u32 v{GA+tl*4+k*2+j}, v212, 3, s37
                """)
    ol = L(f"buffer_load_dwordx4 v[208:211], v{KA}, s[16:19], s60 offen sc1 ;#P")
    ql = L(f"""
    buffer_load_dwordx4 a[240:243], v4, s[16:19], s61 offen sc1 ;#Q
    buffer_load_dwordx4 a[244:247], v4, s[16:19], s62 offen sc1 ;#Q
    buffer_load_dwordx4 a[248:251], v4, s[16:19], s61 offen offset:1024 sc1 ;#Q
    buffer_load_dwordx4 a[252:255], v4, s[16:19], s62 offen offset:1024 sc1 ;#Q
    """)
    s3 = A()
    s3(f"""
    s_lshl_b32 s64, s23, 4
    s_add_u32 s64, s64, s21
    s_lshl_b32 s64, s64, 7
    s_add_u32 s64, s64, {FO}
    s_add_u32 s64, s64, s55
    s_mul_i32 s28, s21, 5
    v_add_u32 v3, s28, v2
    v_lshrrev_b32 v6, 3, v3
    v_lshlrev_b32 v6, 14, v6
    v_bfe_u32 v212, v3, 2, 1
    v_lshl_add_u32 v6, v212, {13 if OPT["mode"] in ("cols", "none") else 12}, v6
    v_and_b32 v3, 3, v3
    v_lshl_add_u32 v6, v3, 8, v6
    v_lshl_add_u32 v{OB}, v1, 4, v6
    s_add_u32 s28, s28, 4
    s_lshr_b32 s30, s28, 2
    """)
    s3 += cell(30, 30, 29)
    s3(f"""
    s_and_b32 s28, s28, 3
    s_lshl_b32 s28, s28, 8
    s_add_u32 s28, s28, s30
    v_lshl_add_u32 v3, v1, 4, s28
    v_lshl_add_u32 v3, v2, 3, v3
    v_cmp_gt_u32 vcc, 2, v2
    v_mov_b32 v6, {OOB}
    v_lshl_add_u32 v{UA}, v0, 3, s37
    v_cndmask_b32 v{OA}, v6, v3, vcc
    """)
    sA = A()
    sA += blk(40, 24, "h", 28, 29) + cell(30, 20, 29) + L("s_xor_b32 s40, s40, s3\ns_add_u32 s40, s40, s30")
    for T in range(4):
        sA(f"s_add_u32 s28, s20, {T}\ns_and_b32 s28, s28, 3\ns_lshl_b32 s28, s28, 10\nv_add_u32 v{AV[T]}, s28, v4")
    osum = W("P") + L(f"v_cvt_pk_bf16_f32 v208, v208, v209\nv_cvt_pk_bf16_f32 v209, v210, v211\nds_write_b64 v{UA}, v[208:209]")
    ogat = [f"  ds_read_b64 {ar(2*n,2)}, v{GA+n}" for n in range(16)]
    om = []
    for k in range(2):
        for T in range(2):
            for tl in (3, 0, 1, 2):
                d = vr(DB + 16*T + 4*tl)
                om.append(f"  v_mfma_f32_16x16x32_bf16 {d}, {ar(tl*8+k*4)}, {ar(240+T*8+k*4)}, {'0' if k == 0 else d}")
    ofin = []
    for T in range(2):
        o = A(); b = DB + 16*T; z = b + 12; pk = GA + 6*T
        for r in range(3): o(f"v_add_f32 v{z+r}, 0x358637bd, v{z+r}")
        for r in range(3): o(f"v_rcp_f32 v{z+r}, v{z+r}")
        for tl in range(3):
            for r in range(4): o(f"v_mul_f32 v{b+4*tl+r}, v{b+4*tl+r}, v{z+tl}")
        for i in range(6): o(f"v_cvt_pk_bf16_f32 v{pk+i}, v{b+2*i}, v{b+2*i+1}")
        o(f"buffer_store_dwordx4 {vr(pk)}, v2, s[16:19], s63 offen offset:{1024*T} sc1 ;#OS")
        o(f"buffer_store_dwordx2 {vr(pk+4,2)}, v{OA}, s[16:19], s63 offen offset:{1024*T} sc1 ;#OS")
        ofin.append(list(o))
    fs = A()
    fs(f"""
    s_lshl_b32 s42, s24, 2
    s_add_u32 s42, s42, s20
    s_lshr_b32 s28, s24, 1
    s_lshl_b32 s28, s28, 11
    s_add_u32 s28, s28, {FO}
    v_min_u32 v6, 15, v7
    v_lshl_add_u32 v{VF-1}, v6, 7, s28
    s_mul_i32 s48, s42, {16*1280}
    s_mul_i32 s28, s25, 160
    s_add_u32 s48, s48, s28
    """)
    fs += blk(42, 24, "o", 28, 29)
    fs(f"""
    s_xor_b32 s42, s42, s3
    s_lshl_b32 s28, s20, 10
    s_add_u32 s42, s42, s28
    s_mul_i32 s49, s20, 15360
    s_add_u32 s49, s49, {RED}
    v_mul_u32_u24 v243, 176, v1
    v_lshl_add_u32 v243, v2, 3, v243
    v_add_u32 v243, s49, v243            ; result write: row stride 176
    """)
    for i in range(3):
        fs(f"""
        v_add_u32 v6, {64*i}, v7
        v_mul_u32_u24 v1, 6554, v6
        v_lshrrev_b32 v1, 16, v1
        v_mul_u32_u24 v3, 1120, v1
        v_lshl_add_u32 v3, v6, 4, v3
        v_cmp_gt_u32 vcc, 160, v6
        v_add_u32 v1, v1, v6
        v_mov_b32 v6, {OOB}
        v_lshl_add_u32 v{240+i}, v1, 4, s49
        v_cndmask_b32 v{XA[i]}, v6, v3, vcc
        """)
    for T in range(1, 4):
        fs(f"s_add_u32 s28, s20, {T}\ns_and_b32 s28, s28, 3\ns_mul_i32 s28, s28, 15360\ns_add_u32 s28, s28, {RED + (T-1)*5120}\nv_add_u32 v{RW[T-1]}, s28, v4")
    fs(f"v_add_u32 v1, s49, v4\nv_mov_b32 v2, v{OB}")
    MG = OPT["mg"]
    def areg(s): return GA if s == 13 else AR + (s % NA)*16
    def ldA(s):
        r = [f"  buffer_load_dwordx4 {vr(areg(s)+4*T)}, v{AV[T]}, s[16:19], s40 offen sc1 ;#A{s}{'abcd'[T]}" for T in ((1, 2, 3, 0) if s >= MG else range(4))]
        pre = [f"  s_add_u32 s41, s40, {32768*s}"]
        if s == 13: pre += L(f"s_cmp_lt_u32 s20, 2\ns_cselect_b32 s41, s41, {OOB}")
        r = pre + [x.replace("s40", "s41") for x in r]
        return r
    a("k_p2:\n;MARK ep")
    for i in range(14): a(f";MARK B{i}")
    for i in range(5): a(f";MARK wo{i}")
    a += stamp("eend")
    gs = grp(st.take(g1), 2)
    gs.insert(len(gs) - OPT["poll_early"], poll(F1A, VF, "p1", "s55"))
    allsu = glue(s1 + sA + s2 + s3 + fs); k1 = OPT["su1"]; k2 = OPT["su2"]
    assert k1 >= len(glue(s1 + sA))
    flat = lambda l: sum(l, [])
    p1at = next(i for i, x in enumerate(allsu) if f"v_add_u32 v{F1A}," in x[0]) + 1
    a += inter(flat(allsu[:k1]), gs, p1at if OPT["poll_early"] >= len(gs) - 2 else 0)
    a += W("ep") + L("s_barrier") + flag("s67", 224) + stamp("flag")
    a += W("p1") + L("s_mov_b64 s[58:59], vcc") + check("k_s1", F1A, VF, True) + L("s_mov_b64 vcc, s[58:59]") + stamp("c1")
    pre = grp(ldA(2), 1)
    if OPT["pp2"] < 0: pre.append(poll(FW, VF, "p2", "s55"))
    a += ldA(0) + ldA(1) + inter(flat(allsu[k1:k2]), pre)
    late = allsu[k2:]; nl = OPT["c2"]
    late = {i: flat(late[i*len(late)//nl:(i+1)*len(late)//nl]) for i in range(nl)}
    def ldO(i0, n):
        r = []
        for i in range(i0, i0 + n):
            if OPT["mode"] in ("cols", "none"):
                r += [f"  s_add_u32 s43, s42, {8192*i}", f"  buffer_load_dwordx4 {ar(4*i)}, v4, s[16:19], s43 offen sc1 ;#O{i}"]; continue
            if i % 2 == 0 or i == i0: r.append(f"  s_add_u32 s43, s42, {16384*(i//2)}")
            r.append(f"  buffer_load_dwordx4 {ar(4*i)}, v{4 + (i & 1)}, s[16:19], s43 offen sc1 ;#O{i}")
        return r
    ldX = [[f"  s_add_u32 m0, s49, {4096 + 1024*i}", "  s_nop 0", f"  buffer_load_dwordx4 v{XA[i]}, s[8:11], s48 offen lds ;#X"] for i in range(3)]
    rdX = L("v_add_u32 v2, 51200, v4\nv_and_b32 v3, 15, v7\nv_lshlrev_b32 v3, 4, v3\nv_sub_u32 v3, v243, v3") + W("X") + tag([f"  ds_read_b64 {vr(XB+2*t,2)}, v3 offset:{4096+32*t}" for t in range(5)], "xr")
    NB = 3
    def sb(s, t): return ar(80 + 20*(s % NB) + 4*t)
    def rdB(s): return tag([f"  ds_read_b128 {sb(s,t)}, v{4 if s < 10 else 2} offset:{(s%10)*5120+1024*t}" for t in range(5)], f"b{s}")
    wr_ = tag([f"  ds_write_b128 v{RW[T-1]}, {vr(G+(T*5+t)*4)} offset:{1024*t}" for T in range(1, 4) for t in range(5)], "w")
    rd_ = tag([f"  ds_read_b128 {vr(G+20+4*j)}, v1 offset:{1024*j}" for j in range(15)], "r")
    C2 = OPT["c2"]; plan = OPT["aplan"]; OFS = OPT["ofs"]; PO = OPT["po"]; PC = OPT["pc"]; osched = OPT["osched"]
    no = 0
    XU = AR + 16
    xu = []
    for i in range(10): xu += [f"  v_lshlrev_b32 v{XU+2*i}, 16, v{XB+i}", f"  v_and_b32 v{XU+2*i+1}, 0xffff0000, v{XB+i}"]
    def wdone(g): return ("W", 5*g + 4) not in st.items
    def mf(s, T, rev):
        return [f"  v_mfma_f32_16x16x32_bf16 {vr(G+(T*5+t)*4)}, {breg(s,t)}, {vr(areg(s)+4*T)}, {'0' if s == 0 else vr(G+(T*5+t)*4)}" for t in (range(4, -1, -1) if rev else range(5))]
    nm = 14 - MG; WB = OPT["wb"]
    for s in range(MG + 4):
        if s < MG:
            need = [f"A{s}{c}" for c in "abcd"] + [f"B{s}"]; assert ("B", 5*s + 4) not in st.items
            M = sum((mf(s, T, T & 1) for T in range(4)), [])
        else:
            T = (1, 2, 3, 0)[s - MG]
            need = [f"A{x}{'abcd'[T]}" for x in range(MG, 14)] + ["B13"]; assert ("B", 69) not in st.items
            M = sum((mf(x, T, False) for x in range(MG, 14)), [])
        vm = need + (["op"] if s == PC else []) + ([f"wo{g}" for g in range(5) if g not in wtr] if s == WB else []) + (["OS"] if s == OFS else []) + (["p2"] if s == C2 else [])
        if s == WB: assert all(wdone(g) for g in range(5) if g not in wtr)
        a += W(vm, "*" if s in (C2 + 2, MG + 1) else ())
        a += stamp(f"g{s}")
        if s == C2: a += check("k_sw", FW, VF, True) + stamp("w1")
        if s == PC: a += check("k_so", VF-1, VF, True) + stamp("op")
        if s != PC and s in (OFS, C2 + 2, WB, MG + 1): a("s_barrier")
        ls = []; n = len(M)
        for x in plan.get(s, []): assert (x < 5 or s >= C2) and (x - s <= 3 or (x == 13 and s > C2 + 3))
        v = sum((ldA(x) for x in plan.get(s, [])), [])
        if s == C2: v = ol + ql + v
        if s == OFS: v = flag("s64") + v
        if s == PO: v = poll(VF-1, VF, "op", "s55") + v
        if s == OPT["pp2"]: v = poll(FW, VF, "p2", "s55") + v
        if late.get(s): ls.append((late[s], 0, n - 1))
        if s in OPT["xs"]: v += sum([ldX[i] for i, x in enumerate(OPT["xs"]) if x == s], [])
        if psched.get(s): v += st.take(psched[s])
        if osched.get(s): v += ldO(no, osched[s]); no += osched[s]
        ls.append((v, 0, n - 2))
        if s == C2 + 1: ls.append((osum, 16, 19))
        if s == C2 + 2: ls.insert(0, (ogat, 0, 10))
        if s == C2 + 3: ls.append((ofin[0] + ofin[1], 1, 19))
        if s == OPT["xr"]: assert s <= MG and s > OFS; ls.insert(0, (rdX, 0, 8))
        if s > MG: ls.append((wr_[5*(s-MG-1):5*(s-MG)], 2, n - 1))
        if s == MG + 2: ls.append((xu, 0, n - 1))
        if s == MG + 3: ls.append((rdB(0) + rdB(1), 0, n - 2))
        a += place(M, ls)
        if s == C2 + 2: a += W("Q", "*") + stamp("om") + place(om, [(st.take(OPT["pom"]), 0, 15)])
    a += stamp("gend")
    E = G + 20
    VB = []
    for j in range(3):
        for i in range(10): VB.append(f"  v_pk_add_f32 {vr(G+2*i,2)}, {vr(G+2*i,2)}, {vr(G+20+20*j+2*i,2)}")
    VB += [f"  v_pk_mul_f32 {vr(E+2*i,2)}, {vr(G+2*i,2)}, s[30:31]" for i in range(10)]
    def unpk(Vl):
        V2 = []
        for x in Vl:
            m = re.match(r"\s*v_pk_(add|mul)_f32 v\[(\d+):\d+\], v\[(\d+):\d+\], (\S+)", x)
            op, d, p, q = m.group(1), int(m.group(2)), int(m.group(3)), m.group(4)
            for h in range(2):
                qq = "s30" if q.startswith("s[") else f"v{int(q[2:].split(':')[0]) + h}"
                V2.append(f"  v_{op}_f32 v{d+h}, {qq}, v{p+h}")
        return V2
    V = [] if OPT["burst"] else unpk(VB)
    V += [f"  v_exp_f32 v{E+i}, v{E+i}" for i in range(20)]
    V += [f"  v_add_f32 v{E+i}, 1.0, v{E+i}" for i in range(20)]
    V += [f"  v_rcp_f32 v{E+i}, v{E+i}" for i in range(20)]
    V += [f"  v_mul_f32 v{G+i}, v{G+i}, v{E+i}" for i in range(20)]
    V0 = OPT["v0"]; RB = OPT["rb"]; LK = NB - 1; P0 = MG + 4
    cost = [8 if ("exp" in x or "rcp" in x) else 4 for x in V]; tot = sum(cost); parts = [[] for _ in range(20 - V0)]; c_ = 0
    for x, c in zip(V, cost): parts[min(len(parts) - 1, c_*len(parts)//tot)].append(x); c_ += c
    for s in range(20):
        wg = [g for g, st_ in wtr.items() if st_ == s]
        for g in wg: assert s + LK <= 4*g and wdone(g)
        a += W([f"O{s}"] + [f"wo{g}" for g in wg], [f"b{s}"] + (["w"] if s == RB else []) + (["r"] if s == V0 else []))
        if s == RB or wg: a("s_barrier")
        a += stamp(f"s{s}")
        if s == V0 and OPT["burst"]: a += [";@align on"] + VB + [";@align off"]
        M = [f"  v_mfma_f32_16x16x32_bf16 {vr(SA+4*t)}, {sb(s,t)}, {ar(4*s)}, {'0' if s == 0 else vr(SA+4*t)}" for t in range(5)]
        ls = []
        if s + LK < 20: ls.append((rdB(s+LK), 0, 4))
        v = []
        if psched.get(P0 + s): v += st.take(psched[P0 + s])
        if osched.get(P0 + s): v += ldO(no, osched[P0 + s]); no += osched[P0 + s]
        ls.append((v, 0, 4))
        if s == 0: ls.append((L(f"s_mov_b32 s30, {LOG2E|0x80000000}\ns_mov_b32 s31, {LOG2E|0x80000000}"), 0, 4))
        if RB <= s < RB + 3: ls.append((rd_[5*(s-RB):5*(s-RB)+5], 0, 4))
        if s >= V0: ls.append((parts[s-V0], 0, 4))
        a += place(M, ls)
    assert no == 20 and not st.items, (no, st.items)
    a += stamp("send")
    for t in range(5):
        for i in range(2): a(f"v_pk_fma_f32 {vr(SA+4*t+2*i,2)}, {vr(SA+4*t+2*i,2)}, {vr(G+4*t+2*i,2)}, {vr(XU+4*t+2*i,2)}")
        for i in range(2): a(f"v_cvt_pk_bf16_f32 v{XB+2*t+i}, v{SA+4*t+2*i}, v{SA+4*t+2*i+1}")
        a(f"ds_write_b64 v243, {vr(XB+2*t,2)} offset:{32*t}")
    a(";@align off\ns_waitcnt lgkmcnt(0)")
    for i in range(3): a(f"ds_read_b128 {vr(E+4*i)}, v{240+i}")
    for i in range(3): a(f"s_waitcnt lgkmcnt({2-i})\nbuffer_store_dwordx4 {vr(E+4*i)}, v{XA[i]}, s[4:7], s48 offen")
    a += stamp_out()
    return resolve(a)

def build():
    OUTL.clear()
    pro = prologue()
    br = L("s_cmp_lt_u32 s22, 8\ns_cbranch_scc1 k_kv")
    items = [("B", i) for i in range(70)] + [("W", i) for i in range(25)]
    st_t = Stream(items); st_n = Stream(items)
    mt = g1_main("k_t", True, st_t)
    mt += L("s_waitcnt lgkmcnt(0)\ns_cmp_lt_u32 s22, 12\ns_cbranch_scc1 k_q")
    eq = epi_t("phi", Stream(st_t.items)); es = epi_t("silu", st_t)
    mn = g1_main("k_n", False, st_n)
    ek = epi_kv(st_n)
    assert ("B", 60) in st_n.items and st_n.items == st_t.items
    n0 = len(resolve(pro + br))
    a = resolve(pro + br + mt) + es + phase2(st_t) + L("s_endpgm\nk_q:") + eq + L("s_branch k_p2\nk_kv:") + resolve(pro + br + mn + ek)[n0:] + L("s_branch k_p2")
    a += L("k_end:\ns_endpgm") + OUTL
    body, added = haz.fix(a)
    body, nbytes, nn, npm = align.align([x.replace("CODE_KB", "40").replace("CODE_MAX", "44444") for x in body])
    kb = (nbytes + 1023)//1024; assert kb <= 64
    body = [x.replace("s_cmp_ge_u32 s28, 40", f"s_cmp_ge_u32 s28, {kb if OPT.get('cpf', 1) else 0}").replace("44444", str((nbytes - 16) & ~15)) for x in body]
    body = [re.sub(r"\s*;(#\S+|nocount|C)$", "", x) for x in body]
    print("instrs", len(body), "nops added", added, "bytes", nbytes, "align nops", nn, "promoted", npm, file=sys.stderr)
    if OPT.get("nost"): body = [x for x in body if not ("buffer_store_dwordx4" in x and "s[76:79]" in x)]
    if OPT.get("cyc"): body = [x.replace("s_memrealtime", "s_memtime") for x in body]
    out = ["; @launch grid=(256,1,1) block=(256,1,1) lds=163840",
           '.amdgcn_target "amdgcn-amd-amdhsa--gfx950"\n.text', khead(NAME)] + body
    if DIAG: out.append(";ST " + " ".join(OPT["st"][:7]) + "\n;OPTS " + " ".join(x for x in sys.argv[3:] if not x.startswith("st=")))
    out.append('.section .rodata,"a"\n.p2align 6\n' + kd(NAME, 512, 256, 102))
    return "\n".join(out) + "\n"
if __name__ == "__main__":
    for x in sys.argv[2:]:
        if x == "d": DIAG = True
        else:
            k, v = x.split("=", 1); OPT[k] = eval(v)
    src = build()
    open(sys.argv[1], "w").write(src)
```

```python
import sys, re
from asmlib import kd, khead
import haz, align

NAME = "recurrent_scan__linear_attn_block__dense_activation_silu__prompt_kernel"
S, D, F = 2048, 640, 1728
FA = 0x8000
FP = 0xF0000
FPD = 0x9000 - 144*128
FO = 0x38000
NEGM = 0x10000; RSTD = 0x12000
CSP = 0x14000
KVP   = 0x40000
PQ    = 0x100000
OO    = 0x380000
HH    = 0x600000
WP    = 0xCC0000
WS_USED = WP + 8*74*5120
TS = 0x1400000
LOG2E = 0x3fb8aa3b
OOB = 0x40000000
STAGE = 45056; WOFF = 24576; SPARE = 3*STAGE
AUXC = SPARE; AUXM = SPARE + 6400
CSL = SPARE + 8192
PACKL = SPARE
KVX = SPARE + 10240
RED = 102400
DIAG = False
OPT = dict(spin=200000, pkd=1, pkr=3, pks={4: 3, 5: 2}, flagb=3, flagb_n=2, pollb=6,
           pf_t={15: 7, 16: 7, 17: 7, 18: 7, 19: 7}, pf_n={15: 5, 16: 5, 17: 5, 18: 5, 19: 5}, epi_n=[6, 5, 5, 5, 5, 0], kv_first=0,
           epi=[4, 2, 2, 2, 2, 2, 2], f1blk=5, f1pos=0, gap1=8, poll_early=1, c2=3, pom=2,
           aplan={0: [3], 1: [4], 3: [5], 4: [6, 7], 5: [8], 6: [9], 7: [10], 8: [11], 9: [12, 13]},
           mg=11, wb=14, xr=11, rb=1, burst=1,
           psched={0:3,1:3,2:6,5:1,10:5,11:3,12:3,15:1,16:1,17:1,18:1,19:1,20:1,21:1,22:1,23:1,24:1},
           xs=[7, 7, 8], ofs=8, po=11, pc=13,
           osched={13:4,14:4,15:2,16:1,17:1,18:1,19:1,20:1,21:1,22:1,23:1,24:1,25:1}, nbuf=3, v0=5, nopk=1, adist=3, p2map=1, su_pre=200, su_pre_n=160, sleep=2, rot=0, snake=1, krot=0, fash=4, wtrail={2:1,3:10,4:14}, wrow=1, cmaj=1, cpf2=12,
           st=["eend", "w1", "g11", "op", "gend", "s5", "send"])

class A(list):
    def __call__(self, s):
        for x in s.strip("\n").split("\n"):
            x = x.strip()
            m = re.match(r"s_cselect_b32 (s\d+), (\d+|0x[0-9a-f]+), (\d+|0x[0-9a-f]+)\s*(;.*)?$", x)
            if m and int(m.group(2), 0) > 64 and int(m.group(3), 0) > 64:
                self.append(f"  s_mov_b32 {m.group(1)}, {m.group(3)}")
                x = f"s_cselect_b32 {m.group(1)}, {m.group(2)}, {m.group(1)}"
            if x: self.append(("" if x.endswith(":") else "  ") + x)
        return self
def L(s): return list(A()(s))
def stamp(name):
    if not DIAG: return []
    if name == "entry": i = 0
    elif name in OPT["st"][:7]: i = 1 + OPT["st"].index(name)
    else: return []
    return [f"  s_memrealtime s[{84+2*i}:{85+2*i}]"]
def stamp_out():
    if not DIAG: return []
    if OPT.get("echo") is not None:
        i = OPT["echo"]
        return L(f"""
        s_waitcnt vmcnt(0)
        s_memrealtime s[100:101]
        s_waitcnt lgkmcnt(0)
        s_sub_u32 s28, s{84+2*i}, s84
        s_min_u32 s28, s28, 10000
        s_add_u32 s28, s28, 5000
        k_echo:
        s_memrealtime s[30:31]
        s_waitcnt lgkmcnt(0)
        s_sub_u32 s29, s30, s84
        s_cmp_lt_u32 s29, s28
        s_cbranch_scc1 k_echo
        """)
    r = L(f"""
    s_waitcnt vmcnt(0)
    s_memrealtime s[100:101]
    s_waitcnt lgkmcnt(0)
    s_lshl_b32 s28, s2, 2
    s_add_u32 s28, s28, s20
    s_lshl_b32 s28, s28, 6
    s_add_u32 s28, s28, {TS}
    v_mov_b32 v1, s28
    """)
    for i in range(9): r += [f"  v_mov_b32 v3, s{84+2*i}", f"  global_store_dword v1, v3, s[26:27] offset:{4*i if i < 8 else 48}"]
    r += ["  v_mov_b32 v3, s22", "  global_store_dword v1, v3, s[26:27] offset:60"]
    return r
def vr(b, n=4): return f"v[{b}:{b+n-1}]" if n > 1 else f"v{b}"
def ar(b, n=4): return f"a[{b}:{b+n-1}]" if n > 1 else f"a{b}"
def srd(d, lo, nbytes):
    return L(f"s_mov_b32 s{d}, s{lo}\ns_and_b32 s{d+1}, s{lo+1}, 0xffff\ns_mov_b32 s{d+2}, {nbytes}\ns_mov_b32 s{d+3}, 0x20000")
def isvm(x): return x.strip().startswith(("buffer_", "global_"))
def islg(x): return x.strip().startswith("ds_")
def tag(lines, t): return [x + f" ;#{t}" if (isvm(x) or islg(x)) else x for x in lines]
def W(vm=(), lg=()):
    vm = [vm] if isinstance(vm, str) else list(vm); lg = [lg] if isinstance(lg, str) else list(lg)
    return [f"  ;WAIT vm={','.join(vm)} lg={','.join(lg)}"]
def resolve(lines):
    out = []; vm = []; lg = []
    for x in lines:
        t = x.strip()
        if t.startswith(";MARK"):
            nm = t.split()[1]; vm.append(("m", nm)); lg.append(("m", nm)); continue
        if t.startswith(";WAIT"):
            m = re.match(r";WAIT vm=(\S*) lg=(\S*)", t); parts = []
            for names, hist, cn, mx in ((m.group(1), vm, "vmcnt", 63), (m.group(2), lg, "lgkmcnt", 15)):
                if not names: continue
                names = names.split(",")
                if names == ["*"]: parts.append(f"{cn}(0)"); continue
                idx = [i for i, h in enumerate(hist) if h[1] in names]
                for nme in names: assert any(h[1] == nme for h in hist), ("unknown tag", nme)
                n = sum(1 for h in hist[max(idx)+1:] if h[0] == "o")
                parts.append(f"{cn}({min(n, mx)})")
            out.append("  s_waitcnt " + " ".join(parts)); continue
        tg = re.search(r";#(\S+)", t); nm = tg.group(1) if tg else None
        kind = "n" if ";nocount" in t else "o"
        if isvm(x): vm.append((kind, nm))
        elif islg(x): lg.append((kind, nm))
        out.append(x)
    return out
def glue(lines):
    out = []; cur = []
    for x in lines:
        t = x.strip()
        if cur and not t.startswith(("s_cselect", "s_addc", "s_cbranch", "s_mov_b32")) and not t.endswith(":"):
            out.append(cur); cur = []
        if t.startswith(("s_cmp", "s_bitcmp")) or cur or (t.startswith("s_add_u32") and ";C" in t): cur.append(x)
        else: out.append([x])
    if cur: out.append(cur)
    return out
def place(M, lists):
    gaps = [[] for _ in M]
    for items, g0, g1 in lists:
        if not items: continue
        items = glue(items); n = g1 - g0 + 1
        for k, x in enumerate(items): gaps[g0 + k*n//len(items)] += x
    out = []
    for m, g in zip(M, gaps): out += [m] + g
    return out
def inter(main, groups, first=0):
    main = glue(main); out = []; n = len(main); G = len(groups); gi = 0
    for i, x in enumerate(main):
        while gi < G and i >= first + gi*(n - first)//G: out += groups[gi]; gi += 1
        out += x
    while gi < G: out += groups[gi]; gi += 1
    return out
def grp(lines, k):
    out = []; cur = []
    for x in lines:
        if isvm(x) and sum(map(isvm, cur)) == k:
            tail = []
            while cur and not isvm(cur[-1]): tail.insert(0, cur.pop())
            out.append(cur); cur = tail
        cur.append(x)
    if cur: out.append(cur)
    return out
OUTL = A()
def check(tg, vaddr, vdst, lead=False):
    if lead: a = L(f"v_cmp_ne_u32 vcc, s39, v{vdst}\ns_nop 1\ns_and_b64 vcc, vcc, s[56:57]\ns_cbranch_scc1 {tg}_slow\n{tg}_ok:\ns_barrier")
    else: a = L(f"v_cmp_ne_u32 vcc, s39, v{vdst}\ns_nop 1\ns_cmp_lg_u64 vcc, 0\ns_cbranch_scc1 {tg}_slow\n{tg}_ok:")
    OUTL(f"""
    {tg}_slow:
    s_mov_b32 s38, {OPT['spin']}
    {tg}_again:
    s_sleep {OPT.get('sleep', 4)}
    buffer_load_dword v{vdst}, v{vaddr}, s[16:19], 0 offen sc1
    s_sub_u32 s38, s38, 1
    s_cmp_eq_u32 s38, 0
    s_cbranch_scc1 {tg}_ok
    s_waitcnt vmcnt(0)
    v_cmp_ne_u32 vcc, s39, v{vdst}
    s_nop 1
    s_cmp_lg_u64 vcc, 0
    s_cbranch_scc1 {tg}_again
    s_branch {tg}_ok
    """)
    return a
def poll(vaddr, vdst, t, so="0"): return [f"  buffer_load_dword v{vdst}, v{vaddr}, s[16:19], {so} offen sc1 ;#{t}"]
def flag(soff, r=None):
    d, o = (3, 6) if r is None else (r, r + 1)
    return L(f"v_mov_b32 v{d}, s39\nv_lshlrev_b32 v{o}, 25, v7\nbuffer_store_dword v{d}, v{o}, s[16:19], {soff} offen sc1")

ACC = 8; CS = 128; AB = [148, 172]; BB = [196, 216]; VX = 236; VW = 242; LA = 247; LB = 249; VF = 255
L2B = CS
ONES = 240
def acc(T, t): return ACC + (T*5 + t)*4
def g1_mfma(buf, tr, first):
    M = []
    for T in range(6):
        for t in (range(5) if T % 2 == 0 else range(4, -1, -1)):
            x = vr(AB[buf] + 4*T); w = vr(BB[buf] + 4*t); d = vr(acc(T, t))
            p, q = (w, x) if tr else (x, w)
            M.append(f"  v_mfma_f32_16x16x32_bf16 {d}, {p}, {q}, {'0' if first else d}")
    return M
def g1_cs(buf):
    return [f"  v_mfma_f32_16x16x32_bf16 {vr(CS+4*t)}, {ar(ONES)}, {vr(BB[buf]+4*t)}, {'0' if buf == 0 else vr(CS+4*t)}" for t in range(5)]
def g1_reads(k):
    buf = k & 1; st = (k//2) % 3
    la, lb, so = (LA, LB, st*STAGE) if st < 2 else (L2B, L2B + 2, 0)
    R = []
    def b(t):
        u2, h2 = (64, 1280) if OPT["wrow"] else (1024, 256)
        base = lb + (2 if t == 4 else (t & 1)); off = so + buf*10240 + (u2 if t in (2, 3) else 0)
        return [f"  ds_read_b64_tr_b16 {vr(BB[buf]+4*t,2)}, v{base} offset:{off}",
                f"  ds_read_b64_tr_b16 {vr(BB[buf]+4*t+2,2)}, v{base} offset:{off+h2}"]
    def x(T): return [f"  ds_read_b128 {vr(AB[buf]+4*T)}, v{la+buf} offset:{so+T*2048}"]
    R += x(0)
    for t in range(5): R += b(t)
    for T in range(1, 6): R += x(T)
    return tag(R, f"r{k}")
def dma_x(c):
    so = (c % 3)*STAGE; Dm = []
    for j in range(6):
        if j in (0, 4): Dm.append(f"  s_add_u32 m0, s40, {so + 1024*j}")
        Dm.append(f"  buffer_load_dwordx4 v{VX+j}, s[8:11], s42 offen offset:{1024*(j%4)} lds")
    return tag(Dm, f"c{c}")
def dma_w(c):
    so = (c % 3)*STAGE; Dm = []
    for j in range(5):
        if OPT["wrow"]:
            if j in (0, 4): Dm.append(f"  s_add_u32 m0, s41, {so + 1024*j}")
            Dm.append(f"  buffer_load_dwordx4 v{VW+j}, s[12:15], s43 offen offset:{1024*(j%4)}{' nt' if (c == 0 and OPT.get('wnt')) else ''} lds")
            continue
        Dm.append(f"  s_add_u32 m0, s41, {so + 1024*j}")
        Dm.append(f"  buffer_load_dwordx4 v{VW+j}, s[12:15], s43 offen lds")
    return tag(Dm, f"c{c}")
def dma_next(c):
    if OPT["krot"]:
        first = "s_mov_b32 s44, s67" if c == 1 else "s_add_u32 s44, s44, 1\ns_cmp_eq_u32 s44, 10\ns_cselect_b32 s44, 0, s44"
        return L(first + f"""
        s_cmp_eq_u32 s44, s54
        s_addc_u32 s44, s44, 0
        s_cmp_eq_u32 s44, 10
        s_cselect_b32 s44, 0, s44
        s_lshl_b32 s42, s44, 7
        s_mul_i32 s43, s44, s45""")
    return L(f"s_cmp_le_u32 s54, {c-1}\ns_cselect_b32 s44, {c}, {c-1}\ns_lshl_b32 s42, s44, 7\ns_mul_i32 s43, s44, s45")
BV = 168
def breg(s, t): return ar(s*20 + 4*t) if s < 12 else vr(BV + (s-12)*20 + 4*t)
def bstream(i0, n):
    out = []
    for i in range(i0, i0 + n):
        s, t = divmod(i, 5)
        if t == 0 or i == i0:
            out.append(f"  s_add_u32 s68, s46, {4*5120*s}")
            if s == 13: out += L(f"s_cmp_lt_u32 s20, 2\ns_cselect_b32 s68, s68, {OOB}")
        if t < 4: out.append(f"  buffer_load_dwordx4 {breg(s,t)}, v4, s[16:19], s68 offen offset:{1024*t} sc1 ;#B{s}")
        else: out.append(f"  buffer_load_dwordx4 {breg(s,t)}, v5, s[16:19], s68 offen sc1 ;#B{s}")
    return out
class Stream:
    def __init__(self, items): self.items = list(items)
    def take(self, n):
        it, self.items = self.items[:n], self.items[n:]
        assert len(it) == n
        out = []; k = 0
        while k < len(it):
            j = k
            while j + 1 < len(it) and it[j+1] == (it[j][0], it[j][1] + 1): j += 1
            out += (bstream if it[k][0] == "B" else wo_dma)(it[k][1], j - k + 1); k = j + 1
        return out
def wo_dma(i0, n):
    out = []
    for i in range(i0, i0 + n):
        out += [f"  s_add_u32 m0, s69, {4096*i}", f"  s_add_u32 s71, s70, {4096*i}",
                f"  buffer_load_dwordx4 v4, s[16:19], s71 offen sc1 lds ;#wo{i//5}"]
    return out
PRODS = [(0,3),(0,4),(1,3),(1,4),(1,5),(2,3),(2,4),(2,5)]
KVOF = [240, 241, 242, 243, 244, 245, 246, 255]

def setup_s():
    return L(f"""
    s_cmp_lt_u32 s22, 12
    s_cselect_b32 s28, {PQ}, {HH}
    s_cselect_b32 s29, {20*4096}, {54*4096}
    s_cselect_b32 s83, {LOG2E}, {LOG2E | 0x80000000}
    s_add_u32 s76, s26, s28 ;C
    s_addc_u32 s77, s27, 0
    s_and_b32 s77, s77, 0xffff
    s_lshl_b32 s78, s29, 5
    s_mov_b32 s79, 0x20000
    s_mul_i32 s80, s21, 3
    s_add_u32 s80, s80, s51
    s_mul_i32 s80, s80, s29
    s_lshl_b32 s28, s51, 11
    s_add_u32 s80, s80, s28
    s_sub_u32 s28, s29, 3072
    s_cmp_eq_u32 s51, 0
    s_cselect_b32 s81, 1024, s28
    s_cselect_b32 s82, s28, 1024
    s_mul_i32 s61, s23, 5
    s_mul_i32 s28, s52, 3
    s_add_u32 s62, s61, s28
    s_add_u32 s63, s62, 1
    s_add_u32 s61, s61, 2
    s_lshl_b32 s28, s23, 1
    s_add_u32 s28, s28, s52
    s_add_u32 s29, s28, 22
    s_add_u32 s30, s23, 43
    s_cmp_lt_u32 s22, 12
    s_cselect_b32 s62, s62, s28
    s_cselect_b32 s63, s63, s29
    s_cselect_b32 s61, s61, s30
    s_cselect_b32 s75, {OOB}, {FPD}
    s_cmp_eq_u32 s63, 43
    s_cselect_b32 s63, {OOB >> 12}, s63
    s_lshl_b32 s62, s62, 12
    s_lshl_b32 s63, s63, 12
    s_lshl_b32 s61, s61, 12
    s_lshl_b32 s28, s52, 9
    s_add_u32 s61, s61, s28
    s_mul_i32 s67, s22, 12
    s_add_u32 s67, s67, s21
    s_lshl_b32 s67, s67, 7
    s_add_u32 s67, s67, {FP}
    s_cmp_eq_u32 s20, 0
    s_cselect_b32 s67, s67, {OOB}
    s_add_u32 s75, s75, s67
    """)
def setup_t():
    return L(f"""
    v_add_u32 v{VX}, s62, v4
    v_add_u32 v{VX+1}, s63, v4
    v_and_b32 v3, 1, v2
    v_lshlrev_b32 v3, 10, v3
    v_lshrrev_b32 v254, 1, v2
    v_lshl_add_u32 v3, v254, 8, v3
    v_lshl_add_u32 v3, v1, 4, v3
    v_add_u32 v{VX+2}, s61, v3
    v_mov_b32 v{VX+4}, 0x358637bd
    v_mov_b32 v{VX+5}, 0x358637bd
    """)
def setup_n0():
    a = A()
    a(f"""
    v_and_b32 v1, 15, v7
    v_lshrrev_b32 v2, 4, v7
    v_cmp_gt_u32 s[32:33], 8, v1
    s_cmp_eq_u32 s21, 10
    s_cselect_b32 s36, s51, 0
    s_lshl_b32 s37, s22, 1
    s_add_u32 s37, s37, s52
    s_lshl_b32 s37, s37, 12
    s_add_u32 s37, s37, {KVP}
    s_lshl_b32 s60, s20, 12
    s_add_u32 s60, s60, {KVX}
    v_and_b32 v254, 31, v7
    v_add_u32 v254, 224, v254
    """)
    for n, (kx, vy) in enumerate(PRODS):
        eoff = {3: -8, 4: 8, 5: 24}[vy]; o = 252
        a(f"""
        v_add_u32 v3, {4*kx}, v2
        v_cmp_le_u32 vcc, 5, v3
        v_add_u32 v{o}, {eoff}, v1
        v_cmp_gt_u32 s[62:63], 10, v3
        v_cndmask_b32 v253, 0, 20, vcc
        v_sub_u32 v{o}, v{o}, v253
        """)
        if vy == 3: a(f"v_cmp_eq_u32 vcc, 0, v1\nv_cndmask_b32 v253, v{o}, 0, vcc\nv_cndmask_b32 v{o}, v{o}, 20, vcc\nv_cmp_gt_u32 vcc, 20, v253")
        else: a(f"v_cmp_gt_u32 vcc, 20, v{o}")
        a(f"""
        v_mad_u32_u24 v{o}, v3, 21, v{o}
        s_and_b64 vcc, vcc, s[62:63]
        v_cndmask_b32 v{o}, v254, v{o}, vcc
        v_lshl_add_u32 v{o}, v{o}, 4, s60
        v_accvgpr_write_b32 a{244+n}, v{o}
        """)
    return list(a)
def setup_n():
    return L(f"s_mov_b32 s30, {LOG2E}\ns_mov_b32 s31, {LOG2E}") + [f"  v_accvgpr_read_b32 v{KVOF[n]}, a{244+n}" for n in range(8)]

def g1_main(tg, tr, st):
    a = A()
    pf = OPT["pf_t"] if tr else OPT["pf_n"]
    a += W("c0"); a("s_barrier"); a += stamp("k0")
    a += g1_reads(0) + W(lg="r0")
    a += place(g1_mfma(0, tr, True) + g1_cs(0), [(g1_reads(1), 0, 17), (dma_x(2) + dma_w(2), 0, 33)])
    a += W(lg="r1")
    a += g1_cs(1)
    PKD, PKR, PKS = (OPT["pkd"], OPT["pkr"], OPT["pks"]) if tr else (None, None, {})
    pk_d = []
    for i in range(5):
        pk_d += [f"  s_add_u32 m0, s53, {896*i}", f"  buffer_load_dwordx4 v252, s[56:59], s55 offen offset:{128*i} nt lds ;#pk"]
    pk_r = []
    for t in range(5):
        if t: pk_r += L(f"s_cmp_eq_u32 s20, {4-t}\ns_cselect_b32 s28, 896, 0\nv_add_u32 v1, s28, v1\nv_add_u32 v2, s28, v2")
        pk_r += [f"  ds_read_b64_tr_b16 {ar(16+4*t,2)}, v1 offset:{32*t}", f"  ds_read_b64_tr_b16 {ar(18+4*t,2)}, v2 offset:{32*t}"]
    pk_s = [f"  buffer_store_dwordx4 {ar(16+4*t)}, v{4 if t < 4 else 5}, s[16:19], s60 offen offset:{1024*(t%4)} sc1 ;#ps" for t in range(5)]
    cs_st = L(f"""
    v_cmp_le_u32 vcc, 16, v7
    v_cmp_le_u32 s[28:29], 32, v7
    v_cmp_le_u32 s[30:31], 48, v7
    v_cndmask_b32 v{CS+17}, v{CS}, v{CS+4}, vcc
    v_cndmask_b32 v{CS+17}, v{CS+17}, v{CS+8}, s[28:29]
    v_cndmask_b32 v{CS+17}, v{CS+17}, v{CS+12}, s[30:31]
    buffer_store_dword v{CS+17}, v253, s[16:19], s64 offen sc1 ;#cs
    buffer_store_dword v{CS+16}, v254, s[16:19], s64 offen sc1 ;#cs
    """) + [f"  v_add_u32 v{L2B+i}, {2*STAGE}, v{LA+i}" for i in range(5)]
    auxa = L(f"""
    v_lshlrev_b32 v3, 4, v0
    v_add_u32 v252, s74, v3
    v_add_u32 v253, 4096, v252
    v_cmp_le_u32 vcc, 144, v0
    v_add_u32 v3, s65, v3
    v_cmp_le_u32 s[28:29], s66, v0
    v_cndmask_b32 v253, v253, v3, vcc
    v_add_u32 v3, {RSTD - NEGM - 768}, v3
    v_cmp_le_u32 vcc, 240, v0
    v_cndmask_b32 v253, v253, v3, s[28:29]
    v_mov_b32 v3, {OOB}
    v_cndmask_b32 v253, v253, v3, vcc
    v_and_b32 v1, 15, v7
    v_lshrrev_b32 v2, 4, v7
    """)
    aux = L(f"""
    s_mov_b32 m0, s72
    s_nop 0
    buffer_load_dwordx4 v252, s[16:19], 0 offen sc1 lds ;#aux
    s_add_u32 m0, s72, 4096
    s_nop 0
    buffer_load_dwordx4 v253, s[16:19], 0 offen sc1 lds ;#aux
    """) + flag("s73")
    y1 = L(f"v_lshlrev_b32 v252, 2, v0\nv_add_u32 v252, {AUXC}, v252") + tag([f"  ds_read_b32 v{CS+i}, v252 offset:{640*i}" for i in range(10)], "y1")
    y2 = [f"  v_add_f32 v{CS}, v{CS}, v{CS+i}" for i in range(1, 10)] + [f"  ds_write_b32 v252, v{CS} offset:{CSL-AUXC} ;#y2"]
    rd = L("s_mul_i32 s28, s51, 384\ns_add_u32 s28, s28, %d" % AUXM)
    if tr:
        rd += L(f"v_lshlrev_b32 v6, 4, v2\nv_add_u32 v252, s34, v6\nv_add_u32 v253, s35, v6\nv_lshl_add_u32 v3, v1, 2, s28")
        rd += [f"  ds_read_b128 {vr(CS+4*t)}, v252 offset:{64*t}" for t in range(4)] + [f"  ds_read_b128 {vr(CS+16)}, v253"]
        for T in range(6): rd += [f"  ds_read_b32 v{AB[0]+4*T}, v3 offset:{64*T}", f"  ds_read_b32 v{AB[0]+4*T+1}, v3 offset:{768+64*T}"]
    else:
        rd += L(f"v_lshlrev_b32 v6, 2, v1\nv_add_u32 v252, s34, v6\nv_lshl_add_u32 v3, v2, 4, s28")
        rd += [f"  ds_read_b32 v{CS+4*t}, v252 offset:{64*t}" for t in range(5)]
        for T in range(6): rd += [f"  ds_read_b128 {vr(AB[0]+4*T)}, v3 offset:{64*T}"]
        for T in range(5): rd += [f"  ds_read_b128 {vr(BB[0]+4*T)}, v3 offset:{768+64*T}"]
        rd += [f"  ds_read_b128 {vr(VX)}, v3 offset:{768+64*5}"]
    su = setup_t() if tr else setup_n()
    e0 = glue(setup_n0()); early = {} if tr else {6 + i: sum(e0[i*len(e0)//6:(i+1)*len(e0)//6], []) for i in range(6)}
    nb = 0; fb, pb = (OPT["flagb"] if tr else OPT["flagb_n"]), OPT["pollb"]; nps = 0
    for k in range(1, 20):
        c = (k - 1)//2
        M = g1_mfma(k & 1, tr, False)
        ls = []
        if k & 1:
            if k > 1: a += W(lg=[f"r{k}"] + (["y2"] if k == 19 else []) + (["pr"] if k - 1 == PKR else []))
            a.append(M.pop(0))
            vm = [f"c{c+1}"] if c < 9 else []
            if c == fb: vm += ["cs", "ss"] + (["ps"] if tr else [])
            if k == PKR: vm += ["pk"]
            if c == pb + 1: vm += ["pa"]
            if c == 8: vm += ["aux"]
            if vm: a += W(vm)
            if c == pb + 1: a += check(tg + "_sa", 6, VF)
            a("s_barrier")
            if c == 0: a += stamp("b0")
            if c == 7: a += stamp("tail")
            a += stamp(f"b{c}") if c > 0 else []
            if c == fb: ls.append((flag("s49"), 0, 2))
            if c == pb: ls.append((L(f"v_lshlrev_b32 v6, {OPT['fash']}, v0\nv_add_u32 v6, {FA}, v6") + poll(6, VF, "pa"), 0, 2))
            if c == 7: ls.append(([x for x in aux], 0, 2))
            dx, dw = (dma_next(c+3) + dma_x(c+3), dma_w(c+3)) if c + 3 <= 9 else ([], [])
            if k == PKD: ls += [(pk_d, 0, 9), (dx[:-4], 14, 28)]
            else: ls.append((dx, 1, 27))
            if k == PKR: ls.append((tag(pk_r, "pr"), 10, 26))
            if c == 0: ls.append((cs_st, 12, 27))
            if c == 8: ls.append((y1, 8, 22))
        else:
            a += W(lg=[f"r{k}"] + (["y1"] if c == 8 else []) + (["pr"] if k - 1 == PKR else []))
            if k - 1 == PKD: ls.append((dx[-4:] + dw, 0, 28))
            else: ls.append((dw, 1, 27))
            if c == 6: ls.append((auxa, 17, 28))
            if c == 8: ls.append((y2, 0, 12))
        if PKS.get(k): ls.append((pk_s[nps:nps+PKS[k]], 2, 28 if nps + PKS[k] < 5 else 16)); nps += PKS[k]
        if k < 19: ls.insert(0, (g1_reads(k+1), 1 if k & 1 else 0, 17))
        else: ls.insert(0, (rd, 0, 22))
        if k == 16: ls.append((su, 18, 28))
        if k in early: ls.append((early[k], 4, 28))
        if k == OPT["cpf2"]:
            ls.append((L(f"v_add_u32 v{CS+8}, s50, v4\nv_min_u32 v{CS+8}, CODE_MAX, v{CS+8}\ns_cmp_gt_u32 s50, CODE_MAX\ns_cbranch_scc1 {tg}_c2\nglobal_load_dwordx4 {vr(CS+12)}, v{CS+8}, s[0:1] ;nocount\n{tg}_c2:"), 29 - (k & 1), 29 - (k & 1)))
        if pf.get(k):
            assert c > pb
            assert all(x[0] == "B" and x[1] < 60 for x in st.items[:pf[k]])
            ls.append((st.take(pf[k]), 3, 28))
        a += place(M, ls)
    a += stamp("lend")
    return a

def stats_math():
    a = A(); src = 8; tmp = 20; ac = 44
    for i in range(12):
        a(f"v_lshlrev_b32 v{tmp+2*i}, 16, v{src+i}\nv_and_b32 v{tmp+2*i+1}, 0xffff0000, v{src+i}")
    a(f"v_pk_add_f32 {vr(ac,2)}, {vr(tmp,2)}, {vr(tmp+2,2)}")
    for i in range(2, 12): a(f"v_pk_add_f32 {vr(ac,2)}, {vr(ac,2)}, {vr(tmp+2*i,2)}")
    def red():
        a(f"v_add_f32 v{ac}, v{ac}, v{ac+1}")
        for r in (8, 4, 2, 1): a(f"v_add_f32_dpp v{ac}, v{ac}, v{ac} row_ror:{r} row_mask:0xf bank_mask:0xf")
        a(f"v_mov_b32 v{ac+1}, v{ac}\nv_permlane16_swap_b32 v{ac}, v{ac+1}\nv_add_f32 v{ac}, v{ac}, v{ac+1}")
    red()
    a(f"v_mul_f32 v46, 0xbacccccd, v{ac}")
    a(f"v_cndmask_b32 v47, 0, v46, s[32:33]")
    for i in range(8): a(f"v_pk_add_f32 {vr(tmp+2*i,2)}, {vr(tmp+2*i,2)}, v[46:47] op_sel_hi:[1,0]")
    for i in range(8, 12): a(f"v_pk_add_f32 {vr(tmp+2*i,2)}, {vr(tmp+2*i,2)}, v[46:47] op_sel:[0,1] op_sel_hi:[1,1]")
    a(f"v_pk_mul_f32 {vr(ac,2)}, {vr(tmp,2)}, {vr(tmp,2)}")
    for i in range(1, 12): a(f"v_pk_fma_f32 {vr(ac,2)}, {vr(tmp+2*i,2)}, {vr(tmp+2*i,2)}, {vr(ac,2)}")
    red()
    a(f"""
    v_mov_b32 v{ac+1}, 0x3727c5ac
    v_fmac_f32 v{ac+1}, 0x3acccccd, v{ac}
    v_rsq_f32 v{ac+1}, v{ac+1}
    v_and_b32 v48, 31, v7
    v_cmp_eq_u32 vcc, 0, v48
    v_lshrrev_b32 v49, 5, v7
    v_lshlrev_b32 v49, 2, v49
    v_cndmask_b32 v46, v{ac+1}, v46, vcc
    v_lshl_add_u32 v49, v48, 13, v49
    v_cmp_gt_u32 vcc, 2, v48
    v_mov_b32 v50, {OOB}
    s_lshl_b32 s28, s48, 3
    s_add_u32 s28, s28, {NEGM}
    v_cndmask_b32 v49, v50, v49, vcc
    buffer_store_dword v46, v49, s[16:19], s28 offen sc1 ;#ss
    s_lshl_b32 s28, s2, 8
    s_add_u32 s28, s28, {KVP}
    s_cmp_eq_u32 s20, 1
    s_cselect_b32 s28, s28, {OOB}
    v_lshlrev_b32 v49, 2, v7
    v_mov_b32 v50, 0
    buffer_store_dword v50, v49, s[16:19], s28 offen sc1 ;#ss
    """)
    return list(a)

def prologue():
    a = A()
    a += stamp("entry")
    a(f"""
    s_cmp_ge_u32 s2, 256
    s_cbranch_scc1 k_end
    s_load_dwordx16 s[60:75], s[0:1], 0
    s_load_dwordx2 s[26:27], s[0:1], 64
    s_getpc_b64 s[36:37]
    v_lshrrev_b32 v1, 6, v0
    v_and_b32 v7, 63, v0                 ; lane
    v_readfirstlane_b32 s20, v1          ; wave
    v_lshlrev_b32 v4, 4, v7
    v_lshrrev_b32 v1, 5, v7
    v_mul_u32_u24 v1, {1280-512}, v1
    v_add_u32 v52, v1, v4
    v_and_b32 v1, 16, v7
    v_cmp_eq_u32 s[32:33], 0, v1
    v_mov_b32 v2, {OOB}
    s_lshl_b32 s48, s2, 2
    s_add_u32 s48, s48, s20              ; stats job
    s_mul_i32 s35, s48, 2560
    v_cndmask_b32 v53, v2, v52, s[32:33]
    s_and_b32 s3, s2, 7
    s_lshl_b32 s3, s3, 5
    s_lshr_b32 s21, s2, 3
    s_add_u32 s3, s3, s21                ; lin
    """)
    if OPT["cmaj"]:
        a("""
        s_mul_i32 s28, s3, 5958
        s_lshr_b32 s28, s28, 16              ; p = lin/11
        s_mul_i32 s29, s28, 11
        s_sub_u32 s21, s3, s29               ; rb
        s_add_u32 s44, s21, s28
        s_mul_i32 s29, s28, 86
        s_lshr_b32 s29, s29, 8               ; g = p/3
        s_sub_u32 s22, s28, s29
        s_add_u32 s22, s22, 7                ; 8 + 2g + r - 1
        s_mul_i32 s30, s29, 3
        s_cmp_eq_u32 s30, s28
        s_cselect_b32 s22, s29, s22
        """)
    else:
        a(f"""
    s_cmp_lt_u32 s3, 138
    s_cselect_b32 s28, 0, 138
    s_cselect_b32 s29, 10923, 13108
    s_cselect_b32 s30, 6, 5
    s_cselect_b32 s31, 0, 6
    s_sub_u32 s28, s3, s28
    s_mul_i32 s22, s28, s29
    s_lshr_b32 s22, s22, 16              ; ctq
    s_mul_i32 s30, s22, s30
    s_sub_u32 s21, s28, s30
    s_add_u32 s21, s21, s31              ; rb
    """)
        if OPT["snake"]: a("s_sub_u32 s28, 22, s22\ns_cmp_lt_u32 s3, 138\ns_cselect_b32 s22, s22, s28")
        a("s_add_u32 s44, s21, s22")
        if OPT.get("mix", 1):
            a("""
        s_mul_i32 s28, s22, 43
        s_lshr_b32 s28, s28, 8               ; g = p/6
        s_mul_i32 s29, s28, 6
        s_sub_u32 s29, s22, s29              ; r
        s_mul_i32 s30, s28, 3
        s_add_u32 s30, s30, s29
        s_add_u32 s30, s30, 9                ; w1: 12+3g+r-3
        s_lshl_b32 s31, s28, 1
        s_add_u32 s31, s31, s29
        s_sub_u32 s31, s31, 1                ; kv: 2g+r-1
        s_add_u32 s28, s28, 8                ; q
        s_cmp_lt_u32 s29, 3
        s_cselect_b32 s22, s31, s30
        s_cmp_eq_u32 s29, 0
        s_cselect_b32 s22, s28, s22
        """)
    a(f"""
    s_cmp_ge_u32 s3, 253
    s_cselect_b32 s21, 11, s21
    s_cselect_b32 s22, 12, s22
    s_waitcnt lgkmcnt(0)
    """)
    a += stamp("karg")
    a += srd(8, 60, S*D*2)
    for j in range(3): a(f"buffer_load_dwordx4 {vr(8+4*j)}, v{53 if j == 2 else 52}, s[8:11], s35 offen offset:{512*j} ;#sl")
    a(f"""
    s_load_dword s39, s[26:27], 0
    s_cmp_ge_u32 s21, 10
    s_cselect_b32 s54, 9, s21            ; start chunk
    s_mul_i32 s28, s21, 192
    s_mul_i32 s29, s20, 48
    s_add_u32 s28, s28, s29
    s_mul_i32 s28, s28, 1280
    v_lshrrev_b32 v1, 3, v7              ; r8
    v_lshrrev_b32 v2, 1, v1
    v_and_b32 v3, 7, v7
    v_xor_b32 v2, v2, v3
    v_mul_u32_u24 v1, 1280, v1
    v_lshl_add_u32 v252, v3, 4, v1
    v_add_u32 v1, s28, v1
    v_lshl_add_u32 v3, v2, 4, v1
    v_xor_b32 v2, 4, v2
    v_lshl_add_u32 v6, v2, 4, v1
    """)
    for j in range(6): a(f"v_add_u32 v{VX+j}, {j*10240 - 1024*(j%4)}, v{6 if j & 1 else 3}")
    a("s_mul_i32 s40, s20, 6144\ns_lshl_b32 s42, s54, 7")
    a += dma_x(0)
    a(f"""
    s_cmp_lt_u32 s22, 12
    s_cselect_b32 s12, s62, s68
    s_cselect_b32 s13, s63, s69
    s_cselect_b32 s14, {D*3*D*2}, {D*F*2}
    s_cselect_b32 s50, 3840, 3456        ; W row stride
    s_cselect_b32 s28, 8, 12
    s_and_b32 s13, s13, 0xffff
    s_mov_b32 s15, 0x20000
    s_lshl_b32 s45, s50, 6
    s_sub_u32 s23, s22, s28
    """)
    if not OPT["wrow"]:
        a(f"""
    s_lshl_b32 s28, s20, 4
    v_lshrrev_b32 v1, 2, v7
    v_add_u32 v1, s28, v1
    v_mul_lo_u32 v1, v1, s50             ; row*stride
    v_lshrrev_b32 v2, 4, v7
    v_and_b32 v2, 2, v2
    v_and_b32 v3, 3, v7
    v_xor_b32 v2, v2, v3                 ; p'
    v_lshl_add_u32 v1, v2, 4, v1
    s_mul_i32 s29, s23, 320
    s_mul_i32 s30, s22, 160
    s_add_u32 s30, s30, 1280
    s_cmp_lt_u32 s22, 8
    s_cselect_b32 s29, s30, s29
    s_cselect_b32 s30, 1200, 0
    s_cselect_b32 s31, -1280, 0
    v_add_u32 v{VW}, s29, v1
    v_mov_b32 v1, s30
    v_mov_b32 v3, s31
    v_cmp_le_u32 vcc, 1, v2
    s_add_u32 s28, s30, 128
    s_add_u32 s29, s28, s31
    v_cndmask_b32 v6, 0, v1, vcc
    v_cmp_le_u32 vcc, 2, v2
    v_add3_u32 v{VW+1}, v{VW}, 64, v6
    s_add_u32 s29, s29, 64
    v_cndmask_b32 v6, 0, v3, vcc
    v_cmp_le_u32 vcc, 3, v2
    v_add3_u32 v{VW+2}, v{VW}, s28, v6
    s_add_u32 s28, s29, s30
    v_cndmask_b32 v6, 0, v1, vcc
    s_add_u32 s28, s28, 64
    v_add3_u32 v{VW+3}, v{VW}, s29, v6
    v_add_u32 v{VW+4}, s28, v{VW}
    """)
    else:
        a(f"""
        s_mul_i32 s29, s23, 320
        s_mul_i32 s30, s22, 160
        s_add_u32 s30, s30, 1280
        s_cmp_lt_u32 s22, 8
        s_cselect_b32 s29, s30, s29
        s_cselect_b32 s30, 1200, 0
        s_cselect_b32 s31, -80, 0
        s_lshl_b32 s28, s20, 4
        s_mul_i32 s28, s28, s50
        s_add_u32 s29, s29, s28
        """)
        for jj in range(5):
            a(f"""
            v_add_u32 v1, {64*jj}, v7
            v_mul_u32_u24 v2, 3277, v1
            v_lshrrev_b32 v2, 16, v2
            v_mul_u32_u24 v3, 20, v2
            v_sub_u32 v3, v1, v3
            v_lshrrev_b32 v1, 2, v2
            v_and_b32 v1, 2, v1
            v_xor_b32 v3, v3, v1              ; c'
            v_mul_u32_u24 v2, s50, v2
            v_lshl_add_u32 v2, v3, 4, v2
            v_mul_u32_u24 v3, 205, v3
            v_bfe_u32 v1, v3, 10, 1
            v_lshrrev_b32 v3, 11, v3
            v_mad_u32_u24 v2, v1, s30, v2
            v_mad_i32_i24 v2, v3, s31, v2
            v_add_u32 v2, s29, v2
            v_subrev_u32 v{VW+jj}, {1024*(jj%4)}, v2
            """)
    a(f"""
    s_mul_i32 s41, s20, 5120
    s_add_u32 s41, s41, {WOFF}
    s_mul_i32 s43, s54, s45
    s_and_b32 s36, s36, 0xffffff00
    s_lshr_b32 s28, s2, 3
    s_lshl_b32 s29, s20, 5
    s_add_u32 s28, s28, s29
    s_add_u32 s28, s28, 2
    s_mov_b64 s[0:1], s[36:37]
    s_lshl_b32 s50, s28, 10
    s_cmp_ge_u32 s28, CODE_KB
    s_cbranch_scc1 k_nocp
    v_add_u32 v1, s50, v4
    v_min_u32 v1, CODE_MAX, v1
    global_load_dwordx4 v[128:131], v1, s[0:1] ;nocount
    k_nocp:
    """)
    su = A()
    su += srd(16, 26, WS_USED)
    su += srd(4, 72, S*D*2)
    su(f"""
    v_add_u32 v5, 4096, v4
    s_lshr_b32 s51, s20, 1               ; wr
    s_and_b32 s52, s20, 1                ; wc
    s_sub_u32 s36, s22, 8
    s_mul_i32 s36, s36, 11
    s_add_u32 s36, s36, s21
    s_cmp_ge_u32 s21, 11
    s_cselect_b32 s36, 160, s36
    s_lshr_b32 s37, s36, 1               ; ks
    s_and_b32 s38, s36, 1
    s_cmp_lt_u32 s37, 54
    s_cselect_b32 s56, s70, s64
    s_cselect_b32 s57, s71, s65
    s_cselect_b32 s58, {F*D*2}, {D*D*2}
    s_cselect_b32 s28, 0, 54
    s_and_b32 s57, s57, 0xffff
    s_mov_b32 s59, 0x20000
    s_sub_u32 s28, s37, s28
    s_mul_i32 s28, s28, {32*1280}
    s_mul_i32 s29, s38, 640
    s_add_u32 s55, s28, s29
    s_mul_i32 s29, s20, 10240
    s_add_u32 s55, s55, s29
    s_mul_i32 s53, s20, 5120
    s_add_u32 s53, s53, {PACKL}
    s_and_b32 s3, s2, 7
    """)
    if OPT["p2map"] == 0:
        su("s_lshl_b32 s24, s3, 2\ns_lshr_b32 s28, s2, 6\ns_add_u32 s24, s24, s28\ns_bfe_u32 s25, s2, 0x30003")
    else:
        su("s_lshr_b32 s24, s3, 1\ns_lshl_b32 s24, s24, 3\ns_lshr_b32 s28, s2, 5\ns_add_u32 s24, s24, s28\ns_bfe_u32 s25, s2, 0x20003\ns_and_b32 s28, s3, 1\ns_lshl_b32 s28, s28, 2\ns_add_u32 s25, s25, s28")
    su(f"""
    s_mul_i32 s28, s37, 205
    s_lshr_b32 s28, s28, 10              ; c
    s_mul_i32 s30, s28, 5
    s_sub_u32 s30, s37, s30              ; r
    s_lshl_b32 s29, s30, 3
    s_mov_b32 s47, 0x01001600            ; r -> 0, 22, -, 1
    s_lshr_b32 s47, s47, s29
    s_and_b32 s47, s47, 255
    s_cmp_eq_u32 s30, 4
    s_cselect_b32 s47, 23, s47
    s_lshl_b32 s29, s28, 1
    s_add_u32 s47, s47, s29
    s_add_u32 s28, s28, 43
    s_cmp_eq_u32 s30, 2
    s_cselect_b32 s31, 1, 0
    s_cselect_b32 s47, s28, s47
    s_cmp_ge_u32 s37, 54
    s_cselect_b32 s31, 1, s31
    s_cselect_b32 s47, s37, s47          ; storage index
    s_cmp_eq_u32 s31, 1
    s_cselect_b32 s28, 10240, 5120       ; per g>>1
    s_cselect_b32 s29, 5120, 512         ; per g&1
    s_cselect_b32 s30, 512, 10240
    v_lshrrev_b32 v59, 4, v7             ; g
    v_bfe_u32 v56, v7, 2, 2              ; rr
    v_and_b32 v57, 3, v7                 ; c4
    v_and_b32 v58, 1, v59                ; g&1
    v_lshrrev_b32 v55, 1, v59
    v_mul_u32_u24 v1, s28, v55
    v_mad_u32_u24 v1, v58, s29, v1
    v_lshl_add_u32 v1, v56, 7, v1
    v_lshl_add_u32 v1, v57, 3, v1
    s_mul_i32 s28, s20, 1056
    s_add_u32 s28, s28, {PACKL}
    v_add_u32 v1, s28, v1
    v_add_u32 v2, s30, v1
    s_lshl_b32 s28, s38, 2
    s_add_u32 s28, s28, s20              ; ct
    s_mul_i32 s28, s28, {74*5120}
    s_mul_i32 s29, s47, 5120
    s_add_u32 s28, s28, s29
    s_add_u32 s28, s28, {WP}
    s_cmp_ge_u32 s36, 148
    s_cselect_b32 s60, {OOB}, s28
    """)
    su(f"""
    v_and_b32 v3, 15, v7                 ; m
    v_lshrrev_b32 v6, 1, v3
    v_xor_b32 v6, v6, v59
    s_mul_i32 s28, s51, 12288
    v_lshl_add_u32 v55, v3, 7, s28
    v_lshl_add_u32 v{LA}, v6, 4, v55
    v_xor_b32 v6, 4, v6
    v_lshl_add_u32 v{LA+1}, v6, 4, v55
    """)
    if OPT["wrow"]: su("v_lshl_add_u32 v55, v59, 3, v56\nv_mul_u32_u24 v55, 320, v55")
    else: su("v_lshrrev_b32 v55, 1, v59\nv_mul_u32_u24 v55, 5120, v55\nv_lshl_add_u32 v55, v58, 9, v55\nv_lshl_add_u32 v55, v56, 6, v55")
    su(f"""
    v_lshl_add_u32 v55, v57, 3, v55
    v_add_u32 v55, {WOFF}, v55
    s_cmp_lt_u32 s22, 8
    s_cselect_b32 s28, 5, 6
    s_cselect_b32 s29, 9, 5
    s_cmp_eq_u32 s52, 0
    s_cselect_b32 s28, 0, s28
    s_cselect_b32 s29, 4, s29
    s_add_u32 s30, s28, 1
    """)
    for i, sreg in enumerate((28, 30, 29)):
        su(f"""
        s_and_b32 s64, s{sreg}, 1
        s_lshr_b32 s65, s{sreg}, 1
        s_lshl_b32 s65, s65, {6 if OPT["wrow"] else 10}
        v_xor_b32 v6, s64, v58
        v_lshl_add_u32 v6, v6, 5, v55
        v_add_u32 v{LB+i}, s65, v6
        """)
    su(f"""
    s_lshl_b32 s28, s28, 6
    s_lshl_b32 s29, s29, 6
    v_lshl_add_u32 v253, v7, 2, s28
    v_lshl_add_u32 v254, v7, 2, s29
    v_cmp_gt_u32 vcc, 16, v7
    v_mov_b32 v6, {OOB}
    s_add_u32 s34, s28, {CSL}
    s_add_u32 s35, s29, {CSL}
    v_cndmask_b32 v254, v6, v254, vcc
    s_mul_i32 s74, s22, 6400
    s_add_u32 s74, s74, {CSP}
    s_mul_i32 s64, s21, 640
    s_add_u32 s64, s64, s74
    s_cmp_ge_u32 s21, 10
    s_cselect_b32 s64, {OOB}, s64
    s_cmp_eq_u32 s51, 1
    s_cselect_b32 s64, {OOB}, s64
    v_mov_b32 v6, 0x3f803f80
    v_accvgpr_write_b32 a{ONES}, v6
    v_accvgpr_write_b32 a{ONES+1}, v6
    v_accvgpr_write_b32 a{ONES+2}, v6
    v_accvgpr_write_b32 a{ONES+3}, v6
    s_lshl_b32 s49, s2, {OPT['fash']}
    s_add_u32 s49, s49, {FA}
    s_cmp_eq_u32 s20, 0
    s_cselect_b32 s49, s49, {OOB}
    s_add_u32 s73, s2, s20
    s_cmp_eq_u32 s73, 0
    s_cselect_b32 s73, 0, {OOB}
    s_mul_i32 s29, s25, {74*5120}
    s_add_u32 s29, s29, {WP}
    s_mul_i32 s28, s20, 5120
    s_add_u32 s46, s29, s28              ; B stream first
    s_lshl_b32 s69, s20, 10
    s_add_u32 s70, s29, {54*5120}
    s_add_u32 s70, s70, s69
    s_lshl_b32 s72, s20, 10
    s_add_u32 s72, s72, {AUXC}
    s_mul_i32 s65, s21, 768
    s_add_u32 s65, s65, {NEGM - 144*16}
    s_movk_i32 s66, 192
    """)
    if OPT["krot"] == 2: su("s_and_b32 s67, s44, 1\ns_mul_i32 s67, s67, 5")
    if OPT["krot"] == 3: su("s_mul_i32 s28, s44, 86\ns_lshr_b32 s28, s28, 8\ns_mul_i32 s28, s28, 3\ns_sub_u32 s28, s44, s28\ns_mul_i32 s67, s28, 7\ns_lshr_b32 s67, s67, 1")
    if OPT["krot"] == 5: su("s_mul_i32 s28, s44, 52\ns_lshr_b32 s28, s28, 8\ns_mul_i32 s28, s28, 5\ns_sub_u32 s28, s44, s28\ns_lshl_b32 s67, s28, 1")
    a += inter(su, grp(dma_w(0), 1))
    a += stamp("c0i")
    a += dma_next(1)
    a += W("sl")
    a += stamp("sl")
    a += inter(setup_s() + stats_math(), grp(dma_x(1) + dma_w(1), 1))
    a += dma_next(2)
    a("s_waitcnt lgkmcnt(0)\ns_mul_i32 s39, s39, 1664525\ns_add_u32 s39, s39, 1013904223")
    a += stamp("pend")
    return a

def zipw(*ls):
    keyed = []
    for li, l in enumerate(ls):
        for j, x in enumerate(l): keyed.append(((j + 0.5)/len(l), li, j, x))
    keyed.sort(key=lambda t: t[:3])
    return [y for k in keyed for y in k[3]]
def epi_t(kind, st):
    RC = AB[0]; PK = AB[1]; TMP = BB[0]
    e = A()
    for T in range(6):
        c = RC + 4*T
        e(f"v_mul_f32 v{c+2}, s83, v{c+1}")
        if kind == "silu": e(f"v_rcp_f32 v{c+3}, v{c+1}")
    blocks = [[(T, i) for T in Ts for i in idx] for idx in ((0, 1, 2, 3), (4, 5, 6, 7)) for Ts in ((0, 1), (2, 3), (4, 5))]
    blocks.append([(T, i) for T in range(6) for i in (8, 9)])
    inc = lambda T: 's81' if T == 1 else 's82' if T == 3 else 1024
    pend = []
    for bi, blk in enumerate(blocks):
        V = []; n = len(blk)
        u = lambda k: acc(blk[k][0], 0) + 2*blk[k][1]
        c = lambda k: RC + 4*blk[k][0]
        for k in range(n): V.append(f"  v_pk_fma_f32 {vr(u(k),2)}, {vr(CS+2*blk[k][1],2)}, {vr(c(k),2)}, {vr(u(k),2)} op_sel_hi:[1,0,1]")
        for k in range(n): V.append(f"  v_pk_mul_f32 {vr(TMP+2*k,2)}, {vr(u(k),2)}, {vr(c(k)+2,2)} op_sel_hi:[1,0]")
        if kind == "silu":
            for k in range(2*n): V.append(f"  v_exp_f32 v{TMP+k}, v{TMP+k}")
            for k in range(n): V.append(f"  v_pk_fma_f32 {vr(TMP+2*k,2)}, {vr(TMP+2*k,2)}, {vr(c(k)+2,2)}, {vr(c(k)+2,2)} op_sel:[0,1,1] op_sel_hi:[1,1,1]")
            for k in range(2*n): V.append(f"  v_rcp_f32 v{TMP+k}, v{TMP+k}")
            fin = lambda k: f"  v_pk_mul_f32 {vr(u(k),2)}, {vr(u(k),2)}, {vr(TMP+2*k,2)}"
        else:
            for k in range(2*n): V.append(f"  v_exp_f32_e64 v{TMP+k}, v{TMP+k} clamp")
            for k in range(n): V.append(f"  v_pk_fma_f32 {vr(u(k),2)}, {vr(u(k),2)}, {vr(c(k),2)}, 1.0 op_sel:[0,1,0] op_sel_hi:[1,1,0]")
            for k in range(2*n): V.append(f"  v_max_f32 v{u(k//2)+(k&1)}, v{u(k//2)+(k&1)}, v{TMP+k}")
            fin = lambda k: f"  v_pk_add_f32 {vr(u(k),2)}, {vr(u(k),2)}, {vr(VX+4,2)}"
        items = pend + grp(st.take(OPT["epi"][bi]), 1)
        if bi == OPT["f1blk"]: items.insert(len(pend) + OPT["f1pos"], W("sa") + L("s_barrier") + flag("s75") + stamp("f1"))
        ins = {}
        for k, x in enumerate(items): ins[5 + (k*(len(V) - 6)//len(items))//2*2] = x
        for i, v in enumerate(V):
            e.append(v)
            if i in ins: e += ins[i]
        p = PK + 12*(bi & 1); tg = " ;#sa" if bi < 3 else ""
        if bi in (0, 3, 6): e("s_mov_b32 s48, s80")
        pend = []
        for q in range(n//4):
            for k in range(4*q, 4*q + 4): e.append(fin(k))
            for k in range(4*q, 4*q + 4): e(f"v_cvt_pk_bf16_f32 v{p+k}, v{u(k)}, v{u(k)+1}")
            if bi < 6:
                T = blk[4*q][0]
                stv = [f"  buffer_store_dwordx4 {vr(p+4*q)}, v{VX + bi//3}, s[76:79], s48 offen sc1{tg}"]
                if T < 5: stv.append(f"  s_add_u32 s48, s48, {inc(T)}")
                if q == 0: e += stv
                else: pend.append(stv)
            else:
                e(f"v_permlane16_swap_b32 v{p+4*q}, v{p+4*q+2}\nv_permlane16_swap_b32 v{p+4*q+1}, v{p+4*q+3}")
                e(f"buffer_store_dwordx4 {vr(p+4*q)}, v{VX+2}, s[76:79], s48 offen sc1")
                if q < 2: e(f"s_add_u32 s48, s48, 1024\ns_add_u32 s48, s48, {inc(2*q+1)}")
    return resolve(e)

def epi_kv(st):
    a = A()
    NM = AB[0]; TMP = BB[1]; FR = AB[1]; DD = ACC
    def RSf(T): return BB[0] + 4*T if T < 5 else VX
    a(f"""
    v_mov_b32 v{TMP+12}, 0x358637bd
    v_mov_b32 v{TMP+13}, 0x358637bd
    v_mov_b32 v{TMP+14}, 0x3f803f80
    s_waitcnt lgkmcnt(0)
    """)
    def kvm(P): return [f"  v_mfma_f32_16x16x32_bf16 {vr(DD+4*n)}, {vr(FR+4*kx)}, {vr(FR+4*vy)}, {'0' if P == 0 else vr(DD+4*n)}" for n, (kx, vy) in enumerate(PRODS)]
    for P in range(3):
        for h in range(2):
            T = 2*P + h; u0 = acc(T, 0); nm = NM + 4*T; rs = RSf(T); b = A()
            for t in range(5):
                for i in range(2):
                    r = u0 + 4*t + 2*i
                    b(f"v_pk_fma_f32 {vr(r,2)}, {vr(nm+2*i,2)}, {vr(CS+4*t,2)}, {vr(r,2)} op_sel_hi:[1,0,1]")
            for t in range(5):
                for i in range(2):
                    r = u0 + 4*t + 2*i
                    b(f"v_pk_mul_f32 {vr(r,2)}, {vr(r,2)}, {vr(rs+2*i,2)}")
            for i in range(6): b(f"v_pk_mul_f32 {vr(TMP+2*i,2)}, {vr(u0+2*i,2)}, s[30:31]")
            for i in range(12): b(f"v_exp_f32_e64 v{TMP+i}, v{TMP+i} clamp")
            for t in range(2, 5):
                for i in range(2): b(f"v_cvt_pk_bf16_f32 v{FR+4*(t+1)+2*h+i}, v{u0+4*t+2*i}, v{u0+4*t+2*i+1}")
            for i in range(2): b(f"v_cndmask_b32 v{FR+12+2*h+i}, v{FR+12+2*h+i}, v{TMP+14}, s[32:33]")
            for i in range(6): b(f"v_pk_add_f32 {vr(u0+2*i,2)}, {vr(u0+2*i,2)}, 1.0 op_sel_hi:[1,0]")
            for i in range(12): b(f"v_max_f32 v{u0+i}, v{u0+i}, v{TMP+i}")
            for i in range(6): b(f"v_pk_add_f32 {vr(u0+2*i,2)}, {vr(u0+2*i,2)}, {vr(TMP+12,2)}")
            for t in range(3):
                for i in range(2): b(f"v_cvt_pk_bf16_f32 v{FR+4*t+2*h+i}, v{u0+4*t+2*i}, v{u0+4*t+2*i+1}")
            n = OPT["epi_n"][T]
            a += inter(b, grp(st.take(n), 1), 2) if n else b
        if P: a(f"s_cmp_eq_u32 s36, 1\ns_cbranch_scc1 k_kvs{P}")
        for n, (kx, vy) in enumerate(PRODS):
            d = vr(DD + 4*n)
            a(f"v_mfma_f32_16x16x32_bf16 {d}, {vr(FR+4*kx)}, {vr(FR+4*vy)}, {'0' if P == 0 else d}")
        if P: a(f"k_kvs{P}:")
    a += stamp("kvv")
    a(f"""
    s_mul_i32 s28, s51, 1792
    s_add_u32 s37, s37, s28
    s_lshl_b32 s29, s52, 12
    s_add_u32 s28, s28, s29
    s_add_u32 s28, s28, {KVX}
    v_lshlrev_b32 v2, 2, v7
    v_add_u32 v3, s28, v2
    s_cmp_eq_u32 s51, 0
    s_cselect_b32 s28, 64, 8
    v_cmp_gt_u32 vcc, s28, v7
    v_mov_b32 v6, {OOB}
    """)
    for n in range(8): a(f"ds_write_b128 v{KVOF[n]}, {vr(DD+4*n)}")
    a("v_cndmask_b32 v6, v6, v2, vcc\ns_waitcnt lgkmcnt(0)\ns_barrier")
    for n in range(7): a(f"ds_read2st64_b32 {vr(72+2*n,2)}, v3 offset0:{n} offset1:{32+n}")
    for n in range(7):
        a(f"s_waitcnt lgkmcnt({6-n})\nv_add_f32 v{72+2*n}, v{72+2*n}, v{73+2*n}")
        a(f"buffer_atomic_add_f32 v{72+2*n}, v{6 if n == 6 else 2}, s[16:19], s37 offen offset:{256*n}")
    a += stamp("kvs")
    return a

def phase2(st):
    a = A()
    G = 8; AR = 88; NA = 4; SA = 208; XB = 228
    AV = [244, 245, 246, 247]; RW = [248, 249, 250]; XA = [251, 252, 253]
    GA = 152; DB = 208; KA = 236; OA = 0; UA = 237; FW = 238
    g1 = OPT["gap1"]; psched = OPT["psched"]; wtr = OPT["wtrail"]; F1A = 239; XR = 235
    s1 = L(f"""
    s_cmp_eq_u32 s20, 0
    s_cselect_b32 s55, 0, {OOB}
    s_cselect_b64 s[56:57], -1, 0
    s_and_b32 s21, s2, 7
    s_lshl_b32 s21, s21, 1
    s_bfe_u32 s28, s2, 0x10003
    s_add_u32 s21, s21, s28              ; hp
    s_lshr_b32 s23, s2, 4                ; rg
    s_mul_i32 s28, s24, 21846
    s_lshr_b32 s28, s28, 16
    s_add_u32 s28, s28, 144
    s_lshr_b32 s29, s21, 1
    s_mul_i32 s29, s29, 12
    s_sub_u32 s29, s29, 11
    s_lshl_b32 s30, s23, 1
    s_mul_i32 s31, s30, 21846
    s_lshr_b32 s31, s31, 16
    s_add_u32 s30, s30, 1
    s_mul_i32 s30, s30, 21846
    s_lshr_b32 s30, s30, 16
    s_lshr_b32 s34, s21, 2
    s_mul_i32 s34, s34, 12
    s_add_u32 s34, s34, 96
    s_add_u32 s31, s31, s34              ; Q line, first row block (lane 22)
    s_add_u32 s30, s30, s34
    v_min_u32 v2, 10, v7
    v_mad_u32_u24 v2, v2, 12, s28
    v_lshlrev_b32 v3, 7, v2
    v_add_u32 v{F1A}, {FP + FPD}, v3
    v_add_u32 v3, s29, v7
    v_cmp_le_u32 vcc, 11, v7
    v_cndmask_b32 v2, v2, v3, vcc
    v_mov_b32 v3, s31
    v_cmp_le_u32 vcc, 22, v7
    v_cndmask_b32 v2, v2, v3, vcc
    v_mov_b32 v3, s30
    v_cmp_le_u32 vcc, 23, v7
    v_cndmask_b32 v2, v2, v3, vcc
    v_lshlrev_b32 v2, 7, v2
    v_add_u32 v{FW}, {FP}, v2
    s_mul_i32 s54, s21, 5
    s_lshr_b32 s54, s54, 2               ; ksA
    s_lshl_b32 s60, s21, 12
    s_add_u32 s60, s60, {KVP}
    v_lshlrev_b32 v3, 4, v0
    v_cmp_gt_u32 vcc, 210, v0
    v_mov_b32 v6, {OOB}
    v_cndmask_b32 v{KA}, v6, v3, vcc
    s_lshl_b32 s29, s23, 1
    s_add_u32 s29, s29, s51
    s_mul_i32 s29, s29, {20*4096}
    s_lshl_b32 s30, s54, 12
    s_add_u32 s29, s29, s30
    s_lshl_b32 s30, s52, 11
    s_add_u32 s29, s29, s30
    s_add_u32 s61, s29, {PQ}
    s_add_u32 s62, s61, 4096
    """)
    s2 = A()
    s2(f"""
    v_and_b32 v1, 15, v7                 ; i / m
    v_lshrrev_b32 v2, 4, v7              ; g
    v_lshrrev_b32 v3, 2, v1
    v_and_b32 v124, 3, v1
    v_lshl_add_u32 v6, v3, 3, v124
    v_cmp_le_u32 vcc, 20, v6
    v_cndmask_b32 v128, 0, 5, vcc
    v_lshlrev_b32 v132, 2, v128
    v_sub_u32 v132, v6, v132
    v_add_u32 v6, 4, v6
    v_cmp_le_u32 vcc, 20, v6
    v_cndmask_b32 v129, 0, 5, vcc
    v_lshlrev_b32 v133, 2, v129
    v_sub_u32 v133, v6, v133
    v_cmp_gt_u32 vcc, 8, v1
    v_cndmask_b32 v130, 64, 5, vcc
    v_add_u32 v134, 12, v1
    v_add_u32 v6, v3, v124
    v_cmp_le_u32 vcc, 3, v6
    v_cmp_le_u32 s[34:35], 2, v124
    s_or_b64 vcc, vcc, s[34:35]
    v_cndmask_b32 v131, 0, 5, vcc
    v_mov_b32 v135, 20
    v_mov_b32 v125, 255
    s_mov_b32 s37, {RED}
    """)
    for k in range(2):
        s2(f"""
        s_add_u32 s31, s54, {k}
        s_mul_i32 s32, s31, 205
        s_lshr_b32 s32, s32, 10
        s_mul_i32 s32, s32, 5
        s_sub_u32 s32, s31, s32
        s_cmp_eq_u32 s32, 2
        s_cselect_b32 s33, 1, 0
        s_cselect_b32 s36, 1, 4
        s_lshl_b32 s31, s31, 3
        s_mul_i32 s32, s21, 10
        s_sub_u32 s31, s31, s32
        v_lshlrev_b32 v3, s33, v2
        v_add_u32 v3, s31, v3
        """)
        for j in range(2):
            if j: s2("v_add_u32 v3, s36, v3")
            for tl in range(4):
                s2(f"""
                v_sub_u32 v124, v3, v{128+tl}
                v_cmp_gt_u32 vcc, 5, v124
                v_mad_u32_u24 v124, v3, 21, v{132+tl}
                v_cndmask_b32 v124, v125, v124, vcc
                v_lshl_add_u32 v{GA+tl*4+k*2+j}, v124, 3, s37
                """)
    ol = L(f"buffer_load_dwordx4 v[208:211], v{KA}, s[16:19], s60 offen sc1 ;#P")
    ql = L(f"""
    buffer_load_dwordx4 a[240:243], v4, s[16:19], s61 offen sc1 ;#Q
    buffer_load_dwordx4 a[244:247], v4, s[16:19], s62 offen sc1 ;#Q
    buffer_load_dwordx4 a[248:251], v4, s[16:19], s61 offen offset:1024 sc1 ;#Q
    buffer_load_dwordx4 a[252:255], v4, s[16:19], s62 offen offset:1024 sc1 ;#Q
    """)
    s3 = A()
    s3(f"""
    s_lshl_b32 s28, s23, 2
    s_add_u32 s28, s28, s20              ; rt2
    s_lshl_b32 s64, s23, 4
    s_add_u32 s64, s64, s21
    s_lshl_b32 s64, s64, 7
    s_add_u32 s64, s64, {FO}
    s_add_u32 s64, s64, s55
    s_mul_i32 s28, s28, 40960
    s_mul_i32 s29, s21, 1280
    s_add_u32 s28, s28, s29
    s_add_u32 s63, s28, {OO}
    v_lshlrev_b32 v3, 4, v1
    v_lshl_add_u32 v3, v2, 3, v3
    v_cmp_gt_u32 vcc, 2, v2
    v_mov_b32 v6, {OOB}
    v_lshl_add_u32 v{UA}, v0, 3, s37
    v_cndmask_b32 v{OA}, v6, v3, vcc
    s_mul_i32 s40, s24, {54*4096}
    s_lshl_b32 s28, s20, 12
    s_add_u32 s40, s40, s28
    s_add_u32 s40, s40, {HH}             ; A first
    """)
    for T in range(4):
        s3(f"s_add_u32 s28, s20, {T}\ns_and_b32 s28, s28, 3\ns_lshl_b32 s28, s28, 10\nv_add_u32 v{AV[T]}, s28, v4")
    osum = W("P") + L(f"v_cvt_pk_bf16_f32 v208, v208, v209\nv_cvt_pk_bf16_f32 v209, v210, v211\nds_write_b64 v{UA}, v[208:209]")
    ogat = [f"  ds_read_b64 {ar(2*n,2)}, v{GA+n}" for n in range(16)]
    om = []
    for k in range(2):
        for T in range(2):
            for tl in (3, 0, 1, 2):
                d = vr(DB + 16*T + 4*tl)
                om.append(f"  v_mfma_f32_16x16x32_bf16 {d}, {ar(tl*8+k*4)}, {ar(240+T*8+k*4)}, {'0' if k == 0 else d}")
    ofin = []
    for T in range(2):
        o = A(); b = DB + 16*T; z = b + 12; pk = GA + 6*T
        for r in range(3): o(f"v_add_f32 v{z+r}, 0x358637bd, v{z+r}")
        for r in range(3): o(f"v_rcp_f32 v{z+r}, v{z+r}")
        for tl in range(3):
            for r in range(4): o(f"v_mul_f32 v{b+4*tl+r}, v{b+4*tl+r}, v{z+tl}")
        for i in range(6): o(f"v_cvt_pk_bf16_f32 v{pk+i}, v{b+2*i}, v{b+2*i+1}")
        o(f"buffer_store_dwordx4 {vr(pk)}, v4, s[16:19], s63 offen sc1 ;#OS")
        o(f"buffer_store_dwordx2 {vr(pk+4,2)}, v{OA}, s[16:19], s63 offen offset:1024 sc1 ;#OS")
        if T == 0: o("s_add_u32 s63, s63, 20480")
        ofin.append(list(o))
    fs = A()
    fs(f"""
    s_lshl_b32 s42, s24, 2
    s_add_u32 s42, s42, s20
    s_lshr_b32 s28, s24, 1
    s_lshl_b32 s28, s28, 11
    s_add_u32 s28, s28, {FO}
    v_min_u32 v6, 15, v7
    v_lshl_add_u32 v{VF-1}, v6, 7, s28
    s_mul_i32 s48, s42, {16*1280}
    s_mul_i32 s28, s25, 160
    s_add_u32 s48, s48, s28
    s_mul_i32 s42, s42, 20480
    s_add_u32 s42, s42, {OO}
    s_mul_i32 s49, s20, 15360
    s_add_u32 s49, s49, {RED}
    v_mul_u32_u24 v243, 176, v1
    v_lshl_add_u32 v243, v2, 3, v243
    v_add_u32 v243, s49, v243            ; result write: row stride 176
    """)
    for i in range(3):
        fs(f"""
        v_add_u32 v6, {64*i}, v7
        v_mul_u32_u24 v1, 6554, v6
        v_lshrrev_b32 v1, 16, v1
        v_mul_u32_u24 v3, 1120, v1
        v_lshl_add_u32 v3, v6, 4, v3
        v_cmp_gt_u32 vcc, 160, v6
        v_add_u32 v1, v1, v6
        v_mov_b32 v6, {OOB}
        v_lshl_add_u32 v{240+i}, v1, 4, s49
        v_cndmask_b32 v{XA[i]}, v6, v3, vcc
        """)
    for T in range(1, 4):
        fs(f"s_add_u32 s28, s20, {T}\ns_and_b32 s28, s28, 3\ns_mul_i32 s28, s28, 15360\ns_add_u32 s28, s28, {RED + (T-1)*5120}\nv_add_u32 v{RW[T-1]}, s28, v4")
    fs("v_add_u32 v1, s49, v4\nv_add_u32 v2, 51200, v4")
    MG = OPT["mg"]
    def areg(s): return GA if s == 13 else AR + (s % NA)*16
    def ldA(s):
        r = [f"  buffer_load_dwordx4 {vr(areg(s)+4*T)}, v{AV[T]}, s[16:19], s40 offen sc1 ;#A{s}{'abcd'[T]}" for T in ((1, 2, 3, 0) if s >= MG else range(4))]
        r.append("  s_add_u32 s40, s40, 16384")
        if s == 12: r += L(f"s_cmp_lt_u32 s20, 2\ns_cselect_b32 s40, s40, {OOB}")
        return r
    a("k_p2:\n;MARK ep")
    for i in range(14): a(f";MARK B{i}")
    for i in range(5): a(f";MARK wo{i}")
    a += stamp("eend")
    gs = grp(st.take(g1), 2)
    gs.insert(len(gs) - OPT["poll_early"], poll(F1A, VF, "p1", "s55"))
    k1 = len(glue(s1))
    a += inter(s1 + s2 + s3, gs, k1 if OPT["poll_early"] >= len(gs) - 2 else 0)
    a += W("ep") + L("s_barrier") + flag("s67") + stamp("flag")
    a += W("p1") + check("k_s1", F1A, VF, True) + stamp("c1")
    a += ldA(0) + ldA(1) + inter(fs, grp(ldA(2), 1))
    def ldO(i0, n):
        r = []
        for i in range(i0, i0 + n):
            if i % 4 == 0 or i == i0: r.append(f"  s_add_u32 s43, s42, {1024*(i - i%4)}")
            r.append(f"  buffer_load_dwordx4 {ar(4*i)}, v4, s[16:19], s43 offen offset:{1024*(i%4)} sc1 ;#O{i}")
        return r
    ldX = [[f"  s_add_u32 m0, s49, {4096 + 1024*i}", "  s_nop 0", f"  buffer_load_dwordx4 v{XA[i]}, s[8:11], s48 offen lds ;#X"] for i in range(3)]
    rdX = L("v_and_b32 v3, 15, v7\nv_lshlrev_b32 v3, 4, v3\nv_sub_u32 v3, v243, v3") + W("X") + tag([f"  ds_read_b64 {vr(XB+2*t,2)}, v3 offset:{4096+32*t}" for t in range(5)], "xr")
    NB = 3
    def sb(s, t): return ar(80 + 20*(s % NB) + 4*t)
    def rdB(s): return tag([f"  ds_read_b128 {sb(s,t)}, v{4 if s < 10 else 2} offset:{(s%10)*5120+1024*t}" for t in range(5)], f"b{s}")
    wr_ = tag([f"  ds_write_b128 v{RW[T-1]}, {vr(G+(T*5+t)*4)} offset:{1024*t}" for T in range(1, 4) for t in range(5)], "w")
    rd_ = tag([f"  ds_read_b128 {vr(G+20+4*j)}, v1 offset:{1024*j}" for j in range(15)], "r")
    C2 = OPT["c2"]; plan = OPT["aplan"]; OFS = OPT["ofs"]; PO = OPT["po"]; PC = OPT["pc"]; osched = OPT["osched"]
    no = 0
    XU = AR + 16
    xu = []
    for i in range(10): xu += [f"  v_lshlrev_b32 v{XU+2*i}, 16, v{XB+i}", f"  v_and_b32 v{XU+2*i+1}, 0xffff0000, v{XB+i}"]
    def wdone(g): return ("W", 5*g + 4) not in st.items
    def mf(s, T, rev):
        return [f"  v_mfma_f32_16x16x32_bf16 {vr(G+(T*5+t)*4)}, {breg(s,t)}, {vr(areg(s)+4*T)}, {'0' if s == 0 else vr(G+(T*5+t)*4)}" for t in (range(4, -1, -1) if rev else range(5))]
    nm = 14 - MG; WB = OPT["wb"]
    for s in range(MG + 4):
        if s < MG:
            need = [f"A{s}{c}" for c in "abcd"] + [f"B{s}"]; assert ("B", 5*s + 4) not in st.items
            M = sum((mf(s, T, T & 1) for T in range(4)), [])
        else:
            T = (1, 2, 3, 0)[s - MG]
            need = [f"A{x}{'abcd'[T]}" for x in range(MG, 14)] + ["B13"]; assert ("B", 69) not in st.items
            M = sum((mf(x, T, False) for x in range(MG, 14)), [])
        vm = need + (["op"] if s == PC else []) + ([f"wo{g}" for g in range(5) if g not in wtr] if s == WB else []) + (["OS"] if s == OFS else []) + (["p2"] if s == C2 else [])
        if s == WB: assert all(wdone(g) for g in range(5) if g not in wtr)
        a += W(vm, "*" if s in (C2 + 2, MG + 1) else ())
        a += stamp(f"g{s}")
        if s == C2: a += check("k_sw", FW, VF, True) + stamp("w1")
        if s == PC: a += check("k_so", VF-1, VF, True) + stamp("op")
        if s != PC and s in (OFS, C2 + 2, WB, MG + 1): a("s_barrier")
        ls = []; n = len(M)
        for x in plan.get(s, []): assert (x < 5 or s >= C2) and (x - s <= 3 or (x == 13 and s > C2 + 3))
        v = sum((ldA(x) for x in plan.get(s, [])), [])
        if s == C2: v = ol + ql + v
        if s == OFS: v = flag("s64") + v
        if s == PO: v = poll(VF-1, VF, "op", "s55") + v
        if s == C2 - 1: v += poll(FW, VF, "p2", "s55")
        if s in OPT["xs"]: v += sum([ldX[i] for i, x in enumerate(OPT["xs"]) if x == s], [])
        if psched.get(s): v += st.take(psched[s])
        if osched.get(s): v += ldO(no, osched[s]); no += osched[s]
        ls.append((v, 0, n - 2))
        if s == C2 + 1: ls.append((osum, 16, 19))
        if s == C2 + 2: ls.insert(0, (ogat, 0, 10))
        if s == C2 + 3: ls.append((ofin[0] + ofin[1], 1, 19))
        if s == OPT["xr"]: assert s <= MG and s > OFS; ls.insert(0, (rdX, 0, 8))
        if s > MG: ls.append((wr_[5*(s-MG-1):5*(s-MG)], 2, n - 1))
        if s == MG + 2: ls.append((xu, 0, n - 1))
        if s == MG + 3: ls.append((rdB(0) + rdB(1), 0, n - 2))
        a += place(M, ls)
        if s == C2 + 2: a += W("Q", "*") + stamp("om") + place(om, [(st.take(OPT["pom"]), 0, 15)])
    a += stamp("gend")
    E = G + 20
    VB = []
    for j in range(3):
        for i in range(10): VB.append(f"  v_pk_add_f32 {vr(G+2*i,2)}, {vr(G+2*i,2)}, {vr(G+20+20*j+2*i,2)}")
    VB += [f"  v_pk_mul_f32 {vr(E+2*i,2)}, {vr(G+2*i,2)}, s[30:31]" for i in range(10)]
    def unpk(Vl):
        V2 = []
        for x in Vl:
            m = re.match(r"\s*v_pk_(add|mul)_f32 v\[(\d+):\d+\], v\[(\d+):\d+\], (\S+)", x)
            op, d, p, q = m.group(1), int(m.group(2)), int(m.group(3)), m.group(4)
            for h in range(2):
                qq = "s30" if q.startswith("s[") else f"v{int(q[2:].split(':')[0]) + h}"
                V2.append(f"  v_{op}_f32 v{d+h}, {qq}, v{p+h}")
        return V2
    V = [] if OPT["burst"] else unpk(VB)
    V += [f"  v_exp_f32 v{E+i}, v{E+i}" for i in range(20)]
    V += [f"  v_add_f32 v{E+i}, 1.0, v{E+i}" for i in range(20)]
    V += [f"  v_rcp_f32 v{E+i}, v{E+i}" for i in range(20)]
    V += [f"  v_mul_f32 v{G+i}, v{G+i}, v{E+i}" for i in range(20)]
    V0 = OPT["v0"]; RB = OPT["rb"]; LK = NB - 1; P0 = MG + 4
    cost = [8 if ("exp" in x or "rcp" in x) else 4 for x in V]; tot = sum(cost); parts = [[] for _ in range(20 - V0)]; c_ = 0
    for x, c in zip(V, cost): parts[min(len(parts) - 1, c_*len(parts)//tot)].append(x); c_ += c
    for s in range(20):
        wg = [g for g, st_ in wtr.items() if st_ == s]
        for g in wg: assert s + LK <= 4*g and wdone(g)
        a += W([f"O{s}"] + [f"wo{g}" for g in wg], [f"b{s}"] + (["w"] if s == RB else []) + (["r"] if s == V0 else []))
        if s == RB or wg: a("s_barrier")
        a += stamp(f"s{s}")
        if s == V0 and OPT["burst"]: a += [";@align on"] + VB + [";@align off"]
        M = [f"  v_mfma_f32_16x16x32_bf16 {vr(SA+4*t)}, {sb(s,t)}, {ar(4*s)}, {'0' if s == 0 else vr(SA+4*t)}" for t in range(5)]
        ls = []
        if s + LK < 20: ls.append((rdB(s+LK), 0, 4))
        v = []
        if psched.get(P0 + s): v += st.take(psched[P0 + s])
        if osched.get(P0 + s): v += ldO(no, osched[P0 + s]); no += osched[P0 + s]
        ls.append((v, 0, 4))
        if s == 0: ls.append((L(f"s_mov_b32 s30, {LOG2E|0x80000000}\ns_mov_b32 s31, {LOG2E|0x80000000}"), 0, 4))
        if RB <= s < RB + 3: ls.append((rd_[5*(s-RB):5*(s-RB)+5], 0, 4))
        if s >= V0: ls.append((parts[s-V0], 0, 4))
        a += place(M, ls)
    assert no == 20 and not st.items, (no, st.items)
    a += stamp("send")
    for t in range(5):
        for i in range(2): a(f"v_pk_fma_f32 {vr(SA+4*t+2*i,2)}, {vr(SA+4*t+2*i,2)}, {vr(G+4*t+2*i,2)}, {vr(XU+4*t+2*i,2)}")
        for i in range(2): a(f"v_cvt_pk_bf16_f32 v{XB+2*t+i}, v{SA+4*t+2*i}, v{SA+4*t+2*i+1}")
        a(f"ds_write_b64 v243, {vr(XB+2*t,2)} offset:{32*t}")
    a(";@align off\ns_waitcnt lgkmcnt(0)")
    for i in range(3): a(f"ds_read_b128 {vr(E+4*i)}, v{240+i}")
    for i in range(3): a(f"s_waitcnt lgkmcnt({2-i})\nbuffer_store_dwordx4 {vr(E+4*i)}, v{XA[i]}, s[4:7], s48 offen")
    a += stamp_out()
    return resolve(a)

def build():
    OUTL.clear()
    pro = prologue()
    br = L("s_cmp_lt_u32 s22, 8\ns_cbranch_scc1 k_kv")
    items = [("B", i) for i in range(70)] + [("W", i) for i in range(25)]
    st_t = Stream(items); st_n = Stream(items)
    mt = g1_main("k_t", True, st_t)
    mt += L("s_waitcnt lgkmcnt(0)\ns_cmp_lt_u32 s22, 12\ns_cbranch_scc1 k_q")
    eq = epi_t("phi", Stream(st_t.items)); es = epi_t("silu", st_t)
    mn = g1_main("k_n", False, st_n)
    ek = epi_kv(st_n)
    assert ("B", 60) in st_n.items and st_n.items == st_t.items
    n0 = len(resolve(pro + br))
    a = resolve(pro + br + mt) + es + phase2(st_t) + L("s_endpgm\nk_q:") + eq + L("s_branch k_p2\nk_kv:") + resolve(pro + br + mn + ek)[n0:] + L("s_branch k_p2")
    a += L("k_end:\ns_endpgm") + OUTL
    body, added = haz.fix(a)
    body, nbytes, nn, npm = align.align([x.replace("CODE_KB", "40").replace("CODE_MAX", "44444") for x in body])
    kb = (nbytes + 1023)//1024; assert kb <= 64
    body = [x.replace("s_cmp_ge_u32 s28, 40", f"s_cmp_ge_u32 s28, {kb if OPT.get('cpf', 1) else 0}").replace("44444", str((nbytes - 16) & ~15)) for x in body]
    body = [re.sub(r"\s*;(#\S+|nocount|C)$", "", x) for x in body]
    print("instrs", len(body), "nops added", added, "bytes", nbytes, "align nops", nn, "promoted", npm, file=sys.stderr)
    if OPT.get("nost"): body = [x for x in body if not ("buffer_store_dwordx4" in x and "s[76:79]" in x)]
    if OPT.get("cyc"): body = [x.replace("s_memrealtime", "s_memtime") for x in body]
    out = ["; @launch grid=(256,1,1) block=(256,1,1) lds=163840",
           '.amdgcn_target "amdgcn-amd-amdhsa--gfx950"\n.text', khead(NAME)] + body
    if DIAG: out.append(";ST " + " ".join(OPT["st"][:7]) + "\n;OPTS " + " ".join(x for x in sys.argv[3:] if not x.startswith("st=")))
    out.append('.section .rodata,"a"\n.p2align 6\n' + kd(NAME, 512, 256, 102))
    return "\n".join(out) + "\n"
if __name__ == "__main__":
    for x in sys.argv[2:]:
        if x == "d": DIAG = True
        else:
            k, v = x.split("=", 1); OPT[k] = eval(v)
    src = build()
    open(sys.argv[1], "w").write(src)
```

```python
import sys, re
from asmlib import kd, khead
import haz, align

NAME = "recurrent_scan__linear_attn_block__dense_activation_silu__prompt_kernel"
S, D, F = 2048, 640, 1728
FA = 0x8000
FP = 0xF0000
FPD = 0x9000 - 144*128
FO = 0x38000
NEGM = 0x10000; RSTD = 0x12000
CSP = 0x14000
KVP   = 0x40000
PG = 1 << 21
PW = 0xC8000
RACE = 0xC0000
WPP = 1
HOF = 74*16384; HSZ = 27*16384
QPP = 9; QSZ = 10*16384
WS_USED = 13*PG
TS = 0x1C00000
def blk(dst, rb, kind, t0, t1):
    sh, pg, msk, sz, of = (1, WPP, 1, HSZ, HOF) if kind == "h" else (2, QPP, 3, 2*QSZ, QSZ if kind == "o" else 0)
    return L(f"""
    s_and_b32 s{t0}, s{rb}, 15
    s_lshr_b32 s{t0}, s{t0}, {sh}
    s_add_u32 s{t0}, s{t0}, {pg}
    s_lshr_b32 s{t1}, s{rb}, 4
    s_xor_b32 s{t1}, s{t1}, s{t0}
    s_and_b32 s{t1}, s{t1}, 1
    s_lshl_b32 s{t1}, s{t1}, {12 if OPT["mode"] in ("cols", "none") else 13}
    s_lshl_b32 s{t0}, s{t0}, 21
    s_add_u32 s{t0}, s{t0}, s{t1}
    s_and_b32 s{t1}, s{rb}, {msk}
    s_mul_i32 s{t1}, s{t1}, {sz}
    s_add_u32 s{t0}, s{t0}, s{t1}
    s_add_u32 s{dst}, s{t0}, {of}
    """)
def cell(dst, idx, t0):
    return L(f"s_lshr_b32 s{t0}, s{idx}, 1\ns_lshl_b32 s{t0}, s{t0}, 14\ns_and_b32 s{dst}, s{idx}, 1\ns_lshl_b32 s{dst}, s{dst}, {13 if OPT['mode'] in ('cols', 'none') else 12}\ns_add_u32 s{dst}, s{dst}, s{t0}")
LOG2E = 0x3fb8aa3b
OOB = 0x40000000
STAGE = 45056; WOFF = 24576; SPARE = 3*STAGE
AUXC = SPARE; AUXM = SPARE + 6400
CSL = SPARE + 8192
PACKL = SPARE
KVX = SPARE + 10240
RED = 102400
DIAG = False
OPT = dict(spin=200000, pkd=1, pkr=3, pks={4: 3, 5: 2}, flagb=3, flagb_n=2, pollb=6,
           pf_t={15: 7, 16: 7, 17: 7, 18: 7, 19: 7}, pf_n={15: 6, 16: 6, 17: 6, 18: 6, 19: 6}, epi_n=[7, 7, 7, 6, 6, 0], kv_first=0,
           epi=[5, 4, 4, 3, 4, 3, 5], oq=0, f1blk=5, f1pos=0, gap1=8, poll_early=1, c2=2, pom=2,
           aplan={0:[3],1:[4],2:[5],3:[6],4:[7],5:[8],6:[9],7:[10,13],8:[11],9:[12]},
           mg=11, wb=14, xr=11, rb=1, burst=1, su1=170, su2=300, pp2=0,
           psched={0:1,1:1,10:4,11:3,12:3,15:1,16:1,17:1,18:1,19:1,20:1,21:1,22:1,23:1,24:1},
           xs=[8, 8, 9], ofs=8, po=10, pc=13,
           osched={13:4,14:4,15:2,16:1,17:1,18:1,19:1,20:1,21:1,22:1,23:1,24:1,25:1}, nbuf=3, v0=5, nopk=1, adist=3, p2map=1, su_pre=200, su_pre_n=160, sleep=2, rot=0, snake=1, krot=0, fash=4, wtrail={2:1,3:10,4:14}, wrow=1, cmaj=0, pol="race", mode="rows", trips=9, cpf2=12,
           st=["eend", "w1", "g11", "op", "gend", "s5", "send"])

class A(list):
    def __call__(self, s):
        for x in s.strip("\n").split("\n"):
            x = x.strip()
            m = re.match(r"s_cselect_b32 (s\d+), (\d+|0x[0-9a-f]+), (\d+|0x[0-9a-f]+)\s*(;.*)?$", x)
            if m and int(m.group(2), 0) > 64 and int(m.group(3), 0) > 64:
                self.append(f"  s_mov_b32 {m.group(1)}, {m.group(3)}")
                x = f"s_cselect_b32 {m.group(1)}, {m.group(2)}, {m.group(1)}"
            if x: self.append(("" if x.endswith(":") else "  ") + x)
        return self
def L(s): return list(A()(s))
def stamp(name):
    if not DIAG: return []
    if name == "entry": i = 0
    elif name in OPT["st"][:7]: i = 1 + OPT["st"].index(name)
    else: return []
    return [f"  s_memrealtime s[{84+2*i}:{85+2*i}]"]
def stamp_out():
    if not DIAG: return []
    if OPT.get("echo") is not None:
        i = OPT["echo"]
        return L(f"""
        s_waitcnt vmcnt(0)
        s_memrealtime s[100:101]
        s_waitcnt lgkmcnt(0)
        s_sub_u32 s28, s{84+2*i}, s84
        s_min_u32 s28, s28, 10000
        s_add_u32 s28, s28, 5000
        k_echo:
        s_memrealtime s[30:31]
        s_waitcnt lgkmcnt(0)
        s_sub_u32 s29, s30, s84
        s_cmp_lt_u32 s29, s28
        s_cbranch_scc1 k_echo
        """)
    r = L(f"""
    s_waitcnt vmcnt(0)
    s_memrealtime s[100:101]
    s_waitcnt lgkmcnt(0)
    s_lshl_b32 s28, s2, 2
    s_add_u32 s28, s28, s20
    s_lshl_b32 s28, s28, 6
    s_add_u32 s28, s28, {TS}
    v_mov_b32 v1, s28
    """)
    for i in range(9): r += [f"  v_mov_b32 v3, s{84+2*i}", f"  global_store_dword v1, v3, s[26:27] offset:{4*i if i < 8 else 48}"]
    r += ["  v_mov_b32 v3, s22", "  global_store_dword v1, v3, s[26:27] offset:60"]
    return r
def vr(b, n=4): return f"v[{b}:{b+n-1}]" if n > 1 else f"v{b}"
def ar(b, n=4): return f"a[{b}:{b+n-1}]" if n > 1 else f"a{b}"
def srd(d, lo, nbytes):
    return L(f"s_mov_b32 s{d}, s{lo}\ns_and_b32 s{d+1}, s{lo+1}, 0xffff\ns_mov_b32 s{d+2}, {nbytes}\ns_mov_b32 s{d+3}, 0x20000")
def isvm(x): return x.strip().startswith(("buffer_", "global_"))
def islg(x): return x.strip().startswith("ds_")
def tag(lines, t): return [x + f" ;#{t}" if (isvm(x) or islg(x)) else x for x in lines]
def W(vm=(), lg=()):
    vm = [vm] if isinstance(vm, str) else list(vm); lg = [lg] if isinstance(lg, str) else list(lg)
    return [f"  ;WAIT vm={','.join(vm)} lg={','.join(lg)}"]
def resolve(lines):
    out = []; vm = []; lg = []
    for x in lines:
        t = x.strip()
        if t.startswith(";MARK"):
            nm = t.split()[1]; vm.append(("m", nm)); lg.append(("m", nm)); continue
        if t.startswith(";WAIT"):
            m = re.match(r";WAIT vm=(\S*) lg=(\S*)", t); parts = []
            for names, hist, cn, mx in ((m.group(1), vm, "vmcnt", 63), (m.group(2), lg, "lgkmcnt", 15)):
                if not names: continue
                names = names.split(",")
                if names == ["*"]: parts.append(f"{cn}(0)"); continue
                idx = [i for i, h in enumerate(hist) if h[1] in names]
                for nme in names: assert any(h[1] == nme for h in hist), ("unknown tag", nme)
                n = sum(1 for h in hist[max(idx)+1:] if h[0] == "o")
                parts.append(f"{cn}({min(n, mx)})")
            out.append("  s_waitcnt " + " ".join(parts)); continue
        tg = re.search(r";#(\S+)", t); nm = tg.group(1) if tg else None
        kind = "n" if ";nocount" in t else "o"
        if isvm(x): vm.append((kind, nm))
        elif islg(x): lg.append((kind, nm))
        out.append(x)
    return out
def glue(lines):
    out = []; cur = []
    for x in lines:
        t = x.strip()
        if cur and not t.startswith(("s_cselect", "s_addc", "s_cbranch", "s_mov_b32")) and not t.endswith(":"):
            out.append(cur); cur = []
        if t.startswith(("s_cmp", "s_bitcmp")) or cur or (t.startswith("s_add_u32") and ";C" in t): cur.append(x)
        else: out.append([x])
    if cur: out.append(cur)
    return out
def place(M, lists):
    gaps = [[] for _ in M]
    for items, g0, g1 in lists:
        if not items: continue
        items = glue(items); n = g1 - g0 + 1
        for k, x in enumerate(items): gaps[g0 + k*n//len(items)] += x
    out = []
    for m, g in zip(M, gaps): out += [m] + g
    return out
def inter(main, groups, first=0):
    main = glue(main); out = []; n = len(main); G = len(groups); gi = 0
    for i, x in enumerate(main):
        while gi < G and i >= first + gi*(n - first)//G: out += groups[gi]; gi += 1
        out += x
    while gi < G: out += groups[gi]; gi += 1
    return out
def grp(lines, k):
    out = []; cur = []
    for x in lines:
        if isvm(x) and sum(map(isvm, cur)) == k:
            tail = []
            while cur and not isvm(cur[-1]): tail.insert(0, cur.pop())
            out.append(cur); cur = tail
        cur.append(x)
    if cur: out.append(cur)
    return out
OUTL = A()
def check(tg, vaddr, vdst, lead=False):
    if lead: a = L(f"v_cmp_ne_u32 vcc, s39, v{vdst}\ns_nop 1\ns_and_b64 vcc, vcc, s[56:57]\ns_cbranch_scc1 {tg}_slow\n{tg}_ok:\ns_barrier")
    else: a = L(f"v_cmp_ne_u32 vcc, s39, v{vdst}\ns_nop 1\ns_cmp_lg_u64 vcc, 0\ns_cbranch_scc1 {tg}_slow\n{tg}_ok:")
    OUTL(f"""
    {tg}_slow:
    s_mov_b32 s38, {OPT['spin']}
    {tg}_again:
    s_sleep {OPT.get('sleep', 4)}
    buffer_load_dword v{vdst}, v{vaddr}, s[16:19], 0 offen sc1
    s_sub_u32 s38, s38, 1
    s_cmp_eq_u32 s38, 0
    s_cbranch_scc1 {tg}_ok
    s_waitcnt vmcnt(0)
    v_cmp_ne_u32 vcc, s39, v{vdst}
    s_nop 1
    s_cmp_lg_u64 vcc, 0
    s_cbranch_scc1 {tg}_again
    s_branch {tg}_ok
    """)
    return a
def poll(vaddr, vdst, t, so="0"): return [f"  buffer_load_dword v{vdst}, v{vaddr}, s[16:19], {so} offen sc1 ;#{t}"]
def flag(soff, r=None):
    d, o = (3, 6) if r is None else (r, r + 1)
    return L(f"v_mov_b32 v{d}, s39\nv_lshlrev_b32 v{o}, 25, v7\nbuffer_store_dword v{d}, v{o}, s[16:19], {soff} offen sc1")

ACC = 8; CS = 128; AB = [148, 172]; BB = [196, 216]; VX = 236; VW = 242; LA = 247; LB = 249; VF = 255
L2B = CS
ONES = 240
def acc(T, t): return ACC + (T*5 + t)*4
def g1_mfma(buf, tr, first):
    M = []
    for T in range(6):
        for t in (range(5) if T % 2 == 0 else range(4, -1, -1)):
            x = vr(AB[buf] + 4*T); w = vr(BB[buf] + 4*t); d = vr(acc(T, t))
            p, q = (w, x) if tr else (x, w)
            M.append(f"  v_mfma_f32_16x16x32_bf16 {d}, {p}, {q}, {'0' if first else d}")
    return M
def g1_cs(buf):
    return [f"  v_mfma_f32_16x16x32_bf16 {vr(CS+4*t)}, {ar(ONES)}, {vr(BB[buf]+4*t)}, {'0' if buf == 0 else vr(CS+4*t)}" for t in range(5)]
def g1_reads(k):
    buf = k & 1; st = (k//2) % 3
    la, lb, so = (LA, LB, st*STAGE) if st < 2 else (L2B, L2B + 2, 0)
    R = []
    def b(t):
        u2, h2 = (64, 1280) if OPT["wrow"] else (1024, 256)
        base = lb + (2 if t == 4 else (t & 1)); off = so + buf*10240 + (u2 if t in (2, 3) else 0)
        return [f"  ds_read_b64_tr_b16 {vr(BB[buf]+4*t,2)}, v{base} offset:{off}",
                f"  ds_read_b64_tr_b16 {vr(BB[buf]+4*t+2,2)}, v{base} offset:{off+h2}"]
    def x(T): return [f"  ds_read_b128 {vr(AB[buf]+4*T)}, v{la+buf} offset:{so+T*2048}"]
    R += x(0)
    for t in range(5): R += b(t)
    for T in range(1, 6): R += x(T)
    return tag(R, f"r{k}")
def dma_x(c):
    so = (c % 3)*STAGE; Dm = []
    for j in range(6):
        if j in (0, 4): Dm.append(f"  s_add_u32 m0, s40, {so + 1024*j}")
        Dm.append(f"  buffer_load_dwordx4 v{VX+j}, s[8:11], s42 offen offset:{1024*(j%4)} lds")
    return tag(Dm, f"c{c}")
def dma_w(c):
    so = (c % 3)*STAGE; Dm = []
    for j in range(5):
        if OPT["wrow"]:
            if j in (0, 4): Dm.append(f"  s_add_u32 m0, s41, {so + 1024*j}")
            Dm.append(f"  buffer_load_dwordx4 v{VW+j}, s[12:15], s43 offen offset:{1024*(j%4)}{' nt' if (c == 0 and OPT.get('wnt')) else ''} lds")
            continue
        Dm.append(f"  s_add_u32 m0, s41, {so + 1024*j}")
        Dm.append(f"  buffer_load_dwordx4 v{VW+j}, s[12:15], s43 offen lds")
    return tag(Dm, f"c{c}")
def dma_next(c):
    if OPT["krot"]:
        first = "s_mov_b32 s44, s67" if c == 1 else "s_add_u32 s44, s44, 1\ns_cmp_eq_u32 s44, 10\ns_cselect_b32 s44, 0, s44"
        return L(first + f"""
        s_cmp_eq_u32 s44, s54
        s_addc_u32 s44, s44, 0
        s_cmp_eq_u32 s44, 10
        s_cselect_b32 s44, 0, s44
        s_lshl_b32 s42, s44, 7
        s_mul_i32 s43, s44, s45""")
    return L(f"s_cmp_le_u32 s54, {c-1}\ns_cselect_b32 s44, {c}, {c-1}\ns_lshl_b32 s42, s44, 7\ns_mul_i32 s43, s44, s45")
BV = 168
def breg(s, t): return ar(s*20 + 4*t) if s < 12 else vr(BV + (s-12)*20 + 4*t)
def bstream(i0, n):
    out = []
    for i in range(i0, i0 + n):
        s, t = divmod(i, 5)
        if t == 0 or i == i0:
            out.append(f"  s_add_u32 s68, s46, {4*16384*s}")
            if s == 13: out += L(f"s_cmp_lt_u32 s20, 2\ns_cselect_b32 s68, s68, {OOB}")
        if t < 4: out.append(f"  buffer_load_dwordx4 {breg(s,t)}, v4, s[16:19], s68 offen offset:{1024*t} sc1 ;#B{s}")
        else: out.append(f"  buffer_load_dwordx4 {breg(s,t)}, v5, s[16:19], s68 offen sc1 ;#B{s}")
    return out
class Stream:
    def __init__(self, items): self.items = list(items)
    def take(self, n):
        it, self.items = self.items[:n], self.items[n:]
        assert len(it) == n
        out = []; k = 0
        while k < len(it):
            j = k
            while j + 1 < len(it) and it[j+1] == (it[j][0], it[j][1] + 1): j += 1
            out += (bstream if it[k][0] == "B" else wo_dma)(it[k][1], j - k + 1); k = j + 1
        return out
def wo_dma(i0, n):
    out = []
    for i in range(i0, i0 + n):
        j, t = divmod(i, 5)
        if t == 0 or i == i0: out.append(f"  s_add_u32 s71, s70, {65536*j}")
        if t in (0, 4) or i == i0 or OPT.get("m0each", 1): out += [f"  s_add_u32 m0, s69, {20480*j + (4096 if t == 4 else 0)}"]
        out.append(f"  buffer_load_dwordx4 v{4 if t < 4 else 5}, s[16:19], s71 offen offset:{1024*(t%4)} sc1 lds ;#wo{j}")
    return out
PRODS = [(0,3),(0,4),(1,3),(1,4),(1,5),(2,3),(2,4),(2,5)]
KVOF = [240, 241, 242, 243, 244, 245, 246, 255]

def setup_s():
    return L(f"""
    s_cmp_lt_u32 s22, 12
    s_cselect_b32 s83, {LOG2E}, {LOG2E | 0x80000000}
    s_mul_i32 s76, s21, 3
    s_add_u32 s76, s76, s51
    s_add_u32 s77, s76, 1
    """) + blk(80, 76, "h", 28, 29) + blk(81, 77, "h", 28, 29) + blk(78, 76, "q", 28, 29) + blk(79, 77, "q", 28, 29) + L(f"""
    s_cmp_lt_u32 s22, 12
    s_cselect_b32 s80, s78, s80
    s_cselect_b32 s81, s79, s81
    s_cmp_ge_u32 s76, 32
    s_cselect_b32 s80, {OOB}, s80
    s_cmp_ge_u32 s77, 32
    s_cselect_b32 s81, {OOB}, s81
    s_lshl_b32 s28, s51, 11
    s_add_u32 s82, s81, s28              ; row tile 4
    s_add_u32 s29, s80, 2048
    s_add_u32 s80, s80, s28              ; row tile 0
    s_cmp_eq_u32 s51, 0
    s_cselect_b32 s81, s29, s81          ; row tile 2
    s_mul_i32 s61, s23, 5
    s_mul_i32 s28, s52, 3
    s_add_u32 s62, s61, s28
    s_add_u32 s63, s62, 1
    s_add_u32 s61, s61, 2
    s_lshl_b32 s28, s23, 1
    s_add_u32 s28, s28, s52
    s_add_u32 s29, s28, 22
    s_add_u32 s30, s23, 43
    s_cmp_lt_u32 s22, 12
    s_cselect_b32 s62, s62, s28
    s_cselect_b32 s63, s63, s29
    s_cselect_b32 s61, s61, s30
    s_cselect_b32 s75, {OOB}, {FPD}
    s_cmp_eq_u32 s63, 43
    s_cselect_b32 s63, {OOB >> 13}, s63
    """) + cell(62, 62, 28) + cell(63, 63, 28) + cell(61, 61, 28) + L(f"""
    s_lshl_b32 s28, s52, 9
    s_add_u32 s61, s61, s28
    s_mul_i32 s67, s22, 12
    s_add_u32 s67, s67, s21
    s_lshl_b32 s67, s67, 7
    s_add_u32 s67, s67, {FP}
    s_cmp_eq_u32 s20, 0
    s_cselect_b32 s67, s67, {OOB}
    s_add_u32 s75, s75, s67
    """)
def setup_t():
    return L(f"""
    v_add_u32 v{VX}, s62, v4
    v_add_u32 v{VX+1}, s63, v4
    v_and_b32 v3, 1, v2
    v_lshlrev_b32 v3, 10, v3
    v_lshrrev_b32 v254, 1, v2
    v_lshl_add_u32 v3, v254, 8, v3
    v_lshl_add_u32 v3, v1, 4, v3
    v_add_u32 v{VX+2}, s61, v3
    v_mov_b32 v{VX+4}, 0x358637bd
    v_mov_b32 v{VX+5}, 0x358637bd
    """)
def setup_n0():
    a = A()
    a(f"""
    v_and_b32 v1, 15, v7
    v_lshrrev_b32 v2, 4, v7
    v_cmp_gt_u32 s[32:33], 8, v1
    s_cmp_eq_u32 s21, 10
    s_cselect_b32 s36, s51, 0
    s_lshl_b32 s37, s22, 1
    s_add_u32 s37, s37, s52
    s_lshl_b32 s37, s37, 12
    s_add_u32 s37, s37, {KVP}
    s_lshl_b32 s60, s20, 12
    s_add_u32 s60, s60, {KVX}
    v_and_b32 v254, 31, v7
    v_add_u32 v254, 224, v254
    """)
    for n, (kx, vy) in enumerate(PRODS):
        eoff = {3: -8, 4: 8, 5: 24}[vy]; o = 252
        a(f"""
        v_add_u32 v3, {4*kx}, v2
        v_cmp_le_u32 vcc, 5, v3
        v_add_u32 v{o}, {eoff}, v1
        v_cmp_gt_u32 s[62:63], 10, v3
        v_cndmask_b32 v253, 0, 20, vcc
        v_sub_u32 v{o}, v{o}, v253
        """)
        if vy == 3: a(f"v_cmp_eq_u32 vcc, 0, v1\nv_cndmask_b32 v253, v{o}, 0, vcc\nv_cndmask_b32 v{o}, v{o}, 20, vcc\nv_cmp_gt_u32 vcc, 20, v253")
        else: a(f"v_cmp_gt_u32 vcc, 20, v{o}")
        a(f"""
        v_mad_u32_u24 v{o}, v3, 21, v{o}
        s_and_b64 vcc, vcc, s[62:63]
        v_cndmask_b32 v{o}, v254, v{o}, vcc
        v_lshl_add_u32 v{o}, v{o}, 4, s60
        v_accvgpr_write_b32 a{244+n}, v{o}
        """)
    return list(a)
def setup_n():
    return L(f"s_mov_b32 s30, {LOG2E}\ns_mov_b32 s31, {LOG2E}") + [f"  v_accvgpr_read_b32 v{KVOF[n]}, a{244+n}" for n in range(8)]

def g1_main(tg, tr, st):
    a = A()
    pf = OPT["pf_t"] if tr else OPT["pf_n"]
    a += W("c0"); a("s_barrier"); a += stamp("k0")
    a += g1_reads(0) + W(lg="r0")
    a += place(g1_mfma(0, tr, True) + g1_cs(0), [(g1_reads(1), 0, 17), (dma_x(2) + dma_w(2), 0, 33)])
    a += W(lg="r1")
    a += g1_cs(1)
    PKD, PKR, PKS = (OPT["pkd"], OPT["pkr"], OPT["pks"]) if tr else (None, None, {})
    pk_d = []
    for i in range(5):
        pk_d += [f"  s_add_u32 m0, s53, {896*i}", f"  buffer_load_dwordx4 v252, s[56:59], s55 offen offset:{128*i} nt lds ;#pk"]
    pk_r = []
    for t in range(5):
        if t: pk_r += L(f"s_cmp_eq_u32 s20, {4-t}\ns_cselect_b32 s28, 896, 0\nv_add_u32 v1, s28, v1\nv_add_u32 v2, s28, v2")
        pk_r += [f"  ds_read_b64_tr_b16 {ar(16+4*t,2)}, v1 offset:{32*t}", f"  ds_read_b64_tr_b16 {ar(18+4*t,2)}, v2 offset:{32*t}"]
    pk_s = [f"  buffer_store_dwordx4 {ar(16+4*t)}, v{4 if t < 4 else 5}, s[16:19], s{60 if c == 0 else 53} offen offset:{1024*(t%4)} sc1 ;#ps" for t in range(5) for c in range(2 if OPT["mode"] == "dup" else 1)]
    pk_r.append("  s_add_u32 s53, s60, 8192")
    cs_st = L(f"""
    v_cmp_le_u32 vcc, 16, v7
    v_cmp_le_u32 s[28:29], 32, v7
    v_cmp_le_u32 s[30:31], 48, v7
    v_cndmask_b32 v{CS+17}, v{CS}, v{CS+4}, vcc
    v_cndmask_b32 v{CS+17}, v{CS+17}, v{CS+8}, s[28:29]
    v_cndmask_b32 v{CS+17}, v{CS+17}, v{CS+12}, s[30:31]
    buffer_store_dword v{CS+17}, v253, s[16:19], s64 offen sc1 ;#cs
    buffer_store_dword v{CS+16}, v254, s[16:19], s64 offen sc1 ;#cs
    """) + [f"  v_add_u32 v{L2B+i}, {2*STAGE}, v{LA+i}" for i in range(5)]
    auxa = L(f"""
    v_lshlrev_b32 v3, 4, v0
    v_add_u32 v252, s74, v3
    v_add_u32 v253, 4096, v252
    v_cmp_le_u32 vcc, 144, v0
    v_add_u32 v3, s65, v3
    v_cmp_le_u32 s[28:29], s66, v0
    v_cndmask_b32 v253, v253, v3, vcc
    v_add_u32 v3, {RSTD - NEGM - 768}, v3
    v_cmp_le_u32 vcc, 240, v0
    v_cndmask_b32 v253, v253, v3, s[28:29]
    v_mov_b32 v3, {OOB}
    v_cndmask_b32 v253, v253, v3, vcc
    v_and_b32 v1, 15, v7
    v_lshrrev_b32 v2, 4, v7
    """)
    polx = [f"  s_xor_b32 s{r}, s{r}, s3" for r in ((46, 70, 80, 81, 82) if OPT["mode"] == "dup" else (80, 81, 82))]
    aux = L(f"""
    s_mov_b32 m0, s72
    s_nop 0
    buffer_load_dwordx4 v252, s[16:19], 0 offen sc1 lds ;#aux
    s_add_u32 m0, s72, 4096
    s_nop 0
    buffer_load_dwordx4 v253, s[16:19], 0 offen sc1 lds ;#aux
    """) + flag("s73")
    y1 = L(f"v_lshlrev_b32 v252, 2, v0\nv_add_u32 v252, {AUXC}, v252") + tag([f"  ds_read_b32 v{CS+i}, v252 offset:{640*i}" for i in range(10)], "y1")
    y2 = [f"  v_add_f32 v{CS}, v{CS}, v{CS+i}" for i in range(1, 10)] + [f"  ds_write_b32 v252, v{CS} offset:{CSL-AUXC} ;#y2"]
    rd = L("s_mul_i32 s28, s51, 384\ns_add_u32 s28, s28, %d" % AUXM)
    if tr:
        rd += L(f"v_lshlrev_b32 v6, 4, v2\nv_add_u32 v252, s34, v6\nv_add_u32 v253, s35, v6\nv_lshl_add_u32 v3, v1, 2, s28")
        rd += [f"  ds_read_b128 {vr(CS+4*t)}, v252 offset:{64*t}" for t in range(4)] + [f"  ds_read_b128 {vr(CS+16)}, v253"]
        for T in range(6): rd += [f"  ds_read_b32 v{AB[0]+4*T}, v3 offset:{64*T}", f"  ds_read_b32 v{AB[0]+4*T+1}, v3 offset:{768+64*T}"]
    else:
        rd += L(f"v_lshlrev_b32 v6, 2, v1\nv_add_u32 v252, s34, v6\nv_lshl_add_u32 v3, v2, 4, s28")
        rd += [f"  ds_read_b32 v{CS+4*t}, v252 offset:{64*t}" for t in range(5)]
        for T in range(6): rd += [f"  ds_read_b128 {vr(AB[0]+4*T)}, v3 offset:{64*T}"]
        for T in range(5): rd += [f"  ds_read_b128 {vr(BB[0]+4*T)}, v3 offset:{768+64*T}"]
        rd += [f"  ds_read_b128 {vr(VX)}, v3 offset:{768+64*5}"]
    su = setup_t() if tr else setup_n()
    e0 = glue(setup_n0()); early = {} if tr else {6 + i: sum(e0[i*len(e0)//6:(i+1)*len(e0)//6], []) for i in range(6)}
    nb = 0; fb, pb = (OPT["flagb"] if tr else OPT["flagb_n"]), OPT["pollb"]; nps = 0
    for k in range(1, 20):
        c = (k - 1)//2
        M = g1_mfma(k & 1, tr, False)
        ls = []
        if k & 1:
            if c == pb and tr: a("k_t_join:")
            if k > 1: a += W(lg=[f"r{k}"] + (["y2"] if k == 19 else []) + (["pr"] if k - 1 == PKR else []))
            a.append(M.pop(0))
            vm = [f"c{c+1}"] if c < 9 else []
            if c == fb: vm += ["cs", "ss"] + (["ps"] if tr else [])
            if k == PKR: vm += ["pk"]
            if c == pb + 1: vm += ["pa"]
            if c == 8: vm += ["aux"]
            if vm: a += W(vm)
            if c == pb + 1: a += check(tg + "_sa", 6, VF)
            a("s_barrier")
            if c == 0: a += stamp("b0")
            if c == 7: a += stamp("tail")
            a += stamp(f"b{c}") if c > 0 else []
            if c == fb: ls.append((flag("s49"), 0, 2))
            if c == pb: ls.append((L(f"v_lshlrev_b32 v6, {OPT['fash']}, v0\nv_add_u32 v6, {FA}, v6") + poll(6, VF, "pa"), 0, 2))
            if OPT["pol"] != "race":
                if c == pb + 1: ls.append((polx, 0, 2))
            else:
                assert OPT["mode"] == "rows"
                if c == 7: ls.append((L(f"v_mov_b32 v{CS+18}, {PW}\nbuffer_load_dword v{CS+19}, v{CS+18}, s[16:19], 0 offen sc1 ;#aux"), 0, 1))
                if c == 8: ls.append((L(f"v_readfirstlane_b32 s3, v{CS+19}\ns_and_b32 s3, s3, 8192") + polx, 22, 28))
            if c == 7: ls.append(([x for x in aux], 0, 2))
            dx, dw = (dma_next(c+3) + dma_x(c+3), dma_w(c+3)) if c + 3 <= 9 else ([], [])
            if k == PKD: ls += [(pk_d, 0, 9), (dx[:-4], 14, 28)]
            else: ls.append((dx, 1, 27))
            if k == PKR: ls.append((tag(pk_r, "pr"), 10, 26))
            if c == 0: ls.append((cs_st, 12, 27))
            if c == 8: ls.append((y1, 8, 22))
        else:
            a += W(lg=[f"r{k}"] + (["y1"] if c == 8 else []) + (["pr"] if k - 1 == PKR else []))
            if k - 1 == PKD: ls.append((dx[-4:] + dw, 0, 28))
            else: ls.append((dw, 1, 27))
            if c == 6: ls.append((auxa, 17, 28))
            if c == 8: ls.append((y2, 0, 12))
        if PKS.get(k): ls.append((pk_s[nps:nps+PKS[k]], 2, 28 if nps + PKS[k] < len(pk_s) else 18)); nps += PKS[k]
        if k < 19: ls.insert(0, (g1_reads(k+1), 1 if k & 1 else 0, 17))
        else: ls.insert(0, (rd, 0, 22))
        if k == 16: ls.append((su, 18, 28))
        if k in early: ls.append((early[k], 4, 28))
        if k == OPT["cpf2"]:
            ls.append((L(f"v_add_u32 v{CS+8}, s50, v4\nv_min_u32 v{CS+8}, CODE_MAX, v{CS+8}\ns_cmp_gt_u32 s50, CODE_MAX\ns_cbranch_scc1 {tg}_c2\nglobal_load_dwordx4 {vr(CS+12)}, v{CS+8}, s[0:1] ;nocount\n{tg}_c2:"), 29 - (k & 1), 29 - (k & 1)))
        if pf.get(k):
            assert c > pb
            assert all(x[0] == "B" and x[1] < 60 for x in st.items[:pf[k]])
            ls.append((st.take(pf[k]), 3, 28))
        a += place(M, ls)
    a += stamp("lend")
    return a

def stats_math():
    a = A(); src = 8; tmp = 20; ac = 44
    for i in range(12):
        a(f"v_lshlrev_b32 v{tmp+2*i}, 16, v{src+i}\nv_and_b32 v{tmp+2*i+1}, 0xffff0000, v{src+i}")
    a(f"v_pk_add_f32 {vr(ac,2)}, {vr(tmp,2)}, {vr(tmp+2,2)}")
    for i in range(2, 12): a(f"v_pk_add_f32 {vr(ac,2)}, {vr(ac,2)}, {vr(tmp+2*i,2)}")
    def red():
        a(f"v_add_f32 v{ac}, v{ac}, v{ac+1}")
        for r in (8, 4, 2, 1): a(f"v_add_f32_dpp v{ac}, v{ac}, v{ac} row_ror:{r} row_mask:0xf bank_mask:0xf")
        a(f"v_mov_b32 v{ac+1}, v{ac}\nv_permlane16_swap_b32 v{ac}, v{ac+1}\nv_add_f32 v{ac}, v{ac}, v{ac+1}")
    red()
    a(f"v_mul_f32 v46, 0xbacccccd, v{ac}")
    a(f"v_cndmask_b32 v47, 0, v46, s[32:33]")
    for i in range(8): a(f"v_pk_add_f32 {vr(tmp+2*i,2)}, {vr(tmp+2*i,2)}, v[46:47] op_sel_hi:[1,0]")
    for i in range(8, 12): a(f"v_pk_add_f32 {vr(tmp+2*i,2)}, {vr(tmp+2*i,2)}, v[46:47] op_sel:[0,1] op_sel_hi:[1,1]")
    a(f"v_pk_mul_f32 {vr(ac,2)}, {vr(tmp,2)}, {vr(tmp,2)}")
    for i in range(1, 12): a(f"v_pk_fma_f32 {vr(ac,2)}, {vr(tmp+2*i,2)}, {vr(tmp+2*i,2)}, {vr(ac,2)}")
    red()
    a(f"""
    v_mov_b32 v{ac+1}, 0x3727c5ac
    v_fmac_f32 v{ac+1}, 0x3acccccd, v{ac}
    v_rsq_f32 v{ac+1}, v{ac+1}
    v_and_b32 v48, 31, v7
    v_cmp_eq_u32 vcc, 0, v48
    v_lshrrev_b32 v49, 5, v7
    v_lshlrev_b32 v49, 2, v49
    v_cndmask_b32 v46, v{ac+1}, v46, vcc
    v_lshl_add_u32 v49, v48, 13, v49
    v_cmp_gt_u32 vcc, 2, v48
    v_mov_b32 v50, {OOB}
    s_lshl_b32 s28, s48, 3
    s_add_u32 s28, s28, {NEGM}
    v_cndmask_b32 v49, v50, v49, vcc
    buffer_store_dword v46, v49, s[16:19], s28 offen sc1 ;#ss
    s_lshl_b32 s28, s2, 8
    s_add_u32 s28, s28, {KVP}
    s_cmp_eq_u32 s20, 1
    s_cselect_b32 s28, s28, {OOB}
    v_lshlrev_b32 v49, 2, v7
    v_mov_b32 v50, 0
    buffer_store_dword v50, v49, s[16:19], s28 offen sc1 ;#ss
    """)
    return list(a)

def prologue():
    a = A()
    a += stamp("entry")
    a(f"""
    s_cmp_ge_u32 s2, 256
    s_cbranch_scc1 k_end
    s_load_dwordx16 s[60:75], s[0:1], 0
    s_load_dwordx2 s[26:27], s[0:1], 64
    s_getpc_b64 s[36:37]
    v_lshrrev_b32 v1, 6, v0
    v_and_b32 v7, 63, v0                 ; lane
    v_readfirstlane_b32 s20, v1          ; wave
    v_lshlrev_b32 v4, 4, v7
    v_lshrrev_b32 v1, 5, v7
    v_mul_u32_u24 v1, {1280-512}, v1
    v_add_u32 v52, v1, v4
    v_and_b32 v1, 16, v7
    v_cmp_eq_u32 s[32:33], 0, v1
    v_mov_b32 v2, {OOB}
    s_lshl_b32 s48, s2, 2
    s_add_u32 s48, s48, s20              ; stats job
    s_mul_i32 s35, s48, 2560
    v_cndmask_b32 v53, v2, v52, s[32:33]
    s_and_b32 s3, s2, 7
    s_lshl_b32 s3, s3, 5
    s_lshr_b32 s21, s2, 3
    s_add_u32 s3, s3, s21                ; lin
    """)
    if OPT["cmaj"]:
        a("""
        s_mul_i32 s28, s3, 5958
        s_lshr_b32 s28, s28, 16              ; p = lin/11
        s_mul_i32 s29, s28, 11
        s_sub_u32 s21, s3, s29               ; rb
        s_add_u32 s44, s21, s28
        s_mul_i32 s29, s28, 86
        s_lshr_b32 s29, s29, 8               ; g = p/3
        s_sub_u32 s22, s28, s29
        s_add_u32 s22, s22, 7                ; 8 + 2g + r - 1
        s_mul_i32 s30, s29, 3
        s_cmp_eq_u32 s30, s28
        s_cselect_b32 s22, s29, s22
        """)
    else:
        a(f"""
    s_cmp_lt_u32 s3, 138
    s_cselect_b32 s28, 0, 138
    s_cselect_b32 s29, 10923, 13108
    s_cselect_b32 s30, 6, 5
    s_cselect_b32 s31, 0, 6
    s_sub_u32 s28, s3, s28
    s_mul_i32 s22, s28, s29
    s_lshr_b32 s22, s22, 16              ; ctq
    s_mul_i32 s30, s22, s30
    s_sub_u32 s21, s28, s30
    s_add_u32 s21, s21, s31              ; rb
    """)
        if OPT["snake"]: a("s_sub_u32 s28, 22, s22\ns_cmp_lt_u32 s3, 138\ns_cselect_b32 s22, s22, s28")
        a("s_add_u32 s44, s21, s22")
        if OPT.get("mix", 1):
            a("""
        s_mul_i32 s28, s22, 43
        s_lshr_b32 s28, s28, 8               ; g = p/6
        s_mul_i32 s29, s28, 6
        s_sub_u32 s29, s22, s29              ; r
        s_mul_i32 s30, s28, 3
        s_add_u32 s30, s30, s29
        s_add_u32 s30, s30, 9                ; w1: 12+3g+r-3
        s_lshl_b32 s31, s28, 1
        s_add_u32 s31, s31, s29
        s_sub_u32 s31, s31, 1                ; kv: 2g+r-1
        s_add_u32 s28, s28, 8                ; q
        s_cmp_lt_u32 s29, 3
        s_cselect_b32 s22, s31, s30
        s_cmp_eq_u32 s29, 0
        s_cselect_b32 s22, s28, s22
        """)
    a(f"""
    s_cmp_ge_u32 s3, 253
    s_cselect_b32 s21, 11, s21
    s_cselect_b32 s22, 12, s22
    s_waitcnt lgkmcnt(0)
    """)
    a += stamp("karg")
    a += srd(8, 60, S*D*2)
    for j in range(3): a(f"buffer_load_dwordx4 {vr(8+4*j)}, v{53 if j == 2 else 52}, s[8:11], s35 offen offset:{512*j} ;#sl")
    a(f"""
    s_load_dword s39, s[26:27], 0
    s_cmp_ge_u32 s21, 10
    s_cselect_b32 s54, 9, s21            ; start chunk
    s_mul_i32 s28, s21, 192
    s_mul_i32 s29, s20, 48
    s_add_u32 s28, s28, s29
    s_mul_i32 s28, s28, 1280
    v_lshrrev_b32 v1, 3, v7              ; r8
    v_lshrrev_b32 v2, 1, v1
    v_and_b32 v3, 7, v7
    v_xor_b32 v2, v2, v3
    v_mul_u32_u24 v1, 1280, v1
    v_lshl_add_u32 v252, v3, 4, v1
    v_add_u32 v1, s28, v1
    v_lshl_add_u32 v3, v2, 4, v1
    v_xor_b32 v2, 4, v2
    v_lshl_add_u32 v6, v2, 4, v1
    """)
    for j in range(6): a(f"v_add_u32 v{VX+j}, {j*10240 - 1024*(j%4)}, v{6 if j & 1 else 3}")
    a("s_mul_i32 s40, s20, 6144\ns_lshl_b32 s42, s54, 7")
    a += dma_x(0)
    a(f"""
    s_cmp_lt_u32 s22, 12
    s_cselect_b32 s12, s62, s68
    s_cselect_b32 s13, s63, s69
    s_cselect_b32 s14, {D*3*D*2}, {D*F*2}
    s_cselect_b32 s50, 3840, 3456        ; W row stride
    s_cselect_b32 s28, 8, 12
    s_and_b32 s13, s13, 0xffff
    s_mov_b32 s15, 0x20000
    s_lshl_b32 s45, s50, 6
    s_sub_u32 s23, s22, s28
    """)
    if not OPT["wrow"]:
        a(f"""
    s_lshl_b32 s28, s20, 4
    v_lshrrev_b32 v1, 2, v7
    v_add_u32 v1, s28, v1
    v_mul_lo_u32 v1, v1, s50             ; row*stride
    v_lshrrev_b32 v2, 4, v7
    v_and_b32 v2, 2, v2
    v_and_b32 v3, 3, v7
    v_xor_b32 v2, v2, v3                 ; p'
    v_lshl_add_u32 v1, v2, 4, v1
    s_mul_i32 s29, s23, 320
    s_mul_i32 s30, s22, 160
    s_add_u32 s30, s30, 1280
    s_cmp_lt_u32 s22, 8
    s_cselect_b32 s29, s30, s29
    s_cselect_b32 s30, 1200, 0
    s_cselect_b32 s31, -1280, 0
    v_add_u32 v{VW}, s29, v1
    v_mov_b32 v1, s30
    v_mov_b32 v3, s31
    v_cmp_le_u32 vcc, 1, v2
    s_add_u32 s28, s30, 128
    s_add_u32 s29, s28, s31
    v_cndmask_b32 v6, 0, v1, vcc
    v_cmp_le_u32 vcc, 2, v2
    v_add3_u32 v{VW+1}, v{VW}, 64, v6
    s_add_u32 s29, s29, 64
    v_cndmask_b32 v6, 0, v3, vcc
    v_cmp_le_u32 vcc, 3, v2
    v_add3_u32 v{VW+2}, v{VW}, s28, v6
    s_add_u32 s28, s29, s30
    v_cndmask_b32 v6, 0, v1, vcc
    s_add_u32 s28, s28, 64
    v_add3_u32 v{VW+3}, v{VW}, s29, v6
    v_add_u32 v{VW+4}, s28, v{VW}
    """)
    else:
        a(f"""
        s_mul_i32 s29, s23, 320
        s_mul_i32 s30, s22, 160
        s_add_u32 s30, s30, 1280
        s_cmp_lt_u32 s22, 8
        s_cselect_b32 s29, s30, s29
        s_cselect_b32 s30, 1200, 0
        s_cselect_b32 s31, -80, 0
        s_lshl_b32 s28, s20, 4
        s_mul_i32 s28, s28, s50
        s_add_u32 s29, s29, s28
        """)
        for jj in range(5):
            a(f"""
            v_add_u32 v1, {64*jj}, v7
            v_mul_u32_u24 v2, 3277, v1
            v_lshrrev_b32 v2, 16, v2
            v_mul_u32_u24 v3, 20, v2
            v_sub_u32 v3, v1, v3
            v_lshrrev_b32 v1, 2, v2
            v_and_b32 v1, 2, v1
            v_xor_b32 v3, v3, v1              ; c'
            v_mul_u32_u24 v2, s50, v2
            v_lshl_add_u32 v2, v3, 4, v2
            v_mul_u32_u24 v3, 205, v3
            v_bfe_u32 v1, v3, 10, 1
            v_lshrrev_b32 v3, 11, v3
            v_mad_u32_u24 v2, v1, s30, v2
            v_mad_i32_i24 v2, v3, s31, v2
            v_add_u32 v2, s29, v2
            v_subrev_u32 v{VW+jj}, {1024*(jj%4)}, v2
            """)
    a(f"""
    s_mul_i32 s41, s20, 5120
    s_add_u32 s41, s41, {WOFF}
    s_mul_i32 s43, s54, s45
    s_and_b32 s36, s36, 0xffffff00
    s_lshr_b32 s28, s2, 3
    s_lshl_b32 s29, s20, 5
    s_add_u32 s28, s28, s29
    s_add_u32 s28, s28, 2
    s_mov_b64 s[0:1], s[36:37]
    s_lshl_b32 s50, s28, 10
    s_cmp_ge_u32 s28, CODE_KB
    s_cbranch_scc1 k_nocp
    v_add_u32 v1, s50, v4
    v_min_u32 v1, CODE_MAX, v1
    global_load_dwordx4 v[128:131], v1, s[0:1] ;nocount
    k_nocp:
    """)
    su = A()
    su += srd(16, 26, WS_USED)
    su += srd(4, 72, S*D*2)
    su(f"""
    v_add_u32 v5, 4096, v4
    s_lshr_b32 s51, s20, 1               ; wr
    s_and_b32 s52, s20, 1                ; wc
    s_sub_u32 s36, s22, 8
    s_mul_i32 s36, s36, 11
    s_add_u32 s36, s36, s21
    s_cmp_ge_u32 s21, 11
    s_cselect_b32 s36, 160, s36
    s_lshr_b32 s37, s36, 1               ; ks
    s_and_b32 s38, s36, 1
    s_cmp_lt_u32 s37, 54
    s_cselect_b32 s56, s70, s64
    s_cselect_b32 s57, s71, s65
    s_cselect_b32 s58, {F*D*2}, {D*D*2}
    s_cselect_b32 s28, 0, 54
    s_and_b32 s57, s57, 0xffff
    s_mov_b32 s59, 0x20000
    s_sub_u32 s28, s37, s28
    s_mul_i32 s28, s28, {32*1280}
    s_mul_i32 s29, s38, 640
    s_add_u32 s55, s28, s29
    s_mul_i32 s29, s20, 10240
    s_add_u32 s55, s55, s29              ; pack src (8 rows per wave)
    s_mul_i32 s53, s20, 5120
    s_add_u32 s53, s53, {PACKL}
    s_and_b32 s3, s2, 7
    """)
    if OPT["mode"] == "cols":
        su(f"s_and_b32 s24, s3, 3\ns_lshl_b32 s24, s24, 3\ns_lshr_b32 s28, s2, 5\ns_add_u32 s24, s24, s28\ns_bfe_u32 s25, s2, 0x20003\ns_and_b32 s28, s3, 4\ns_xor_b32 s28, s28, {4*OPT['pol']}\ns_add_u32 s25, s25, s28")
    elif OPT["p2map"] == 0:
        su("s_lshl_b32 s24, s3, 2\ns_lshr_b32 s28, s2, 6\ns_add_u32 s24, s24, s28\ns_bfe_u32 s25, s2, 0x30003")
    else:
        su("s_lshr_b32 s24, s3, 1\ns_lshl_b32 s24, s24, 3\ns_lshr_b32 s28, s2, 5\ns_add_u32 s24, s24, s28\ns_bfe_u32 s25, s2, 0x20003\ns_and_b32 s28, s3, 1\ns_lshl_b32 s28, s28, 2\ns_add_u32 s25, s25, s28")
    su(f"""
    s_mul_i32 s28, s37, 205
    s_lshr_b32 s28, s28, 10              ; c
    s_mul_i32 s30, s28, 5
    s_sub_u32 s30, s37, s30              ; r
    s_lshl_b32 s29, s30, 3
    s_mov_b32 s47, 0x01001600            ; r -> 0, 22, -, 1
    s_lshr_b32 s47, s47, s29
    s_and_b32 s47, s47, 255
    s_cmp_eq_u32 s30, 4
    s_cselect_b32 s47, 23, s47
    s_lshl_b32 s29, s28, 1
    s_add_u32 s47, s47, s29
    s_add_u32 s28, s28, 43
    s_cmp_eq_u32 s30, 2
    s_cselect_b32 s31, 1, 0
    s_cselect_b32 s47, s28, s47
    s_cmp_ge_u32 s37, 54
    s_cselect_b32 s31, 1, s31
    s_cselect_b32 s47, s37, s47          ; storage index
    s_cmp_eq_u32 s31, 1
    s_cselect_b32 s28, 10240, 5120       ; per g>>1
    s_cselect_b32 s29, 5120, 512         ; per g&1
    s_cselect_b32 s30, 512, 10240
    v_lshrrev_b32 v59, 4, v7             ; g
    v_bfe_u32 v56, v7, 2, 2              ; rr
    v_and_b32 v57, 3, v7                 ; c4
    v_and_b32 v58, 1, v59                ; g&1
    v_lshrrev_b32 v55, 1, v59
    v_mul_u32_u24 v1, s28, v55
    v_mad_u32_u24 v1, v58, s29, v1
    v_lshl_add_u32 v1, v56, 7, v1
    v_lshl_add_u32 v1, v57, 3, v1
    s_mul_i32 s28, s20, 1056
    s_add_u32 s28, s28, {PACKL}
    v_add_u32 v1, s28, v1
    v_add_u32 v2, s30, v1
    s_lshl_b32 s28, s38, 2
    s_add_u32 s28, s28, s20              ; ct
    s_add_u32 s28, s28, {WPP}
    s_lshl_b32 s28, s28, 21
    s_lshl_b32 s29, s47, 14
    s_add_u32 s28, s28, s29
    s_bfe_u32 s29, s47, 0x10001
    s_mul_i32 s29, s29, 3072
    s_add_u32 s28, s28, s29
    """)
    if OPT["mode"] in ("rows", "none"): su("s_bfe_u32 s29, s47, 0x10001\ns_lshl_b32 s29, s29, 13\ns_add_u32 s28, s28, s29")
    if OPT["mode"] == "cols": su(f"s_lshr_b32 s29, s28, 21\ns_xor_b32 s29, s29, s38\ns_and_b32 s29, s29, 1\ns_lshl_b32 s29, s29, 13\ns_add_u32 s28, s28, s29")
    su(f"""
    s_cmp_ge_u32 s36, 148
    s_cselect_b32 s60, {OOB}, s28
    s_mov_b64 s[36:37], s[74:75]
    """)
    su(f"""
    v_and_b32 v3, 15, v7                 ; m
    v_lshrrev_b32 v6, 1, v3
    v_xor_b32 v6, v6, v59
    s_mul_i32 s28, s51, 12288
    v_lshl_add_u32 v55, v3, 7, s28
    v_lshl_add_u32 v{LA}, v6, 4, v55
    v_xor_b32 v6, 4, v6
    v_lshl_add_u32 v{LA+1}, v6, 4, v55
    """)
    if OPT["wrow"]: su("v_lshl_add_u32 v55, v59, 3, v56\nv_mul_u32_u24 v55, 320, v55")
    else: su("v_lshrrev_b32 v55, 1, v59\nv_mul_u32_u24 v55, 5120, v55\nv_lshl_add_u32 v55, v58, 9, v55\nv_lshl_add_u32 v55, v56, 6, v55")
    su(f"""
    v_lshl_add_u32 v55, v57, 3, v55
    v_add_u32 v55, {WOFF}, v55
    s_cmp_lt_u32 s22, 8
    s_cselect_b32 s28, 5, 6
    s_cselect_b32 s29, 9, 5
    s_cmp_eq_u32 s52, 0
    s_cselect_b32 s28, 0, s28
    s_cselect_b32 s29, 4, s29
    s_add_u32 s30, s28, 1
    """)
    for i, sreg in enumerate((28, 30, 29)):
        su(f"""
        s_and_b32 s64, s{sreg}, 1
        s_lshr_b32 s65, s{sreg}, 1
        s_lshl_b32 s65, s65, {6 if OPT["wrow"] else 10}
        v_xor_b32 v6, s64, v58
        v_lshl_add_u32 v6, v6, 5, v55
        v_add_u32 v{LB+i}, s65, v6
        """)
    su(f"""
    s_lshl_b32 s28, s28, 6
    s_lshl_b32 s29, s29, 6
    v_lshl_add_u32 v253, v7, 2, s28
    v_lshl_add_u32 v254, v7, 2, s29
    v_cmp_gt_u32 vcc, 16, v7
    v_mov_b32 v6, {OOB}
    s_add_u32 s34, s28, {CSL}
    s_add_u32 s35, s29, {CSL}
    v_cndmask_b32 v254, v6, v254, vcc
    s_mul_i32 s74, s22, 6400
    s_add_u32 s74, s74, {CSP}
    s_mul_i32 s64, s21, 640
    s_add_u32 s64, s64, s74
    s_cmp_ge_u32 s21, 10
    s_cselect_b32 s64, {OOB}, s64
    s_cmp_eq_u32 s51, 1
    s_cselect_b32 s64, {OOB}, s64
    v_mov_b32 v6, 0x3f803f80
    v_accvgpr_write_b32 a{ONES}, v6
    v_accvgpr_write_b32 a{ONES+1}, v6
    v_accvgpr_write_b32 a{ONES+2}, v6
    v_accvgpr_write_b32 a{ONES+3}, v6
    s_lshl_b32 s49, s2, {OPT['fash']}
    s_add_u32 s49, s49, {FA}
    s_cmp_eq_u32 s20, 0
    s_cselect_b32 s49, s49, {OOB}
    s_add_u32 s73, s2, s20
    s_cmp_eq_u32 s73, 0
    s_cselect_b32 s73, 0, {OOB}
    s_add_u32 s29, s25, {WPP}
    s_lshr_b32 s28, {"s25, 2" if OPT["mode"] == "cols" else "s24, 4"}
    s_xor_b32 s28, s28, s29
    s_and_b32 s28, s28, {0 if OPT["mode"] in ("rows", "none") else 1}
    s_lshl_b32 s28, s28, 13
    s_lshl_b32 s29, s29, 21
    s_add_u32 s29, s29, s28
    s_lshl_b32 s28, s20, 14
    s_add_u32 s29, s29, s28
    s_mul_i32 s28, s51, {3072 + (8192 if OPT["mode"] in ("rows", "none") else 0)}
    s_add_u32 s46, s29, s28              ; B stream first
    s_sub_u32 s70, s29, s28
    s_add_u32 s70, s70, {54*16384 + 3072 + (8192 if OPT["mode"] in ("rows", "none") else 0)}
    s_mul_i32 s69, s20, 5120
    s_mov_b32 s3, {0 if (OPT["mode"] in ("cols", "none") or OPT["pol"] == "race") else OPT["pol"] << 13}
    s_lshl_b32 s72, s20, 10
    s_add_u32 s72, s72, {AUXC}
    s_mul_i32 s65, s21, 768
    s_add_u32 s65, s65, {NEGM - 144*16}
    s_movk_i32 s66, 192
    """)
    if OPT["krot"] == 2: su("s_and_b32 s67, s44, 1\ns_mul_i32 s67, s67, 5")
    if OPT["krot"] == 3: su("s_mul_i32 s28, s44, 86\ns_lshr_b32 s28, s28, 8\ns_mul_i32 s28, s28, 3\ns_sub_u32 s28, s44, s28\ns_mul_i32 s67, s28, 7\ns_lshr_b32 s67, s67, 1")
    if OPT["krot"] == 5: su("s_mul_i32 s28, s44, 52\ns_lshr_b32 s28, s28, 8\ns_mul_i32 s28, s28, 5\ns_sub_u32 s28, s44, s28\ns_lshl_b32 s67, s28, 1")
    a += inter(su, grp(dma_w(0), 1))
    a += stamp("c0i")
    a += dma_next(1)
    a += W("sl")
    a += stamp("sl")
    a += inter(setup_s() + stats_math(), grp(dma_x(1) + dma_w(1), 1))
    a += dma_next(2)
    a("s_waitcnt lgkmcnt(0)\ns_mul_i32 s39, s39, 1664525\ns_add_u32 s39, s39, 1013904223")
    a += stamp("pend")
    return a

def zipw(*ls):
    keyed = []
    for li, l in enumerate(ls):
        for j, x in enumerate(l): keyed.append(((j + 0.5)/len(l), li, j, x))
    keyed.sort(key=lambda t: t[:3])
    return [y for k in keyed for y in k[3]]
def epi_t(kind, st):
    RC = AB[0]; PK = AB[1]; TMP = BB[0]
    e = A()
    for T in range(6):
        c = RC + 4*T
        e(f"v_mul_f32 v{c+2}, s83, v{c+1}")
        if kind == "silu": e(f"v_rcp_f32 v{c+3}, v{c+1}")
    blocks = [[(T, i) for T in Ts for i in idx] for idx in ((0, 1, 2, 3), (4, 5, 6, 7)) for Ts in ((0, 1), (2, 3), (4, 5))]
    blocks.append([(T, i) for T in range(6) for i in (8, 9)])
    nxt = lambda T: f"  s_mov_b32 s48, s{81 if T == 1 else 82}" if T in (1, 3) else "  s_add_u32 s48, s48, 1024"
    pend = []
    for bi, blk in enumerate(blocks):
        V = []; n = len(blk)
        u = lambda k: acc(blk[k][0], 0) + 2*blk[k][1]
        c = lambda k: RC + 4*blk[k][0]
        for k in range(n): V.append(f"  v_pk_fma_f32 {vr(u(k),2)}, {vr(CS+2*blk[k][1],2)}, {vr(c(k),2)}, {vr(u(k),2)} op_sel_hi:[1,0,1]")
        for k in range(n): V.append(f"  v_pk_mul_f32 {vr(TMP+2*k,2)}, {vr(u(k),2)}, {vr(c(k)+2,2)} op_sel_hi:[1,0]")
        if kind == "silu":
            for k in range(2*n): V.append(f"  v_exp_f32 v{TMP+k}, v{TMP+k}")
            for k in range(n): V.append(f"  v_pk_fma_f32 {vr(TMP+2*k,2)}, {vr(TMP+2*k,2)}, {vr(c(k)+2,2)}, {vr(c(k)+2,2)} op_sel:[0,1,1] op_sel_hi:[1,1,1]")
            for k in range(2*n): V.append(f"  v_rcp_f32 v{TMP+k}, v{TMP+k}")
            fin = lambda k: f"  v_pk_mul_f32 {vr(u(k),2)}, {vr(u(k),2)}, {vr(TMP+2*k,2)}"
        else:
            for k in range(2*n): V.append(f"  v_exp_f32_e64 v{TMP+k}, v{TMP+k} clamp")
            for k in range(n): V.append(f"  v_pk_fma_f32 {vr(u(k),2)}, {vr(u(k),2)}, {vr(c(k),2)}, 1.0 op_sel:[0,1,0] op_sel_hi:[1,1,0]")
            for k in range(2*n): V.append(f"  v_max_f32 v{u(k//2)+(k&1)}, v{u(k//2)+(k&1)}, v{TMP+k}")
            fin = lambda k: f"  v_pk_add_f32 {vr(u(k),2)}, {vr(u(k),2)}, {vr(VX+4,2)}"
        items = pend + grp(st.take(OPT["epi"][bi]), 1)
        if bi == OPT["f1blk"]: items.insert(len(pend) + OPT["f1pos"], W("sa") + L("s_barrier") + flag("s75") + stamp("f1"))
        ins = {}
        for k, x in enumerate(items): ins[5 + (k*(len(V) - 6)//len(items))//2*2] = x
        for i, v in enumerate(V):
            e.append(v)
            if i in ins: e += ins[i]
        p = PK + 12*(bi & 1); tg = " ;#sa" if bi < 3 else ""
        if bi in (0, 3, 6): e("s_mov_b32 s48, s80")
        pend = []
        for q in range(n//4):
            for k in range(4*q, 4*q + 4): e.append(fin(k))
            for k in range(4*q, 4*q + 4): e(f"v_cvt_pk_bf16_f32 v{p+k}, v{u(k)}, v{u(k)+1}")
            if bi < 6:
                T = blk[4*q][0]
                stv = [f"  buffer_store_dwordx4 {vr(p+4*q)}, v{VX + bi//3}, s[16:19], s48 offen sc1{tg}"]
                if T < 5: stv.append(nxt(T))
                if q == 0: e += stv
                else: pend.append(stv)
            else:
                e(f"v_permlane16_swap_b32 v{p+4*q}, v{p+4*q+2}\nv_permlane16_swap_b32 v{p+4*q+1}, v{p+4*q+3}")
                e(f"buffer_store_dwordx4 {vr(p+4*q)}, v{VX+2}, s[16:19], s48 offen sc1")
                if q < 2: e.append(nxt(2*q+1))
    return resolve(e)

def epi_kv(st):
    a = A()
    NM = AB[0]; TMP = BB[1]; FR = AB[1]; DD = ACC
    def RSf(T): return BB[0] + 4*T if T < 5 else VX
    a(f"""
    v_mov_b32 v{TMP+12}, 0x358637bd
    v_mov_b32 v{TMP+13}, 0x358637bd
    v_mov_b32 v{TMP+14}, 0x3f803f80
    s_waitcnt lgkmcnt(0)
    """)
    def kvm(P): return [f"  v_mfma_f32_16x16x32_bf16 {vr(DD+4*n)}, {vr(FR+4*kx)}, {vr(FR+4*vy)}, {'0' if P == 0 else vr(DD+4*n)}" for n, (kx, vy) in enumerate(PRODS)]
    for P in range(3):
        for h in range(2):
            T = 2*P + h; u0 = acc(T, 0); nm = NM + 4*T; rs = RSf(T); b = A()
            for t in range(5):
                for i in range(2):
                    r = u0 + 4*t + 2*i
                    b(f"v_pk_fma_f32 {vr(r,2)}, {vr(nm+2*i,2)}, {vr(CS+4*t,2)}, {vr(r,2)} op_sel_hi:[1,0,1]")
            for t in range(5):
                for i in range(2):
                    r = u0 + 4*t + 2*i
                    b(f"v_pk_mul_f32 {vr(r,2)}, {vr(r,2)}, {vr(rs+2*i,2)}")
            for i in range(6): b(f"v_pk_mul_f32 {vr(TMP+2*i,2)}, {vr(u0+2*i,2)}, s[30:31]")
            for i in range(12): b(f"v_exp_f32_e64 v{TMP+i}, v{TMP+i} clamp")
            for t in range(2, 5):
                for i in range(2): b(f"v_cvt_pk_bf16_f32 v{FR+4*(t+1)+2*h+i}, v{u0+4*t+2*i}, v{u0+4*t+2*i+1}")
            for i in range(2): b(f"v_cndmask_b32 v{FR+12+2*h+i}, v{FR+12+2*h+i}, v{TMP+14}, s[32:33]")
            for i in range(6): b(f"v_pk_add_f32 {vr(u0+2*i,2)}, {vr(u0+2*i,2)}, 1.0 op_sel_hi:[1,0]")
            for i in range(12): b(f"v_max_f32 v{u0+i}, v{u0+i}, v{TMP+i}")
            for i in range(6): b(f"v_pk_add_f32 {vr(u0+2*i,2)}, {vr(u0+2*i,2)}, {vr(TMP+12,2)}")
            for t in range(3):
                for i in range(2): b(f"v_cvt_pk_bf16_f32 v{FR+4*t+2*h+i}, v{u0+4*t+2*i}, v{u0+4*t+2*i+1}")
            n = OPT["epi_n"][T]
            a += inter(b, grp(st.take(n), 1), 2) if n else b
        if P: a(f"s_cmp_eq_u32 s36, 1\ns_cbranch_scc1 k_kvs{P}")
        for n, (kx, vy) in enumerate(PRODS):
            d = vr(DD + 4*n)
            a(f"v_mfma_f32_16x16x32_bf16 {d}, {vr(FR+4*kx)}, {vr(FR+4*vy)}, {'0' if P == 0 else d}")
        if P: a(f"k_kvs{P}:")
    a += stamp("kvv")
    a(f"""
    s_mul_i32 s28, s51, 1792
    s_add_u32 s37, s37, s28
    s_lshl_b32 s29, s52, 12
    s_add_u32 s28, s28, s29
    s_add_u32 s28, s28, {KVX}
    v_lshlrev_b32 v2, 2, v7
    v_add_u32 v3, s28, v2
    s_cmp_eq_u32 s51, 0
    s_cselect_b32 s28, 64, 8
    v_cmp_gt_u32 vcc, s28, v7
    v_mov_b32 v6, {OOB}
    """)
    for n in range(8): a(f"ds_write_b128 v{KVOF[n]}, {vr(DD+4*n)}")
    a("v_cndmask_b32 v6, v6, v2, vcc\ns_waitcnt lgkmcnt(0)\ns_barrier")
    for n in range(7): a(f"ds_read2st64_b32 {vr(72+2*n,2)}, v3 offset0:{n} offset1:{32+n}")
    for n in range(7):
        a(f"s_waitcnt lgkmcnt({6-n})\nv_add_f32 v{72+2*n}, v{72+2*n}, v{73+2*n}")
        a(f"buffer_atomic_add_f32 v{72+2*n}, v{6 if n == 6 else 2}, s[16:19], s37 offen offset:{256*n}")
    a += stamp("kvs")
    return a

def phase2(st):
    a = A()
    G = 8; AR = 88; NA = 4; SA = 208; XB = 228
    AV = [244, 245, 246, 247]; RW = [248, 249, 250]; XA = [251, 252, 253]
    GA = 152; DB = 208; KA = 236; OA = 0; UA = 237; FW = 238
    g1 = OPT["gap1"]; psched = OPT["psched"]; wtr = OPT["wtrail"]; F1A = 239; OB = 235
    s1 = L(f"""
    s_cmp_eq_u32 s20, 0
    s_cselect_b32 s55, 0, {OOB}
    s_cselect_b64 s[56:57], -1, 0
    s_and_b32 s21, s2, 3
    s_lshl_b32 s21, s21, 2
    s_bfe_u32 s28, s2, 0x20003
    s_add_u32 s21, s21, s28              ; hp
    s_and_b32 s23, s2, 4
    s_lshl_b32 s23, s23, 1
    s_lshr_b32 s28, s2, 5
    s_add_u32 s23, s23, s28              ; rg
    s_mul_i32 s28, s24, 21846
    s_lshr_b32 s28, s28, 16
    s_add_u32 s28, s28, 144              ; W1 lines: (12+i)*12 + rb, lanes 0..10
    s_lshr_b32 s29, s21, 1
    s_mul_i32 s29, s29, 12
    s_sub_u32 s29, s29, 11               ; KV lines: kvct*12 + (i-11), lanes 11..21
    s_lshl_b32 s30, s23, 1
    s_mul_i32 s31, s30, 21846
    s_lshr_b32 s31, s31, 16
    s_add_u32 s30, s30, 1
    s_mul_i32 s30, s30, 21846
    s_lshr_b32 s30, s30, 16
    s_lshr_b32 s34, s21, 2
    s_mul_i32 s34, s34, 12
    s_add_u32 s34, s34, 96
    s_add_u32 s31, s31, s34              ; Q line, first row block (lane 22)
    s_add_u32 s30, s30, s34              ; Q line, second row block (lanes 23..)
    v_min_u32 v2, 10, v7
    v_mad_u32_u24 v2, v2, 12, s28
    v_lshlrev_b32 v3, 7, v2
    v_add_u32 v{F1A}, {FP + FPD}, v3
    v_add_u32 v3, s29, v7
    v_cmp_le_u32 vcc, 11, v7
    v_cndmask_b32 v2, v2, v3, vcc
    v_mov_b32 v3, s31
    v_cmp_le_u32 vcc, 22, v7
    v_cndmask_b32 v2, v2, v3, vcc
    v_mov_b32 v3, s30
    v_cmp_le_u32 vcc, 23, v7
    v_cndmask_b32 v2, v2, v3, vcc
    v_lshlrev_b32 v2, 7, v2
    v_add_u32 v{FW}, {FP}, v2
    s_mul_i32 s54, s21, 5
    s_lshr_b32 s54, s54, 2               ; ksA
    s_lshl_b32 s60, s21, 12
    s_add_u32 s60, s60, {KVP}
    v_lshlrev_b32 v3, 4, v0
    v_cmp_gt_u32 vcc, 210, v0
    v_mov_b32 v6, {OOB}
    v_cndmask_b32 v{KA}, v6, v3, vcc
    s_lshl_b32 s76, s23, 1
    s_add_u32 s76, s76, s51
    """) + blk(63, 76, "q", 28, 29) + L(f"""
    s_xor_b32 s63, s63, s3
    s_lshl_b32 s30, s52, 11
    s_add_u32 s63, s63, s30
    s_add_u32 s62, s54, 1
    """) + cell(61, 54, 28) + cell(62, 62, 28) + L(f"""
    s_add_u32 s61, s61, s63
    s_add_u32 s62, s62, s63
    s_add_u32 s63, s63, {QSZ}
    """)
    s2 = A()
    s2(f"""
    v_and_b32 v1, 15, v7                 ; i / m
    v_lshrrev_b32 v2, 4, v7              ; g
    v_lshrrev_b32 v3, 2, v1
    v_and_b32 v212, 3, v1
    v_lshl_add_u32 v6, v3, 3, v212
    v_cmp_le_u32 vcc, 20, v6
    v_cndmask_b32 v216, 0, 5, vcc
    v_lshlrev_b32 v220, 2, v216
    v_sub_u32 v220, v6, v220
    v_add_u32 v6, 4, v6
    v_cmp_le_u32 vcc, 20, v6
    v_cndmask_b32 v217, 0, 5, vcc
    v_lshlrev_b32 v221, 2, v217
    v_sub_u32 v221, v6, v221
    v_cmp_gt_u32 vcc, 8, v1
    v_cndmask_b32 v218, 64, 5, vcc
    v_add_u32 v222, 12, v1
    v_add_u32 v6, v3, v212
    v_cmp_le_u32 vcc, 3, v6
    v_cmp_le_u32 s[34:35], 2, v212
    s_or_b64 vcc, vcc, s[34:35]
    v_cndmask_b32 v219, 0, 5, vcc
    v_mov_b32 v223, 20
    v_mov_b32 v213, 255
    s_mov_b32 s37, {RED}
    """)
    for k in range(2):
        s2(f"""
        s_add_u32 s31, s54, {k}
        s_mul_i32 s32, s31, 205
        s_lshr_b32 s32, s32, 10
        s_mul_i32 s32, s32, 5
        s_sub_u32 s32, s31, s32
        s_cmp_eq_u32 s32, 2
        s_cselect_b32 s33, 1, 0
        s_cselect_b32 s36, 1, 4
        s_lshl_b32 s31, s31, 3
        s_mul_i32 s32, s21, 10
        s_sub_u32 s31, s31, s32
        v_lshlrev_b32 v3, s33, v2
        v_add_u32 v3, s31, v3
        """)
        for j in range(2):
            if j: s2("v_add_u32 v3, s36, v3")
            for tl in range(4):
                s2(f"""
                v_sub_u32 v212, v3, v{216+tl}
                v_cmp_gt_u32 vcc, 5, v212
                v_mad_u32_u24 v212, v3, 21, v{220+tl}
                v_cndmask_b32 v212, v213, v212, vcc
                v_lshl_add_u32 v{GA+tl*4+k*2+j}, v212, 3, s37
                """)
    ol = L(f"buffer_load_dwordx4 v[208:211], v{KA}, s[16:19], s60 offen sc1 ;#P")
    ql = L(f"""
    buffer_load_dwordx4 a[240:243], v4, s[16:19], s61 offen sc1 ;#Q
    buffer_load_dwordx4 a[244:247], v4, s[16:19], s62 offen sc1 ;#Q
    buffer_load_dwordx4 a[248:251], v4, s[16:19], s61 offen offset:1024 sc1 ;#Q
    buffer_load_dwordx4 a[252:255], v4, s[16:19], s62 offen offset:1024 sc1 ;#Q
    """)
    s3 = A()
    s3(f"""
    s_and_b32 s64, s23, 3
    s_lshl_b32 s64, s64, 11
    s_and_b32 s28, s23, 4
    s_lshl_b32 s28, s28, 12
    s_add_u32 s64, s64, s28
    s_and_b32 s28, s23, 8
    s_lshl_b32 s28, s28, 10
    s_xor_b32 s28, s28, s3
    s_add_u32 s64, s64, s28
    s_lshl_b32 s28, s21, 7
    s_add_u32 s64, s64, s28
    s_add_u32 s64, s64, {FO}
    s_add_u32 s64, s64, s55
    s_mul_i32 s28, s21, 5
    v_add_u32 v3, s28, v2
    v_lshrrev_b32 v6, 3, v3
    v_lshlrev_b32 v6, 14, v6
    v_bfe_u32 v212, v3, 2, 1
    v_lshl_add_u32 v6, v212, {13 if OPT["mode"] in ("cols", "none") else 12}, v6
    v_and_b32 v3, 3, v3
    v_lshl_add_u32 v6, v3, 8, v6
    v_lshl_add_u32 v{OB}, v1, 4, v6
    s_add_u32 s28, s28, 4
    s_lshr_b32 s30, s28, 2
    """)
    s3 += cell(30, 30, 29)
    s3(f"""
    s_and_b32 s28, s28, 3
    s_lshl_b32 s28, s28, 8
    s_add_u32 s28, s28, s30
    v_lshl_add_u32 v3, v1, 4, s28
    v_lshl_add_u32 v3, v2, 3, v3
    v_cmp_gt_u32 vcc, 2, v2
    v_mov_b32 v6, {OOB}
    v_lshl_add_u32 v{UA}, v0, 3, s37
    v_cndmask_b32 v{OA}, v6, v3, vcc
    """)
    sA = A()
    sA += blk(40, 24, "h", 28, 29) + cell(30, 20, 29) + L("s_xor_b32 s40, s40, s3\ns_add_u32 s40, s40, s30")
    for T in range(4):
        sA(f"s_add_u32 s28, s20, {T}\ns_and_b32 s28, s28, 3\ns_lshl_b32 s28, s28, 10\nv_add_u32 v{AV[T]}, s28, v4")
    osum = W("P") + L(f"v_cvt_pk_bf16_f32 v208, v208, v209\nv_cvt_pk_bf16_f32 v209, v210, v211\nds_write_b64 v{UA}, v[208:209]")
    ogat = [f"  ds_read_b64 {ar(2*n,2)}, v{GA+n}" for n in range(16)]
    om = []
    for k in range(2):
        for T in range(2):
            for tl in (3, 0, 1, 2):
                d = vr(DB + 16*T + 4*tl)
                om.append(f"  v_mfma_f32_16x16x32_bf16 {d}, {ar(tl*8+k*4)}, {ar(240+T*8+k*4)}, {'0' if k == 0 else d}")
    ofin = []
    for T in range(2):
        o = A(); b = DB + 16*T; z = b + 12; pk = GA + 6*T
        for r in range(3): o(f"v_add_f32 v{z+r}, 0x358637bd, v{z+r}")
        for r in range(3): o(f"v_rcp_f32 v{z+r}, v{z+r}")
        for tl in range(3):
            for r in range(4): o(f"v_mul_f32 v{b+4*tl+r}, v{b+4*tl+r}, v{z+tl}")
        for i in range(6): o(f"v_cvt_pk_bf16_f32 v{pk+i}, v{b+2*i}, v{b+2*i+1}")
        o(f"buffer_store_dwordx4 {vr(pk)}, v2, s[16:19], s63 offen offset:{1024*T} sc1 ;#OS")
        o(f"buffer_store_dwordx2 {vr(pk+4,2)}, v{OA}, s[16:19], s63 offen offset:{1024*T} sc1 ;#OS")
        ofin.append(list(o))
    fs = A()
    fs(f"""
    s_lshl_b32 s42, s24, 2
    s_add_u32 s42, s42, s20
    s_lshr_b32 s30, s24, 1
    s_and_b32 s28, s30, 3
    s_lshl_b32 s28, s28, 11
    s_and_b32 s29, s30, 4
    s_lshl_b32 s29, s29, 12
    s_add_u32 s28, s28, s29
    s_and_b32 s29, s30, 8
    s_lshl_b32 s29, s29, 10
    s_xor_b32 s29, s29, s3
    s_add_u32 s28, s28, s29
    s_add_u32 s28, s28, {FO}
    v_min_u32 v6, 15, v7
    v_lshl_add_u32 v{VF-1}, v6, 7, s28
    s_mul_i32 s48, s42, {16*1280}
    s_mul_i32 s28, s25, 160
    s_add_u32 s48, s48, s28
    """)
    fs += blk(42, 24, "o", 28, 29)
    fs(f"""
    s_xor_b32 s42, s42, s3
    s_lshl_b32 s28, s20, 10
    s_add_u32 s42, s42, s28
    s_mul_i32 s49, s20, 15360
    s_add_u32 s49, s49, {RED}
    v_mul_u32_u24 v243, 176, v1
    v_lshl_add_u32 v243, v2, 3, v243
    v_add_u32 v243, s49, v243            ; result write: row stride 176
    """)
    for i in range(3):
        fs(f"""
        v_add_u32 v6, {64*i}, v7
        v_mul_u32_u24 v1, 6554, v6
        v_lshrrev_b32 v1, 16, v1
        v_mul_u32_u24 v3, 1120, v1
        v_lshl_add_u32 v3, v6, 4, v3
        v_cmp_gt_u32 vcc, 160, v6
        v_add_u32 v1, v1, v6
        v_mov_b32 v6, {OOB}
        v_lshl_add_u32 v{240+i}, v1, 4, s49
        v_cndmask_b32 v{XA[i]}, v6, v3, vcc
        """)
    for T in range(1, 4):
        fs(f"s_add_u32 s28, s20, {T}\ns_and_b32 s28, s28, 3\ns_mul_i32 s28, s28, 15360\ns_add_u32 s28, s28, {RED + (T-1)*5120}\nv_add_u32 v{RW[T-1]}, s28, v4")
    fs(f"v_add_u32 v1, s49, v4\nv_mov_b32 v2, v{OB}")
    MG = OPT["mg"]
    def areg(s): return GA if s == 13 else AR + (s % NA)*16
    def ldA(s):
        r = [f"  buffer_load_dwordx4 {vr(areg(s)+4*T)}, v{AV[T]}, s[16:19], s40 offen sc1 ;#A{s}{'abcd'[T]}" for T in ((1, 2, 3, 0) if s >= MG else range(4))]
        pre = [f"  s_add_u32 s41, s40, {32768*s}"]
        if s == 13: pre += L(f"s_cmp_lt_u32 s20, 2\ns_cselect_b32 s41, s41, {OOB}")
        r = pre + [x.replace("s40", "s41") for x in r]
        return r
    a("k_p2:\n;MARK ep")
    for i in range(14): a(f";MARK B{i}")
    for i in range(5): a(f";MARK wo{i}")
    a += stamp("eend")
    gs = grp(st.take(g1), 2)
    gs.insert(len(gs) - OPT["poll_early"], poll(F1A, VF, "p1", "s55"))
    allsu = glue(s1 + sA + s2 + s3 + fs); k1 = OPT["su1"]; k2 = OPT["su2"]
    assert k1 >= len(glue(s1 + sA))
    flat = lambda l: sum(l, [])
    p1at = next(i for i, x in enumerate(allsu) if f"v_add_u32 v{F1A}," in x[0]) + 1
    a += inter(flat(allsu[:k1]), gs, p1at if OPT["poll_early"] >= len(gs) - 2 else 0)
    a += W("ep") + L("s_barrier") + flag("s67", 224) + stamp("flag")
    a += W("p1") + L("s_mov_b64 s[58:59], vcc") + check("k_s1", F1A, VF, True) + L("s_mov_b64 vcc, s[58:59]") + stamp("c1")
    pre = grp(ldA(2), 1)
    if OPT["pp2"] < 0: pre.append(poll(FW, VF, "p2", "s55"))
    a += ldA(0) + ldA(1) + inter(flat(allsu[k1:k2]), pre)
    late = allsu[k2:]; nl = OPT["c2"]
    late = {i: flat(late[i*len(late)//nl:(i+1)*len(late)//nl]) for i in range(nl)}
    def ldO(i0, n):
        r = []
        for i in range(i0, i0 + n):
            if OPT["mode"] in ("cols", "none"):
                r += [f"  s_add_u32 s43, s42, {8192*i}", f"  buffer_load_dwordx4 {ar(4*i)}, v4, s[16:19], s43 offen sc1 ;#O{i}"]; continue
            if i % 2 == 0 or i == i0: r.append(f"  s_add_u32 s43, s42, {16384*(i//2)}")
            r.append(f"  buffer_load_dwordx4 {ar(4*i)}, v{4 + (i & 1)}, s[16:19], s43 offen sc1 ;#O{i}")
        return r
    ldX = [[f"  s_add_u32 m0, s49, {4096 + 1024*i}", "  s_nop 0", f"  buffer_load_dwordx4 v{XA[i]}, s[8:11], s48 offen lds ;#X"] for i in range(3)]
    rdX = L("v_add_u32 v2, 51200, v4\nv_and_b32 v3, 15, v7\nv_lshlrev_b32 v3, 4, v3\nv_sub_u32 v3, v243, v3") + W("X") + tag([f"  ds_read_b64 {vr(XB+2*t,2)}, v3 offset:{4096+32*t}" for t in range(5)], "xr")
    NB = 3
    def sb(s, t): return ar(80 + 20*(s % NB) + 4*t)
    def rdB(s): return tag([f"  ds_read_b128 {sb(s,t)}, v{4 if s < 10 else 2} offset:{(s%10)*5120+1024*t}" for t in range(5)], f"b{s}")
    wr_ = tag([f"  ds_write_b128 v{RW[T-1]}, {vr(G+(T*5+t)*4)} offset:{1024*t}" for T in range(1, 4) for t in range(5)], "w")
    rd_ = tag([f"  ds_read_b128 {vr(G+20+4*j)}, v1 offset:{1024*j}" for j in range(15)], "r")
    C2 = OPT["c2"]; plan = OPT["aplan"]; OFS = OPT["ofs"]; PO = OPT["po"]; PC = OPT["pc"]; osched = OPT["osched"]
    no = 0
    XU = AR + 16
    xu = []
    for i in range(10): xu += [f"  v_lshlrev_b32 v{XU+2*i}, 16, v{XB+i}", f"  v_and_b32 v{XU+2*i+1}, 0xffff0000, v{XB+i}"]
    def wdone(g): return ("W", 5*g + 4) not in st.items
    def mf(s, T, rev):
        return [f"  v_mfma_f32_16x16x32_bf16 {vr(G+(T*5+t)*4)}, {breg(s,t)}, {vr(areg(s)+4*T)}, {'0' if s == 0 else vr(G+(T*5+t)*4)}" for t in (range(4, -1, -1) if rev else range(5))]
    nm = 14 - MG; WB = OPT["wb"]
    for s in range(MG + 4):
        if s < MG:
            need = [f"A{s}{c}" for c in "abcd"] + [f"B{s}"]; assert ("B", 5*s + 4) not in st.items
            M = sum((mf(s, T, T & 1) for T in range(4)), [])
        else:
            T = (1, 2, 3, 0)[s - MG]
            need = [f"A{x}{'abcd'[T]}" for x in range(MG, 14)] + ["B13"]; assert ("B", 69) not in st.items
            M = sum((mf(x, T, False) for x in range(MG, 14)), [])
        vm = need + (["op"] if s == PC else []) + ([f"wo{g}" for g in range(5) if g not in wtr] if s == WB else []) + (["OS"] if s == OFS else []) + (["p2"] if s == C2 else [])
        if s == WB: assert all(wdone(g) for g in range(5) if g not in wtr)
        OQ = OPT["oq"]; OM = C2 + (1 if OQ else 2)
        a += W(vm, "*" if (s == MG + 1 or (s == C2 + 2 and not OQ)) else ())
        a += stamp(f"g{s}")
        if s == C2: a += check("k_sw", FW, VF, True) + stamp("w1")
        if s == PC: a += check("k_so", VF-1, VF, True) + stamp("op")
        if s != PC and s in (OFS, -1 if OQ else C2 + 2, WB, MG + 1): a("s_barrier")
        ls = []; n = len(M)
        for x in plan.get(s, []): assert (x < 5 or s >= C2) and (x - s <= 3 or (x == 13 and s > C2 + 3))
        v = sum((ldA(x) for x in plan.get(s, [])), [])
        if s == C2: v = ol + ql + v
        if s == OFS: v = flag("s64") + v
        if s == PO: v = poll(VF-1, VF, "op", "s55") + v
        if s == OPT["pp2"]: v = poll(FW, VF, "p2", "s55") + v
        if late.get(s): ls.append((late[s], 0, n - 1))
        if s in OPT["xs"]: v += sum([ldX[i] for i, x in enumerate(OPT["xs"]) if x == s], [])
        if psched.get(s): v += st.take(psched[s])
        if osched.get(s): v += ldO(no, osched[s]); no += osched[s]
        ls.append((v, 0, n - 2))
        if OQ:
            if s == C2 + 1: ls += [(osum, OQ, OQ + 1), (L("s_waitcnt lgkmcnt(0)\ns_barrier"), OQ + 4, OQ + 4), (ogat, OQ + 5, min(OQ + 10, 19))]
        else:
            if s == C2 + 1: ls.append((osum, 16, 19))
            if s == C2 + 2: ls.insert(0, (ogat, 0, 10))
        if s == OM + 1: ls.append((ofin[0] + ofin[1], 1, 19))
        if s == OPT["xr"]: assert s <= MG and s > OFS; ls.insert(0, (rdX, 0, 8))
        if s > MG: ls.append((wr_[5*(s-MG-1):5*(s-MG)], 2, n - 1))
        if s == MG + 2: ls.append((xu, 0, n - 1))
        if s == MG + 3: ls.append((rdB(0) + rdB(1), 0, n - 2))
        a += place(M, ls)
        if s == OM: a += W("Q", "*") + stamp("om") + place(om, [(st.take(OPT["pom"]), 0, 15)])
    a += stamp("gend")
    E = G + 20
    VB = []
    for j in range(3):
        for i in range(10): VB.append(f"  v_pk_add_f32 {vr(G+2*i,2)}, {vr(G+2*i,2)}, {vr(G+20+20*j+2*i,2)}")
    VB += [f"  v_pk_mul_f32 {vr(E+2*i,2)}, {vr(G+2*i,2)}, s[30:31]" for i in range(10)]
    def unpk(Vl):
        V2 = []
        for x in Vl:
            m = re.match(r"\s*v_pk_(add|mul)_f32 v\[(\d+):\d+\], v\[(\d+):\d+\], (\S+)", x)
            op, d, p, q = m.group(1), int(m.group(2)), int(m.group(3)), m.group(4)
            for h in range(2):
                qq = "s30" if q.startswith("s[") else f"v{int(q[2:].split(':')[0]) + h}"
                V2.append(f"  v_{op}_f32 v{d+h}, {qq}, v{p+h}")
        return V2
    V = [] if OPT["burst"] else unpk(VB)
    V += [f"  v_exp_f32 v{E+i}, v{E+i}" for i in range(20)]
    V += [f"  v_add_f32 v{E+i}, 1.0, v{E+i}" for i in range(20)]
    V += [f"  v_rcp_f32 v{E+i}, v{E+i}" for i in range(20)]
    V += [f"  v_mul_f32 v{G+i}, v{G+i}, v{E+i}" for i in range(20)]
    V0 = OPT["v0"]; RB = OPT["rb"]; LK = NB - 1; P0 = MG + 4
    cost = [8 if ("exp" in x or "rcp" in x) else 4 for x in V]; tot = sum(cost); parts = [[] for _ in range(20 - V0)]; c_ = 0
    for x, c in zip(V, cost): parts[min(len(parts) - 1, c_*len(parts)//tot)].append(x); c_ += c
    for s in range(20):
        wg = [g for g, st_ in wtr.items() if st_ == s]
        for g in wg: assert s + LK <= 4*g and wdone(g)
        a += W([f"O{s}"] + [f"wo{g}" for g in wg], [f"b{s}"] + (["w"] if s == RB else []) + (["r"] if s == V0 else []))
        if s == RB or wg: a("s_barrier")
        a += stamp(f"s{s}")
        if s == V0 and OPT["burst"]: a += [";@align on"] + VB + [";@align off"]
        M = [f"  v_mfma_f32_16x16x32_bf16 {vr(SA+4*t)}, {sb(s,t)}, {ar(4*s)}, {'0' if s == 0 else vr(SA+4*t)}" for t in range(5)]
        ls = []
        if s + LK < 20: ls.append((rdB(s+LK), 0, 4))
        v = []
        if psched.get(P0 + s): v += st.take(psched[P0 + s])
        if osched.get(P0 + s): v += ldO(no, osched[P0 + s]); no += osched[P0 + s]
        ls.append((v, 0, 4))
        if s == 0: ls.append((L(f"s_mov_b32 s30, {LOG2E|0x80000000}\ns_mov_b32 s31, {LOG2E|0x80000000}"), 0, 4))
        if RB <= s < RB + 3: ls.append((rd_[5*(s-RB):5*(s-RB)+5], 0, 4))
        if s >= V0: ls.append((parts[s-V0], 0, 4))
        a += place(M, ls)
    assert no == 20 and not st.items, (no, st.items)
    a += stamp("send")
    for t in range(5):
        for i in range(2): a(f"v_pk_fma_f32 {vr(SA+4*t+2*i,2)}, {vr(SA+4*t+2*i,2)}, {vr(G+4*t+2*i,2)}, {vr(XU+4*t+2*i,2)}")
        for i in range(2): a(f"v_cvt_pk_bf16_f32 v{XB+2*t+i}, v{SA+4*t+2*i}, v{SA+4*t+2*i+1}")
        a(f"ds_write_b64 v243, {vr(XB+2*t,2)} offset:{32*t}")
    a(";@align off\ns_waitcnt lgkmcnt(0)")
    for i in range(3): a(f"ds_read_b128 {vr(E+4*i)}, v{240+i}")
    for i in range(3): a(f"s_waitcnt lgkmcnt({2-i})\nbuffer_store_dwordx4 {vr(E+4*i)}, v{XA[i]}, s[4:7], s48 offen")
    a += stamp_out()
    return resolve(a)

def build():
    OUTL.clear()
    pro = prologue()
    br = L("s_cmp_lt_u32 s22, 8\ns_cbranch_scc1 k_kv")
    if OPT["pol"] == "race":
        br += L("s_cmp_eq_u32 s21, 11\ns_cbranch_scc1 k_race")
        OUTL(f"""
        k_race:
        s_waitcnt vmcnt(0)
        s_cmp_lg_u32 s20, 0
        s_cbranch_scc1 k_race2
        s_cmp_eq_u32 s2, 255
        s_cbranch_scc1 k_race2
        s_bfe_u32 s29, s2, 0x10003           ; 239 -> 1, 247 -> 0
        s_lshl_b32 s28, s29, 13
        s_add_u32 s28, s28, {RACE}
        v_lshlrev_b32 v6, 25, v7
        s_mov_b32 s30, {OPT['trips']}
        k_race1:
        v_mov_b32 v3, 0
        buffer_atomic_add v3, v6, s[16:19], s28 offen sc0
        s_sub_u32 s30, s30, 1
        s_cmp_lg_u32 s30, 0
        s_waitcnt vmcnt(0)
        s_cbranch_scc1 k_race1
        s_mov_b32 s56, s36
        s_and_b32 s57, s37, 0xffff
        s_mov_b32 s58, 256
        s_mov_b32 s59, 0x20000
        v_mov_b32 v3, 1
        buffer_atomic_add v3, v6, s[56:59], 0 offen sc0
        s_xor_b32 s29, s29, 1
        s_lshl_b32 s29, s29, 13
        s_waitcnt vmcnt(0)
        v_readfirstlane_b32 s30, v3
        v_mov_b32 v3, s29
        s_nop 0
        s_cmp_eq_u32 s30, 0
        s_cselect_b32 s28, {PW}, {OOB}
        buffer_store_dword v3, v6, s[16:19], s28 offen sc1
        s_waitcnt vmcnt(0)
        k_race2:
        s_barrier
        """)
        OUTL.extend(flag("s49") + [f"  v_add_u32 v{L2B+i}, {2*STAGE}, v{LA+i}" for i in range(5)] + L("s_branch k_t_join"))
    we = max(0, sum(OPT["pf_t"].values()) + sum(OPT["epi"]) - 60)
    items = [("B", i) for i in range(60)] + [("W", i) for i in range(we)] + [("B", i) for i in range(60, 70)] + [("W", i) for i in range(we, 25)]
    st_t = Stream(items); st_n = Stream(items)
    mt = g1_main("k_t", True, st_t)
    mt += L("s_waitcnt lgkmcnt(0)\ns_cmp_lt_u32 s22, 12\ns_cbranch_scc1 k_q")
    eq = epi_t("phi", Stream(st_t.items)); es = epi_t("silu", st_t)
    mn = g1_main("k_n", False, st_n)
    ek = epi_kv(st_n)
    assert ("B", 60) in st_n.items and st_n.items == st_t.items
    n0 = len(resolve(pro + br))
    a = resolve(pro + br + mt) + es + phase2(st_t) + L("s_endpgm\nk_q:") + eq + L("s_branch k_p2\nk_kv:") + resolve(pro + br + mn + ek)[n0:] + L("s_branch k_p2")
    a += L("k_end:\ns_endpgm") + OUTL
    body, added = haz.fix(a)
    body, nbytes, nn, npm = align.align([x.replace("CODE_KB", "40").replace("CODE_MAX", "44444") for x in body])
    kb = (nbytes + 1023)//1024; assert kb <= 64
    body = [x.replace("s_cmp_ge_u32 s28, 40", f"s_cmp_ge_u32 s28, {kb if OPT.get('cpf', 1) else 0}").replace("44444", str((nbytes - 16) & ~15)) for x in body]
    body = [re.sub(r"\s*;(#\S+|nocount|C)$", "", x) for x in body]
    print("instrs", len(body), "nops added", added, "bytes", nbytes, "align nops", nn, "promoted", npm, file=sys.stderr)
    if OPT.get("nost"): body = [x for x in body if not ("buffer_store_dwordx4" in x and "s[76:79]" in x)]
    if OPT.get("cyc"): body = [x.replace("s_memrealtime", "s_memtime") for x in body]
    out = ["; @launch grid=(256,1,1) block=(256,1,1) lds=163840",
           '.amdgcn_target "amdgcn-amd-amdhsa--gfx950"\n.text', khead(NAME)] + body
    if DIAG: out.append(";ST " + " ".join(OPT["st"][:7]) + "\n;OPTS " + " ".join(x for x in sys.argv[3:] if not x.startswith("st=")))
    out.append('.section .rodata,"a"\n.p2align 6\n' + kd(NAME, 512, 256, 102))
    return "\n".join(out) + "\n"
if __name__ == "__main__":
    for x in sys.argv[2:]:
        if x == "d": DIAG = True
        else:
            k, v = x.split("=", 1); OPT[k] = eval(v)
    src = build()
    open(sys.argv[1], "w").write(src)
```

```python
import sys, re
from asmlib import kd, khead
import haz, align

NAME = "recurrent_scan__linear_attn_block__dense_activation_silu__prompt_kernel"
S, D, F = 2048, 640, 1728
FA = 0x8000
FP = 0xF0000
FPD = 0x9000 - 144*128
FO = 0x38000
NEGM = 0x10000; RSTD = 0x12000
CSP = 0x14000
KVP   = 0x40000
PG = 1 << 21
PW = 0xC8000
RACE = 0xC0000
WPP = 1
HOF = 74*16384; HSZ = 27*16384
QPP = 9; QSZ = 10*16384
GXP = 13
WS_USED = 15*PG
TS = 0x1F00000
def blk(dst, rb, kind, t0, t1):
    sh, pg, msk, sz, of = (1, WPP, 1, HSZ, HOF) if kind == "h" else (2, QPP, 3, 2*QSZ, QSZ if kind == "o" else 0)
    return L(f"""
    s_and_b32 s{t0}, s{rb}, 15
    s_lshr_b32 s{t0}, s{t0}, {sh}
    s_add_u32 s{t0}, s{t0}, {pg}
    s_lshr_b32 s{t1}, s{rb}, 4
    s_xor_b32 s{t1}, s{t1}, s{t0}
    s_and_b32 s{t1}, s{t1}, 1
    s_lshl_b32 s{t1}, s{t1}, {12 if OPT["mode"] in ("cols", "none") else 13}
    s_lshl_b32 s{t0}, s{t0}, 21
    s_add_u32 s{t0}, s{t0}, s{t1}
    s_and_b32 s{t1}, s{rb}, {msk}
    s_mul_i32 s{t1}, s{t1}, {sz}
    s_add_u32 s{t0}, s{t0}, s{t1}
    s_add_u32 s{dst}, s{t0}, {of}
    """)
def cell(dst, idx, t0):
    return L(f"s_lshr_b32 s{t0}, s{idx}, 1\ns_lshl_b32 s{t0}, s{t0}, 14\ns_and_b32 s{dst}, s{idx}, 1\ns_lshl_b32 s{dst}, s{dst}, {13 if OPT['mode'] in ('cols', 'none') else 12}\ns_add_u32 s{dst}, s{dst}, s{t0}")
LOG2E = 0x3fb8aa3b
OOB = 0x40000000
STAGE = 45056; WOFF = 24576; SPARE = 3*STAGE
AUXC = SPARE; AUXM = SPARE + 6400
CSL = SPARE + 8192
PACKL = SPARE
KVX = SPARE + 10240
RED = 102400
DIAG = False
OPT = dict(spin=200000, pkd=1, pkr=3, pks={4: 3, 5: 2}, flagb=3, flagb_n=2, pollb=6,
           pf_t={15:5,16:5,17:5,18:5,19:7}, pf_n={15:4,16:4,17:4,18:5,19:5}, epi_n=[5, 5, 5, 5, 4, 0], kv_first=0,
           epi=[4, 3, 2, 3, 2, 2, 3], oq=9, f1blk=5, f1pos=0, gap1=8, poll_early=1, c2=2, pom=0,
           slots=[("r",0),("r",1),("o",0),("o",1),("r",2),("r",3),("r",4),("r",5),("r",6),("o",2),("o",3),("o",4),("o",5),("o",6)],
           aplan={0:[3],2:[4],3:[5,6],4:[7],5:[8],6:[9],7:[10],8:[11,13],9:[12]},
           mg=11, wb=14, xr=6, rb=1, burst=1, su1=170, su2=372, pp2=0,
           psched={0:1,1:2,10:3}, xs=[1, 1, 1], ofs=7, po=9, pc=12, xcut=44, xf=14, xp=18, xc=22, v1=12,
           osched={12:4,13:4,14:4,15:2,16:2,17:2,19:2}, xw=1, nbuf=3, v0=5, nopk=1, adist=3, p2map=1, su_pre=200, su_pre_n=160, sleep=2, rot=0, snake=1, krot=0, fash=4, wtrail={}, wrow=1, wfirst=0, sufirst=0, keep=0, slin=0, head=2, w1first=0, cmaj=0, pol="race", mode="rows", trips=9, cpf2=12,
           st=["eend", "w1", "g11", "op", "gend", "s5", "send"])

class A(list):
    def __call__(self, s):
        for x in s.strip("\n").split("\n"):
            x = x.strip()
            m = re.match(r"s_cselect_b32 (s\d+), (\d+|0x[0-9a-f]+), (\d+|0x[0-9a-f]+)\s*(;.*)?$", x)
            if m and int(m.group(2), 0) > 64 and int(m.group(3), 0) > 64:
                self.append(f"  s_mov_b32 {m.group(1)}, {m.group(3)}")
                x = f"s_cselect_b32 {m.group(1)}, {m.group(2)}, {m.group(1)}"
            if x: self.append(("" if x.endswith(":") else "  ") + x)
        return self
def L(s): return list(A()(s))
def stamp(name):
    if not DIAG: return []
    if name == "entry": i = 0
    elif name in OPT["st"][:7]: i = 1 + OPT["st"].index(name)
    else: return []
    return [f"  s_memrealtime s[{84+2*i}:{85+2*i}]"]
def stamp_out():
    if not DIAG: return []
    if OPT.get("echo") is not None:
        i = OPT["echo"]
        return L(f"""
        s_waitcnt vmcnt(0)
        s_memrealtime s[100:101]
        s_waitcnt lgkmcnt(0)
        s_sub_u32 s28, s{84+2*i}, s84
        s_min_u32 s28, s28, 10000
        s_add_u32 s28, s28, 5000
        k_echo:
        s_memrealtime s[30:31]
        s_waitcnt lgkmcnt(0)
        s_sub_u32 s29, s30, s84
        s_cmp_lt_u32 s29, s28
        s_cbranch_scc1 k_echo
        """)
    r = L(f"""
    s_waitcnt vmcnt(0)
    s_memrealtime s[100:101]
    s_waitcnt lgkmcnt(0)
    s_lshl_b32 s28, s2, 2
    s_add_u32 s28, s28, s20
    s_lshl_b32 s28, s28, 6
    s_add_u32 s28, s28, {TS}
    v_mov_b32 v1, s28
    """)
    for i in range(9): r += [f"  v_mov_b32 v3, s{84+2*i}", f"  global_store_dword v1, v3, s[26:27] offset:{4*i if i < 8 else 48}"]
    r += ["  v_mov_b32 v3, s22", "  global_store_dword v1, v3, s[26:27] offset:60"]
    r += ["  s_getreg_b32 s28, hwreg(HW_REG_XCC_ID)", "  s_and_b32 s28, s28, 15", "  v_mov_b32 v3, s28", "  global_store_dword v1, v3, s[26:27] offset:56"]
    return r
def vr(b, n=4): return f"v[{b}:{b+n-1}]" if n > 1 else f"v{b}"
def ar(b, n=4): return f"a[{b}:{b+n-1}]" if n > 1 else f"a{b}"
def srd(d, lo, nbytes):
    return L(f"s_mov_b32 s{d}, s{lo}\ns_and_b32 s{d+1}, s{lo+1}, 0xffff\ns_mov_b32 s{d+2}, {nbytes}\ns_mov_b32 s{d+3}, 0x20000")
def isvm(x): return x.strip().startswith(("buffer_", "global_"))
def islg(x): return x.strip().startswith("ds_")
def tag(lines, t): return [x + f" ;#{t}" if (isvm(x) or islg(x)) else x for x in lines]
def W(vm=(), lg=()):
    vm = [vm] if isinstance(vm, str) else list(vm); lg = [lg] if isinstance(lg, str) else list(lg)
    return [f"  ;WAIT vm={','.join(vm)} lg={','.join(lg)}"]
def resolve(lines):
    out = []; vm = []; lg = []
    for x in lines:
        t = x.strip()
        if t.startswith(";MARK"):
            nm = t.split()[1]; vm.append(("m", nm)); lg.append(("m", nm)); continue
        if t.startswith(";WAIT"):
            m = re.match(r";WAIT vm=(\S*) lg=(\S*)", t); parts = []
            for names, hist, cn, mx in ((m.group(1), vm, "vmcnt", 63), (m.group(2), lg, "lgkmcnt", 15)):
                if not names: continue
                names = names.split(",")
                if names == ["*"]: parts.append(f"{cn}(0)"); continue
                idx = [i for i, h in enumerate(hist) if h[1] in names]
                for nme in names: assert any(h[1] == nme for h in hist), ("unknown tag", nme)
                n = sum(1 for h in hist[max(idx)+1:] if h[0] == "o")
                parts.append(f"{cn}({min(n, mx)})")
            out.append("  s_waitcnt " + " ".join(parts)); continue
        tg = re.search(r";#(\S+)", t); nm = tg.group(1) if tg else None
        kind = "n" if ";nocount" in t else "o"
        if isvm(x): vm.append((kind, nm))
        elif islg(x): lg.append((kind, nm))
        out.append(x)
    return out
def glue(lines):
    out = []; cur = []
    for x in lines:
        t = x.strip()
        if cur and not t.startswith(("s_cselect", "s_addc", "s_cbranch", "s_mov_b32")) and not t.endswith(":"):
            out.append(cur); cur = []
        if t.startswith(("s_cmp", "s_bitcmp")) or cur or (t.startswith("s_add_u32") and ";C" in t): cur.append(x)
        else: out.append([x])
    if cur: out.append(cur)
    return out
def place(M, lists):
    gaps = [[] for _ in M]
    for items, g0, g1 in lists:
        if not items: continue
        items = glue(items); n = g1 - g0 + 1
        for k, x in enumerate(items): gaps[g0 + k*n//len(items)] += x
    out = []
    for m, g in zip(M, gaps): out += [m] + g
    return out
def inter(main, groups, first=0):
    main = glue(main); out = []; n = len(main); G = len(groups); gi = 0
    for i, x in enumerate(main):
        while gi < G and i >= first + gi*(n - first)//G: out += groups[gi]; gi += 1
        out += x
    while gi < G: out += groups[gi]; gi += 1
    return out
def grp(lines, k):
    out = []; cur = []
    for x in lines:
        if isvm(x) and sum(map(isvm, cur)) == k:
            tail = []
            while cur and not isvm(cur[-1]): tail.insert(0, cur.pop())
            out.append(cur); cur = tail
        cur.append(x)
    if cur: out.append(cur)
    return out
OUTL = A()
def check(tg, vaddr, vdst, lead=False):
    if lead: a = L(f"v_cmp_ne_u32 vcc, s39, v{vdst}\ns_nop 1\ns_and_b64 vcc, vcc, s[56:57]\ns_cbranch_scc1 {tg}_slow\n{tg}_ok:\ns_barrier")
    else: a = L(f"v_cmp_ne_u32 vcc, s39, v{vdst}\ns_nop 1\ns_cmp_lg_u64 vcc, 0\ns_cbranch_scc1 {tg}_slow\n{tg}_ok:")
    OUTL(f"""
    {tg}_slow:
    s_mov_b32 s38, {OPT['spin']}
    {tg}_again:
    s_sleep {OPT.get('sleep', 4)}
    buffer_load_dword v{vdst}, v{vaddr}, s[16:19], 0 offen sc1
    s_sub_u32 s38, s38, 1
    s_cmp_eq_u32 s38, 0
    s_cbranch_scc1 {tg}_ok
    s_waitcnt vmcnt(0)
    v_cmp_ne_u32 vcc, s39, v{vdst}
    s_nop 1
    s_cmp_lg_u64 vcc, 0
    s_cbranch_scc1 {tg}_again
    s_branch {tg}_ok
    """)
    return a
def poll(vaddr, vdst, t, so="0"): return [f"  buffer_load_dword v{vdst}, v{vaddr}, s[16:19], {so} offen sc1 ;#{t}"]
def flag(soff, r=None):
    d, o = (3, 6) if r is None else (r, r + 1)
    return L(f"v_mov_b32 v{d}, s39\nv_lshlrev_b32 v{o}, 25, v7\nbuffer_store_dword v{d}, v{o}, s[16:19], {soff} offen sc1")

ACC = 8; CS = 128; AB = [148, 172]; BB = [196, 216]; VX = 236; VW = 242; LA = 247; LB = 249; VF = 255
L2B = CS
ONES = 240
def acc(T, t): return ACC + (T*5 + t)*4
def g1_mfma(buf, tr, first):
    M = []
    for T in range(6):
        for t in (range(5) if T % 2 == 0 else range(4, -1, -1)):
            x = vr(AB[buf] + 4*T); w = vr(BB[buf] + 4*t); d = vr(acc(T, t))
            p, q = (w, x) if tr else (x, w)
            M.append(f"  v_mfma_f32_16x16x32_bf16 {d}, {p}, {q}, {'0' if first else d}")
    return M
def g1_cs(buf):
    return [f"  v_mfma_f32_16x16x32_bf16 {vr(CS+4*t)}, {ar(ONES)}, {vr(BB[buf]+4*t)}, {'0' if buf == 0 else vr(CS+4*t)}" for t in range(5)]
def g1_reads(k):
    buf = k & 1; st = (k//2) % 3
    la, lb, so = (LA, LB, st*STAGE) if st < 2 else (L2B, L2B + 2, 0)
    R = []
    def b(t):
        u2, h2 = (64, 1280) if OPT["wrow"] else (1024, 256)
        base = lb + (2 if t == 4 else (t & 1)); off = so + buf*10240 + (u2 if t in (2, 3) else 0)
        return [f"  ds_read_b64_tr_b16 {vr(BB[buf]+4*t,2)}, v{base} offset:{off}",
                f"  ds_read_b64_tr_b16 {vr(BB[buf]+4*t+2,2)}, v{base} offset:{off+h2}"]
    def x(T): return [f"  ds_read_b128 {vr(AB[buf]+4*T)}, v{la+buf} offset:{so+T*2048}"]
    R += x(0)
    for t in range(5): R += b(t)
    for T in range(1, 6): R += x(T)
    return tag(R, f"r{k}")
def dma_x(c):
    so = (c % 3)*STAGE; Dm = []
    for j in range(6):
        if j in (0, 4): Dm.append(f"  s_add_u32 m0, s40, {so + 1024*j}")
        Dm.append(f"  buffer_load_dwordx4 v{VX+j}, s[8:11], s42 offen offset:{1024*(j%4)} lds")
    return tag(Dm, f"c{c}")
def dma_w(c):
    so = (c % 3)*STAGE; Dm = []
    for j in range(5):
        if OPT["wrow"]:
            if j in (0, 4): Dm.append(f"  s_add_u32 m0, s41, {so + 1024*j}")
            Dm.append(f"  buffer_load_dwordx4 v{VW+j}, s[12:15], s43 offen offset:{1024*(j%4)}{' nt' if (c == 0 and OPT.get('wnt')) else ''} lds")
            continue
        Dm.append(f"  s_add_u32 m0, s41, {so + 1024*j}")
        Dm.append(f"  buffer_load_dwordx4 v{VW+j}, s[12:15], s43 offen lds")
    return tag(Dm, f"c{c}")
def dma_next(c):
    if OPT["krot"]:
        first = "s_mov_b32 s44, s67" if c == 1 else "s_add_u32 s44, s44, 1\ns_cmp_eq_u32 s44, 10\ns_cselect_b32 s44, 0, s44"
        return L(first + f"""
        s_cmp_eq_u32 s44, s54
        s_addc_u32 s44, s44, 0
        s_cmp_eq_u32 s44, 10
        s_cselect_b32 s44, 0, s44
        s_lshl_b32 s42, s44, 7
        s_mul_i32 s43, s44, s45""")
    return L(f"s_cmp_le_u32 s54, {c-1}\ns_cselect_b32 s44, {c}, {c-1}\ns_lshl_b32 s42, s44, 7\ns_mul_i32 s43, s44, s45")
def breg(s, t): return ar(s*20 + 4*t)
def bstream(i0, n):
    out = []
    for i in range(i0, i0 + n):
        s, t = divmod(i, 5)
        if t == 0 or i == i0:
            out.append(f"  s_add_u32 s68, s46, {8*16384*s}")
            if s == 6: out += L(f"s_cmp_lt_u32 s20, 3\ns_cselect_b32 s68, s68, {OOB}")
        if t < 4: out.append(f"  buffer_load_dwordx4 {breg(s,t)}, v4, s[16:19], s68 offen offset:{1024*t} sc1 ;#B{s}")
        else: out.append(f"  buffer_load_dwordx4 {breg(s,t)}, v5, s[16:19], s68 offen sc1 ;#B{s}")
    return out
class Stream:
    def __init__(self, items): self.items = list(items)
    def take(self, n):
        it, self.items = self.items[:n], self.items[n:]
        assert len(it) == n
        out = []; k = 0
        while k < len(it):
            j = k
            while j + 1 < len(it) and it[j+1] == (it[j][0], it[j][1] + 1): j += 1
            out += (bstream if it[k][0] == "B" else wo_dma)(it[k][1], j - k + 1); k = j + 1
        return out
def wo_dma(i0, n):
    out = []
    for i in range(i0, i0 + n):
        j, t = divmod(i, 5)
        if t in (0, 4) or i == i0: out += [f"  s_add_u32 m0, s69, {20480*j + (4096 if t == 4 else 0)}", f"  s_add_u32 s71, s70, {65536*j}"]
        out.append(f"  buffer_load_dwordx4 v{4 if t < 4 else 5}, s[16:19], s71 offen offset:{1024*(t%4)} sc1 lds ;#wo{j}")
    return out
PRODS = [(0,3),(0,4),(1,3),(1,4),(1,5),(2,3),(2,4),(2,5)]
KVOF = [240, 241, 242, 243, 244, 245, 246, 255]

def setup_s():
    return L(f"""
    s_cmp_lt_u32 s22, 12
    s_cselect_b32 s83, {LOG2E}, {LOG2E | 0x80000000}
    s_mul_i32 s76, s21, 3
    s_add_u32 s76, s76, s51
    s_add_u32 s77, s76, 1
    """) + blk(80, 76, "h", 28, 29) + blk(81, 77, "h", 28, 29) + blk(78, 76, "q", 28, 29) + blk(79, 77, "q", 28, 29) + L(f"""
    s_cmp_lt_u32 s22, 12
    s_cselect_b32 s80, s78, s80
    s_cselect_b32 s81, s79, s81
    s_cmp_ge_u32 s76, 32
    s_cselect_b32 s80, {OOB}, s80
    s_cmp_ge_u32 s77, 32
    s_cselect_b32 s81, {OOB}, s81
    s_lshl_b32 s28, s51, 11
    s_add_u32 s82, s81, s28              ; row tile 4
    s_add_u32 s29, s80, 2048
    s_add_u32 s80, s80, s28              ; row tile 0
    s_cmp_eq_u32 s51, 0
    s_cselect_b32 s81, s29, s81          ; row tile 2
    s_mul_i32 s61, s23, 5
    s_mul_i32 s28, s52, 3
    s_add_u32 s62, s61, s28
    s_add_u32 s63, s62, 1
    s_add_u32 s61, s61, 2
    s_lshl_b32 s28, s23, 1
    s_add_u32 s28, s28, s52
    s_add_u32 s29, s28, 22
    s_add_u32 s30, s23, 43
    s_cmp_lt_u32 s22, 12
    s_cselect_b32 s62, s62, s28
    s_cselect_b32 s63, s63, s29
    s_cselect_b32 s61, s61, s30
    s_cselect_b32 s75, {OOB}, {FPD}
    s_cmp_eq_u32 s63, 43
    s_cselect_b32 s63, {OOB >> 13}, s63
    """) + cell(62, 62, 28) + cell(63, 63, 28) + cell(61, 61, 28) + L(f"""
    s_lshl_b32 s28, s52, 9
    s_add_u32 s61, s61, s28
    s_add_u32 s75, s75, s67
    """)
def setup_t():
    return L(f"""
    v_add_u32 v{VX}, s62, v4
    v_add_u32 v{VX+1}, s63, v4
    v_and_b32 v3, 1, v2
    v_lshlrev_b32 v3, 10, v3
    v_lshrrev_b32 v254, 1, v2
    v_lshl_add_u32 v3, v254, 8, v3
    v_lshl_add_u32 v3, v1, 4, v3
    v_add_u32 v{VX+2}, s61, v3
    v_mov_b32 v{VX+4}, 0x358637bd
    v_mov_b32 v{VX+5}, 0x358637bd
    """)
def setup_n0():
    a = A()
    a(f"""
    v_and_b32 v1, 15, v7
    v_lshrrev_b32 v2, 4, v7
    v_cmp_gt_u32 s[32:33], 8, v1
    s_cmp_eq_u32 s21, 10
    s_cselect_b32 s36, s51, 0
    s_lshl_b32 s37, s22, 1
    s_add_u32 s37, s37, s52
    s_lshl_b32 s37, s37, 12
    s_add_u32 s37, s37, {KVP}
    s_lshl_b32 s60, s20, 12
    s_add_u32 s60, s60, {KVX}
    v_and_b32 v254, 31, v7
    v_add_u32 v254, 224, v254
    """)
    for n, (kx, vy) in enumerate(PRODS):
        eoff = {3: -8, 4: 8, 5: 24}[vy]; o = 252
        a(f"""
        v_add_u32 v3, {4*kx}, v2
        v_cmp_le_u32 vcc, 5, v3
        v_add_u32 v{o}, {eoff}, v1
        v_cmp_gt_u32 s[62:63], 10, v3
        v_cndmask_b32 v253, 0, 20, vcc
        v_sub_u32 v{o}, v{o}, v253
        """)
        if vy == 3: a(f"v_cmp_eq_u32 vcc, 0, v1\nv_cndmask_b32 v253, v{o}, 0, vcc\nv_cndmask_b32 v{o}, v{o}, 20, vcc\nv_cmp_gt_u32 vcc, 20, v253")
        else: a(f"v_cmp_gt_u32 vcc, 20, v{o}")
        a(f"""
        v_mad_u32_u24 v{o}, v3, 21, v{o}
        s_and_b64 vcc, vcc, s[62:63]
        v_cndmask_b32 v{o}, v254, v{o}, vcc
        v_lshl_add_u32 v{o}, v{o}, 4, s60
        v_accvgpr_write_b32 a{244+n}, v{o}
        """)
    return list(a)
def setup_n():
    return L(f"s_mov_b32 s30, {LOG2E}\ns_mov_b32 s31, {LOG2E}") + [f"  v_accvgpr_read_b32 v{KVOF[n]}, a{244+n}" for n in range(8)]

def g1_main(tg, tr, st):
    a = A()
    pf = OPT["pf_t"] if tr else OPT["pf_n"]
    a += W("c0"); a("s_barrier"); a += stamp("k0")
    a += g1_reads(0) + W(lg="r0")
    mv = OPT["keep"]
    d0 = [] if mv >= 1 else ((d_pack_src() if tr else []) + d_cs())
    a += place(g1_mfma(0, tr, True) + g1_cs(0), [(g1_reads(1), 0, 17), (dma_x(2) + dma_w(2), 0, 33), (d0, 4, 34)])
    def spread(items, ks):
        g = glue(items); return {k: sum(g[i*len(g)//len(ks):(i+1)*len(g)//len(ks)], []) for i, k in enumerate(ks)}
    if tr:
        dfr = spread(d_misc() + setup_s(), [4, 5, 6, 7, 8, 9, 10, 11, 12])
        if mv < 2: dfr[2] = d_pack_dst()
    else: dfr = spread(d_misc(), [2, 3, 4])
    a += W(lg="r1")
    a += g1_cs(1)
    PKD, PKR, PKS = (OPT["pkd"], OPT["pkr"], OPT["pks"]) if tr else (None, None, {})
    pk_d = []
    for i in range(5):
        pk_d += [f"  s_add_u32 m0, s53, {896*i}", f"  buffer_load_dwordx4 v252, s[56:59], s55 offen offset:{128*i} nt lds ;#pk"]
    pk_r = []
    for t in range(5):
        if t: pk_r += L(f"s_cmp_eq_u32 s20, {4-t}\ns_cselect_b32 s28, 896, 0\nv_add_u32 v1, s28, v1\nv_add_u32 v2, s28, v2")
        pk_r += [f"  ds_read_b64_tr_b16 {ar(16+4*t,2)}, v1 offset:{32*t}", f"  ds_read_b64_tr_b16 {ar(18+4*t,2)}, v2 offset:{32*t}"]
    pk_s = [f"  buffer_store_dwordx4 {ar(16+4*t)}, v{4 if t < 4 else 5}, s[16:19], s{60 if c == 0 else 53} offen offset:{1024*(t%4)} sc1 ;#ps" for t in range(5) for c in range(2 if OPT["mode"] == "dup" else 1)]
    pk_r.append("  s_add_u32 s53, s60, 8192")
    cs_st = L(f"""
    v_cmp_le_u32 vcc, 16, v7
    v_cmp_le_u32 s[28:29], 32, v7
    v_cmp_le_u32 s[30:31], 48, v7
    v_cndmask_b32 v{CS+17}, v{CS}, v{CS+4}, vcc
    v_cndmask_b32 v{CS+17}, v{CS+17}, v{CS+8}, s[28:29]
    v_cndmask_b32 v{CS+17}, v{CS+17}, v{CS+12}, s[30:31]
    buffer_store_dword v{CS+17}, v253, s[16:19], s64 offen sc1 ;#cs
    buffer_store_dword v{CS+16}, v254, s[16:19], s64 offen sc1 ;#cs
    """) + [f"  v_add_u32 v{L2B+i}, {2*STAGE}, v{LA+i}" for i in range(5)]
    auxa = L(f"""
    v_lshlrev_b32 v3, 4, v0
    v_add_u32 v252, s74, v3
    v_add_u32 v253, 4096, v252
    v_cmp_le_u32 vcc, 144, v0
    v_add_u32 v3, s65, v3
    v_cmp_le_u32 s[28:29], s66, v0
    v_cndmask_b32 v253, v253, v3, vcc
    v_add_u32 v3, {RSTD - NEGM - 768}, v3
    v_cmp_le_u32 vcc, 240, v0
    v_cndmask_b32 v253, v253, v3, s[28:29]
    v_mov_b32 v3, {OOB}
    v_cndmask_b32 v253, v253, v3, vcc
    v_and_b32 v1, 15, v7
    v_lshrrev_b32 v2, 4, v7
    """)
    polx = [f"  s_xor_b32 s{r}, s{r}, s3" for r in ((46, 70, 80, 81, 82) if OPT["mode"] == "dup" else (80, 81, 82))]
    aux = L(f"""
    s_mov_b32 m0, s72
    s_nop 0
    buffer_load_dwordx4 v252, s[16:19], 0 offen sc1 lds ;#aux
    s_add_u32 m0, s72, 4096
    s_nop 0
    buffer_load_dwordx4 v253, s[16:19], 0 offen sc1 lds ;#aux
    """) + flag("s73")
    y1 = L(f"v_lshlrev_b32 v252, 2, v0\nv_add_u32 v252, {AUXC}, v252") + tag([f"  ds_read_b32 v{CS+i}, v252 offset:{640*i}" for i in range(10)], "y1")
    y2 = [f"  v_add_f32 v{CS}, v{CS}, v{CS+i}" for i in range(1, 10)] + [f"  ds_write_b32 v252, v{CS} offset:{CSL-AUXC} ;#y2"]
    rd = L("s_mul_i32 s28, s51, 384\ns_add_u32 s28, s28, %d" % AUXM)
    if tr:
        rd += L(f"v_lshlrev_b32 v6, 4, v2\nv_add_u32 v252, s34, v6\nv_add_u32 v253, s35, v6\nv_lshl_add_u32 v3, v1, 2, s28")
        rd += [f"  ds_read_b128 {vr(CS+4*t)}, v252 offset:{64*t}" for t in range(4)] + [f"  ds_read_b128 {vr(CS+16)}, v253"]
        for T in range(6): rd += [f"  ds_read_b32 v{AB[0]+4*T}, v3 offset:{64*T}", f"  ds_read_b32 v{AB[0]+4*T+1}, v3 offset:{768+64*T}"]
    else:
        rd += L(f"v_lshlrev_b32 v6, 2, v1\nv_add_u32 v252, s34, v6\nv_lshl_add_u32 v3, v2, 4, s28")
        rd += [f"  ds_read_b32 v{CS+4*t}, v252 offset:{64*t}" for t in range(5)]
        for T in range(6): rd += [f"  ds_read_b128 {vr(AB[0]+4*T)}, v3 offset:{64*T}"]
        for T in range(5): rd += [f"  ds_read_b128 {vr(BB[0]+4*T)}, v3 offset:{768+64*T}"]
        rd += [f"  ds_read_b128 {vr(VX)}, v3 offset:{768+64*5}"]
    su = setup_t() if tr else setup_n()
    e0 = glue(setup_n0()); early = {} if tr else {6 + i: sum(e0[i*len(e0)//6:(i+1)*len(e0)//6], []) for i in range(6)}
    nb = 0; fb, pb = (OPT["flagb"] if tr else OPT["flagb_n"]), OPT["pollb"]; nps = 0
    for k in range(1, 20):
        c = (k - 1)//2
        M = g1_mfma(k & 1, tr, False)
        ls = []
        if k & 1:
            if c == pb and tr: a("k_t_join:")
            if k > 1: a += W(lg=[f"r{k}"] + (["y2"] if k == 19 else []) + (["pr"] if k - 1 == PKR else []))
            a.append(M.pop(0))
            vm = [f"c{c+1}"] if c < 9 else []
            if c == fb: vm += ["cs", "ss"] + (["ps"] if tr else [])
            if k == PKR: vm += ["pk"]
            if c == pb + 1: vm += ["pa"]
            if c == 8: vm += ["aux"]
            if vm: a += W(vm)
            if c == pb + 1: a += check(tg + "_sa", 6, VF)
            a("s_barrier")
            if c == 0: a += stamp("b0")
            if c == 7: a += stamp("tail")
            a += stamp(f"b{c}") if c > 0 else []
            if c == fb: ls.append((flag("s49"), 0, 2))
            if c == pb: ls.append((L(f"v_lshlrev_b32 v6, {OPT['fash']}, v0\nv_add_u32 v6, {FA}, v6") + poll(6, VF, "pa"), 0, 2))
            if OPT["pol"] != "race":
                if c == pb + 1: ls.append((polx, 0, 2))
            else:
                assert OPT["mode"] == "rows"
                if c == 7: ls.append((L(f"v_mov_b32 v{CS+18}, {PW}\nbuffer_load_dword v{CS+19}, v{CS+18}, s[16:19], 0 offen sc1 ;#aux"), 0, 1))
                if c == 8: ls.append((L(f"v_readfirstlane_b32 s3, v{CS+19}\ns_and_b32 s3, s3, 8192") + polx, 22, 28))
            if c == 7: ls.append(([x for x in aux], 0, 2))
            dx, dw = (dma_next(c+3) + dma_x(c+3), dma_w(c+3)) if c + 3 <= 9 else ([], [])
            if k == PKD: ls += [(pk_d, 0, 9), (dx[:-4], 14, 28)]
            else: ls.append((dx, 1, 27))
            if k == PKR: ls.append((tag(pk_r, "pr"), 10, 26))
            if c == 0: ls.append((cs_st, 12, 27))
            if c == 8: ls.append((y1, 8, 22))
        else:
            a += W(lg=[f"r{k}"] + (["y1"] if c == 8 else []) + (["pr"] if k - 1 == PKR else []))
            if k - 1 == PKD: ls.append((dx[-4:] + dw, 0, 28))
            else: ls.append((dw, 1, 27))
            if c == 6: ls.append((auxa, 17, 28))
            if c == 8: ls.append((y2, 0, 12))
        if PKS.get(k): ls.append((pk_s[nps:nps+PKS[k]], 2, 28 if nps + PKS[k] < len(pk_s) else 18)); nps += PKS[k]
        if k < 19: ls.insert(0, (g1_reads(k+1), 1 if k & 1 else 0, 17))
        else: ls.insert(0, (rd, 0, 22))
        if k == 16: ls.append((su, 18, 28))
        if k in early: ls.append((early[k], 4, 28))
        if k in dfr: ls.append((dfr[k], 0 if k == 2 else 6, 28))
        if k == OPT["cpf2"]:
            ls.append((L(f"v_add_u32 v{CS+8}, s50, v4\nv_min_u32 v{CS+8}, CODE_MAX, v{CS+8}\ns_cmp_gt_u32 s50, CODE_MAX\ns_cbranch_scc1 {tg}_c2\nglobal_load_dwordx4 {vr(CS+12)}, v{CS+8}, s[0:1] ;nocount\n{tg}_c2:"), 29 - (k & 1), 29 - (k & 1)))
        if pf.get(k):
            assert c > pb
            assert all(x[0] == "B" for x in st.items[:pf[k]])
            ls.append((st.take(pf[k]), 3, 28))
        a += place(M, ls)
    a += stamp("lend")
    return a

def stats_math():
    a = A(); src = 8; tmp = 20; ac = 44
    for i in range(12):
        a(f"v_lshlrev_b32 v{tmp+2*i}, 16, v{src+i}\nv_and_b32 v{tmp+2*i+1}, 0xffff0000, v{src+i}")
    a(f"v_pk_add_f32 {vr(ac,2)}, {vr(tmp,2)}, {vr(tmp+2,2)}")
    for i in range(2, 12): a(f"v_pk_add_f32 {vr(ac,2)}, {vr(ac,2)}, {vr(tmp+2*i,2)}")
    def red():
        a(f"v_add_f32 v{ac}, v{ac}, v{ac+1}")
        for r in (8, 4, 2, 1): a(f"v_add_f32_dpp v{ac}, v{ac}, v{ac} row_ror:{r} row_mask:0xf bank_mask:0xf")
        a(f"v_mov_b32 v{ac+1}, v{ac}\nv_permlane16_swap_b32 v{ac}, v{ac+1}\nv_add_f32 v{ac}, v{ac}, v{ac+1}")
    red()
    a(f"v_mul_f32 v46, 0xbacccccd, v{ac}")
    a(f"v_cndmask_b32 v47, 0, v46, s[32:33]")
    for i in range(8): a(f"v_pk_add_f32 {vr(tmp+2*i,2)}, {vr(tmp+2*i,2)}, v[46:47] op_sel_hi:[1,0]")
    for i in range(8, 12): a(f"v_pk_add_f32 {vr(tmp+2*i,2)}, {vr(tmp+2*i,2)}, v[46:47] op_sel:[0,1] op_sel_hi:[1,1]")
    a(f"v_pk_mul_f32 {vr(ac,2)}, {vr(tmp,2)}, {vr(tmp,2)}")
    for i in range(1, 12): a(f"v_pk_fma_f32 {vr(ac,2)}, {vr(tmp+2*i,2)}, {vr(tmp+2*i,2)}, {vr(ac,2)}")
    red()
    a(f"""
    v_mov_b32 v{ac+1}, 0x3727c5ac
    v_fmac_f32 v{ac+1}, 0x3acccccd, v{ac}
    v_rsq_f32 v{ac+1}, v{ac+1}
    v_and_b32 v48, 31, v7
    v_cmp_eq_u32 vcc, 0, v48
    v_lshrrev_b32 v49, 5, v7
    v_lshlrev_b32 v49, 2, v49
    v_cndmask_b32 v46, v{ac+1}, v46, vcc
    v_lshl_add_u32 v49, v48, 13, v49
    v_cmp_gt_u32 vcc, 2, v48
    v_mov_b32 v50, {OOB}
    s_lshl_b32 s28, s48, 3
    s_add_u32 s28, s28, {NEGM}
    v_cndmask_b32 v49, v50, v49, vcc
    buffer_store_dword v46, v49, s[16:19], s28 offen sc1 ;#ss
    s_lshl_b32 s28, s2, 8
    s_add_u32 s28, s28, {KVP}
    s_cmp_eq_u32 s20, 1
    s_cselect_b32 s28, s28, {OOB}
    v_lshlrev_b32 v49, 2, v7
    v_mov_b32 v50, 0
    buffer_store_dword v50, v49, s[16:19], s28 offen sc1 ;#ss
    """)
    return list(a)

def prologue():
    a = A()
    a += stamp("entry")
    a(f"""
    s_load_dwordx16 s[60:75], s[0:1], 0
    s_load_dwordx2 s[26:27], s[0:1], 64
    s_cmp_ge_u32 s2, 256
    s_cbranch_scc1 k_end
    s_and_b32 s3, s2, 7
    s_lshl_b32 s3, s3, 5
    s_lshr_b32 s21, s2, 3
    s_add_u32 s3, s3, s21                ; lin
    s_mul_i32 s35, {"s3" if OPT["slin"] else "s2"}, 10240
    v_lshrrev_b32 v1, 5, v0
    v_mul_u32_u24 v1, {1280-512}, v1
    v_lshl_add_u32 v52, v0, 4, v1
    v_and_b32 v1, 16, v0
    v_lshl_add_u32 v53, v1, 26, v52      ; lanes whose third piece is past the row: out of range
    s_mov_b32 s10, {S*D*2}
    s_mov_b32 s11, 0x20000
    """)
    ld = L("s_waitcnt lgkmcnt(0)\ns_mov_b32 s8, s60\ns_and_b32 s9, s61, 0xffff") + stamp("karg")
    for j in range(3): ld.append(f"  buffer_load_dwordx4 {vr(8+4*j)}, v{53 if j == 2 else 52}, s[8:11], s35 offen offset:{512*j} ;#sl")
    if OPT["head"] == 0: a += ld
    a(f"""
    s_getpc_b64 s[36:37]
    v_cmp_eq_u32 s[32:33], 0, v1
    v_lshrrev_b32 v1, 6, v0
    v_and_b32 v7, 63, v0                 ; lane
    v_readfirstlane_b32 s20, v1          ; wave
    s_cmp_lt_u32 s3, 138
    s_cselect_b32 s28, 0, 138
    s_cselect_b32 s29, 10923, 13108
    s_cselect_b32 s30, 6, 5
    s_cselect_b32 s31, 0, 6
    s_sub_u32 s28, s3, s28
    s_mul_i32 s22, s28, s29
    s_lshr_b32 s22, s22, 16
    s_mul_i32 s30, s22, s30
    s_sub_u32 s21, s28, s30
    s_add_u32 s21, s21, s31              ; rb
    s_cmp_ge_u32 s3, 253
    s_cselect_b32 s21, 11, s21
    s_min_u32 s54, s21, 9                ; start chunk
    """)
    xa = A()
    xa(f"""
    s_lshl_b32 s28, s21, 2
    s_add_u32 s28, s28, s20
    s_mul_i32 s28, s28, {48*1280}
    v_lshrrev_b32 v1, 3, v7              ; r8
    v_lshrrev_b32 v2, 1, v1
    v_and_b32 v3, 7, v7
    v_xor_b32 v2, v2, v3
    v_mul_u32_u24 v1, 1280, v1
    v_lshl_add_u32 v252, v3, 4, v1
    v_add_u32 v1, s28, v1
    v_lshl_add_u32 v{VX}, v2, 4, v1
    v_xor_b32 v2, 4, v2
    v_lshl_add_u32 v6, v2, 4, v1
    """)
    for j in range(1, 6): xa(f"v_add_u32 v{VX+j}, {j*10240 - 1024*(j%4)}, v{6 if j & 1 else VX}")
    xa("s_mul_i32 s40, s20, 6144\ns_lshl_b32 s42, s54, 7")
    wa = A()
    wa(f"""
    s_sub_u32 s28, 22, s22
    s_cmp_lt_u32 s3, 138
    s_cselect_b32 s22, s22, s28
    s_mul_i32 s28, s22, 43
    s_lshr_b32 s28, s28, 8               ; g = p/6
    s_mul_i32 s29, s28, 6
    s_sub_u32 s29, s22, s29              ; r
    s_mul_i32 s30, s28, 3
    s_add_u32 s30, s30, s29
    s_add_u32 s30, s30, 9                ; w1: 12+3g+r-3
    s_lshl_b32 s31, s28, 1
    s_add_u32 s31, s31, s29
    s_sub_u32 s31, s31, 1                ; kv: 2g+r-1
    s_add_u32 s28, s28, 8                ; q
    s_cmp_lt_u32 s29, 3
    s_cselect_b32 s22, s31, s30
    s_cmp_eq_u32 s29, 0
    s_cselect_b32 s22, s28, s22
    s_cmp_ge_u32 s3, 253
    s_cselect_b32 s22, 12, s22
    s_cmp_lt_u32 s22, 12
    s_cselect_b32 s12, s62, s68
    s_cselect_b32 s13, s63, s69
    s_cselect_b32 s14, {D*3*D*2}, {D*F*2}
    s_cselect_b32 s50, 3840, 3456        ; W row stride
    s_cselect_b32 s28, 8, 12
    s_and_b32 s13, s13, 0xffff
    s_mov_b32 s15, 0x20000
    s_lshl_b32 s45, s50, 6
    s_sub_u32 s23, s22, s28
    s_mul_i32 s29, s23, 320
    s_mul_i32 s30, s22, 160
    s_add_u32 s30, s30, 1280
    s_cmp_lt_u32 s22, 8
    s_cselect_b32 s29, s30, s29
    s_cselect_b32 s30, 1200, 0
    s_cselect_b32 s31, -80, 0
    s_lshl_b32 s28, s20, 4
    s_mul_i32 s28, s28, s50
    s_add_u32 s29, s29, s28
    s_mul_i32 s41, s20, 5120
    s_add_u32 s41, s41, {WOFF}
    s_mul_i32 s43, s54, s45
    s_movk_i32 s28, -20
    v_xor_b32 v54, 2, v7                 ; rows 8..15 swap adjacent 32-byte units
    v_lshrrev_b32 v55, 4, v7
    v_and_b32 v55, 2, v55
    v_xor_b32 v55, v55, v7
    """)
    dw = grp(dma_w(0), 1); wj = []
    for jj in range(5):
        src = 7 if jj < 2 else 55 if jj == 2 else 54
        b = A()
        if jj: b(f"v_add_u32 v1, {64*jj}, v{src}")
        q = 1 if jj else 7
        b(f"""
        v_mul_u32_u24 v2, 3277, v{q}
        v_lshrrev_b32 v2, 16, v2
        v_mad_i32_i24 v3, v2, s28, v{q}
        v_mul_u32_u24 v2, s50, v2
        v_lshl_add_u32 v2, v3, 4, v2
        v_mul_u32_u24 v3, 205, v3
        v_bfe_u32 v1, v3, 10, 1
        v_lshrrev_b32 v3, 11, v3
        v_mad_u32_u24 v2, v1, s30, v2
        v_mad_i32_i24 v2, v3, s31, v2
        v_add_u32 v{VW+jj}, s29, v2
        """)
        if jj < 3: b("s_sub_u32 s29, s29, 1024")
        if jj == 3: b("s_add_u32 s29, s29, 3072")
        wj.append(list(b))
    if OPT["wfirst"]:
        a += wa
        for jj in range(5): a += wj[jj] + dw[jj]
        a += stamp("w0i") + xa
        first = grp(dma_x(0), 1)
    else:
        if OPT["head"] == 0: a += xa + dma_x(0) + wa + sum(wj, [])
        elif OPT["head"] == 1: a += xa + ld + dma_x(0) + wa + sum(wj, [])
        elif OPT["head"] == 2: a += wa[:20] + ld + xa + dma_x(0) + wa[20:] + sum(wj, [])
        elif OPT["head"] == 3: a += xa + ld[:3] + wa + sum(wj, []) + ld[3:] + dma_x(0)
        first = dw
    a(f"""
    s_load_dword s39, s[26:27], 0
    v_lshlrev_b32 v4, 4, v7
    s_lshl_b32 s48, {"s3" if OPT["slin"] else "s2"}, 2
    s_add_u32 s48, s48, s20              ; stats job
    s_and_b32 s36, s36, 0xffffff00
    s_lshr_b32 s28, s2, 3
    s_lshl_b32 s29, s20, 5
    s_add_u32 s28, s28, s29
    s_add_u32 s28, s28, 2
    s_mov_b64 s[0:1], s[36:37]
    s_lshl_b32 s50, s28, 10
    s_cmp_ge_u32 s28, CODE_KB
    s_cbranch_scc1 k_nocp
    v_add_u32 v1, s50, v4
    v_min_u32 v1, CODE_MAX, v1
    global_load_dwordx4 v[128:131], v1, s[0:1] ;nocount
    k_nocp:
    """)
    su = A()
    su += srd(16, 26, WS_USED)
    su(f"""
    s_lshr_b32 s51, s20, 1               ; wr
    s_and_b32 s52, s20, 1                ; wc
    v_lshrrev_b32 v59, 4, v7             ; g
    v_bfe_u32 v56, v7, 2, 2              ; rr
    v_and_b32 v57, 3, v7                 ; c4
    v_and_b32 v58, 1, v59                ; g&1
    v_and_b32 v3, 15, v7                 ; m
    v_lshrrev_b32 v6, 1, v3
    v_xor_b32 v6, v6, v59
    s_mul_i32 s28, s51, 12288
    v_lshl_add_u32 v55, v3, 7, s28
    v_lshl_add_u32 v{LA}, v6, 4, v55
    v_xor_b32 v6, 4, v6
    v_lshl_add_u32 v{LA+1}, v6, 4, v55
    v_lshl_add_u32 v55, v59, 3, v56
    v_mul_u32_u24 v55, 320, v55
    v_lshl_add_u32 v55, v57, 3, v55
    v_add_u32 v55, {WOFF}, v55
    s_cmp_lt_u32 s22, 8
    s_cselect_b32 s34, 5, 6
    s_cselect_b32 s35, 9, 5
    s_cmp_eq_u32 s52, 0
    s_cselect_b32 s34, 0, s34
    s_cselect_b32 s35, 4, s35
    s_add_u32 s30, s34, 1
    """)
    for i, sreg in enumerate((34, 30, 35)):
        su(f"v_xor_b32 v6, s{sreg}, v58\nv_lshl_add_u32 v{LB+i}, v6, 5, v55")
    su(f"""
    v_mov_b32 v6, 0x3f803f80
    v_accvgpr_write_b32 a{ONES}, v6
    v_accvgpr_write_b32 a{ONES+1}, v6
    v_accvgpr_write_b32 a{ONES+2}, v6
    v_accvgpr_write_b32 a{ONES+3}, v6
    """)
    mv = OPT["keep"]
    if mv >= 1: su += d_pack_src() + d_cs()
    if mv >= 2: su += d_pack_dst()
    a += inter(su, first, OPT["sufirst"])
    a += stamp("c0i")
    a += dma_next(1)
    a += W("sl")
    a += stamp("sl")
    a += inter(stats_math(), grp(dma_x(1) + dma_w(1), 1))
    a += dma_next(2)
    a("s_waitcnt lgkmcnt(0)\ns_mul_i32 s39, s39, 1664525\ns_add_u32 s39, s39, 1013904223")
    a += stamp("pend")
    return a

def d_pack_src():
    return L(f"""
    s_sub_u32 s36, s22, 8
    s_mul_i32 s36, s36, 11
    s_add_u32 s36, s36, s21
    s_lshr_b32 s37, s36, 1               ; ks
    s_and_b32 s38, s36, 1
    s_cmp_lt_u32 s37, 54
    s_cselect_b32 s56, s70, s64
    s_cselect_b32 s57, s71, s65
    s_cmp_lt_u32 s37, 54
    s_cselect_b32 s58, {F*D*2}, {D*D*2}
    s_cmp_lt_u32 s37, 54
    s_cselect_b32 s28, 0, 54
    s_and_b32 s57, s57, 0xffff
    s_mov_b32 s59, 0x20000
    s_sub_u32 s28, s37, s28
    s_mul_i32 s28, s28, {32*1280}
    s_mul_i32 s29, s38, 640
    s_add_u32 s55, s28, s29
    s_mul_i32 s29, s20, 10240
    s_add_u32 s55, s55, s29              ; pack src (8 rows per wave)
    s_mul_i32 s53, s20, 5120
    s_add_u32 s53, s53, {PACKL}
    """)
def d_cs():
    return L(f"""
    s_lshl_b32 s34, s34, 6
    s_lshl_b32 s35, s35, 6
    v_lshl_add_u32 v253, v7, 2, s34
    v_lshl_add_u32 v254, v7, 2, s35
    v_and_b32 v6, 48, v7
    v_lshl_add_u32 v254, v6, 22, v254
    s_add_u32 s34, s34, {CSL}
    s_add_u32 s35, s35, {CSL}
    s_mul_i32 s62, s22, 6400
    s_add_u32 s62, s62, {CSP}
    s_mul_i32 s64, s21, 640
    s_add_u32 s64, s64, s62
    s_cmp_ge_u32 s21, 10
    s_cselect_b32 s64, {OOB}, s64
    s_cmp_eq_u32 s51, 1
    s_cselect_b32 s64, {OOB}, s64
    """)
def d_pack_dst():
    return L(f"""
    v_add_u32 v5, 4096, v4
    s_mul_i32 s28, s37, 205
    s_lshr_b32 s28, s28, 10              ; c
    s_mul_i32 s30, s28, 5
    s_sub_u32 s30, s37, s30              ; r
    s_lshl_b32 s29, s30, 3
    s_lshr_b32 s47, 0x01001600, s29      ; r -> 0, 22, -, 1
    s_and_b32 s47, s47, 255
    s_cmp_eq_u32 s30, 4
    s_cselect_b32 s47, 23, s47
    s_lshl_b32 s29, s28, 1
    s_add_u32 s47, s47, s29
    s_add_u32 s28, s28, 43
    s_cmp_eq_u32 s30, 2
    s_cselect_b32 s31, 1, 0
    s_cselect_b32 s47, s28, s47
    s_cmp_ge_u32 s37, 54
    s_cselect_b32 s31, 1, s31
    s_cselect_b32 s47, s37, s47          ; storage index
    s_lshl_b32 s28, 5120, s31            ; per g>>1
    s_mul_i32 s29, s31, 4608
    s_add_u32 s29, s29, 512              ; per g&1
    s_mul_i32 s30, s31, -9728
    s_add_u32 s30, s30, 10240
    v_lshrrev_b32 v3, 5, v7
    v_mul_u32_u24 v1, s28, v3
    v_bfe_u32 v3, v7, 4, 1
    v_mad_u32_u24 v1, v3, s29, v1
    v_bfe_u32 v3, v7, 2, 2
    v_lshl_add_u32 v1, v3, 7, v1
    v_and_b32 v3, 3, v7
    v_lshl_add_u32 v1, v3, 3, v1
    s_mul_i32 s28, s20, 1056
    s_add_u32 s28, s28, {PACKL}
    v_add_u32 v1, s28, v1
    v_add_u32 v2, s30, v1
    s_lshl_b32 s28, s38, 2
    s_add_u32 s28, s28, s20              ; ct
    s_add_u32 s28, s28, {WPP}
    s_lshl_b32 s28, s28, 21
    s_lshl_b32 s29, s47, 14
    s_add_u32 s28, s28, s29
    s_bfe_u32 s29, s47, 0x10001
    s_mul_i32 s29, s29, {3072 + 8192}
    s_add_u32 s28, s28, s29
    s_cmp_ge_u32 s36, 148
    s_cselect_b32 s60, {OOB}, s28
    """)
def d_misc():
    return L(f"""
    s_lshl_b32 s49, s2, {OPT['fash']}
    s_add_u32 s49, s49, {FA}
    s_cmp_eq_u32 s20, 0
    s_cselect_b32 s49, s49, {OOB}        ; A flag (wave 0)
    v_add_u32 v5, 4096, v4
    """) + srd(4, 72, S*D*2) + L(f"""
    s_mul_i32 s74, s22, 6400
    s_add_u32 s74, s74, {CSP}
    s_add_u32 s73, s2, s20
    s_cmp_eq_u32 s73, 0
    s_cselect_b32 s73, 0, {OOB}          ; epoch word (wg0 wave0)
    s_and_b32 s24, s2, 6
    s_lshl_b32 s24, s24, 2
    s_lshr_b32 s28, s2, 5
    s_add_u32 s24, s24, s28              ; row group of phase 2
    s_bfe_u32 s25, s2, 0x20003
    s_and_b32 s28, s2, 1
    s_lshl_b32 s28, s28, 2
    s_add_u32 s25, s25, s28              ; column tile of phase 2
    s_add_u32 s29, s25, {WPP}
    s_lshl_b32 s29, s29, 21
    s_and_b32 s47, s24, 1
    s_lshl_b32 s28, s20, 1
    s_add_u32 s47, s47, s28              ; first storage index of this wave: 2*wave + parity
    s_lshl_b32 s28, s47, 14
    s_add_u32 s46, s29, s28
    s_mul_i32 s28, s52, {3072 + 8192}
    s_add_u32 s46, s46, s28              ; B stream first
    s_lshl_b32 s28, s20, 14
    s_add_u32 s70, s29, s28
    s_mul_i32 s28, s51, {3072 + 8192}
    s_sub_u32 s70, s70, s28
    s_add_u32 s70, s70, {54*16384 + 3072 + 8192} ; wo src
    s_mul_i32 s69, s20, 5120             ; wo lds base
    s_lshl_b32 s72, s20, 10
    s_add_u32 s72, s72, {AUXC}
    s_mul_i32 s65, s21, 768
    s_add_u32 s65, s65, {NEGM - 144*16}
    s_movk_i32 s66, 192
    s_mul_i32 s67, s22, 12
    s_add_u32 s67, s67, s21
    s_lshl_b32 s67, s67, 7
    s_add_u32 s67, s67, {FP}
    s_cmp_eq_u32 s20, 0
    s_cselect_b32 s67, s67, {OOB}
    """)

def zipw(*ls):
    keyed = []
    for li, l in enumerate(ls):
        for j, x in enumerate(l): keyed.append(((j + 0.5)/len(l), li, j, x))
    keyed.sort(key=lambda t: t[:3])
    return [y for k in keyed for y in k[3]]
def epi_t(kind, st):
    RC = AB[0]; PK = AB[1]; TMP = BB[0]
    e = A()
    for T in range(6):
        c = RC + 4*T
        e(f"v_mul_f32 v{c+2}, s83, v{c+1}")
        if kind == "silu": e(f"v_rcp_f32 v{c+3}, v{c+1}")
    blocks = [[(T, i) for T in Ts for i in idx] for idx in ((0, 1, 2, 3), (4, 5, 6, 7)) for Ts in ((0, 1), (2, 3), (4, 5))]
    blocks.append([(T, i) for T in range(6) for i in (8, 9)])
    nxt = lambda T: f"  s_mov_b32 s48, s{81 if T == 1 else 82}" if T in (1, 3) else "  s_add_u32 s48, s48, 1024"
    pend = []
    for bi, blk in enumerate(blocks):
        V = []; n = len(blk)
        u = lambda k: acc(blk[k][0], 0) + 2*blk[k][1]
        c = lambda k: RC + 4*blk[k][0]
        for k in range(n): V.append(f"  v_pk_fma_f32 {vr(u(k),2)}, {vr(CS+2*blk[k][1],2)}, {vr(c(k),2)}, {vr(u(k),2)} op_sel_hi:[1,0,1]")
        for k in range(n): V.append(f"  v_pk_mul_f32 {vr(TMP+2*k,2)}, {vr(u(k),2)}, {vr(c(k)+2,2)} op_sel_hi:[1,0]")
        if kind == "silu":
            for k in range(2*n): V.append(f"  v_exp_f32 v{TMP+k}, v{TMP+k}")
            for k in range(n): V.append(f"  v_pk_fma_f32 {vr(TMP+2*k,2)}, {vr(TMP+2*k,2)}, {vr(c(k)+2,2)}, {vr(c(k)+2,2)} op_sel:[0,1,1] op_sel_hi:[1,1,1]")
            for k in range(2*n): V.append(f"  v_rcp_f32 v{TMP+k}, v{TMP+k}")
            fin = lambda k: f"  v_pk_mul_f32 {vr(u(k),2)}, {vr(u(k),2)}, {vr(TMP+2*k,2)}"
        else:
            for k in range(2*n): V.append(f"  v_exp_f32_e64 v{TMP+k}, v{TMP+k} clamp")
            for k in range(n): V.append(f"  v_pk_fma_f32 {vr(u(k),2)}, {vr(u(k),2)}, {vr(c(k),2)}, 1.0 op_sel:[0,1,0] op_sel_hi:[1,1,0]")
            for k in range(2*n): V.append(f"  v_max_f32 v{u(k//2)+(k&1)}, v{u(k//2)+(k&1)}, v{TMP+k}")
            fin = lambda k: f"  v_pk_add_f32 {vr(u(k),2)}, {vr(u(k),2)}, {vr(VX+4,2)}"
        items = pend + grp(st.take(OPT["epi"][bi]), 1)
        if bi == OPT["f1blk"]: items.insert(len(pend) + OPT["f1pos"], W("sa") + L("s_barrier") + flag("s75") + stamp("f1"))
        ins = {}
        for k, x in enumerate(items): ins[5 + (k*(len(V) - 6)//len(items))//2*2] = x
        for i, v in enumerate(V):
            e.append(v)
            if i in ins: e += ins[i]
        p = PK + 12*(bi & 1); tg = " ;#sa" if bi < 3 else ""
        if bi in (0, 3, 6): e("s_mov_b32 s48, s80")
        pend = []
        for q in range(n//4):
            for k in range(4*q, 4*q + 4): e.append(fin(k))
            for k in range(4*q, 4*q + 4): e(f"v_cvt_pk_bf16_f32 v{p+k}, v{u(k)}, v{u(k)+1}")
            if bi < 6:
                T = blk[4*q][0]
                stv = [f"  buffer_store_dwordx4 {vr(p+4*q)}, v{VX + bi//3}, s[16:19], s48 offen sc1{tg}"]
                if T < 5: stv.append(nxt(T))
                if q == 0: e += stv
                else: pend.append(stv)
            else:
                e(f"v_permlane16_swap_b32 v{p+4*q}, v{p+4*q+2}\nv_permlane16_swap_b32 v{p+4*q+1}, v{p+4*q+3}")
                e(f"buffer_store_dwordx4 {vr(p+4*q)}, v{VX+2}, s[16:19], s48 offen sc1")
                if q < 2: e.append(nxt(2*q+1))
    return resolve(e)

def epi_kv(st):
    a = A()
    NM = AB[0]; TMP = BB[1]; FR = AB[1]; DD = ACC
    def RSf(T): return BB[0] + 4*T if T < 5 else VX
    a(f"""
    v_mov_b32 v{TMP+12}, 0x358637bd
    v_mov_b32 v{TMP+13}, 0x358637bd
    v_mov_b32 v{TMP+14}, 0x3f803f80
    s_waitcnt lgkmcnt(0)
    """)
    def kvm(P): return [f"  v_mfma_f32_16x16x32_bf16 {vr(DD+4*n)}, {vr(FR+4*kx)}, {vr(FR+4*vy)}, {'0' if P == 0 else vr(DD+4*n)}" for n, (kx, vy) in enumerate(PRODS)]
    for P in range(3):
        for h in range(2):
            T = 2*P + h; u0 = acc(T, 0); nm = NM + 4*T; rs = RSf(T); b = A()
            for t in range(5):
                for i in range(2):
                    r = u0 + 4*t + 2*i
                    b(f"v_pk_fma_f32 {vr(r,2)}, {vr(nm+2*i,2)}, {vr(CS+4*t,2)}, {vr(r,2)} op_sel_hi:[1,0,1]")
            for t in range(5):
                for i in range(2):
                    r = u0 + 4*t + 2*i
                    b(f"v_pk_mul_f32 {vr(r,2)}, {vr(r,2)}, {vr(rs+2*i,2)}")
            for i in range(6): b(f"v_pk_mul_f32 {vr(TMP+2*i,2)}, {vr(u0+2*i,2)}, s[30:31]")
            for i in range(12): b(f"v_exp_f32_e64 v{TMP+i}, v{TMP+i} clamp")
            for t in range(2, 5):
                for i in range(2): b(f"v_cvt_pk_bf16_f32 v{FR+4*(t+1)+2*h+i}, v{u0+4*t+2*i}, v{u0+4*t+2*i+1}")
            for i in range(2): b(f"v_cndmask_b32 v{FR+12+2*h+i}, v{FR+12+2*h+i}, v{TMP+14}, s[32:33]")
            for i in range(6): b(f"v_pk_add_f32 {vr(u0+2*i,2)}, {vr(u0+2*i,2)}, 1.0 op_sel_hi:[1,0]")
            for i in range(12): b(f"v_max_f32 v{u0+i}, v{u0+i}, v{TMP+i}")
            for i in range(6): b(f"v_pk_add_f32 {vr(u0+2*i,2)}, {vr(u0+2*i,2)}, {vr(TMP+12,2)}")
            for t in range(3):
                for i in range(2): b(f"v_cvt_pk_bf16_f32 v{FR+4*t+2*h+i}, v{u0+4*t+2*i}, v{u0+4*t+2*i+1}")
            n = OPT["epi_n"][T]
            a += inter(b, grp(st.take(n), 1), 2) if n else b
        if P: a(f"s_cmp_eq_u32 s36, 1\ns_cbranch_scc1 k_kvs{P}")
        for n, (kx, vy) in enumerate(PRODS):
            d = vr(DD + 4*n)
            a(f"v_mfma_f32_16x16x32_bf16 {d}, {vr(FR+4*kx)}, {vr(FR+4*vy)}, {'0' if P == 0 else d}")
        if P: a(f"k_kvs{P}:")
    a += stamp("kvv")
    a(f"""
    s_mul_i32 s28, s51, 1792
    s_add_u32 s37, s37, s28
    s_lshl_b32 s29, s52, 12
    s_add_u32 s28, s28, s29
    s_add_u32 s28, s28, {KVX}
    v_lshlrev_b32 v2, 2, v7
    v_add_u32 v3, s28, v2
    s_cmp_eq_u32 s51, 0
    s_cselect_b32 s28, 64, 8
    v_cmp_gt_u32 vcc, s28, v7
    v_mov_b32 v6, {OOB}
    """)
    for n in range(8): a(f"ds_write_b128 v{KVOF[n]}, {vr(DD+4*n)}")
    a("v_cndmask_b32 v6, v6, v2, vcc\ns_waitcnt lgkmcnt(0)\ns_barrier")
    for n in range(7): a(f"ds_read2st64_b32 {vr(72+2*n,2)}, v3 offset0:{n} offset1:{32+n}")
    for n in range(7):
        a(f"s_waitcnt lgkmcnt({6-n})\nv_add_f32 v{72+2*n}, v{72+2*n}, v{73+2*n}")
        a(f"buffer_atomic_add_f32 v{72+2*n}, v{6 if n == 6 else 2}, s[16:19], s37 offen offset:{256*n}")
    a += stamp("kvs")
    return a

def phase2(st):
    a = A()
    G = 8; GR = 88; AR = 140; NA = 4; SA = 208; XB = 228; RP = 148
    AV = [244, 245, 246, 247]; RW = [248, 249, 250]; XA = [251, 252, 253]
    GA = 168; DB = 208; KA = 236; OA = 0; UA = 237; FW = 238
    g1 = OPT["gap1"]; psched = OPT["psched"]; wtr = OPT["wtrail"]; F1A = 239; OB = 235
    s1 = L(f"""
    s_cmp_eq_u32 s20, 0
    s_cselect_b32 s55, 0, {OOB}
    s_cselect_b64 s[56:57], -1, 0
    s_and_b32 s21, s2, 3
    s_lshl_b32 s21, s21, 2
    s_bfe_u32 s28, s2, 0x20003
    s_add_u32 s21, s21, s28              ; hp
    s_and_b32 s23, s2, 4
    s_lshl_b32 s23, s23, 1
    s_lshr_b32 s28, s2, 5
    s_add_u32 s23, s23, s28              ; rg
    s_and_b32 s28, s24, 30
    s_mul_i32 s35, s28, 21846
    s_lshr_b32 s35, s35, 16
    s_add_u32 s35, s35, 144              ; W1 lines of the first row block: (12+i)*12 + rb, lanes 0..10
    s_add_u32 s28, s28, 1
    s_mul_i32 s28, s28, 21846
    s_lshr_b32 s28, s28, 16
    s_add_u32 s28, s28, 12               ; second row block, lanes 11..21
    s_lshr_b32 s29, s21, 1
    s_mul_i32 s29, s29, 12
    s_sub_u32 s29, s29, 22               ; KV lines: kvct*12 + (i-22), lanes 22..32
    s_lshl_b32 s30, s23, 1
    s_mul_i32 s31, s30, 21846
    s_lshr_b32 s31, s31, 16
    s_add_u32 s30, s30, 1
    s_mul_i32 s30, s30, 21846
    s_lshr_b32 s30, s30, 16
    s_lshr_b32 s34, s21, 2
    s_mul_i32 s34, s34, 12
    s_add_u32 s34, s34, 96
    s_add_u32 s31, s31, s34              ; Q line, first row block (lane 22)
    s_add_u32 s30, s30, s34              ; Q line, second row block (lanes 23..)
    v_min_u32 v1, 21, v7
    v_mad_u32_u24 v2, v1, 12, s35
    v_mad_u32_u24 v3, v1, 12, s28
    v_cmp_le_u32 vcc, 11, v7
    v_cndmask_b32 v2, v2, v3, vcc
    v_lshlrev_b32 v3, 7, v2
    v_add_u32 v{F1A}, {FP + FPD}, v3
    v_add_u32 v3, s29, v7
    v_cmp_le_u32 vcc, 22, v7
    v_cndmask_b32 v2, v2, v3, vcc
    v_mov_b32 v3, s31
    v_cmp_le_u32 vcc, 33, v7
    v_cndmask_b32 v2, v2, v3, vcc
    v_mov_b32 v3, s30
    v_cmp_le_u32 vcc, 34, v7
    v_cndmask_b32 v2, v2, v3, vcc
    v_lshlrev_b32 v2, 7, v2
    v_add_u32 v{FW}, {FP}, v2
    s_mul_i32 s54, s21, 5
    s_lshr_b32 s54, s54, 2               ; ksA
    s_lshl_b32 s60, s21, 12
    s_add_u32 s60, s60, {KVP}
    v_lshlrev_b32 v3, 4, v0
    v_cmp_gt_u32 vcc, 210, v0
    v_mov_b32 v6, {OOB}
    v_cndmask_b32 v{KA}, v6, v3, vcc
    s_lshl_b32 s76, s23, 1
    s_add_u32 s76, s76, s51
    """) + blk(63, 76, "q", 28, 29) + L(f"""
    s_xor_b32 s63, s63, s3
    s_lshl_b32 s30, s52, 11
    s_add_u32 s63, s63, s30
    s_add_u32 s62, s54, 1
    """) + cell(61, 54, 28) + cell(62, 62, 28) + L(f"""
    s_add_u32 s61, s61, s63
    s_add_u32 s62, s62, s63
    s_add_u32 s63, s63, {QSZ}
    """)
    s2 = A()
    s2(f"""
    v_and_b32 v1, 15, v7                 ; i / m
    v_lshrrev_b32 v2, 4, v7              ; g
    v_lshrrev_b32 v3, 2, v1
    v_and_b32 v212, 3, v1
    v_lshl_add_u32 v6, v3, 3, v212
    v_cmp_le_u32 vcc, 20, v6
    v_cndmask_b32 v216, 0, 5, vcc
    v_lshlrev_b32 v220, 2, v216
    v_sub_u32 v220, v6, v220
    v_add_u32 v6, 4, v6
    v_cmp_le_u32 vcc, 20, v6
    v_cndmask_b32 v217, 0, 5, vcc
    v_lshlrev_b32 v221, 2, v217
    v_sub_u32 v221, v6, v221
    v_cmp_gt_u32 vcc, 8, v1
    v_cndmask_b32 v218, 64, 5, vcc
    v_add_u32 v222, 12, v1
    v_add_u32 v6, v3, v212
    v_cmp_le_u32 vcc, 3, v6
    v_cmp_le_u32 s[34:35], 2, v212
    s_or_b64 vcc, vcc, s[34:35]
    v_cndmask_b32 v219, 0, 5, vcc
    v_mov_b32 v223, 20
    v_mov_b32 v213, 255
    s_mov_b32 s37, {RED}
    """)
    for k in range(2):
        s2(f"""
        s_add_u32 s31, s54, {k}
        s_mul_i32 s32, s31, 205
        s_lshr_b32 s32, s32, 10
        s_mul_i32 s32, s32, 5
        s_sub_u32 s32, s31, s32
        s_cmp_eq_u32 s32, 2
        s_cselect_b32 s33, 1, 0
        s_cselect_b32 s36, 1, 4
        s_lshl_b32 s31, s31, 3
        s_mul_i32 s32, s21, 10
        s_sub_u32 s31, s31, s32
        v_lshlrev_b32 v3, s33, v2
        v_add_u32 v3, s31, v3
        """)
        for j in range(2):
            if j: s2("v_add_u32 v3, s36, v3")
            for tl in range(4):
                s2(f"""
                v_sub_u32 v212, v3, v{216+tl}
                v_cmp_gt_u32 vcc, 5, v212
                v_mad_u32_u24 v212, v3, 21, v{220+tl}
                v_cndmask_b32 v212, v213, v212, vcc
                v_lshl_add_u32 v{GA+tl*4+k*2+j}, v212, 3, s37
                """)
    ol = L(f"buffer_load_dwordx4 v[208:211], v{KA}, s[16:19], s60 offen sc1 ;#P")
    ql = L(f"""
    buffer_load_dwordx4 a[240:243], v4, s[16:19], s61 offen sc1 ;#Q
    buffer_load_dwordx4 a[244:247], v4, s[16:19], s62 offen sc1 ;#Q
    buffer_load_dwordx4 a[248:251], v4, s[16:19], s61 offen offset:1024 sc1 ;#Q
    buffer_load_dwordx4 a[252:255], v4, s[16:19], s62 offen offset:1024 sc1 ;#Q
    """)
    s3 = A()
    s3(f"""
    s_and_b32 s64, s23, 3
    s_lshl_b32 s64, s64, 11
    s_and_b32 s28, s23, 4
    s_lshl_b32 s28, s28, 12
    s_add_u32 s64, s64, s28
    s_and_b32 s28, s23, 8
    s_lshl_b32 s28, s28, 10
    s_xor_b32 s28, s28, s3
    s_add_u32 s64, s64, s28
    s_lshl_b32 s28, s21, 7
    s_add_u32 s64, s64, s28
    s_add_u32 s64, s64, {FO}
    s_add_u32 s64, s64, s55
    s_mul_i32 s28, s21, 5
    v_add_u32 v3, s28, v2
    v_lshrrev_b32 v6, 3, v3
    v_lshlrev_b32 v6, 14, v6
    v_bfe_u32 v212, v3, 2, 1
    v_lshl_add_u32 v6, v212, {13 if OPT["mode"] in ("cols", "none") else 12}, v6
    v_and_b32 v3, 3, v3
    v_lshl_add_u32 v6, v3, 8, v6
    v_lshl_add_u32 v{OB}, v1, 4, v6
    s_add_u32 s28, s28, 4
    s_lshr_b32 s30, s28, 2
    """)
    s3 += cell(30, 30, 29)
    s3(f"""
    s_and_b32 s28, s28, 3
    s_lshl_b32 s28, s28, 8
    s_add_u32 s28, s28, s30
    v_lshl_add_u32 v3, v1, 4, s28
    v_lshl_add_u32 v3, v2, 3, v3
    v_cmp_gt_u32 vcc, 2, v2
    v_mov_b32 v6, {OOB}
    v_lshl_add_u32 v{UA}, v0, 3, s37
    v_cndmask_b32 v{OA}, v6, v3, vcc
    """)
    sA = A()
    sA += blk(40, 24, "h", 28, 29) + cell(30, 47, 29) + L(f"""
    s_xor_b32 s40, s40, s3
    s_add_u32 s44, s40, s30              ; own rows
    s_bitcmp1_b32 s24, 0
    s_cselect_b32 s28, {-HSZ & 0xffffffff}, {HSZ}
    s_add_u32 s45, s44, s28              ; partner rows (other block of the same page)
    """)
    for T in range(4):
        sA(f"s_add_u32 s28, s20, {T}\ns_and_b32 s28, s28, 3\ns_lshl_b32 s28, s28, 10\nv_add_u32 v{AV[T]}, s28, v4")
    osum = W("P") + L(f"v_cvt_pk_bf16_f32 v208, v208, v209\nv_cvt_pk_bf16_f32 v209, v210, v211\nds_write_b64 v{UA}, v[208:209]")
    ogat = [f"  ds_read_b64 {ar(204+2*n,2)}, v{GA+n}" for n in range(16)]
    om = []
    for k in range(2):
        for T in range(2):
            for tl in (3, 0, 1, 2):
                d = vr(DB + 16*T + 4*tl)
                om.append(f"  v_mfma_f32_16x16x32_bf16 {d}, {ar(204+tl*8+k*4)}, {ar(240+T*8+k*4)}, {'0' if k == 0 else d}")
    ofin = []
    for T in range(2):
        o = A(); b = DB + 16*T; z = b + 12; pk = GA + 6*T
        for r in range(3): o(f"v_add_f32 v{z+r}, 0x358637bd, v{z+r}")
        for r in range(3): o(f"v_rcp_f32 v{z+r}, v{z+r}")
        for tl in range(3):
            for r in range(4): o(f"v_mul_f32 v{b+4*tl+r}, v{b+4*tl+r}, v{z+tl}")
        for i in range(6): o(f"v_cvt_pk_bf16_f32 v{pk+i}, v{b+2*i}, v{b+2*i+1}")
        o(f"buffer_store_dwordx4 {vr(pk)}, v2, s[16:19], s63 offen offset:{1024*T} sc1 ;#OS")
        o(f"buffer_store_dwordx2 {vr(pk+4,2)}, v{OA}, s[16:19], s63 offen offset:{1024*T} sc1 ;#OS")
        ofin.append(list(o))
    fs = A()
    fs(f"""
    s_lshl_b32 s42, s24, 2
    s_add_u32 s42, s42, s20
    s_lshr_b32 s30, s24, 1
    s_and_b32 s28, s30, 3
    s_lshl_b32 s28, s28, 11
    s_and_b32 s29, s30, 4
    s_lshl_b32 s29, s29, 12
    s_add_u32 s28, s28, s29
    s_and_b32 s29, s30, 8
    s_lshl_b32 s29, s29, 10
    s_xor_b32 s29, s29, s3
    s_add_u32 s28, s28, s29
    s_add_u32 s28, s28, {FO}
    v_min_u32 v6, 15, v7
    v_lshl_add_u32 v{VF-1}, v6, 7, s28
    s_mul_i32 s48, s42, {16*1280}
    s_mul_i32 s28, s25, 160
    s_add_u32 s48, s48, s28
    """)
    fs += blk(42, 24, "o", 28, 29)
    fs(f"""
    s_xor_b32 s42, s42, s3
    s_lshl_b32 s28, s20, 10
    s_add_u32 s42, s42, s28
    s_mul_i32 s49, s20, 15360
    s_add_u32 s49, s49, {RED}
    v_mul_u32_u24 v243, 176, v1
    v_lshl_add_u32 v243, v2, 3, v243
    v_add_u32 v243, s49, v243            ; result write: row stride 176
    """)
    for i in range(3):
        fs(f"""
        v_add_u32 v6, {64*i}, v7
        v_mul_u32_u24 v1, 6554, v6
        v_lshrrev_b32 v1, 16, v1
        v_mul_u32_u24 v3, 1120, v1
        v_lshl_add_u32 v3, v6, 4, v3
        v_cmp_gt_u32 vcc, 160, v6
        v_add_u32 v1, v1, v6
        v_mov_b32 v6, {OOB}
        v_lshl_add_u32 v{240+i}, v1, 4, s49
        v_cndmask_b32 v{XA[i]}, v6, v3, vcc
        """)
    for T in range(1, 4):
        fs(f"s_add_u32 s28, s20, {T}\ns_and_b32 s28, s28, 3\ns_mul_i32 s28, s28, 15360\ns_add_u32 s28, s28, {RED + (T-1)*5120}\nv_add_u32 v{RW[T-1]}, s28, v4")
    fs(f"""
    v_add_u32 v1, s49, v4
    v_mov_b32 v2, v{OB}
    s_and_b32 s28, s24, 15
    s_lshl_b32 s28, s28, 3
    s_add_u32 s28, s28, s25
    s_lshl_b32 s28, s28, 2
    s_add_u32 s28, s28, s20
    """)
    fs += cell(65, 28, 29)
    fs(f"""
    s_add_u32 s65, s65, {GXP*PG}
    s_lshr_b32 s28, s65, 21
    s_lshr_b32 s29, s24, 4
    s_xor_b32 s28, s28, s29
    s_and_b32 s28, s28, 1
    s_lshl_b32 s28, s28, 13
    s_xor_b32 s28, s28, s3
    s_add_u32 s65, s65, s28
    s_xor_b32 s66, s65, {16*16384}
    s_add_u32 s72, s66, 3072
    s_add_u32 s73, s65, 3072
    """)
    MG = OPT["mg"]
    SL = OPT["slots"]; RL = max(i for i, x in enumerate(SL) if x[0] == "r")
    def areg(s): return 204 if s == 13 else AR + (s % NA)*16
    def ldA(s):
        r_, j = SL[s]
        r = [f"  s_add_u32 s41, s{45 if r_ == 'r' else 44}, {65536*j}"]
        if j == 6: r += L(f"s_cmp_lt_u32 s20, 3\ns_cselect_b32 s41, s41, {OOB}")
        return r + [f"  buffer_load_dwordx4 {ar(areg(s)+4*T)}, v{AV[T]}, s[16:19], s41 offen sc1 ;#A{s}{'abcd'[T]}" for T in ((1, 2, 3, 0) if s >= MG else range(4))]
    a("k_p2:\n;MARK ep")
    for i in range(7): a(f";MARK B{i}")
    for i in range(5): a(f";MARK wo{i}")
    a += stamp("eend")
    gs = grp(st.take(g1), 2)
    gs.insert(len(gs) - OPT["poll_early"], poll(F1A, VF, "p1", "s55"))
    allsu = glue(s1 + sA + s2 + s3 + fs); k1 = OPT["su1"]; k2 = OPT["su2"]
    assert k1 >= len(glue(s1 + sA))
    flat = lambda l: sum(l, [])
    p1at = next(i for i, x in enumerate(allsu) if f"v_add_u32 v{F1A}," in x[0]) + 1
    a += inter(flat(allsu[:k1]), gs, p1at if OPT["poll_early"] >= len(gs) - 2 else 0)
    a += W("ep") + L("s_barrier") + flag("s67", 224) + stamp("flag")
    a += W("p1") + L("s_mov_b64 s[58:59], vcc") + check("k_s1", F1A, VF, True) + L("s_mov_b64 vcc, s[58:59]") + stamp("c1")
    pre = grp(ldA(2), 1)
    if OPT["pp2"] < 0: pre.append(poll(FW, VF, "p2", "s55"))
    a += ldA(0) + ldA(1) + inter(flat(allsu[k1:k2]), pre)
    if min(OPT["xs"]) < OPT["c2"]:
        kx = max(i for i, x in enumerate(allsu) if f"v_cndmask_b32 v{XA[2]}," in x[0]); assert kx < k2, (kx, len(allsu))
    late = allsu[k2:]; nl = OPT["c2"]
    late = {i: flat(late[i*len(late)//nl:(i+1)*len(late)//nl]) for i in range(nl)}
    def ldO(i0, n):
        r = []
        for i in range(i0, i0 + n):
            if OPT["mode"] in ("cols", "none"):
                r += [f"  s_add_u32 s43, s42, {8192*i}", f"  buffer_load_dwordx4 {ar(4*i)}, v4, s[16:19], s43 offen sc1 ;#O{i}"]; continue
            if i % 2 == 0 or i == i0: r.append(f"  s_add_u32 s43, s42, {16384*(i//2)}")
            r.append(f"  buffer_load_dwordx4 {ar(4*i)}, v{4 + (i & 1)}, s[16:19], s43 offen sc1 ;#O{i}")
        return r
    ldX = [[f"  s_add_u32 m0, s49, {4096 + 1024*i}", "  s_nop 0", f"  buffer_load_dwordx4 v{XA[i]}, s[8:11], s48 offen lds ;#X"] for i in range(3)]
    rdX = L("v_add_u32 v2, 51200, v4\nv_and_b32 v3, 15, v7\nv_lshlrev_b32 v3, 4, v3\nv_sub_u32 v3, v243, v3") + W("X") + tag([f"  ds_read_b64 {vr(XB+2*t,2)}, v3 offset:{4096+32*t}" for t in range(5)], "xr")
    NB = 3
    def sb(s, t): return vr(GR + 20*(s % NB) + 4*t)
    def rdB(s): return tag([f"  ds_read_b128 {sb(s,t)}, v{4 if s < 10 else 2} offset:{(s%10)*5120+1024*t}" for t in range(5)], f"b{s}")
    wr_ = tag([f"  ds_write_b128 v{RW[T-1]}, {vr(G+(T*5+t)*4)} offset:{1024*t}" for T in range(1, 4) for t in range(5)], "w")
    rd_ = tag([f"  ds_read_b128 {vr(G+20+4*j)}, v1 offset:{1024*j}" for j in range(15)], "r")
    xw = tag([f"  ds_write_b128 v{RW[T-1]}, {vr(GR+(T*5+t)*4)} offset:{1024*t}" for T in range(1, 4) for t in range(5)], "xw")
    xr = tag([f"  ds_read_b128 {vr(GR+20+20*j+4*t)}, v1 offset:{5120*j+1024*t}" for t in range(5) for j in range(3)], "xr")
    xa = []
    for t in range(5):
        xa += [f"  v_add_f32 v{GR+4*t+i}, v{GR+4*t+i}, v{GR+20+20*j+4*t+i}" for j in range(3) for i in range(4)]
        xa += [f"  v_cvt_pk_bf16_f32 v{GA+2*t+i}, v{GR+4*t+2*i}, v{GR+4*t+2*i+1}" for i in range(2)]
        if t in (1, 3): xa.append(f"  buffer_store_dwordx4 {vr(GA+2*t-2)}, v4, s[16:19], s66 offen offset:{512*(t-1)} sc1 ;#XS")
    xa += L(f"v_lshlrev_b32 v0, 3, v7\nbuffer_store_dwordx2 {vr(GA+8,2)}, v0, s[16:19], s66 offen offset:2048 sc1 ;#XS")
    xl = [f"  buffer_load_dwordx4 {vr(GA+4*t)}, v4, s[16:19], s65 offen offset:{1024*t} sc1 ;#XL" for t in range(2)] + [f"  buffer_load_dwordx2 {vr(GA+8,2)}, v0, s[16:19], s65 offen offset:2048 sc1 ;#XL"]
    XF, XP, XC = OPT["xf"], OPT["xp"], OPT["xc"]
    xpoll = L(f"v_mov_b32 v{VF-1}, s73") + poll(VF-1, VF, "xp")
    C2 = OPT["c2"]; plan = OPT["aplan"]; OFS = OPT["ofs"]; PO = OPT["po"]; PC = OPT["pc"]; osched = OPT["osched"]
    no = 0
    XU = 184
    xu = []
    for i in range(10): xu += [f"  v_lshlrev_b32 v{XU+2*i}, 16, v{XB+i}", f"  v_and_b32 v{XU+2*i+1}, 0xffff0000, v{XB+i}"]
    def wdone(g): return ("W", 5*g + 4) not in st.items
    def mf(s, T, rev):
        r_, j = SL[s]; GG = GR if r_ == "r" else G; first = all(x[0] != r_ for x in SL[:s])
        return [f"  v_mfma_f32_16x16x32_bf16 {vr(GG+(T*5+t)*4)}, {breg(j,t)}, {ar(areg(s)+4*T)}, {'0' if first else vr(GG+(T*5+t)*4)}" for t in (range(4, -1, -1) if rev else range(5))]
    nm = 14 - MG; WB = OPT["wb"]
    for s in range(MG + 4):
        if s < MG:
            need = [f"A{s}{c}" for c in "abcd"] + [f"B{SL[s][1]}"]; assert ("B", 5*SL[s][1] + 4) not in st.items
            M = sum((mf(s, T, k & 1) for k, T in enumerate((1, 2, 3, 0) if s == RL else range(4))), [])
        else:
            T = (1, 2, 3, 0)[s - MG]
            need = [f"A{x}{'abcd'[T]}" for x in range(MG, 14)]
            M = sum((mf(x, T, False) for x in range(MG, 14)), [])
        if s == XF: need.append("XS")
        vm = need + (["op"] if s == PC else []) + ([f"wo{g}" for g in range(5) if g not in wtr] if s == WB else []) + (["OS"] if s == OFS else []) + (["p2"] if s == C2 else [])
        if s == WB: assert all(wdone(g) for g in range(5) if g not in wtr)
        OQ = OPT["oq"]; OM = C2 + (1 if OQ else 2)
        a += W(vm, "*" if (s in (RL, RL if OPT["xw"] else RL + 2) or (s == C2 + 2 and not OQ)) else ())
        a += stamp(f"g{s}")
        if s == C2: a += check("k_sw", FW, VF, True) + stamp("w1")
        if s == PC: a += check("k_so", VF-1, VF, True) + stamp("op")
        if s != PC and s in (OFS, -1 if OQ else C2 + 2, WB, RL, MG + 1): a("s_barrier")
        ls = []; n = len(M)
        for x in plan.get(s, []): assert (SL[x][1] < 2 or s >= C2) and (x - s <= 3 or (x == 13 and s > C2 + 3))
        v = sum((ldA(x) for x in plan.get(s, [])), [])
        if s == C2: v = ol + ql + v
        if s == OFS: v = flag("s64") + v
        if s == XF: v = flag("s72") + v
        if s == XP: assert s > PC; v = xpoll + v
        if s == PO: v = poll(VF-1, VF, "op", "s55") + v
        if s == OPT["pp2"]: v = poll(FW, VF, "p2", "s55") + v
        if late.get(s): ls.append((late[s], 0, n - 1))
        if s in OPT["xs"]: v += sum([ldX[i] for i, x in enumerate(OPT["xs"]) if x == s], [])
        if psched.get(s): v += st.take(psched[s])
        if osched.get(s): v += ldO(no, osched[s]); no += osched[s]
        ls.append((v, 0, n - 2))
        if OQ:
            if s == C2 + 1: ls += [(osum, OQ, OQ + 1), (L("s_waitcnt lgkmcnt(0)\ns_barrier"), OQ + 4, OQ + 4), (ogat, OQ + 5, min(OQ + 10, 19))]
        else:
            if s == C2 + 1: ls.append((osum, 16, 19))
            if s == C2 + 2: ls.insert(0, (ogat, 0, 10))
        if s == OM + 1: ls.append((ofin[0] + ofin[1], 1, 19))
        if s == OPT["xr"]: assert s < RL and s != OFS and s > OM + 1; ls.insert(0, (rdX, 0, 8))
        if OPT["xw"] == 0:
            if s == RL: ls += [(xw[:5], 10, 14), (xw[5:10], 15, 19)]
            if s == RL + 1: ls += [(xw[10:], 0, 5), (L("s_waitcnt lgkmcnt(0)\ns_barrier"), 9, 9), (xr, 10, 19)]
            if s == RL + 2: ls.append((xa[:OPT["xcut"]], 0, n - 1))
            if s == RL + 3: ls.append((xa[OPT["xcut"]:], 0, n - 1))
        else:
            if s == RL: ls.append((xw[:4], 9, 19))
            if s == RL + 1: ls.append((xw[4:11], 0, 19))
            if s == RL + 2: ls += [(xw[11:], 0, 9), (L("s_waitcnt lgkmcnt(0)\ns_barrier"), 12, 12), (xr, 13, 19)]
            if s == RL + 3:
                a += L("s_waitcnt lgkmcnt(0)") + [";@align on"] + [f"  v_pk_add_f32 {vr(GR+2*i,2)}, {vr(GR+2*i,2)}, {vr(GR+20+20*j+2*i,2)}" for j in range(3) for i in range(10)] + [";@align off"]
                ls.append(([x for x in xa if "v_add_f32" not in x], 0, n - 1))
        if s > MG: ls.append((wr_[5*(s-MG-1):5*(s-MG)], 2, n - 1))
        if s == MG + 2: ls.append((xu, 0, n - 1))
        if s == MG + 3: ls.append((rdB(0) + rdB(1), 0, n - 2))
        a += place(M, ls)
        if s == OM: a += W("Q", "*") + stamp("om") + place(om, [(st.take(OPT["pom"]), 0, 15)])
    a += stamp("gend")
    E = G + 20
    VB = []
    for j in range(3):
        for i in range(10): VB.append(f"  v_pk_add_f32 {vr(G+2*i,2)}, {vr(G+2*i,2)}, {vr(G+20+20*j+2*i,2)}")
    VC = []
    for i in range(10): VC += [f"  v_lshlrev_b32 v{RP+2*i}, 16, v{GA+i}", f"  v_and_b32 v{RP+2*i+1}, 0xffff0000, v{GA+i}"]
    VC += [f"  v_pk_add_f32 {vr(G+2*i,2)}, {vr(G+2*i,2)}, {vr(RP+2*i,2)}" for i in range(10)]
    VC += [f"  v_pk_mul_f32 {vr(E+2*i,2)}, {vr(G+2*i,2)}, s[30:31]" for i in range(10)]
    VA = [f"  v_add_f32 v{G+i}, v{G+i}, v{G+20+20*j+i}" for j in range(3) for i in range(20)]
    V = []
    V += [f"  v_exp_f32 v{E+i}, v{E+i}" for i in range(20)]
    V += [f"  v_add_f32 v{E+i}, 1.0, v{E+i}" for i in range(20)]
    V += [f"  v_rcp_f32 v{E+i}, v{E+i}" for i in range(20)]
    V += [f"  v_mul_f32 v{G+i}, v{G+i}, v{E+i}" for i in range(20)]
    V0 = OPT["v0"]; RB = OPT["rb"]; LK = NB - 1; P0 = MG + 4
    V1 = OPT["v1"]; pa = -(-60//(V1 - V0))
    cost = [8 if ("exp" in x or "rcp" in x) else 4 for x in V]; tot = sum(cost); parts = [[] for _ in range(20 - V1)]; c_ = 0
    for x, c in zip(V, cost): parts[min(len(parts) - 1, c_*len(parts)//tot)].append(x); c_ += c
    for s in range(20):
        wg = [g for g, st_ in wtr.items() if st_ == s]
        for g in wg: assert s + LK <= 4*g and wdone(g)
        a += W([f"O{s}"] + [f"wo{g}" for g in wg] + (["XS"] if P0 + s == XF else []) + (["xp"] if P0 + s == XC else []) + (["XL"] if s == V1 else []), [f"b{s}"] + (["w"] if s == RB else []) + (["r"] if s == V0 else []))
        if s == RB or wg: a("s_barrier")
        a += stamp(f"s{s}")
        if P0 + s == XC: a += check("k_sx", VF-1, VF) + stamp("xc")
        if s == V1: a += [";@align on"] + VC + [";@align off"]
        M = [f"  v_mfma_f32_16x16x32_bf16 {vr(SA+4*t)}, {sb(s,t)}, {ar(4*s)}, {'0' if s == 0 else vr(SA+4*t)}" for t in range(5)]
        ls = []
        if s + LK < 20: ls.append((rdB(s+LK), 0, 4))
        v = []
        if P0 + s == XF: v += flag("s72")
        if P0 + s == XP: v += xpoll
        if P0 + s == XC: v += xl
        if psched.get(P0 + s): v += st.take(psched[P0 + s])
        if osched.get(P0 + s): v += ldO(no, osched[P0 + s]); no += osched[P0 + s]
        ls.append((v, 0, 4))
        if s == 0: ls.append((L(f"s_mov_b32 s30, {LOG2E|0x80000000}\ns_mov_b32 s31, {LOG2E|0x80000000}"), 0, 4))
        if RB <= s < RB + 3: ls.append((rd_[5*(s-RB):5*(s-RB)+5], 0, 4))
        if V0 <= s < V1: ls.append((VA[(s-V0)*pa:(s-V0+1)*pa], 0, 4))
        if s >= V1: ls.append((parts[s-V1], 0, 4))
        a += place(M, ls)
    assert no == 20 and not st.items, (no, st.items)
    a += stamp("send")
    for t in range(5):
        for i in range(2): a(f"v_pk_fma_f32 {vr(SA+4*t+2*i,2)}, {vr(SA+4*t+2*i,2)}, {vr(G+4*t+2*i,2)}, {vr(XU+4*t+2*i,2)}")
        for i in range(2): a(f"v_cvt_pk_bf16_f32 v{XB+2*t+i}, v{SA+4*t+2*i}, v{SA+4*t+2*i+1}")
        a(f"ds_write_b64 v243, {vr(XB+2*t,2)} offset:{32*t}")
    a(";@align off\ns_waitcnt lgkmcnt(0)")
    for i in range(3): a(f"ds_read_b128 {vr(E+4*i)}, v{240+i}")
    for i in range(3): a(f"s_waitcnt lgkmcnt({2-i})\nbuffer_store_dwordx4 {vr(E+4*i)}, v{XA[i]}, s[4:7], s48 offen")
    a += stamp_out()
    return resolve(a)

def build():
    OUTL.clear()
    pro = prologue()
    br = L("s_cmp_lt_u32 s22, 8\ns_cbranch_scc1 k_kv")
    if OPT["pol"] == "race":
        br += L("s_cmp_eq_u32 s21, 11\ns_cbranch_scc1 k_race")
        OUTL(f"""
        k_race:
        s_waitcnt vmcnt(0)
        s_cmp_lg_u32 s20, 0
        s_cbranch_scc1 k_race2
        s_cmp_eq_u32 s2, 255
        s_cbranch_scc1 k_race2
        s_bfe_u32 s29, s2, 0x10003           ; 239 -> 1, 247 -> 0
        s_lshl_b32 s28, s29, 13
        s_add_u32 s28, s28, {RACE}
        v_lshlrev_b32 v6, 25, v7
        s_mov_b32 s30, {OPT['trips']}
        k_race1:
        v_mov_b32 v3, 0
        buffer_atomic_add v3, v6, s[16:19], s28 offen sc0
        s_sub_u32 s30, s30, 1
        s_cmp_lg_u32 s30, 0
        s_waitcnt vmcnt(0)
        s_cbranch_scc1 k_race1
        s_mov_b32 s56, s74
        s_and_b32 s57, s75, 0xffff
        s_mov_b32 s58, 256
        s_mov_b32 s59, 0x20000
        v_mov_b32 v3, 1
        buffer_atomic_add v3, v6, s[56:59], 0 offen sc0
        s_xor_b32 s29, s29, 1
        s_lshl_b32 s29, s29, 13
        s_waitcnt vmcnt(0)
        v_readfirstlane_b32 s30, v3
        v_mov_b32 v3, s29
        s_nop 0
        s_cmp_eq_u32 s30, 0
        s_cselect_b32 s28, {PW}, {OOB}
        buffer_store_dword v3, v6, s[16:19], s28 offen sc1
        s_waitcnt vmcnt(0)
        k_race2:
        s_barrier
        """)
        OUTL.extend(d_misc() + flag("s49") + (d_cs() if OPT["keep"] < 1 else []) + [f"  s_mov_b32 s{r}, {OOB}" for r in (61, 62, 63, 75, 80, 81, 82, 83)] + [f"  v_add_u32 v{L2B+i}, {2*STAGE}, v{LA+i}" for i in range(5)] + L("s_branch k_t_join"))
    items = [("B", i) for i in range(35)] + [("W", i) for i in range(25)]
    st_t = Stream(items); st_n = Stream(items)
    mt = g1_main("k_t", True, st_t)
    mt += L("s_waitcnt lgkmcnt(0)\ns_cmp_lt_u32 s22, 12\ns_cbranch_scc1 k_q")
    eq = epi_t("phi", Stream(st_t.items)); es = epi_t("silu", st_t)
    mn = g1_main("k_n", False, st_n)
    ek = epi_kv(st_n)
    assert st_n.items == st_t.items
    n0 = len(resolve(pro + br))
    a = resolve(pro + br + mt) + es + phase2(st_t) + L("s_endpgm\nk_q:") + eq + L("s_branch k_p2\nk_kv:") + resolve(pro + br + mn + ek)[n0:] + L("s_branch k_p2")
    a += L("k_end:\ns_endpgm") + OUTL
    body, added = haz.fix(a)
    body, nbytes, nn, npm = align.align([x.replace("CODE_KB", "40").replace("CODE_MAX", "44444") for x in body])
    kb = (nbytes + 1023)//1024; assert kb <= 64
    body = [x.replace("s_cmp_ge_u32 s28, 40", f"s_cmp_ge_u32 s28, {kb if OPT.get('cpf', 1) else 0}").replace("44444", str((nbytes - 16) & ~15)) for x in body]
    body = [re.sub(r"\s*;(#\S+|nocount|C)$", "", x) for x in body]
    print("instrs", len(body), "nops added", added, "bytes", nbytes, "align nops", nn, "promoted", npm, file=sys.stderr)
    if OPT.get("nost"): body = [x for x in body if not ("buffer_store_dwordx4" in x and "s[76:79]" in x)]
    if OPT.get("cyc"): body = [x.replace("s_memrealtime", "s_memtime") for x in body]
    out = ["; @launch grid=(256,1,1) block=(256,1,1) lds=163840",
           '.amdgcn_target "amdgcn-amd-amdhsa--gfx950"\n.text', khead(NAME)] + body
    if DIAG: out.append(";ST " + " ".join(OPT["st"][:7]) + "\n;OPTS " + " ".join(x for x in sys.argv[3:] if not x.startswith("st=")))
    out.append('.section .rodata,"a"\n.p2align 6\n' + kd(NAME, 512, 256, 102))
    return "\n".join(out) + "\n"
if __name__ == "__main__":
    for x in sys.argv[2:]:
        if x == "d": DIAG = True
        else:
            k, v = x.split("=", 1); OPT[k] = eval(v)
    src = build()
    open(sys.argv[1], "w").write(src)
```

```python
import sys, re
from asmlib import kd, khead
import haz, align

NAME = "recurrent_scan__linear_attn_block__dense_activation_silu__prompt_kernel"
S, D, F = 2048, 640, 1728
FA = 0x8000
FP = 0xF0000
FPD = 0x9000 - 144*128
FO = 0x38000
NEGM = 0x10000; RSTD = 0x12000
CSP = 0x14000
KVP   = 0x40000
PG = 1 << 21
PW = 0xC8000
RACE = 0xC0000
WPP = 1
HOF = 74*16384; HSZ = 27*16384
QPP = 9; QSZ = 10*16384
GXP = 13
WS_USED = 15*PG
TS = 0x1F00000
def blk(dst, rb, kind, t0, t1):
    sh, pg, msk, sz, of = (1, WPP, 1, HSZ, HOF) if kind == "h" else (2, QPP, 3, 2*QSZ, QSZ if kind == "o" else 0)
    return L(f"""
    s_and_b32 s{t0}, s{rb}, 15
    s_lshr_b32 s{t0}, s{t0}, {sh}
    s_add_u32 s{t0}, s{t0}, {pg}
    s_lshr_b32 s{t1}, s{rb}, 4
    s_xor_b32 s{t1}, s{t1}, s{t0}
    s_and_b32 s{t1}, s{t1}, 1
    s_lshl_b32 s{t1}, s{t1}, {12 if OPT["mode"] in ("cols", "none") else 13}
    s_lshl_b32 s{t0}, s{t0}, 21
    s_add_u32 s{t0}, s{t0}, s{t1}
    s_and_b32 s{t1}, s{rb}, {msk}
    s_mul_i32 s{t1}, s{t1}, {sz}
    s_add_u32 s{t0}, s{t0}, s{t1}
    s_add_u32 s{dst}, s{t0}, {of}
    """)
def cell(dst, idx, t0):
    return L(f"s_lshr_b32 s{t0}, s{idx}, 1\ns_lshl_b32 s{t0}, s{t0}, 14\ns_and_b32 s{dst}, s{idx}, 1\ns_lshl_b32 s{dst}, s{dst}, {13 if OPT['mode'] in ('cols', 'none') else 12}\ns_add_u32 s{dst}, s{dst}, s{t0}")
LOG2E = 0x3fb8aa3b
OOB = 0x40000000
STAGE = 45056; WOFF = 24576; SPARE = 3*STAGE
AUXC = SPARE; AUXM = SPARE + 6400
CSL = SPARE + 8192
PACKL = SPARE
KVX = SPARE + 10240
RED = 102400
DIAG = False
OPT = dict(spin=200000, pkd=1, pkr=3, pks={4: 3, 5: 2}, flagb=3, flagb_n=2, pollb=6,
           pf_t={15:5,16:5,17:5,18:5,19:7}, pf_n={15:4,16:4,17:4,18:5,19:5}, epi_n=[5, 5, 5, 5, 4, 0], kv_first=0,
           epi=[4, 3, 2, 3, 2, 2, 3], oq=9, f1blk=5, f1pos=0, gap1=8, poll_early=1, c2=2, pom=0,
           slots=[("r",0),("r",1),("o",0),("o",1),("r",2),("r",3),("r",4),("r",5),("r",6),("o",2),("o",3),("o",4),("o",5),("o",6)],
           aplan={0:[3],2:[4],3:[5,6],4:[7],5:[8],6:[9],7:[10],8:[11,13],9:[12]},
           mg=11, wb=14, xr=6, rb=1, burst=1, su1=170, su2=372, pp2=0,
           psched={0:1,1:2,10:3}, xs=[1, 1, 1], ofs=7, po=9, pc=12, xcut=44, xf=14, xp=18, xc=22, v1=12,
           osched={12:4,13:4,14:4,15:2,16:2,17:2,19:2}, xw=1, nbuf=3, v0=5, nopk=1, adist=3, p2map=1, su_pre=200, su_pre_n=160, sleep=2, rot=0, snake=1, krot=0, fash=4, wtrail={}, wrow=1, wfirst=0, sufirst=0, keep=0, slin=0, head=2, w1first=0, cmaj=0, pol="race", mode="rows", trips=9, cpf2=12,
           st=["eend", "w1", "g11", "op", "gend", "s5", "send"])

class A(list):
    def __call__(self, s):
        for x in s.strip("\n").split("\n"):
            x = x.strip()
            m = re.match(r"s_cselect_b32 (s\d+), (\d+|0x[0-9a-f]+), (\d+|0x[0-9a-f]+)\s*(;.*)?$", x)
            if m and int(m.group(2), 0) > 64 and int(m.group(3), 0) > 64:
                self.append(f"  s_mov_b32 {m.group(1)}, {m.group(3)}")
                x = f"s_cselect_b32 {m.group(1)}, {m.group(2)}, {m.group(1)}"
            if x: self.append(("" if x.endswith(":") else "  ") + x)
        return self
def L(s): return list(A()(s))
def stamp(name):
    if not DIAG: return []
    if name == "entry": i = 0
    elif name in OPT["st"][:7]: i = 1 + OPT["st"].index(name)
    else: return []
    return [f"  s_memrealtime s[{84+2*i}:{85+2*i}]"]
def stamp_out():
    if not DIAG: return []
    if OPT.get("echo") is not None:
        i = OPT["echo"]
        return L(f"""
        s_waitcnt vmcnt(0)
        s_memrealtime s[100:101]
        s_waitcnt lgkmcnt(0)
        s_sub_u32 s28, s{84+2*i}, s84
        s_min_u32 s28, s28, 10000
        s_add_u32 s28, s28, 5000
        k_echo:
        s_memrealtime s[30:31]
        s_waitcnt lgkmcnt(0)
        s_sub_u32 s29, s30, s84
        s_cmp_lt_u32 s29, s28
        s_cbranch_scc1 k_echo
        """)
    r = L(f"""
    s_waitcnt vmcnt(0)
    s_memrealtime s[100:101]
    s_waitcnt lgkmcnt(0)
    s_lshl_b32 s28, s2, 2
    s_add_u32 s28, s28, s20
    s_lshl_b32 s28, s28, 6
    s_add_u32 s28, s28, {TS}
    v_mov_b32 v1, s28
    """)
    for i in range(9): r += [f"  v_mov_b32 v3, s{84+2*i}", f"  global_store_dword v1, v3, s[26:27] offset:{4*i if i < 8 else 48}"]
    r += ["  v_mov_b32 v3, s22", "  global_store_dword v1, v3, s[26:27] offset:60"]
    r += ["  s_getreg_b32 s28, hwreg(HW_REG_XCC_ID)", "  s_and_b32 s28, s28, 15", "  v_mov_b32 v3, s28", "  global_store_dword v1, v3, s[26:27] offset:56"]
    return r
def vr(b, n=4): return f"v[{b}:{b+n-1}]" if n > 1 else f"v{b}"
def ar(b, n=4): return f"a[{b}:{b+n-1}]" if n > 1 else f"a{b}"
def srd(d, lo, nbytes):
    return L(f"s_mov_b32 s{d}, s{lo}\ns_and_b32 s{d+1}, s{lo+1}, 0xffff\ns_mov_b32 s{d+2}, {nbytes}\ns_mov_b32 s{d+3}, 0x20000")
def isvm(x): return x.strip().startswith(("buffer_", "global_"))
def islg(x): return x.strip().startswith("ds_")
def tag(lines, t): return [x + f" ;#{t}" if (isvm(x) or islg(x)) else x for x in lines]
def W(vm=(), lg=()):
    vm = [vm] if isinstance(vm, str) else list(vm); lg = [lg] if isinstance(lg, str) else list(lg)
    return [f"  ;WAIT vm={','.join(vm)} lg={','.join(lg)}"]
def resolve(lines):
    out = []; vm = []; lg = []
    for x in lines:
        t = x.strip()
        if t.startswith(";MARK"):
            nm = t.split()[1]; vm.append(("m", nm)); lg.append(("m", nm)); continue
        if t.startswith(";WAIT"):
            m = re.match(r";WAIT vm=(\S*) lg=(\S*)", t); parts = []
            for names, hist, cn, mx in ((m.group(1), vm, "vmcnt", 63), (m.group(2), lg, "lgkmcnt", 15)):
                if not names: continue
                names = names.split(",")
                if names == ["*"]: parts.append(f"{cn}(0)"); continue
                idx = [i for i, h in enumerate(hist) if h[1] in names]
                for nme in names: assert any(h[1] == nme for h in hist), ("unknown tag", nme)
                n = sum(1 for h in hist[max(idx)+1:] if h[0] == "o")
                parts.append(f"{cn}({min(n, mx)})")
            out.append("  s_waitcnt " + " ".join(parts)); continue
        tg = re.search(r";#(\S+)", t); nm = tg.group(1) if tg else None
        kind = "n" if ";nocount" in t else "o"
        if isvm(x): vm.append((kind, nm))
        elif islg(x): lg.append((kind, nm))
        out.append(x)
    return out
def glue(lines):
    out = []; cur = []
    for x in lines:
        t = x.strip()
        if cur and not t.startswith(("s_cselect", "s_addc", "s_cbranch", "s_mov_b32")) and not t.endswith(":"):
            out.append(cur); cur = []
        if t.startswith(("s_cmp", "s_bitcmp")) or cur or (t.startswith("s_add_u32") and ";C" in t): cur.append(x)
        else: out.append([x])
    if cur: out.append(cur)
    return out
def place(M, lists):
    gaps = [[] for _ in M]
    for items, g0, g1 in lists:
        if not items: continue
        items = glue(items); n = g1 - g0 + 1
        for k, x in enumerate(items): gaps[g0 + k*n//len(items)] += x
    out = []
    for m, g in zip(M, gaps): out += [m] + g
    return out
def inter(main, groups, first=0):
    main = glue(main); out = []; n = len(main); G = len(groups); gi = 0
    for i, x in enumerate(main):
        while gi < G and i >= first + gi*(n - first)//G: out += groups[gi]; gi += 1
        out += x
    while gi < G: out += groups[gi]; gi += 1
    return out
def grp(lines, k):
    out = []; cur = []
    for x in lines:
        if isvm(x) and sum(map(isvm, cur)) == k:
            tail = []
            while cur and not isvm(cur[-1]): tail.insert(0, cur.pop())
            out.append(cur); cur = tail
        cur.append(x)
    if cur: out.append(cur)
    return out
OUTL = A()
def check(tg, vaddr, vdst, lead=False):
    if lead: a = L(f"v_cmp_ne_u32 vcc, s39, v{vdst}\ns_nop 1\ns_and_b64 vcc, vcc, s[56:57]\ns_cbranch_scc1 {tg}_slow\n{tg}_ok:\ns_barrier")
    else: a = L(f"v_cmp_ne_u32 vcc, s39, v{vdst}\ns_nop 1\ns_cmp_lg_u64 vcc, 0\ns_cbranch_scc1 {tg}_slow\n{tg}_ok:")
    OUTL(f"""
    {tg}_slow:
    s_mov_b32 s38, {OPT['spin']}
    {tg}_again:
    s_sleep {OPT.get('sleep', 4)}
    buffer_load_dword v{vdst}, v{vaddr}, s[16:19], 0 offen sc1
    s_sub_u32 s38, s38, 1
    s_cmp_eq_u32 s38, 0
    s_cbranch_scc1 {tg}_ok
    s_waitcnt vmcnt(0)
    v_cmp_ne_u32 vcc, s39, v{vdst}
    s_nop 1
    s_cmp_lg_u64 vcc, 0
    s_cbranch_scc1 {tg}_again
    s_branch {tg}_ok
    """)
    return a
def poll(vaddr, vdst, t, so="0"): return [f"  buffer_load_dword v{vdst}, v{vaddr}, s[16:19], {so} offen sc1 ;#{t}"]
def flag(soff, r=None):
    d, o = (3, 6) if r is None else (r, r + 1)
    return L(f"v_mov_b32 v{d}, s39\nv_lshlrev_b32 v{o}, 25, v7\nbuffer_store_dword v{d}, v{o}, s[16:19], {soff} offen sc1")

ACC = 8; CS = 128; AB = [148, 172]; BB = [196, 216]; VX = 236; VW = 242; LA = 247; LB = 249; VF = 255
L2B = CS
ONES = 240
def acc(T, t): return ACC + (T*5 + t)*4
def g1_mfma(buf, tr, first):
    M = []
    for T in range(6):
        for t in (range(5) if T % 2 == 0 else range(4, -1, -1)):
            x = vr(AB[buf] + 4*T); w = vr(BB[buf] + 4*t); d = vr(acc(T, t))
            p, q = (w, x) if tr else (x, w)
            M.append(f"  v_mfma_f32_16x16x32_bf16 {d}, {p}, {q}, {'0' if first else d}")
    return M
def g1_cs(buf):
    return [f"  v_mfma_f32_16x16x32_bf16 {vr(CS+4*t)}, {ar(ONES)}, {vr(BB[buf]+4*t)}, {'0' if buf == 0 else vr(CS+4*t)}" for t in range(5)]
def g1_reads(k):
    buf = k & 1; st = (k//2) % 3
    la, lb, so = (LA, LB, st*STAGE) if st < 2 else (L2B, L2B + 2, 0)
    R = []
    def b(t):
        u2, h2 = (64, 1280) if OPT["wrow"] else (1024, 256)
        base = lb + (2 if t == 4 else (t & 1)); off = so + buf*10240 + (u2 if t in (2, 3) else 0)
        return [f"  ds_read_b64_tr_b16 {vr(BB[buf]+4*t,2)}, v{base} offset:{off}",
                f"  ds_read_b64_tr_b16 {vr(BB[buf]+4*t+2,2)}, v{base} offset:{off+h2}"]
    def x(T): return [f"  ds_read_b128 {vr(AB[buf]+4*T)}, v{la+buf} offset:{so+T*2048}"]
    R += x(0)
    for t in range(5): R += b(t)
    for T in range(1, 6): R += x(T)
    return tag(R, f"r{k}")
def dma_x(c):
    so = (c % 3)*STAGE; Dm = []
    for j in range(6):
        if j in (0, 4): Dm.append(f"  s_add_u32 m0, s40, {so + 1024*j}")
        Dm.append(f"  buffer_load_dwordx4 v{VX+j}, s[8:11], s42 offen offset:{1024*(j%4)} lds")
    return tag(Dm, f"c{c}")
def dma_w(c):
    so = (c % 3)*STAGE; Dm = []
    for j in range(5):
        if OPT["wrow"]:
            if j in (0, 4): Dm.append(f"  s_add_u32 m0, s41, {so + 1024*j}")
            Dm.append(f"  buffer_load_dwordx4 v{VW+j}, s[12:15], s43 offen offset:{1024*(j%4)}{' nt' if (c == 0 and OPT.get('wnt')) else ''} lds")
            continue
        Dm.append(f"  s_add_u32 m0, s41, {so + 1024*j}")
        Dm.append(f"  buffer_load_dwordx4 v{VW+j}, s[12:15], s43 offen lds")
    return tag(Dm, f"c{c}")
def dma_next(c):
    if OPT["krot"]:
        first = "s_mov_b32 s44, s67" if c == 1 else "s_add_u32 s44, s44, 1\ns_cmp_eq_u32 s44, 10\ns_cselect_b32 s44, 0, s44"
        return L(first + f"""
        s_cmp_eq_u32 s44, s54
        s_addc_u32 s44, s44, 0
        s_cmp_eq_u32 s44, 10
        s_cselect_b32 s44, 0, s44
        s_lshl_b32 s42, s44, 7
        s_mul_i32 s43, s44, s45""")
    return L(f"s_cmp_le_u32 s54, {c-1}\ns_cselect_b32 s44, {c}, {c-1}\ns_lshl_b32 s42, s44, 7\ns_mul_i32 s43, s44, s45")
def breg(s, t): return ar(s*20 + 4*t)
def bstream(i0, n):
    out = []
    for i in range(i0, i0 + n):
        s, t = divmod(i, 5)
        if t == 0 or i == i0:
            out.append(f"  s_add_u32 s68, s46, {8*16384*s}")
            if s == 6: out += L(f"s_cmp_lt_u32 s20, 3\ns_cselect_b32 s68, s68, {OOB}")
        if t < 4: out.append(f"  buffer_load_dwordx4 {breg(s,t)}, v4, s[16:19], s68 offen offset:{1024*t} sc1 ;#B{s}")
        else: out.append(f"  buffer_load_dwordx4 {breg(s,t)}, v5, s[16:19], s68 offen sc1 ;#B{s}")
    return out
class Stream:
    def __init__(self, items): self.items = list(items)
    def take(self, n):
        it, self.items = self.items[:n], self.items[n:]
        assert len(it) == n
        out = []; k = 0
        while k < len(it):
            j = k
            while j + 1 < len(it) and it[j+1] == (it[j][0], it[j][1] + 1): j += 1
            out += (bstream if it[k][0] == "B" else wo_dma)(it[k][1], j - k + 1); k = j + 1
        return out
def wo_dma(i0, n):
    out = []
    for i in range(i0, i0 + n):
        j, t = divmod(i, 5)
        if t in (0, 4) or i == i0: out += [f"  s_add_u32 m0, s69, {20480*j + (4096 if t == 4 else 0)}", f"  s_add_u32 s71, s70, {65536*j}"]
        out.append(f"  buffer_load_dwordx4 v{4 if t < 4 else 5}, s[16:19], s71 offen offset:{1024*(t%4)} sc1 lds ;#wo{j}")
    return out
PRODS = [(0,3),(0,4),(1,3),(1,4),(1,5),(2,3),(2,4),(2,5)]
KVOF = [240, 241, 242, 243, 244, 245, 246, 255]

def setup_s():
    return L(f"""
    s_cmp_lt_u32 s22, 12
    s_cselect_b32 s83, {LOG2E}, {LOG2E | 0x80000000}
    s_mul_i32 s76, s21, 3
    s_add_u32 s76, s76, s51
    s_add_u32 s77, s76, 1
    """) + blk(80, 76, "h", 28, 29) + blk(81, 77, "h", 28, 29) + blk(78, 76, "q", 28, 29) + blk(79, 77, "q", 28, 29) + L(f"""
    s_cmp_lt_u32 s22, 12
    s_cselect_b32 s80, s78, s80
    s_cselect_b32 s81, s79, s81
    s_cmp_ge_u32 s76, 32
    s_cselect_b32 s80, {OOB}, s80
    s_cmp_ge_u32 s77, 32
    s_cselect_b32 s81, {OOB}, s81
    s_lshl_b32 s28, s51, 11
    s_add_u32 s82, s81, s28              ; row tile 4
    s_add_u32 s29, s80, 2048
    s_add_u32 s80, s80, s28              ; row tile 0
    s_cmp_eq_u32 s51, 0
    s_cselect_b32 s81, s29, s81          ; row tile 2
    s_mul_i32 s61, s23, 5
    s_mul_i32 s28, s52, 3
    s_add_u32 s62, s61, s28
    s_add_u32 s63, s62, 1
    s_add_u32 s61, s61, 2
    s_lshl_b32 s28, s23, 1
    s_add_u32 s28, s28, s52
    s_add_u32 s29, s28, 22
    s_add_u32 s30, s23, 43
    s_cmp_lt_u32 s22, 12
    s_cselect_b32 s62, s62, s28
    s_cselect_b32 s63, s63, s29
    s_cselect_b32 s61, s61, s30
    s_cselect_b32 s75, {OOB}, {FPD}
    s_cmp_eq_u32 s63, 43
    s_cselect_b32 s63, {OOB >> 13}, s63
    """) + cell(62, 62, 28) + cell(63, 63, 28) + cell(61, 61, 28) + L(f"""
    s_lshl_b32 s28, s52, 9
    s_add_u32 s61, s61, s28
    s_add_u32 s75, s75, s67
    """)
def setup_t():
    return L(f"""
    v_add_u32 v{VX}, s62, v4
    v_add_u32 v{VX+1}, s63, v4
    v_and_b32 v3, 1, v2
    v_lshlrev_b32 v3, 10, v3
    v_lshrrev_b32 v254, 1, v2
    v_lshl_add_u32 v3, v254, 8, v3
    v_lshl_add_u32 v3, v1, 4, v3
    v_add_u32 v{VX+2}, s61, v3
    v_mov_b32 v{VX+4}, 0x358637bd
    v_mov_b32 v{VX+5}, 0x358637bd
    """)
def setup_n0():
    a = A()
    a(f"""
    v_and_b32 v1, 15, v7
    v_lshrrev_b32 v2, 4, v7
    v_cmp_gt_u32 s[32:33], 8, v1
    s_cmp_eq_u32 s21, 10
    s_cselect_b32 s36, s51, 0
    s_lshl_b32 s37, s22, 1
    s_add_u32 s37, s37, s52
    s_lshl_b32 s37, s37, 12
    s_add_u32 s37, s37, {KVP}
    s_lshl_b32 s60, s20, 12
    s_add_u32 s60, s60, {KVX}
    v_and_b32 v254, 31, v7
    v_add_u32 v254, 224, v254
    """)
    for n, (kx, vy) in enumerate(PRODS):
        eoff = {3: -8, 4: 8, 5: 24}[vy]; o = 252
        a(f"""
        v_add_u32 v3, {4*kx}, v2
        v_cmp_le_u32 vcc, 5, v3
        v_add_u32 v{o}, {eoff}, v1
        v_cmp_gt_u32 s[62:63], 10, v3
        v_cndmask_b32 v253, 0, 20, vcc
        v_sub_u32 v{o}, v{o}, v253
        """)
        if vy == 3: a(f"v_cmp_eq_u32 vcc, 0, v1\nv_cndmask_b32 v253, v{o}, 0, vcc\nv_cndmask_b32 v{o}, v{o}, 20, vcc\nv_cmp_gt_u32 vcc, 20, v253")
        else: a(f"v_cmp_gt_u32 vcc, 20, v{o}")
        a(f"""
        v_mad_u32_u24 v{o}, v3, 21, v{o}
        s_and_b64 vcc, vcc, s[62:63]
        v_cndmask_b32 v{o}, v254, v{o}, vcc
        v_lshl_add_u32 v{o}, v{o}, 4, s60
        v_accvgpr_write_b32 a{244+n}, v{o}
        """)
    return list(a)
def setup_n():
    return L(f"s_mov_b32 s30, {LOG2E}\ns_mov_b32 s31, {LOG2E}") + [f"  v_accvgpr_read_b32 v{KVOF[n]}, a{244+n}" for n in range(8)]

def g1_main(tg, tr, st):
    a = A()
    pf = OPT["pf_t"] if tr else OPT["pf_n"]
    a += W("c0"); a("s_barrier"); a += stamp("k0")
    a += g1_reads(0) + W(lg="r0")
    mv = OPT["keep"]
    d0 = [] if mv >= 1 else ((d_pack_src() if tr else []) + d_cs())
    a += place(g1_mfma(0, tr, True) + g1_cs(0), [(g1_reads(1), 0, 17), (dma_x(2) + dma_w(2), 0, 33), (d0, 4, 34)])
    def spread(items, ks):
        g = glue(items); return {k: sum(g[i*len(g)//len(ks):(i+1)*len(g)//len(ks)], []) for i, k in enumerate(ks)}
    if tr:
        dfr = spread(d_misc() + setup_s(), [4, 5, 6, 7, 8, 9, 10, 11, 12])
        if mv < 2: dfr[2] = d_pack_dst()
    else: dfr = spread(d_misc(), [2, 3, 4])
    a += W(lg="r1")
    a += g1_cs(1)
    PKD, PKR, PKS = (OPT["pkd"], OPT["pkr"], OPT["pks"]) if tr else (None, None, {})
    pk_d = []
    for i in range(5):
        pk_d += [f"  s_add_u32 m0, s53, {896*i}", f"  buffer_load_dwordx4 v252, s[56:59], s55 offen offset:{128*i} nt lds ;#pk"]
    pk_r = []
    for t in range(5):
        if t: pk_r += L(f"s_cmp_eq_u32 s20, {4-t}\ns_cselect_b32 s28, 896, 0\nv_add_u32 v1, s28, v1\nv_add_u32 v2, s28, v2")
        pk_r += [f"  ds_read_b64_tr_b16 {ar(16+4*t,2)}, v1 offset:{32*t}", f"  ds_read_b64_tr_b16 {ar(18+4*t,2)}, v2 offset:{32*t}"]
    pk_s = [f"  buffer_store_dwordx4 {ar(16+4*t)}, v{4 if t < 4 else 5}, s[16:19], s{60 if c == 0 else 53} offen offset:{1024*(t%4)} sc1 ;#ps" for t in range(5) for c in range(2 if OPT["mode"] == "dup" else 1)]
    pk_r.append("  s_add_u32 s53, s60, 8192")
    cs_st = L(f"""
    v_cmp_le_u32 vcc, 16, v7
    v_cmp_le_u32 s[28:29], 32, v7
    v_cmp_le_u32 s[30:31], 48, v7
    v_cndmask_b32 v{CS+17}, v{CS}, v{CS+4}, vcc
    v_cndmask_b32 v{CS+17}, v{CS+17}, v{CS+8}, s[28:29]
    v_cndmask_b32 v{CS+17}, v{CS+17}, v{CS+12}, s[30:31]
    buffer_store_dword v{CS+17}, v253, s[16:19], s64 offen sc1 ;#cs
    buffer_store_dword v{CS+16}, v254, s[16:19], s64 offen sc1 ;#cs
    """) + [f"  v_add_u32 v{L2B+i}, {2*STAGE}, v{LA+i}" for i in range(5)]
    auxa = L(f"""
    v_lshlrev_b32 v3, 4, v0
    v_add_u32 v252, s74, v3
    v_add_u32 v253, 4096, v252
    v_cmp_le_u32 vcc, 144, v0
    v_add_u32 v3, s65, v3
    v_cmp_le_u32 s[28:29], s66, v0
    v_cndmask_b32 v253, v253, v3, vcc
    v_add_u32 v3, {RSTD - NEGM - 768}, v3
    v_cmp_le_u32 vcc, 240, v0
    v_cndmask_b32 v253, v253, v3, s[28:29]
    v_mov_b32 v3, {OOB}
    v_cndmask_b32 v253, v253, v3, vcc
    v_and_b32 v1, 15, v7
    v_lshrrev_b32 v2, 4, v7
    """)
    polx = [f"  s_xor_b32 s{r}, s{r}, s3" for r in ((46, 70, 80, 81, 82) if OPT["mode"] == "dup" else (80, 81, 82))]
    aux = L(f"""
    s_mov_b32 m0, s72
    s_nop 0
    buffer_load_dwordx4 v252, s[16:19], 0 offen sc1 lds ;#aux
    s_add_u32 m0, s72, 4096
    s_nop 0
    buffer_load_dwordx4 v253, s[16:19], 0 offen sc1 lds ;#aux
    """) + flag("s73")
    y1 = L(f"v_lshlrev_b32 v252, 2, v0\nv_add_u32 v252, {AUXC}, v252") + tag([f"  ds_read_b32 v{CS+i}, v252 offset:{640*i}" for i in range(10)], "y1")
    y2 = [f"  v_add_f32 v{CS}, v{CS}, v{CS+i}" for i in range(1, 10)] + [f"  ds_write_b32 v252, v{CS} offset:{CSL-AUXC} ;#y2"]
    rd = L("s_mul_i32 s28, s51, 384\ns_add_u32 s28, s28, %d" % AUXM)
    if tr:
        rd += L(f"v_lshlrev_b32 v6, 4, v2\nv_add_u32 v252, s34, v6\nv_add_u32 v253, s35, v6\nv_lshl_add_u32 v3, v1, 2, s28")
        rd += [f"  ds_read_b128 {vr(CS+4*t)}, v252 offset:{64*t}" for t in range(4)] + [f"  ds_read_b128 {vr(CS+16)}, v253"]
        for T in range(6): rd += [f"  ds_read_b32 v{AB[0]+4*T}, v3 offset:{64*T}", f"  ds_read_b32 v{AB[0]+4*T+1}, v3 offset:{768+64*T}"]
    else:
        rd += L(f"v_lshlrev_b32 v6, 2, v1\nv_add_u32 v252, s34, v6\nv_lshl_add_u32 v3, v2, 4, s28")
        rd += [f"  ds_read_b32 v{CS+4*t}, v252 offset:{64*t}" for t in range(5)]
        for T in range(6): rd += [f"  ds_read_b128 {vr(AB[0]+4*T)}, v3 offset:{64*T}"]
        for T in range(5): rd += [f"  ds_read_b128 {vr(BB[0]+4*T)}, v3 offset:{768+64*T}"]
        rd += [f"  ds_read_b128 {vr(VX)}, v3 offset:{768+64*5}"]
    su = setup_t() if tr else setup_n()
    e0 = glue(setup_n0()); early = {} if tr else {6 + i: sum(e0[i*len(e0)//6:(i+1)*len(e0)//6], []) for i in range(6)}
    nb = 0; fb, pb = (OPT["flagb"] if tr else OPT["flagb_n"]), OPT["pollb"]; nps = 0
    for k in range(1, 20):
        c = (k - 1)//2
        M = g1_mfma(k & 1, tr, False)
        ls = []
        if k & 1:
            if c == pb and tr: a("k_t_join:")
            if k > 1: a += W(lg=[f"r{k}"] + (["y2"] if k == 19 else []) + (["pr"] if k - 1 == PKR else []))
            a.append(M.pop(0))
            vm = [f"c{c+1}"] if c < 9 else []
            if c == fb: vm += ["cs", "ss"] + (["ps"] if tr else [])
            if k == PKR: vm += ["pk"]
            if c == pb + 1: vm += ["pa"]
            if c == 8: vm += ["aux"]
            if vm: a += W(vm)
            if c == pb + 1: a += check(tg + "_sa", 6, VF)
            a("s_barrier")
            if c == 0: a += stamp("b0")
            if c == 7: a += stamp("tail")
            a += stamp(f"b{c}") if c > 0 else []
            if c == fb: ls.append((flag("s49"), 0, 2))
            if c == pb: ls.append((L(f"v_lshlrev_b32 v6, {OPT['fash']}, v0\nv_add_u32 v6, {FA}, v6") + poll(6, VF, "pa"), 0, 2))
            if OPT["pol"] != "race":
                if c == pb + 1: ls.append((polx, 0, 2))
            else:
                assert OPT["mode"] == "rows"
                if c == 7: ls.append((L(f"v_mov_b32 v{CS+18}, {PW}\nbuffer_load_dword v{CS+19}, v{CS+18}, s[16:19], 0 offen sc1 ;#aux"), 0, 1))
                if c == 8: ls.append((L(f"v_readfirstlane_b32 s3, v{CS+19}\ns_and_b32 s3, s3, 8192") + polx, 22, 28))
            if c == 7: ls.append(([x for x in aux], 0, 2))
            dx, dw = (dma_next(c+3) + dma_x(c+3), dma_w(c+3)) if c + 3 <= 9 else ([], [])
            if k == PKD: ls += [(pk_d, 0, 9), (dx[:-4], 14, 28)]
            else: ls.append((dx, 1, 27))
            if k == PKR: ls.append((tag(pk_r, "pr"), 10, 26))
            if c == 0: ls.append((cs_st, 12, 27))
            if c == 8: ls.append((y1, 8, 22))
        else:
            a += W(lg=[f"r{k}"] + (["y1"] if c == 8 else []) + (["pr"] if k - 1 == PKR else []))
            if k - 1 == PKD: ls.append((dx[-4:] + dw, 0, 28))
            else: ls.append((dw, 1, 27))
            if c == 6: ls.append((auxa, 17, 28))
            if c == 8: ls.append((y2, 0, 12))
        if PKS.get(k): ls.append((pk_s[nps:nps+PKS[k]], 2, 28 if nps + PKS[k] < len(pk_s) else 18)); nps += PKS[k]
        if k < 19: ls.insert(0, (g1_reads(k+1), 1 if k & 1 else 0, 17))
        else: ls.insert(0, (rd, 0, 22))
        if k == 16: ls.append((su, 18, 28))
        if k in early: ls.append((early[k], 4, 28))
        if k in dfr: ls.append((dfr[k], 0 if k == 2 else 6, 28))
        if k == OPT["cpf2"]:
            ls.append((L(f"v_add_u32 v{CS+8}, s50, v4\nv_min_u32 v{CS+8}, CODE_MAX, v{CS+8}\ns_cmp_gt_u32 s50, CODE_MAX\ns_cbranch_scc1 {tg}_c2\nglobal_load_dwordx4 {vr(CS+12)}, v{CS+8}, s[0:1] ;nocount\n{tg}_c2:"), 29 - (k & 1), 29 - (k & 1)))
        if pf.get(k):
            assert c > pb
            assert all(x[0] == "B" for x in st.items[:pf[k]])
            ls.append((st.take(pf[k]), 3, 28))
        a += place(M, ls)
    a += stamp("lend")
    return a

def stats_math():
    a = A(); src = 8; tmp = 20; ac = 44
    for i in range(12):
        a(f"v_lshlrev_b32 v{tmp+2*i}, 16, v{src+i}\nv_and_b32 v{tmp+2*i+1}, 0xffff0000, v{src+i}")
    a(f"v_pk_add_f32 {vr(ac,2)}, {vr(tmp,2)}, {vr(tmp+2,2)}")
    for i in range(2, 12): a(f"v_pk_add_f32 {vr(ac,2)}, {vr(ac,2)}, {vr(tmp+2*i,2)}")
    def red():
        a(f"v_add_f32 v{ac}, v{ac}, v{ac+1}")
        for r in (8, 4, 2, 1): a(f"v_add_f32_dpp v{ac}, v{ac}, v{ac} row_ror:{r} row_mask:0xf bank_mask:0xf")
        a(f"v_mov_b32 v{ac+1}, v{ac}\nv_permlane16_swap_b32 v{ac}, v{ac+1}\nv_add_f32 v{ac}, v{ac}, v{ac+1}")
    red()
    a(f"v_mul_f32 v46, 0xbacccccd, v{ac}")
    a(f"v_cndmask_b32 v47, 0, v46, s[32:33]")
    for i in range(8): a(f"v_pk_add_f32 {vr(tmp+2*i,2)}, {vr(tmp+2*i,2)}, v[46:47] op_sel_hi:[1,0]")
    for i in range(8, 12): a(f"v_pk_add_f32 {vr(tmp+2*i,2)}, {vr(tmp+2*i,2)}, v[46:47] op_sel:[0,1] op_sel_hi:[1,1]")
    a(f"v_pk_mul_f32 {vr(ac,2)}, {vr(tmp,2)}, {vr(tmp,2)}")
    for i in range(1, 12): a(f"v_pk_fma_f32 {vr(ac,2)}, {vr(tmp+2*i,2)}, {vr(tmp+2*i,2)}, {vr(ac,2)}")
    red()
    a(f"""
    v_mov_b32 v{ac+1}, 0x3727c5ac
    v_fmac_f32 v{ac+1}, 0x3acccccd, v{ac}
    v_rsq_f32 v{ac+1}, v{ac+1}
    v_and_b32 v48, 31, v7
    v_cmp_eq_u32 vcc, 0, v48
    v_lshrrev_b32 v49, 5, v7
    v_lshlrev_b32 v49, 2, v49
    v_cndmask_b32 v46, v{ac+1}, v46, vcc
    v_lshl_add_u32 v49, v48, 13, v49
    v_cmp_gt_u32 vcc, 2, v48
    v_mov_b32 v50, {OOB}
    s_lshl_b32 s28, s48, 3
    s_add_u32 s28, s28, {NEGM}
    v_cndmask_b32 v49, v50, v49, vcc
    buffer_store_dword v46, v49, s[16:19], s28 offen sc1 ;#ss
    s_lshl_b32 s28, s2, 8
    s_add_u32 s28, s28, {KVP}
    s_cmp_eq_u32 s20, 1
    s_cselect_b32 s28, s28, {OOB}
    v_lshlrev_b32 v49, 2, v7
    v_mov_b32 v50, 0
    buffer_store_dword v50, v49, s[16:19], s28 offen sc1 ;#ss
    """)
    return list(a)

def prologue():
    a = A()
    a += stamp("entry")
    a(f"""
    s_load_dwordx16 s[60:75], s[0:1], 0
    s_load_dwordx2 s[26:27], s[0:1], 64
    s_cmp_ge_u32 s2, 256
    s_cbranch_scc1 k_end
    s_and_b32 s3, s2, 7
    s_lshl_b32 s3, s3, 5
    s_lshr_b32 s21, s2, 3
    s_add_u32 s3, s3, s21                ; lin
    s_mul_i32 s35, {"s3" if OPT["slin"] else "s2"}, 10240
    v_lshrrev_b32 v1, 5, v0
    v_mul_u32_u24 v1, {1280-512}, v1
    v_lshl_add_u32 v52, v0, 4, v1
    v_and_b32 v1, 16, v0
    v_lshl_add_u32 v53, v1, 26, v52      ; lanes whose third piece is past the row: out of range
    s_mov_b32 s10, {S*D*2}
    s_mov_b32 s11, 0x20000
    """)
    ld = L("s_waitcnt lgkmcnt(0)\ns_mov_b32 s8, s60\ns_and_b32 s9, s61, 0xffff") + stamp("karg")
    for j in range(3): ld.append(f"  buffer_load_dwordx4 {vr(8+4*j)}, v{53 if j == 2 else 52}, s[8:11], s35 offen offset:{512*j} ;#sl")
    if OPT["head"] == 0: a += ld
    a(f"""
    s_getpc_b64 s[36:37]
    v_cmp_eq_u32 s[32:33], 0, v1
    v_lshrrev_b32 v1, 6, v0
    v_and_b32 v7, 63, v0                 ; lane
    v_readfirstlane_b32 s20, v1          ; wave
    s_cmp_lt_u32 s3, 138
    s_cselect_b32 s28, 0, 138
    s_cselect_b32 s29, 10923, 13108
    s_cselect_b32 s30, 6, 5
    s_cselect_b32 s31, 0, 6
    s_sub_u32 s28, s3, s28
    s_mul_i32 s22, s28, s29
    s_lshr_b32 s22, s22, 16
    s_mul_i32 s30, s22, s30
    s_sub_u32 s21, s28, s30
    s_add_u32 s21, s21, s31              ; rb
    s_cmp_ge_u32 s3, 253
    s_cselect_b32 s21, 11, s21
    s_min_u32 s54, s21, 9                ; start chunk
    """)
    xa = A()
    xa(f"""
    s_lshl_b32 s28, s21, 2
    s_add_u32 s28, s28, s20
    s_mul_i32 s28, s28, {48*1280}
    v_lshrrev_b32 v1, 3, v7              ; r8
    v_lshrrev_b32 v2, 1, v1
    v_and_b32 v3, 7, v7
    v_xor_b32 v2, v2, v3
    v_mul_u32_u24 v1, 1280, v1
    v_lshl_add_u32 v252, v3, 4, v1
    v_add_u32 v1, s28, v1
    v_lshl_add_u32 v{VX}, v2, 4, v1
    v_xor_b32 v2, 4, v2
    v_lshl_add_u32 v6, v2, 4, v1
    """)
    for j in range(1, 6): xa(f"v_add_u32 v{VX+j}, {j*10240 - 1024*(j%4)}, v{6 if j & 1 else VX}")
    xa("s_mul_i32 s40, s20, 6144\ns_lshl_b32 s42, s54, 7")
    wa = A()
    wa(f"""
    s_sub_u32 s28, 22, s22
    s_cmp_lt_u32 s3, 138
    s_cselect_b32 s22, s22, s28
    s_mul_i32 s28, s22, 43
    s_lshr_b32 s28, s28, 8               ; g = p/6
    s_mul_i32 s29, s28, 6
    s_sub_u32 s29, s22, s29              ; r
    s_mul_i32 s30, s28, 3
    s_add_u32 s30, s30, s29
    s_add_u32 s30, s30, 9                ; w1: 12+3g+r-3
    s_lshl_b32 s31, s28, 1
    s_add_u32 s31, s31, s29
    s_sub_u32 s31, s31, 1                ; kv: 2g+r-1
    s_add_u32 s28, s28, 8                ; q
    s_cmp_lt_u32 s29, 3
    s_cselect_b32 s22, s31, s30
    s_cmp_eq_u32 s29, 0
    s_cselect_b32 s22, s28, s22
    s_cmp_ge_u32 s3, 253
    s_cselect_b32 s22, 12, s22
    s_cmp_lt_u32 s22, 12
    s_cselect_b32 s12, s62, s68
    s_cselect_b32 s13, s63, s69
    s_cselect_b32 s14, {D*3*D*2}, {D*F*2}
    s_cselect_b32 s50, 3840, 3456        ; W row stride
    s_cselect_b32 s28, 8, 12
    s_and_b32 s13, s13, 0xffff
    s_mov_b32 s15, 0x20000
    s_lshl_b32 s45, s50, 6
    s_sub_u32 s23, s22, s28
    s_mul_i32 s29, s23, 320
    s_mul_i32 s30, s22, 160
    s_add_u32 s30, s30, 1280
    s_cmp_lt_u32 s22, 8
    s_cselect_b32 s29, s30, s29
    s_cselect_b32 s30, 1200, 0
    s_cselect_b32 s31, -80, 0
    s_lshl_b32 s28, s20, 4
    s_mul_i32 s28, s28, s50
    s_add_u32 s29, s29, s28
    s_mul_i32 s41, s20, 5120
    s_add_u32 s41, s41, {WOFF}
    s_mul_i32 s43, s54, s45
    s_movk_i32 s28, -20
    v_xor_b32 v54, 2, v7                 ; rows 8..15 swap adjacent 32-byte units
    v_lshrrev_b32 v55, 4, v7
    v_and_b32 v55, 2, v55
    v_xor_b32 v55, v55, v7
    """)
    dw = grp(dma_w(0), 1); wj = []
    for jj in range(5):
        src = 7 if jj < 2 else 55 if jj == 2 else 54
        b = A()
        if jj: b(f"v_add_u32 v1, {64*jj}, v{src}")
        q = 1 if jj else 7
        b(f"""
        v_mul_u32_u24 v2, 3277, v{q}
        v_lshrrev_b32 v2, 16, v2
        v_mad_i32_i24 v3, v2, s28, v{q}
        v_mul_u32_u24 v2, s50, v2
        v_lshl_add_u32 v2, v3, 4, v2
        v_mul_u32_u24 v3, 205, v3
        v_bfe_u32 v1, v3, 10, 1
        v_lshrrev_b32 v3, 11, v3
        v_mad_u32_u24 v2, v1, s30, v2
        v_mad_i32_i24 v2, v3, s31, v2
        v_add_u32 v{VW+jj}, s29, v2
        """)
        if jj < 3: b("s_sub_u32 s29, s29, 1024")
        if jj == 3: b("s_add_u32 s29, s29, 3072")
        wj.append(list(b))
    if OPT["wfirst"]:
        a += wa
        for jj in range(5): a += wj[jj] + dw[jj]
        a += stamp("w0i") + xa
        first = grp(dma_x(0), 1)
    else:
        if OPT["head"] == 0: a += xa + dma_x(0) + wa + sum(wj, [])
        elif OPT["head"] == 1: a += xa + ld + dma_x(0) + wa + sum(wj, [])
        elif OPT["head"] == 2: a += wa[:20] + ld + xa + dma_x(0) + wa[20:] + sum(wj, [])
        elif OPT["head"] == 4: a += wa[:20] + xa + ld + dma_x(0) + wa[20:] + sum(wj, [])
        elif OPT["head"] == 5:
            ptr = [x for x in wa if re.match(r"\s*s_(cselect|and)_b32 s1[23],", x)]
            a += xa + [x for x in wa if x not in ptr] + ld + dma_x(0) + L("s_cmp_lt_u32 s22, 12") + ptr + sum(wj, [])
        elif OPT["head"] == 3: a += xa + ld[:3] + wa + sum(wj, []) + ld[3:] + dma_x(0)
        first = dw
    a(f"""
    s_load_dword s39, s[26:27], 0
    v_lshlrev_b32 v4, 4, v7
    s_lshl_b32 s48, {"s3" if OPT["slin"] else "s2"}, 2
    s_add_u32 s48, s48, s20              ; stats job
    s_and_b32 s36, s36, 0xffffff00
    s_lshr_b32 s28, s2, 3
    s_lshl_b32 s29, s20, 5
    s_add_u32 s28, s28, s29
    s_add_u32 s28, s28, 2
    s_mov_b64 s[0:1], s[36:37]
    s_lshl_b32 s50, s28, 10
    s_cmp_ge_u32 s28, CODE_KB
    s_cbranch_scc1 k_nocp
    v_add_u32 v1, s50, v4
    v_min_u32 v1, CODE_MAX, v1
    global_load_dwordx4 v[128:131], v1, s[0:1] ;nocount
    k_nocp:
    """)
    su = A()
    su += srd(16, 26, WS_USED)
    su(f"""
    s_lshr_b32 s51, s20, 1               ; wr
    s_and_b32 s52, s20, 1                ; wc
    v_lshrrev_b32 v59, 4, v7             ; g
    v_bfe_u32 v56, v7, 2, 2              ; rr
    v_and_b32 v57, 3, v7                 ; c4
    v_and_b32 v58, 1, v59                ; g&1
    v_and_b32 v3, 15, v7                 ; m
    v_lshrrev_b32 v6, 1, v3
    v_xor_b32 v6, v6, v59
    s_mul_i32 s28, s51, 12288
    v_lshl_add_u32 v55, v3, 7, s28
    v_lshl_add_u32 v{LA}, v6, 4, v55
    v_xor_b32 v6, 4, v6
    v_lshl_add_u32 v{LA+1}, v6, 4, v55
    v_lshl_add_u32 v55, v59, 3, v56
    v_mul_u32_u24 v55, 320, v55
    v_lshl_add_u32 v55, v57, 3, v55
    v_add_u32 v55, {WOFF}, v55
    s_cmp_lt_u32 s22, 8
    s_cselect_b32 s34, 5, 6
    s_cselect_b32 s35, 9, 5
    s_cmp_eq_u32 s52, 0
    s_cselect_b32 s34, 0, s34
    s_cselect_b32 s35, 4, s35
    s_add_u32 s30, s34, 1
    """)
    for i, sreg in enumerate((34, 30, 35)):
        su(f"v_xor_b32 v6, s{sreg}, v58\nv_lshl_add_u32 v{LB+i}, v6, 5, v55")
    su(f"""
    v_mov_b32 v6, 0x3f803f80
    v_accvgpr_write_b32 a{ONES}, v6
    v_accvgpr_write_b32 a{ONES+1}, v6
    v_accvgpr_write_b32 a{ONES+2}, v6
    v_accvgpr_write_b32 a{ONES+3}, v6
    """)
    mv = OPT["keep"]
    if mv >= 1: su += d_pack_src() + d_cs()
    if mv >= 2: su += d_pack_dst()
    a += inter(su, first, OPT["sufirst"])
    a += stamp("c0i")
    a += dma_next(1)
    a += W("sl")
    a += stamp("sl")
    a += inter(stats_math(), grp(dma_x(1) + dma_w(1), 1))
    a += dma_next(2)
    a("s_waitcnt lgkmcnt(0)\ns_mul_i32 s39, s39, 1664525\ns_add_u32 s39, s39, 1013904223")
    a += stamp("pend")
    return a

def d_pack_src():
    return L(f"""
    s_sub_u32 s36, s22, 8
    s_mul_i32 s36, s36, 11
    s_add_u32 s36, s36, s21
    s_lshr_b32 s37, s36, 1               ; ks
    s_and_b32 s38, s36, 1
    s_cmp_lt_u32 s37, 54
    s_cselect_b32 s56, s70, s64
    s_cselect_b32 s57, s71, s65
    s_cmp_lt_u32 s37, 54
    s_cselect_b32 s58, {F*D*2}, {D*D*2}
    s_cmp_lt_u32 s37, 54
    s_cselect_b32 s28, 0, 54
    s_and_b32 s57, s57, 0xffff
    s_mov_b32 s59, 0x20000
    s_sub_u32 s28, s37, s28
    s_mul_i32 s28, s28, {32*1280}
    s_mul_i32 s29, s38, 640
    s_add_u32 s55, s28, s29
    s_mul_i32 s29, s20, 10240
    s_add_u32 s55, s55, s29              ; pack src (8 rows per wave)
    s_mul_i32 s53, s20, 5120
    s_add_u32 s53, s53, {PACKL}
    """)
def d_cs():
    return L(f"""
    s_lshl_b32 s34, s34, 6
    s_lshl_b32 s35, s35, 6
    v_lshl_add_u32 v253, v7, 2, s34
    v_lshl_add_u32 v254, v7, 2, s35
    v_and_b32 v6, 48, v7
    v_lshl_add_u32 v254, v6, 22, v254
    s_add_u32 s34, s34, {CSL}
    s_add_u32 s35, s35, {CSL}
    s_mul_i32 s62, s22, 6400
    s_add_u32 s62, s62, {CSP}
    s_mul_i32 s64, s21, 640
    s_add_u32 s64, s64, s62
    s_cmp_ge_u32 s21, 10
    s_cselect_b32 s64, {OOB}, s64
    s_cmp_eq_u32 s51, 1
    s_cselect_b32 s64, {OOB}, s64
    """)
def d_pack_dst():
    return L(f"""
    v_add_u32 v5, 4096, v4
    s_mul_i32 s28, s37, 205
    s_lshr_b32 s28, s28, 10              ; c
    s_mul_i32 s30, s28, 5
    s_sub_u32 s30, s37, s30              ; r
    s_lshl_b32 s29, s30, 3
    s_lshr_b32 s47, 0x01001600, s29      ; r -> 0, 22, -, 1
    s_and_b32 s47, s47, 255
    s_cmp_eq_u32 s30, 4
    s_cselect_b32 s47, 23, s47
    s_lshl_b32 s29, s28, 1
    s_add_u32 s47, s47, s29
    s_add_u32 s28, s28, 43
    s_cmp_eq_u32 s30, 2
    s_cselect_b32 s31, 1, 0
    s_cselect_b32 s47, s28, s47
    s_cmp_ge_u32 s37, 54
    s_cselect_b32 s31, 1, s31
    s_cselect_b32 s47, s37, s47          ; storage index
    s_lshl_b32 s28, 5120, s31            ; per g>>1
    s_mul_i32 s29, s31, 4608
    s_add_u32 s29, s29, 512              ; per g&1
    s_mul_i32 s30, s31, -9728
    s_add_u32 s30, s30, 10240
    v_lshrrev_b32 v3, 5, v7
    v_mul_u32_u24 v1, s28, v3
    v_bfe_u32 v3, v7, 4, 1
    v_mad_u32_u24 v1, v3, s29, v1
    v_bfe_u32 v3, v7, 2, 2
    v_lshl_add_u32 v1, v3, 7, v1
    v_and_b32 v3, 3, v7
    v_lshl_add_u32 v1, v3, 3, v1
    s_mul_i32 s28, s20, 1056
    s_add_u32 s28, s28, {PACKL}
    v_add_u32 v1, s28, v1
    v_add_u32 v2, s30, v1
    s_lshl_b32 s28, s38, 2
    s_add_u32 s28, s28, s20              ; ct
    s_add_u32 s28, s28, {WPP}
    s_lshl_b32 s28, s28, 21
    s_lshl_b32 s29, s47, 14
    s_add_u32 s28, s28, s29
    s_bfe_u32 s29, s47, 0x10001
    s_mul_i32 s29, s29, {3072 + 8192}
    s_add_u32 s28, s28, s29
    s_cmp_ge_u32 s36, 148
    s_cselect_b32 s60, {OOB}, s28
    """)
def d_misc():
    return L(f"""
    s_lshl_b32 s49, s2, {OPT['fash']}
    s_add_u32 s49, s49, {FA}
    s_cmp_eq_u32 s20, 0
    s_cselect_b32 s49, s49, {OOB}        ; A flag (wave 0)
    v_add_u32 v5, 4096, v4
    """) + srd(4, 72, S*D*2) + L(f"""
    s_mul_i32 s74, s22, 6400
    s_add_u32 s74, s74, {CSP}
    s_add_u32 s73, s2, s20
    s_cmp_eq_u32 s73, 0
    s_cselect_b32 s73, 0, {OOB}          ; epoch word (wg0 wave0)
    s_and_b32 s24, s2, 6
    s_lshl_b32 s24, s24, 2
    s_lshr_b32 s28, s2, 5
    s_add_u32 s24, s24, s28              ; row group of phase 2
    s_bfe_u32 s25, s2, 0x20003
    s_and_b32 s28, s2, 1
    s_lshl_b32 s28, s28, 2
    s_add_u32 s25, s25, s28              ; column tile of phase 2
    s_add_u32 s29, s25, {WPP}
    s_lshl_b32 s29, s29, 21
    s_and_b32 s47, s24, 1
    s_lshl_b32 s28, s20, 1
    s_add_u32 s47, s47, s28              ; first storage index of this wave: 2*wave + parity
    s_lshl_b32 s28, s47, 14
    s_add_u32 s46, s29, s28
    s_mul_i32 s28, s52, {3072 + 8192}
    s_add_u32 s46, s46, s28              ; B stream first
    s_lshl_b32 s28, s20, 14
    s_add_u32 s70, s29, s28
    s_mul_i32 s28, s51, {3072 + 8192}
    s_sub_u32 s70, s70, s28
    s_add_u32 s70, s70, {54*16384 + 3072 + 8192} ; wo src
    s_mul_i32 s69, s20, 5120             ; wo lds base
    s_lshl_b32 s72, s20, 10
    s_add_u32 s72, s72, {AUXC}
    s_mul_i32 s65, s21, 768
    s_add_u32 s65, s65, {NEGM - 144*16}
    s_movk_i32 s66, 192
    s_mul_i32 s67, s22, 12
    s_add_u32 s67, s67, s21
    s_lshl_b32 s67, s67, 7
    s_add_u32 s67, s67, {FP}
    s_cmp_eq_u32 s20, 0
    s_cselect_b32 s67, s67, {OOB}
    """)

def zipw(*ls):
    keyed = []
    for li, l in enumerate(ls):
        for j, x in enumerate(l): keyed.append(((j + 0.5)/len(l), li, j, x))
    keyed.sort(key=lambda t: t[:3])
    return [y for k in keyed for y in k[3]]
def epi_t(kind, st):
    RC = AB[0]; PK = AB[1]; TMP = BB[0]
    e = A()
    for T in range(6):
        c = RC + 4*T
        e(f"v_mul_f32 v{c+2}, s83, v{c+1}")
        if kind == "silu": e(f"v_rcp_f32 v{c+3}, v{c+1}")
    blocks = [[(T, i) for T in Ts for i in idx] for idx in ((0, 1, 2, 3), (4, 5, 6, 7)) for Ts in ((0, 1), (2, 3), (4, 5))]
    blocks.append([(T, i) for T in range(6) for i in (8, 9)])
    nxt = lambda T: f"  s_mov_b32 s48, s{81 if T == 1 else 82}" if T in (1, 3) else "  s_add_u32 s48, s48, 1024"
    pend = []
    for bi, blk in enumerate(blocks):
        V = []; n = len(blk)
        u = lambda k: acc(blk[k][0], 0) + 2*blk[k][1]
        c = lambda k: RC + 4*blk[k][0]
        for k in range(n): V.append(f"  v_pk_fma_f32 {vr(u(k),2)}, {vr(CS+2*blk[k][1],2)}, {vr(c(k),2)}, {vr(u(k),2)} op_sel_hi:[1,0,1]")
        for k in range(n): V.append(f"  v_pk_mul_f32 {vr(TMP+2*k,2)}, {vr(u(k),2)}, {vr(c(k)+2,2)} op_sel_hi:[1,0]")
        if kind == "silu":
            for k in range(2*n): V.append(f"  v_exp_f32 v{TMP+k}, v{TMP+k}")
            for k in range(n): V.append(f"  v_pk_fma_f32 {vr(TMP+2*k,2)}, {vr(TMP+2*k,2)}, {vr(c(k)+2,2)}, {vr(c(k)+2,2)} op_sel:[0,1,1] op_sel_hi:[1,1,1]")
            for k in range(2*n): V.append(f"  v_rcp_f32 v{TMP+k}, v{TMP+k}")
            fin = lambda k: f"  v_pk_mul_f32 {vr(u(k),2)}, {vr(u(k),2)}, {vr(TMP+2*k,2)}"
        else:
            for k in range(2*n): V.append(f"  v_exp_f32_e64 v{TMP+k}, v{TMP+k} clamp")
            for k in range(n): V.append(f"  v_pk_fma_f32 {vr(u(k),2)}, {vr(u(k),2)}, {vr(c(k),2)}, 1.0 op_sel:[0,1,0] op_sel_hi:[1,1,0]")
            for k in range(2*n): V.append(f"  v_max_f32 v{u(k//2)+(k&1)}, v{u(k//2)+(k&1)}, v{TMP+k}")
            fin = lambda k: f"  v_pk_add_f32 {vr(u(k),2)}, {vr(u(k),2)}, {vr(VX+4,2)}"
        items = pend + grp(st.take(OPT["epi"][bi]), 1)
        if bi == OPT["f1blk"]: items.insert(len(pend) + OPT["f1pos"], W("sa") + L("s_barrier") + flag("s75") + stamp("f1"))
        ins = {}
        for k, x in enumerate(items): ins[5 + (k*(len(V) - 6)//len(items))//2*2] = x
        for i, v in enumerate(V):
            e.append(v)
            if i in ins: e += ins[i]
        p = PK + 12*(bi & 1); tg = " ;#sa" if bi < 3 else ""
        if bi in (0, 3, 6): e("s_mov_b32 s48, s80")
        pend = []
        for q in range(n//4):
            for k in range(4*q, 4*q + 4): e.append(fin(k))
            for k in range(4*q, 4*q + 4): e(f"v_cvt_pk_bf16_f32 v{p+k}, v{u(k)}, v{u(k)+1}")
            if bi < 6:
                T = blk[4*q][0]
                stv = [f"  buffer_store_dwordx4 {vr(p+4*q)}, v{VX + bi//3}, s[16:19], s48 offen sc1{tg}"]
                if T < 5: stv.append(nxt(T))
                if q == 0: e += stv
                else: pend.append(stv)
            else:
                e(f"v_permlane16_swap_b32 v{p+4*q}, v{p+4*q+2}\nv_permlane16_swap_b32 v{p+4*q+1}, v{p+4*q+3}")
                e(f"buffer_store_dwordx4 {vr(p+4*q)}, v{VX+2}, s[16:19], s48 offen sc1")
                if q < 2: e.append(nxt(2*q+1))
    return resolve(e)

def epi_kv(st):
    a = A()
    NM = AB[0]; TMP = BB[1]; FR = AB[1]; DD = ACC
    def RSf(T): return BB[0] + 4*T if T < 5 else VX
    a(f"""
    v_mov_b32 v{TMP+12}, 0x358637bd
    v_mov_b32 v{TMP+13}, 0x358637bd
    v_mov_b32 v{TMP+14}, 0x3f803f80
    s_waitcnt lgkmcnt(0)
    """)
    def kvm(P): return [f"  v_mfma_f32_16x16x32_bf16 {vr(DD+4*n)}, {vr(FR+4*kx)}, {vr(FR+4*vy)}, {'0' if P == 0 else vr(DD+4*n)}" for n, (kx, vy) in enumerate(PRODS)]
    for P in range(3):
        for h in range(2):
            T = 2*P + h; u0 = acc(T, 0); nm = NM + 4*T; rs = RSf(T); b = A()
            for t in range(5):
                for i in range(2):
                    r = u0 + 4*t + 2*i
                    b(f"v_pk_fma_f32 {vr(r,2)}, {vr(nm+2*i,2)}, {vr(CS+4*t,2)}, {vr(r,2)} op_sel_hi:[1,0,1]")
            for t in range(5):
                for i in range(2):
                    r = u0 + 4*t + 2*i
                    b(f"v_pk_mul_f32 {vr(r,2)}, {vr(r,2)}, {vr(rs+2*i,2)}")
            for i in range(6): b(f"v_pk_mul_f32 {vr(TMP+2*i,2)}, {vr(u0+2*i,2)}, s[30:31]")
            for i in range(12): b(f"v_exp_f32_e64 v{TMP+i}, v{TMP+i} clamp")
            for t in range(2, 5):
                for i in range(2): b(f"v_cvt_pk_bf16_f32 v{FR+4*(t+1)+2*h+i}, v{u0+4*t+2*i}, v{u0+4*t+2*i+1}")
            for i in range(2): b(f"v_cndmask_b32 v{FR+12+2*h+i}, v{FR+12+2*h+i}, v{TMP+14}, s[32:33]")
            for i in range(6): b(f"v_pk_add_f32 {vr(u0+2*i,2)}, {vr(u0+2*i,2)}, 1.0 op_sel_hi:[1,0]")
            for i in range(12): b(f"v_max_f32 v{u0+i}, v{u0+i}, v{TMP+i}")
            for i in range(6): b(f"v_pk_add_f32 {vr(u0+2*i,2)}, {vr(u0+2*i,2)}, {vr(TMP+12,2)}")
            for t in range(3):
                for i in range(2): b(f"v_cvt_pk_bf16_f32 v{FR+4*t+2*h+i}, v{u0+4*t+2*i}, v{u0+4*t+2*i+1}")
            n = OPT["epi_n"][T]
            a += inter(b, grp(st.take(n), 1), 2) if n else b
        if P: a(f"s_cmp_eq_u32 s36, 1\ns_cbranch_scc1 k_kvs{P}")
        for n, (kx, vy) in enumerate(PRODS):
            d = vr(DD + 4*n)
            a(f"v_mfma_f32_16x16x32_bf16 {d}, {vr(FR+4*kx)}, {vr(FR+4*vy)}, {'0' if P == 0 else d}")
        if P: a(f"k_kvs{P}:")
    a += stamp("kvv")
    a(f"""
    s_mul_i32 s28, s51, 1792
    s_add_u32 s37, s37, s28
    s_lshl_b32 s29, s52, 12
    s_add_u32 s28, s28, s29
    s_add_u32 s28, s28, {KVX}
    v_lshlrev_b32 v2, 2, v7
    v_add_u32 v3, s28, v2
    s_cmp_eq_u32 s51, 0
    s_cselect_b32 s28, 64, 8
    v_cmp_gt_u32 vcc, s28, v7
    v_mov_b32 v6, {OOB}
    """)
    for n in range(8): a(f"ds_write_b128 v{KVOF[n]}, {vr(DD+4*n)}")
    a("v_cndmask_b32 v6, v6, v2, vcc\ns_waitcnt lgkmcnt(0)\ns_barrier")
    for n in range(7): a(f"ds_read2st64_b32 {vr(72+2*n,2)}, v3 offset0:{n} offset1:{32+n}")
    for n in range(7):
        a(f"s_waitcnt lgkmcnt({6-n})\nv_add_f32 v{72+2*n}, v{72+2*n}, v{73+2*n}")
        a(f"buffer_atomic_add_f32 v{72+2*n}, v{6 if n == 6 else 2}, s[16:19], s37 offen offset:{256*n}")
    a += stamp("kvs")
    return a

def phase2(st):
    a = A()
    G = 8; GR = 88; AR = 140; NA = 4; SA = 208; XB = 228; RP = 148
    AV = [244, 245, 246, 247]; RW = [248, 249, 250]; XA = [251, 252, 253]
    GA = 168; DB = 208; KA = 236; OA = 0; UA = 237; FW = 238
    g1 = OPT["gap1"]; psched = OPT["psched"]; wtr = OPT["wtrail"]; F1A = 239; OB = 235
    s1 = L(f"""
    s_cmp_eq_u32 s20, 0
    s_cselect_b32 s55, 0, {OOB}
    s_cselect_b64 s[56:57], -1, 0
    s_and_b32 s21, s2, 3
    s_lshl_b32 s21, s21, 2
    s_bfe_u32 s28, s2, 0x20003
    s_add_u32 s21, s21, s28              ; hp
    s_and_b32 s23, s2, 4
    s_lshl_b32 s23, s23, 1
    s_lshr_b32 s28, s2, 5
    s_add_u32 s23, s23, s28              ; rg
    s_and_b32 s28, s24, 30
    s_mul_i32 s35, s28, 21846
    s_lshr_b32 s35, s35, 16
    s_add_u32 s35, s35, 144              ; W1 lines of the first row block: (12+i)*12 + rb, lanes 0..10
    s_add_u32 s28, s28, 1
    s_mul_i32 s28, s28, 21846
    s_lshr_b32 s28, s28, 16
    s_add_u32 s28, s28, 12               ; second row block, lanes 11..21
    s_lshr_b32 s29, s21, 1
    s_mul_i32 s29, s29, 12
    s_sub_u32 s29, s29, 22               ; KV lines: kvct*12 + (i-22), lanes 22..32
    s_lshl_b32 s30, s23, 1
    s_mul_i32 s31, s30, 21846
    s_lshr_b32 s31, s31, 16
    s_add_u32 s30, s30, 1
    s_mul_i32 s30, s30, 21846
    s_lshr_b32 s30, s30, 16
    s_lshr_b32 s34, s21, 2
    s_mul_i32 s34, s34, 12
    s_add_u32 s34, s34, 96
    s_add_u32 s31, s31, s34              ; Q line, first row block (lane 22)
    s_add_u32 s30, s30, s34              ; Q line, second row block (lanes 23..)
    v_min_u32 v1, 21, v7
    v_mad_u32_u24 v2, v1, 12, s35
    v_mad_u32_u24 v3, v1, 12, s28
    v_cmp_le_u32 vcc, 11, v7
    v_cndmask_b32 v2, v2, v3, vcc
    v_lshlrev_b32 v3, 7, v2
    v_add_u32 v{F1A}, {FP + FPD}, v3
    v_add_u32 v3, s29, v7
    v_cmp_le_u32 vcc, 22, v7
    v_cndmask_b32 v2, v2, v3, vcc
    v_mov_b32 v3, s31
    v_cmp_le_u32 vcc, 33, v7
    v_cndmask_b32 v2, v2, v3, vcc
    v_mov_b32 v3, s30
    v_cmp_le_u32 vcc, 34, v7
    v_cndmask_b32 v2, v2, v3, vcc
    v_lshlrev_b32 v2, 7, v2
    v_add_u32 v{FW}, {FP}, v2
    s_mul_i32 s54, s21, 5
    s_lshr_b32 s54, s54, 2               ; ksA
    s_lshl_b32 s60, s21, 12
    s_add_u32 s60, s60, {KVP}
    v_lshlrev_b32 v3, 4, v0
    v_cmp_gt_u32 vcc, 210, v0
    v_mov_b32 v6, {OOB}
    v_cndmask_b32 v{KA}, v6, v3, vcc
    s_lshl_b32 s76, s23, 1
    s_add_u32 s76, s76, s51
    """) + blk(63, 76, "q", 28, 29) + L(f"""
    s_xor_b32 s63, s63, s3
    s_lshl_b32 s30, s52, 11
    s_add_u32 s63, s63, s30
    s_add_u32 s62, s54, 1
    """) + cell(61, 54, 28) + cell(62, 62, 28) + L(f"""
    s_add_u32 s61, s61, s63
    s_add_u32 s62, s62, s63
    s_add_u32 s63, s63, {QSZ}
    """)
    s2 = A()
    s2(f"""
    v_and_b32 v1, 15, v7                 ; i / m
    v_lshrrev_b32 v2, 4, v7              ; g
    v_lshrrev_b32 v3, 2, v1
    v_and_b32 v212, 3, v1
    v_lshl_add_u32 v6, v3, 3, v212
    v_cmp_le_u32 vcc, 20, v6
    v_cndmask_b32 v216, 0, 5, vcc
    v_lshlrev_b32 v220, 2, v216
    v_sub_u32 v220, v6, v220
    v_add_u32 v6, 4, v6
    v_cmp_le_u32 vcc, 20, v6
    v_cndmask_b32 v217, 0, 5, vcc
    v_lshlrev_b32 v221, 2, v217
    v_sub_u32 v221, v6, v221
    v_cmp_gt_u32 vcc, 8, v1
    v_cndmask_b32 v218, 64, 5, vcc
    v_add_u32 v222, 12, v1
    v_add_u32 v6, v3, v212
    v_cmp_le_u32 vcc, 3, v6
    v_cmp_le_u32 s[34:35], 2, v212
    s_or_b64 vcc, vcc, s[34:35]
    v_cndmask_b32 v219, 0, 5, vcc
    v_mov_b32 v223, 20
    v_mov_b32 v213, 255
    s_mov_b32 s37, {RED}
    """)
    for k in range(2):
        s2(f"""
        s_add_u32 s31, s54, {k}
        s_mul_i32 s32, s31, 205
        s_lshr_b32 s32, s32, 10
        s_mul_i32 s32, s32, 5
        s_sub_u32 s32, s31, s32
        s_cmp_eq_u32 s32, 2
        s_cselect_b32 s33, 1, 0
        s_cselect_b32 s36, 1, 4
        s_lshl_b32 s31, s31, 3
        s_mul_i32 s32, s21, 10
        s_sub_u32 s31, s31, s32
        v_lshlrev_b32 v3, s33, v2
        v_add_u32 v3, s31, v3
        """)
        for j in range(2):
            if j: s2("v_add_u32 v3, s36, v3")
            for tl in range(4):
                s2(f"""
                v_sub_u32 v212, v3, v{216+tl}
                v_cmp_gt_u32 vcc, 5, v212
                v_mad_u32_u24 v212, v3, 21, v{220+tl}
                v_cndmask_b32 v212, v213, v212, vcc
                v_lshl_add_u32 v{GA+tl*4+k*2+j}, v212, 3, s37
                """)
    ol = L(f"buffer_load_dwordx4 v[208:211], v{KA}, s[16:19], s60 offen sc1 ;#P")
    ql = L(f"""
    buffer_load_dwordx4 a[240:243], v4, s[16:19], s61 offen sc1 ;#Q
    buffer_load_dwordx4 a[244:247], v4, s[16:19], s62 offen sc1 ;#Q
    buffer_load_dwordx4 a[248:251], v4, s[16:19], s61 offen offset:1024 sc1 ;#Q
    buffer_load_dwordx4 a[252:255], v4, s[16:19], s62 offen offset:1024 sc1 ;#Q
    """)
    s3 = A()
    s3(f"""
    s_and_b32 s64, s23, 3
    s_lshl_b32 s64, s64, 11
    s_and_b32 s28, s23, 4
    s_lshl_b32 s28, s28, 12
    s_add_u32 s64, s64, s28
    s_and_b32 s28, s23, 8
    s_lshl_b32 s28, s28, 10
    s_xor_b32 s28, s28, s3
    s_add_u32 s64, s64, s28
    s_lshl_b32 s28, s21, 7
    s_add_u32 s64, s64, s28
    s_add_u32 s64, s64, {FO}
    s_add_u32 s64, s64, s55
    s_mul_i32 s28, s21, 5
    v_add_u32 v3, s28, v2
    v_lshrrev_b32 v6, 3, v3
    v_lshlrev_b32 v6, 14, v6
    v_bfe_u32 v212, v3, 2, 1
    v_lshl_add_u32 v6, v212, {13 if OPT["mode"] in ("cols", "none") else 12}, v6
    v_and_b32 v3, 3, v3
    v_lshl_add_u32 v6, v3, 8, v6
    v_lshl_add_u32 v{OB}, v1, 4, v6
    s_add_u32 s28, s28, 4
    s_lshr_b32 s30, s28, 2
    """)
    s3 += cell(30, 30, 29)
    s3(f"""
    s_and_b32 s28, s28, 3
    s_lshl_b32 s28, s28, 8
    s_add_u32 s28, s28, s30
    v_lshl_add_u32 v3, v1, 4, s28
    v_lshl_add_u32 v3, v2, 3, v3
    v_cmp_gt_u32 vcc, 2, v2
    v_mov_b32 v6, {OOB}
    v_lshl_add_u32 v{UA}, v0, 3, s37
    v_cndmask_b32 v{OA}, v6, v3, vcc
    """)
    sA = A()
    sA += blk(40, 24, "h", 28, 29) + cell(30, 47, 29) + L(f"""
    s_xor_b32 s40, s40, s3
    s_add_u32 s44, s40, s30              ; own rows
    s_bitcmp1_b32 s24, 0
    s_cselect_b32 s28, {-HSZ & 0xffffffff}, {HSZ}
    s_add_u32 s45, s44, s28              ; partner rows (other block of the same page)
    """)
    for T in range(4):
        sA(f"s_add_u32 s28, s20, {T}\ns_and_b32 s28, s28, 3\ns_lshl_b32 s28, s28, 10\nv_add_u32 v{AV[T]}, s28, v4")
    osum = W("P") + L(f"v_cvt_pk_bf16_f32 v208, v208, v209\nv_cvt_pk_bf16_f32 v209, v210, v211\nds_write_b64 v{UA}, v[208:209]")
    ogat = [f"  ds_read_b64 {ar(204+2*n,2)}, v{GA+n}" for n in range(16)]
    om = []
    for k in range(2):
        for T in range(2):
            for tl in (3, 0, 1, 2):
                d = vr(DB + 16*T + 4*tl)
                om.append(f"  v_mfma_f32_16x16x32_bf16 {d}, {ar(204+tl*8+k*4)}, {ar(240+T*8+k*4)}, {'0' if k == 0 else d}")
    ofin = []
    for T in range(2):
        o = A(); b = DB + 16*T; z = b + 12; pk = GA + 6*T
        for r in range(3): o(f"v_add_f32 v{z+r}, 0x358637bd, v{z+r}")
        for r in range(3): o(f"v_rcp_f32 v{z+r}, v{z+r}")
        for tl in range(3):
            for r in range(4): o(f"v_mul_f32 v{b+4*tl+r}, v{b+4*tl+r}, v{z+tl}")
        for i in range(6): o(f"v_cvt_pk_bf16_f32 v{pk+i}, v{b+2*i}, v{b+2*i+1}")
        o(f"buffer_store_dwordx4 {vr(pk)}, v2, s[16:19], s63 offen offset:{1024*T} sc1 ;#OS")
        o(f"buffer_store_dwordx2 {vr(pk+4,2)}, v{OA}, s[16:19], s63 offen offset:{1024*T} sc1 ;#OS")
        ofin.append(list(o))
    fs = A()
    fs(f"""
    s_lshl_b32 s42, s24, 2
    s_add_u32 s42, s42, s20
    s_lshr_b32 s30, s24, 1
    s_and_b32 s28, s30, 3
    s_lshl_b32 s28, s28, 11
    s_and_b32 s29, s30, 4
    s_lshl_b32 s29, s29, 12
    s_add_u32 s28, s28, s29
    s_and_b32 s29, s30, 8
    s_lshl_b32 s29, s29, 10
    s_xor_b32 s29, s29, s3
    s_add_u32 s28, s28, s29
    s_add_u32 s28, s28, {FO}
    v_min_u32 v6, 15, v7
    v_lshl_add_u32 v{VF-1}, v6, 7, s28
    s_mul_i32 s48, s42, {16*1280}
    s_mul_i32 s28, s25, 160
    s_add_u32 s48, s48, s28
    """)
    fs += blk(42, 24, "o", 28, 29)
    fs(f"""
    s_xor_b32 s42, s42, s3
    s_lshl_b32 s28, s20, 10
    s_add_u32 s42, s42, s28
    s_mul_i32 s49, s20, 15360
    s_add_u32 s49, s49, {RED}
    v_mul_u32_u24 v243, 176, v1
    v_lshl_add_u32 v243, v2, 3, v243
    v_add_u32 v243, s49, v243            ; result write: row stride 176
    """)
    for i in range(3):
        fs(f"""
        v_add_u32 v6, {64*i}, v7
        v_mul_u32_u24 v1, 6554, v6
        v_lshrrev_b32 v1, 16, v1
        v_mul_u32_u24 v3, 1120, v1
        v_lshl_add_u32 v3, v6, 4, v3
        v_cmp_gt_u32 vcc, 160, v6
        v_add_u32 v1, v1, v6
        v_mov_b32 v6, {OOB}
        v_lshl_add_u32 v{240+i}, v1, 4, s49
        v_cndmask_b32 v{XA[i]}, v6, v3, vcc
        """)
    for T in range(1, 4):
        fs(f"s_add_u32 s28, s20, {T}\ns_and_b32 s28, s28, 3\ns_mul_i32 s28, s28, 15360\ns_add_u32 s28, s28, {RED + (T-1)*5120}\nv_add_u32 v{RW[T-1]}, s28, v4")
    fs(f"""
    v_add_u32 v1, s49, v4
    v_mov_b32 v2, v{OB}
    s_and_b32 s28, s24, 15
    s_lshl_b32 s28, s28, 3
    s_add_u32 s28, s28, s25
    s_lshl_b32 s28, s28, 2
    s_add_u32 s28, s28, s20
    """)
    fs += cell(65, 28, 29)
    fs(f"""
    s_add_u32 s65, s65, {GXP*PG}
    s_lshr_b32 s28, s65, 21
    s_lshr_b32 s29, s24, 4
    s_xor_b32 s28, s28, s29
    s_and_b32 s28, s28, 1
    s_lshl_b32 s28, s28, 13
    s_xor_b32 s28, s28, s3
    s_add_u32 s65, s65, s28
    s_xor_b32 s66, s65, {16*16384}
    s_add_u32 s72, s66, 3072
    s_add_u32 s73, s65, 3072
    """)
    MG = OPT["mg"]
    SL = OPT["slots"]; RL = max(i for i, x in enumerate(SL) if x[0] == "r")
    def areg(s): return 204 if s == 13 else AR + (s % NA)*16
    def ldA(s):
        r_, j = SL[s]
        r = [f"  s_add_u32 s41, s{45 if r_ == 'r' else 44}, {65536*j}"]
        if j == 6: r += L(f"s_cmp_lt_u32 s20, 3\ns_cselect_b32 s41, s41, {OOB}")
        return r + [f"  buffer_load_dwordx4 {ar(areg(s)+4*T)}, v{AV[T]}, s[16:19], s41 offen sc1 ;#A{s}{'abcd'[T]}" for T in ((1, 2, 3, 0) if s >= MG else range(4))]
    a("k_p2:\n;MARK ep")
    for i in range(7): a(f";MARK B{i}")
    for i in range(5): a(f";MARK wo{i}")
    a += stamp("eend")
    gs = grp(st.take(g1), 2)
    gs.insert(len(gs) - OPT["poll_early"], poll(F1A, VF, "p1", "s55"))
    allsu = glue(s1 + sA + s2 + s3 + fs); k1 = OPT["su1"]; k2 = OPT["su2"]
    assert k1 >= len(glue(s1 + sA))
    flat = lambda l: sum(l, [])
    p1at = next(i for i, x in enumerate(allsu) if f"v_add_u32 v{F1A}," in x[0]) + 1
    a += inter(flat(allsu[:k1]), gs, p1at if OPT["poll_early"] >= len(gs) - 2 else 0)
    a += W("ep") + L("s_barrier") + flag("s67", 224) + stamp("flag")
    a += W("p1") + L("s_mov_b64 s[58:59], vcc") + check("k_s1", F1A, VF, True) + L("s_mov_b64 vcc, s[58:59]") + stamp("c1")
    pre = grp(ldA(2), 1)
    if OPT["pp2"] < 0: pre.append(poll(FW, VF, "p2", "s55"))
    a += ldA(0) + ldA(1) + inter(flat(allsu[k1:k2]), pre)
    if min(OPT["xs"]) < OPT["c2"]:
        kx = max(i for i, x in enumerate(allsu) if f"v_cndmask_b32 v{XA[2]}," in x[0]); assert kx < k2, (kx, len(allsu))
    late = allsu[k2:]; nl = OPT["c2"]
    late = {i: flat(late[i*len(late)//nl:(i+1)*len(late)//nl]) for i in range(nl)}
    def ldO(i0, n):
        r = []
        for i in range(i0, i0 + n):
            if OPT["mode"] in ("cols", "none"):
                r += [f"  s_add_u32 s43, s42, {8192*i}", f"  buffer_load_dwordx4 {ar(4*i)}, v4, s[16:19], s43 offen sc1 ;#O{i}"]; continue
            if i % 2 == 0 or i == i0: r.append(f"  s_add_u32 s43, s42, {16384*(i//2)}")
            r.append(f"  buffer_load_dwordx4 {ar(4*i)}, v{4 + (i & 1)}, s[16:19], s43 offen sc1 ;#O{i}")
        return r
    ldX = [[f"  s_add_u32 m0, s49, {4096 + 1024*i}", "  s_nop 0", f"  buffer_load_dwordx4 v{XA[i]}, s[8:11], s48 offen lds ;#X"] for i in range(3)]
    rdX = L("v_add_u32 v2, 51200, v4\nv_and_b32 v3, 15, v7\nv_lshlrev_b32 v3, 4, v3\nv_sub_u32 v3, v243, v3") + W("X") + tag([f"  ds_read_b64 {vr(XB+2*t,2)}, v3 offset:{4096+32*t}" for t in range(5)], "xr")
    NB = 3
    def sb(s, t): return vr(GR + 20*(s % NB) + 4*t)
    def rdB(s): return tag([f"  ds_read_b128 {sb(s,t)}, v{4 if s < 10 else 2} offset:{(s%10)*5120+1024*t}" for t in range(5)], f"b{s}")
    wr_ = tag([f"  ds_write_b128 v{RW[T-1]}, {vr(G+(T*5+t)*4)} offset:{1024*t}" for T in range(1, 4) for t in range(5)], "w")
    rd_ = tag([f"  ds_read_b128 {vr(G+20+4*j)}, v1 offset:{1024*j}" for j in range(15)], "r")
    xw = tag([f"  ds_write_b128 v{RW[T-1]}, {vr(GR+(T*5+t)*4)} offset:{1024*t}" for T in range(1, 4) for t in range(5)], "xw")
    xr = tag([f"  ds_read_b128 {vr(GR+20+20*j+4*t)}, v1 offset:{5120*j+1024*t}" for t in range(5) for j in range(3)], "xr")
    xa = []
    for t in range(5):
        xa += [f"  v_add_f32 v{GR+4*t+i}, v{GR+4*t+i}, v{GR+20+20*j+4*t+i}" for j in range(3) for i in range(4)]
        xa += [f"  v_cvt_pk_bf16_f32 v{GA+2*t+i}, v{GR+4*t+2*i}, v{GR+4*t+2*i+1}" for i in range(2)]
        if t in (1, 3): xa.append(f"  buffer_store_dwordx4 {vr(GA+2*t-2)}, v4, s[16:19], s66 offen offset:{512*(t-1)} sc1 ;#XS")
    xa += L(f"v_lshlrev_b32 v0, 3, v7\nbuffer_store_dwordx2 {vr(GA+8,2)}, v0, s[16:19], s66 offen offset:2048 sc1 ;#XS")
    xl = [f"  buffer_load_dwordx4 {vr(GA+4*t)}, v4, s[16:19], s65 offen offset:{1024*t} sc1 ;#XL" for t in range(2)] + [f"  buffer_load_dwordx2 {vr(GA+8,2)}, v0, s[16:19], s65 offen offset:2048 sc1 ;#XL"]
    XF, XP, XC = OPT["xf"], OPT["xp"], OPT["xc"]
    xpoll = L(f"v_mov_b32 v{VF-1}, s73") + poll(VF-1, VF, "xp")
    C2 = OPT["c2"]; plan = OPT["aplan"]; OFS = OPT["ofs"]; PO = OPT["po"]; PC = OPT["pc"]; osched = OPT["osched"]
    no = 0
    XU = 184
    xu = []
    for i in range(10): xu += [f"  v_lshlrev_b32 v{XU+2*i}, 16, v{XB+i}", f"  v_and_b32 v{XU+2*i+1}, 0xffff0000, v{XB+i}"]
    def wdone(g): return ("W", 5*g + 4) not in st.items
    def mf(s, T, rev):
        r_, j = SL[s]; GG = GR if r_ == "r" else G; first = all(x[0] != r_ for x in SL[:s])
        return [f"  v_mfma_f32_16x16x32_bf16 {vr(GG+(T*5+t)*4)}, {breg(j,t)}, {ar(areg(s)+4*T)}, {'0' if first else vr(GG+(T*5+t)*4)}" for t in (range(4, -1, -1) if rev else range(5))]
    nm = 14 - MG; WB = OPT["wb"]
    for s in range(MG + 4):
        if s < MG:
            need = [f"A{s}{c}" for c in "abcd"] + [f"B{SL[s][1]}"]; assert ("B", 5*SL[s][1] + 4) not in st.items
            M = sum((mf(s, T, k & 1) for k, T in enumerate((1, 2, 3, 0) if s == RL else range(4))), [])
        else:
            T = (1, 2, 3, 0)[s - MG]
            need = [f"A{x}{'abcd'[T]}" for x in range(MG, 14)]
            M = sum((mf(x, T, False) for x in range(MG, 14)), [])
        if s == XF: need.append("XS")
        vm = need + (["op"] if s == PC else []) + ([f"wo{g}" for g in range(5) if g not in wtr] if s == WB else []) + (["OS"] if s == OFS else []) + (["p2"] if s == C2 else [])
        if s == WB: assert all(wdone(g) for g in range(5) if g not in wtr)
        OQ = OPT["oq"]; OM = C2 + (1 if OQ else 2)
        a += W(vm, "*" if (s in (RL, RL if OPT["xw"] else RL + 2) or (s == C2 + 2 and not OQ)) else ())
        a += stamp(f"g{s}")
        if s == C2: a += check("k_sw", FW, VF, True) + stamp("w1")
        if s == PC: a += check("k_so", VF-1, VF, True) + stamp("op")
        if s != PC and s in (OFS, -1 if OQ else C2 + 2, WB, RL, MG + 1): a("s_barrier")
        ls = []; n = len(M)
        for x in plan.get(s, []): assert (SL[x][1] < 2 or s >= C2) and (x - s <= 3 or (x == 13 and s > C2 + 3))
        v = sum((ldA(x) for x in plan.get(s, [])), [])
        if s == C2: v = ol + ql + v
        if s == OFS: v = flag("s64") + v
        if s == XF: v = flag("s72") + v
        if s == XP: assert s > PC; v = xpoll + v
        if s == PO: v = poll(VF-1, VF, "op", "s55") + v
        if s == OPT["pp2"]: v = poll(FW, VF, "p2", "s55") + v
        if late.get(s): ls.append((late[s], 0, n - 1))
        if s in OPT["xs"]: v += sum([ldX[i] for i, x in enumerate(OPT["xs"]) if x == s], [])
        if psched.get(s): v += st.take(psched[s])
        if osched.get(s): v += ldO(no, osched[s]); no += osched[s]
        ls.append((v, 0, n - 2))
        if OQ:
            if s == C2 + 1: ls += [(osum, OQ, OQ + 1), (L("s_waitcnt lgkmcnt(0)\ns_barrier"), OQ + 4, OQ + 4), (ogat, OQ + 5, min(OQ + 10, 19))]
        else:
            if s == C2 + 1: ls.append((osum, 16, 19))
            if s == C2 + 2: ls.insert(0, (ogat, 0, 10))
        if s == OM + 1: ls.append((ofin[0] + ofin[1], 1, 19))
        if s == OPT["xr"]: assert s < RL and s != OFS and s > OM + 1; ls.insert(0, (rdX, 0, 8))
        if OPT["xw"] == 0:
            if s == RL: ls += [(xw[:5], 10, 14), (xw[5:10], 15, 19)]
            if s == RL + 1: ls += [(xw[10:], 0, 5), (L("s_waitcnt lgkmcnt(0)\ns_barrier"), 9, 9), (xr, 10, 19)]
            if s == RL + 2: ls.append((xa[:OPT["xcut"]], 0, n - 1))
            if s == RL + 3: ls.append((xa[OPT["xcut"]:], 0, n - 1))
        else:
            if s == RL: ls.append((xw[:4], 9, 19))
            if s == RL + 1: ls.append((xw[4:11], 0, 19))
            if s == RL + 2: ls += [(xw[11:], 0, 9), (L("s_waitcnt lgkmcnt(0)\ns_barrier"), 12, 12), (xr, 13, 19)]
            if s == RL + 3:
                a += L("s_waitcnt lgkmcnt(0)") + [";@align on"] + [f"  v_pk_add_f32 {vr(GR+2*i,2)}, {vr(GR+2*i,2)}, {vr(GR+20+20*j+2*i,2)}" for j in range(3) for i in range(10)] + [";@align off"]
                ls.append(([x for x in xa if "v_add_f32" not in x], 0, n - 1))
        if s > MG: ls.append((wr_[5*(s-MG-1):5*(s-MG)], 2, n - 1))
        if s == MG + 2: ls.append((xu, 0, n - 1))
        if s == MG + 3: ls.append((rdB(0) + rdB(1), 0, n - 2))
        a += place(M, ls)
        if s == OM: a += W("Q", "*") + stamp("om") + place(om, [(st.take(OPT["pom"]), 0, 15)])
    a += stamp("gend")
    E = G + 20
    VB = []
    for j in range(3):
        for i in range(10): VB.append(f"  v_pk_add_f32 {vr(G+2*i,2)}, {vr(G+2*i,2)}, {vr(G+20+20*j+2*i,2)}")
    VC = []
    for i in range(10): VC += [f"  v_lshlrev_b32 v{RP+2*i}, 16, v{GA+i}", f"  v_and_b32 v{RP+2*i+1}, 0xffff0000, v{GA+i}"]
    VC += [f"  v_pk_add_f32 {vr(G+2*i,2)}, {vr(G+2*i,2)}, {vr(RP+2*i,2)}" for i in range(10)]
    VC += [f"  v_pk_mul_f32 {vr(E+2*i,2)}, {vr(G+2*i,2)}, s[30:31]" for i in range(10)]
    VA = [f"  v_add_f32 v{G+i}, v{G+i}, v{G+20+20*j+i}" for j in range(3) for i in range(20)]
    V = []
    V += [f"  v_exp_f32 v{E+i}, v{E+i}" for i in range(20)]
    V += [f"  v_add_f32 v{E+i}, 1.0, v{E+i}" for i in range(20)]
    V += [f"  v_rcp_f32 v{E+i}, v{E+i}" for i in range(20)]
    V += [f"  v_mul_f32 v{G+i}, v{G+i}, v{E+i}" for i in range(20)]
    V0 = OPT["v0"]; RB = OPT["rb"]; LK = NB - 1; P0 = MG + 4
    V1 = OPT["v1"]; pa = -(-60//(V1 - V0))
    cost = [8 if ("exp" in x or "rcp" in x) else 4 for x in V]; tot = sum(cost); parts = [[] for _ in range(20 - V1)]; c_ = 0
    for x, c in zip(V, cost): parts[min(len(parts) - 1, c_*len(parts)//tot)].append(x); c_ += c
    for s in range(20):
        wg = [g for g, st_ in wtr.items() if st_ == s]
        for g in wg: assert s + LK <= 4*g and wdone(g)
        a += W([f"O{s}"] + [f"wo{g}" for g in wg] + (["XS"] if P0 + s == XF else []) + (["xp"] if P0 + s == XC else []) + (["XL"] if s == V1 else []), [f"b{s}"] + (["w"] if s == RB else []) + (["r"] if s == V0 else []))
        if s == RB or wg: a("s_barrier")
        a += stamp(f"s{s}")
        if P0 + s == XC: a += check("k_sx", VF-1, VF) + stamp("xc")
        if s == V1: a += [";@align on"] + VC + [";@align off"]
        M = [f"  v_mfma_f32_16x16x32_bf16 {vr(SA+4*t)}, {sb(s,t)}, {ar(4*s)}, {'0' if s == 0 else vr(SA+4*t)}" for t in range(5)]
        ls = []
        if s + LK < 20: ls.append((rdB(s+LK), 0, 4))
        v = []
        if P0 + s == XF: v += flag("s72")
        if P0 + s == XP: v += xpoll
        if P0 + s == XC: v += xl
        if psched.get(P0 + s): v += st.take(psched[P0 + s])
        if osched.get(P0 + s): v += ldO(no, osched[P0 + s]); no += osched[P0 + s]
        ls.append((v, 0, 4))
        if s == 0: ls.append((L(f"s_mov_b32 s30, {LOG2E|0x80000000}\ns_mov_b32 s31, {LOG2E|0x80000000}"), 0, 4))
        if RB <= s < RB + 3: ls.append((rd_[5*(s-RB):5*(s-RB)+5], 0, 4))
        if V0 <= s < V1: ls.append((VA[(s-V0)*pa:(s-V0+1)*pa], 0, 4))
        if s >= V1: ls.append((parts[s-V1], 0, 4))
        a += place(M, ls)
    assert no == 20 and not st.items, (no, st.items)
    a += stamp("send")
    for t in range(5):
        for i in range(2): a(f"v_pk_fma_f32 {vr(SA+4*t+2*i,2)}, {vr(SA+4*t+2*i,2)}, {vr(G+4*t+2*i,2)}, {vr(XU+4*t+2*i,2)}")
        for i in range(2): a(f"v_cvt_pk_bf16_f32 v{XB+2*t+i}, v{SA+4*t+2*i}, v{SA+4*t+2*i+1}")
        a(f"ds_write_b64 v243, {vr(XB+2*t,2)} offset:{32*t}")
    a(";@align off\ns_waitcnt lgkmcnt(0)")
    for i in range(3): a(f"ds_read_b128 {vr(E+4*i)}, v{240+i}")
    for i in range(3): a(f"s_waitcnt lgkmcnt({2-i})\nbuffer_store_dwordx4 {vr(E+4*i)}, v{XA[i]}, s[4:7], s48 offen")
    a += stamp_out()
    return resolve(a)

def build():
    OUTL.clear()
    pro = prologue()
    br = L("s_cmp_lt_u32 s22, 8\ns_cbranch_scc1 k_kv")
    if OPT["pol"] == "race":
        br += L("s_cmp_eq_u32 s21, 11\ns_cbranch_scc1 k_race")
        OUTL(f"""
        k_race:
        s_waitcnt vmcnt(0)
        s_cmp_lg_u32 s20, 0
        s_cbranch_scc1 k_race2
        s_cmp_eq_u32 s2, 255
        s_cbranch_scc1 k_race2
        s_bfe_u32 s29, s2, 0x10003           ; 239 -> 1, 247 -> 0
        s_lshl_b32 s28, s29, 13
        s_add_u32 s28, s28, {RACE}
        v_lshlrev_b32 v6, 25, v7
        s_mov_b32 s30, {OPT['trips']}
        k_race1:
        v_mov_b32 v3, 0
        buffer_atomic_add v3, v6, s[16:19], s28 offen sc0
        s_sub_u32 s30, s30, 1
        s_cmp_lg_u32 s30, 0
        s_waitcnt vmcnt(0)
        s_cbranch_scc1 k_race1
        s_mov_b32 s56, s74
        s_and_b32 s57, s75, 0xffff
        s_mov_b32 s58, 256
        s_mov_b32 s59, 0x20000
        v_mov_b32 v3, 1
        buffer_atomic_add v3, v6, s[56:59], 0 offen sc0
        s_xor_b32 s29, s29, 1
        s_lshl_b32 s29, s29, 13
        s_waitcnt vmcnt(0)
        v_readfirstlane_b32 s30, v3
        v_mov_b32 v3, s29
        s_nop 0
        s_cmp_eq_u32 s30, 0
        s_cselect_b32 s28, {PW}, {OOB}
        buffer_store_dword v3, v6, s[16:19], s28 offen sc1
        s_waitcnt vmcnt(0)
        k_race2:
        s_barrier
        """)
        OUTL.extend(d_misc() + flag("s49") + (d_cs() if OPT["keep"] < 1 else []) + [f"  s_mov_b32 s{r}, {OOB}" for r in (61, 62, 63, 75, 80, 81, 82, 83)] + [f"  v_add_u32 v{L2B+i}, {2*STAGE}, v{LA+i}" for i in range(5)] + L("s_branch k_t_join"))
    items = [("B", i) for i in range(35)] + [("W", i) for i in range(25)]
    st_t = Stream(items); st_n = Stream(items)
    mt = g1_main("k_t", True, st_t)
    mt += L("s_waitcnt lgkmcnt(0)\ns_cmp_lt_u32 s22, 12\ns_cbranch_scc1 k_q")
    eq = epi_t("phi", Stream(st_t.items)); es = epi_t("silu", st_t)
    mn = g1_main("k_n", False, st_n)
    ek = epi_kv(st_n)
    assert st_n.items == st_t.items
    n0 = len(resolve(pro + br))
    a = resolve(pro + br + mt) + es + phase2(st_t) + L("s_endpgm\nk_q:") + eq + L("s_branch k_p2\nk_kv:") + resolve(pro + br + mn + ek)[n0:] + L("s_branch k_p2")
    a += L("k_end:\ns_endpgm") + OUTL
    body, added = haz.fix(a)
    body, nbytes, nn, npm = align.align([x.replace("CODE_KB", "40").replace("CODE_MAX", "44444") for x in body])
    kb = (nbytes + 1023)//1024; assert kb <= 64
    body = [x.replace("s_cmp_ge_u32 s28, 40", f"s_cmp_ge_u32 s28, {kb if OPT.get('cpf', 1) else 0}").replace("44444", str((nbytes - 16) & ~15)) for x in body]
    body = [re.sub(r"\s*;(#\S+|nocount|C)$", "", x) for x in body]
    print("instrs", len(body), "nops added", added, "bytes", nbytes, "align nops", nn, "promoted", npm, file=sys.stderr)
    if OPT.get("nost"): body = [x for x in body if not ("buffer_store_dwordx4" in x and "s[76:79]" in x)]
    if OPT.get("cyc"): body = [x.replace("s_memrealtime", "s_memtime") for x in body]
    out = ["; @launch grid=(256,1,1) block=(256,1,1) lds=163840",
           '.amdgcn_target "amdgcn-amd-amdhsa--gfx950"\n.text', khead(NAME)] + body
    if DIAG: out.append(";ST " + " ".join(OPT["st"][:7]) + "\n;OPTS " + " ".join(x for x in sys.argv[3:] if not x.startswith("st=")))
    out.append('.section .rodata,"a"\n.p2align 6\n' + kd(NAME, 512, 256, 102))
    return "\n".join(out) + "\n"
if __name__ == "__main__":
    for x in sys.argv[2:]:
        if x == "d": DIAG = True
        else:
            k, v = x.split("=", 1); OPT[k] = eval(v)
    src = build()
    open(sys.argv[1], "w").write(src)
```

```python
import sys, re
from asmlib import kd, khead
import haz, align

NAME = "recurrent_scan__linear_attn_block__dense_activation_silu__prompt_kernel"
S, D, F = 2048, 640, 1728
FA = 0x8000
FP = 0xF0000
FPD = 0x9000 - 144*128
FO = 0x38000
NEGM = 0x10000; RSTD = 0x12000
CSP = 0x14000
KVP   = 0x40000
PG = 1 << 21
PW = 0xC8000
RACE = 0xC0000
WPP = 1
HOF = 74*16384; HSZ = 27*16384
QPP = 9; QSZ = 10*16384
GXP = 13
WS_USED = 15*PG
TS = 0x1F00000
def blk(dst, rb, kind, t0, t1):
    sh, pg, msk, sz, of = (1, WPP, 1, HSZ, HOF) if kind == "h" else (2, QPP, 3, 2*QSZ, QSZ if kind == "o" else 0)
    return L(f"""
    s_and_b32 s{t0}, s{rb}, 15
    s_lshr_b32 s{t0}, s{t0}, {sh}
    s_add_u32 s{t0}, s{t0}, {pg}
    s_lshr_b32 s{t1}, s{rb}, 4
    s_xor_b32 s{t1}, s{t1}, s{t0}
    s_and_b32 s{t1}, s{t1}, 1
    s_lshl_b32 s{t1}, s{t1}, {12 if OPT["mode"] in ("cols", "none") else 13}
    s_lshl_b32 s{t0}, s{t0}, 21
    s_add_u32 s{t0}, s{t0}, s{t1}
    s_and_b32 s{t1}, s{rb}, {msk}
    s_mul_i32 s{t1}, s{t1}, {sz}
    s_add_u32 s{t0}, s{t0}, s{t1}
    s_add_u32 s{dst}, s{t0}, {of}
    """)
def cell(dst, idx, t0):
    return L(f"s_lshr_b32 s{t0}, s{idx}, 1\ns_lshl_b32 s{t0}, s{t0}, 14\ns_and_b32 s{dst}, s{idx}, 1\ns_lshl_b32 s{dst}, s{dst}, {13 if OPT['mode'] in ('cols', 'none') else 12}\ns_add_u32 s{dst}, s{dst}, s{t0}")
LOG2E = 0x3fb8aa3b
OOB = 0x40000000
STAGE = 45056; WOFF = 24576; SPARE = 3*STAGE
AUXC = SPARE; AUXM = SPARE + 6400
CSL = SPARE + 8192
PACKL = SPARE
KVX = SPARE + 10240
RED = 102400
DIAG = False
OPT = dict(spin=200000, pkd=1, pkr=3, pks={4: 3, 5: 2}, flagb=3, flagb_n=2, pollb=6,
           pf_t={15:5,16:5,17:5,18:5,19:7}, pf_n={15:4,16:4,17:4,18:5,19:5}, epi_n=[5, 5, 5, 5, 4, 0], kv_first=0,
           epi=[4, 3, 2, 3, 2, 2, 3], oq=9, f1blk=5, f1pos=0, gap1=8, poll_early=1, c2=2, pom=0,
           slots=[("r",0),("r",1),("o",0),("o",1),("r",2),("r",3),("r",4),("r",5),("r",6),("o",2),("o",3),("o",4),("o",5),("o",6)],
           aplan={0:[3],2:[4],3:[5,6],4:[7],5:[8],6:[9],7:[10],8:[11,13],9:[12]},
           mg=11, wb=14, xr=6, rb=1, burst=1, su1=170, su2=372, pp2=0,
           psched={0:1,1:2,10:3}, xs=[1, 1, 1], ofs=7, po=9, pc=12, xcut=44, xf=14, xp=18, xc=22, v1=12,
           osched={12:4,13:4,14:4,15:2,16:2,17:2,19:2}, xw=1, nbuf=3, v0=5, nopk=1, adist=3, p2map=1, su_pre=200, su_pre_n=160, sleep=2, rot=0, snake=1, krot=0, fash=4, wtrail={}, wrow=1, wfirst=0, sufirst=0, keep=0, touch=1, slin=0, head=2, w1first=0, cmaj=0, pol="race", mode="rows", trips=9, cpf2=12,
           st=["eend", "w1", "g11", "op", "gend", "s5", "send"])

class A(list):
    def __call__(self, s):
        for x in s.strip("\n").split("\n"):
            x = x.strip()
            m = re.match(r"s_cselect_b32 (s\d+), (\d+|0x[0-9a-f]+), (\d+|0x[0-9a-f]+)\s*(;.*)?$", x)
            if m and int(m.group(2), 0) > 64 and int(m.group(3), 0) > 64:
                self.append(f"  s_mov_b32 {m.group(1)}, {m.group(3)}")
                x = f"s_cselect_b32 {m.group(1)}, {m.group(2)}, {m.group(1)}"
            if x: self.append(("" if x.endswith(":") else "  ") + x)
        return self
def L(s): return list(A()(s))
def stamp(name):
    if not DIAG: return []
    if name == "entry": i = 0
    elif name in OPT["st"][:7]: i = 1 + OPT["st"].index(name)
    else: return []
    return [f"  s_memrealtime s[{84+2*i}:{85+2*i}]"]
def stamp_out():
    if not DIAG: return []
    if OPT.get("echo") is not None:
        i = OPT["echo"]
        return L(f"""
        s_waitcnt vmcnt(0)
        s_memrealtime s[100:101]
        s_waitcnt lgkmcnt(0)
        s_sub_u32 s28, s{84+2*i}, s84
        s_min_u32 s28, s28, 10000
        s_add_u32 s28, s28, 5000
        k_echo:
        s_memrealtime s[30:31]
        s_waitcnt lgkmcnt(0)
        s_sub_u32 s29, s30, s84
        s_cmp_lt_u32 s29, s28
        s_cbranch_scc1 k_echo
        """)
    r = L(f"""
    s_waitcnt vmcnt(0)
    s_memrealtime s[100:101]
    s_waitcnt lgkmcnt(0)
    s_lshl_b32 s28, s2, 2
    s_add_u32 s28, s28, s20
    s_lshl_b32 s28, s28, 6
    s_add_u32 s28, s28, {TS}
    v_mov_b32 v1, s28
    """)
    for i in range(9): r += [f"  v_mov_b32 v3, s{84+2*i}", f"  global_store_dword v1, v3, s[26:27] offset:{4*i if i < 8 else 48}"]
    r += ["  v_mov_b32 v3, s22", "  global_store_dword v1, v3, s[26:27] offset:60"]
    r += ["  s_getreg_b32 s28, hwreg(HW_REG_XCC_ID)", "  s_and_b32 s28, s28, 15", "  v_mov_b32 v3, s28", "  global_store_dword v1, v3, s[26:27] offset:56"]
    return r
def vr(b, n=4): return f"v[{b}:{b+n-1}]" if n > 1 else f"v{b}"
def ar(b, n=4): return f"a[{b}:{b+n-1}]" if n > 1 else f"a{b}"
def srd(d, lo, nbytes):
    return L(f"s_mov_b32 s{d}, s{lo}\ns_and_b32 s{d+1}, s{lo+1}, 0xffff\ns_mov_b32 s{d+2}, {nbytes}\ns_mov_b32 s{d+3}, 0x20000")
def isvm(x): return x.strip().startswith(("buffer_", "global_"))
def islg(x): return x.strip().startswith("ds_")
def tag(lines, t): return [x + f" ;#{t}" if (isvm(x) or islg(x)) else x for x in lines]
def W(vm=(), lg=()):
    vm = [vm] if isinstance(vm, str) else list(vm); lg = [lg] if isinstance(lg, str) else list(lg)
    return [f"  ;WAIT vm={','.join(vm)} lg={','.join(lg)}"]
def resolve(lines):
    out = []; vm = []; lg = []
    for x in lines:
        t = x.strip()
        if t.startswith(";MARK"):
            nm = t.split()[1]; vm.append(("m", nm)); lg.append(("m", nm)); continue
        if t.startswith(";WAIT"):
            m = re.match(r";WAIT vm=(\S*) lg=(\S*)", t); parts = []
            for names, hist, cn, mx in ((m.group(1), vm, "vmcnt", 63), (m.group(2), lg, "lgkmcnt", 15)):
                if not names: continue
                names = names.split(",")
                if names == ["*"]: parts.append(f"{cn}(0)"); continue
                idx = [i for i, h in enumerate(hist) if h[1] in names]
                for nme in names: assert any(h[1] == nme for h in hist), ("unknown tag", nme)
                n = sum(1 for h in hist[max(idx)+1:] if h[0] == "o")
                parts.append(f"{cn}({min(n, mx)})")
            out.append("  s_waitcnt " + " ".join(parts)); continue
        tg = re.search(r";#(\S+)", t); nm = tg.group(1) if tg else None
        kind = "n" if ";nocount" in t else "o"
        if isvm(x): vm.append((kind, nm))
        elif islg(x): lg.append((kind, nm))
        out.append(x)
    return out
def glue(lines):
    out = []; cur = []
    for x in lines:
        t = x.strip()
        if cur and not t.startswith(("s_cselect", "s_addc", "s_cbranch", "s_mov_b32")) and not t.endswith(":"):
            out.append(cur); cur = []
        if t.startswith(("s_cmp", "s_bitcmp")) or cur or (t.startswith("s_add_u32") and ";C" in t): cur.append(x)
        else: out.append([x])
    if cur: out.append(cur)
    return out
def place(M, lists):
    gaps = [[] for _ in M]
    for items, g0, g1 in lists:
        if not items: continue
        items = glue(items); n = g1 - g0 + 1
        for k, x in enumerate(items): gaps[g0 + k*n//len(items)] += x
    out = []
    for m, g in zip(M, gaps): out += [m] + g
    return out
def inter(main, groups, first=0):
    main = glue(main); out = []; n = len(main); G = len(groups); gi = 0
    for i, x in enumerate(main):
        while gi < G and i >= first + gi*(n - first)//G: out += groups[gi]; gi += 1
        out += x
    while gi < G: out += groups[gi]; gi += 1
    return out
def grp(lines, k):
    out = []; cur = []
    for x in lines:
        if isvm(x) and sum(map(isvm, cur)) == k:
            tail = []
            while cur and not isvm(cur[-1]): tail.insert(0, cur.pop())
            out.append(cur); cur = tail
        cur.append(x)
    if cur: out.append(cur)
    return out
OUTL = A()
def check(tg, vaddr, vdst, lead=False):
    if lead: a = L(f"v_cmp_ne_u32 vcc, s39, v{vdst}\ns_nop 1\ns_and_b64 vcc, vcc, s[56:57]\ns_cbranch_scc1 {tg}_slow\n{tg}_ok:\ns_barrier")
    else: a = L(f"v_cmp_ne_u32 vcc, s39, v{vdst}\ns_nop 1\ns_cmp_lg_u64 vcc, 0\ns_cbranch_scc1 {tg}_slow\n{tg}_ok:")
    OUTL(f"""
    {tg}_slow:
    s_mov_b32 s38, {OPT['spin']}
    {tg}_again:
    s_sleep {OPT.get('sleep', 4)}
    buffer_load_dword v{vdst}, v{vaddr}, s[16:19], 0 offen sc1
    s_sub_u32 s38, s38, 1
    s_cmp_eq_u32 s38, 0
    s_cbranch_scc1 {tg}_ok
    s_waitcnt vmcnt(0)
    v_cmp_ne_u32 vcc, s39, v{vdst}
    s_nop 1
    s_cmp_lg_u64 vcc, 0
    s_cbranch_scc1 {tg}_again
    s_branch {tg}_ok
    """)
    return a
def poll(vaddr, vdst, t, so="0"): return [f"  buffer_load_dword v{vdst}, v{vaddr}, s[16:19], {so} offen sc1 ;#{t}"]
def flag(soff, r=None):
    d, o = (3, 6) if r is None else (r, r + 1)
    return L(f"v_mov_b32 v{d}, s39\nv_lshlrev_b32 v{o}, 25, v7\nbuffer_store_dword v{d}, v{o}, s[16:19], {soff} offen sc1")

ACC = 8; CS = 128; AB = [148, 172]; BB = [196, 216]; VX = 236; VW = 242; LA = 247; LB = 249; VF = 255
L2B = CS
ONES = 240
def acc(T, t): return ACC + (T*5 + t)*4
def g1_mfma(buf, tr, first):
    M = []
    for T in range(6):
        for t in (range(5) if T % 2 == 0 else range(4, -1, -1)):
            x = vr(AB[buf] + 4*T); w = vr(BB[buf] + 4*t); d = vr(acc(T, t))
            p, q = (w, x) if tr else (x, w)
            M.append(f"  v_mfma_f32_16x16x32_bf16 {d}, {p}, {q}, {'0' if first else d}")
    return M
def g1_cs(buf):
    return [f"  v_mfma_f32_16x16x32_bf16 {vr(CS+4*t)}, {ar(ONES)}, {vr(BB[buf]+4*t)}, {'0' if buf == 0 else vr(CS+4*t)}" for t in range(5)]
def g1_reads(k):
    buf = k & 1; st = (k//2) % 3
    la, lb, so = (LA, LB, st*STAGE) if st < 2 else (L2B, L2B + 2, 0)
    R = []
    def b(t):
        u2, h2 = (64, 1280) if OPT["wrow"] else (1024, 256)
        base = lb + (2 if t == 4 else (t & 1)); off = so + buf*10240 + (u2 if t in (2, 3) else 0)
        return [f"  ds_read_b64_tr_b16 {vr(BB[buf]+4*t,2)}, v{base} offset:{off}",
                f"  ds_read_b64_tr_b16 {vr(BB[buf]+4*t+2,2)}, v{base} offset:{off+h2}"]
    def x(T): return [f"  ds_read_b128 {vr(AB[buf]+4*T)}, v{la+buf} offset:{so+T*2048}"]
    R += x(0)
    for t in range(5): R += b(t)
    for T in range(1, 6): R += x(T)
    return tag(R, f"r{k}")
def dma_x(c):
    so = (c % 3)*STAGE; Dm = []
    for j in range(6):
        if j in (0, 4): Dm.append(f"  s_add_u32 m0, s40, {so + 1024*j}")
        Dm.append(f"  buffer_load_dwordx4 v{VX+j}, s[8:11], s42 offen offset:{1024*(j%4)} lds")
    return tag(Dm, f"c{c}")
def dma_w(c):
    so = (c % 3)*STAGE; Dm = []
    for j in range(5):
        if OPT["wrow"]:
            if j in (0, 4): Dm.append(f"  s_add_u32 m0, s41, {so + 1024*j}")
            Dm.append(f"  buffer_load_dwordx4 v{VW+j}, s[12:15], s43 offen offset:{1024*(j%4)}{' nt' if (c == 0 and OPT.get('wnt')) else ''} lds")
            continue
        Dm.append(f"  s_add_u32 m0, s41, {so + 1024*j}")
        Dm.append(f"  buffer_load_dwordx4 v{VW+j}, s[12:15], s43 offen lds")
    return tag(Dm, f"c{c}")
def dma_next(c):
    if OPT["krot"]:
        first = "s_mov_b32 s44, s67" if c == 1 else "s_add_u32 s44, s44, 1\ns_cmp_eq_u32 s44, 10\ns_cselect_b32 s44, 0, s44"
        return L(first + f"""
        s_cmp_eq_u32 s44, s54
        s_addc_u32 s44, s44, 0
        s_cmp_eq_u32 s44, 10
        s_cselect_b32 s44, 0, s44
        s_lshl_b32 s42, s44, 7
        s_mul_i32 s43, s44, s45""")
    return L(f"s_cmp_le_u32 s54, {c-1}\ns_cselect_b32 s44, {c}, {c-1}\ns_lshl_b32 s42, s44, 7\ns_mul_i32 s43, s44, s45")
def breg(s, t): return ar(s*20 + 4*t)
def bstream(i0, n):
    out = []
    for i in range(i0, i0 + n):
        s, t = divmod(i, 5)
        if t == 0 or i == i0:
            out.append(f"  s_add_u32 s68, s46, {8*16384*s}")
            if s == 6: out += L(f"s_cmp_lt_u32 s20, 3\ns_cselect_b32 s68, s68, {OOB}")
        if t < 4: out.append(f"  buffer_load_dwordx4 {breg(s,t)}, v4, s[16:19], s68 offen offset:{1024*t} sc1 ;#B{s}")
        else: out.append(f"  buffer_load_dwordx4 {breg(s,t)}, v5, s[16:19], s68 offen sc1 ;#B{s}")
    return out
class Stream:
    def __init__(self, items): self.items = list(items)
    def take(self, n):
        it, self.items = self.items[:n], self.items[n:]
        assert len(it) == n
        out = []; k = 0
        while k < len(it):
            j = k
            while j + 1 < len(it) and it[j+1] == (it[j][0], it[j][1] + 1): j += 1
            out += (bstream if it[k][0] == "B" else wo_dma)(it[k][1], j - k + 1); k = j + 1
        return out
def wo_dma(i0, n):
    out = []
    for i in range(i0, i0 + n):
        j, t = divmod(i, 5)
        if t in (0, 4) or i == i0: out += [f"  s_add_u32 m0, s69, {20480*j + (4096 if t == 4 else 0)}", f"  s_add_u32 s71, s70, {65536*j}"]
        out.append(f"  buffer_load_dwordx4 v{4 if t < 4 else 5}, s[16:19], s71 offen offset:{1024*(t%4)} sc1 lds ;#wo{j}")
    return out
PRODS = [(0,3),(0,4),(1,3),(1,4),(1,5),(2,3),(2,4),(2,5)]
KVOF = [240, 241, 242, 243, 244, 245, 246, 255]

def setup_s():
    return L(f"""
    s_cmp_lt_u32 s22, 12
    s_cselect_b32 s83, {LOG2E}, {LOG2E | 0x80000000}
    s_mul_i32 s76, s21, 3
    s_add_u32 s76, s76, s51
    s_add_u32 s77, s76, 1
    """) + blk(80, 76, "h", 28, 29) + blk(81, 77, "h", 28, 29) + blk(78, 76, "q", 28, 29) + blk(79, 77, "q", 28, 29) + L(f"""
    s_cmp_lt_u32 s22, 12
    s_cselect_b32 s80, s78, s80
    s_cselect_b32 s81, s79, s81
    s_cmp_ge_u32 s76, 32
    s_cselect_b32 s80, {OOB}, s80
    s_cmp_ge_u32 s77, 32
    s_cselect_b32 s81, {OOB}, s81
    s_lshl_b32 s28, s51, 11
    s_add_u32 s82, s81, s28              ; row tile 4
    s_add_u32 s29, s80, 2048
    s_add_u32 s80, s80, s28              ; row tile 0
    s_cmp_eq_u32 s51, 0
    s_cselect_b32 s81, s29, s81          ; row tile 2
    s_mul_i32 s61, s23, 5
    s_mul_i32 s28, s52, 3
    s_add_u32 s62, s61, s28
    s_add_u32 s63, s62, 1
    s_add_u32 s61, s61, 2
    s_lshl_b32 s28, s23, 1
    s_add_u32 s28, s28, s52
    s_add_u32 s29, s28, 22
    s_add_u32 s30, s23, 43
    s_cmp_lt_u32 s22, 12
    s_cselect_b32 s62, s62, s28
    s_cselect_b32 s63, s63, s29
    s_cselect_b32 s61, s61, s30
    s_cselect_b32 s75, {OOB}, {FPD}
    s_cmp_eq_u32 s63, 43
    s_cselect_b32 s63, {OOB >> 13}, s63
    """) + cell(62, 62, 28) + cell(63, 63, 28) + cell(61, 61, 28) + L(f"""
    s_lshl_b32 s28, s52, 9
    s_add_u32 s61, s61, s28
    s_add_u32 s75, s75, s67
    """)
def setup_t():
    return L(f"""
    v_add_u32 v{VX}, s62, v4
    v_add_u32 v{VX+1}, s63, v4
    v_and_b32 v3, 1, v2
    v_lshlrev_b32 v3, 10, v3
    v_lshrrev_b32 v254, 1, v2
    v_lshl_add_u32 v3, v254, 8, v3
    v_lshl_add_u32 v3, v1, 4, v3
    v_add_u32 v{VX+2}, s61, v3
    v_mov_b32 v{VX+4}, 0x358637bd
    v_mov_b32 v{VX+5}, 0x358637bd
    """)
def setup_n0():
    a = A()
    a(f"""
    v_and_b32 v1, 15, v7
    v_lshrrev_b32 v2, 4, v7
    v_cmp_gt_u32 s[32:33], 8, v1
    s_cmp_eq_u32 s21, 10
    s_cselect_b32 s36, s51, 0
    s_lshl_b32 s37, s22, 1
    s_add_u32 s37, s37, s52
    s_lshl_b32 s37, s37, 12
    s_add_u32 s37, s37, {KVP}
    s_lshl_b32 s60, s20, 12
    s_add_u32 s60, s60, {KVX}
    v_and_b32 v254, 31, v7
    v_add_u32 v254, 224, v254
    """)
    for n, (kx, vy) in enumerate(PRODS):
        eoff = {3: -8, 4: 8, 5: 24}[vy]; o = 252
        a(f"""
        v_add_u32 v3, {4*kx}, v2
        v_cmp_le_u32 vcc, 5, v3
        v_add_u32 v{o}, {eoff}, v1
        v_cmp_gt_u32 s[62:63], 10, v3
        v_cndmask_b32 v253, 0, 20, vcc
        v_sub_u32 v{o}, v{o}, v253
        """)
        if vy == 3: a(f"v_cmp_eq_u32 vcc, 0, v1\nv_cndmask_b32 v253, v{o}, 0, vcc\nv_cndmask_b32 v{o}, v{o}, 20, vcc\nv_cmp_gt_u32 vcc, 20, v253")
        else: a(f"v_cmp_gt_u32 vcc, 20, v{o}")
        a(f"""
        v_mad_u32_u24 v{o}, v3, 21, v{o}
        s_and_b64 vcc, vcc, s[62:63]
        v_cndmask_b32 v{o}, v254, v{o}, vcc
        v_lshl_add_u32 v{o}, v{o}, 4, s60
        v_accvgpr_write_b32 a{244+n}, v{o}
        """)
    return list(a)
def setup_n():
    return L(f"s_mov_b32 s30, {LOG2E}\ns_mov_b32 s31, {LOG2E}") + [f"  v_accvgpr_read_b32 v{KVOF[n]}, a{244+n}" for n in range(8)]

def g1_main(tg, tr, st):
    a = A()
    pf = OPT["pf_t"] if tr else OPT["pf_n"]
    a += W("c0"); a("s_barrier"); a += stamp("k0")
    a += g1_reads(0) + W(lg="r0")
    mv = OPT["keep"]
    d0 = [] if mv >= 1 else ((d_pack_src() if tr else []) + d_cs())
    a += place(g1_mfma(0, tr, True) + g1_cs(0), [(g1_reads(1), 0, 17), (dma_x(2) + dma_w(2), 0, 33), (d0, 4, 34)])
    def spread(items, ks):
        g = glue(items); return {k: sum(g[i*len(g)//len(ks):(i+1)*len(g)//len(ks)], []) for i, k in enumerate(ks)}
    if tr:
        dfr = spread(d_misc() + setup_s(), [4, 5, 6, 7, 8, 9, 10, 11, 12])
        if mv < 2: dfr[2] = d_pack_dst()
        if OPT["touch"]: dfr[2] = d_touch() + dfr.get(2, [])
    else: dfr = spread((d_touch() if OPT["touch"] else []) + d_misc(), [2, 3, 4])
    a += W(lg="r1")
    a += g1_cs(1)
    PKD, PKR, PKS = (OPT["pkd"], OPT["pkr"], OPT["pks"]) if tr else (None, None, {})
    pk_d = []
    for i in range(5):
        pk_d += [f"  s_add_u32 m0, s53, {896*i}", f"  buffer_load_dwordx4 v252, s[56:59], s55 offen offset:{128*i} nt lds ;#pk"]
    pk_r = []
    for t in range(5):
        if t: pk_r += L(f"s_cmp_eq_u32 s20, {4-t}\ns_cselect_b32 s28, 896, 0\nv_add_u32 v1, s28, v1\nv_add_u32 v2, s28, v2")
        pk_r += [f"  ds_read_b64_tr_b16 {ar(16+4*t,2)}, v1 offset:{32*t}", f"  ds_read_b64_tr_b16 {ar(18+4*t,2)}, v2 offset:{32*t}"]
    pk_s = [f"  buffer_store_dwordx4 {ar(16+4*t)}, v{4 if t < 4 else 5}, s[16:19], s{60 if c == 0 else 53} offen offset:{1024*(t%4)} sc1 ;#ps" for t in range(5) for c in range(2 if OPT["mode"] == "dup" else 1)]
    pk_r.append("  s_add_u32 s53, s60, 8192")
    cs_st = L(f"""
    v_cmp_le_u32 vcc, 16, v7
    v_cmp_le_u32 s[28:29], 32, v7
    v_cmp_le_u32 s[30:31], 48, v7
    v_cndmask_b32 v{CS+17}, v{CS}, v{CS+4}, vcc
    v_cndmask_b32 v{CS+17}, v{CS+17}, v{CS+8}, s[28:29]
    v_cndmask_b32 v{CS+17}, v{CS+17}, v{CS+12}, s[30:31]
    buffer_store_dword v{CS+17}, v253, s[16:19], s64 offen sc1 ;#cs
    buffer_store_dword v{CS+16}, v254, s[16:19], s64 offen sc1 ;#cs
    """) + [f"  v_add_u32 v{L2B+i}, {2*STAGE}, v{LA+i}" for i in range(5)]
    auxa = L(f"""
    v_lshlrev_b32 v3, 4, v0
    v_add_u32 v252, s74, v3
    v_add_u32 v253, 4096, v252
    v_cmp_le_u32 vcc, 144, v0
    v_add_u32 v3, s65, v3
    v_cmp_le_u32 s[28:29], s66, v0
    v_cndmask_b32 v253, v253, v3, vcc
    v_add_u32 v3, {RSTD - NEGM - 768}, v3
    v_cmp_le_u32 vcc, 240, v0
    v_cndmask_b32 v253, v253, v3, s[28:29]
    v_mov_b32 v3, {OOB}
    v_cndmask_b32 v253, v253, v3, vcc
    v_and_b32 v1, 15, v7
    v_lshrrev_b32 v2, 4, v7
    """)
    polx = [f"  s_xor_b32 s{r}, s{r}, s3" for r in ((46, 70, 80, 81, 82) if OPT["mode"] == "dup" else (80, 81, 82))]
    aux = L(f"""
    s_mov_b32 m0, s72
    s_nop 0
    buffer_load_dwordx4 v252, s[16:19], 0 offen sc1 lds ;#aux
    s_add_u32 m0, s72, 4096
    s_nop 0
    buffer_load_dwordx4 v253, s[16:19], 0 offen sc1 lds ;#aux
    """) + flag("s73")
    y1 = L(f"v_lshlrev_b32 v252, 2, v0\nv_add_u32 v252, {AUXC}, v252") + tag([f"  ds_read_b32 v{CS+i}, v252 offset:{640*i}" for i in range(10)], "y1")
    y2 = [f"  v_add_f32 v{CS}, v{CS}, v{CS+i}" for i in range(1, 10)] + [f"  ds_write_b32 v252, v{CS} offset:{CSL-AUXC} ;#y2"]
    rd = L("s_mul_i32 s28, s51, 384\ns_add_u32 s28, s28, %d" % AUXM)
    if tr:
        rd += L(f"v_lshlrev_b32 v6, 4, v2\nv_add_u32 v252, s34, v6\nv_add_u32 v253, s35, v6\nv_lshl_add_u32 v3, v1, 2, s28")
        rd += [f"  ds_read_b128 {vr(CS+4*t)}, v252 offset:{64*t}" for t in range(4)] + [f"  ds_read_b128 {vr(CS+16)}, v253"]
        for T in range(6): rd += [f"  ds_read_b32 v{AB[0]+4*T}, v3 offset:{64*T}", f"  ds_read_b32 v{AB[0]+4*T+1}, v3 offset:{768+64*T}"]
    else:
        rd += L(f"v_lshlrev_b32 v6, 2, v1\nv_add_u32 v252, s34, v6\nv_lshl_add_u32 v3, v2, 4, s28")
        rd += [f"  ds_read_b32 v{CS+4*t}, v252 offset:{64*t}" for t in range(5)]
        for T in range(6): rd += [f"  ds_read_b128 {vr(AB[0]+4*T)}, v3 offset:{64*T}"]
        for T in range(5): rd += [f"  ds_read_b128 {vr(BB[0]+4*T)}, v3 offset:{768+64*T}"]
        rd += [f"  ds_read_b128 {vr(VX)}, v3 offset:{768+64*5}"]
    su = setup_t() if tr else setup_n()
    e0 = glue(setup_n0()); early = {} if tr else {6 + i: sum(e0[i*len(e0)//6:(i+1)*len(e0)//6], []) for i in range(6)}
    nb = 0; fb, pb = (OPT["flagb"] if tr else OPT["flagb_n"]), OPT["pollb"]; nps = 0
    for k in range(1, 20):
        c = (k - 1)//2
        M = g1_mfma(k & 1, tr, False)
        ls = []
        if k & 1:
            if c == pb and tr: a("k_t_join:")
            if k > 1: a += W(lg=[f"r{k}"] + (["y2"] if k == 19 else []) + (["pr"] if k - 1 == PKR else []))
            a.append(M.pop(0))
            vm = [f"c{c+1}"] if c < 9 else []
            if c == fb: vm += ["cs", "ss"] + (["ps"] if tr else [])
            if k == PKR: vm += ["pk"]
            if c == pb + 1: vm += ["pa"]
            if c == 8: vm += ["aux"]
            if vm: a += W(vm)
            if c == pb + 1: a += check(tg + "_sa", 6, VF)
            a("s_barrier")
            if c == 0: a += stamp("b0")
            if c == 7: a += stamp("tail")
            a += stamp(f"b{c}") if c > 0 else []
            if c == fb: ls.append((flag("s49"), 0, 2))
            if c == pb: ls.append((L(f"v_lshlrev_b32 v6, {OPT['fash']}, v0\nv_add_u32 v6, {FA}, v6") + poll(6, VF, "pa"), 0, 2))
            if OPT["pol"] != "race":
                if c == pb + 1: ls.append((polx, 0, 2))
            else:
                assert OPT["mode"] == "rows"
                if c == 7: ls.append((L(f"v_mov_b32 v{CS+18}, {PW}\nbuffer_load_dword v{CS+19}, v{CS+18}, s[16:19], 0 offen sc1 ;#aux"), 0, 1))
                if c == 8: ls.append((L(f"v_readfirstlane_b32 s3, v{CS+19}\ns_and_b32 s3, s3, 8192") + polx, 22, 28))
            if c == 7: ls.append(([x for x in aux], 0, 2))
            dx, dw = (dma_next(c+3) + dma_x(c+3), dma_w(c+3)) if c + 3 <= 9 else ([], [])
            if k == PKD: ls += [(pk_d, 0, 9), (dx[:-4], 14, 28)]
            else: ls.append((dx, 1, 27))
            if k == PKR: ls.append((tag(pk_r, "pr"), 10, 26))
            if c == 0: ls.append((cs_st, 12, 27))
            if c == 8: ls.append((y1, 8, 22))
        else:
            a += W(lg=[f"r{k}"] + (["y1"] if c == 8 else []) + (["pr"] if k - 1 == PKR else []))
            if k - 1 == PKD: ls.append((dx[-4:] + dw, 0, 28))
            else: ls.append((dw, 1, 27))
            if c == 6: ls.append((auxa, 17, 28))
            if c == 8: ls.append((y2, 0, 12))
        if PKS.get(k): ls.append((pk_s[nps:nps+PKS[k]], 2, 28 if nps + PKS[k] < len(pk_s) else 18)); nps += PKS[k]
        if k < 19: ls.insert(0, (g1_reads(k+1), 1 if k & 1 else 0, 17))
        else: ls.insert(0, (rd, 0, 22))
        if k == 16: ls.append((su, 18, 28))
        if k in early: ls.append((early[k], 4, 28))
        if k in dfr: ls.append((dfr[k], 0 if k == 2 else 6, 28))
        if k == OPT["cpf2"]:
            ls.append((L(f"v_add_u32 v{CS+8}, s50, v4\nv_min_u32 v{CS+8}, CODE_MAX, v{CS+8}\ns_cmp_gt_u32 s50, CODE_MAX\ns_cbranch_scc1 {tg}_c2\nglobal_load_dwordx4 {vr(CS+12)}, v{CS+8}, s[0:1] ;nocount\n{tg}_c2:"), 29 - (k & 1), 29 - (k & 1)))
        if pf.get(k):
            assert c > pb
            assert all(x[0] == "B" for x in st.items[:pf[k]])
            ls.append((st.take(pf[k]), 3, 28))
        a += place(M, ls)
    a += stamp("lend")
    return a

def stats_math():
    a = A(); src = 8; tmp = 20; ac = 44
    for i in range(12):
        a(f"v_lshlrev_b32 v{tmp+2*i}, 16, v{src+i}\nv_and_b32 v{tmp+2*i+1}, 0xffff0000, v{src+i}")
    a(f"v_pk_add_f32 {vr(ac,2)}, {vr(tmp,2)}, {vr(tmp+2,2)}")
    for i in range(2, 12): a(f"v_pk_add_f32 {vr(ac,2)}, {vr(ac,2)}, {vr(tmp+2*i,2)}")
    def red():
        a(f"v_add_f32 v{ac}, v{ac}, v{ac+1}")
        for r in (8, 4, 2, 1): a(f"v_add_f32_dpp v{ac}, v{ac}, v{ac} row_ror:{r} row_mask:0xf bank_mask:0xf")
        a(f"v_mov_b32 v{ac+1}, v{ac}\nv_permlane16_swap_b32 v{ac}, v{ac+1}\nv_add_f32 v{ac}, v{ac}, v{ac+1}")
    red()
    a(f"v_mul_f32 v46, 0xbacccccd, v{ac}")
    a(f"v_cndmask_b32 v47, 0, v46, s[32:33]")
    for i in range(8): a(f"v_pk_add_f32 {vr(tmp+2*i,2)}, {vr(tmp+2*i,2)}, v[46:47] op_sel_hi:[1,0]")
    for i in range(8, 12): a(f"v_pk_add_f32 {vr(tmp+2*i,2)}, {vr(tmp+2*i,2)}, v[46:47] op_sel:[0,1] op_sel_hi:[1,1]")
    a(f"v_pk_mul_f32 {vr(ac,2)}, {vr(tmp,2)}, {vr(tmp,2)}")
    for i in range(1, 12): a(f"v_pk_fma_f32 {vr(ac,2)}, {vr(tmp+2*i,2)}, {vr(tmp+2*i,2)}, {vr(ac,2)}")
    red()
    a(f"""
    v_mov_b32 v{ac+1}, 0x3727c5ac
    v_fmac_f32 v{ac+1}, 0x3acccccd, v{ac}
    v_rsq_f32 v{ac+1}, v{ac+1}
    v_and_b32 v48, 31, v7
    v_cmp_eq_u32 vcc, 0, v48
    v_lshrrev_b32 v49, 5, v7
    v_lshlrev_b32 v49, 2, v49
    v_cndmask_b32 v46, v{ac+1}, v46, vcc
    v_lshl_add_u32 v49, v48, 13, v49
    v_cmp_gt_u32 vcc, 2, v48
    v_mov_b32 v50, {OOB}
    s_lshl_b32 s28, s48, 3
    s_add_u32 s28, s28, {NEGM}
    v_cndmask_b32 v49, v50, v49, vcc
    buffer_store_dword v46, v49, s[16:19], s28 offen sc1 ;#ss
    s_lshl_b32 s28, s2, 8
    s_add_u32 s28, s28, {KVP}
    s_cmp_eq_u32 s20, 1
    s_cselect_b32 s28, s28, {OOB}
    v_lshlrev_b32 v49, 2, v7
    v_mov_b32 v50, 0
    buffer_store_dword v50, v49, s[16:19], s28 offen sc1 ;#ss
    """)
    return list(a)

def prologue():
    a = A()
    a += stamp("entry")
    a(f"""
    s_load_dwordx16 s[60:75], s[0:1], 0
    s_load_dwordx2 s[26:27], s[0:1], 64
    s_cmp_ge_u32 s2, 256
    s_cbranch_scc1 k_end
    s_and_b32 s3, s2, 7
    s_lshl_b32 s3, s3, 5
    s_lshr_b32 s21, s2, 3
    s_add_u32 s3, s3, s21                ; lin
    s_mul_i32 s35, {"s3" if OPT["slin"] else "s2"}, 10240
    v_lshrrev_b32 v1, 5, v0
    v_mul_u32_u24 v1, {1280-512}, v1
    v_lshl_add_u32 v52, v0, 4, v1
    v_and_b32 v1, 16, v0
    v_lshl_add_u32 v53, v1, 26, v52      ; lanes whose third piece is past the row: out of range
    s_mov_b32 s10, {S*D*2}
    s_mov_b32 s11, 0x20000
    """)
    ld = L("s_waitcnt lgkmcnt(0)\ns_mov_b32 s8, s60\ns_and_b32 s9, s61, 0xffff") + stamp("karg")
    for j in range(3): ld.append(f"  buffer_load_dwordx4 {vr(8+4*j)}, v{53 if j == 2 else 52}, s[8:11], s35 offen offset:{512*j} ;#sl")
    if OPT["head"] == 0: a += ld
    a(f"""
    s_getpc_b64 s[36:37]
    v_cmp_eq_u32 s[32:33], 0, v1
    v_lshrrev_b32 v1, 6, v0
    v_and_b32 v7, 63, v0                 ; lane
    v_readfirstlane_b32 s20, v1          ; wave
    s_cmp_lt_u32 s3, 138
    s_cselect_b32 s28, 0, 138
    s_cselect_b32 s29, 10923, 13108
    s_cselect_b32 s30, 6, 5
    s_cselect_b32 s31, 0, 6
    s_sub_u32 s28, s3, s28
    s_mul_i32 s22, s28, s29
    s_lshr_b32 s22, s22, 16
    s_mul_i32 s30, s22, s30
    s_sub_u32 s21, s28, s30
    s_add_u32 s21, s21, s31              ; rb
    s_cmp_ge_u32 s3, 253
    s_cselect_b32 s21, 11, s21
    s_min_u32 s54, s21, 9                ; start chunk
    """)
    xa = A()
    xa(f"""
    s_lshl_b32 s28, s21, 2
    s_add_u32 s28, s28, s20
    s_mul_i32 s28, s28, {48*1280}
    v_lshrrev_b32 v1, 3, v7              ; r8
    v_lshrrev_b32 v2, 1, v1
    v_and_b32 v3, 7, v7
    v_xor_b32 v2, v2, v3
    v_mul_u32_u24 v1, 1280, v1
    v_lshl_add_u32 v252, v3, 4, v1
    v_add_u32 v1, s28, v1
    v_lshl_add_u32 v{VX}, v2, 4, v1
    v_xor_b32 v2, 4, v2
    v_lshl_add_u32 v6, v2, 4, v1
    """)
    for j in range(1, 6): xa(f"v_add_u32 v{VX+j}, {j*10240 - 1024*(j%4)}, v{6 if j & 1 else VX}")
    xa("s_mul_i32 s40, s20, 6144\ns_lshl_b32 s42, s54, 7")
    wa = A()
    wa(f"""
    s_sub_u32 s28, 22, s22
    s_cmp_lt_u32 s3, 138
    s_cselect_b32 s22, s22, s28
    s_mul_i32 s28, s22, 43
    s_lshr_b32 s28, s28, 8               ; g = p/6
    s_mul_i32 s29, s28, 6
    s_sub_u32 s29, s22, s29              ; r
    s_mul_i32 s30, s28, 3
    s_add_u32 s30, s30, s29
    s_add_u32 s30, s30, 9                ; w1: 12+3g+r-3
    s_lshl_b32 s31, s28, 1
    s_add_u32 s31, s31, s29
    s_sub_u32 s31, s31, 1                ; kv: 2g+r-1
    s_add_u32 s28, s28, 8                ; q
    s_cmp_lt_u32 s29, 3
    s_cselect_b32 s22, s31, s30
    s_cmp_eq_u32 s29, 0
    s_cselect_b32 s22, s28, s22
    s_cmp_ge_u32 s3, 253
    s_cselect_b32 s22, 12, s22
    s_cmp_lt_u32 s22, 12
    s_cselect_b32 s12, s62, s68
    s_cselect_b32 s13, s63, s69
    s_cselect_b32 s14, {D*3*D*2}, {D*F*2}
    s_cselect_b32 s50, 3840, 3456        ; W row stride
    s_cselect_b32 s28, 8, 12
    s_and_b32 s13, s13, 0xffff
    s_mov_b32 s15, 0x20000
    s_lshl_b32 s45, s50, 6
    s_sub_u32 s23, s22, s28
    s_mul_i32 s29, s23, 320
    s_mul_i32 s30, s22, 160
    s_add_u32 s30, s30, 1280
    s_cmp_lt_u32 s22, 8
    s_cselect_b32 s29, s30, s29
    s_cselect_b32 s30, 1200, 0
    s_cselect_b32 s31, -80, 0
    s_lshl_b32 s28, s20, 4
    s_mul_i32 s28, s28, s50
    s_add_u32 s29, s29, s28
    s_mul_i32 s41, s20, 5120
    s_add_u32 s41, s41, {WOFF}
    s_mul_i32 s43, s54, s45
    s_movk_i32 s28, -20
    v_xor_b32 v54, 2, v7                 ; rows 8..15 swap adjacent 32-byte units
    v_lshrrev_b32 v55, 4, v7
    v_and_b32 v55, 2, v55
    v_xor_b32 v55, v55, v7
    """)
    dw = grp(dma_w(0), 1); wj = []
    for jj in range(5):
        src = 7 if jj < 2 else 55 if jj == 2 else 54
        b = A()
        if jj: b(f"v_add_u32 v1, {64*jj}, v{src}")
        q = 1 if jj else 7
        b(f"""
        v_mul_u32_u24 v2, 3277, v{q}
        v_lshrrev_b32 v2, 16, v2
        v_mad_i32_i24 v3, v2, s28, v{q}
        v_mul_u32_u24 v2, s50, v2
        v_lshl_add_u32 v2, v3, 4, v2
        v_mul_u32_u24 v3, 205, v3
        v_bfe_u32 v1, v3, 10, 1
        v_lshrrev_b32 v3, 11, v3
        v_mad_u32_u24 v2, v1, s30, v2
        v_mad_i32_i24 v2, v3, s31, v2
        v_add_u32 v{VW+jj}, s29, v2
        """)
        if jj < 3: b("s_sub_u32 s29, s29, 1024")
        if jj == 3: b("s_add_u32 s29, s29, 3072")
        wj.append(list(b))
    if OPT["wfirst"]:
        a += wa
        for jj in range(5): a += wj[jj] + dw[jj]
        a += stamp("w0i") + xa
        first = grp(dma_x(0), 1)
    else:
        if OPT["head"] == 0: a += xa + dma_x(0) + wa + sum(wj, [])
        elif OPT["head"] == 1: a += xa + ld + dma_x(0) + wa + sum(wj, [])
        elif OPT["head"] == 2: a += wa[:20] + ld + xa + dma_x(0) + wa[20:] + sum(wj, [])
        elif OPT["head"] == 4: a += wa[:20] + xa + ld + dma_x(0) + wa[20:] + sum(wj, [])
        elif OPT["head"] == 5:
            ptr = [x for x in wa if re.match(r"\s*s_(cselect|and)_b32 s1[23],", x)]
            a += xa + [x for x in wa if x not in ptr] + ld + dma_x(0) + L("s_cmp_lt_u32 s22, 12") + ptr + sum(wj, [])
        elif OPT["head"] == 3: a += xa + ld[:3] + wa + sum(wj, []) + ld[3:] + dma_x(0)
        first = dw
    a(f"""
    s_load_dword s39, s[26:27], 0
    v_lshlrev_b32 v4, 4, v7
    s_lshl_b32 s48, {"s3" if OPT["slin"] else "s2"}, 2
    s_add_u32 s48, s48, s20              ; stats job
    s_and_b32 s36, s36, 0xffffff00
    s_lshr_b32 s28, s2, 3
    s_lshl_b32 s29, s20, 5
    s_add_u32 s28, s28, s29
    s_add_u32 s28, s28, 2
    s_mov_b64 s[0:1], s[36:37]
    s_lshl_b32 s50, s28, 10
    s_cmp_ge_u32 s28, CODE_KB
    s_cbranch_scc1 k_nocp
    v_add_u32 v1, s50, v4
    v_min_u32 v1, CODE_MAX, v1
    global_load_dwordx4 v[128:131], v1, s[0:1] ;nocount
    k_nocp:
    """)
    su = A()
    su += srd(16, 26, WS_USED)
    su(f"""
    s_lshr_b32 s51, s20, 1               ; wr
    s_and_b32 s52, s20, 1                ; wc
    v_lshrrev_b32 v59, 4, v7             ; g
    v_bfe_u32 v56, v7, 2, 2              ; rr
    v_and_b32 v57, 3, v7                 ; c4
    v_and_b32 v58, 1, v59                ; g&1
    v_and_b32 v3, 15, v7                 ; m
    v_lshrrev_b32 v6, 1, v3
    v_xor_b32 v6, v6, v59
    s_mul_i32 s28, s51, 12288
    v_lshl_add_u32 v55, v3, 7, s28
    v_lshl_add_u32 v{LA}, v6, 4, v55
    v_xor_b32 v6, 4, v6
    v_lshl_add_u32 v{LA+1}, v6, 4, v55
    v_lshl_add_u32 v55, v59, 3, v56
    v_mul_u32_u24 v55, 320, v55
    v_lshl_add_u32 v55, v57, 3, v55
    v_add_u32 v55, {WOFF}, v55
    s_cmp_lt_u32 s22, 8
    s_cselect_b32 s34, 5, 6
    s_cselect_b32 s35, 9, 5
    s_cmp_eq_u32 s52, 0
    s_cselect_b32 s34, 0, s34
    s_cselect_b32 s35, 4, s35
    s_add_u32 s30, s34, 1
    """)
    for i, sreg in enumerate((34, 30, 35)):
        su(f"v_xor_b32 v6, s{sreg}, v58\nv_lshl_add_u32 v{LB+i}, v6, 5, v55")
    su(f"""
    v_mov_b32 v6, 0x3f803f80
    v_accvgpr_write_b32 a{ONES}, v6
    v_accvgpr_write_b32 a{ONES+1}, v6
    v_accvgpr_write_b32 a{ONES+2}, v6
    v_accvgpr_write_b32 a{ONES+3}, v6
    """)
    mv = OPT["keep"]
    if mv >= 1: su += d_pack_src() + d_cs()
    if mv >= 2: su += d_pack_dst()
    a += inter(su, first, OPT["sufirst"])
    a += stamp("c0i")
    a += dma_next(1)
    a += W("sl")
    a += stamp("sl")
    a += inter(stats_math(), grp(dma_x(1) + dma_w(1), 1))
    a += dma_next(2)
    a("s_waitcnt lgkmcnt(0)\ns_mul_i32 s39, s39, 1664525\ns_add_u32 s39, s39, 1013904223")
    a += stamp("pend")
    return a

def d_pack_src():
    return L(f"""
    s_sub_u32 s36, s22, 8
    s_mul_i32 s36, s36, 11
    s_add_u32 s36, s36, s21
    s_lshr_b32 s37, s36, 1               ; ks
    s_and_b32 s38, s36, 1
    s_cmp_lt_u32 s37, 54
    s_cselect_b32 s56, s70, s64
    s_cselect_b32 s57, s71, s65
    s_cmp_lt_u32 s37, 54
    s_cselect_b32 s58, {F*D*2}, {D*D*2}
    s_cmp_lt_u32 s37, 54
    s_cselect_b32 s28, 0, 54
    s_and_b32 s57, s57, 0xffff
    s_mov_b32 s59, 0x20000
    s_sub_u32 s28, s37, s28
    s_mul_i32 s28, s28, {32*1280}
    s_mul_i32 s29, s38, 640
    s_add_u32 s55, s28, s29
    s_mul_i32 s29, s20, 10240
    s_add_u32 s55, s55, s29              ; pack src (8 rows per wave)
    s_mul_i32 s53, s20, 5120
    s_add_u32 s53, s53, {PACKL}
    """)
def d_cs():
    return L(f"""
    s_lshl_b32 s34, s34, 6
    s_lshl_b32 s35, s35, 6
    v_lshl_add_u32 v253, v7, 2, s34
    v_lshl_add_u32 v254, v7, 2, s35
    v_and_b32 v6, 48, v7
    v_lshl_add_u32 v254, v6, 22, v254
    s_add_u32 s34, s34, {CSL}
    s_add_u32 s35, s35, {CSL}
    s_mul_i32 s62, s22, 6400
    s_add_u32 s62, s62, {CSP}
    s_mul_i32 s64, s21, 640
    s_add_u32 s64, s64, s62
    s_cmp_ge_u32 s21, 10
    s_cselect_b32 s64, {OOB}, s64
    s_cmp_eq_u32 s51, 1
    s_cselect_b32 s64, {OOB}, s64
    """)
def d_pack_dst():
    return L(f"""
    v_add_u32 v5, 4096, v4
    s_mul_i32 s28, s37, 205
    s_lshr_b32 s28, s28, 10              ; c
    s_mul_i32 s30, s28, 5
    s_sub_u32 s30, s37, s30              ; r
    s_lshl_b32 s29, s30, 3
    s_lshr_b32 s47, 0x01001600, s29      ; r -> 0, 22, -, 1
    s_and_b32 s47, s47, 255
    s_cmp_eq_u32 s30, 4
    s_cselect_b32 s47, 23, s47
    s_lshl_b32 s29, s28, 1
    s_add_u32 s47, s47, s29
    s_add_u32 s28, s28, 43
    s_cmp_eq_u32 s30, 2
    s_cselect_b32 s31, 1, 0
    s_cselect_b32 s47, s28, s47
    s_cmp_ge_u32 s37, 54
    s_cselect_b32 s31, 1, s31
    s_cselect_b32 s47, s37, s47          ; storage index
    s_lshl_b32 s28, 5120, s31            ; per g>>1
    s_mul_i32 s29, s31, 4608
    s_add_u32 s29, s29, 512              ; per g&1
    s_mul_i32 s30, s31, -9728
    s_add_u32 s30, s30, 10240
    v_lshrrev_b32 v3, 5, v7
    v_mul_u32_u24 v1, s28, v3
    v_bfe_u32 v3, v7, 4, 1
    v_mad_u32_u24 v1, v3, s29, v1
    v_bfe_u32 v3, v7, 2, 2
    v_lshl_add_u32 v1, v3, 7, v1
    v_and_b32 v3, 3, v7
    v_lshl_add_u32 v1, v3, 3, v1
    s_mul_i32 s28, s20, 1056
    s_add_u32 s28, s28, {PACKL}
    v_add_u32 v1, s28, v1
    v_add_u32 v2, s30, v1
    s_lshl_b32 s28, s38, 2
    s_add_u32 s28, s28, s20              ; ct
    s_add_u32 s28, s28, {WPP}
    s_lshl_b32 s28, s28, 21
    s_lshl_b32 s29, s47, 14
    s_add_u32 s28, s28, s29
    s_bfe_u32 s29, s47, 0x10001
    s_mul_i32 s29, s29, {3072 + 8192}
    s_add_u32 s28, s28, s29
    s_cmp_ge_u32 s36, 148
    s_cselect_b32 s60, {OOB}, s28
    """)
def d_touch():
    return L(f"""
    s_not_b32 s28, s39
    v_mov_b32 v{CS+6}, s28
    s_lshl_b32 s28, s2, 1
    s_add_u32 s28, s28, s20
    s_lshl_b32 s28, s28, 7
    s_add_u32 s28, s28, {FP}
    s_lshl_b32 s29, s2, 7
    s_add_u32 s29, s29, {FO}
    s_cmp_eq_u32 s20, 2
    s_cselect_b32 s28, s29, s28
    s_cmp_eq_u32 s20, 3
    s_cselect_b32 s28, {OOB}, s28
    v_lshlrev_b32 v{CS+7}, 2, v7
    v_and_b32 v{CS+5}, 32, v7
    v_lshl_add_u32 v{CS+7}, v{CS+5}, 21, v{CS+7}
    buffer_store_dword v{CS+6}, v{CS+7}, s[16:19], s28 offen sc1 ;#ss
    s_lshl_b32 s28, s2, 2
    s_add_u32 s28, s28, s20
    s_lshl_b32 s28, s28, 12
    s_add_u32 s28, s28, {GXP*PG + 3072}
    buffer_store_dword v{CS+6}, v{CS+7}, s[16:19], s28 offen sc1 ;#ss
    """)
def d_misc():
    return L(f"""
    s_lshl_b32 s49, s2, {OPT['fash']}
    s_add_u32 s49, s49, {FA}
    s_cmp_eq_u32 s20, 0
    s_cselect_b32 s49, s49, {OOB}        ; A flag (wave 0)
    v_add_u32 v5, 4096, v4
    """) + srd(4, 72, S*D*2) + L(f"""
    s_mul_i32 s74, s22, 6400
    s_add_u32 s74, s74, {CSP}
    s_add_u32 s73, s2, s20
    s_cmp_eq_u32 s73, 0
    s_cselect_b32 s73, 0, {OOB}          ; epoch word (wg0 wave0)
    s_and_b32 s24, s2, 6
    s_lshl_b32 s24, s24, 2
    s_lshr_b32 s28, s2, 5
    s_add_u32 s24, s24, s28              ; row group of phase 2
    s_bfe_u32 s25, s2, 0x20003
    s_and_b32 s28, s2, 1
    s_lshl_b32 s28, s28, 2
    s_add_u32 s25, s25, s28              ; column tile of phase 2
    s_add_u32 s29, s25, {WPP}
    s_lshl_b32 s29, s29, 21
    s_and_b32 s47, s24, 1
    s_lshl_b32 s28, s20, 1
    s_add_u32 s47, s47, s28              ; first storage index of this wave: 2*wave + parity
    s_lshl_b32 s28, s47, 14
    s_add_u32 s46, s29, s28
    s_mul_i32 s28, s52, {3072 + 8192}
    s_add_u32 s46, s46, s28              ; B stream first
    s_lshl_b32 s28, s20, 14
    s_add_u32 s70, s29, s28
    s_mul_i32 s28, s51, {3072 + 8192}
    s_sub_u32 s70, s70, s28
    s_add_u32 s70, s70, {54*16384 + 3072 + 8192} ; wo src
    s_mul_i32 s69, s20, 5120             ; wo lds base
    s_lshl_b32 s72, s20, 10
    s_add_u32 s72, s72, {AUXC}
    s_mul_i32 s65, s21, 768
    s_add_u32 s65, s65, {NEGM - 144*16}
    s_movk_i32 s66, 192
    s_mul_i32 s67, s22, 12
    s_add_u32 s67, s67, s21
    s_lshl_b32 s67, s67, 7
    s_add_u32 s67, s67, {FP}
    s_cmp_eq_u32 s20, 0
    s_cselect_b32 s67, s67, {OOB}
    """)

def zipw(*ls):
    keyed = []
    for li, l in enumerate(ls):
        for j, x in enumerate(l): keyed.append(((j + 0.5)/len(l), li, j, x))
    keyed.sort(key=lambda t: t[:3])
    return [y for k in keyed for y in k[3]]
def epi_t(kind, st):
    RC = AB[0]; PK = AB[1]; TMP = BB[0]
    e = A()
    for T in range(6):
        c = RC + 4*T
        e(f"v_mul_f32 v{c+2}, s83, v{c+1}")
        if kind == "silu": e(f"v_rcp_f32 v{c+3}, v{c+1}")
    blocks = [[(T, i) for T in Ts for i in idx] for idx in ((0, 1, 2, 3), (4, 5, 6, 7)) for Ts in ((0, 1), (2, 3), (4, 5))]
    blocks.append([(T, i) for T in range(6) for i in (8, 9)])
    nxt = lambda T: f"  s_mov_b32 s48, s{81 if T == 1 else 82}" if T in (1, 3) else "  s_add_u32 s48, s48, 1024"
    pend = []
    for bi, blk in enumerate(blocks):
        V = []; n = len(blk)
        u = lambda k: acc(blk[k][0], 0) + 2*blk[k][1]
        c = lambda k: RC + 4*blk[k][0]
        for k in range(n): V.append(f"  v_pk_fma_f32 {vr(u(k),2)}, {vr(CS+2*blk[k][1],2)}, {vr(c(k),2)}, {vr(u(k),2)} op_sel_hi:[1,0,1]")
        for k in range(n): V.append(f"  v_pk_mul_f32 {vr(TMP+2*k,2)}, {vr(u(k),2)}, {vr(c(k)+2,2)} op_sel_hi:[1,0]")
        if kind == "silu":
            for k in range(2*n): V.append(f"  v_exp_f32 v{TMP+k}, v{TMP+k}")
            for k in range(n): V.append(f"  v_pk_fma_f32 {vr(TMP+2*k,2)}, {vr(TMP+2*k,2)}, {vr(c(k)+2,2)}, {vr(c(k)+2,2)} op_sel:[0,1,1] op_sel_hi:[1,1,1]")
            for k in range(2*n): V.append(f"  v_rcp_f32 v{TMP+k}, v{TMP+k}")
            fin = lambda k: f"  v_pk_mul_f32 {vr(u(k),2)}, {vr(u(k),2)}, {vr(TMP+2*k,2)}"
        else:
            for k in range(2*n): V.append(f"  v_exp_f32_e64 v{TMP+k}, v{TMP+k} clamp")
            for k in range(n): V.append(f"  v_pk_fma_f32 {vr(u(k),2)}, {vr(u(k),2)}, {vr(c(k),2)}, 1.0 op_sel:[0,1,0] op_sel_hi:[1,1,0]")
            for k in range(2*n): V.append(f"  v_max_f32 v{u(k//2)+(k&1)}, v{u(k//2)+(k&1)}, v{TMP+k}")
            fin = lambda k: f"  v_pk_add_f32 {vr(u(k),2)}, {vr(u(k),2)}, {vr(VX+4,2)}"
        items = pend + grp(st.take(OPT["epi"][bi]), 1)
        if bi == OPT["f1blk"]: items.insert(len(pend) + OPT["f1pos"], W("sa") + L("s_barrier") + flag("s75") + stamp("f1"))
        ins = {}
        for k, x in enumerate(items): ins[5 + (k*(len(V) - 6)//len(items))//2*2] = x
        for i, v in enumerate(V):
            e.append(v)
            if i in ins: e += ins[i]
        p = PK + 12*(bi & 1); tg = " ;#sa" if bi < 3 else ""
        if bi in (0, 3, 6): e("s_mov_b32 s48, s80")
        pend = []
        for q in range(n//4):
            for k in range(4*q, 4*q + 4): e.append(fin(k))
            for k in range(4*q, 4*q + 4): e(f"v_cvt_pk_bf16_f32 v{p+k}, v{u(k)}, v{u(k)+1}")
            if bi < 6:
                T = blk[4*q][0]
                stv = [f"  buffer_store_dwordx4 {vr(p+4*q)}, v{VX + bi//3}, s[16:19], s48 offen sc1{tg}"]
                if T < 5: stv.append(nxt(T))
                if q == 0: e += stv
                else: pend.append(stv)
            else:
                e(f"v_permlane16_swap_b32 v{p+4*q}, v{p+4*q+2}\nv_permlane16_swap_b32 v{p+4*q+1}, v{p+4*q+3}")
                e(f"buffer_store_dwordx4 {vr(p+4*q)}, v{VX+2}, s[16:19], s48 offen sc1")
                if q < 2: e.append(nxt(2*q+1))
    return resolve(e)

def epi_kv(st):
    a = A()
    NM = AB[0]; TMP = BB[1]; FR = AB[1]; DD = ACC
    def RSf(T): return BB[0] + 4*T if T < 5 else VX
    a(f"""
    v_mov_b32 v{TMP+12}, 0x358637bd
    v_mov_b32 v{TMP+13}, 0x358637bd
    v_mov_b32 v{TMP+14}, 0x3f803f80
    s_waitcnt lgkmcnt(0)
    """)
    def kvm(P): return [f"  v_mfma_f32_16x16x32_bf16 {vr(DD+4*n)}, {vr(FR+4*kx)}, {vr(FR+4*vy)}, {'0' if P == 0 else vr(DD+4*n)}" for n, (kx, vy) in enumerate(PRODS)]
    for P in range(3):
        for h in range(2):
            T = 2*P + h; u0 = acc(T, 0); nm = NM + 4*T; rs = RSf(T); b = A()
            for t in range(5):
                for i in range(2):
                    r = u0 + 4*t + 2*i
                    b(f"v_pk_fma_f32 {vr(r,2)}, {vr(nm+2*i,2)}, {vr(CS+4*t,2)}, {vr(r,2)} op_sel_hi:[1,0,1]")
            for t in range(5):
                for i in range(2):
                    r = u0 + 4*t + 2*i
                    b(f"v_pk_mul_f32 {vr(r,2)}, {vr(r,2)}, {vr(rs+2*i,2)}")
            for i in range(6): b(f"v_pk_mul_f32 {vr(TMP+2*i,2)}, {vr(u0+2*i,2)}, s[30:31]")
            for i in range(12): b(f"v_exp_f32_e64 v{TMP+i}, v{TMP+i} clamp")
            for t in range(2, 5):
                for i in range(2): b(f"v_cvt_pk_bf16_f32 v{FR+4*(t+1)+2*h+i}, v{u0+4*t+2*i}, v{u0+4*t+2*i+1}")
            for i in range(2): b(f"v_cndmask_b32 v{FR+12+2*h+i}, v{FR+12+2*h+i}, v{TMP+14}, s[32:33]")
            for i in range(6): b(f"v_pk_add_f32 {vr(u0+2*i,2)}, {vr(u0+2*i,2)}, 1.0 op_sel_hi:[1,0]")
            for i in range(12): b(f"v_max_f32 v{u0+i}, v{u0+i}, v{TMP+i}")
            for i in range(6): b(f"v_pk_add_f32 {vr(u0+2*i,2)}, {vr(u0+2*i,2)}, {vr(TMP+12,2)}")
            for t in range(3):
                for i in range(2): b(f"v_cvt_pk_bf16_f32 v{FR+4*t+2*h+i}, v{u0+4*t+2*i}, v{u0+4*t+2*i+1}")
            n = OPT["epi_n"][T]
            a += inter(b, grp(st.take(n), 1), 2) if n else b
        if P: a(f"s_cmp_eq_u32 s36, 1\ns_cbranch_scc1 k_kvs{P}")
        for n, (kx, vy) in enumerate(PRODS):
            d = vr(DD + 4*n)
            a(f"v_mfma_f32_16x16x32_bf16 {d}, {vr(FR+4*kx)}, {vr(FR+4*vy)}, {'0' if P == 0 else d}")
        if P: a(f"k_kvs{P}:")
    a += stamp("kvv")
    a(f"""
    s_mul_i32 s28, s51, 1792
    s_add_u32 s37, s37, s28
    s_lshl_b32 s29, s52, 12
    s_add_u32 s28, s28, s29
    s_add_u32 s28, s28, {KVX}
    v_lshlrev_b32 v2, 2, v7
    v_add_u32 v3, s28, v2
    s_cmp_eq_u32 s51, 0
    s_cselect_b32 s28, 64, 8
    v_cmp_gt_u32 vcc, s28, v7
    v_mov_b32 v6, {OOB}
    """)
    for n in range(8): a(f"ds_write_b128 v{KVOF[n]}, {vr(DD+4*n)}")
    a("v_cndmask_b32 v6, v6, v2, vcc\ns_waitcnt lgkmcnt(0)\ns_barrier")
    for n in range(7): a(f"ds_read2st64_b32 {vr(72+2*n,2)}, v3 offset0:{n} offset1:{32+n}")
    for n in range(7):
        a(f"s_waitcnt lgkmcnt({6-n})\nv_add_f32 v{72+2*n}, v{72+2*n}, v{73+2*n}")
        a(f"buffer_atomic_add_f32 v{72+2*n}, v{6 if n == 6 else 2}, s[16:19], s37 offen offset:{256*n}")
    a += stamp("kvs")
    return a

def phase2(st):
    a = A()
    G = 8; GR = 88; AR = 140; NA = 4; SA = 208; XB = 228; RP = 148
    AV = [244, 245, 246, 247]; RW = [248, 249, 250]; XA = [251, 252, 253]
    GA = 168; DB = 208; KA = 236; OA = 0; UA = 237; FW = 238
    g1 = OPT["gap1"]; psched = OPT["psched"]; wtr = OPT["wtrail"]; F1A = 239; OB = 235
    s1 = L(f"""
    s_cmp_eq_u32 s20, 0
    s_cselect_b32 s55, 0, {OOB}
    s_cselect_b64 s[56:57], -1, 0
    s_and_b32 s21, s2, 3
    s_lshl_b32 s21, s21, 2
    s_bfe_u32 s28, s2, 0x20003
    s_add_u32 s21, s21, s28              ; hp
    s_and_b32 s23, s2, 4
    s_lshl_b32 s23, s23, 1
    s_lshr_b32 s28, s2, 5
    s_add_u32 s23, s23, s28              ; rg
    s_and_b32 s28, s24, 30
    s_mul_i32 s35, s28, 21846
    s_lshr_b32 s35, s35, 16
    s_add_u32 s35, s35, 144              ; W1 lines of the first row block: (12+i)*12 + rb, lanes 0..10
    s_add_u32 s28, s28, 1
    s_mul_i32 s28, s28, 21846
    s_lshr_b32 s28, s28, 16
    s_add_u32 s28, s28, 12               ; second row block, lanes 11..21
    s_lshr_b32 s29, s21, 1
    s_mul_i32 s29, s29, 12
    s_sub_u32 s29, s29, 22               ; KV lines: kvct*12 + (i-22), lanes 22..32
    s_lshl_b32 s30, s23, 1
    s_mul_i32 s31, s30, 21846
    s_lshr_b32 s31, s31, 16
    s_add_u32 s30, s30, 1
    s_mul_i32 s30, s30, 21846
    s_lshr_b32 s30, s30, 16
    s_lshr_b32 s34, s21, 2
    s_mul_i32 s34, s34, 12
    s_add_u32 s34, s34, 96
    s_add_u32 s31, s31, s34              ; Q line, first row block (lane 22)
    s_add_u32 s30, s30, s34              ; Q line, second row block (lanes 23..)
    v_min_u32 v1, 21, v7
    v_mad_u32_u24 v2, v1, 12, s35
    v_mad_u32_u24 v3, v1, 12, s28
    v_cmp_le_u32 vcc, 11, v7
    v_cndmask_b32 v2, v2, v3, vcc
    v_lshlrev_b32 v3, 7, v2
    v_add_u32 v{F1A}, {FP + FPD}, v3
    v_add_u32 v3, s29, v7
    v_cmp_le_u32 vcc, 22, v7
    v_cndmask_b32 v2, v2, v3, vcc
    v_mov_b32 v3, s31
    v_cmp_le_u32 vcc, 33, v7
    v_cndmask_b32 v2, v2, v3, vcc
    v_mov_b32 v3, s30
    v_cmp_le_u32 vcc, 34, v7
    v_cndmask_b32 v2, v2, v3, vcc
    v_lshlrev_b32 v2, 7, v2
    v_add_u32 v{FW}, {FP}, v2
    s_mul_i32 s54, s21, 5
    s_lshr_b32 s54, s54, 2               ; ksA
    s_lshl_b32 s60, s21, 12
    s_add_u32 s60, s60, {KVP}
    v_lshlrev_b32 v3, 4, v0
    v_cmp_gt_u32 vcc, 210, v0
    v_mov_b32 v6, {OOB}
    v_cndmask_b32 v{KA}, v6, v3, vcc
    s_lshl_b32 s76, s23, 1
    s_add_u32 s76, s76, s51
    """) + blk(63, 76, "q", 28, 29) + L(f"""
    s_xor_b32 s63, s63, s3
    s_lshl_b32 s30, s52, 11
    s_add_u32 s63, s63, s30
    s_add_u32 s62, s54, 1
    """) + cell(61, 54, 28) + cell(62, 62, 28) + L(f"""
    s_add_u32 s61, s61, s63
    s_add_u32 s62, s62, s63
    s_add_u32 s63, s63, {QSZ}
    """)
    s2 = A()
    s2(f"""
    v_and_b32 v1, 15, v7                 ; i / m
    v_lshrrev_b32 v2, 4, v7              ; g
    v_lshrrev_b32 v3, 2, v1
    v_and_b32 v212, 3, v1
    v_lshl_add_u32 v6, v3, 3, v212
    v_cmp_le_u32 vcc, 20, v6
    v_cndmask_b32 v216, 0, 5, vcc
    v_lshlrev_b32 v220, 2, v216
    v_sub_u32 v220, v6, v220
    v_add_u32 v6, 4, v6
    v_cmp_le_u32 vcc, 20, v6
    v_cndmask_b32 v217, 0, 5, vcc
    v_lshlrev_b32 v221, 2, v217
    v_sub_u32 v221, v6, v221
    v_cmp_gt_u32 vcc, 8, v1
    v_cndmask_b32 v218, 64, 5, vcc
    v_add_u32 v222, 12, v1
    v_add_u32 v6, v3, v212
    v_cmp_le_u32 vcc, 3, v6
    v_cmp_le_u32 s[34:35], 2, v212
    s_or_b64 vcc, vcc, s[34:35]
    v_cndmask_b32 v219, 0, 5, vcc
    v_mov_b32 v223, 20
    v_mov_b32 v213, 255
    s_mov_b32 s37, {RED}
    """)
    for k in range(2):
        s2(f"""
        s_add_u32 s31, s54, {k}
        s_mul_i32 s32, s31, 205
        s_lshr_b32 s32, s32, 10
        s_mul_i32 s32, s32, 5
        s_sub_u32 s32, s31, s32
        s_cmp_eq_u32 s32, 2
        s_cselect_b32 s33, 1, 0
        s_cselect_b32 s36, 1, 4
        s_lshl_b32 s31, s31, 3
        s_mul_i32 s32, s21, 10
        s_sub_u32 s31, s31, s32
        v_lshlrev_b32 v3, s33, v2
        v_add_u32 v3, s31, v3
        """)
        for j in range(2):
            if j: s2("v_add_u32 v3, s36, v3")
            for tl in range(4):
                s2(f"""
                v_sub_u32 v212, v3, v{216+tl}
                v_cmp_gt_u32 vcc, 5, v212
                v_mad_u32_u24 v212, v3, 21, v{220+tl}
                v_cndmask_b32 v212, v213, v212, vcc
                v_lshl_add_u32 v{GA+tl*4+k*2+j}, v212, 3, s37
                """)
    ol = L(f"buffer_load_dwordx4 v[208:211], v{KA}, s[16:19], s60 offen sc1 ;#P")
    ql = L(f"""
    buffer_load_dwordx4 a[240:243], v4, s[16:19], s61 offen sc1 ;#Q
    buffer_load_dwordx4 a[244:247], v4, s[16:19], s62 offen sc1 ;#Q
    buffer_load_dwordx4 a[248:251], v4, s[16:19], s61 offen offset:1024 sc1 ;#Q
    buffer_load_dwordx4 a[252:255], v4, s[16:19], s62 offen offset:1024 sc1 ;#Q
    """)
    s3 = A()
    s3(f"""
    s_and_b32 s64, s23, 3
    s_lshl_b32 s64, s64, 11
    s_and_b32 s28, s23, 4
    s_lshl_b32 s28, s28, 12
    s_add_u32 s64, s64, s28
    s_and_b32 s28, s23, 8
    s_lshl_b32 s28, s28, 10
    s_xor_b32 s28, s28, s3
    s_add_u32 s64, s64, s28
    s_lshl_b32 s28, s21, 7
    s_add_u32 s64, s64, s28
    s_add_u32 s64, s64, {FO}
    s_add_u32 s64, s64, s55
    s_mul_i32 s28, s21, 5
    v_add_u32 v3, s28, v2
    v_lshrrev_b32 v6, 3, v3
    v_lshlrev_b32 v6, 14, v6
    v_bfe_u32 v212, v3, 2, 1
    v_lshl_add_u32 v6, v212, {13 if OPT["mode"] in ("cols", "none") else 12}, v6
    v_and_b32 v3, 3, v3
    v_lshl_add_u32 v6, v3, 8, v6
    v_lshl_add_u32 v{OB}, v1, 4, v6
    s_add_u32 s28, s28, 4
    s_lshr_b32 s30, s28, 2
    """)
    s3 += cell(30, 30, 29)
    s3(f"""
    s_and_b32 s28, s28, 3
    s_lshl_b32 s28, s28, 8
    s_add_u32 s28, s28, s30
    v_lshl_add_u32 v3, v1, 4, s28
    v_lshl_add_u32 v3, v2, 3, v3
    v_cmp_gt_u32 vcc, 2, v2
    v_mov_b32 v6, {OOB}
    v_lshl_add_u32 v{UA}, v0, 3, s37
    v_cndmask_b32 v{OA}, v6, v3, vcc
    """)
    sA = A()
    sA += blk(40, 24, "h", 28, 29) + cell(30, 47, 29) + L(f"""
    s_xor_b32 s40, s40, s3
    s_add_u32 s44, s40, s30              ; own rows
    s_bitcmp1_b32 s24, 0
    s_cselect_b32 s28, {-HSZ & 0xffffffff}, {HSZ}
    s_add_u32 s45, s44, s28              ; partner rows (other block of the same page)
    """)
    for T in range(4):
        sA(f"s_add_u32 s28, s20, {T}\ns_and_b32 s28, s28, 3\ns_lshl_b32 s28, s28, 10\nv_add_u32 v{AV[T]}, s28, v4")
    osum = W("P") + L(f"v_cvt_pk_bf16_f32 v208, v208, v209\nv_cvt_pk_bf16_f32 v209, v210, v211\nds_write_b64 v{UA}, v[208:209]")
    ogat = [f"  ds_read_b64 {ar(204+2*n,2)}, v{GA+n}" for n in range(16)]
    om = []
    for k in range(2):
        for T in range(2):
            for tl in (3, 0, 1, 2):
                d = vr(DB + 16*T + 4*tl)
                om.append(f"  v_mfma_f32_16x16x32_bf16 {d}, {ar(204+tl*8+k*4)}, {ar(240+T*8+k*4)}, {'0' if k == 0 else d}")
    ofin = []
    for T in range(2):
        o = A(); b = DB + 16*T; z = b + 12; pk = GA + 6*T
        for r in range(3): o(f"v_add_f32 v{z+r}, 0x358637bd, v{z+r}")
        for r in range(3): o(f"v_rcp_f32 v{z+r}, v{z+r}")
        for tl in range(3):
            for r in range(4): o(f"v_mul_f32 v{b+4*tl+r}, v{b+4*tl+r}, v{z+tl}")
        for i in range(6): o(f"v_cvt_pk_bf16_f32 v{pk+i}, v{b+2*i}, v{b+2*i+1}")
        o(f"buffer_store_dwordx4 {vr(pk)}, v2, s[16:19], s63 offen offset:{1024*T} sc1 ;#OS")
        o(f"buffer_store_dwordx2 {vr(pk+4,2)}, v{OA}, s[16:19], s63 offen offset:{1024*T} sc1 ;#OS")
        ofin.append(list(o))
    fs = A()
    fs(f"""
    s_lshl_b32 s42, s24, 2
    s_add_u32 s42, s42, s20
    s_lshr_b32 s30, s24, 1
    s_and_b32 s28, s30, 3
    s_lshl_b32 s28, s28, 11
    s_and_b32 s29, s30, 4
    s_lshl_b32 s29, s29, 12
    s_add_u32 s28, s28, s29
    s_and_b32 s29, s30, 8
    s_lshl_b32 s29, s29, 10
    s_xor_b32 s29, s29, s3
    s_add_u32 s28, s28, s29
    s_add_u32 s28, s28, {FO}
    v_min_u32 v6, 15, v7
    v_lshl_add_u32 v{VF-1}, v6, 7, s28
    s_mul_i32 s48, s42, {16*1280}
    s_mul_i32 s28, s25, 160
    s_add_u32 s48, s48, s28
    """)
    fs += blk(42, 24, "o", 28, 29)
    fs(f"""
    s_xor_b32 s42, s42, s3
    s_lshl_b32 s28, s20, 10
    s_add_u32 s42, s42, s28
    s_mul_i32 s49, s20, 15360
    s_add_u32 s49, s49, {RED}
    v_mul_u32_u24 v243, 176, v1
    v_lshl_add_u32 v243, v2, 3, v243
    v_add_u32 v243, s49, v243            ; result write: row stride 176
    """)
    for i in range(3):
        fs(f"""
        v_add_u32 v6, {64*i}, v7
        v_mul_u32_u24 v1, 6554, v6
        v_lshrrev_b32 v1, 16, v1
        v_mul_u32_u24 v3, 1120, v1
        v_lshl_add_u32 v3, v6, 4, v3
        v_cmp_gt_u32 vcc, 160, v6
        v_add_u32 v1, v1, v6
        v_mov_b32 v6, {OOB}
        v_lshl_add_u32 v{240+i}, v1, 4, s49
        v_cndmask_b32 v{XA[i]}, v6, v3, vcc
        """)
    for T in range(1, 4):
        fs(f"s_add_u32 s28, s20, {T}\ns_and_b32 s28, s28, 3\ns_mul_i32 s28, s28, 15360\ns_add_u32 s28, s28, {RED + (T-1)*5120}\nv_add_u32 v{RW[T-1]}, s28, v4")
    fs(f"""
    v_add_u32 v1, s49, v4
    v_mov_b32 v2, v{OB}
    s_and_b32 s28, s24, 15
    s_lshl_b32 s28, s28, 3
    s_add_u32 s28, s28, s25
    s_lshl_b32 s28, s28, 2
    s_add_u32 s28, s28, s20
    """)
    fs += cell(65, 28, 29)
    fs(f"""
    s_add_u32 s65, s65, {GXP*PG}
    s_lshr_b32 s28, s65, 21
    s_lshr_b32 s29, s24, 4
    s_xor_b32 s28, s28, s29
    s_and_b32 s28, s28, 1
    s_lshl_b32 s28, s28, 13
    s_xor_b32 s28, s28, s3
    s_add_u32 s65, s65, s28
    s_xor_b32 s66, s65, {16*16384}
    s_add_u32 s72, s66, 3072
    s_add_u32 s73, s65, 3072
    """)
    MG = OPT["mg"]
    SL = OPT["slots"]; RL = max(i for i, x in enumerate(SL) if x[0] == "r")
    def areg(s): return 204 if s == 13 else AR + (s % NA)*16
    def ldA(s):
        r_, j = SL[s]
        r = [f"  s_add_u32 s41, s{45 if r_ == 'r' else 44}, {65536*j}"]
        if j == 6: r += L(f"s_cmp_lt_u32 s20, 3\ns_cselect_b32 s41, s41, {OOB}")
        return r + [f"  buffer_load_dwordx4 {ar(areg(s)+4*T)}, v{AV[T]}, s[16:19], s41 offen sc1 ;#A{s}{'abcd'[T]}" for T in ((1, 2, 3, 0) if s >= MG else range(4))]
    a("k_p2:\n;MARK ep")
    for i in range(7): a(f";MARK B{i}")
    for i in range(5): a(f";MARK wo{i}")
    a += stamp("eend")
    gs = grp(st.take(g1), 2)
    gs.insert(len(gs) - OPT["poll_early"], poll(F1A, VF, "p1", "s55"))
    allsu = glue(s1 + sA + s2 + s3 + fs); k1 = OPT["su1"]; k2 = OPT["su2"]
    assert k1 >= len(glue(s1 + sA))
    flat = lambda l: sum(l, [])
    p1at = next(i for i, x in enumerate(allsu) if f"v_add_u32 v{F1A}," in x[0]) + 1
    a += inter(flat(allsu[:k1]), gs, p1at if OPT["poll_early"] >= len(gs) - 2 else 0)
    a += W("ep") + L("s_barrier") + flag("s67", 224) + stamp("flag")
    a += W("p1") + L("s_mov_b64 s[58:59], vcc") + check("k_s1", F1A, VF, True) + L("s_mov_b64 vcc, s[58:59]") + stamp("c1")
    pre = grp(ldA(2), 1)
    if OPT["pp2"] < 0: pre.append(poll(FW, VF, "p2", "s55"))
    a += ldA(0) + ldA(1) + inter(flat(allsu[k1:k2]), pre)
    if min(OPT["xs"]) < OPT["c2"]:
        kx = max(i for i, x in enumerate(allsu) if f"v_cndmask_b32 v{XA[2]}," in x[0]); assert kx < k2, (kx, len(allsu))
    late = allsu[k2:]; nl = OPT["c2"]
    late = {i: flat(late[i*len(late)//nl:(i+1)*len(late)//nl]) for i in range(nl)}
    def ldO(i0, n):
        r = []
        for i in range(i0, i0 + n):
            if OPT["mode"] in ("cols", "none"):
                r += [f"  s_add_u32 s43, s42, {8192*i}", f"  buffer_load_dwordx4 {ar(4*i)}, v4, s[16:19], s43 offen sc1 ;#O{i}"]; continue
            if i % 2 == 0 or i == i0: r.append(f"  s_add_u32 s43, s42, {16384*(i//2)}")
            r.append(f"  buffer_load_dwordx4 {ar(4*i)}, v{4 + (i & 1)}, s[16:19], s43 offen sc1 ;#O{i}")
        return r
    ldX = [[f"  s_add_u32 m0, s49, {4096 + 1024*i}", "  s_nop 0", f"  buffer_load_dwordx4 v{XA[i]}, s[8:11], s48 offen lds ;#X"] for i in range(3)]
    rdX = L("v_add_u32 v2, 51200, v4\nv_and_b32 v3, 15, v7\nv_lshlrev_b32 v3, 4, v3\nv_sub_u32 v3, v243, v3") + W("X") + tag([f"  ds_read_b64 {vr(XB+2*t,2)}, v3 offset:{4096+32*t}" for t in range(5)], "xr")
    NB = 3
    def sb(s, t): return vr(GR + 20*(s % NB) + 4*t)
    def rdB(s): return tag([f"  ds_read_b128 {sb(s,t)}, v{4 if s < 10 else 2} offset:{(s%10)*5120+1024*t}" for t in range(5)], f"b{s}")
    wr_ = tag([f"  ds_write_b128 v{RW[T-1]}, {vr(G+(T*5+t)*4)} offset:{1024*t}" for T in range(1, 4) for t in range(5)], "w")
    rd_ = tag([f"  ds_read_b128 {vr(G+20+4*j)}, v1 offset:{1024*j}" for j in range(15)], "r")
    xw = tag([f"  ds_write_b128 v{RW[T-1]}, {vr(GR+(T*5+t)*4)} offset:{1024*t}" for T in range(1, 4) for t in range(5)], "xw")
    xr = tag([f"  ds_read_b128 {vr(GR+20+20*j+4*t)}, v1 offset:{5120*j+1024*t}" for t in range(5) for j in range(3)], "xr")
    xa = []
    for t in range(5):
        xa += [f"  v_add_f32 v{GR+4*t+i}, v{GR+4*t+i}, v{GR+20+20*j+4*t+i}" for j in range(3) for i in range(4)]
        xa += [f"  v_cvt_pk_bf16_f32 v{GA+2*t+i}, v{GR+4*t+2*i}, v{GR+4*t+2*i+1}" for i in range(2)]
        if t in (1, 3): xa.append(f"  buffer_store_dwordx4 {vr(GA+2*t-2)}, v4, s[16:19], s66 offen offset:{512*(t-1)} sc1 ;#XS")
    xa += L(f"v_lshlrev_b32 v0, 3, v7\nbuffer_store_dwordx2 {vr(GA+8,2)}, v0, s[16:19], s66 offen offset:2048 sc1 ;#XS")
    xl = [f"  buffer_load_dwordx4 {vr(GA+4*t)}, v4, s[16:19], s65 offen offset:{1024*t} sc1 ;#XL" for t in range(2)] + [f"  buffer_load_dwordx2 {vr(GA+8,2)}, v0, s[16:19], s65 offen offset:2048 sc1 ;#XL"]
    XF, XP, XC = OPT["xf"], OPT["xp"], OPT["xc"]
    xpoll = L(f"v_mov_b32 v{VF-1}, s73") + poll(VF-1, VF, "xp")
    C2 = OPT["c2"]; plan = OPT["aplan"]; OFS = OPT["ofs"]; PO = OPT["po"]; PC = OPT["pc"]; osched = OPT["osched"]
    no = 0
    XU = 184
    xu = []
    for i in range(10): xu += [f"  v_lshlrev_b32 v{XU+2*i}, 16, v{XB+i}", f"  v_and_b32 v{XU+2*i+1}, 0xffff0000, v{XB+i}"]
    def wdone(g): return ("W", 5*g + 4) not in st.items
    def mf(s, T, rev):
        r_, j = SL[s]; GG = GR if r_ == "r" else G; first = all(x[0] != r_ for x in SL[:s])
        return [f"  v_mfma_f32_16x16x32_bf16 {vr(GG+(T*5+t)*4)}, {breg(j,t)}, {ar(areg(s)+4*T)}, {'0' if first else vr(GG+(T*5+t)*4)}" for t in (range(4, -1, -1) if rev else range(5))]
    nm = 14 - MG; WB = OPT["wb"]
    for s in range(MG + 4):
        if s < MG:
            need = [f"A{s}{c}" for c in "abcd"] + [f"B{SL[s][1]}"]; assert ("B", 5*SL[s][1] + 4) not in st.items
            M = sum((mf(s, T, k & 1) for k, T in enumerate((1, 2, 3, 0) if s == RL else range(4))), [])
        else:
            T = (1, 2, 3, 0)[s - MG]
            need = [f"A{x}{'abcd'[T]}" for x in range(MG, 14)]
            M = sum((mf(x, T, False) for x in range(MG, 14)), [])
        if s == XF: need.append("XS")
        vm = need + (["op"] if s == PC else []) + ([f"wo{g}" for g in range(5) if g not in wtr] if s == WB else []) + (["OS"] if s == OFS else []) + (["p2"] if s == C2 else [])
        if s == WB: assert all(wdone(g) for g in range(5) if g not in wtr)
        OQ = OPT["oq"]; OM = C2 + (1 if OQ else 2)
        a += W(vm, "*" if (s in (RL, RL if OPT["xw"] else RL + 2) or (s == C2 + 2 and not OQ)) else ())
        a += stamp(f"g{s}")
        if s == C2: a += check("k_sw", FW, VF, True) + stamp("w1")
        if s == PC: a += check("k_so", VF-1, VF, True) + stamp("op")
        if s != PC and s in (OFS, -1 if OQ else C2 + 2, WB, RL, MG + 1): a("s_barrier")
        ls = []; n = len(M)
        for x in plan.get(s, []): assert (SL[x][1] < 2 or s >= C2) and (x - s <= 3 or (x == 13 and s > C2 + 3))
        v = sum((ldA(x) for x in plan.get(s, [])), [])
        if s == C2: v = ol + ql + v
        if s == OFS: v = flag("s64") + v
        if s == XF: v = flag("s72") + v
        if s == XP: assert s > PC; v = xpoll + v
        if s == PO: v = poll(VF-1, VF, "op", "s55") + v
        if s == OPT["pp2"]: v = poll(FW, VF, "p2", "s55") + v
        if late.get(s): ls.append((late[s], 0, n - 1))
        if s in OPT["xs"]: v += sum([ldX[i] for i, x in enumerate(OPT["xs"]) if x == s], [])
        if psched.get(s): v += st.take(psched[s])
        if osched.get(s): v += ldO(no, osched[s]); no += osched[s]
        ls.append((v, 0, n - 2))
        if OQ:
            if s == C2 + 1: ls += [(osum, OQ, OQ + 1), (L("s_waitcnt lgkmcnt(0)\ns_barrier"), OQ + 4, OQ + 4), (ogat, OQ + 5, min(OQ + 10, 19))]
        else:
            if s == C2 + 1: ls.append((osum, 16, 19))
            if s == C2 + 2: ls.insert(0, (ogat, 0, 10))
        if s == OM + 1: ls.append((ofin[0] + ofin[1], 1, 19))
        if s == OPT["xr"]: assert s < RL and s != OFS and s > OM + 1; ls.insert(0, (rdX, 0, 8))
        if OPT["xw"] == 0:
            if s == RL: ls += [(xw[:5], 10, 14), (xw[5:10], 15, 19)]
            if s == RL + 1: ls += [(xw[10:], 0, 5), (L("s_waitcnt lgkmcnt(0)\ns_barrier"), 9, 9), (xr, 10, 19)]
            if s == RL + 2: ls.append((xa[:OPT["xcut"]], 0, n - 1))
            if s == RL + 3: ls.append((xa[OPT["xcut"]:], 0, n - 1))
        else:
            if s == RL: ls.append((xw[:4], 9, 19))
            if s == RL + 1: ls.append((xw[4:11], 0, 19))
            if s == RL + 2: ls += [(xw[11:], 0, 9), (L("s_waitcnt lgkmcnt(0)\ns_barrier"), 12, 12), (xr, 13, 19)]
            if s == RL + 3:
                a += L("s_waitcnt lgkmcnt(0)") + [";@align on"] + [f"  v_pk_add_f32 {vr(GR+2*i,2)}, {vr(GR+2*i,2)}, {vr(GR+20+20*j+2*i,2)}" for j in range(3) for i in range(10)] + [";@align off"]
                ls.append(([x for x in xa if "v_add_f32" not in x], 0, n - 1))
        if s > MG: ls.append((wr_[5*(s-MG-1):5*(s-MG)], 2, n - 1))
        if s == MG + 2: ls.append((xu, 0, n - 1))
        if s == MG + 3: ls.append((rdB(0) + rdB(1), 0, n - 2))
        a += place(M, ls)
        if s == OM: a += W("Q", "*") + stamp("om") + place(om, [(st.take(OPT["pom"]), 0, 15)])
    a += stamp("gend")
    E = G + 20
    VB = []
    for j in range(3):
        for i in range(10): VB.append(f"  v_pk_add_f32 {vr(G+2*i,2)}, {vr(G+2*i,2)}, {vr(G+20+20*j+2*i,2)}")
    VC = []
    for i in range(10): VC += [f"  v_lshlrev_b32 v{RP+2*i}, 16, v{GA+i}", f"  v_and_b32 v{RP+2*i+1}, 0xffff0000, v{GA+i}"]
    VC += [f"  v_pk_add_f32 {vr(G+2*i,2)}, {vr(G+2*i,2)}, {vr(RP+2*i,2)}" for i in range(10)]
    VC += [f"  v_pk_mul_f32 {vr(E+2*i,2)}, {vr(G+2*i,2)}, s[30:31]" for i in range(10)]
    VA = [f"  v_add_f32 v{G+i}, v{G+i}, v{G+20+20*j+i}" for j in range(3) for i in range(20)]
    V = []
    V += [f"  v_exp_f32 v{E+i}, v{E+i}" for i in range(20)]
    V += [f"  v_add_f32 v{E+i}, 1.0, v{E+i}" for i in range(20)]
    V += [f"  v_rcp_f32 v{E+i}, v{E+i}" for i in range(20)]
    V += [f"  v_mul_f32 v{G+i}, v{G+i}, v{E+i}" for i in range(20)]
    V0 = OPT["v0"]; RB = OPT["rb"]; LK = NB - 1; P0 = MG + 4
    V1 = OPT["v1"]; pa = -(-60//(V1 - V0))
    cost = [8 if ("exp" in x or "rcp" in x) else 4 for x in V]; tot = sum(cost); parts = [[] for _ in range(20 - V1)]; c_ = 0
    for x, c in zip(V, cost): parts[min(len(parts) - 1, c_*len(parts)//tot)].append(x); c_ += c
    for s in range(20):
        wg = [g for g, st_ in wtr.items() if st_ == s]
        for g in wg: assert s + LK <= 4*g and wdone(g)
        a += W([f"O{s}"] + [f"wo{g}" for g in wg] + (["XS"] if P0 + s == XF else []) + (["xp"] if P0 + s == XC else []) + (["XL"] if s == V1 else []), [f"b{s}"] + (["w"] if s == RB else []) + (["r"] if s == V0 else []))
        if s == RB or wg: a("s_barrier")
        a += stamp(f"s{s}")
        if P0 + s == XC: a += check("k_sx", VF-1, VF) + stamp("xc")
        if s == V1: a += [";@align on"] + VC + [";@align off"]
        M = [f"  v_mfma_f32_16x16x32_bf16 {vr(SA+4*t)}, {sb(s,t)}, {ar(4*s)}, {'0' if s == 0 else vr(SA+4*t)}" for t in range(5)]
        ls = []
        if s + LK < 20: ls.append((rdB(s+LK), 0, 4))
        v = []
        if P0 + s == XF: v += flag("s72")
        if P0 + s == XP: v += xpoll
        if P0 + s == XC: v += xl
        if psched.get(P0 + s): v += st.take(psched[P0 + s])
        if osched.get(P0 + s): v += ldO(no, osched[P0 + s]); no += osched[P0 + s]
        ls.append((v, 0, 4))
        if s == 0: ls.append((L(f"s_mov_b32 s30, {LOG2E|0x80000000}\ns_mov_b32 s31, {LOG2E|0x80000000}"), 0, 4))
        if RB <= s < RB + 3: ls.append((rd_[5*(s-RB):5*(s-RB)+5], 0, 4))
        if V0 <= s < V1: ls.append((VA[(s-V0)*pa:(s-V0+1)*pa], 0, 4))
        if s >= V1: ls.append((parts[s-V1], 0, 4))
        a += place(M, ls)
    assert no == 20 and not st.items, (no, st.items)
    a += stamp("send")
    for t in range(5):
        for i in range(2): a(f"v_pk_fma_f32 {vr(SA+4*t+2*i,2)}, {vr(SA+4*t+2*i,2)}, {vr(G+4*t+2*i,2)}, {vr(XU+4*t+2*i,2)}")
        for i in range(2): a(f"v_cvt_pk_bf16_f32 v{XB+2*t+i}, v{SA+4*t+2*i}, v{SA+4*t+2*i+1}")
        a(f"ds_write_b64 v243, {vr(XB+2*t,2)} offset:{32*t}")
    a(";@align off\ns_waitcnt lgkmcnt(0)")
    for i in range(3): a(f"ds_read_b128 {vr(E+4*i)}, v{240+i}")
    for i in range(3): a(f"s_waitcnt lgkmcnt({2-i})\nbuffer_store_dwordx4 {vr(E+4*i)}, v{XA[i]}, s[4:7], s48 offen")
    a += stamp_out()
    return resolve(a)

def build():
    OUTL.clear()
    pro = prologue()
    br = L("s_cmp_lt_u32 s22, 8\ns_cbranch_scc1 k_kv")
    if OPT["pol"] == "race":
        br += L("s_cmp_eq_u32 s21, 11\ns_cbranch_scc1 k_race")
        OUTL("k_race:")
        if OPT["touch"]: OUTL.extend(d_touch())
        OUTL(f"""
        s_waitcnt vmcnt(0)
        s_cmp_lg_u32 s20, 0
        s_cbranch_scc1 k_race2
        s_cmp_eq_u32 s2, 255
        s_cbranch_scc1 k_race2
        s_bfe_u32 s29, s2, 0x10003           ; 239 -> 1, 247 -> 0
        s_lshl_b32 s28, s29, 13
        s_add_u32 s28, s28, {RACE}
        v_lshlrev_b32 v6, 25, v7
        s_mov_b32 s30, {OPT['trips']}
        k_race1:
        v_mov_b32 v3, 0
        buffer_atomic_add v3, v6, s[16:19], s28 offen sc0
        s_sub_u32 s30, s30, 1
        s_cmp_lg_u32 s30, 0
        s_waitcnt vmcnt(0)
        s_cbranch_scc1 k_race1
        s_mov_b32 s56, s74
        s_and_b32 s57, s75, 0xffff
        s_mov_b32 s58, 256
        s_mov_b32 s59, 0x20000
        v_mov_b32 v3, 1
        buffer_atomic_add v3, v6, s[56:59], 0 offen sc0
        s_xor_b32 s29, s29, 1
        s_lshl_b32 s29, s29, 13
        s_waitcnt vmcnt(0)
        v_readfirstlane_b32 s30, v3
        v_mov_b32 v3, s29
        s_nop 0
        s_cmp_eq_u32 s30, 0
        s_cselect_b32 s28, {PW}, {OOB}
        buffer_store_dword v3, v6, s[16:19], s28 offen sc1
        s_waitcnt vmcnt(0)
        k_race2:
        s_barrier
        """)
        OUTL.extend(d_misc() + flag("s49") + (d_cs() if OPT["keep"] < 1 else []) + [f"  s_mov_b32 s{r}, {OOB}" for r in (61, 62, 63, 75, 80, 81, 82, 83)] + [f"  v_add_u32 v{L2B+i}, {2*STAGE}, v{LA+i}" for i in range(5)] + L("s_branch k_t_join"))
    items = [("B", i) for i in range(35)] + [("W", i) for i in range(25)]
    st_t = Stream(items); st_n = Stream(items)
    mt = g1_main("k_t", True, st_t)
    mt += L("s_waitcnt lgkmcnt(0)\ns_cmp_lt_u32 s22, 12\ns_cbranch_scc1 k_q")
    eq = epi_t("phi", Stream(st_t.items)); es = epi_t("silu", st_t)
    mn = g1_main("k_n", False, st_n)
    ek = epi_kv(st_n)
    assert st_n.items == st_t.items
    n0 = len(resolve(pro + br))
    a = resolve(pro + br + mt) + es + phase2(st_t) + L("s_endpgm\nk_q:") + eq + L("s_branch k_p2\nk_kv:") + resolve(pro + br + mn + ek)[n0:] + L("s_branch k_p2")
    a += L("k_end:\ns_endpgm") + OUTL
    body, added = haz.fix(a)
    body, nbytes, nn, npm = align.align([x.replace("CODE_KB", "40").replace("CODE_MAX", "44444") for x in body])
    kb = (nbytes + 1023)//1024; assert kb <= 64
    body = [x.replace("s_cmp_ge_u32 s28, 40", f"s_cmp_ge_u32 s28, {kb if OPT.get('cpf', 1) else 0}").replace("44444", str((nbytes - 16) & ~15)) for x in body]
    body = [re.sub(r"\s*;(#\S+|nocount|C)$", "", x) for x in body]
    print("instrs", len(body), "nops added", added, "bytes", nbytes, "align nops", nn, "promoted", npm, file=sys.stderr)
    if OPT.get("nost"): body = [x for x in body if not ("buffer_store_dwordx4" in x and "s[76:79]" in x)]
    if OPT.get("cyc"): body = [x.replace("s_memrealtime", "s_memtime") for x in body]
    out = ["; @launch grid=(256,1,1) block=(256,1,1) lds=163840",
           '.amdgcn_target "amdgcn-amd-amdhsa--gfx950"\n.text', khead(NAME)] + body
    if DIAG: out.append(";ST " + " ".join(OPT["st"][:7]) + "\n;OPTS " + " ".join(x for x in sys.argv[3:] if not x.startswith("st=")))
    out.append('.section .rodata,"a"\n.p2align 6\n' + kd(NAME, 512, 256, 102))
    return "\n".join(out) + "\n"
if __name__ == "__main__":
    for x in sys.argv[2:]:
        if x == "d": DIAG = True
        else:
            k, v = x.split("=", 1); OPT[k] = eval(v)
    src = build()
    open(sys.argv[1], "w").write(src)
```

```python
import sys, re
from asmlib import kd, khead
import haz, align

NAME = "recurrent_scan__linear_attn_block__dense_activation_silu__prompt_kernel"
S, D, F = 2048, 640, 1728
FA = 0x8000
FP = 0xF0000
FPD = 0x9000 - 144*128
FO = 0x38000
NEGM = 0x10000; RSTD = 0x12000
CSP = 0x14000
KVP   = 0x40000
PG = 1 << 21
PW = 0xC8000
RACE = 0xC0000
WPP = 1
HOF = 74*16384; HSZ = 27*16384
QPP = 9; QSZ = 10*16384
GXP = 13
WS_USED = 15*PG
TS = 0x1F00000
def blk(dst, rb, kind, t0, t1):
    sh, pg, msk, sz, of = (1, WPP, 1, HSZ, HOF) if kind == "h" else (2, QPP, 3, 2*QSZ, QSZ if kind == "o" else 0)
    return L(f"""
    s_and_b32 s{t0}, s{rb}, 15
    s_lshr_b32 s{t0}, s{t0}, {sh}
    s_add_u32 s{t0}, s{t0}, {pg}
    s_lshr_b32 s{t1}, s{rb}, 4
    s_xor_b32 s{t1}, s{t1}, s{t0}
    s_and_b32 s{t1}, s{t1}, 1
    s_lshl_b32 s{t1}, s{t1}, {12 if OPT["mode"] in ("cols", "none") else 13}
    s_lshl_b32 s{t0}, s{t0}, 21
    s_add_u32 s{t0}, s{t0}, s{t1}
    s_and_b32 s{t1}, s{rb}, {msk}
    s_mul_i32 s{t1}, s{t1}, {sz}
    s_add_u32 s{t0}, s{t0}, s{t1}
    s_add_u32 s{dst}, s{t0}, {of}
    """)
def cell(dst, idx, t0):
    return L(f"s_lshr_b32 s{t0}, s{idx}, 1\ns_lshl_b32 s{t0}, s{t0}, 14\ns_and_b32 s{dst}, s{idx}, 1\ns_lshl_b32 s{dst}, s{dst}, {13 if OPT['mode'] in ('cols', 'none') else 12}\ns_add_u32 s{dst}, s{dst}, s{t0}")
LOG2E = 0x3fb8aa3b
OOB = 0x40000000
STAGE = 45056; WOFF = 24576; SPARE = 3*STAGE
AUXC = SPARE; AUXM = SPARE + 6400
CSL = SPARE + 8192
PACKL = SPARE
KVX = SPARE + 10240
RED = 102400
DIAG = False
OPT = dict(spin=200000, pkd=1, pkr=3, pks={4: 3, 5: 2}, flagb=3, flagb_n=3, starts=0x8530, pollb=6,
           pf_t={15:5,16:5,17:5,18:5,19:7}, pf_n={15:4,16:4,17:4,18:5,19:5}, epi_n=[5, 5, 5, 5, 4, 0], kv_first=0,
           epi=[4, 3, 2, 3, 2, 2, 3], oq=9, f1blk=5, f1pos=0, gap1=8, poll_early=1, c2=2, pom=0,
           slots=[("r",0),("r",1),("o",0),("o",1),("r",2),("r",3),("r",4),("r",5),("r",6),("o",2),("o",3),("o",4),("o",5),("o",6)],
           aplan={0:[3],2:[4],3:[5,6],4:[7],5:[8],6:[9],7:[10],8:[11,13],9:[12]},
           mg=11, wb=14, xr=6, rb=1, burst=1, su1=170, su2=372, pp2=0,
           psched={0:1,1:2,10:3}, xs=[1, 1, 1], ofs=7, po=9, pc=12, xcut=44, xf=14, xp=18, xc=22, v1=12,
           osched={12:4,13:4,14:4,15:2,16:2,17:2,19:2}, xw=1, nbuf=3, v0=5, nopk=1, adist=3, p2map=1, su_pre=200, su_pre_n=160, sleep=2, rot=0, snake=1, krot=0, fash=4, wtrail={}, wrow=1, wfirst=0, sufirst=0, keep=2, touch=1, slin=0, head=2, w1first=0, cmaj=0, pol="race", mode="rows", trips=8, csin=1, cpf2=12,
           st=["eend", "w1", "g11", "op", "gend", "s5", "send"])

class A(list):
    def __call__(self, s):
        for x in s.strip("\n").split("\n"):
            x = x.strip()
            m = re.match(r"s_cselect_b32 (s\d+), (\d+|0x[0-9a-f]+), (\d+|0x[0-9a-f]+)\s*(;.*)?$", x)
            if m and int(m.group(2), 0) > 64 and int(m.group(3), 0) > 64:
                self.append(f"  s_mov_b32 {m.group(1)}, {m.group(3)}")
                x = f"s_cselect_b32 {m.group(1)}, {m.group(2)}, {m.group(1)}"
            if x: self.append(("" if x.endswith(":") else "  ") + x)
        return self
def L(s): return list(A()(s))
def stamp(name):
    if not DIAG: return []
    if name == "entry": i = 0
    elif name in OPT["st"][:4]: i = 1 + OPT["st"].index(name)
    else: return []
    return [f"  s_memrealtime s[{90+2*i}:{91+2*i}]"]
def stamp_out():
    if not DIAG: return []
    if OPT.get("echo") is not None:
        i = OPT["echo"]
        return L(f"""
        s_waitcnt vmcnt(0)
        s_memrealtime s[100:101]
        s_waitcnt lgkmcnt(0)
        s_sub_u32 s28, s{90+2*i}, s90
        s_cmp_gt_u32 s28, 4000
        s_cselect_b32 s28, 0, s28
        s_add_u32 s28, s28, 5000
        k_echo:
        s_memrealtime s[30:31]
        s_waitcnt lgkmcnt(0)
        s_sub_u32 s29, s30, s90
        s_cmp_lt_u32 s29, s28
        s_cbranch_scc1 k_echo
        """)
    r = L(f"""
    s_waitcnt vmcnt(0)
    s_memrealtime s[100:101]
    s_waitcnt lgkmcnt(0)
    s_lshl_b32 s28, s2, 2
    s_add_u32 s28, s28, s20
    s_lshl_b32 s28, s28, 6
    s_add_u32 s28, s28, {TS}
    v_mov_b32 v1, s28
    """)
    for i in range(6): r += [f"  v_mov_b32 v3, s{90+2*i}", f"  global_store_dword v1, v3, s[26:27] offset:{4*i if i < 5 else 48}"]
    r += ["  v_mov_b32 v3, s22", "  global_store_dword v1, v3, s[26:27] offset:60"]
    r += ["  s_getreg_b32 s28, hwreg(HW_REG_XCC_ID)", "  s_and_b32 s28, s28, 15", "  v_mov_b32 v3, s28", "  global_store_dword v1, v3, s[26:27] offset:56"]
    return r
def vr(b, n=4): return f"v[{b}:{b+n-1}]" if n > 1 else f"v{b}"
def ar(b, n=4): return f"a[{b}:{b+n-1}]" if n > 1 else f"a{b}"
def srd(d, lo, nbytes):
    return L(f"s_mov_b32 s{d}, s{lo}\ns_and_b32 s{d+1}, s{lo+1}, 0xffff\ns_mov_b32 s{d+2}, {nbytes}\ns_mov_b32 s{d+3}, 0x20000")
def isvm(x): return x.strip().startswith(("buffer_", "global_"))
def islg(x): return x.strip().startswith("ds_")
def tag(lines, t): return [x + f" ;#{t}" if (isvm(x) or islg(x)) else x for x in lines]
def W(vm=(), lg=()):
    vm = [vm] if isinstance(vm, str) else list(vm); lg = [lg] if isinstance(lg, str) else list(lg)
    return [f"  ;WAIT vm={','.join(vm)} lg={','.join(lg)}"]
def resolve(lines):
    out = []; vm = []; lg = []
    for x in lines:
        t = x.strip()
        if t.startswith(";MARK"):
            nm = t.split()[1]; vm.append(("m", nm)); lg.append(("m", nm)); continue
        if t.startswith(";WAIT"):
            m = re.match(r";WAIT vm=(\S*) lg=(\S*)", t); parts = []
            for names, hist, cn, mx in ((m.group(1), vm, "vmcnt", 63), (m.group(2), lg, "lgkmcnt", 15)):
                if not names: continue
                names = names.split(",")
                if names == ["*"]: parts.append(f"{cn}(0)"); continue
                idx = [i for i, h in enumerate(hist) if h[1] in names]
                for nme in names: assert any(h[1] == nme for h in hist), ("unknown tag", nme)
                n = sum(1 for h in hist[max(idx)+1:] if h[0] == "o")
                parts.append(f"{cn}({min(n, mx)})")
            out.append("  s_waitcnt " + " ".join(parts)); continue
        tg = re.search(r";#(\S+)", t); nm = tg.group(1) if tg else None
        kind = "n" if ";nocount" in t else "o"
        if isvm(x): vm.append((kind, nm))
        elif islg(x): lg.append((kind, nm))
        out.append(x)
    return out
def glue(lines):
    out = []; cur = []
    for x in lines:
        t = x.strip()
        if cur and not t.startswith(("s_cselect", "s_addc", "s_cbranch", "s_mov_b32")) and not t.endswith(":"):
            out.append(cur); cur = []
        if t.startswith(("s_cmp", "s_bitcmp")) or cur or (t.startswith("s_add_u32") and ";C" in t): cur.append(x)
        else: out.append([x])
    if cur: out.append(cur)
    return out
def place(M, lists):
    gaps = [[] for _ in M]
    for items, g0, g1 in lists:
        if not items: continue
        items = glue(items); n = g1 - g0 + 1
        for k, x in enumerate(items): gaps[g0 + k*n//len(items)] += x
    out = []
    for m, g in zip(M, gaps): out += [m] + g
    return out
def inter(main, groups, first=0):
    main = glue(main); out = []; n = len(main); G = len(groups); gi = 0
    for i, x in enumerate(main):
        while gi < G and i >= first + gi*(n - first)//G: out += groups[gi]; gi += 1
        out += x
    while gi < G: out += groups[gi]; gi += 1
    return out
def grp(lines, k):
    out = []; cur = []
    for x in lines:
        if isvm(x) and sum(map(isvm, cur)) == k:
            tail = []
            while cur and not isvm(cur[-1]): tail.insert(0, cur.pop())
            out.append(cur); cur = tail
        cur.append(x)
    if cur: out.append(cur)
    return out
OUTL = A()
def check(tg, vaddr, vdst, lead=False):
    if lead: a = L(f"v_cmp_ne_u32 vcc, s39, v{vdst}\ns_nop 1\ns_and_b64 vcc, vcc, s[56:57]\ns_cbranch_scc1 {tg}_slow\n{tg}_ok:\ns_barrier")
    else: a = L(f"v_cmp_ne_u32 vcc, s39, v{vdst}\ns_nop 1\ns_cmp_lg_u64 vcc, 0\ns_cbranch_scc1 {tg}_slow\n{tg}_ok:")
    OUTL(f"""
    {tg}_slow:
    s_mov_b32 s38, {OPT['spin']}
    {tg}_again:
    s_sleep {OPT.get('sleep', 4)}
    buffer_load_dword v{vdst}, v{vaddr}, s[16:19], 0 offen sc1
    s_sub_u32 s38, s38, 1
    s_cmp_eq_u32 s38, 0
    s_cbranch_scc1 {tg}_ok
    s_waitcnt vmcnt(0)
    v_cmp_ne_u32 vcc, s39, v{vdst}
    s_nop 1
    s_cmp_lg_u64 vcc, 0
    s_cbranch_scc1 {tg}_again
    s_branch {tg}_ok
    """)
    return a
def poll(vaddr, vdst, t, so="0"): return [f"  buffer_load_dword v{vdst}, v{vaddr}, s[16:19], {so} offen sc1 ;#{t}"]
def flag(soff, r=None):
    d, o = (3, 6) if r is None else (r, r + 1)
    return L(f"v_mov_b32 v{d}, s39\nv_lshlrev_b32 v{o}, 25, v7\nbuffer_store_dword v{d}, v{o}, s[16:19], {soff} offen sc1")

ACC = 8; CS = 128; AB = [148, 172]; BB = [196, 216]; VX = 236; VW = 242; LA = 247; LB = 249; VF = 255
L2B = CS
ONES = 240
def acc(T, t): return ACC + (T*5 + t)*4
def g1_mfma(buf, tr, first):
    M = []
    for T in range(6):
        for t in (range(5) if T % 2 == 0 else range(4, -1, -1)):
            x = vr(AB[buf] + 4*T); w = vr(BB[buf] + 4*t); d = vr(acc(T, t))
            p, q = (w, x) if tr else (x, w)
            M.append(f"  v_mfma_f32_16x16x32_bf16 {d}, {p}, {q}, {'0' if first else d}")
    return M
def g1_cs(buf):
    return [f"  v_mfma_f32_16x16x32_bf16 {vr(CS+4*t)}, {ar(ONES)}, {vr(BB[buf]+4*t)}, {'0' if buf == 0 else vr(CS+4*t)}" for t in range(5)]
def g1_reads(k):
    buf = k & 1; st = (k//2) % 3
    la, lb, so = (LA, LB, st*STAGE) if st < 2 else (L2B, L2B + 2, 0)
    R = []
    def b(t):
        u2, h2 = (64, 1280) if OPT["wrow"] else (1024, 256)
        base = lb + (2 if t == 4 else (t & 1)); off = so + buf*10240 + (u2 if t in (2, 3) else 0)
        return [f"  ds_read_b64_tr_b16 {vr(BB[buf]+4*t,2)}, v{base} offset:{off}",
                f"  ds_read_b64_tr_b16 {vr(BB[buf]+4*t+2,2)}, v{base} offset:{off+h2}"]
    def x(T): return [f"  ds_read_b128 {vr(AB[buf]+4*T)}, v{la+buf} offset:{so+T*2048}"]
    R += x(0)
    for t in range(5): R += b(t)
    for T in range(1, 6): R += x(T)
    return tag(R, f"r{k}")
def dma_x(c):
    so = (c % 3)*STAGE; Dm = []
    for j in range(6):
        if j in (0, 4): Dm.append(f"  s_add_u32 m0, s40, {so + 1024*j}")
        Dm.append(f"  buffer_load_dwordx4 v{VX+j}, s[8:11], s42 offen offset:{1024*(j%4)} lds")
    return tag(Dm, f"c{c}")
def dma_w(c):
    so = (c % 3)*STAGE; Dm = []
    for j in range(5):
        if OPT["wrow"]:
            if j in (0, 4): Dm.append(f"  s_add_u32 m0, s41, {so + 1024*j}")
            Dm.append(f"  buffer_load_dwordx4 v{VW+j}, s[12:15], s43 offen offset:{1024*(j%4)}{' nt' if (c == 0 and OPT.get('wnt')) else ''} lds")
            continue
        Dm.append(f"  s_add_u32 m0, s41, {so + 1024*j}")
        Dm.append(f"  buffer_load_dwordx4 v{VW+j}, s[12:15], s43 offen lds")
    return tag(Dm, f"c{c}")
def dma_next(c):
    return L(f"s_add_u32 s44, s54, {c}\ns_cmp_ge_u32 s44, 10\ns_cselect_b32 s42, 10, 0\ns_sub_u32 s44, s44, s42\ns_lshl_b32 s42, s44, 7\ns_mul_i32 s43, s44, s45")
def breg(s, t): return ar(s*20 + 4*t)
def bstream(i0, n):
    out = []
    for i in range(i0, i0 + n):
        s, t = divmod(i, 5)
        if t == 0 or i == i0:
            out.append(f"  s_add_u32 s68, s46, {8*16384*s}")
            if s == 6: out += L(f"s_cmp_lt_u32 s20, 3\ns_cselect_b32 s68, s68, {OOB}")
        if t < 4: out.append(f"  buffer_load_dwordx4 {breg(s,t)}, v4, s[16:19], s68 offen offset:{1024*t} sc1 ;#B{s}")
        else: out.append(f"  buffer_load_dwordx4 {breg(s,t)}, v5, s[16:19], s68 offen sc1 ;#B{s}")
    return out
class Stream:
    def __init__(self, items): self.items = list(items)
    def take(self, n):
        it, self.items = self.items[:n], self.items[n:]
        assert len(it) == n
        out = []; k = 0
        while k < len(it):
            j = k
            while j + 1 < len(it) and it[j+1] == (it[j][0], it[j][1] + 1): j += 1
            out += (bstream if it[k][0] == "B" else wo_dma)(it[k][1], j - k + 1); k = j + 1
        return out
def wo_dma(i0, n):
    out = []
    for i in range(i0, i0 + n):
        j, t = divmod(i, 5)
        if t in (0, 4) or i == i0: out += [f"  s_add_u32 m0, s69, {20480*j + (4096 if t == 4 else 0)}", f"  s_add_u32 s71, s70, {65536*j}"]
        out.append(f"  buffer_load_dwordx4 v{4 if t < 4 else 5}, s[16:19], s71 offen offset:{1024*(t%4)} sc1 lds ;#wo{j}")
    return out
PRODS = [(0,3),(0,4),(1,3),(1,4),(1,5),(2,3),(2,4),(2,5)]
KVOF = [240, 241, 242, 243, 244, 245, 246, 255]

def setup_s():
    return L(f"""
    s_cmp_lt_u32 s22, 12
    s_cselect_b32 s83, {LOG2E}, {LOG2E | 0x80000000}
    s_mul_i32 s76, s21, 3
    s_add_u32 s76, s76, s51
    s_add_u32 s77, s76, 1
    """) + blk(80, 76, "h", 28, 29) + blk(81, 77, "h", 28, 29) + blk(78, 76, "q", 28, 29) + blk(79, 77, "q", 28, 29) + L(f"""
    s_cmp_lt_u32 s22, 12
    s_cselect_b32 s80, s78, s80
    s_cselect_b32 s81, s79, s81
    s_cmp_ge_u32 s76, 32
    s_cselect_b32 s80, {OOB}, s80
    s_cmp_ge_u32 s77, 32
    s_cselect_b32 s81, {OOB}, s81
    s_lshl_b32 s28, s51, 11
    s_add_u32 s82, s81, s28              ; row tile 4
    s_add_u32 s29, s80, 2048
    s_add_u32 s80, s80, s28              ; row tile 0
    s_cmp_eq_u32 s51, 0
    s_cselect_b32 s81, s29, s81          ; row tile 2
    s_mul_i32 s61, s23, 5
    s_mul_i32 s28, s52, 3
    s_add_u32 s62, s61, s28
    s_add_u32 s63, s62, 1
    s_add_u32 s61, s61, 2
    s_lshl_b32 s28, s23, 1
    s_add_u32 s28, s28, s52
    s_add_u32 s29, s28, 22
    s_add_u32 s30, s23, 43
    s_cmp_lt_u32 s22, 12
    s_cselect_b32 s62, s62, s28
    s_cselect_b32 s63, s63, s29
    s_cselect_b32 s61, s61, s30
    s_cselect_b32 s75, {OOB}, {FPD}
    s_cmp_eq_u32 s63, 43
    s_cselect_b32 s63, {OOB >> 13}, s63
    """) + cell(62, 62, 28) + cell(63, 63, 28) + cell(61, 61, 28) + L(f"""
    s_lshl_b32 s28, s52, 9
    s_add_u32 s61, s61, s28
    s_add_u32 s75, s75, s67
    """)
def setup_t():
    return L(f"""
    v_add_u32 v{VX}, s62, v4
    v_add_u32 v{VX+1}, s63, v4
    v_and_b32 v3, 1, v2
    v_lshlrev_b32 v3, 10, v3
    v_lshrrev_b32 v254, 1, v2
    v_lshl_add_u32 v3, v254, 8, v3
    v_lshl_add_u32 v3, v1, 4, v3
    v_add_u32 v{VX+2}, s61, v3
    v_mov_b32 v{VX+4}, 0x358637bd
    v_mov_b32 v{VX+5}, 0x358637bd
    """)
def setup_n0():
    a = A()
    a(f"""
    v_and_b32 v1, 15, v7
    v_lshrrev_b32 v2, 4, v7
    v_cmp_gt_u32 s[32:33], 8, v1
    s_cmp_eq_u32 s21, 10
    s_cselect_b32 s36, s51, 0
    s_lshl_b32 s37, s22, 1
    s_add_u32 s37, s37, s52
    s_lshl_b32 s37, s37, 12
    s_add_u32 s37, s37, {KVP}
    s_lshl_b32 s60, s20, 12
    s_add_u32 s60, s60, {KVX}
    v_and_b32 v254, 31, v7
    v_add_u32 v254, 224, v254
    """)
    for n, (kx, vy) in enumerate(PRODS):
        eoff = {3: -8, 4: 8, 5: 24}[vy]; o = 252
        a(f"""
        v_add_u32 v3, {4*kx}, v2
        v_cmp_le_u32 vcc, 5, v3
        v_add_u32 v{o}, {eoff}, v1
        v_cmp_gt_u32 s[62:63], 10, v3
        v_cndmask_b32 v253, 0, 20, vcc
        v_sub_u32 v{o}, v{o}, v253
        """)
        if vy == 3: a(f"v_cmp_eq_u32 vcc, 0, v1\nv_cndmask_b32 v253, v{o}, 0, vcc\nv_cndmask_b32 v{o}, v{o}, 20, vcc\nv_cmp_gt_u32 vcc, 20, v253")
        else: a(f"v_cmp_gt_u32 vcc, 20, v{o}")
        a(f"""
        v_mad_u32_u24 v{o}, v3, 21, v{o}
        s_and_b64 vcc, vcc, s[62:63]
        v_cndmask_b32 v{o}, v254, v{o}, vcc
        v_lshl_add_u32 v{o}, v{o}, 4, s60
        v_accvgpr_write_b32 a{244+n}, v{o}
        """)
    return list(a)
def setup_n():
    return L(f"s_mov_b32 s30, {LOG2E}\ns_mov_b32 s31, {LOG2E}") + [f"  v_accvgpr_read_b32 v{KVOF[n]}, a{244+n}" for n in range(8)]

def g1_main(tg, tr, st):
    a = A()
    pf = OPT["pf_t"] if tr else OPT["pf_n"]
    a += W("c0"); a("s_barrier"); a += stamp("k0")
    a += g1_reads(0) + W(lg="r0")
    mv = OPT["keep"]
    d0 = [] if mv >= 1 else ((d_pack_src() if tr else []) + d_cs())
    bases = [f"  v_add_u32 v{L2B+i}, {2*STAGE}, v{LA+i}" for i in range(5)]
    a += place(g1_mfma(0, tr, True), [(g1_reads(1), 0, 17), (dma_x(2) + dma_w(2), 0, 28), (d0, 2, 29)])
    def csblock(c):
        o = A(); o(f"{tg}_cs{c}:")
        for b in range(2):
            o += [f"  v_mfma_f32_16x16x32_bf16 {ar(200+4*t)}, {ar(ONES)}, {vr(BB[b]+4*t)}, {'0' if b == 0 else ar(200+4*t)}" for t in range(5)]
        o(f"""
        v_cmp_le_u32 s[84:85], 16, v7
        v_cmp_le_u32 s[86:87], 32, v7
        v_cmp_le_u32 s[88:89], 48, v7
        """)
        for t in range(5): o(f"v_accvgpr_read_b32 v{CS+10+t}, a{200+4*t}")
        o(f"""
        v_cndmask_b32 v{CS+10}, v{CS+10}, v{CS+11}, s[84:85]
        v_cndmask_b32 v{CS+10}, v{CS+10}, v{CS+12}, s[86:87]
        v_cndmask_b32 v{CS+10}, v{CS+10}, v{CS+13}, s[88:89]
        buffer_store_dword v{CS+10}, v253, s[16:19], s64 offen sc1
        buffer_store_dword v{CS+14}, v254, s[16:19], s64 offen sc1
        """)
        if OPT["csin"]:
            return L(f"s_cmp_eq_u32 s68, {c}\ns_cbranch_scc0 {tg}_cr{c}") + [x + " ;nocount" if isvm(x) else x for x in o[1:]] + L(f"{tg}_cr{c}:\n;MARK cs")
        o(f"s_branch {tg}_cr{c}")
        OUTL.extend(o)
        return L(f"s_cmp_eq_u32 s68, {c}\ns_cbranch_scc1 {tg}_cs{c}\n{tg}_cr{c}:\n;MARK cs")
    def spread(items, ks):
        g = glue(items); return {k: sum(g[i*len(g)//len(ks):(i+1)*len(g)//len(ks)], []) for i, k in enumerate(ks)}
    if tr:
        dfr = spread(d_misc() + setup_s(), [4, 5, 6, 7, 8, 9, 10, 11, 12])
        if mv < 2: dfr[2] = d_pack_dst()
        if OPT["touch"]: dfr[2] = d_touch() + dfr.get(2, [])
    else: dfr = spread((d_touch() if OPT["touch"] else []) + d_misc(), [2, 3, 4])
    PKD, PKR, PKS = (OPT["pkd"], OPT["pkr"], OPT["pks"]) if tr else (None, None, {})
    pk_d = []
    for i in range(5):
        pk_d += [f"  s_add_u32 m0, s53, {896*i}", f"  buffer_load_dwordx4 v252, s[56:59], s55 offen offset:{128*i} {'nt ' if OPT.get('pknt', 1) else ''}lds ;#pk"]
    pk_r = []
    for t in range(5):
        if t: pk_r += L(f"s_cmp_eq_u32 s20, {4-t}\ns_cselect_b32 s28, 896, 0\nv_add_u32 v1, s28, v1\nv_add_u32 v2, s28, v2")
        pk_r += [f"  ds_read_b64_tr_b16 {ar(16+4*t,2)}, v1 offset:{32*t}", f"  ds_read_b64_tr_b16 {ar(18+4*t,2)}, v2 offset:{32*t}"]
    pk_s = [f"  buffer_store_dwordx4 {ar(16+4*t)}, v{4 if t < 4 else 5}, s[16:19], s{60 if c == 0 else 53} offen offset:{1024*(t%4)} sc1 ;#ps" for t in range(5) for c in range(2 if OPT["mode"] == "dup" else 1)]
    pk_r.append("  s_add_u32 s53, s60, 8192")
    auxa = L(f"""
    v_lshlrev_b32 v3, 4, v0
    v_add_u32 v252, s74, v3
    v_add_u32 v253, 4096, v252
    v_cmp_le_u32 vcc, 144, v0
    v_add_u32 v3, s65, v3
    v_cmp_le_u32 s[28:29], s66, v0
    v_cndmask_b32 v253, v253, v3, vcc
    v_add_u32 v3, {RSTD - NEGM - 768}, v3
    v_cmp_le_u32 vcc, 240, v0
    v_cndmask_b32 v253, v253, v3, s[28:29]
    v_mov_b32 v3, {OOB}
    v_cndmask_b32 v253, v253, v3, vcc
    v_and_b32 v1, 15, v7
    v_lshrrev_b32 v2, 4, v7
    """)
    polx = [f"  s_xor_b32 s{r}, s{r}, s3" for r in ((46, 70, 80, 81, 82) if OPT["mode"] == "dup" else (80, 81, 82))]
    aux = L(f"""
    s_mov_b32 m0, s72
    s_nop 0
    buffer_load_dwordx4 v252, s[16:19], 0 offen sc1 lds ;#aux
    s_add_u32 m0, s72, 4096
    s_nop 0
    buffer_load_dwordx4 v253, s[16:19], 0 offen sc1 lds ;#aux
    """) + flag("s73")
    y1 = L(f"v_lshlrev_b32 v252, 2, v0\nv_add_u32 v252, {AUXC}, v252") + tag([f"  ds_read_b32 v{CS+i}, v252 offset:{640*i}" for i in range(10)], "y1")
    y2 = [f"  v_add_f32 v{CS}, v{CS}, v{CS+i}" for i in range(1, 10)] + [f"  ds_write_b32 v252, v{CS} offset:{CSL-AUXC} ;#y2"]
    rd = L("s_mul_i32 s28, s51, 384\ns_add_u32 s28, s28, %d" % AUXM)
    if tr:
        rd += L(f"v_lshlrev_b32 v6, 4, v2\nv_add_u32 v252, s34, v6\nv_add_u32 v253, s35, v6\nv_lshl_add_u32 v3, v1, 2, s28")
        rd += [f"  ds_read_b128 {vr(CS+4*t)}, v252 offset:{64*t}" for t in range(4)] + [f"  ds_read_b128 {vr(CS+16)}, v253"]
        for T in range(6): rd += [f"  ds_read_b32 v{AB[0]+4*T}, v3 offset:{64*T}", f"  ds_read_b32 v{AB[0]+4*T+1}, v3 offset:{768+64*T}"]
    else:
        rd += L(f"v_lshlrev_b32 v6, 2, v1\nv_add_u32 v252, s34, v6\nv_lshl_add_u32 v3, v2, 4, s28")
        rd += [f"  ds_read_b32 v{CS+4*t}, v252 offset:{64*t}" for t in range(5)]
        for T in range(6): rd += [f"  ds_read_b128 {vr(AB[0]+4*T)}, v3 offset:{64*T}"]
        for T in range(5): rd += [f"  ds_read_b128 {vr(BB[0]+4*T)}, v3 offset:{768+64*T}"]
        rd += [f"  ds_read_b128 {vr(VX)}, v3 offset:{768+64*5}"]
    su = setup_t() if tr else setup_n()
    e0 = glue(setup_n0()); early = {} if tr else {6 + i: sum(e0[i*len(e0)//6:(i+1)*len(e0)//6], []) for i in range(6)}
    nb = 0; fb, pb = (OPT["flagb"] if tr else OPT["flagb_n"]), OPT["pollb"]; nps = 0
    for k in range(1, 20):
        c = (k - 1)//2
        M = g1_mfma(k & 1, tr, False)
        ls = []
        if k & 1:
            if c == pb and tr: a("k_t_join:")
            a += W(lg=[f"r{k}"] + (["y2"] if k == 19 else []) + (["pr"] if k - 1 == PKR else []))
            a.append(M.pop(0))
            if c < 3: a += csblock(c)
            vm = [f"c{c+1}"] if c < 9 else []
            if c == fb: vm += ["cs", "ss"] + (["ps"] if tr else [])
            if k == PKR: vm += ["pk"]
            if c == pb + 1: vm += ["pa"]
            if c == 8: vm += ["aux"]
            if vm: a += W(vm)
            if c == pb + 1: a += check(tg + "_sa", 6, VF)
            a("s_barrier")
            if c == 0: a += stamp("b0")
            if c == 7: a += stamp("tail")
            a += stamp(f"b{c}") if c > 0 else []
            if c == fb: ls.append((flag("s49", CS + 5), 0, 2))
            if c == pb: ls.append((L(f"v_lshlrev_b32 v6, {OPT['fash']}, v0\nv_add_u32 v6, {FA}, v6") + poll(6, VF, "pa"), 0, 2))
            if OPT["pol"] != "race":
                if c == pb + 1: ls.append((polx, 0, 2))
            else:
                assert OPT["mode"] == "rows"
                if c == 7: ls.append((L(f"v_mov_b32 v{CS+18}, {PW}\nbuffer_load_dword v{CS+19}, v{CS+18}, s[16:19], 0 offen sc1 ;#aux"), 0, 1))
                if c == 8:
                    ls.append((L(f"v_readfirstlane_b32 s3, v{CS+19}\ns_xor_b32 s3, s3, s39"), 19, 20))
                    ls.append((L(f"s_and_b32 s38, s3, {~8192 & 0xffffffff}\ns_cbranch_scc1 {tg}_pw\n{tg}_pwr:"), 21, 21))
                    ls.append((polx, 22, 28))
                    OUTL(f"""
                    {tg}_pw:
                    s_mov_b32 s84, {OPT['spin']}
                    {tg}_pw1:
                    s_sleep 4
                    buffer_load_dword v{CS+19}, v{CS+18}, s[16:19], 0 offen sc1
                    s_waitcnt vmcnt(0)
                    v_readfirstlane_b32 s3, v{CS+19}
                    s_sub_u32 s84, s84, 1
                    s_xor_b32 s3, s3, s39
                    s_and_b32 s38, s3, {~8192 & 0xffffffff}
                    s_cselect_b32 s38, s84, 0
                    s_and_b32 s3, s3, 8192
                    s_cmp_lg_u32 s38, 0
                    s_cbranch_scc1 {tg}_pw1
                    s_branch {tg}_pwr
                    """)
            if c == 7: ls.append(([x for x in aux], 0, 2))
            dx, dw = (dma_next(c+3) + dma_x(c+3), dma_w(c+3)) if c + 3 <= 9 else ([], [])
            if k == PKD: ls += [(pk_d, 0, 9), (dx[:-4], 14, 28)]
            else: ls.append((dx, 1, 27))
            if k == PKR: ls.append((tag(pk_r, "pr"), 10, 26))
            if c == 0: ls.append((bases, 20, 27))
            if c == 8: ls.append((y1, 8, 22))
        else:
            a += W(lg=[f"r{k}"] + (["y1"] if c == 8 else []) + (["pr"] if k - 1 == PKR else []))
            if k - 1 == PKD: ls.append((dx[-4:] + dw, 0, 28))
            else: ls.append((dw, 1, 27))
            if c == 6: ls.append((auxa, 17, 28))
            if c == 8: ls.append((y2, 0, 12))
        if PKS.get(k): ls.append((pk_s[nps:nps+PKS[k]], 2, 28 if nps + PKS[k] < len(pk_s) else 18)); nps += PKS[k]
        if k < 19: ls.insert(0, (g1_reads(k+1), 1 if k & 1 else 0, 17))
        else: ls.insert(0, (rd, 0, 22))
        if k == 16: ls.append((su, 18, 28))
        if k in early: ls.append((early[k], 4, 28))
        if k in dfr: ls.append((dfr[k], 0 if k == 2 else 6, 28))
        if k == OPT["cpf2"]:
            ls.append((L(f"v_add_u32 v{CS+8}, s50, v4\nv_min_u32 v{CS+8}, CODE_MAX, v{CS+8}\ns_cmp_gt_u32 s50, CODE_MAX\ns_cbranch_scc1 {tg}_c2\nglobal_load_dwordx4 {vr(CS+12)}, v{CS+8}, s[0:1] ;nocount\n{tg}_c2:"), 29 - (k & 1), 29 - (k & 1)))
        if pf.get(k):
            assert c > pb
            assert all(x[0] == "B" for x in st.items[:pf[k]])
            ls.append((st.take(pf[k]), 3, 28))
        a += place(M, ls)
    a += stamp("lend")
    return a

def stats_math():
    a = A(); src = 8; tmp = 20; ac = 44
    for i in range(12):
        a(f"v_lshlrev_b32 v{tmp+2*i}, 16, v{src+i}\nv_and_b32 v{tmp+2*i+1}, 0xffff0000, v{src+i}")
    a(f"v_pk_add_f32 {vr(ac,2)}, {vr(tmp,2)}, {vr(tmp+2,2)}")
    for i in range(2, 12): a(f"v_pk_add_f32 {vr(ac,2)}, {vr(ac,2)}, {vr(tmp+2*i,2)}")
    def red():
        a(f"v_add_f32 v{ac}, v{ac}, v{ac+1}")
        for r in (8, 4, 2, 1): a(f"v_add_f32_dpp v{ac}, v{ac}, v{ac} row_ror:{r} row_mask:0xf bank_mask:0xf")
        a(f"v_mov_b32 v{ac+1}, v{ac}\nv_permlane16_swap_b32 v{ac}, v{ac+1}\nv_add_f32 v{ac}, v{ac}, v{ac+1}")
    red()
    a(f"v_mul_f32 v46, 0xbacccccd, v{ac}")
    a(f"v_cndmask_b32 v47, 0, v46, s[32:33]")
    for i in range(8): a(f"v_pk_add_f32 {vr(tmp+2*i,2)}, {vr(tmp+2*i,2)}, v[46:47] op_sel_hi:[1,0]")
    for i in range(8, 12): a(f"v_pk_add_f32 {vr(tmp+2*i,2)}, {vr(tmp+2*i,2)}, v[46:47] op_sel:[0,1] op_sel_hi:[1,1]")
    a(f"v_pk_mul_f32 {vr(ac,2)}, {vr(tmp,2)}, {vr(tmp,2)}")
    for i in range(1, 12): a(f"v_pk_fma_f32 {vr(ac,2)}, {vr(tmp+2*i,2)}, {vr(tmp+2*i,2)}, {vr(ac,2)}")
    red()
    a(f"""
    v_mov_b32 v{ac+1}, 0x3727c5ac
    v_fmac_f32 v{ac+1}, 0x3acccccd, v{ac}
    v_rsq_f32 v{ac+1}, v{ac+1}
    v_and_b32 v48, 31, v7
    v_cmp_eq_u32 vcc, 0, v48
    v_lshrrev_b32 v49, 5, v7
    v_lshlrev_b32 v49, 2, v49
    v_cndmask_b32 v46, v{ac+1}, v46, vcc
    v_lshl_add_u32 v49, v48, 13, v49
    v_cmp_gt_u32 vcc, 2, v48
    v_mov_b32 v50, {OOB}
    s_lshl_b32 s28, s48, 3
    s_add_u32 s28, s28, {NEGM}
    v_cndmask_b32 v49, v50, v49, vcc
    buffer_store_dword v46, v49, s[16:19], s28 offen sc1 ;#ss
    s_lshl_b32 s28, s2, 8
    s_add_u32 s28, s28, {KVP}
    s_cmp_eq_u32 s20, 1
    s_cselect_b32 s28, s28, {OOB}
    v_lshlrev_b32 v49, 2, v7
    v_mov_b32 v50, 0
    buffer_store_dword v50, v49, s[16:19], s28 offen sc1 ;#ss
    """)
    return list(a)

def prologue():
    a = A()
    a += stamp("entry")
    a(f"""
    s_load_dwordx16 s[60:75], s[0:1], 0
    s_load_dwordx2 s[26:27], s[0:1], 64
    s_cmp_ge_u32 s2, 256
    s_cbranch_scc1 k_end
    s_and_b32 s3, s2, 7
    s_lshl_b32 s3, s3, 5
    s_lshr_b32 s21, s2, 3
    s_add_u32 s3, s3, s21                ; lin
    s_mul_i32 s35, {"s3" if OPT["slin"] else "s2"}, 10240
    v_lshrrev_b32 v1, 5, v0
    v_mul_u32_u24 v1, {1280-512}, v1
    v_lshl_add_u32 v52, v0, 4, v1
    v_and_b32 v1, 16, v0
    v_lshl_add_u32 v53, v1, 26, v52      ; lanes whose third piece is past the row: out of range
    s_mov_b32 s10, {S*D*2}
    s_mov_b32 s11, 0x20000
    """)
    ld = L("s_waitcnt lgkmcnt(0)\ns_mov_b32 s8, s60\ns_and_b32 s9, s61, 0xffff") + stamp("karg")
    for j in range(3): ld.append(f"  buffer_load_dwordx4 {vr(8+4*j)}, v{53 if j == 2 else 52}, s[8:11], s35 offen offset:{512*j} ;#sl")
    if OPT["head"] == 0: a += ld
    a(f"""
    s_getpc_b64 s[36:37]
    v_cmp_eq_u32 s[32:33], 0, v1
    v_lshrrev_b32 v1, 6, v0
    v_and_b32 v7, 63, v0                 ; lane
    v_readfirstlane_b32 s20, v1          ; wave
    s_cmp_lt_u32 s3, 138
    s_cselect_b32 s28, 0, 138
    s_cselect_b32 s29, 10923, 13108
    s_cselect_b32 s30, 6, 5
    s_cselect_b32 s31, 0, 6
    s_sub_u32 s28, s3, s28
    s_mul_i32 s22, s28, s29
    s_lshr_b32 s22, s22, 16
    s_mul_i32 s30, s22, s30
    s_sub_u32 s21, s28, s30
    s_add_u32 s21, s21, s31              ; rb
    s_cmp_ge_u32 s3, 253
    s_cselect_b32 s21, 11, s21
    s_mul_i32 s28, s21, 86
    s_lshr_b32 s28, s28, 8               ; rb/3
    s_lshl_b32 s29, s28, 2
    s_lshr_b32 s54, {OPT["starts"]}, s29
    s_and_b32 s54, s54, 15               ; start chunk of this class
    s_mul_i32 s28, s28, 3
    s_sub_u32 s46, s21, s28
    """)
    xa = A()
    xa(f"""
    s_lshl_b32 s28, s21, 2
    s_add_u32 s28, s28, s20
    s_mul_i32 s28, s28, {48*1280}
    v_lshrrev_b32 v1, 3, v7              ; r8
    v_lshrrev_b32 v2, 1, v1
    v_and_b32 v3, 7, v7
    v_xor_b32 v2, v2, v3
    v_mul_u32_u24 v1, 1280, v1
    v_lshl_add_u32 v252, v3, 4, v1
    v_add_u32 v1, s28, v1
    v_lshl_add_u32 v{VX}, v2, 4, v1
    v_xor_b32 v2, 4, v2
    v_lshl_add_u32 v6, v2, 4, v1
    """)
    for j in range(1, 6): xa(f"v_add_u32 v{VX+j}, {j*10240 - 1024*(j%4)}, v{6 if j & 1 else VX}")
    xa("s_mul_i32 s40, s20, 6144\ns_lshl_b32 s42, s54, 7")
    wa = A()
    wa(f"""
    s_sub_u32 s28, 22, s22
    s_cmp_lt_u32 s3, 138
    s_cselect_b32 s22, s22, s28
    s_mul_i32 s28, s22, 43
    s_lshr_b32 s28, s28, 8               ; g = p/6
    s_mul_i32 s29, s28, 6
    s_sub_u32 s29, s22, s29              ; r
    s_mul_i32 s30, s28, 3
    s_add_u32 s30, s30, s29
    s_add_u32 s30, s30, 9                ; w1: 12+3g+r-3
    s_lshl_b32 s31, s28, 1
    s_add_u32 s31, s31, s29
    s_sub_u32 s31, s31, 1                ; kv: 2g+r-1
    s_add_u32 s28, s28, 8                ; q
    s_cmp_lt_u32 s29, 3
    s_cselect_b32 s22, s31, s30
    s_cmp_eq_u32 s29, 0
    s_cselect_b32 s22, s28, s22
    s_cmp_ge_u32 s3, 253
    s_cselect_b32 s22, 12, s22
    s_cmp_lt_u32 s22, 12
    s_cselect_b32 s12, s62, s68
    s_cselect_b32 s13, s63, s69
    s_cselect_b32 s14, {D*3*D*2}, {D*F*2}
    s_cselect_b32 s50, 3840, 3456        ; W row stride
    s_cselect_b32 s28, 8, 12
    s_and_b32 s13, s13, 0xffff
    s_mov_b32 s15, 0x20000
    s_lshl_b32 s45, s50, 6
    s_sub_u32 s23, s22, s28
    s_mul_i32 s29, s23, 320
    s_mul_i32 s30, s22, 160
    s_add_u32 s30, s30, 1280
    s_cmp_lt_u32 s22, 8
    s_cselect_b32 s29, s30, s29
    s_cselect_b32 s30, 1200, 0
    s_cselect_b32 s31, -80, 0
    s_lshl_b32 s28, s20, 4
    s_mul_i32 s28, s28, s50
    s_add_u32 s29, s29, s28
    s_mul_i32 s41, s20, 5120
    s_add_u32 s41, s41, {WOFF}
    s_mul_i32 s43, s54, s45
    s_movk_i32 s28, -20
    v_xor_b32 v54, 2, v7                 ; rows 8..15 swap adjacent 32-byte units
    v_lshrrev_b32 v55, 4, v7
    v_and_b32 v55, 2, v55
    v_xor_b32 v55, v55, v7
    """)
    dw = grp(dma_w(0), 1); wj = []
    for jj in range(5):
        src = 7 if jj < 2 else 55 if jj == 2 else 54
        b = A()
        if jj: b(f"v_add_u32 v1, {64*jj}, v{src}")
        q = 1 if jj else 7
        b(f"""
        v_mul_u32_u24 v2, 3277, v{q}
        v_lshrrev_b32 v2, 16, v2
        v_mad_i32_i24 v3, v2, s28, v{q}
        v_mul_u32_u24 v2, s50, v2
        v_lshl_add_u32 v2, v3, 4, v2
        v_mul_u32_u24 v3, 205, v3
        v_bfe_u32 v1, v3, 10, 1
        v_lshrrev_b32 v3, 11, v3
        v_mad_u32_u24 v2, v1, s30, v2
        v_mad_i32_i24 v2, v3, s31, v2
        v_add_u32 v{VW+jj}, s29, v2
        """)
        if jj < 3: b("s_sub_u32 s29, s29, 1024")
        if jj == 3: b("s_add_u32 s29, s29, 3072")
        wj.append(list(b))
    if OPT["wfirst"]:
        a += wa
        for jj in range(5): a += wj[jj] + dw[jj]
        a += stamp("w0i") + xa
        first = grp(dma_x(0), 1)
    else:
        if OPT["head"] == 0: a += xa + dma_x(0) + wa + sum(wj, [])
        elif OPT["head"] == 1: a += xa + ld + dma_x(0) + wa + sum(wj, [])
        elif OPT["head"] == 2: a += wa[:20] + ld + xa + dma_x(0) + wa[20:] + sum(wj, [])
        elif OPT["head"] == 4: a += wa[:20] + xa + ld + dma_x(0) + wa[20:] + sum(wj, [])
        elif OPT["head"] == 5:
            ptr = [x for x in wa if re.match(r"\s*s_(cselect|and)_b32 s1[23],", x)]
            a += xa + [x for x in wa if x not in ptr] + ld + dma_x(0) + L("s_cmp_lt_u32 s22, 12") + ptr + sum(wj, [])
        elif OPT["head"] == 3: a += xa + ld[:3] + wa + sum(wj, []) + ld[3:] + dma_x(0)
        first = dw
    a(f"""
    s_load_dword s39, s[26:27], 0
    v_lshlrev_b32 v4, 4, v7
    s_lshl_b32 s48, {"s3" if OPT["slin"] else "s2"}, 2
    s_add_u32 s48, s48, s20              ; stats job
    s_and_b32 s36, s36, 0xffffff00
    s_lshr_b32 s28, s2, 3
    s_lshl_b32 s29, s20, 5
    s_add_u32 s28, s28, s29
    s_add_u32 s28, s28, 2
    s_mov_b64 s[0:1], s[36:37]
    s_lshl_b32 s50, s28, 10
    s_cmp_ge_u32 s28, CODE_KB
    s_cbranch_scc1 k_nocp
    v_add_u32 v1, s50, v4
    v_min_u32 v1, CODE_MAX, v1
    global_load_dwordx4 v[128:131], v1, s[0:1] ;nocount
    k_nocp:
    """)
    su = A()
    su += srd(16, 26, WS_USED)
    su(f"""
    s_lshr_b32 s51, s20, 1               ; wr
    s_and_b32 s52, s20, 1                ; wc
    v_lshrrev_b32 v59, 4, v7             ; g
    v_bfe_u32 v56, v7, 2, 2              ; rr
    v_and_b32 v57, 3, v7                 ; c4
    v_and_b32 v58, 1, v59                ; g&1
    v_and_b32 v3, 15, v7                 ; m
    v_lshrrev_b32 v6, 1, v3
    v_xor_b32 v6, v6, v59
    s_mul_i32 s28, s51, 12288
    v_lshl_add_u32 v55, v3, 7, s28
    v_lshl_add_u32 v{LA}, v6, 4, v55
    v_xor_b32 v6, 4, v6
    v_lshl_add_u32 v{LA+1}, v6, 4, v55
    v_lshl_add_u32 v55, v59, 3, v56
    v_mul_u32_u24 v55, 320, v55
    v_lshl_add_u32 v55, v57, 3, v55
    v_add_u32 v55, {WOFF}, v55
    s_cmp_lt_u32 s22, 8
    s_cselect_b32 s34, 5, 6
    s_cselect_b32 s35, 9, 5
    s_cmp_eq_u32 s52, 0
    s_cselect_b32 s34, 0, s34
    s_cselect_b32 s35, 4, s35
    s_add_u32 s30, s34, 1
    """)
    for i, sreg in enumerate((34, 30, 35)):
        su(f"v_xor_b32 v6, s{sreg}, v58\nv_lshl_add_u32 v{LB+i}, v6, 5, v55")
    su(f"""
    v_mov_b32 v6, 0x3f803f80
    v_accvgpr_write_b32 a{ONES}, v6
    v_accvgpr_write_b32 a{ONES+1}, v6
    v_accvgpr_write_b32 a{ONES+2}, v6
    v_accvgpr_write_b32 a{ONES+3}, v6
    """)
    mv = OPT["keep"]
    if mv >= 1: su += d_pack_src() + d_cs()
    if mv >= 2: su += d_pack_dst()
    a += inter(su, first, OPT["sufirst"])
    a += stamp("c0i")
    a += dma_next(1)
    a += W("sl")
    a += stamp("sl")
    a += inter(stats_math(), grp(dma_x(1) + dma_w(1), 1))
    a += dma_next(2)
    a("s_waitcnt lgkmcnt(0)\ns_mul_i32 s39, s39, 1664525\ns_add_u32 s39, s39, 1013904223")
    a += stamp("pend")
    return a

def d_pack_src():
    return L(f"""
    s_sub_u32 s36, s22, 8
    s_mul_i32 s36, s36, 11
    s_add_u32 s36, s36, s21
    s_lshr_b32 s37, s36, 1               ; ks
    s_and_b32 s38, s36, 1
    s_cmp_lt_u32 s37, 54
    s_cselect_b32 s56, s70, s64
    s_cselect_b32 s57, s71, s65
    s_cmp_lt_u32 s37, 54
    s_cselect_b32 s58, {F*D*2}, {D*D*2}
    s_cmp_lt_u32 s37, 54
    s_cselect_b32 s28, 0, 54
    s_and_b32 s57, s57, 0xffff
    s_mov_b32 s59, 0x20000
    s_sub_u32 s28, s37, s28
    s_mul_i32 s28, s28, {32*1280}
    s_mul_i32 s29, s38, 640
    s_add_u32 s55, s28, s29
    s_mul_i32 s29, s20, 10240
    s_add_u32 s55, s55, s29              ; pack src (8 rows per wave)
    s_mul_i32 s53, s20, 5120
    s_add_u32 s53, s53, {PACKL}
    """)
def d_cs():
    return L(f"""
    s_lshl_b32 s34, s34, 6
    s_lshl_b32 s35, s35, 6
    v_lshl_add_u32 v253, v7, 2, s34
    v_lshl_add_u32 v254, v7, 2, s35
    v_and_b32 v6, 48, v7
    v_lshl_add_u32 v254, v6, 22, v254
    s_add_u32 s34, s34, {CSL}
    s_add_u32 s35, s35, {CSL}
    s_mul_i32 s62, s22, 6400
    s_add_u32 s62, s62, {CSP}
    s_add_u32 s64, s54, s46
    s_mul_i32 s64, s64, 640
    s_add_u32 s64, s64, s62
    s_mov_b32 s68, s46
    s_cmp_eq_u32 s21, 5
    s_cselect_b32 s68, 7, s68
    s_cmp_eq_u32 s51, 1
    s_cselect_b32 s68, 7, s68
    """)
def d_pack_dst():
    return L(f"""
    v_add_u32 v5, 4096, v4
    s_mul_i32 s28, s37, 205
    s_lshr_b32 s28, s28, 10              ; c
    s_mul_i32 s30, s28, 5
    s_sub_u32 s30, s37, s30              ; r
    s_lshl_b32 s29, s30, 3
    s_lshr_b32 s47, 0x01001600, s29      ; r -> 0, 22, -, 1
    s_and_b32 s47, s47, 255
    s_cmp_eq_u32 s30, 4
    s_cselect_b32 s47, 23, s47
    s_lshl_b32 s29, s28, 1
    s_add_u32 s47, s47, s29
    s_add_u32 s28, s28, 43
    s_cmp_eq_u32 s30, 2
    s_cselect_b32 s31, 1, 0
    s_cselect_b32 s47, s28, s47
    s_cmp_ge_u32 s37, 54
    s_cselect_b32 s31, 1, s31
    s_cselect_b32 s47, s37, s47          ; storage index
    s_lshl_b32 s28, 5120, s31            ; per g>>1
    s_mul_i32 s29, s31, 4608
    s_add_u32 s29, s29, 512              ; per g&1
    s_mul_i32 s30, s31, -9728
    s_add_u32 s30, s30, 10240
    v_lshrrev_b32 v3, 5, v7
    v_mul_u32_u24 v1, s28, v3
    v_bfe_u32 v3, v7, 4, 1
    v_mad_u32_u24 v1, v3, s29, v1
    v_bfe_u32 v3, v7, 2, 2
    v_lshl_add_u32 v1, v3, 7, v1
    v_and_b32 v3, 3, v7
    v_lshl_add_u32 v1, v3, 3, v1
    s_mul_i32 s28, s20, 1056
    s_add_u32 s28, s28, {PACKL}
    v_add_u32 v1, s28, v1
    v_add_u32 v2, s30, v1
    s_lshl_b32 s28, s38, 2
    s_add_u32 s28, s28, s20              ; ct
    s_add_u32 s28, s28, {WPP}
    s_lshl_b32 s28, s28, 21
    s_lshl_b32 s29, s47, 14
    s_add_u32 s28, s28, s29
    s_bfe_u32 s29, s47, 0x10001
    s_mul_i32 s29, s29, {3072 + 8192}
    s_add_u32 s28, s28, s29
    s_cmp_ge_u32 s36, 148
    s_cselect_b32 s60, {OOB}, s28
    """)
def d_touch():
    return L(f"""
    s_not_b32 s28, s39
    v_mov_b32 v{CS+6}, s28
    s_lshl_b32 s28, s2, 1
    s_add_u32 s28, s28, s20
    s_lshl_b32 s28, s28, 7
    s_add_u32 s28, s28, {FP}
    s_lshl_b32 s29, s2, 7
    s_add_u32 s29, s29, {FO}
    s_cmp_eq_u32 s20, 2
    s_cselect_b32 s28, s29, s28
    s_cmp_eq_u32 s20, 3
    s_cselect_b32 s28, {OOB}, s28
    v_lshlrev_b32 v{CS+7}, 2, v7
    v_and_b32 v{CS+5}, 32, v7
    v_lshl_add_u32 v{CS+7}, v{CS+5}, 21, v{CS+7}
    buffer_store_dword v{CS+6}, v{CS+7}, s[16:19], s28 offen sc1 ;#ss
    s_lshl_b32 s28, s2, 2
    s_add_u32 s28, s28, s20
    s_lshl_b32 s28, s28, 12
    s_add_u32 s28, s28, {GXP*PG + 3072}
    buffer_store_dword v{CS+6}, v{CS+7}, s[16:19], s28 offen sc1 ;#ss
    """)
def d_misc():
    return L(f"""
    s_lshl_b32 s49, s2, {OPT['fash']}
    s_add_u32 s49, s49, {FA}
    s_cmp_eq_u32 s20, 0
    s_cselect_b32 s49, s49, {OOB}        ; A flag (wave 0)
    v_add_u32 v5, 4096, v4
    """) + srd(4, 72, S*D*2) + L(f"""
    s_mul_i32 s74, s22, 6400
    s_add_u32 s74, s74, {CSP}
    s_add_u32 s73, s2, s20
    s_cmp_eq_u32 s73, 0
    s_cselect_b32 s73, 0, {OOB}          ; epoch word (wg0 wave0)
    s_and_b32 s24, s2, 6
    s_lshl_b32 s24, s24, 2
    s_lshr_b32 s28, s2, 5
    s_add_u32 s24, s24, s28              ; row group of phase 2
    s_bfe_u32 s25, s2, 0x20003
    s_and_b32 s28, s2, 1
    s_lshl_b32 s28, s28, 2
    s_add_u32 s25, s25, s28              ; column tile of phase 2
    s_add_u32 s29, s25, {WPP}
    s_lshl_b32 s29, s29, 21
    s_and_b32 s47, s24, 1
    s_lshl_b32 s28, s20, 1
    s_add_u32 s47, s47, s28              ; first storage index of this wave: 2*wave + parity
    s_lshl_b32 s28, s47, 14
    s_add_u32 s46, s29, s28
    s_mul_i32 s28, s52, {3072 + 8192}
    s_add_u32 s46, s46, s28              ; B stream first
    s_lshl_b32 s28, s20, 14
    s_add_u32 s70, s29, s28
    s_mul_i32 s28, s51, {3072 + 8192}
    s_sub_u32 s70, s70, s28
    s_add_u32 s70, s70, {54*16384 + 3072 + 8192} ; wo src
    s_mul_i32 s69, s20, 5120             ; wo lds base
    s_lshl_b32 s72, s20, 10
    s_add_u32 s72, s72, {AUXC}
    s_mul_i32 s65, s21, 768
    s_add_u32 s65, s65, {NEGM - 144*16}
    s_movk_i32 s66, 192
    s_mul_i32 s67, s22, 12
    s_add_u32 s67, s67, s21
    s_lshl_b32 s67, s67, 7
    s_add_u32 s67, s67, {FP}
    s_cmp_eq_u32 s20, 0
    s_cselect_b32 s67, s67, {OOB}
    """)

def zipw(*ls):
    keyed = []
    for li, l in enumerate(ls):
        for j, x in enumerate(l): keyed.append(((j + 0.5)/len(l), li, j, x))
    keyed.sort(key=lambda t: t[:3])
    return [y for k in keyed for y in k[3]]
def epi_t(kind, st):
    RC = AB[0]; PK = AB[1]; TMP = BB[0]
    e = A()
    for T in range(6):
        c = RC + 4*T
        e(f"v_mul_f32 v{c+2}, s83, v{c+1}")
        if kind == "silu": e(f"v_rcp_f32 v{c+3}, v{c+1}")
    blocks = [[(T, i) for T in Ts for i in idx] for idx in ((0, 1, 2, 3), (4, 5, 6, 7)) for Ts in ((0, 1), (2, 3), (4, 5))]
    blocks.append([(T, i) for T in range(6) for i in (8, 9)])
    nxt = lambda T: f"  s_mov_b32 s48, s{81 if T == 1 else 82}" if T in (1, 3) else "  s_add_u32 s48, s48, 1024"
    pend = []
    for bi, blk in enumerate(blocks):
        V = []; n = len(blk)
        u = lambda k: acc(blk[k][0], 0) + 2*blk[k][1]
        c = lambda k: RC + 4*blk[k][0]
        for k in range(n): V.append(f"  v_pk_fma_f32 {vr(u(k),2)}, {vr(CS+2*blk[k][1],2)}, {vr(c(k),2)}, {vr(u(k),2)} op_sel_hi:[1,0,1]")
        for k in range(n): V.append(f"  v_pk_mul_f32 {vr(TMP+2*k,2)}, {vr(u(k),2)}, {vr(c(k)+2,2)} op_sel_hi:[1,0]")
        if kind == "silu":
            for k in range(2*n): V.append(f"  v_exp_f32 v{TMP+k}, v{TMP+k}")
            for k in range(n): V.append(f"  v_pk_fma_f32 {vr(TMP+2*k,2)}, {vr(TMP+2*k,2)}, {vr(c(k)+2,2)}, {vr(c(k)+2,2)} op_sel:[0,1,1] op_sel_hi:[1,1,1]")
            for k in range(2*n): V.append(f"  v_rcp_f32 v{TMP+k}, v{TMP+k}")
            fin = lambda k: f"  v_pk_mul_f32 {vr(u(k),2)}, {vr(u(k),2)}, {vr(TMP+2*k,2)}"
        else:
            for k in range(2*n): V.append(f"  v_exp_f32_e64 v{TMP+k}, v{TMP+k} clamp")
            for k in range(n): V.append(f"  v_pk_fma_f32 {vr(u(k),2)}, {vr(u(k),2)}, {vr(c(k),2)}, 1.0 op_sel:[0,1,0] op_sel_hi:[1,1,0]")
            for k in range(2*n): V.append(f"  v_max_f32 v{u(k//2)+(k&1)}, v{u(k//2)+(k&1)}, v{TMP+k}")
            fin = lambda k: f"  v_pk_add_f32 {vr(u(k),2)}, {vr(u(k),2)}, {vr(VX+4,2)}"
        items = pend + grp(st.take(OPT["epi"][bi]), 1)
        if bi == OPT["f1blk"]: items.insert(len(pend) + OPT["f1pos"], W("sa") + L("s_barrier") + flag("s75") + stamp("f1"))
        ins = {}
        for k, x in enumerate(items): ins[5 + (k*(len(V) - 6)//len(items))//2*2] = x
        for i, v in enumerate(V):
            e.append(v)
            if i in ins: e += ins[i]
        p = PK + 12*(bi & 1); tg = " ;#sa" if bi < 3 else ""
        if bi in (0, 3, 6): e("s_mov_b32 s48, s80")
        pend = []
        for q in range(n//4):
            for k in range(4*q, 4*q + 4): e.append(fin(k))
            for k in range(4*q, 4*q + 4): e(f"v_cvt_pk_bf16_f32 v{p+k}, v{u(k)}, v{u(k)+1}")
            if bi < 6:
                T = blk[4*q][0]
                stv = [f"  buffer_store_dwordx4 {vr(p+4*q)}, v{VX + bi//3}, s[16:19], s48 offen sc1{tg}"]
                if T < 5: stv.append(nxt(T))
                if q == 0: e += stv
                else: pend.append(stv)
            else:
                e(f"v_permlane16_swap_b32 v{p+4*q}, v{p+4*q+2}\nv_permlane16_swap_b32 v{p+4*q+1}, v{p+4*q+3}")
                e(f"buffer_store_dwordx4 {vr(p+4*q)}, v{VX+2}, s[16:19], s48 offen sc1")
                if q < 2: e.append(nxt(2*q+1))
    return resolve(e)

def epi_kv(st):
    a = A()
    NM = AB[0]; TMP = BB[1]; FR = AB[1]; DD = ACC
    def RSf(T): return BB[0] + 4*T if T < 5 else VX
    a(f"""
    v_mov_b32 v{TMP+12}, 0x358637bd
    v_mov_b32 v{TMP+13}, 0x358637bd
    v_mov_b32 v{TMP+14}, 0x3f803f80
    s_waitcnt lgkmcnt(0)
    """)
    def kvm(P): return [f"  v_mfma_f32_16x16x32_bf16 {vr(DD+4*n)}, {vr(FR+4*kx)}, {vr(FR+4*vy)}, {'0' if P == 0 else vr(DD+4*n)}" for n, (kx, vy) in enumerate(PRODS)]
    for P in range(3):
        for h in range(2):
            T = 2*P + h; u0 = acc(T, 0); nm = NM + 4*T; rs = RSf(T); b = A()
            for t in range(5):
                for i in range(2):
                    r = u0 + 4*t + 2*i
                    b(f"v_pk_fma_f32 {vr(r,2)}, {vr(nm+2*i,2)}, {vr(CS+4*t,2)}, {vr(r,2)} op_sel_hi:[1,0,1]")
            for t in range(5):
                for i in range(2):
                    r = u0 + 4*t + 2*i
                    b(f"v_pk_mul_f32 {vr(r,2)}, {vr(r,2)}, {vr(rs+2*i,2)}")
            for i in range(6): b(f"v_pk_mul_f32 {vr(TMP+2*i,2)}, {vr(u0+2*i,2)}, s[30:31]")
            for i in range(12): b(f"v_exp_f32_e64 v{TMP+i}, v{TMP+i} clamp")
            for t in range(2, 5):
                for i in range(2): b(f"v_cvt_pk_bf16_f32 v{FR+4*(t+1)+2*h+i}, v{u0+4*t+2*i}, v{u0+4*t+2*i+1}")
            for i in range(2): b(f"v_cndmask_b32 v{FR+12+2*h+i}, v{FR+12+2*h+i}, v{TMP+14}, s[32:33]")
            for i in range(6): b(f"v_pk_add_f32 {vr(u0+2*i,2)}, {vr(u0+2*i,2)}, 1.0 op_sel_hi:[1,0]")
            for i in range(12): b(f"v_max_f32 v{u0+i}, v{u0+i}, v{TMP+i}")
            for i in range(6): b(f"v_pk_add_f32 {vr(u0+2*i,2)}, {vr(u0+2*i,2)}, {vr(TMP+12,2)}")
            for t in range(3):
                for i in range(2): b(f"v_cvt_pk_bf16_f32 v{FR+4*t+2*h+i}, v{u0+4*t+2*i}, v{u0+4*t+2*i+1}")
            n = OPT["epi_n"][T]
            a += inter(b, grp(st.take(n), 1), 2) if n else b
        if P: a(f"s_cmp_eq_u32 s36, 1\ns_cbranch_scc1 k_kvs{P}")
        for n, (kx, vy) in enumerate(PRODS):
            d = vr(DD + 4*n)
            a(f"v_mfma_f32_16x16x32_bf16 {d}, {vr(FR+4*kx)}, {vr(FR+4*vy)}, {'0' if P == 0 else d}")
        if P: a(f"k_kvs{P}:")
    a += stamp("kvv")
    a(f"""
    s_mul_i32 s28, s51, 1792
    s_add_u32 s37, s37, s28
    s_lshl_b32 s29, s52, 12
    s_add_u32 s28, s28, s29
    s_add_u32 s28, s28, {KVX}
    v_lshlrev_b32 v2, 2, v7
    v_add_u32 v3, s28, v2
    s_cmp_eq_u32 s51, 0
    s_cselect_b32 s28, 64, 8
    v_cmp_gt_u32 vcc, s28, v7
    v_mov_b32 v6, {OOB}
    """)
    for n in range(8): a(f"ds_write_b128 v{KVOF[n]}, {vr(DD+4*n)}")
    a("v_cndmask_b32 v6, v6, v2, vcc\ns_waitcnt lgkmcnt(0)\ns_barrier")
    for n in range(7): a(f"ds_read2st64_b32 {vr(72+2*n,2)}, v3 offset0:{n} offset1:{32+n}")
    for n in range(7):
        a(f"s_waitcnt lgkmcnt({6-n})\nv_add_f32 v{72+2*n}, v{72+2*n}, v{73+2*n}")
        a(f"buffer_atomic_add_f32 v{72+2*n}, v{6 if n == 6 else 2}, s[16:19], s37 offen offset:{256*n}")
    a += stamp("kvs")
    return a

def phase2(st):
    a = A()
    G = 8; GR = 88; AR = 140; NA = 4; SA = 208; XB = 228; RP = 148
    AV = [244, 245, 246, 247]; RW = [248, 249, 250]; XA = [251, 252, 253]
    GA = 168; DB = 208; KA = 236; OA = 0; UA = 237; FW = 238
    g1 = OPT["gap1"]; psched = OPT["psched"]; wtr = OPT["wtrail"]; F1A = 239; OB = 235
    s1 = L(f"""
    s_cmp_eq_u32 s20, 0
    s_cselect_b32 s55, 0, {OOB}
    s_cselect_b64 s[56:57], -1, 0
    s_and_b32 s21, s2, 3
    s_lshl_b32 s21, s21, 2
    s_bfe_u32 s28, s2, 0x20003
    s_add_u32 s21, s21, s28              ; hp
    s_and_b32 s23, s2, 4
    s_lshl_b32 s23, s23, 1
    s_lshr_b32 s28, s2, 5
    s_add_u32 s23, s23, s28              ; rg
    s_and_b32 s28, s24, 30
    s_mul_i32 s35, s28, 21846
    s_lshr_b32 s35, s35, 16
    s_add_u32 s35, s35, 144              ; W1 lines of the first row block: (12+i)*12 + rb, lanes 0..10
    s_add_u32 s28, s28, 1
    s_mul_i32 s28, s28, 21846
    s_lshr_b32 s28, s28, 16
    s_add_u32 s28, s28, 12               ; second row block, lanes 11..21
    s_lshr_b32 s29, s21, 1
    s_mul_i32 s29, s29, 12
    s_sub_u32 s29, s29, 22               ; KV lines: kvct*12 + (i-22), lanes 22..32
    s_lshl_b32 s30, s23, 1
    s_mul_i32 s31, s30, 21846
    s_lshr_b32 s31, s31, 16
    s_add_u32 s30, s30, 1
    s_mul_i32 s30, s30, 21846
    s_lshr_b32 s30, s30, 16
    s_lshr_b32 s34, s21, 2
    s_mul_i32 s34, s34, 12
    s_add_u32 s34, s34, 96
    s_add_u32 s31, s31, s34              ; Q line, first row block (lane 22)
    s_add_u32 s30, s30, s34              ; Q line, second row block (lanes 23..)
    v_min_u32 v1, 21, v7
    v_mad_u32_u24 v2, v1, 12, s35
    v_mad_u32_u24 v3, v1, 12, s28
    v_cmp_le_u32 vcc, 11, v7
    v_cndmask_b32 v2, v2, v3, vcc
    v_lshlrev_b32 v3, 7, v2
    v_add_u32 v{F1A}, {FP + FPD}, v3
    v_add_u32 v3, s29, v7
    v_cmp_le_u32 vcc, 22, v7
    v_cndmask_b32 v2, v2, v3, vcc
    v_mov_b32 v3, s31
    v_cmp_le_u32 vcc, 33, v7
    v_cndmask_b32 v2, v2, v3, vcc
    v_mov_b32 v3, s30
    v_cmp_le_u32 vcc, 34, v7
    v_cndmask_b32 v2, v2, v3, vcc
    v_lshlrev_b32 v2, 7, v2
    v_add_u32 v{FW}, {FP}, v2
    s_mul_i32 s54, s21, 5
    s_lshr_b32 s54, s54, 2               ; ksA
    s_lshl_b32 s60, s21, 12
    s_add_u32 s60, s60, {KVP}
    v_lshlrev_b32 v3, 4, v0
    v_cmp_gt_u32 vcc, 210, v0
    v_mov_b32 v6, {OOB}
    v_cndmask_b32 v{KA}, v6, v3, vcc
    s_lshl_b32 s76, s23, 1
    s_add_u32 s76, s76, s51
    """) + blk(63, 76, "q", 28, 29) + L(f"""
    s_xor_b32 s63, s63, s3
    s_lshl_b32 s30, s52, 11
    s_add_u32 s63, s63, s30
    s_add_u32 s62, s54, 1
    """) + cell(61, 54, 28) + cell(62, 62, 28) + L(f"""
    s_add_u32 s61, s61, s63
    s_add_u32 s62, s62, s63
    s_add_u32 s63, s63, {QSZ}
    """)
    s2 = A()
    s2(f"""
    v_and_b32 v1, 15, v7                 ; i / m
    v_lshrrev_b32 v2, 4, v7              ; g
    v_lshrrev_b32 v3, 2, v1
    v_and_b32 v212, 3, v1
    v_lshl_add_u32 v6, v3, 3, v212
    v_cmp_le_u32 vcc, 20, v6
    v_cndmask_b32 v216, 0, 5, vcc
    v_lshlrev_b32 v220, 2, v216
    v_sub_u32 v220, v6, v220
    v_add_u32 v6, 4, v6
    v_cmp_le_u32 vcc, 20, v6
    v_cndmask_b32 v217, 0, 5, vcc
    v_lshlrev_b32 v221, 2, v217
    v_sub_u32 v221, v6, v221
    v_cmp_gt_u32 vcc, 8, v1
    v_cndmask_b32 v218, 64, 5, vcc
    v_add_u32 v222, 12, v1
    v_add_u32 v6, v3, v212
    v_cmp_le_u32 vcc, 3, v6
    v_cmp_le_u32 s[34:35], 2, v212
    s_or_b64 vcc, vcc, s[34:35]
    v_cndmask_b32 v219, 0, 5, vcc
    v_mov_b32 v223, 20
    v_mov_b32 v213, 255
    s_mov_b32 s37, {RED}
    """)
    for k in range(2):
        s2(f"""
        s_add_u32 s31, s54, {k}
        s_mul_i32 s32, s31, 205
        s_lshr_b32 s32, s32, 10
        s_mul_i32 s32, s32, 5
        s_sub_u32 s32, s31, s32
        s_cmp_eq_u32 s32, 2
        s_cselect_b32 s33, 1, 0
        s_cselect_b32 s36, 1, 4
        s_lshl_b32 s31, s31, 3
        s_mul_i32 s32, s21, 10
        s_sub_u32 s31, s31, s32
        v_lshlrev_b32 v3, s33, v2
        v_add_u32 v3, s31, v3
        """)
        for j in range(2):
            if j: s2("v_add_u32 v3, s36, v3")
            for tl in range(4):
                s2(f"""
                v_sub_u32 v212, v3, v{216+tl}
                v_cmp_gt_u32 vcc, 5, v212
                v_mad_u32_u24 v212, v3, 21, v{220+tl}
                v_cndmask_b32 v212, v213, v212, vcc
                v_lshl_add_u32 v{GA+tl*4+k*2+j}, v212, 3, s37
                """)
    ol = L(f"buffer_load_dwordx4 v[208:211], v{KA}, s[16:19], s60 offen sc1 ;#P")
    ql = L(f"""
    buffer_load_dwordx4 a[240:243], v4, s[16:19], s61 offen sc1 ;#Q
    buffer_load_dwordx4 a[244:247], v4, s[16:19], s62 offen sc1 ;#Q
    buffer_load_dwordx4 a[248:251], v4, s[16:19], s61 offen offset:1024 sc1 ;#Q
    buffer_load_dwordx4 a[252:255], v4, s[16:19], s62 offen offset:1024 sc1 ;#Q
    """)
    s3 = A()
    s3(f"""
    s_and_b32 s64, s23, 3
    s_lshl_b32 s64, s64, 11
    s_and_b32 s28, s23, 4
    s_lshl_b32 s28, s28, 12
    s_add_u32 s64, s64, s28
    s_and_b32 s28, s23, 8
    s_lshl_b32 s28, s28, 10
    s_xor_b32 s28, s28, s3
    s_add_u32 s64, s64, s28
    s_lshl_b32 s28, s21, 7
    s_add_u32 s64, s64, s28
    s_add_u32 s64, s64, {FO}
    s_add_u32 s64, s64, s55
    s_mul_i32 s28, s21, 5
    v_add_u32 v3, s28, v2
    v_lshrrev_b32 v6, 3, v3
    v_lshlrev_b32 v6, 14, v6
    v_bfe_u32 v212, v3, 2, 1
    v_lshl_add_u32 v6, v212, {13 if OPT["mode"] in ("cols", "none") else 12}, v6
    v_and_b32 v3, 3, v3
    v_lshl_add_u32 v6, v3, 8, v6
    v_lshl_add_u32 v{OB}, v1, 4, v6
    s_add_u32 s28, s28, 4
    s_lshr_b32 s30, s28, 2
    """)
    s3 += cell(30, 30, 29)
    s3(f"""
    s_and_b32 s28, s28, 3
    s_lshl_b32 s28, s28, 8
    s_add_u32 s28, s28, s30
    v_lshl_add_u32 v3, v1, 4, s28
    v_lshl_add_u32 v3, v2, 3, v3
    v_cmp_gt_u32 vcc, 2, v2
    v_mov_b32 v6, {OOB}
    v_lshl_add_u32 v{UA}, v0, 3, s37
    v_cndmask_b32 v{OA}, v6, v3, vcc
    """)
    sA = A()
    sA += blk(40, 24, "h", 28, 29) + cell(30, 47, 29) + L(f"""
    s_xor_b32 s40, s40, s3
    s_add_u32 s44, s40, s30              ; own rows
    s_bitcmp1_b32 s24, 0
    s_cselect_b32 s28, {-HSZ & 0xffffffff}, {HSZ}
    s_add_u32 s45, s44, s28              ; partner rows (other block of the same page)
    """)
    for T in range(4):
        sA(f"s_add_u32 s28, s20, {T}\ns_and_b32 s28, s28, 3\ns_lshl_b32 s28, s28, 10\nv_add_u32 v{AV[T]}, s28, v4")
    osum = W("P") + L(f"v_cvt_pk_bf16_f32 v208, v208, v209\nv_cvt_pk_bf16_f32 v209, v210, v211\nds_write_b64 v{UA}, v[208:209]")
    ogat = [f"  ds_read_b64 {ar(204+2*n,2)}, v{GA+n}" for n in range(16)]
    om = []
    for k in range(2):
        for T in range(2):
            for tl in (3, 0, 1, 2):
                d = vr(DB + 16*T + 4*tl)
                om.append(f"  v_mfma_f32_16x16x32_bf16 {d}, {ar(204+tl*8+k*4)}, {ar(240+T*8+k*4)}, {'0' if k == 0 else d}")
    ofin = []
    for T in range(2):
        o = A(); b = DB + 16*T; z = b + 12; pk = GA + 6*T
        for r in range(3): o(f"v_add_f32 v{z+r}, 0x358637bd, v{z+r}")
        for r in range(3): o(f"v_rcp_f32 v{z+r}, v{z+r}")
        for tl in range(3):
            for r in range(4): o(f"v_mul_f32 v{b+4*tl+r}, v{b+4*tl+r}, v{z+tl}")
        for i in range(6): o(f"v_cvt_pk_bf16_f32 v{pk+i}, v{b+2*i}, v{b+2*i+1}")
        o(f"buffer_store_dwordx4 {vr(pk)}, v2, s[16:19], s63 offen offset:{1024*T} sc1 ;#OS")
        o(f"buffer_store_dwordx2 {vr(pk+4,2)}, v{OA}, s[16:19], s63 offen offset:{1024*T} sc1 ;#OS")
        ofin.append(list(o))
    fs = A()
    fs(f"""
    s_lshl_b32 s42, s24, 2
    s_add_u32 s42, s42, s20
    s_lshr_b32 s30, s24, 1
    s_and_b32 s28, s30, 3
    s_lshl_b32 s28, s28, 11
    s_and_b32 s29, s30, 4
    s_lshl_b32 s29, s29, 12
    s_add_u32 s28, s28, s29
    s_and_b32 s29, s30, 8
    s_lshl_b32 s29, s29, 10
    s_xor_b32 s29, s29, s3
    s_add_u32 s28, s28, s29
    s_add_u32 s28, s28, {FO}
    v_min_u32 v6, 15, v7
    v_lshl_add_u32 v{VF-1}, v6, 7, s28
    s_mul_i32 s48, s42, {16*1280}
    s_mul_i32 s28, s25, 160
    s_add_u32 s48, s48, s28
    """)
    fs += blk(42, 24, "o", 28, 29)
    fs(f"""
    s_xor_b32 s42, s42, s3
    s_lshl_b32 s28, s20, 10
    s_add_u32 s42, s42, s28
    s_mul_i32 s49, s20, 15360
    s_add_u32 s49, s49, {RED}
    v_mul_u32_u24 v243, 176, v1
    v_lshl_add_u32 v243, v2, 3, v243
    v_add_u32 v243, s49, v243            ; result write: row stride 176
    """)
    for i in range(3):
        fs(f"""
        v_add_u32 v6, {64*i}, v7
        v_mul_u32_u24 v1, 6554, v6
        v_lshrrev_b32 v1, 16, v1
        v_mul_u32_u24 v3, 1120, v1
        v_lshl_add_u32 v3, v6, 4, v3
        v_cmp_gt_u32 vcc, 160, v6
        v_add_u32 v1, v1, v6
        v_mov_b32 v6, {OOB}
        v_lshl_add_u32 v{240+i}, v1, 4, s49
        v_cndmask_b32 v{XA[i]}, v6, v3, vcc
        """)
    for T in range(1, 4):
        fs(f"s_add_u32 s28, s20, {T}\ns_and_b32 s28, s28, 3\ns_mul_i32 s28, s28, 15360\ns_add_u32 s28, s28, {RED + (T-1)*5120}\nv_add_u32 v{RW[T-1]}, s28, v4")
    fs(f"""
    v_add_u32 v1, s49, v4
    v_mov_b32 v2, v{OB}
    s_and_b32 s28, s24, 15
    s_lshl_b32 s28, s28, 3
    s_add_u32 s28, s28, s25
    s_lshl_b32 s28, s28, 2
    s_add_u32 s28, s28, s20
    """)
    fs += cell(65, 28, 29)
    fs(f"""
    s_add_u32 s65, s65, {GXP*PG}
    s_lshr_b32 s28, s65, 21
    s_lshr_b32 s29, s24, 4
    s_xor_b32 s28, s28, s29
    s_and_b32 s28, s28, 1
    s_lshl_b32 s28, s28, 13
    s_xor_b32 s28, s28, s3
    s_add_u32 s65, s65, s28
    s_xor_b32 s66, s65, {16*16384}
    s_add_u32 s72, s66, 3072
    s_add_u32 s73, s65, 3072
    """)
    MG = OPT["mg"]
    SL = OPT["slots"]; RL = max(i for i, x in enumerate(SL) if x[0] == "r")
    def areg(s): return 204 if s == 13 else AR + (s % NA)*16
    def ldA(s):
        r_, j = SL[s]
        r = [f"  s_add_u32 s41, s{45 if r_ == 'r' else 44}, {65536*j}"]
        if j == 6: r += L(f"s_cmp_lt_u32 s20, 3\ns_cselect_b32 s41, s41, {OOB}")
        return r + [f"  buffer_load_dwordx4 {ar(areg(s)+4*T)}, v{AV[T]}, s[16:19], s41 offen sc1 ;#A{s}{'abcd'[T]}" for T in ((1, 2, 3, 0) if s >= MG else range(4))]
    a("k_p2:\n;MARK ep")
    for i in range(7): a(f";MARK B{i}")
    for i in range(5): a(f";MARK wo{i}")
    a += stamp("eend")
    gs = grp(st.take(g1), 2)
    gs.insert(len(gs) - OPT["poll_early"], poll(F1A, VF, "p1", "s55"))
    allsu = glue(s1 + sA + s2 + s3 + fs); k1 = OPT["su1"]; k2 = OPT["su2"]
    assert k1 >= len(glue(s1 + sA))
    flat = lambda l: sum(l, [])
    p1at = next(i for i, x in enumerate(allsu) if f"v_add_u32 v{F1A}," in x[0]) + 1
    a += inter(flat(allsu[:k1]), gs, p1at if OPT["poll_early"] >= len(gs) - 2 else 0)
    a += W("ep") + L("s_barrier") + flag("s67", 224) + stamp("flag")
    a += W("p1") + L("s_mov_b64 s[58:59], vcc") + check("k_s1", F1A, VF, True) + L("s_mov_b64 vcc, s[58:59]") + stamp("c1")
    pre = grp(ldA(2), 1)
    if OPT["pp2"] < 0: pre.append(poll(FW, VF, "p2", "s55"))
    a += ldA(0) + ldA(1) + inter(flat(allsu[k1:k2]), pre)
    if min(OPT["xs"]) < OPT["c2"]:
        kx = max(i for i, x in enumerate(allsu) if f"v_cndmask_b32 v{XA[2]}," in x[0]); assert kx < k2, (kx, len(allsu))
    late = allsu[k2:]; nl = OPT["c2"]
    late = {i: flat(late[i*len(late)//nl:(i+1)*len(late)//nl]) for i in range(nl)}
    def ldO(i0, n):
        r = []
        for i in range(i0, i0 + n):
            if OPT["mode"] in ("cols", "none"):
                r += [f"  s_add_u32 s43, s42, {8192*i}", f"  buffer_load_dwordx4 {ar(4*i)}, v4, s[16:19], s43 offen sc1 ;#O{i}"]; continue
            if i % 2 == 0 or i == i0: r.append(f"  s_add_u32 s43, s42, {16384*(i//2)}")
            r.append(f"  buffer_load_dwordx4 {ar(4*i)}, v{4 + (i & 1)}, s[16:19], s43 offen sc1 ;#O{i}")
        return r
    ldX = [[f"  s_add_u32 m0, s49, {4096 + 1024*i}", "  s_nop 0", f"  buffer_load_dwordx4 v{XA[i]}, s[8:11], s48 offen lds ;#X"] for i in range(3)]
    rdX = L("v_add_u32 v2, 51200, v4\nv_and_b32 v3, 15, v7\nv_lshlrev_b32 v3, 4, v3\nv_sub_u32 v3, v243, v3") + W("X") + tag([f"  ds_read_b64 {vr(XB+2*t,2)}, v3 offset:{4096+32*t}" for t in range(5)], "xr")
    NB = 3
    def sb(s, t): return vr(GR + 20*(s % NB) + 4*t)
    def rdB(s): return tag([f"  ds_read_b128 {sb(s,t)}, v{4 if s < 10 else 2} offset:{(s%10)*5120+1024*t}" for t in range(5)], f"b{s}")
    wr_ = tag([f"  ds_write_b128 v{RW[T-1]}, {vr(G+(T*5+t)*4)} offset:{1024*t}" for T in range(1, 4) for t in range(5)], "w")
    rd_ = tag([f"  ds_read_b128 {vr(G+20+4*j)}, v1 offset:{1024*j}" for j in range(15)], "r")
    xw = tag([f"  ds_write_b128 v{RW[T-1]}, {vr(GR+(T*5+t)*4)} offset:{1024*t}" for T in range(1, 4) for t in range(5)], "xw")
    xr = tag([f"  ds_read_b128 {vr(GR+20+20*j+4*t)}, v1 offset:{5120*j+1024*t}" for t in range(5) for j in range(3)], "xr")
    xa = []
    for t in range(5):
        xa += [f"  v_add_f32 v{GR+4*t+i}, v{GR+4*t+i}, v{GR+20+20*j+4*t+i}" for j in range(3) for i in range(4)]
        xa += [f"  v_cvt_pk_bf16_f32 v{GA+2*t+i}, v{GR+4*t+2*i}, v{GR+4*t+2*i+1}" for i in range(2)]
        if t in (1, 3): xa.append(f"  buffer_store_dwordx4 {vr(GA+2*t-2)}, v4, s[16:19], s66 offen offset:{512*(t-1)} sc1 ;#XS")
    xa += L(f"v_lshlrev_b32 v0, 3, v7\nbuffer_store_dwordx2 {vr(GA+8,2)}, v0, s[16:19], s66 offen offset:2048 sc1 ;#XS")
    xl = [f"  buffer_load_dwordx4 {vr(GA+4*t)}, v4, s[16:19], s65 offen offset:{1024*t} sc1 ;#XL" for t in range(2)] + [f"  buffer_load_dwordx2 {vr(GA+8,2)}, v0, s[16:19], s65 offen offset:2048 sc1 ;#XL"]
    XF, XP, XC = OPT["xf"], OPT["xp"], OPT["xc"]
    xpoll = L(f"v_mov_b32 v{VF-1}, s73") + poll(VF-1, VF, "xp")
    C2 = OPT["c2"]; plan = OPT["aplan"]; OFS = OPT["ofs"]; PO = OPT["po"]; PC = OPT["pc"]; osched = OPT["osched"]
    no = 0
    XU = 184
    xu = []
    for i in range(10): xu += [f"  v_lshlrev_b32 v{XU+2*i}, 16, v{XB+i}", f"  v_and_b32 v{XU+2*i+1}, 0xffff0000, v{XB+i}"]
    def wdone(g): return ("W", 5*g + 4) not in st.items
    def mf(s, T, rev):
        r_, j = SL[s]; GG = GR if r_ == "r" else G; first = all(x[0] != r_ for x in SL[:s])
        return [f"  v_mfma_f32_16x16x32_bf16 {vr(GG+(T*5+t)*4)}, {breg(j,t)}, {ar(areg(s)+4*T)}, {'0' if first else vr(GG+(T*5+t)*4)}" for t in (range(4, -1, -1) if rev else range(5))]
    nm = 14 - MG; WB = OPT["wb"]
    for s in range(MG + 4):
        if s < MG:
            need = [f"A{s}{c}" for c in "abcd"] + [f"B{SL[s][1]}"]; assert ("B", 5*SL[s][1] + 4) not in st.items
            M = sum((mf(s, T, k & 1) for k, T in enumerate((1, 2, 3, 0) if s == RL else range(4))), [])
        else:
            T = (1, 2, 3, 0)[s - MG]
            need = [f"A{x}{'abcd'[T]}" for x in range(MG, 14)]
            M = sum((mf(x, T, False) for x in range(MG, 14)), [])
        if s == XF: need.append("XS")
        vm = need + (["op"] if s == PC else []) + ([f"wo{g}" for g in range(5) if g not in wtr] if s == WB else []) + (["OS"] if s == OFS else []) + (["p2"] if s == C2 else [])
        if s == WB: assert all(wdone(g) for g in range(5) if g not in wtr)
        OQ = OPT["oq"]; OM = C2 + (1 if OQ else 2)
        a += W(vm, "*" if (s in (RL, RL if OPT["xw"] else RL + 2) or (s == C2 + 2 and not OQ)) else ())
        a += stamp(f"g{s}")
        if s == C2: a += check("k_sw", FW, VF, True) + stamp("w1")
        if s == PC: a += check("k_so", VF-1, VF, True) + stamp("op")
        if s != PC and s in (OFS, -1 if OQ else C2 + 2, WB, RL, MG + 1): a("s_barrier")
        ls = []; n = len(M)
        for x in plan.get(s, []): assert (SL[x][1] < 2 or s >= C2) and (x - s <= 3 or (x == 13 and s > C2 + 3))
        v = sum((ldA(x) for x in plan.get(s, [])), [])
        if s == C2: v = ol + ql + v
        if s == OFS: v = flag("s64") + v
        if s == XF: v = flag("s72") + v
        if s == XP: assert s > PC; v = xpoll + v
        if s == PO: v = poll(VF-1, VF, "op", "s55") + v
        if s == OPT["pp2"]: v = poll(FW, VF, "p2", "s55") + v
        if late.get(s): ls.append((late[s], 0, n - 1))
        if s in OPT["xs"]: v += sum([ldX[i] for i, x in enumerate(OPT["xs"]) if x == s], [])
        if psched.get(s): v += st.take(psched[s])
        if osched.get(s): v += ldO(no, osched[s]); no += osched[s]
        ls.append((v, 0, n - 2))
        if OQ:
            if s == C2 + 1: ls += [(osum, OQ, OQ + 1), (L("s_waitcnt lgkmcnt(0)\ns_barrier"), OQ + 4, OQ + 4), (ogat, OQ + 5, min(OQ + 10, 19))]
        else:
            if s == C2 + 1: ls.append((osum, 16, 19))
            if s == C2 + 2: ls.insert(0, (ogat, 0, 10))
        if s == OM + 1: ls.append((ofin[0] + ofin[1], 1, 19))
        if s == OPT["xr"]: assert s < RL and s != OFS and s > OM + 1; ls.insert(0, (rdX, 0, 8))
        if OPT["xw"] == 0:
            if s == RL: ls += [(xw[:5], 10, 14), (xw[5:10], 15, 19)]
            if s == RL + 1: ls += [(xw[10:], 0, 5), (L("s_waitcnt lgkmcnt(0)\ns_barrier"), 9, 9), (xr, 10, 19)]
            if s == RL + 2: ls.append((xa[:OPT["xcut"]], 0, n - 1))
            if s == RL + 3: ls.append((xa[OPT["xcut"]:], 0, n - 1))
        else:
            if s == RL: ls.append((xw[:4], 9, 19))
            if s == RL + 1: ls.append((xw[4:11], 0, 19))
            if s == RL + 2: ls += [(xw[11:], 0, 9), (L("s_waitcnt lgkmcnt(0)\ns_barrier"), 12, 12), (xr, 13, 19)]
            if s == RL + 3:
                a += L("s_waitcnt lgkmcnt(0)") + [";@align on"] + [f"  v_pk_add_f32 {vr(GR+2*i,2)}, {vr(GR+2*i,2)}, {vr(GR+20+20*j+2*i,2)}" for j in range(3) for i in range(10)] + [";@align off"]
                ls.append(([x for x in xa if "v_add_f32" not in x], 0, n - 1))
        if s > MG: ls.append((wr_[5*(s-MG-1):5*(s-MG)], 2, n - 1))
        if s == MG + 2: ls.append((xu, 0, n - 1))
        if s == MG + 3: ls.append((rdB(0) + rdB(1), 0, n - 2))
        a += place(M, ls)
        if s == OM: a += W("Q", "*") + stamp("om") + place(om, [(st.take(OPT["pom"]), 0, 15)])
    a += stamp("gend")
    E = G + 20
    VB = []
    for j in range(3):
        for i in range(10): VB.append(f"  v_pk_add_f32 {vr(G+2*i,2)}, {vr(G+2*i,2)}, {vr(G+20+20*j+2*i,2)}")
    VC = []
    for i in range(10): VC += [f"  v_lshlrev_b32 v{RP+2*i}, 16, v{GA+i}", f"  v_and_b32 v{RP+2*i+1}, 0xffff0000, v{GA+i}"]
    VC += [f"  v_pk_add_f32 {vr(G+2*i,2)}, {vr(G+2*i,2)}, {vr(RP+2*i,2)}" for i in range(10)]
    VC += [f"  v_pk_mul_f32 {vr(E+2*i,2)}, {vr(G+2*i,2)}, s[30:31]" for i in range(10)]
    VA = [f"  v_add_f32 v{G+i}, v{G+i}, v{G+20+20*j+i}" for j in range(3) for i in range(20)]
    V = []
    V += [f"  v_exp_f32 v{E+i}, v{E+i}" for i in range(20)]
    V += [f"  v_add_f32 v{E+i}, 1.0, v{E+i}" for i in range(20)]
    V += [f"  v_rcp_f32 v{E+i}, v{E+i}" for i in range(20)]
    V += [f"  v_mul_f32 v{G+i}, v{G+i}, v{E+i}" for i in range(20)]
    V0 = OPT["v0"]; RB = OPT["rb"]; LK = NB - 1; P0 = MG + 4
    V1 = OPT["v1"]; pa = -(-60//(V1 - V0))
    cost = [8 if ("exp" in x or "rcp" in x) else 4 for x in V]; tot = sum(cost); parts = [[] for _ in range(20 - V1)]; c_ = 0
    for x, c in zip(V, cost): parts[min(len(parts) - 1, c_*len(parts)//tot)].append(x); c_ += c
    for s in range(20):
        wg = [g for g, st_ in wtr.items() if st_ == s]
        for g in wg: assert s + LK <= 4*g and wdone(g)
        a += W([f"O{s}"] + [f"wo{g}" for g in wg] + (["XS"] if P0 + s == XF else []) + (["xp"] if P0 + s == XC else []) + (["XL"] if s == V1 else []), [f"b{s}"] + (["w"] if s == RB else []) + (["r"] if s == V0 else []))
        if s == RB or wg: a("s_barrier")
        a += stamp(f"s{s}")
        if P0 + s == XC: a += check("k_sx", VF-1, VF) + stamp("xc")
        if s == V1: a += [";@align on"] + VC + [";@align off"]
        M = [f"  v_mfma_f32_16x16x32_bf16 {vr(SA+4*t)}, {sb(s,t)}, {ar(4*s)}, {'0' if s == 0 else vr(SA+4*t)}" for t in range(5)]
        ls = []
        if s + LK < 20: ls.append((rdB(s+LK), 0, 4))
        v = []
        if P0 + s == XF: v += flag("s72")
        if P0 + s == XP: v += xpoll
        if P0 + s == XC: v += xl
        if psched.get(P0 + s): v += st.take(psched[P0 + s])
        if osched.get(P0 + s): v += ldO(no, osched[P0 + s]); no += osched[P0 + s]
        ls.append((v, 0, 4))
        if s == 0: ls.append((L(f"s_mov_b32 s30, {LOG2E|0x80000000}\ns_mov_b32 s31, {LOG2E|0x80000000}"), 0, 4))
        if RB <= s < RB + 3: ls.append((rd_[5*(s-RB):5*(s-RB)+5], 0, 4))
        if V0 <= s < V1: ls.append((VA[(s-V0)*pa:(s-V0+1)*pa], 0, 4))
        if s >= V1: ls.append((parts[s-V1], 0, 4))
        a += place(M, ls)
    assert no == 20 and not st.items, (no, st.items)
    a += stamp("send")
    for t in range(5):
        for i in range(2): a(f"v_pk_fma_f32 {vr(SA+4*t+2*i,2)}, {vr(SA+4*t+2*i,2)}, {vr(G+4*t+2*i,2)}, {vr(XU+4*t+2*i,2)}")
        for i in range(2): a(f"v_cvt_pk_bf16_f32 v{XB+2*t+i}, v{SA+4*t+2*i}, v{SA+4*t+2*i+1}")
        a(f"ds_write_b64 v243, {vr(XB+2*t,2)} offset:{32*t}")
    a(";@align off\ns_waitcnt lgkmcnt(0)")
    for i in range(3): a(f"ds_read_b128 {vr(E+4*i)}, v{240+i}")
    for i in range(3): a(f"s_waitcnt lgkmcnt({2-i})\nbuffer_store_dwordx4 {vr(E+4*i)}, v{XA[i]}, s[4:7], s48 offen")
    a += stamp_out()
    return resolve(a)

def build():
    OUTL.clear()
    pro = prologue()
    br = L("s_cmp_lt_u32 s22, 8\ns_cbranch_scc1 k_kv")
    if OPT["pol"] == "race":
        br += L("s_cmp_eq_u32 s21, 11\ns_cbranch_scc1 k_race")
        OUTL("k_race:")
        if OPT["touch"]: OUTL.extend(d_touch())
        OUTL("s_mov_b64 s[36:37], s[74:75]")
        OUTL.extend(d_misc())
        OUTL("s_waitcnt vmcnt(0)\ns_barrier")
        OUTL.extend(flag("s49"))
        OUTL(f"""
        s_cmp_lg_u32 s20, 0
        s_cbranch_scc1 k_race2
        s_cmp_eq_u32 s2, 255
        s_cbranch_scc1 k_race2
        s_bfe_u32 s29, s2, 0x10003           ; 239 -> 1, 247 -> 0
        s_lshl_b32 s28, s29, 13
        s_add_u32 s28, s28, {RACE}
        v_lshlrev_b32 v6, 25, v7
        s_mov_b32 s56, s36
        s_and_b32 s57, s37, 0xffff
        s_mov_b32 s58, 256
        s_mov_b32 s59, 0x20000
        v_mov_b32 v3, 0
        buffer_atomic_add v3, v6, s[16:19], s28 offen sc0
        v_mov_b32 v1, 1
        s_mov_b32 s30, 12
        s_mov_b32 s31, 1
        s_waitcnt vmcnt(0)
        k_race0:
        buffer_atomic_add v1, v6, s[56:59], 0 offen offset:4 sc0
        s_sub_u32 s30, s30, 1
        s_waitcnt vmcnt(0)
        v_readfirstlane_b32 s38, v1
        v_mov_b32 v1, 0
        s_and_b32 s38, s38, 1
        s_cmp_eq_u32 s38, s31                ; first trip: odd = partner is there; later trips: even
        s_cselect_b32 s30, 0, s30
        s_mov_b32 s31, 0
        s_cmp_lg_u32 s30, 0
        s_cbranch_scc1 k_race0
        s_mov_b32 s30, {OPT['trips']}
        k_race1:
        v_mov_b32 v3, 0
        buffer_atomic_add v3, v6, s[16:19], s28 offen sc0
        s_sub_u32 s30, s30, 1
        s_cmp_lg_u32 s30, 0
        s_waitcnt vmcnt(0)
        s_cbranch_scc1 k_race1
        v_mov_b32 v3, 1
        buffer_atomic_add v3, v6, s[56:59], 0 offen sc0
        s_xor_b32 s29, s29, 1
        s_lshl_b32 s29, s29, 13
        s_xor_b32 s29, s29, s39
        s_waitcnt vmcnt(0)
        v_readfirstlane_b32 s30, v3
        v_mov_b32 v3, s29
        s_nop 0
        s_bitcmp0_b32 s30, 0
        s_cselect_b32 s28, {PW}, {OOB}
        buffer_store_dword v3, v6, s[16:19], s28 offen sc1
        k_race2:
        """)
        OUTL.extend((d_cs() if OPT["keep"] < 1 else []) + [f"  s_mov_b32 s{r}, {OOB}" for r in (61, 62, 63, 75, 80, 81, 82, 83)] + [f"  v_add_u32 v{L2B+i}, {2*STAGE}, v{LA+i}" for i in range(5)] + L("s_branch k_t_join"))
    items = [("B", i) for i in range(35)] + [("W", i) for i in range(25)]
    st_t = Stream(items); st_n = Stream(items)
    mt = g1_main("k_t", True, st_t)
    mt += L("s_waitcnt lgkmcnt(0)\ns_cmp_lt_u32 s22, 12\ns_cbranch_scc1 k_q")
    eq = epi_t("phi", Stream(st_t.items)); es = epi_t("silu", st_t)
    mn = g1_main("k_n", False, st_n)
    ek = epi_kv(st_n)
    assert st_n.items == st_t.items
    n0 = len(resolve(pro + br))
    a = resolve(pro + br + mt) + es + phase2(st_t) + L("s_endpgm\nk_q:") + eq + L("s_branch k_p2\nk_kv:") + resolve(pro + br + mn + ek)[n0:] + L("s_branch k_p2")
    a += L("k_end:\ns_endpgm") + OUTL
    body, added = haz.fix(a)
    body, nbytes, nn, npm = align.align([x.replace("CODE_KB", "40").replace("CODE_MAX", "44444") for x in body])
    kb = (nbytes + 1023)//1024; assert kb <= 64
    body = [x.replace("s_cmp_ge_u32 s28, 40", f"s_cmp_ge_u32 s28, {kb if OPT.get('cpf', 1) else 0}").replace("44444", str((nbytes - 16) & ~15)) for x in body]
    body = [re.sub(r"\s*;(#\S+|nocount|C)$", "", x) for x in body]
    print("instrs", len(body), "nops added", added, "bytes", nbytes, "align nops", nn, "promoted", npm, file=sys.stderr)
    if OPT.get("nost"): body = [x for x in body if not ("buffer_store_dwordx4" in x and "s[76:79]" in x)]
    if OPT.get("cyc"): body = [x.replace("s_memrealtime", "s_memtime") for x in body]
    out = ["; @launch grid=(256,1,1) block=(256,1,1) lds=163840",
           '.amdgcn_target "amdgcn-amd-amdhsa--gfx950"\n.text', khead(NAME)] + body
    if DIAG: out.append(";ST " + " ".join(OPT["st"][:4]) + "\n;OPTS " + " ".join(x for x in sys.argv[3:] if not x.startswith("st=")))
    out.append('.section .rodata,"a"\n.p2align 6\n' + kd(NAME, 512, 256, 102))
    return "\n".join(out) + "\n"
if __name__ == "__main__":
    for x in sys.argv[2:]:
        if x == "d": DIAG = True
        else:
            k, v = x.split("=", 1); OPT[k] = eval(v)
    src = build()
    open(sys.argv[1], "w").write(src)
```

```python
import sys, re
from asmlib import kd, khead
import haz, align

NAME = "recurrent_scan__linear_attn_block__dense_activation_silu__prompt_kernel"
S, D, F = 2048, 640, 1728
FA = 0x8000
FP = 0xF0000
FPD = 0x9000 - 144*128
FO = 0x38000
NEGM = 0x10000; RSTD = 0x12000
CSP = 0x14000
KVP   = 0x40000
PG = 1 << 21
PW = 0xC8000
RACE = 0xC0000
WPP = 1
HOF = 74*16384; HSZ = 27*16384
QPP = 9; QSZ = 10*16384
GXP = 13
WS_USED = 15*PG
TS = 0x1F00000
def blk(dst, rb, kind, t0, t1):
    sh, pg, msk, sz, of = (1, WPP, 1, HSZ, HOF) if kind == "h" else (2, QPP, 3, 2*QSZ, QSZ if kind == "o" else 0)
    return L(f"""
    s_and_b32 s{t0}, s{rb}, 15
    s_lshr_b32 s{t0}, s{t0}, {sh}
    s_add_u32 s{t0}, s{t0}, {pg}
    s_lshr_b32 s{t1}, s{rb}, 4
    s_xor_b32 s{t1}, s{t1}, s{t0}
    s_and_b32 s{t1}, s{t1}, 1
    s_lshl_b32 s{t1}, s{t1}, {12 if OPT["mode"] in ("cols", "none") else 13}
    s_lshl_b32 s{t0}, s{t0}, 21
    s_add_u32 s{t0}, s{t0}, s{t1}
    s_and_b32 s{t1}, s{rb}, {msk}
    s_mul_i32 s{t1}, s{t1}, {sz}
    s_add_u32 s{t0}, s{t0}, s{t1}
    s_add_u32 s{dst}, s{t0}, {of}
    """)
def cell(dst, idx, t0):
    return L(f"s_lshr_b32 s{t0}, s{idx}, 1\ns_lshl_b32 s{t0}, s{t0}, 14\ns_and_b32 s{dst}, s{idx}, 1\ns_lshl_b32 s{dst}, s{dst}, {13 if OPT['mode'] in ('cols', 'none') else 12}\ns_add_u32 s{dst}, s{dst}, s{t0}")
LOG2E = 0x3fb8aa3b
OOB = 0x40000000
STAGE = 45056; WOFF = 24576; SPARE = 3*STAGE
AUXC = SPARE; AUXM = SPARE + 6400
CSL = SPARE + 8192
PACKL = SPARE
KVX = SPARE + 10240
RED = 102400
DIAG = False
OPT = dict(spin=200000, pkd=1, pkr=3, pks={4: 3, 5: 2}, flagb=3, flagb_n=2, pollb=6,
           pf_t={15:5,16:5,17:5,18:5,19:7}, pf_n={15:4,16:4,17:4,18:5,19:5}, epi_n=[6, 5, 5, 5, 5, 0], kv_first=0,
           epi=[5, 3, 3, 3, 2, 3, 2], oq=9, f1blk=4, f1pos=2, gap1=4, poll_early=1, c2=2, pom=0,
           slots=[("r",0),("r",1),("o",0),("o",1),("r",2),("r",3),("r",4),("r",5),("r",6),("o",2),("o",3),("o",4),("o",5),("o",6)],
           aplan={0:[3],2:[4],3:[5,6],4:[7],5:[8],6:[9],7:[10],8:[11,13],9:[12]},
           mg=11, wb=14, xr=6, rb=1, burst=1, su1=95, su2=200, pe1=200, pp2=0,
           psched={0:2,1:2,10:4}, xs=[1, 1, 1], ofs=7, po=9, pc=12, xcut=44, xf=14, xp=18, xc=22, v1=12,
           osched={12:4,13:4,14:4,15:2,16:2,17:2,19:2}, xw=1, nbuf=3, v0=5, nopk=1, adist=3, p2map=1, su_pre=200, su_pre_n=160, sleep=2, rot=0, snake=1, krot=0, fash=4, wtrail={}, wrow=1, wfirst=0, sufirst=0, keep=2, swarm=0, touch=1, slin=1, head=5, w1first=0, cmaj=0, pol="race", mode="rows", trips=8, cpf2=12,
           st=["eend", "w1", "g11", "op", "gend", "s5", "send"])

class A(list):
    def __call__(self, s):
        for x in s.strip("\n").split("\n"):
            x = x.strip()
            m = re.match(r"s_cselect_b32 (s\d+), (\d+|0x[0-9a-f]+), (\d+|0x[0-9a-f]+)\s*(;.*)?$", x)
            if m and int(m.group(2), 0) > 64 and int(m.group(3), 0) > 64:
                self.append(f"  s_mov_b32 {m.group(1)}, {m.group(3)}")
                x = f"s_cselect_b32 {m.group(1)}, {m.group(2)}, {m.group(1)}"
            if x: self.append(("" if x.endswith(":") else "  ") + x)
        return self
def L(s): return list(A()(s))
def stamp(name):
    if not DIAG: return []
    if name == "entry": i = 0
    elif name in OPT["st"][:7]: i = 1 + OPT["st"].index(name)
    else: return []
    return [f"  s_memrealtime s[{84+2*i}:{85+2*i}]"]
def stamp_out():
    if not DIAG: return []
    if OPT.get("echo") is not None:
        i = OPT["echo"]
        return L(f"""
        s_waitcnt vmcnt(0)
        s_memrealtime s[100:101]
        s_waitcnt lgkmcnt(0)
        s_sub_u32 s28, s{84+2*i}, s84
        s_cmp_gt_u32 s28, 4000
        s_cselect_b32 s28, 0, s28
        s_add_u32 s28, s28, 5000
        k_echo:
        s_memrealtime s[30:31]
        s_waitcnt lgkmcnt(0)
        s_sub_u32 s29, s30, s84
        s_cmp_lt_u32 s29, s28
        s_cbranch_scc1 k_echo
        """)
    r = L(f"""
    s_waitcnt vmcnt(0)
    s_memrealtime s[100:101]
    s_waitcnt lgkmcnt(0)
    s_lshl_b32 s28, s2, 2
    s_add_u32 s28, s28, s20
    s_lshl_b32 s28, s28, 6
    s_add_u32 s28, s28, {TS}
    v_mov_b32 v1, s28
    """)
    for i in range(9): r += [f"  v_mov_b32 v3, s{84+2*i}", f"  global_store_dword v1, v3, s[26:27] offset:{4*i if i < 8 else 48}"]
    r += ["  v_mov_b32 v3, s22", "  global_store_dword v1, v3, s[26:27] offset:60"]
    r += ["  s_getreg_b32 s28, hwreg(HW_REG_XCC_ID)", "  s_and_b32 s28, s28, 15", "  v_mov_b32 v3, s28", "  global_store_dword v1, v3, s[26:27] offset:56"]
    return r
def vr(b, n=4): return f"v[{b}:{b+n-1}]" if n > 1 else f"v{b}"
def ar(b, n=4): return f"a[{b}:{b+n-1}]" if n > 1 else f"a{b}"
def srd(d, lo, nbytes):
    return L(f"s_mov_b32 s{d}, s{lo}\ns_and_b32 s{d+1}, s{lo+1}, 0xffff\ns_mov_b32 s{d+2}, {nbytes}\ns_mov_b32 s{d+3}, 0x20000")
def isvm(x): return x.strip().startswith(("buffer_", "global_"))
def islg(x): return x.strip().startswith("ds_")
def tag(lines, t): return [x + f" ;#{t}" if (isvm(x) or islg(x)) else x for x in lines]
def W(vm=(), lg=()):
    vm = [vm] if isinstance(vm, str) else list(vm); lg = [lg] if isinstance(lg, str) else list(lg)
    return [f"  ;WAIT vm={','.join(vm)} lg={','.join(lg)}"]
def resolve(lines):
    out = []; vm = []; lg = []
    for x in lines:
        t = x.strip()
        if t.startswith(";MARK"):
            nm = t.split()[1]; vm.append(("m", nm)); lg.append(("m", nm)); continue
        if t.startswith(";WAIT"):
            m = re.match(r";WAIT vm=(\S*) lg=(\S*)", t); parts = []
            for names, hist, cn, mx in ((m.group(1), vm, "vmcnt", 63), (m.group(2), lg, "lgkmcnt", 15)):
                if not names: continue
                names = names.split(",")
                if names == ["*"]: parts.append(f"{cn}(0)"); continue
                idx = [i for i, h in enumerate(hist) if h[1] in names]
                for nme in names: assert any(h[1] == nme for h in hist), ("unknown tag", nme)
                n = sum(1 for h in hist[max(idx)+1:] if h[0] == "o")
                parts.append(f"{cn}({min(n, mx)})")
            out.append("  s_waitcnt " + " ".join(parts)); continue
        tg = re.search(r";#(\S+)", t); nm = tg.group(1) if tg else None
        kind = "n" if ";nocount" in t else "o"
        if isvm(x): vm.append((kind, nm))
        elif islg(x): lg.append((kind, nm))
        out.append(x)
    return out
def glue(lines):
    out = []; cur = []
    for x in lines:
        t = x.strip()
        if cur and not t.startswith(("s_cselect", "s_addc", "s_cbranch", "s_mov_b32")) and not t.endswith(":"):
            out.append(cur); cur = []
        if t.startswith(("s_cmp", "s_bitcmp")) or cur or (t.startswith("s_add_u32") and ";C" in t): cur.append(x)
        else: out.append([x])
    if cur: out.append(cur)
    return out
def place(M, lists):
    gaps = [[] for _ in M]
    for items, g0, g1 in lists:
        if not items: continue
        items = glue(items); n = g1 - g0 + 1
        for k, x in enumerate(items): gaps[g0 + k*n//len(items)] += x
    out = []
    for m, g in zip(M, gaps): out += [m] + g
    return out
def inter(main, groups, first=0):
    main = glue(main); out = []; n = len(main); G = len(groups); gi = 0
    for i, x in enumerate(main):
        while gi < G and i >= first + gi*(n - first)//G: out += groups[gi]; gi += 1
        out += x
    while gi < G: out += groups[gi]; gi += 1
    return out
def grp(lines, k):
    out = []; cur = []
    for x in lines:
        if isvm(x) and sum(map(isvm, cur)) == k:
            tail = []
            while cur and not isvm(cur[-1]): tail.insert(0, cur.pop())
            out.append(cur); cur = tail
        cur.append(x)
    if cur: out.append(cur)
    return out
OUTL = A()
def check(tg, vaddr, vdst, lead=False):
    if lead: a = L(f"v_cmp_ne_u32 vcc, s39, v{vdst}\ns_nop 1\ns_and_b64 vcc, vcc, s[56:57]\ns_cbranch_scc1 {tg}_slow\n{tg}_ok:\ns_barrier")
    else: a = L(f"v_cmp_ne_u32 vcc, s39, v{vdst}\ns_nop 1\ns_cmp_lg_u64 vcc, 0\ns_cbranch_scc1 {tg}_slow\n{tg}_ok:")
    OUTL(f"""
    {tg}_slow:
    s_mov_b32 s38, {OPT['spin']}
    {tg}_again:
    s_sleep {OPT.get('sleep', 4)}
    buffer_load_dword v{vdst}, v{vaddr}, s[16:19], 0 offen sc1
    s_sub_u32 s38, s38, 1
    s_cmp_eq_u32 s38, 0
    s_cbranch_scc1 {tg}_ok
    s_waitcnt vmcnt(0)
    v_cmp_ne_u32 vcc, s39, v{vdst}
    s_nop 1
    s_cmp_lg_u64 vcc, 0
    s_cbranch_scc1 {tg}_again
    s_branch {tg}_ok
    """)
    return a
def poll(vaddr, vdst, t, so="0"): return [f"  buffer_load_dword v{vdst}, v{vaddr}, s[16:19], {so} offen sc1 ;#{t}"]
def flag(soff, r=None):
    d, o = (3, 6) if r is None else (r, r + 1)
    return L(f"v_mov_b32 v{d}, s39\nv_lshlrev_b32 v{o}, 25, v7\nbuffer_store_dword v{d}, v{o}, s[16:19], {soff} offen sc1")

ACC = 8; CS = 128; AB = [148, 172]; BB = [196, 216]; VX = 236; VW = 242; LA = 247; LB = 249; VF = 255
L2B = CS
ONES = 240
def acc(T, t): return ACC + (T*5 + t)*4
def g1_mfma(buf, tr, first):
    M = []
    for T in range(6):
        for t in (range(5) if T % 2 == 0 else range(4, -1, -1)):
            x = vr(AB[buf] + 4*T); w = vr(BB[buf] + 4*t); d = vr(acc(T, t))
            p, q = (w, x) if tr else (x, w)
            M.append(f"  v_mfma_f32_16x16x32_bf16 {d}, {p}, {q}, {'0' if first else d}")
    return M
def g1_cs(buf):
    return [f"  v_mfma_f32_16x16x32_bf16 {vr(CS+4*t)}, {ar(ONES)}, {vr(BB[buf]+4*t)}, {'0' if buf == 0 else vr(CS+4*t)}" for t in range(5)]
def g1_reads(k):
    buf = k & 1; st = (k//2) % 3
    la, lb, so = (LA, LB, st*STAGE) if st < 2 else (L2B, L2B + 2, 0)
    R = []
    def b(t):
        u2, h2 = (64, 1280) if OPT["wrow"] else (1024, 256)
        base = lb + (2 if t == 4 else (t & 1)); off = so + buf*10240 + (u2 if t in (2, 3) else 0)
        return [f"  ds_read_b64_tr_b16 {vr(BB[buf]+4*t,2)}, v{base} offset:{off}",
                f"  ds_read_b64_tr_b16 {vr(BB[buf]+4*t+2,2)}, v{base} offset:{off+h2}"]
    def x(T): return [f"  ds_read_b128 {vr(AB[buf]+4*T)}, v{la+buf} offset:{so+T*2048}"]
    R += x(0)
    for t in range(5): R += b(t)
    for T in range(1, 6): R += x(T)
    return tag(R, f"r{k}")
def dma_x(c):
    so = (c % 3)*STAGE; Dm = []
    for j in range(6):
        if j in (0, 4): Dm.append(f"  s_add_u32 m0, s40, {so + 1024*j}")
        Dm.append(f"  buffer_load_dwordx4 v{VX+j}, s[8:11], s42 offen offset:{1024*(j%4)} lds")
    return tag(Dm, f"c{c}")
def dma_w(c):
    so = (c % 3)*STAGE; Dm = []
    for j in range(5):
        if OPT["wrow"]:
            if j in (0, 4): Dm.append(f"  s_add_u32 m0, s41, {so + 1024*j}")
            Dm.append(f"  buffer_load_dwordx4 v{VW+j}, s[12:15], s43 offen offset:{1024*(j%4)}{' nt' if (c == 0 and OPT.get('wnt')) else ''} lds")
            continue
        Dm.append(f"  s_add_u32 m0, s41, {so + 1024*j}")
        Dm.append(f"  buffer_load_dwordx4 v{VW+j}, s[12:15], s43 offen lds")
    return tag(Dm, f"c{c}")
def dma_next(c):
    if OPT.get("lock") == 2:
        return L(f"s_cmp_eq_u32 s54, 0\ns_cselect_b32 s44, {c}, {(c + 5) % 10}\ns_lshl_b32 s42, s44, 7\ns_mul_i32 s43, s44, s45")
    if OPT["krot"]:
        first = "s_mov_b32 s44, s67" if c == 1 else "s_add_u32 s44, s44, 1\ns_cmp_eq_u32 s44, 10\ns_cselect_b32 s44, 0, s44"
        return L(first + f"""
        s_cmp_eq_u32 s44, s54
        s_addc_u32 s44, s44, 0
        s_cmp_eq_u32 s44, 10
        s_cselect_b32 s44, 0, s44
        s_lshl_b32 s42, s44, 7
        s_mul_i32 s43, s44, s45""")
    return L(f"s_cmp_le_u32 s54, {c-1}\ns_cselect_b32 s44, {c}, {c-1}\ns_lshl_b32 s42, s44, 7\ns_mul_i32 s43, s44, s45")
def breg(s, t): return ar(s*20 + 4*t)
def bstream(i0, n):
    out = []
    for i in range(i0, i0 + n):
        s, t = divmod(i, 5)
        if t == 0 or i == i0:
            out.append(f"  s_add_u32 s68, s46, {8*16384*s}")
            if s == 6: out += L(f"s_cmp_lt_u32 s20, 3\ns_cselect_b32 s68, s68, {OOB}")
        if t < 4: out.append(f"  buffer_load_dwordx4 {breg(s,t)}, v4, s[16:19], s68 offen offset:{1024*t} sc1 ;#B{s}")
        else: out.append(f"  buffer_load_dwordx4 {breg(s,t)}, v5, s[16:19], s68 offen sc1 ;#B{s}")
    return out
class Stream:
    def __init__(self, items): self.items = list(items)
    def take(self, n):
        it, self.items = self.items[:n], self.items[n:]
        assert len(it) == n
        out = []; k = 0
        while k < len(it):
            j = k
            while j + 1 < len(it) and it[j+1] == (it[j][0], it[j][1] + 1): j += 1
            out += (bstream if it[k][0] == "B" else wo_dma)(it[k][1], j - k + 1); k = j + 1
        return out
def wo_dma(i0, n):
    out = []
    for i in range(i0, i0 + n):
        j, t = divmod(i, 5)
        if t in (0, 4) or i == i0: out += [f"  s_add_u32 m0, s69, {20480*j + (4096 if t == 4 else 0)}", f"  s_add_u32 s71, s70, {65536*j}"]
        out.append(f"  buffer_load_dwordx4 v{4 if t < 4 else 5}, s[16:19], s71 offen offset:{1024*(t%4)} sc1 lds ;#wo{j}")
    return out
PRODS = [(0,3),(0,4),(1,3),(1,4),(1,5),(2,3),(2,4),(2,5)]
KVOF = [240, 241, 242, 243, 244, 245, 246, 255]

def setup_s():
    return L(f"""
    s_cmp_lt_u32 s22, 12
    s_cselect_b32 s83, {LOG2E}, {LOG2E | 0x80000000}
    s_mul_i32 s76, s21, 3
    s_add_u32 s76, s76, s51
    s_add_u32 s77, s76, 1
    """) + blk(80, 76, "h", 28, 29) + blk(81, 77, "h", 28, 29) + blk(78, 76, "q", 28, 29) + blk(79, 77, "q", 28, 29) + L(f"""
    s_cmp_lt_u32 s22, 12
    s_cselect_b32 s80, s78, s80
    s_cselect_b32 s81, s79, s81
    s_cmp_ge_u32 s76, 32
    s_cselect_b32 s80, {OOB}, s80
    s_cmp_ge_u32 s77, 32
    s_cselect_b32 s81, {OOB}, s81
    s_lshl_b32 s28, s51, 11
    s_add_u32 s82, s81, s28              ; row tile 4
    s_add_u32 s29, s80, 2048
    s_add_u32 s80, s80, s28              ; row tile 0
    s_cmp_eq_u32 s51, 0
    s_cselect_b32 s81, s29, s81          ; row tile 2
    s_mul_i32 s61, s23, 5
    s_mul_i32 s28, s52, 3
    s_add_u32 s62, s61, s28
    s_add_u32 s63, s62, 1
    s_add_u32 s61, s61, 2
    s_lshl_b32 s28, s23, 1
    s_add_u32 s28, s28, s52
    s_add_u32 s29, s28, 22
    s_add_u32 s30, s23, 43
    s_cmp_lt_u32 s22, 12
    s_cselect_b32 s62, s62, s28
    s_cselect_b32 s63, s63, s29
    s_cselect_b32 s61, s61, s30
    s_cselect_b32 s75, {OOB}, {FPD}
    s_cmp_eq_u32 s63, 43
    s_cselect_b32 s63, {OOB >> 13}, s63
    """) + cell(62, 62, 28) + cell(63, 63, 28) + cell(61, 61, 28) + L(f"""
    s_lshl_b32 s28, s52, 9
    s_add_u32 s61, s61, s28
    s_add_u32 s75, s75, s67
    """)
def setup_t():
    return L(f"""
    v_add_u32 v{VX}, s62, v4
    v_add_u32 v{VX+1}, s63, v4
    v_and_b32 v3, 1, v2
    v_lshlrev_b32 v3, 10, v3
    v_lshrrev_b32 v254, 1, v2
    v_lshl_add_u32 v3, v254, 8, v3
    v_lshl_add_u32 v3, v1, 4, v3
    v_add_u32 v{VX+2}, s61, v3
    v_mov_b32 v{VX+4}, 0x358637bd
    v_mov_b32 v{VX+5}, 0x358637bd
    """)
def setup_n0():
    a = A()
    a(f"""
    v_and_b32 v1, 15, v7
    v_lshrrev_b32 v2, 4, v7
    v_cmp_gt_u32 s[32:33], 8, v1
    s_cmp_eq_u32 s21, 10
    s_cselect_b32 s36, s51, 0
    s_lshl_b32 s37, s22, 1
    s_add_u32 s37, s37, s52
    s_lshl_b32 s37, s37, 12
    s_add_u32 s37, s37, {KVP}
    s_lshl_b32 s60, s20, 12
    s_add_u32 s60, s60, {KVX}
    v_and_b32 v254, 31, v7
    v_add_u32 v254, 224, v254
    """)
    for n, (kx, vy) in enumerate(PRODS):
        eoff = {3: -8, 4: 8, 5: 24}[vy]; o = 252
        a(f"""
        v_add_u32 v3, {4*kx}, v2
        v_cmp_le_u32 vcc, 5, v3
        v_add_u32 v{o}, {eoff}, v1
        v_cmp_gt_u32 s[62:63], 10, v3
        v_cndmask_b32 v253, 0, 20, vcc
        v_sub_u32 v{o}, v{o}, v253
        """)
        if vy == 3: a(f"v_cmp_eq_u32 vcc, 0, v1\nv_cndmask_b32 v253, v{o}, 0, vcc\nv_cndmask_b32 v{o}, v{o}, 20, vcc\nv_cmp_gt_u32 vcc, 20, v253")
        else: a(f"v_cmp_gt_u32 vcc, 20, v{o}")
        a(f"""
        v_mad_u32_u24 v{o}, v3, 21, v{o}
        s_and_b64 vcc, vcc, s[62:63]
        v_cndmask_b32 v{o}, v254, v{o}, vcc
        v_lshl_add_u32 v{o}, v{o}, 4, s60
        v_accvgpr_write_b32 a{244+n}, v{o}
        """)
    return list(a)
def setup_n():
    return L(f"s_mov_b32 s30, {LOG2E}\ns_mov_b32 s31, {LOG2E}") + [f"  v_accvgpr_read_b32 v{KVOF[n]}, a{244+n}" for n in range(8)]

def g1_main(tg, tr, st):
    a = A()
    pf = OPT["pf_t"] if tr else OPT["pf_n"]
    a += W("c0"); a("s_barrier"); a += stamp("k0")
    a += g1_reads(0) + W(lg="r0")
    mv = OPT["keep"]
    d0 = [] if mv >= 1 else ((d_pack_src() if tr else []) + d_cs())
    a += place(g1_mfma(0, tr, True) + g1_cs(0), [(g1_reads(1), 0, 17), (dma_x(2) + dma_w(2), 0, 33), (d0, 4, 34)])
    def spread(items, ks):
        g = glue(items); return {k: sum(g[i*len(g)//len(ks):(i+1)*len(g)//len(ks)], []) for i, k in enumerate(ks)}
    if tr:
        dfr = spread(d_misc() + setup_s(), [4, 5, 6, 7, 8, 9, 10, 11, 12])
        if mv < 2: dfr[2] = d_pack_dst()
        if OPT["touch"] == 1: dfr[2] = d_touch() + dfr.get(2, [])
    else: dfr = spread((d_touch() if OPT["touch"] == 1 else []) + d_misc(), [2, 3, 4])
    a += W(lg="r1")
    a += g1_cs(1)
    PKD, PKR, PKS = (OPT["pkd"], OPT["pkr"], OPT["pks"]) if tr else (None, None, {})
    pk_d = []
    for i in range(5):
        pk_d += [f"  s_add_u32 m0, s53, {896*i}", f"  buffer_load_dwordx4 v252, s[56:59], s55 offen offset:{128*i} {'nt ' if OPT.get('pknt', 1) else ''}lds ;#pk"]
    pk_r = []
    for t in range(5):
        if t: pk_r += L(f"s_cmp_eq_u32 s20, {4-t}\ns_cselect_b32 s28, 896, 0\nv_add_u32 v1, s28, v1\nv_add_u32 v2, s28, v2")
        pk_r += [f"  ds_read_b64_tr_b16 {ar(16+4*t,2)}, v1 offset:{32*t}", f"  ds_read_b64_tr_b16 {ar(18+4*t,2)}, v2 offset:{32*t}"]
    pk_s = [f"  buffer_store_dwordx4 {ar(16+4*t)}, v{4 if t < 4 else 5}, s[16:19], s{60 if c == 0 else 53} offen offset:{1024*(t%4)} sc1 ;#ps" for t in range(5) for c in range(2 if OPT["mode"] == "dup" else 1)]
    pk_r.append("  s_add_u32 s53, s60, 8192")
    cs_st = L(f"""
    v_cmp_le_u32 vcc, 16, v7
    v_cmp_le_u32 s[28:29], 32, v7
    v_cmp_le_u32 s[30:31], 48, v7
    v_cndmask_b32 v{CS+17}, v{CS}, v{CS+4}, vcc
    v_cndmask_b32 v{CS+17}, v{CS+17}, v{CS+8}, s[28:29]
    v_cndmask_b32 v{CS+17}, v{CS+17}, v{CS+12}, s[30:31]
    buffer_store_dword v{CS+17}, v253, s[16:19], s64 offen sc1 ;#cs
    buffer_store_dword v{CS+16}, v254, s[16:19], s64 offen sc1 ;#cs
    """) + [f"  v_add_u32 v{L2B+i}, {2*STAGE}, v{LA+i}" for i in range(5)]
    auxa = L(f"""
    v_lshlrev_b32 v3, 4, v0
    v_add_u32 v252, s74, v3
    v_add_u32 v253, 4096, v252
    v_cmp_le_u32 vcc, 144, v0
    v_add_u32 v3, s65, v3
    v_cmp_le_u32 s[28:29], s66, v0
    v_cndmask_b32 v253, v253, v3, vcc
    v_add_u32 v3, {RSTD - NEGM - 768}, v3
    v_cmp_le_u32 vcc, 240, v0
    v_cndmask_b32 v253, v253, v3, s[28:29]
    v_mov_b32 v3, {OOB}
    v_cndmask_b32 v253, v253, v3, vcc
    v_and_b32 v1, 15, v7
    v_lshrrev_b32 v2, 4, v7
    """)
    polx = [f"  s_xor_b32 s{r}, s{r}, s3" for r in ((46, 70, 80, 81, 82) if OPT["mode"] == "dup" else (80, 81, 82))]
    aux = L(f"""
    s_mov_b32 m0, s72
    s_nop 0
    buffer_load_dwordx4 v252, s[16:19], 0 offen sc1 lds ;#aux
    s_add_u32 m0, s72, 4096
    s_nop 0
    buffer_load_dwordx4 v253, s[16:19], 0 offen sc1 lds ;#aux
    """) + flag("s73")
    y1 = L(f"v_lshlrev_b32 v252, 2, v0\nv_add_u32 v252, {AUXC}, v252") + tag([f"  ds_read_b32 v{CS+i}, v252 offset:{640*i}" for i in range(10)], "y1")
    y2 = [f"  v_add_f32 v{CS}, v{CS}, v{CS+i}" for i in range(1, 10)] + [f"  ds_write_b32 v252, v{CS} offset:{CSL-AUXC} ;#y2"]
    rd = L("s_mul_i32 s28, s51, 384\ns_add_u32 s28, s28, %d" % AUXM)
    if tr:
        rd += L(f"v_lshlrev_b32 v6, 4, v2\nv_add_u32 v252, s34, v6\nv_add_u32 v253, s35, v6\nv_lshl_add_u32 v3, v1, 2, s28")
        rd += [f"  ds_read_b128 {vr(CS+4*t)}, v252 offset:{64*t}" for t in range(4)] + [f"  ds_read_b128 {vr(CS+16)}, v253"]
        for T in range(6): rd += [f"  ds_read_b32 v{AB[0]+4*T}, v3 offset:{64*T}", f"  ds_read_b32 v{AB[0]+4*T+1}, v3 offset:{768+64*T}"]
    else:
        rd += L(f"v_lshlrev_b32 v6, 2, v1\nv_add_u32 v252, s34, v6\nv_lshl_add_u32 v3, v2, 4, s28")
        rd += [f"  ds_read_b32 v{CS+4*t}, v252 offset:{64*t}" for t in range(5)]
        for T in range(6): rd += [f"  ds_read_b128 {vr(AB[0]+4*T)}, v3 offset:{64*T}"]
        for T in range(5): rd += [f"  ds_read_b128 {vr(BB[0]+4*T)}, v3 offset:{768+64*T}"]
        rd += [f"  ds_read_b128 {vr(VX)}, v3 offset:{768+64*5}"]
    su = setup_t() if tr else setup_n()
    e0 = glue(setup_n0()); early = {} if tr else {6 + i: sum(e0[i*len(e0)//6:(i+1)*len(e0)//6], []) for i in range(6)}
    nb = 0; fb, pb = (OPT["flagb"] if tr else OPT["flagb_n"]), OPT["pollb"]; nps = 0
    for k in range(1, 20):
        c = (k - 1)//2
        M = g1_mfma(k & 1, tr, False)
        ls = []
        if k & 1:
            if c == pb and tr: a("k_t_join:")
            if k > 1: a += W(lg=[f"r{k}"] + (["y2"] if k == 19 else []) + (["pr"] if k - 1 == PKR else []))
            a.append(M.pop(0))
            vm = [f"c{c+1}"] if c < 9 else []
            if c == fb: vm += ["cs", "ss"] + (["ps"] if tr else [])
            if k == PKR: vm += ["pk"]
            if c == pb + 1: vm += ["pa"]
            if c == 8: vm += ["aux"]
            if vm: a += W(vm)
            if c == pb + 1: a += check(tg + "_sa", 6, VF)
            a("s_barrier")
            if c == 0: a += stamp("b0")
            if c == 7: a += stamp("tail")
            a += stamp(f"b{c}") if c > 0 else []
            if c == fb: ls.append((flag("s49"), 0, 2))
            if c == pb: ls.append((L(f"v_lshlrev_b32 v6, {OPT['fash']}, v0\nv_add_u32 v6, {FA}, v6") + poll(6, VF, "pa"), 0, 2))
            if OPT["pol"] != "race":
                if c == pb + 1: ls.append((polx, 0, 2))
            else:
                assert OPT["mode"] == "rows"
                if c == 7: ls.append((L(f"v_mov_b32 v{CS+18}, {PW}\nbuffer_load_dword v{CS+19}, v{CS+18}, s[16:19], 0 offen sc1 ;#aux"), 0, 1))
                if c == 8:
                    ls.append((L(f"v_readfirstlane_b32 s3, v{CS+19}\ns_xor_b32 s3, s3, s39"), 19, 20))
                    ls.append((L(f"s_and_b32 s38, s3, {~8192 & 0xffffffff}\ns_cbranch_scc1 {tg}_pw\n{tg}_pwr:"), 21, 21))
                    ls.append((polx, 22, 28))
                    OUTL(f"""
                    {tg}_pw:
                    s_mov_b32 s40, {OPT['spin']}
                    {tg}_pw1:
                    s_sleep 4
                    buffer_load_dword v{CS+19}, v{CS+18}, s[16:19], 0 offen sc1
                    s_waitcnt vmcnt(0)
                    v_readfirstlane_b32 s3, v{CS+19}
                    s_sub_u32 s40, s40, 1
                    s_xor_b32 s3, s3, s39
                    s_and_b32 s38, s3, {~8192 & 0xffffffff}
                    s_cselect_b32 s38, s40, 0
                    s_and_b32 s3, s3, 8192
                    s_cmp_lg_u32 s38, 0
                    s_cbranch_scc1 {tg}_pw1
                    s_branch {tg}_pwr
                    """)
            if c == 7: ls.append(([x for x in aux], 0, 2))
            dx, dw = (dma_next(c+3) + dma_x(c+3), dma_w(c+3)) if c + 3 <= 9 else ([], [])
            if k == PKD: ls += [(pk_d, 0, 9), (dx[:-4], 14, 28)]
            else: ls.append((dx, 1, 27))
            if k == PKR: ls.append((tag(pk_r, "pr"), 10, 26))
            if c == 0: ls.append((cs_st, 12, 27))
            if c == 8: ls.append((y1, 8, 22))
        else:
            a += W(lg=[f"r{k}"] + (["y1"] if c == 8 else []) + (["pr"] if k - 1 == PKR else []))
            if k - 1 == PKD: ls.append((dx[-4:] + dw, 0, 28))
            else: ls.append((dw, 1, 27))
            if c == 6: ls.append((auxa, 17, 28))
            if c == 8: ls.append((y2, 0, 12))
        if PKS.get(k): ls.append((pk_s[nps:nps+PKS[k]], 2, 28 if nps + PKS[k] < len(pk_s) else 18)); nps += PKS[k]
        if k < 19: ls.insert(0, (g1_reads(k+1), 1 if k & 1 else 0, 17))
        else: ls.insert(0, (rd, 0, 22))
        if k == 16: ls.append((su, 18, 28))
        if k in early: ls.append((early[k], 4, 28))
        if k in dfr: ls.append((dfr[k], 0 if k == 2 else 6, 28))
        if k == OPT["cpf2"]:
            ls.append((L(f"v_add_u32 v{CS+8}, s50, v4\nv_min_u32 v{CS+8}, CODE_MAX, v{CS+8}\ns_cmp_gt_u32 s50, CODE_MAX\ns_cbranch_scc1 {tg}_c2\nglobal_load_dwordx4 {vr(CS+12)}, v{CS+8}, s[0:1] ;nocount\n{tg}_c2:"), 29 - (k & 1), 29 - (k & 1)))
        if pf.get(k):
            assert c > pb
            assert all(x[0] == "B" for x in st.items[:pf[k]])
            ls.append((st.take(pf[k]), 3, 28))
        a += place(M, ls)
    a += stamp("lend")
    return a

def stats_math():
    a = A(); src = 8; tmp = 20; ac = 44
    for i in range(12):
        a(f"v_lshlrev_b32 v{tmp+2*i}, 16, v{src+i}\nv_and_b32 v{tmp+2*i+1}, 0xffff0000, v{src+i}")
    a(f"v_pk_add_f32 {vr(ac,2)}, {vr(tmp,2)}, {vr(tmp+2,2)}")
    for i in range(2, 12): a(f"v_pk_add_f32 {vr(ac,2)}, {vr(ac,2)}, {vr(tmp+2*i,2)}")
    def red():
        a(f"v_add_f32 v{ac}, v{ac}, v{ac+1}")
        for r in (8, 4, 2, 1): a(f"v_add_f32_dpp v{ac}, v{ac}, v{ac} row_ror:{r} row_mask:0xf bank_mask:0xf")
        a(f"v_mov_b32 v{ac+1}, v{ac}\nv_permlane16_swap_b32 v{ac}, v{ac+1}\nv_add_f32 v{ac}, v{ac}, v{ac+1}")
    red()
    a(f"v_mul_f32 v46, 0xbacccccd, v{ac}")
    a(f"v_cndmask_b32 v47, 0, v46, s[32:33]")
    for i in range(8): a(f"v_pk_add_f32 {vr(tmp+2*i,2)}, {vr(tmp+2*i,2)}, v[46:47] op_sel_hi:[1,0]")
    for i in range(8, 12): a(f"v_pk_add_f32 {vr(tmp+2*i,2)}, {vr(tmp+2*i,2)}, v[46:47] op_sel:[0,1] op_sel_hi:[1,1]")
    a(f"v_pk_mul_f32 {vr(ac,2)}, {vr(tmp,2)}, {vr(tmp,2)}")
    for i in range(1, 12): a(f"v_pk_fma_f32 {vr(ac,2)}, {vr(tmp+2*i,2)}, {vr(tmp+2*i,2)}, {vr(ac,2)}")
    red()
    a(f"""
    v_mov_b32 v{ac+1}, 0x3727c5ac
    v_fmac_f32 v{ac+1}, 0x3acccccd, v{ac}
    v_rsq_f32 v{ac+1}, v{ac+1}
    v_and_b32 v48, 31, v7
    v_cmp_eq_u32 vcc, 0, v48
    v_lshrrev_b32 v49, 5, v7
    v_lshlrev_b32 v49, 2, v49
    v_cndmask_b32 v46, v{ac+1}, v46, vcc
    v_lshl_add_u32 v49, v48, 13, v49
    v_cmp_gt_u32 vcc, 2, v48
    v_mov_b32 v50, {OOB}
    s_lshl_b32 s28, s48, 3
    s_add_u32 s28, s28, {NEGM}
    v_cndmask_b32 v49, v50, v49, vcc
    buffer_store_dword v46, v49, s[16:19], s28 offen sc1 ;#ss
    s_lshl_b32 s28, s2, 8
    s_add_u32 s28, s28, {KVP}
    s_cmp_eq_u32 s20, 1
    s_cselect_b32 s28, s28, {OOB}
    v_lshlrev_b32 v49, 2, v7
    v_mov_b32 v50, 0
    buffer_store_dword v50, v49, s[16:19], s28 offen sc1 ;#ss
    """)
    return list(a)

def prologue():
    a = A()
    a += stamp("entry")
    a(f"""
    s_load_dwordx16 s[60:75], s[0:1], 0
    s_load_dwordx2 s[26:27], s[0:1], 64
    s_cmp_ge_u32 s2, 256
    s_cbranch_scc1 k_end
    s_and_b32 s3, s2, 7
    s_lshl_b32 s3, s3, 5
    s_lshr_b32 s21, s2, 3
    s_add_u32 s3, s3, s21                ; lin
    s_mul_i32 s35, {"s3" if OPT["slin"] else "s2"}, 10240
    v_lshrrev_b32 v1, 5, v0
    v_mul_u32_u24 v1, {1280-512}, v1
    v_lshl_add_u32 v52, v0, 4, v1
    v_and_b32 v1, 16, v0
    v_lshl_add_u32 v53, v1, 26, v52      ; lanes whose third piece is past the row: out of range
    s_mov_b32 s10, {S*D*2}
    s_mov_b32 s11, 0x20000
    """)
    ld = L("s_waitcnt lgkmcnt(0)\ns_mov_b32 s8, s60\ns_and_b32 s9, s61, 0xffff") + stamp("karg")
    for j in range(3): ld.append(f"  buffer_load_dwordx4 {vr(8+4*j)}, v{53 if j == 2 else 52}, s[8:11], s35 offen offset:{512*j} ;#sl")
    if OPT["head"] == 0: a += ld
    a(f"""
    s_getpc_b64 s[36:37]
    v_cmp_eq_u32 s[32:33], 0, v1
    v_lshrrev_b32 v1, 6, v0
    v_and_b32 v7, 63, v0                 ; lane
    v_readfirstlane_b32 s20, v1          ; wave
    s_cmp_lt_u32 s3, 138
    s_cselect_b32 s28, 0, 138
    s_cselect_b32 s29, 10923, 13108
    s_cselect_b32 s30, 6, 5
    s_cselect_b32 s31, 0, 6
    s_sub_u32 s28, s3, s28
    s_mul_i32 s22, s28, s29
    s_lshr_b32 s22, s22, 16
    s_mul_i32 s30, s22, s30
    s_sub_u32 s21, s28, s30
    s_add_u32 s21, s21, s31              ; rb
    s_cmp_ge_u32 s3, 253
    s_cselect_b32 s21, 11, s21
    s_min_u32 s54, s21, 9                ; start chunk
    """)
    if OPT.get("lock") == 1: a("s_mov_b32 s54, 0")
    if OPT.get("lock") == 2: a("s_cmp_lt_u32 s21, 6\ns_cselect_b32 s54, 0, 5")
    if OPT.get("lock") == 3: a("s_lshr_b32 s54, s54, 1\ns_lshl_b32 s54, s54, 1")
    a(f"""
    """)
    xa = A()
    xa(f"""
    s_lshl_b32 s28, s21, 2
    s_add_u32 s28, s28, s20
    s_mul_i32 s28, s28, {48*1280}
    v_lshrrev_b32 v1, 3, v7              ; r8
    v_lshrrev_b32 v2, 1, v1
    v_and_b32 v3, 7, v7
    v_xor_b32 v2, v2, v3
    v_mul_u32_u24 v1, 1280, v1
    v_lshl_add_u32 v252, v3, 4, v1
    v_add_u32 v1, s28, v1
    v_lshl_add_u32 v{VX}, v2, 4, v1
    v_xor_b32 v2, 4, v2
    v_lshl_add_u32 v6, v2, 4, v1
    """)
    for j in range(1, 6): xa(f"v_add_u32 v{VX+j}, {j*10240 - 1024*(j%4)}, v{6 if j & 1 else VX}")
    xa("s_mul_i32 s40, s20, 6144\ns_lshl_b32 s42, s54, 7")
    wa = A()
    wa(f"""
    s_sub_u32 s28, 22, s22
    s_cmp_lt_u32 s3, 138
    s_cselect_b32 s22, s22, s28
    s_mul_i32 s28, s22, 43
    s_lshr_b32 s28, s28, 8               ; g = p/6
    s_mul_i32 s29, s28, 6
    s_sub_u32 s29, s22, s29              ; r
    s_mul_i32 s30, s28, 3
    s_add_u32 s30, s30, s29
    s_add_u32 s30, s30, 9                ; w1: 12+3g+r-3
    s_lshl_b32 s31, s28, 1
    s_add_u32 s31, s31, s29
    s_sub_u32 s31, s31, 1                ; kv: 2g+r-1
    s_add_u32 s28, s28, 8                ; q
    s_cmp_lt_u32 s29, 3
    s_cselect_b32 s22, s31, s30
    s_cmp_eq_u32 s29, 0
    s_cselect_b32 s22, s28, s22
    s_cmp_ge_u32 s3, 253
    s_cselect_b32 s22, 12, s22
    s_cmp_lt_u32 s22, 12
    s_cselect_b32 s12, s62, s68
    s_cselect_b32 s13, s63, s69
    s_cselect_b32 s14, {D*3*D*2}, {D*F*2}
    s_cselect_b32 s50, 3840, 3456        ; W row stride
    s_cselect_b32 s28, 8, 12
    s_and_b32 s13, s13, 0xffff
    s_mov_b32 s15, 0x20000
    s_lshl_b32 s45, s50, 6
    s_sub_u32 s23, s22, s28
    s_mul_i32 s29, s23, 320
    s_mul_i32 s30, s22, 160
    s_add_u32 s30, s30, 1280
    s_cmp_lt_u32 s22, 8
    s_cselect_b32 s29, s30, s29
    s_cselect_b32 s30, 1200, 0
    s_cselect_b32 s31, -80, 0
    s_lshl_b32 s28, s20, 4
    s_mul_i32 s28, s28, s50
    s_add_u32 s29, s29, s28
    s_mul_i32 s41, s20, 5120
    s_add_u32 s41, s41, {WOFF}
    s_mul_i32 s43, s54, s45
    s_movk_i32 s28, -20
    v_xor_b32 v54, 2, v7                 ; rows 8..15 swap adjacent 32-byte units
    v_lshrrev_b32 v55, 4, v7
    v_and_b32 v55, 2, v55
    v_xor_b32 v55, v55, v7
    """)
    dw = grp(dma_w(0), 1); wj = []
    for jj in range(5):
        src = 7 if jj < 2 else 55 if jj == 2 else 54
        b = A()
        if jj: b(f"v_add_u32 v1, {64*jj}, v{src}")
        q = 1 if jj else 7
        b(f"""
        v_mul_u32_u24 v2, 3277, v{q}
        v_lshrrev_b32 v2, 16, v2
        v_mad_i32_i24 v3, v2, s28, v{q}
        v_mul_u32_u24 v2, s50, v2
        v_lshl_add_u32 v2, v3, 4, v2
        v_mul_u32_u24 v3, 205, v3
        v_bfe_u32 v1, v3, 10, 1
        v_lshrrev_b32 v3, 11, v3
        v_mad_u32_u24 v2, v1, s30, v2
        v_mad_i32_i24 v2, v3, s31, v2
        v_add_u32 v{VW+jj}, s29, v2
        """)
        if jj < 3: b("s_sub_u32 s29, s29, 1024")
        if jj == 3: b("s_add_u32 s29, s29, 3072")
        wj.append(list(b))
    if OPT["wfirst"]:
        a += wa
        for jj in range(5): a += wj[jj] + dw[jj]
        a += stamp("w0i") + xa
        first = grp(dma_x(0), 1)
    else:
        if OPT["head"] == 0: a += xa + dma_x(0) + wa + sum(wj, [])
        elif OPT["head"] == 1: a += xa + ld + dma_x(0) + wa + sum(wj, [])
        elif OPT["head"] == 2: a += wa[:20] + ld + xa + dma_x(0) + wa[20:] + sum(wj, [])
        elif OPT["head"] == 4: a += wa[:20] + xa + ld + dma_x(0) + wa[20:] + sum(wj, [])
        elif OPT["head"] == 5:
            ptr = [x for x in wa if re.match(r"\s*s_(cselect|and)_b32 s1[23],", x)]
            a += xa + [x for x in wa if x not in ptr] + ld + dma_x(0) + L("s_cmp_lt_u32 s22, 12") + ptr + sum(wj, [])
        elif OPT["head"] == 3: a += xa + ld[:3] + wa + sum(wj, []) + ld[3:] + dma_x(0)
        first = dw
    a(f"""
    s_load_dword s39, s[26:27], 0
    v_lshlrev_b32 v4, 4, v7
    s_lshl_b32 s48, {"s3" if OPT["slin"] else "s2"}, 2
    s_add_u32 s48, s48, s20              ; stats job
    s_and_b32 s36, s36, 0xffffff00
    s_lshr_b32 s28, s2, 3
    s_lshl_b32 s29, s20, 5
    s_add_u32 s28, s28, s29
    s_add_u32 s28, s28, 2
    s_mov_b64 s[0:1], s[36:37]
    s_lshl_b32 s50, s28, 10
    s_cmp_ge_u32 s28, CODE_KB
    s_cbranch_scc1 k_nocp
    v_add_u32 v1, s50, v4
    v_min_u32 v1, CODE_MAX, v1
    global_load_dwordx4 v[128:131], v1, s[0:1] ;nocount
    k_nocp:
    """)
    su = A()
    su += srd(16, 26, WS_USED)
    su(f"""
    s_lshr_b32 s51, s20, 1               ; wr
    s_and_b32 s52, s20, 1                ; wc
    v_lshrrev_b32 v59, 4, v7             ; g
    v_bfe_u32 v56, v7, 2, 2              ; rr
    v_and_b32 v57, 3, v7                 ; c4
    v_and_b32 v58, 1, v59                ; g&1
    v_and_b32 v3, 15, v7                 ; m
    v_lshrrev_b32 v6, 1, v3
    v_xor_b32 v6, v6, v59
    s_mul_i32 s28, s51, 12288
    v_lshl_add_u32 v55, v3, 7, s28
    v_lshl_add_u32 v{LA}, v6, 4, v55
    v_xor_b32 v6, 4, v6
    v_lshl_add_u32 v{LA+1}, v6, 4, v55
    v_lshl_add_u32 v55, v59, 3, v56
    v_mul_u32_u24 v55, 320, v55
    v_lshl_add_u32 v55, v57, 3, v55
    v_add_u32 v55, {WOFF}, v55
    s_cmp_lt_u32 s22, 8
    s_cselect_b32 s34, 5, 6
    s_cselect_b32 s35, 9, 5
    s_cmp_eq_u32 s52, 0
    s_cselect_b32 s34, 0, s34
    s_cselect_b32 s35, 4, s35
    s_add_u32 s30, s34, 1
    """)
    for i, sreg in enumerate((34, 30, 35)):
        su(f"v_xor_b32 v6, s{sreg}, v58\nv_lshl_add_u32 v{LB+i}, v6, 5, v55")
    su(f"""
    v_mov_b32 v6, 0x3f803f80
    v_accvgpr_write_b32 a{ONES}, v6
    v_accvgpr_write_b32 a{ONES+1}, v6
    v_accvgpr_write_b32 a{ONES+2}, v6
    v_accvgpr_write_b32 a{ONES+3}, v6
    """)
    mv = OPT["keep"]
    if OPT["swarm"]:
        w = L(f"""
        s_lshl_b32 s28, s48, 3
        s_add_u32 s28, s28, {NEGM}
        s_load_dword s76, s[26:27], s28
        s_add_u32 s28, s28, {RSTD - NEGM}
        s_load_dword s77, s[26:27], s28
        s_lshl_b32 s28, s2, {OPT['fash']}
        s_add_u32 s28, s28, {FA}
        s_load_dword s78, s[26:27], s28
        """)
        if OPT["swarm"] > 1:
            w += L(f"""
            s_mul_i32 s28, s22, 10
            s_add_u32 s28, s28, s54
            s_mul_i32 s28, s28, 640
            s_mul_i32 s29, s20, 192
            s_add_u32 s28, s28, s29
            s_add_u32 s28, s28, {CSP}
            s_load_dword s79, s[26:27], s28
            s_add_u32 s28, s28, 64
            s_load_dword s80, s[26:27], s28
            s_add_u32 s28, s28, 64
            s_load_dword s81, s[26:27], s28
            """)
        su[:0] = w
    if mv >= 1: su += d_pack_src() + d_cs()
    if mv >= 2: su += d_pack_dst()
    assert mv == 2
    pe = glue(p2_early()); n1 = OPT["pe1"]
    su += sum(pe[:n1], [])
    a += inter(su, first, OPT["sufirst"])
    if OPT["pkd"] == -1:
        a("s_cmp_lt_u32 s22, 8\ns_cbranch_scc1 k_nopk")
        for i in range(5):
            a += [f"  s_add_u32 m0, s53, {896*i}", f"  buffer_load_dwordx4 v252, s[56:59], s55 offen offset:{128*i} {'nt ' if OPT.get('pknt', 1) else ''}lds ;nocount"]
        a("k_nopk:\n;MARK pk")
    a += stamp("c0i")
    a += dma_next(1)
    a += W("sl")
    a += stamp("sl")
    a += inter(sum(pe[n1:], []) + stats_math(), grp(dma_x(1) + dma_w(1), 1))
    a += dma_next(2)
    a("s_waitcnt lgkmcnt(0)\ns_mul_i32 s39, s39, 1664525\ns_add_u32 s39, s39, 1013904223")
    if OPT["touch"] == 2: a += [x.replace(f"v{CS+5}", "v60").replace(f"v{CS+6}", "v61").replace(f"v{CS+7}", "v62") for x in d_touch()]
    a += stamp("pend")
    return a

def d_pack_src():
    return L(f"""
    s_sub_u32 s36, s22, 8
    s_mul_i32 s36, s36, 11
    s_add_u32 s36, s36, s21
    s_lshr_b32 s37, s36, 1               ; ks
    s_and_b32 s38, s36, 1
    s_cmp_lt_u32 s37, 54
    s_cselect_b32 s56, s70, s64
    s_cselect_b32 s57, s71, s65
    s_cmp_lt_u32 s37, 54
    s_cselect_b32 s58, {F*D*2}, {D*D*2}
    s_cmp_lt_u32 s37, 54
    s_cselect_b32 s28, 0, 54
    s_and_b32 s57, s57, 0xffff
    s_mov_b32 s59, 0x20000
    s_sub_u32 s28, s37, s28
    s_mul_i32 s28, s28, {32*1280}
    s_mul_i32 s29, s38, 640
    s_add_u32 s55, s28, s29
    s_mul_i32 s29, s20, 10240
    s_add_u32 s55, s55, s29              ; pack src (8 rows per wave)
    s_mul_i32 s53, s20, 5120
    s_add_u32 s53, s53, {PACKL}
    """)
def d_cs():
    return L(f"""
    s_lshl_b32 s34, s34, 6
    s_lshl_b32 s35, s35, 6
    v_lshl_add_u32 v253, v7, 2, s34
    v_lshl_add_u32 v254, v7, 2, s35
    v_and_b32 v6, 48, v7
    v_lshl_add_u32 v254, v6, 22, v254
    s_add_u32 s34, s34, {CSL}
    s_add_u32 s35, s35, {CSL}
    s_mul_i32 s62, s22, 6400
    s_add_u32 s62, s62, {CSP}
    s_mul_i32 s64, s21, 640
    s_add_u32 s64, s64, s62
    s_cmp_ge_u32 s21, 10
    s_cselect_b32 s64, {OOB}, s64
    s_cmp_eq_u32 s51, 1
    s_cselect_b32 s64, {OOB}, s64
    """)
def d_pack_dst():
    return L(f"""
    v_add_u32 v5, 4096, v4
    s_mul_i32 s28, s37, 205
    s_lshr_b32 s28, s28, 10              ; c
    s_mul_i32 s30, s28, 5
    s_sub_u32 s30, s37, s30              ; r
    s_lshl_b32 s29, s30, 3
    s_lshr_b32 s47, 0x01001600, s29      ; r -> 0, 22, -, 1
    s_and_b32 s47, s47, 255
    s_cmp_eq_u32 s30, 4
    s_cselect_b32 s47, 23, s47
    s_lshl_b32 s29, s28, 1
    s_add_u32 s47, s47, s29
    s_add_u32 s28, s28, 43
    s_cmp_eq_u32 s30, 2
    s_cselect_b32 s31, 1, 0
    s_cselect_b32 s47, s28, s47
    s_cmp_ge_u32 s37, 54
    s_cselect_b32 s31, 1, s31
    s_cselect_b32 s47, s37, s47          ; storage index
    s_lshl_b32 s28, 5120, s31            ; per g>>1
    s_mul_i32 s29, s31, 4608
    s_add_u32 s29, s29, 512              ; per g&1
    s_mul_i32 s30, s31, -9728
    s_add_u32 s30, s30, 10240
    v_lshrrev_b32 v3, 5, v7
    v_mul_u32_u24 v1, s28, v3
    v_bfe_u32 v3, v7, 4, 1
    v_mad_u32_u24 v1, v3, s29, v1
    v_bfe_u32 v3, v7, 2, 2
    v_lshl_add_u32 v1, v3, 7, v1
    v_and_b32 v3, 3, v7
    v_lshl_add_u32 v1, v3, 3, v1
    s_mul_i32 s28, s20, 1056
    s_add_u32 s28, s28, {PACKL}
    v_add_u32 v1, s28, v1
    v_add_u32 v2, s30, v1
    s_lshl_b32 s28, s38, 2
    s_add_u32 s28, s28, s20              ; ct
    s_add_u32 s28, s28, {WPP}
    s_lshl_b32 s28, s28, 21
    s_lshl_b32 s29, s47, 14
    s_add_u32 s28, s28, s29
    s_bfe_u32 s29, s47, 0x10001
    s_mul_i32 s29, s29, {3072 + 8192}
    s_add_u32 s28, s28, s29
    s_cmp_ge_u32 s36, 148
    s_cselect_b32 s60, {OOB}, s28
    """)
def d_touch():
    return L(f"""
    s_not_b32 s28, s39
    v_mov_b32 v{CS+6}, s28
    s_lshl_b32 s28, s2, 1
    s_add_u32 s28, s28, s20
    s_lshl_b32 s28, s28, 7
    s_add_u32 s28, s28, {FP}
    s_lshl_b32 s29, s2, 7
    s_add_u32 s29, s29, {FO}
    s_cmp_eq_u32 s20, 2
    s_cselect_b32 s28, s29, s28
    s_cmp_eq_u32 s20, 3
    s_cselect_b32 s28, {OOB}, s28
    v_lshlrev_b32 v{CS+7}, 2, v7
    v_and_b32 v{CS+5}, 32, v7
    v_lshl_add_u32 v{CS+7}, v{CS+5}, 21, v{CS+7}
    buffer_store_dword v{CS+6}, v{CS+7}, s[16:19], s28 offen sc1 ;#ss
    s_lshl_b32 s28, s2, 2
    s_add_u32 s28, s28, s20
    s_lshl_b32 s28, s28, 12
    s_add_u32 s28, s28, {GXP*PG + 3072}
    buffer_store_dword v{CS+6}, v{CS+7}, s[16:19], s28 offen sc1 ;#ss
    """)
def d_misc():
    return L(f"""
    s_lshl_b32 s49, s2, {OPT['fash']}
    s_add_u32 s49, s49, {FA}
    s_cmp_eq_u32 s20, 0
    s_cselect_b32 s49, s49, {OOB}        ; A flag (wave 0)
    v_add_u32 v5, 4096, v4
    """) + srd(4, 72, S*D*2) + L(f"""
    s_mul_i32 s74, s22, 6400
    s_add_u32 s74, s74, {CSP}
    s_add_u32 s73, s2, s20
    s_cmp_eq_u32 s73, 0
    s_cselect_b32 s73, 0, {OOB}          ; epoch word (wg0 wave0)
    s_and_b32 s24, s2, 6
    s_lshl_b32 s24, s24, 2
    s_lshr_b32 s28, s2, 5
    s_add_u32 s24, s24, s28              ; row group of phase 2
    s_bfe_u32 s25, s2, 0x20003
    s_and_b32 s28, s2, 1
    s_lshl_b32 s28, s28, 2
    s_add_u32 s25, s25, s28              ; column tile of phase 2
    s_add_u32 s29, s25, {WPP}
    s_lshl_b32 s29, s29, 21
    s_and_b32 s47, s24, 1
    s_lshl_b32 s28, s20, 1
    s_add_u32 s47, s47, s28              ; first storage index of this wave: 2*wave + parity
    s_lshl_b32 s28, s47, 14
    s_add_u32 s46, s29, s28
    s_mul_i32 s28, s52, {3072 + 8192}
    s_add_u32 s46, s46, s28              ; B stream first
    s_lshl_b32 s28, s20, 14
    s_add_u32 s70, s29, s28
    s_mul_i32 s28, s51, {3072 + 8192}
    s_sub_u32 s70, s70, s28
    s_add_u32 s70, s70, {54*16384 + 3072 + 8192} ; wo src
    s_mul_i32 s69, s20, 5120             ; wo lds base
    s_lshl_b32 s72, s20, 10
    s_add_u32 s72, s72, {AUXC}
    s_mul_i32 s65, s21, 768
    s_add_u32 s65, s65, {NEGM - 144*16}
    s_movk_i32 s66, 192
    s_mul_i32 s67, s22, 12
    s_add_u32 s67, s67, s21
    s_lshl_b32 s67, s67, 7
    s_add_u32 s67, s67, {FP}
    s_cmp_eq_u32 s20, 0
    s_cselect_b32 s67, s67, {OOB}
    """)

def zipw(*ls):
    keyed = []
    for li, l in enumerate(ls):
        for j, x in enumerate(l): keyed.append(((j + 0.5)/len(l), li, j, x))
    keyed.sort(key=lambda t: t[:3])
    return [y for k in keyed for y in k[3]]
def epi_t(kind, st):
    RC = AB[0]; PK = AB[1]; TMP = BB[0]
    e = A()
    for T in range(6):
        c = RC + 4*T
        e(f"v_mul_f32 v{c+2}, s83, v{c+1}")
        if kind == "silu": e(f"v_rcp_f32 v{c+3}, v{c+1}")
    blocks = [[(T, i) for T in Ts for i in idx] for idx in ((0, 1, 2, 3), (4, 5, 6, 7)) for Ts in ((0, 1), (2, 3), (4, 5))]
    blocks.append([(T, i) for T in range(6) for i in (8, 9)])
    nxt = lambda T: f"  s_mov_b32 s48, s{81 if T == 1 else 82}" if T in (1, 3) else "  s_add_u32 s48, s48, 1024"
    pend = []
    for bi, blk in enumerate(blocks):
        V = []; n = len(blk)
        u = lambda k: acc(blk[k][0], 0) + 2*blk[k][1]
        c = lambda k: RC + 4*blk[k][0]
        for k in range(n): V.append(f"  v_pk_fma_f32 {vr(u(k),2)}, {vr(CS+2*blk[k][1],2)}, {vr(c(k),2)}, {vr(u(k),2)} op_sel_hi:[1,0,1]")
        for k in range(n): V.append(f"  v_pk_mul_f32 {vr(TMP+2*k,2)}, {vr(u(k),2)}, {vr(c(k)+2,2)} op_sel_hi:[1,0]")
        if kind == "silu":
            for k in range(2*n): V.append(f"  v_exp_f32 v{TMP+k}, v{TMP+k}")
            for k in range(n): V.append(f"  v_pk_fma_f32 {vr(TMP+2*k,2)}, {vr(TMP+2*k,2)}, {vr(c(k)+2,2)}, {vr(c(k)+2,2)} op_sel:[0,1,1] op_sel_hi:[1,1,1]")
            for k in range(2*n): V.append(f"  v_rcp_f32 v{TMP+k}, v{TMP+k}")
            fin = lambda k: f"  v_pk_mul_f32 {vr(u(k),2)}, {vr(u(k),2)}, {vr(TMP+2*k,2)}"
        else:
            for k in range(2*n): V.append(f"  v_exp_f32_e64 v{TMP+k}, v{TMP+k} clamp")
            for k in range(n): V.append(f"  v_pk_fma_f32 {vr(u(k),2)}, {vr(u(k),2)}, {vr(c(k),2)}, 1.0 op_sel:[0,1,0] op_sel_hi:[1,1,0]")
            for k in range(2*n): V.append(f"  v_max_f32 v{u(k//2)+(k&1)}, v{u(k//2)+(k&1)}, v{TMP+k}")
            fin = lambda k: f"  v_pk_add_f32 {vr(u(k),2)}, {vr(u(k),2)}, {vr(VX+4,2)}"
        items = pend + grp(st.take(OPT["epi"][bi]), 1)
        if bi == OPT["f1blk"]: items.insert(len(pend) + OPT["f1pos"], W("sa") + L("s_barrier") + flag("s75") + stamp("f1"))
        ins = {}
        for k, x in enumerate(items): ins[5 + (k*(len(V) - 6)//len(items))//2*2] = x
        for i, v in enumerate(V):
            e.append(v)
            if i in ins: e += ins[i]
        p = PK + 12*(bi & 1); tg = " ;#sa" if bi < 3 else ""
        if bi in (0, 3, 6): e("s_mov_b32 s48, s80")
        pend = []
        for q in range(n//4):
            for k in range(4*q, 4*q + 4): e.append(fin(k))
            for k in range(4*q, 4*q + 4): e(f"v_cvt_pk_bf16_f32 v{p+k}, v{u(k)}, v{u(k)+1}")
            if bi < 6:
                T = blk[4*q][0]
                stv = [f"  buffer_store_dwordx4 {vr(p+4*q)}, v{VX + bi//3}, s[16:19], s48 offen sc1{tg}"]
                if T < 5: stv.append(nxt(T))
                if q == 0: e += stv
                else: pend.append(stv)
            else:
                e(f"v_permlane16_swap_b32 v{p+4*q}, v{p+4*q+2}\nv_permlane16_swap_b32 v{p+4*q+1}, v{p+4*q+3}")
                e(f"buffer_store_dwordx4 {vr(p+4*q)}, v{VX+2}, s[16:19], s48 offen sc1")
                if q < 2: e.append(nxt(2*q+1))
    return resolve(e)

def epi_kv(st):
    a = A()
    NM = AB[0]; TMP = BB[1]; FR = AB[1]; DD = ACC
    def RSf(T): return BB[0] + 4*T if T < 5 else VX
    a(f"""
    v_mov_b32 v{TMP+12}, 0x358637bd
    v_mov_b32 v{TMP+13}, 0x358637bd
    v_mov_b32 v{TMP+14}, 0x3f803f80
    s_waitcnt lgkmcnt(0)
    """)
    def kvm(P): return [f"  v_mfma_f32_16x16x32_bf16 {vr(DD+4*n)}, {vr(FR+4*kx)}, {vr(FR+4*vy)}, {'0' if P == 0 else vr(DD+4*n)}" for n, (kx, vy) in enumerate(PRODS)]
    for P in range(3):
        for h in range(2):
            T = 2*P + h; u0 = acc(T, 0); nm = NM + 4*T; rs = RSf(T); b = A()
            for t in range(5):
                for i in range(2):
                    r = u0 + 4*t + 2*i
                    b(f"v_pk_fma_f32 {vr(r,2)}, {vr(nm+2*i,2)}, {vr(CS+4*t,2)}, {vr(r,2)} op_sel_hi:[1,0,1]")
            for t in range(5):
                for i in range(2):
                    r = u0 + 4*t + 2*i
                    b(f"v_pk_mul_f32 {vr(r,2)}, {vr(r,2)}, {vr(rs+2*i,2)}")
            for i in range(6): b(f"v_pk_mul_f32 {vr(TMP+2*i,2)}, {vr(u0+2*i,2)}, s[30:31]")
            for i in range(12): b(f"v_exp_f32_e64 v{TMP+i}, v{TMP+i} clamp")
            for t in range(2, 5):
                for i in range(2): b(f"v_cvt_pk_bf16_f32 v{FR+4*(t+1)+2*h+i}, v{u0+4*t+2*i}, v{u0+4*t+2*i+1}")
            for i in range(2): b(f"v_cndmask_b32 v{FR+12+2*h+i}, v{FR+12+2*h+i}, v{TMP+14}, s[32:33]")
            for i in range(6): b(f"v_pk_add_f32 {vr(u0+2*i,2)}, {vr(u0+2*i,2)}, 1.0 op_sel_hi:[1,0]")
            for i in range(12): b(f"v_max_f32 v{u0+i}, v{u0+i}, v{TMP+i}")
            for i in range(6): b(f"v_pk_add_f32 {vr(u0+2*i,2)}, {vr(u0+2*i,2)}, {vr(TMP+12,2)}")
            for t in range(3):
                for i in range(2): b(f"v_cvt_pk_bf16_f32 v{FR+4*t+2*h+i}, v{u0+4*t+2*i}, v{u0+4*t+2*i+1}")
            n = OPT["epi_n"][T]
            a += inter(b, grp(st.take(n), 1), 2) if n else b
        if P: a(f"s_cmp_eq_u32 s36, 1\ns_cbranch_scc1 k_kvs{P}")
        for n, (kx, vy) in enumerate(PRODS):
            d = vr(DD + 4*n)
            a(f"v_mfma_f32_16x16x32_bf16 {d}, {vr(FR+4*kx)}, {vr(FR+4*vy)}, {'0' if P == 0 else d}")
        if P: a(f"k_kvs{P}:")
    a += stamp("kvv")
    a(f"""
    s_mul_i32 s28, s51, 1792
    s_add_u32 s37, s37, s28
    s_lshl_b32 s29, s52, 12
    s_add_u32 s28, s28, s29
    s_add_u32 s28, s28, {KVX}
    v_lshlrev_b32 v2, 2, v7
    v_add_u32 v3, s28, v2
    s_cmp_eq_u32 s51, 0
    s_cselect_b32 s28, 64, 8
    v_cmp_gt_u32 vcc, s28, v7
    v_mov_b32 v6, {OOB}
    """)
    for n in range(8): a(f"ds_write_b128 v{KVOF[n]}, {vr(DD+4*n)}")
    a("v_cndmask_b32 v6, v6, v2, vcc\ns_waitcnt lgkmcnt(0)\ns_barrier")
    for n in range(7): a(f"ds_read2st64_b32 {vr(72+2*n,2)}, v3 offset0:{n} offset1:{32+n}")
    for n in range(7):
        a(f"s_waitcnt lgkmcnt({6-n})\nv_add_f32 v{72+2*n}, v{72+2*n}, v{73+2*n}")
        a(f"buffer_atomic_add_f32 v{72+2*n}, v{6 if n == 6 else 2}, s[16:19], s37 offen offset:{256*n}")
    a += stamp("kvs")
    return a

PARK = list(range(168, 184)) + [239, 238, 240, 241, 242, 251, 252, 253]
def p2_early():
    GA = 168; F1A = 239; FW = 238; XA = [251, 252, 253]
    h = L(f"""
    s_and_b32 s21, s2, 3
    s_lshl_b32 s21, s21, 2
    s_bfe_u32 s28, s2, 0x20003
    s_add_u32 s21, s21, s28              ; hp
    s_and_b32 s23, s2, 4
    s_lshl_b32 s23, s23, 1
    s_lshr_b32 s28, s2, 5
    s_add_u32 s23, s23, s28              ; rg
    s_and_b32 s24, s2, 6
    s_lshl_b32 s24, s24, 2
    s_add_u32 s24, s24, s28
    s_mul_i32 s54, s21, 5
    s_lshr_b32 s54, s54, 2
    s_mul_i32 s49, s20, 15360
    s_add_u32 s49, s49, {RED}
    s_and_b32 s28, s24, 30
    s_mul_i32 s35, s28, 21846
    s_lshr_b32 s35, s35, 16
    s_add_u32 s35, s35, 144              ; W1 lines of the first row block: (12+i)*12 + rb, lanes 0..10
    s_add_u32 s28, s28, 1
    s_mul_i32 s28, s28, 21846
    s_lshr_b32 s28, s28, 16
    s_add_u32 s28, s28, 12               ; second row block, lanes 11..21
    s_lshr_b32 s29, s21, 1
    s_mul_i32 s29, s29, 12
    s_sub_u32 s29, s29, 22
    s_lshl_b32 s30, s23, 1
    s_mul_i32 s31, s30, 21846
    s_lshr_b32 s31, s31, 16
    s_add_u32 s30, s30, 1
    s_mul_i32 s30, s30, 21846
    s_lshr_b32 s30, s30, 16
    s_lshr_b32 s34, s21, 2
    s_mul_i32 s34, s34, 12
    s_add_u32 s34, s34, 96
    s_add_u32 s31, s31, s34              ; Q line, first row block (lane 22)
    s_add_u32 s30, s30, s34              ; Q line, second row block (lanes 23..)
    v_min_u32 v1, 21, v7
    v_mad_u32_u24 v2, v1, 12, s35
    v_mad_u32_u24 v3, v1, 12, s28
    v_cmp_le_u32 vcc, 11, v7
    v_cndmask_b32 v2, v2, v3, vcc
    v_lshlrev_b32 v3, 7, v2
    v_add_u32 v{F1A}, {FP + FPD}, v3
    v_add_u32 v3, s29, v7
    v_cmp_le_u32 vcc, 22, v7
    v_cndmask_b32 v2, v2, v3, vcc
    v_mov_b32 v3, s31
    v_cmp_le_u32 vcc, 33, v7
    v_cndmask_b32 v2, v2, v3, vcc
    v_mov_b32 v3, s30
    v_cmp_le_u32 vcc, 34, v7
    v_cndmask_b32 v2, v2, v3, vcc
    v_lshlrev_b32 v2, 7, v2
    v_add_u32 v{FW}, {FP}, v2
    """)
    s2 = A()
    s2(f"""
    v_and_b32 v1, 15, v7                 ; i / m
    v_lshrrev_b32 v2, 4, v7              ; g
    v_lshrrev_b32 v3, 2, v1
    v_and_b32 v212, 3, v1
    v_lshl_add_u32 v6, v3, 3, v212
    v_cmp_le_u32 vcc, 20, v6
    v_cndmask_b32 v216, 0, 5, vcc
    v_lshlrev_b32 v220, 2, v216
    v_sub_u32 v220, v6, v220
    v_add_u32 v6, 4, v6
    v_cmp_le_u32 vcc, 20, v6
    v_cndmask_b32 v217, 0, 5, vcc
    v_lshlrev_b32 v221, 2, v217
    v_sub_u32 v221, v6, v221
    v_cmp_gt_u32 vcc, 8, v1
    v_cndmask_b32 v218, 64, 5, vcc
    v_add_u32 v222, 12, v1
    v_add_u32 v6, v3, v212
    v_cmp_le_u32 vcc, 3, v6
    v_cmp_le_u32 s[34:35], 2, v212
    s_or_b64 vcc, vcc, s[34:35]
    v_cndmask_b32 v219, 0, 5, vcc
    v_mov_b32 v223, 20
    v_mov_b32 v213, 255
    s_mov_b32 s37, {RED}
    """)
    for k in range(2):
        s2(f"""
        s_add_u32 s31, s54, {k}
        s_mul_i32 s32, s31, 205
        s_lshr_b32 s32, s32, 10
        s_mul_i32 s32, s32, 5
        s_sub_u32 s32, s31, s32
        s_cmp_eq_u32 s32, 2
        s_cselect_b32 s33, 1, 0
        s_cselect_b32 s36, 1, 4
        s_lshl_b32 s31, s31, 3
        s_mul_i32 s32, s21, 10
        s_sub_u32 s31, s31, s32
        v_lshlrev_b32 v3, s33, v2
        v_add_u32 v3, s31, v3
        """)
        for j in range(2):
            if j: s2("v_add_u32 v3, s36, v3")
            for tl in range(4):
                s2(f"""
                v_sub_u32 v212, v3, v{216+tl}
                v_cmp_gt_u32 vcc, 5, v212
                v_mad_u32_u24 v212, v3, 21, v{220+tl}
                v_cndmask_b32 v212, v213, v212, vcc
                v_lshl_add_u32 v{GA+tl*4+k*2+j}, v212, 3, s37
                """)
    fs = A()
    for i in range(3):
        fs(f"""
        v_add_u32 v6, {64*i}, v7
        v_mul_u32_u24 v1, 6554, v6
        v_lshrrev_b32 v1, 16, v1
        v_mul_u32_u24 v3, 1120, v1
        v_lshl_add_u32 v3, v6, 4, v3
        v_cmp_gt_u32 vcc, 160, v6
        v_add_u32 v1, v1, v6
        v_mov_b32 v6, {OOB}
        v_lshl_add_u32 v{240+i}, v1, 4, s49
        v_cndmask_b32 v{XA[i]}, v6, v3, vcc
        """)
    smap = {21: 76, 54: 77, 23: 78, 32: 80, 33: 81, 34: 82, 35: 83, 36: 46, 37: 47, 49: 25}
    vmap = {1: 64, 2: 65, 3: 66, 6: 67, 239: 184, 238: 185, 240: 186, 241: 187, 242: 188, 251: 189, 252: 190, 253: 191}
    out = []
    for x in h + s2 + fs:
        x = x.replace("s[34:35]", "s[82:83]")
        x = re.sub(r"\bs(\d+)\b", lambda m: f"s{smap.get(int(m.group(1)), int(m.group(1)))}", x)
        x = re.sub(r"\bv(\d+)\b", lambda m: f"v{vmap.get(int(m.group(1)), int(m.group(1)))}", x)
        out.append(x)
    return out + [f"  v_accvgpr_write_b32 a{204+i}, v{168+i}" for i in range(24)]

def phase2(st):
    a = A()
    G = 8; GR = 88; AR = 140; NA = 4; SA = 208; XB = 228; RP = 148
    AV = [244, 245, 246, 247]; RW = [248, 249, 250]; XA = [251, 252, 253]
    GA = 168; DB = 208; KA = 236; OA = 0; UA = 237; FW = 238
    g1 = OPT["gap1"]; psched = OPT["psched"]; wtr = OPT["wtrail"]; F1A = 239; OB = 235
    s1 = L(f"""
    s_cmp_eq_u32 s20, 0
    s_cselect_b32 s55, 0, {OOB}
    s_cselect_b64 s[56:57], -1, 0
    s_and_b32 s21, s2, 3
    s_lshl_b32 s21, s21, 2
    s_bfe_u32 s28, s2, 0x20003
    s_add_u32 s21, s21, s28              ; hp
    s_and_b32 s23, s2, 4
    s_lshl_b32 s23, s23, 1
    s_lshr_b32 s28, s2, 5
    s_add_u32 s23, s23, s28              ; rg
    v_accvgpr_read_b32 v{F1A}, a220
    v_accvgpr_read_b32 v{FW}, a221
    s_mul_i32 s54, s21, 5
    s_lshr_b32 s54, s54, 2               ; ksA
    s_lshl_b32 s60, s21, 12
    s_add_u32 s60, s60, {KVP}
    v_lshlrev_b32 v3, 4, v0
    v_cmp_gt_u32 vcc, 210, v0
    v_mov_b32 v6, {OOB}
    v_cndmask_b32 v{KA}, v6, v3, vcc
    s_lshl_b32 s76, s23, 1
    s_add_u32 s76, s76, s51
    """) + blk(63, 76, "q", 28, 29) + L(f"""
    s_xor_b32 s63, s63, s3
    s_lshl_b32 s30, s52, 11
    s_add_u32 s63, s63, s30
    s_add_u32 s62, s54, 1
    """) + cell(61, 54, 28) + cell(62, 62, 28) + L(f"""
    s_add_u32 s61, s61, s63
    s_add_u32 s62, s62, s63
    s_add_u32 s63, s63, {QSZ}
    """)
    s2 = A()
    s2(f"v_and_b32 v1, 15, v7\nv_lshrrev_b32 v2, 4, v7\ns_mov_b32 s37, {RED}")
    s2 += [f"  v_accvgpr_read_b32 v{r}, a{204+i}" for i, r in enumerate(PARK) if i not in (16, 17)]
    ol = L(f"buffer_load_dwordx4 v[208:211], v{KA}, s[16:19], s60 offen sc1 ;#P")
    ql = L(f"""
    buffer_load_dwordx4 a[240:243], v4, s[16:19], s61 offen sc1 ;#Q
    buffer_load_dwordx4 a[244:247], v4, s[16:19], s62 offen sc1 ;#Q
    buffer_load_dwordx4 a[248:251], v4, s[16:19], s61 offen offset:1024 sc1 ;#Q
    buffer_load_dwordx4 a[252:255], v4, s[16:19], s62 offen offset:1024 sc1 ;#Q
    """)
    s3 = A()
    s3(f"""
    s_and_b32 s64, s23, 3
    s_lshl_b32 s64, s64, 11
    s_and_b32 s28, s23, 4
    s_lshl_b32 s28, s28, 12
    s_add_u32 s64, s64, s28
    s_and_b32 s28, s23, 8
    s_lshl_b32 s28, s28, 10
    s_xor_b32 s28, s28, s3
    s_add_u32 s64, s64, s28
    s_lshl_b32 s28, s21, 7
    s_add_u32 s64, s64, s28
    s_add_u32 s64, s64, {FO}
    s_add_u32 s64, s64, s55
    s_mul_i32 s28, s21, 5
    v_add_u32 v3, s28, v2
    v_lshrrev_b32 v6, 3, v3
    v_lshlrev_b32 v6, 14, v6
    v_bfe_u32 v212, v3, 2, 1
    v_lshl_add_u32 v6, v212, {13 if OPT["mode"] in ("cols", "none") else 12}, v6
    v_and_b32 v3, 3, v3
    v_lshl_add_u32 v6, v3, 8, v6
    v_lshl_add_u32 v{OB}, v1, 4, v6
    s_add_u32 s28, s28, 4
    s_lshr_b32 s30, s28, 2
    """)
    s3 += cell(30, 30, 29)
    s3(f"""
    s_and_b32 s28, s28, 3
    s_lshl_b32 s28, s28, 8
    s_add_u32 s28, s28, s30
    v_lshl_add_u32 v3, v1, 4, s28
    v_lshl_add_u32 v3, v2, 3, v3
    v_cmp_gt_u32 vcc, 2, v2
    v_mov_b32 v6, {OOB}
    v_lshl_add_u32 v{UA}, v0, 3, s37
    v_cndmask_b32 v{OA}, v6, v3, vcc
    """)
    sA = A()
    sA += blk(40, 24, "h", 28, 29) + cell(30, 47, 29) + L(f"""
    s_xor_b32 s40, s40, s3
    s_add_u32 s44, s40, s30              ; own rows
    s_bitcmp1_b32 s24, 0
    s_cselect_b32 s28, {-HSZ & 0xffffffff}, {HSZ}
    s_add_u32 s45, s44, s28              ; partner rows (other block of the same page)
    """)
    for T in range(4):
        sA(f"s_add_u32 s28, s20, {T}\ns_and_b32 s28, s28, 3\ns_lshl_b32 s28, s28, 10\nv_add_u32 v{AV[T]}, s28, v4")
    osum = W("P") + L(f"v_cvt_pk_bf16_f32 v208, v208, v209\nv_cvt_pk_bf16_f32 v209, v210, v211\nds_write_b64 v{UA}, v[208:209]")
    ogat = [f"  ds_read_b64 {ar(204+2*n,2)}, v{GA+n}" for n in range(16)]
    om = []
    for k in range(2):
        for T in range(2):
            for tl in (3, 0, 1, 2):
                d = vr(DB + 16*T + 4*tl)
                om.append(f"  v_mfma_f32_16x16x32_bf16 {d}, {ar(204+tl*8+k*4)}, {ar(240+T*8+k*4)}, {'0' if k == 0 else d}")
    ofin = []
    for T in range(2):
        o = A(); b = DB + 16*T; z = b + 12; pk = GA + 6*T
        for r in range(3): o(f"v_add_f32 v{z+r}, 0x358637bd, v{z+r}")
        for r in range(3): o(f"v_rcp_f32 v{z+r}, v{z+r}")
        for tl in range(3):
            for r in range(4): o(f"v_mul_f32 v{b+4*tl+r}, v{b+4*tl+r}, v{z+tl}")
        for i in range(6): o(f"v_cvt_pk_bf16_f32 v{pk+i}, v{b+2*i}, v{b+2*i+1}")
        o(f"buffer_store_dwordx4 {vr(pk)}, v2, s[16:19], s63 offen offset:{1024*T} sc1 ;#OS")
        o(f"buffer_store_dwordx2 {vr(pk+4,2)}, v{OA}, s[16:19], s63 offen offset:{1024*T} sc1 ;#OS")
        ofin.append(list(o))
    fs = A()
    fs(f"""
    s_lshl_b32 s42, s24, 2
    s_add_u32 s42, s42, s20
    s_lshr_b32 s30, s24, 1
    s_and_b32 s28, s30, 3
    s_lshl_b32 s28, s28, 11
    s_and_b32 s29, s30, 4
    s_lshl_b32 s29, s29, 12
    s_add_u32 s28, s28, s29
    s_and_b32 s29, s30, 8
    s_lshl_b32 s29, s29, 10
    s_xor_b32 s29, s29, s3
    s_add_u32 s28, s28, s29
    s_add_u32 s28, s28, {FO}
    v_min_u32 v6, 15, v7
    v_lshl_add_u32 v{VF-1}, v6, 7, s28
    s_mul_i32 s48, s42, {16*1280}
    s_mul_i32 s28, s25, 160
    s_add_u32 s48, s48, s28
    """)
    fs += blk(42, 24, "o", 28, 29)
    fs(f"""
    s_xor_b32 s42, s42, s3
    s_lshl_b32 s28, s20, 10
    s_add_u32 s42, s42, s28
    s_mul_i32 s49, s20, 15360
    s_add_u32 s49, s49, {RED}
    v_mul_u32_u24 v243, 176, v1
    v_lshl_add_u32 v243, v2, 3, v243
    v_add_u32 v243, s49, v243            ; result write: row stride 176
    """)
    for T in range(1, 4):
        fs(f"s_add_u32 s28, s20, {T}\ns_and_b32 s28, s28, 3\ns_mul_i32 s28, s28, 15360\ns_add_u32 s28, s28, {RED + (T-1)*5120}\nv_add_u32 v{RW[T-1]}, s28, v4")
    fs(f"""
    v_add_u32 v1, s49, v4
    v_mov_b32 v2, v{OB}
    s_and_b32 s28, s24, 15
    s_lshl_b32 s28, s28, 3
    s_add_u32 s28, s28, s25
    s_lshl_b32 s28, s28, 2
    s_add_u32 s28, s28, s20
    """)
    fs += cell(65, 28, 29)
    fs(f"""
    s_add_u32 s65, s65, {GXP*PG}
    s_lshr_b32 s28, s65, 21
    s_lshr_b32 s29, s24, 4
    s_xor_b32 s28, s28, s29
    s_and_b32 s28, s28, 1
    s_lshl_b32 s28, s28, 13
    s_xor_b32 s28, s28, s3
    s_add_u32 s65, s65, s28
    s_xor_b32 s66, s65, {16*16384}
    s_add_u32 s72, s66, 3072
    s_add_u32 s73, s65, 3072
    """)
    MG = OPT["mg"]
    SL = OPT["slots"]; RL = max(i for i, x in enumerate(SL) if x[0] == "r")
    def areg(s): return 204 if s == 13 else AR + (s % NA)*16
    def ldA(s):
        r_, j = SL[s]
        r = [f"  s_add_u32 s41, s{45 if r_ == 'r' else 44}, {65536*j}"]
        if j == 6: r += L(f"s_cmp_lt_u32 s20, 3\ns_cselect_b32 s41, s41, {OOB}")
        return r + [f"  buffer_load_dwordx4 {ar(areg(s)+4*T)}, v{AV[T]}, s[16:19], s41 offen sc1 ;#A{s}{'abcd'[T]}" for T in ((1, 2, 3, 0) if s >= MG else range(4))]
    a("k_p2:\n;MARK ep")
    for i in range(7): a(f";MARK B{i}")
    for i in range(5): a(f";MARK wo{i}")
    a += stamp("eend")
    gs = grp(st.take(g1), 2)
    gs.insert(len(gs) - OPT["poll_early"], poll(F1A, VF, "p1", "s55"))
    allsu = glue(s1 + sA + s2 + s3 + fs); k1 = OPT["su1"]; k2 = OPT["su2"]
    assert k1 >= len(glue(s1 + sA))
    flat = lambda l: sum(l, [])
    p1at = next(i for i, x in enumerate(allsu) if f"v_accvgpr_read_b32 v{F1A}," in x[0]) + 1
    a += inter(flat(allsu[:k1]), gs, p1at if OPT["poll_early"] >= len(gs) - 2 else 0)
    a += W("ep") + L("s_barrier") + flag("s67", 224) + stamp("flag")
    a += W("p1") + L("s_mov_b64 s[58:59], vcc") + check("k_s1", F1A, VF, True) + L("s_mov_b64 vcc, s[58:59]") + stamp("c1")
    pre = grp(ldA(2), 1)
    if OPT["pp2"] < 0: pre.append(poll(FW, VF, "p2", "s55"))
    a += ldA(0) + ldA(1) + inter(flat(allsu[k1:k2]), pre)
    if min(OPT["xs"]) < OPT["c2"]:
        kx = max(i for i, x in enumerate(allsu) if "s_add_u32 s49, s49," in x[0]); assert kx < k2, (kx, len(allsu))
    late = allsu[k2:]; nl = OPT["c2"]
    late = {i: flat(late[i*len(late)//nl:(i+1)*len(late)//nl]) for i in range(nl)}
    def ldO(i0, n):
        r = []
        for i in range(i0, i0 + n):
            if OPT["mode"] in ("cols", "none"):
                r += [f"  s_add_u32 s43, s42, {8192*i}", f"  buffer_load_dwordx4 {ar(4*i)}, v4, s[16:19], s43 offen sc1 ;#O{i}"]; continue
            if i % 2 == 0 or i == i0: r.append(f"  s_add_u32 s43, s42, {16384*(i//2)}")
            r.append(f"  buffer_load_dwordx4 {ar(4*i)}, v{4 + (i & 1)}, s[16:19], s43 offen sc1 ;#O{i}")
        return r
    ldX = [[f"  s_add_u32 m0, s49, {4096 + 1024*i}", "  s_nop 0", f"  buffer_load_dwordx4 v{XA[i]}, s[8:11], s48 offen lds ;#X"] for i in range(3)]
    rdX = L("v_add_u32 v2, 51200, v4\nv_and_b32 v3, 15, v7\nv_lshlrev_b32 v3, 4, v3\nv_sub_u32 v3, v243, v3") + W("X") + tag([f"  ds_read_b64 {vr(XB+2*t,2)}, v3 offset:{4096+32*t}" for t in range(5)], "xr")
    NB = 3
    def sb(s, t): return vr(GR + 20*(s % NB) + 4*t)
    def rdB(s): return tag([f"  ds_read_b128 {sb(s,t)}, v{4 if s < 10 else 2} offset:{(s%10)*5120+1024*t}" for t in range(5)], f"b{s}")
    wr_ = tag([f"  ds_write_b128 v{RW[T-1]}, {vr(G+(T*5+t)*4)} offset:{1024*t}" for T in range(1, 4) for t in range(5)], "w")
    rd_ = tag([f"  ds_read_b128 {vr(G+20+4*j)}, v1 offset:{1024*j}" for j in range(15)], "r")
    xw = tag([f"  ds_write_b128 v{RW[T-1]}, {vr(GR+(T*5+t)*4)} offset:{1024*t}" for T in range(1, 4) for t in range(5)], "xw")
    xr = tag([f"  ds_read_b128 {vr(GR+20+20*j+4*t)}, v1 offset:{5120*j+1024*t}" for t in range(5) for j in range(3)], "xr")
    xa = []
    for t in range(5):
        xa += [f"  v_add_f32 v{GR+4*t+i}, v{GR+4*t+i}, v{GR+20+20*j+4*t+i}" for j in range(3) for i in range(4)]
        xa += [f"  v_cvt_pk_bf16_f32 v{GA+2*t+i}, v{GR+4*t+2*i}, v{GR+4*t+2*i+1}" for i in range(2)]
        if t in (1, 3): xa.append(f"  buffer_store_dwordx4 {vr(GA+2*t-2)}, v4, s[16:19], s66 offen offset:{512*(t-1)} sc1 ;#XS")
    xa += L(f"v_lshlrev_b32 v0, 3, v7\nbuffer_store_dwordx2 {vr(GA+8,2)}, v0, s[16:19], s66 offen offset:2048 sc1 ;#XS")
    xl = [f"  buffer_load_dwordx4 {vr(GA+4*t)}, v4, s[16:19], s65 offen offset:{1024*t} sc1 ;#XL" for t in range(2)] + [f"  buffer_load_dwordx2 {vr(GA+8,2)}, v0, s[16:19], s65 offen offset:2048 sc1 ;#XL"]
    XF, XP, XC = OPT["xf"], OPT["xp"], OPT["xc"]
    xpoll = L(f"v_mov_b32 v{VF-1}, s73") + poll(VF-1, VF, "xp")
    C2 = OPT["c2"]; plan = OPT["aplan"]; OFS = OPT["ofs"]; PO = OPT["po"]; PC = OPT["pc"]; osched = OPT["osched"]
    no = 0
    XU = 184
    xu = []
    for i in range(10): xu += [f"  v_lshlrev_b32 v{XU+2*i}, 16, v{XB+i}", f"  v_and_b32 v{XU+2*i+1}, 0xffff0000, v{XB+i}"]
    def wdone(g): return ("W", 5*g + 4) not in st.items
    def mf(s, T, rev):
        r_, j = SL[s]; GG = GR if r_ == "r" else G; first = all(x[0] != r_ for x in SL[:s])
        return [f"  v_mfma_f32_16x16x32_bf16 {vr(GG+(T*5+t)*4)}, {breg(j,t)}, {ar(areg(s)+4*T)}, {'0' if first else vr(GG+(T*5+t)*4)}" for t in (range(4, -1, -1) if rev else range(5))]
    nm = 14 - MG; WB = OPT["wb"]
    for s in range(MG + 4):
        if s < MG:
            need = [f"A{s}{c}" for c in "abcd"] + [f"B{SL[s][1]}"]; assert ("B", 5*SL[s][1] + 4) not in st.items
            M = sum((mf(s, T, k & 1) for k, T in enumerate((1, 2, 3, 0) if s == RL else range(4))), [])
        else:
            T = (1, 2, 3, 0)[s - MG]
            need = [f"A{x}{'abcd'[T]}" for x in range(MG, 14)]
            M = sum((mf(x, T, False) for x in range(MG, 14)), [])
        if s == XF: need.append("XS")
        vm = need + (["op"] if s == PC else []) + ([f"wo{g}" for g in range(5) if g not in wtr] if s == WB else []) + (["OS"] if s == OFS else []) + (["p2"] if s == C2 else [])
        if s == WB: assert all(wdone(g) for g in range(5) if g not in wtr)
        OQ = OPT["oq"]; OM = C2 + (1 if OQ else 2)
        a += W(vm, "*" if (s in (RL, RL if OPT["xw"] else RL + 2) or (s == C2 + 2 and not OQ)) else ())
        a += stamp(f"g{s}")
        if s == C2: a += check("k_sw", FW, VF, True) + stamp("w1")
        if s == PC: a += check("k_so", VF-1, VF, True) + stamp("op")
        if s != PC and s in (OFS, -1 if OQ else C2 + 2, WB, RL, MG + 1): a("s_barrier")
        ls = []; n = len(M)
        for x in plan.get(s, []): assert (SL[x][1] < 2 or s >= C2) and (x - s <= 3 or (x == 13 and s > C2 + 3))
        v = sum((ldA(x) for x in plan.get(s, [])), [])
        if s == C2: v = ol + ql + v
        if s == OFS: v = flag("s64") + v
        if s == XF: v = flag("s72") + v
        if s == XP: assert s > PC; v = xpoll + v
        if s == PO: v = poll(VF-1, VF, "op", "s55") + v
        if s == OPT["pp2"]: v = poll(FW, VF, "p2", "s55") + v
        if late.get(s): ls.append((late[s], 0, n - 1))
        if s in OPT["xs"]: v += sum([ldX[i] for i, x in enumerate(OPT["xs"]) if x == s], [])
        if psched.get(s): v += st.take(psched[s])
        if osched.get(s): v += ldO(no, osched[s]); no += osched[s]
        ls.append((v, 0, n - 2))
        if OQ:
            if s == C2 + 1: ls += [(osum, OQ, OQ + 1), (L("s_waitcnt lgkmcnt(0)\ns_barrier"), OQ + 4, OQ + 4), (ogat, OQ + 5, min(OQ + 10, 19))]
        else:
            if s == C2 + 1: ls.append((osum, 16, 19))
            if s == C2 + 2: ls.insert(0, (ogat, 0, 10))
        if s == OM + 1: ls.append((ofin[0] + ofin[1], 1, 19))
        if s == OPT["xr"]: assert s < RL and s != OFS and s > OM + 1; ls.insert(0, (rdX, 0, 8))
        if OPT["xw"] == 0:
            if s == RL: ls += [(xw[:5], 10, 14), (xw[5:10], 15, 19)]
            if s == RL + 1: ls += [(xw[10:], 0, 5), (L("s_waitcnt lgkmcnt(0)\ns_barrier"), 9, 9), (xr, 10, 19)]
            if s == RL + 2: ls.append((xa[:OPT["xcut"]], 0, n - 1))
            if s == RL + 3: ls.append((xa[OPT["xcut"]:], 0, n - 1))
        else:
            if s == RL: ls.append((xw[:4], 9, 19))
            if s == RL + 1: ls.append((xw[4:11], 0, 19))
            if s == RL + 2: ls += [(xw[11:], 0, 9), (L("s_waitcnt lgkmcnt(0)\ns_barrier"), 12, 12), (xr, 13, 19)]
            if s == RL + 3:
                a += L("s_waitcnt lgkmcnt(0)") + [";@align on"] + [f"  v_pk_add_f32 {vr(GR+2*i,2)}, {vr(GR+2*i,2)}, {vr(GR+20+20*j+2*i,2)}" for j in range(3) for i in range(10)] + [";@align off"]
                ls.append(([x for x in xa if "v_add_f32" not in x], 0, n - 1))
        if s > MG: ls.append((wr_[5*(s-MG-1):5*(s-MG)], 2, n - 1))
        if s == MG + 2: ls.append((xu, 0, n - 1))
        if s == MG + 3: ls.append((rdB(0) + rdB(1), 0, n - 2))
        a += place(M, ls)
        if s == OM: a += W("Q", "*") + stamp("om") + place(om, [(st.take(OPT["pom"]), 0, 15)])
    a += stamp("gend")
    E = G + 20
    VB = []
    for j in range(3):
        for i in range(10): VB.append(f"  v_pk_add_f32 {vr(G+2*i,2)}, {vr(G+2*i,2)}, {vr(G+20+20*j+2*i,2)}")
    VC = []
    for i in range(10): VC += [f"  v_lshlrev_b32 v{RP+2*i}, 16, v{GA+i}", f"  v_and_b32 v{RP+2*i+1}, 0xffff0000, v{GA+i}"]
    VC += [f"  v_pk_add_f32 {vr(G+2*i,2)}, {vr(G+2*i,2)}, {vr(RP+2*i,2)}" for i in range(10)]
    VC += [f"  v_pk_mul_f32 {vr(E+2*i,2)}, {vr(G+2*i,2)}, s[30:31]" for i in range(10)]
    VA = [f"  v_add_f32 v{G+i}, v{G+i}, v{G+20+20*j+i}" for j in range(3) for i in range(20)]
    V = []
    V += [f"  v_exp_f32 v{E+i}, v{E+i}" for i in range(20)]
    V += [f"  v_add_f32 v{E+i}, 1.0, v{E+i}" for i in range(20)]
    V += [f"  v_rcp_f32 v{E+i}, v{E+i}" for i in range(20)]
    V += [f"  v_mul_f32 v{G+i}, v{G+i}, v{E+i}" for i in range(20)]
    V0 = OPT["v0"]; RB = OPT["rb"]; LK = NB - 1; P0 = MG + 4
    V1 = OPT["v1"]; pa = -(-60//(V1 - V0))
    cost = [8 if ("exp" in x or "rcp" in x) else 4 for x in V]; tot = sum(cost); parts = [[] for _ in range(20 - V1)]; c_ = 0
    for x, c in zip(V, cost): parts[min(len(parts) - 1, c_*len(parts)//tot)].append(x); c_ += c
    for s in range(20):
        wg = [g for g, st_ in wtr.items() if st_ == s]
        for g in wg: assert s + LK <= 4*g and wdone(g)
        a += W([f"O{s}"] + [f"wo{g}" for g in wg] + (["XS"] if P0 + s == XF else []) + (["xp"] if P0 + s == XC else []) + (["XL"] if s == V1 else []), [f"b{s}"] + (["w"] if s == RB else []) + (["r"] if s == V0 else []))
        if s == RB or wg: a("s_barrier")
        a += stamp(f"s{s}")
        if P0 + s == XC: a += check("k_sx", VF-1, VF) + stamp("xc")
        if s == V1: a += [";@align on"] + VC + [";@align off"]
        M = [f"  v_mfma_f32_16x16x32_bf16 {vr(SA+4*t)}, {sb(s,t)}, {ar(4*s)}, {'0' if s == 0 else vr(SA+4*t)}" for t in range(5)]
        ls = []
        if s + LK < 20: ls.append((rdB(s+LK), 0, 4))
        v = []
        if P0 + s == XF: v += flag("s72")
        if P0 + s == XP: v += xpoll
        if P0 + s == XC: v += xl
        if psched.get(P0 + s): v += st.take(psched[P0 + s])
        if osched.get(P0 + s): v += ldO(no, osched[P0 + s]); no += osched[P0 + s]
        ls.append((v, 0, 4))
        if s == 0: ls.append((L(f"s_mov_b32 s30, {LOG2E|0x80000000}\ns_mov_b32 s31, {LOG2E|0x80000000}"), 0, 4))
        if RB <= s < RB + 3: ls.append((rd_[5*(s-RB):5*(s-RB)+5], 0, 4))
        if V0 <= s < V1: ls.append((VA[(s-V0)*pa:(s-V0+1)*pa], 0, 4))
        if s >= V1: ls.append((parts[s-V1], 0, 4))
        a += place(M, ls)
    assert no == 20 and not st.items, (no, st.items)
    a += stamp("send")
    for t in range(5):
        for i in range(2): a(f"v_pk_fma_f32 {vr(SA+4*t+2*i,2)}, {vr(SA+4*t+2*i,2)}, {vr(G+4*t+2*i,2)}, {vr(XU+4*t+2*i,2)}")
        for i in range(2): a(f"v_cvt_pk_bf16_f32 v{XB+2*t+i}, v{SA+4*t+2*i}, v{SA+4*t+2*i+1}")
        a(f"ds_write_b64 v243, {vr(XB+2*t,2)} offset:{32*t}")
    a(";@align off\ns_waitcnt lgkmcnt(0)")
    for i in range(3): a(f"ds_read_b128 {vr(E+4*i)}, v{240+i}")
    for i in range(3): a(f"s_waitcnt lgkmcnt({2-i})\nbuffer_store_dwordx4 {vr(E+4*i)}, v{XA[i]}, s[4:7], s48 offen")
    a += stamp_out()
    return resolve(a)

def build():
    OUTL.clear()
    pro = prologue()
    br = L("s_cmp_lt_u32 s22, 8\ns_cbranch_scc1 k_kv")
    if OPT["pol"] == "race":
        br += L("s_cmp_eq_u32 s21, 11\ns_cbranch_scc1 k_race")
        OUTL("k_race:")
        if OPT["touch"] == 1: OUTL.extend(d_touch())
        OUTL("s_mov_b64 s[36:37], s[74:75]")
        OUTL.extend(d_misc())
        OUTL("s_waitcnt vmcnt(0)\ns_barrier")
        OUTL.extend(flag("s49"))
        OUTL(f"""
        s_cmp_lg_u32 s20, 0
        s_cbranch_scc1 k_race2
        s_cmp_eq_u32 s2, 255
        s_cbranch_scc1 k_race2
        s_bfe_u32 s29, s2, 0x10003           ; 239 -> 1, 247 -> 0
        s_lshl_b32 s28, s29, 13
        s_add_u32 s28, s28, {RACE}
        v_lshlrev_b32 v6, 25, v7
        s_mov_b32 s56, s36
        s_and_b32 s57, s37, 0xffff
        s_mov_b32 s58, 256
        s_mov_b32 s59, 0x20000
        v_mov_b32 v3, 0
        buffer_atomic_add v3, v6, s[16:19], s28 offen sc0
        v_mov_b32 v1, 1
        s_mov_b32 s30, 12
        s_mov_b32 s31, 1
        s_waitcnt vmcnt(0)
        k_race0:
        buffer_atomic_add v1, v6, s[56:59], 0 offen offset:4 sc0
        s_sub_u32 s30, s30, 1
        s_waitcnt vmcnt(0)
        v_readfirstlane_b32 s38, v1
        v_mov_b32 v1, 0
        s_and_b32 s38, s38, 1
        s_cmp_eq_u32 s38, s31                ; first trip: odd = partner is there; later trips: even
        s_cselect_b32 s30, 0, s30
        s_mov_b32 s31, 0
        s_cmp_lg_u32 s30, 0
        s_cbranch_scc1 k_race0
        s_mov_b32 s30, {OPT['trips']}
        k_race1:
        v_mov_b32 v3, 0
        buffer_atomic_add v3, v6, s[16:19], s28 offen sc0
        s_sub_u32 s30, s30, 1
        s_cmp_lg_u32 s30, 0
        s_waitcnt vmcnt(0)
        s_cbranch_scc1 k_race1
        v_mov_b32 v3, 1
        buffer_atomic_add v3, v6, s[56:59], 0 offen sc0
        s_xor_b32 s29, s29, 1
        s_lshl_b32 s29, s29, 13
        s_xor_b32 s29, s29, s39
        s_waitcnt vmcnt(0)
        v_readfirstlane_b32 s30, v3
        v_mov_b32 v3, s29
        s_nop 0
        s_bitcmp0_b32 s30, 0
        s_cselect_b32 s28, {PW}, {OOB}
        buffer_store_dword v3, v6, s[16:19], s28 offen sc1
        k_race2:
        """)
        OUTL.extend((d_cs() if OPT["keep"] < 1 else []) + [f"  s_mov_b32 s{r}, {OOB}" for r in (61, 62, 63, 75, 80, 81, 82, 83)] + [f"  v_add_u32 v{L2B+i}, {2*STAGE}, v{LA+i}" for i in range(5)] + L("s_branch k_t_join"))
    items = [("B", i) for i in range(35)] + [("W", i) for i in range(25)]
    st_t = Stream(items); st_n = Stream(items)
    mt = g1_main("k_t", True, st_t)
    mt += L("s_waitcnt lgkmcnt(0)\ns_cmp_lt_u32 s22, 12\ns_cbranch_scc1 k_q")
    eq = epi_t("phi", Stream(st_t.items)); es = epi_t("silu", st_t)
    mn = g1_main("k_n", False, st_n)
    ek = epi_kv(st_n)
    assert st_n.items == st_t.items
    n0 = len(resolve(pro + br))
    a = resolve(pro + br + mt) + es + phase2(st_t) + L("s_endpgm\nk_q:") + eq + L("s_branch k_p2\nk_kv:") + resolve(pro + br + mn + ek)[n0:] + L("s_branch k_p2")
    a += L("k_end:\ns_endpgm") + OUTL
    body, added = haz.fix(a)
    body, nbytes, nn, npm = align.align([x.replace("CODE_KB", "40").replace("CODE_MAX", "44444") for x in body])
    kb = (nbytes + 1023)//1024; assert kb <= 64
    body = [x.replace("s_cmp_ge_u32 s28, 40", f"s_cmp_ge_u32 s28, {kb if OPT.get('cpf', 1) else 0}").replace("44444", str((nbytes - 16) & ~15)) for x in body]
    body = [re.sub(r"\s*;(#\S+|nocount|C)$", "", x) for x in body]
    print("instrs", len(body), "nops added", added, "bytes", nbytes, "align nops", nn, "promoted", npm, file=sys.stderr)
    if OPT.get("nost"): body = [x for x in body if not ("buffer_store_dwordx4" in x and "s[76:79]" in x)]
    if OPT.get("cyc"): body = [x.replace("s_memrealtime", "s_memtime") for x in body]
    out = ["; @launch grid=(256,1,1) block=(256,1,1) lds=163840",
           '.amdgcn_target "amdgcn-amd-amdhsa--gfx950"\n.text', khead(NAME)] + body
    if DIAG: out.append(";ST " + " ".join(OPT["st"][:7]) + "\n;OPTS " + " ".join(x for x in sys.argv[3:] if not x.startswith("st=")))
    out.append('.section .rodata,"a"\n.p2align 6\n' + kd(NAME, 512, 256, 102))
    return "\n".join(out) + "\n"
if __name__ == "__main__":
    for x in sys.argv[2:]:
        if x == "d": DIAG = True
        else:
            k, v = x.split("=", 1); OPT[k] = eval(v)
    src = build()
    open(sys.argv[1], "w").write(src)
```

```python
import sys, re
from asmlib import kd, khead
import haz, align

NAME = "recurrent_scan__linear_attn_block__dense_activation_silu__prompt_kernel"
S, D, F = 2048, 640, 1728
FA = 0x8000
FP = 0xF0000
FPD = 0x9000 - 144*128
FO = 0x38000
NEGM = 0x10000; RSTD = 0x12000
CSP = 0x14000
KVP   = 0x40000
PG = 1 << 21
PW = 0xC8000
RACE = 0xC0000
WPP = 1
HOF = 74*16384; HSZ = 27*16384
QPP = 9; QSZ = 10*16384
GXP = 13
WS_USED = 15*PG
TS = 0x1F00000
def blk(dst, rb, kind, t0, t1):
    sh, pg, msk, sz, of = (1, WPP, 1, HSZ, HOF) if kind == "h" else (2, QPP, 3, 2*QSZ, QSZ if kind == "o" else 0)
    return L(f"""
    s_and_b32 s{t0}, s{rb}, 15
    s_lshr_b32 s{t0}, s{t0}, {sh}
    s_add_u32 s{t0}, s{t0}, {pg}
    s_lshr_b32 s{t1}, s{rb}, 4
    s_xor_b32 s{t1}, s{t1}, s{t0}
    s_and_b32 s{t1}, s{t1}, 1
    s_lshl_b32 s{t1}, s{t1}, {12 if OPT["mode"] in ("cols", "none") else 13}
    s_lshl_b32 s{t0}, s{t0}, 21
    s_add_u32 s{t0}, s{t0}, s{t1}
    s_and_b32 s{t1}, s{rb}, {msk}
    s_mul_i32 s{t1}, s{t1}, {sz}
    s_add_u32 s{t0}, s{t0}, s{t1}
    s_add_u32 s{dst}, s{t0}, {of}
    """)
def cell(dst, idx, t0):
    return L(f"s_lshr_b32 s{t0}, s{idx}, 1\ns_lshl_b32 s{t0}, s{t0}, 14\ns_and_b32 s{dst}, s{idx}, 1\ns_lshl_b32 s{dst}, s{dst}, {13 if OPT['mode'] in ('cols', 'none') else 12}\ns_add_u32 s{dst}, s{dst}, s{t0}")
LOG2E = 0x3fb8aa3b
OOB = 0x40000000
STAGE = 45056; WOFF = 24576; SPARE = 3*STAGE
AUXC = SPARE; AUXM = SPARE + 6400
CSL = SPARE + 8192
PACKL = SPARE
KVX = SPARE + 10240
RED = 102400
DIAG = False
OPT = dict(spin=200000, pkd=1, pkr=3, pks={4: 3, 5: 2}, flagb=3, flagb_n=2, pollb=6,
           pf_t={15:5,16:5,17:5,18:5,19:7}, pf_n={15:4,16:4,17:4,18:5,19:5}, epi_n=[6, 5, 5, 5, 5, 0], kv_first=0,
           epi=[5, 3, 3, 3, 2, 3, 2], oq=9, f1blk=4, f1pos=2, gap1=4, poll_early=1, c2=2, pom=0,
           slots=[("r",0),("r",1),("o",0),("o",1),("r",2),("r",3),("r",4),("r",5),("r",6),("o",2),("o",3),("o",4),("o",5),("o",6)],
           aplan={0:[3],2:[4],3:[5,6],4:[7],5:[8],6:[9],7:[10],8:[13],9:[11,12]},
           mg=11, wb=12, xr=6, rb=1, burst=1, su1=95, su2=200, pe1=200, pp2=0,
           psched={0:2,1:2,10:4}, xs=[1, 1, 1], ofs=7, po=10, pc=12, xcut=44, xf=14, xp=17, xc=21, v1=11,
           osched={12:4,13:4,14:4,15:2,16:2,17:2,19:2}, xw=2, xup=9, nbuf=3, v0=5, nopk=1, adist=3, p2map=1, su_pre=200, su_pre_n=160, sleep=2, rot=0, snake=1, krot=0, fash=4, wtrail={4: 1}, wrow=1, wfirst=0, sufirst=0, keep=2, swarm=0, touch=1, slin=0, head=2, w1first=0, cmaj=0, pol="race", mode="rows", trips=8, cpf2=12,
           st=["eend", "w1", "g11", "op", "gend", "s5", "send"])

class A(list):
    def __call__(self, s):
        for x in s.strip("\n").split("\n"):
            x = x.strip()
            m = re.match(r"s_cselect_b32 (s\d+), (\d+|0x[0-9a-f]+), (\d+|0x[0-9a-f]+)\s*(;.*)?$", x)
            if m and int(m.group(2), 0) > 64 and int(m.group(3), 0) > 64:
                self.append(f"  s_mov_b32 {m.group(1)}, {m.group(3)}")
                x = f"s_cselect_b32 {m.group(1)}, {m.group(2)}, {m.group(1)}"
            if x: self.append(("" if x.endswith(":") else "  ") + x)
        return self
def L(s): return list(A()(s))
def stamp(name):
    if not DIAG: return []
    if name == "entry": i = 0
    elif name in OPT["st"][:7]: i = 1 + OPT["st"].index(name)
    else: return []
    return [f"  s_memrealtime s[{84+2*i}:{85+2*i}]"]
def stamp_out():
    if not DIAG: return []
    if OPT.get("echo") is not None:
        i = OPT["echo"]
        return L(f"""
        s_waitcnt vmcnt(0)
        s_memrealtime s[100:101]
        s_waitcnt lgkmcnt(0)
        s_sub_u32 s28, s{84+2*i}, s84
        s_cmp_gt_u32 s28, 4000
        s_cselect_b32 s28, 0, s28
        s_add_u32 s28, s28, 5000
        k_echo:
        s_memrealtime s[30:31]
        s_waitcnt lgkmcnt(0)
        s_sub_u32 s29, s30, s84
        s_cmp_lt_u32 s29, s28
        s_cbranch_scc1 k_echo
        """)
    r = L(f"""
    s_waitcnt vmcnt(0)
    s_memrealtime s[100:101]
    s_waitcnt lgkmcnt(0)
    s_lshl_b32 s28, s2, 2
    s_add_u32 s28, s28, s20
    s_lshl_b32 s28, s28, 6
    s_add_u32 s28, s28, {TS}
    v_mov_b32 v1, s28
    """)
    for i in range(9): r += [f"  v_mov_b32 v3, s{84+2*i}", f"  global_store_dword v1, v3, s[26:27] offset:{4*i if i < 8 else 48}"]
    r += ["  v_mov_b32 v3, s22", "  global_store_dword v1, v3, s[26:27] offset:60"]
    r += ["  s_getreg_b32 s28, hwreg(HW_REG_XCC_ID)", "  s_and_b32 s28, s28, 15", "  v_mov_b32 v3, s28", "  global_store_dword v1, v3, s[26:27] offset:56"]
    return r
def vr(b, n=4): return f"v[{b}:{b+n-1}]" if n > 1 else f"v{b}"
def ar(b, n=4): return f"a[{b}:{b+n-1}]" if n > 1 else f"a{b}"
def srd(d, lo, nbytes):
    return L(f"s_mov_b32 s{d}, s{lo}\ns_and_b32 s{d+1}, s{lo+1}, 0xffff\ns_mov_b32 s{d+2}, {nbytes}\ns_mov_b32 s{d+3}, 0x20000")
def isvm(x): return x.strip().startswith(("buffer_", "global_"))
def islg(x): return x.strip().startswith("ds_")
def tag(lines, t): return [x + f" ;#{t}" if (isvm(x) or islg(x)) else x for x in lines]
def W(vm=(), lg=()):
    vm = [vm] if isinstance(vm, str) else list(vm); lg = [lg] if isinstance(lg, str) else list(lg)
    return [f"  ;WAIT vm={','.join(vm)} lg={','.join(lg)}"]
def resolve(lines):
    out = []; vm = []; lg = []
    for x in lines:
        t = x.strip()
        if t.startswith(";MARK"):
            nm = t.split()[1]; vm.append(("m", nm)); lg.append(("m", nm)); continue
        if t.startswith(";WAIT"):
            m = re.match(r";WAIT vm=(\S*) lg=(\S*)", t); parts = []
            for names, hist, cn, mx in ((m.group(1), vm, "vmcnt", 63), (m.group(2), lg, "lgkmcnt", 15)):
                if not names: continue
                names = names.split(",")
                if names == ["*"]: parts.append(f"{cn}(0)"); continue
                idx = [i for i, h in enumerate(hist) if h[1] in names]
                for nme in names: assert any(h[1] == nme for h in hist), ("unknown tag", nme)
                n = sum(1 for h in hist[max(idx)+1:] if h[0] == "o")
                parts.append(f"{cn}({min(n, mx)})")
            out.append("  s_waitcnt " + " ".join(parts)); continue
        tg = re.search(r";#(\S+)", t); nm = tg.group(1) if tg else None
        kind = "n" if ";nocount" in t else "o"
        if isvm(x): vm.append((kind, nm))
        elif islg(x): lg.append((kind, nm))
        out.append(x)
    return out
def glue(lines):
    out = []; cur = []
    for x in lines:
        t = x.strip()
        if cur and not t.startswith(("s_cselect", "s_addc", "s_cbranch", "s_mov_b32")) and not t.endswith(":"):
            out.append(cur); cur = []
        if t.startswith(("s_cmp", "s_bitcmp")) or cur or (t.startswith("s_add_u32") and ";C" in t): cur.append(x)
        else: out.append([x])
    if cur: out.append(cur)
    return out
def place(M, lists):
    gaps = [[] for _ in M]
    for items, g0, g1 in lists:
        if not items: continue
        items = glue(items); n = g1 - g0 + 1
        for k, x in enumerate(items): gaps[g0 + k*n//len(items)] += x
    out = []
    for m, g in zip(M, gaps): out += [m] + g
    return out
def inter(main, groups, first=0):
    main = glue(main); out = []; n = len(main); G = len(groups); gi = 0
    for i, x in enumerate(main):
        while gi < G and i >= first + gi*(n - first)//G: out += groups[gi]; gi += 1
        out += x
    while gi < G: out += groups[gi]; gi += 1
    return out
def grp(lines, k):
    out = []; cur = []
    for x in lines:
        if isvm(x) and sum(map(isvm, cur)) == k:
            tail = []
            while cur and not isvm(cur[-1]): tail.insert(0, cur.pop())
            out.append(cur); cur = tail
        cur.append(x)
    if cur: out.append(cur)
    return out
OUTL = A()
def check(tg, vaddr, vdst, lead=False):
    if lead: a = L(f"v_cmp_ne_u32 vcc, s39, v{vdst}\ns_nop 1\ns_and_b64 vcc, vcc, s[56:57]\ns_cbranch_scc1 {tg}_slow\n{tg}_ok:\ns_barrier")
    else: a = L(f"v_cmp_ne_u32 vcc, s39, v{vdst}\ns_nop 1\ns_cmp_lg_u64 vcc, 0\ns_cbranch_scc1 {tg}_slow\n{tg}_ok:")
    OUTL(f"""
    {tg}_slow:
    s_mov_b32 s38, {OPT['spin']}
    {tg}_again:
    s_sleep {OPT.get('sleep', 4)}
    buffer_load_dword v{vdst}, v{vaddr}, s[16:19], 0 offen sc1
    s_sub_u32 s38, s38, 1
    s_cmp_eq_u32 s38, 0
    s_cbranch_scc1 {tg}_ok
    s_waitcnt vmcnt(0)
    v_cmp_ne_u32 vcc, s39, v{vdst}
    s_nop 1
    s_cmp_lg_u64 vcc, 0
    s_cbranch_scc1 {tg}_again
    s_branch {tg}_ok
    """)
    return a
def poll(vaddr, vdst, t, so="0"): return [f"  buffer_load_dword v{vdst}, v{vaddr}, s[16:19], {so} offen sc1 ;#{t}"]
def flag(soff, r=None):
    d, o = (3, 6) if r is None else (r, r + 1)
    return L(f"v_mov_b32 v{d}, s39\nv_lshlrev_b32 v{o}, 25, v7\nbuffer_store_dword v{d}, v{o}, s[16:19], {soff} offen sc1")

ACC = 8; CS = 128; AB = [148, 172]; BB = [196, 216]; VX = 236; VW = 242; LA = 247; LB = 249; VF = 255
L2B = CS
ONES = 240
def acc(T, t): return ACC + (T*5 + t)*4
def g1_mfma(buf, tr, first):
    M = []
    for T in range(6):
        for t in (range(5) if T % 2 == 0 else range(4, -1, -1)):
            x = vr(AB[buf] + 4*T); w = vr(BB[buf] + 4*t); d = vr(acc(T, t))
            p, q = (w, x) if tr else (x, w)
            M.append(f"  v_mfma_f32_16x16x32_bf16 {d}, {p}, {q}, {'0' if first else d}")
    return M
def g1_cs(buf):
    return [f"  v_mfma_f32_16x16x32_bf16 {vr(CS+4*t)}, {ar(ONES)}, {vr(BB[buf]+4*t)}, {'0' if buf == 0 else vr(CS+4*t)}" for t in range(5)]
def g1_reads(k):
    buf = k & 1; st = (k//2) % 3
    la, lb, so = (LA, LB, st*STAGE) if st < 2 else (L2B, L2B + 2, 0)
    R = []
    def b(t):
        u2, h2 = (64, 1280) if OPT["wrow"] else (1024, 256)
        base = lb + (2 if t == 4 else (t & 1)); off = so + buf*10240 + (u2 if t in (2, 3) else 0)
        return [f"  ds_read_b64_tr_b16 {vr(BB[buf]+4*t,2)}, v{base} offset:{off}",
                f"  ds_read_b64_tr_b16 {vr(BB[buf]+4*t+2,2)}, v{base} offset:{off+h2}"]
    def x(T): return [f"  ds_read_b128 {vr(AB[buf]+4*T)}, v{la+buf} offset:{so+T*2048}"]
    R += x(0)
    for t in range(5): R += b(t)
    for T in range(1, 6): R += x(T)
    return tag(R, f"r{k}")
def dma_x(c):
    so = (c % 3)*STAGE; Dm = []
    for j in range(6):
        if j in (0, 4): Dm.append(f"  s_add_u32 m0, s40, {so + 1024*j}")
        Dm.append(f"  buffer_load_dwordx4 v{VX+j}, s[8:11], s42 offen offset:{1024*(j%4)} lds")
    return tag(Dm, f"c{c}")
def dma_w(c):
    so = (c % 3)*STAGE; Dm = []
    for j in range(5):
        if OPT["wrow"]:
            if j in (0, 4): Dm.append(f"  s_add_u32 m0, s41, {so + 1024*j}")
            Dm.append(f"  buffer_load_dwordx4 v{VW+j}, s[12:15], s43 offen offset:{1024*(j%4)}{' nt' if (c == 0 and OPT.get('wnt')) else ''} lds")
            continue
        Dm.append(f"  s_add_u32 m0, s41, {so + 1024*j}")
        Dm.append(f"  buffer_load_dwordx4 v{VW+j}, s[12:15], s43 offen lds")
    return tag(Dm, f"c{c}")
def dma_next(c):
    if OPT.get("lock") == 2:
        return L(f"s_cmp_eq_u32 s54, 0\ns_cselect_b32 s44, {c}, {(c + 5) % 10}\ns_lshl_b32 s42, s44, 7\ns_mul_i32 s43, s44, s45")
    if OPT["krot"]:
        first = "s_mov_b32 s44, s67" if c == 1 else "s_add_u32 s44, s44, 1\ns_cmp_eq_u32 s44, 10\ns_cselect_b32 s44, 0, s44"
        return L(first + f"""
        s_cmp_eq_u32 s44, s54
        s_addc_u32 s44, s44, 0
        s_cmp_eq_u32 s44, 10
        s_cselect_b32 s44, 0, s44
        s_lshl_b32 s42, s44, 7
        s_mul_i32 s43, s44, s45""")
    return L(f"s_cmp_le_u32 s54, {c-1}\ns_cselect_b32 s44, {c}, {c-1}\ns_lshl_b32 s42, s44, 7\ns_mul_i32 s43, s44, s45")
def breg(s, t): return ar(s*20 + 4*t)
def bstream(i0, n):
    out = []
    for i in range(i0, i0 + n):
        s, t = divmod(i, 5)
        if t == 0 or i == i0:
            out.append(f"  s_add_u32 s68, s46, {8*16384*s}")
            if s == 6: out += L(f"s_cmp_lt_u32 s20, 3\ns_cselect_b32 s68, s68, {OOB}")
        if t < 4: out.append(f"  buffer_load_dwordx4 {breg(s,t)}, v4, s[16:19], s68 offen offset:{1024*t} sc1 ;#B{s}")
        else: out.append(f"  buffer_load_dwordx4 {breg(s,t)}, v5, s[16:19], s68 offen sc1 ;#B{s}")
    return out
class Stream:
    def __init__(self, items): self.items = list(items)
    def take(self, n):
        it, self.items = self.items[:n], self.items[n:]
        assert len(it) == n
        out = []; k = 0
        while k < len(it):
            j = k
            while j + 1 < len(it) and it[j+1] == (it[j][0], it[j][1] + 1): j += 1
            out += (bstream if it[k][0] == "B" else wo_dma)(it[k][1], j - k + 1); k = j + 1
        return out
def wo_dma(i0, n):
    out = []
    for i in range(i0, i0 + n):
        j, t = divmod(i, 5)
        if t in (0, 4) or i == i0: out += [f"  s_add_u32 m0, s69, {20480*j + (4096 if t == 4 else 0)}", f"  s_add_u32 s71, s70, {65536*j}"]
        out.append(f"  buffer_load_dwordx4 v{4 if t < 4 else 5}, s[16:19], s71 offen offset:{1024*(t%4)} sc1 lds ;#wo{j}")
    return out
PRODS = [(0,3),(0,4),(1,3),(1,4),(1,5),(2,3),(2,4),(2,5)]
KVOF = [240, 241, 242, 243, 244, 245, 246, 255]

def setup_s():
    return L(f"""
    s_cmp_lt_u32 s22, 12
    s_cselect_b32 s83, {LOG2E}, {LOG2E | 0x80000000}
    s_mul_i32 s76, s21, 3
    s_add_u32 s76, s76, s51
    s_add_u32 s77, s76, 1
    """) + blk(80, 76, "h", 28, 29) + blk(81, 77, "h", 28, 29) + blk(78, 76, "q", 28, 29) + blk(79, 77, "q", 28, 29) + L(f"""
    s_cmp_lt_u32 s22, 12
    s_cselect_b32 s80, s78, s80
    s_cselect_b32 s81, s79, s81
    s_cmp_ge_u32 s76, 32
    s_cselect_b32 s80, {OOB}, s80
    s_cmp_ge_u32 s77, 32
    s_cselect_b32 s81, {OOB}, s81
    s_lshl_b32 s28, s51, 11
    s_add_u32 s82, s81, s28              ; row tile 4
    s_add_u32 s29, s80, 2048
    s_add_u32 s80, s80, s28              ; row tile 0
    s_cmp_eq_u32 s51, 0
    s_cselect_b32 s81, s29, s81          ; row tile 2
    s_mul_i32 s61, s23, 5
    s_mul_i32 s28, s52, 3
    s_add_u32 s62, s61, s28
    s_add_u32 s63, s62, 1
    s_add_u32 s61, s61, 2
    s_lshl_b32 s28, s23, 1
    s_add_u32 s28, s28, s52
    s_add_u32 s29, s28, 22
    s_add_u32 s30, s23, 43
    s_cmp_lt_u32 s22, 12
    s_cselect_b32 s62, s62, s28
    s_cselect_b32 s63, s63, s29
    s_cselect_b32 s61, s61, s30
    s_cselect_b32 s75, {OOB}, {FPD}
    s_cmp_eq_u32 s63, 43
    s_cselect_b32 s63, {OOB >> 13}, s63
    """) + cell(62, 62, 28) + cell(63, 63, 28) + cell(61, 61, 28) + L(f"""
    s_lshl_b32 s28, s52, 9
    s_add_u32 s61, s61, s28
    s_add_u32 s75, s75, s67
    """)
def setup_t():
    return L(f"""
    v_add_u32 v{VX}, s62, v4
    v_add_u32 v{VX+1}, s63, v4
    v_and_b32 v3, 1, v2
    v_lshlrev_b32 v3, 10, v3
    v_lshrrev_b32 v254, 1, v2
    v_lshl_add_u32 v3, v254, 8, v3
    v_lshl_add_u32 v3, v1, 4, v3
    v_add_u32 v{VX+2}, s61, v3
    v_mov_b32 v{VX+4}, 0x358637bd
    v_mov_b32 v{VX+5}, 0x358637bd
    """)
def setup_n0():
    a = A()
    a(f"""
    v_and_b32 v1, 15, v7
    v_lshrrev_b32 v2, 4, v7
    v_cmp_gt_u32 s[32:33], 8, v1
    s_cmp_eq_u32 s21, 10
    s_cselect_b32 s36, s51, 0
    s_lshl_b32 s37, s22, 1
    s_add_u32 s37, s37, s52
    s_lshl_b32 s37, s37, 12
    s_add_u32 s37, s37, {KVP}
    s_lshl_b32 s60, s20, 12
    s_add_u32 s60, s60, {KVX}
    v_and_b32 v254, 31, v7
    v_add_u32 v254, 224, v254
    """)
    for n, (kx, vy) in enumerate(PRODS):
        eoff = {3: -8, 4: 8, 5: 24}[vy]; o = 252
        a(f"""
        v_add_u32 v3, {4*kx}, v2
        v_cmp_le_u32 vcc, 5, v3
        v_add_u32 v{o}, {eoff}, v1
        v_cmp_gt_u32 s[62:63], 10, v3
        v_cndmask_b32 v253, 0, 20, vcc
        v_sub_u32 v{o}, v{o}, v253
        """)
        if vy == 3: a(f"v_cmp_eq_u32 vcc, 0, v1\nv_cndmask_b32 v253, v{o}, 0, vcc\nv_cndmask_b32 v{o}, v{o}, 20, vcc\nv_cmp_gt_u32 vcc, 20, v253")
        else: a(f"v_cmp_gt_u32 vcc, 20, v{o}")
        a(f"""
        v_mad_u32_u24 v{o}, v3, 21, v{o}
        s_and_b64 vcc, vcc, s[62:63]
        v_cndmask_b32 v{o}, v254, v{o}, vcc
        v_lshl_add_u32 v{o}, v{o}, 4, s60
        v_accvgpr_write_b32 a{244+n}, v{o}
        """)
    return list(a)
def setup_n():
    return L(f"s_mov_b32 s30, {LOG2E}\ns_mov_b32 s31, {LOG2E}") + [f"  v_accvgpr_read_b32 v{KVOF[n]}, a{244+n}" for n in range(8)]

def g1_main(tg, tr, st):
    a = A()
    pf = OPT["pf_t"] if tr else OPT["pf_n"]
    a += W("c0"); a("s_barrier"); a += stamp("k0")
    a += g1_reads(0) + W(lg="r0")
    mv = OPT["keep"]
    d0 = [] if mv >= 1 else ((d_pack_src() if tr else []) + d_cs())
    a += place(g1_mfma(0, tr, True) + g1_cs(0), [(g1_reads(1), 0, 17), (dma_x(2) + dma_w(2), 0, 33), (d0, 4, 34)])
    def spread(items, ks):
        g = glue(items); return {k: sum(g[i*len(g)//len(ks):(i+1)*len(g)//len(ks)], []) for i, k in enumerate(ks)}
    if tr:
        dfr = spread(d_misc() + setup_s(), [4, 5, 6, 7, 8, 9, 10, 11, 12])
        if mv < 2: dfr[2] = d_pack_dst()
    else: dfr = spread((d_touch() if OPT["touch"] == 1 else []) + d_misc(), [2, 3, 4])
    a += W(lg="r1")
    a += g1_cs(1)
    PKD, PKR, PKS = (OPT["pkd"], OPT["pkr"], OPT["pks"]) if tr else (None, None, {})
    pk_d = []
    for i in range(5):
        pk_d += [f"  s_add_u32 m0, s53, {896*i}", f"  buffer_load_dwordx4 v252, s[56:59], s55 offen offset:{128*i} {'nt ' if OPT.get('pknt', 1) else ''}lds ;#pk"]
    pk_r = []
    for t in range(5):
        if t: pk_r += L(f"s_cmp_eq_u32 s20, {4-t}\ns_cselect_b32 s28, 896, 0\nv_add_u32 v1, s28, v1\nv_add_u32 v2, s28, v2")
        pk_r += [f"  ds_read_b64_tr_b16 {ar(16+4*t,2)}, v1 offset:{32*t}", f"  ds_read_b64_tr_b16 {ar(18+4*t,2)}, v2 offset:{32*t}"]
    pk_s = [f"  buffer_store_dwordx4 {ar(16+4*t)}, v{4 if t < 4 else 5}, s[16:19], s{60 if c == 0 else 53} offen offset:{1024*(t%4)} sc1 ;#ps" for t in range(5) for c in range(2 if OPT["mode"] == "dup" else 1)]
    pk_r.append("  s_add_u32 s53, s60, 8192")
    cs_st = L(f"""
    v_cmp_le_u32 vcc, 16, v7
    v_cmp_le_u32 s[28:29], 32, v7
    v_cmp_le_u32 s[30:31], 48, v7
    v_cndmask_b32 v{CS+17}, v{CS}, v{CS+4}, vcc
    v_cndmask_b32 v{CS+17}, v{CS+17}, v{CS+8}, s[28:29]
    v_cndmask_b32 v{CS+17}, v{CS+17}, v{CS+12}, s[30:31]
    buffer_store_dword v{CS+17}, v253, s[16:19], s64 offen sc1 ;#cs
    buffer_store_dword v{CS+16}, v254, s[16:19], s64 offen sc1 ;#cs
    """) + [f"  v_add_u32 v{L2B+i}, {2*STAGE}, v{LA+i}" for i in range(5)]
    auxa = L(f"""
    v_lshlrev_b32 v3, 4, v0
    v_add_u32 v252, s74, v3
    v_add_u32 v253, 4096, v252
    v_cmp_le_u32 vcc, 144, v0
    v_add_u32 v3, s65, v3
    v_cmp_le_u32 s[28:29], s66, v0
    v_cndmask_b32 v253, v253, v3, vcc
    v_add_u32 v3, {RSTD - NEGM - 768}, v3
    v_cmp_le_u32 vcc, 240, v0
    v_cndmask_b32 v253, v253, v3, s[28:29]
    v_mov_b32 v3, {OOB}
    v_cndmask_b32 v253, v253, v3, vcc
    v_and_b32 v1, 15, v7
    v_lshrrev_b32 v2, 4, v7
    """)
    polx = [f"  s_xor_b32 s{r}, s{r}, s3" for r in ((46, 70, 80, 81, 82) if OPT["mode"] == "dup" else (80, 81, 82))]
    aux = L(f"""
    s_mov_b32 m0, s72
    s_nop 0
    buffer_load_dwordx4 v252, s[16:19], 0 offen sc1 lds ;#aux
    s_add_u32 m0, s72, 4096
    s_nop 0
    buffer_load_dwordx4 v253, s[16:19], 0 offen sc1 lds ;#aux
    """) + flag("s73")
    y1 = L(f"v_lshlrev_b32 v252, 2, v0\nv_add_u32 v252, {AUXC}, v252") + tag([f"  ds_read_b32 v{CS+i}, v252 offset:{640*i}" for i in range(10)], "y1")
    y2 = [f"  v_add_f32 v{CS}, v{CS}, v{CS+i}" for i in range(1, 10)] + [f"  ds_write_b32 v252, v{CS} offset:{CSL-AUXC} ;#y2"]
    rd = L("s_mul_i32 s28, s51, 384\ns_add_u32 s28, s28, %d" % AUXM)
    if tr:
        rd += L(f"v_lshlrev_b32 v6, 4, v2\nv_add_u32 v252, s34, v6\nv_add_u32 v253, s35, v6\nv_lshl_add_u32 v3, v1, 2, s28")
        rd += [f"  ds_read_b128 {vr(CS+4*t)}, v252 offset:{64*t}" for t in range(4)] + [f"  ds_read_b128 {vr(CS+16)}, v253"]
        for T in range(6): rd += [f"  ds_read_b32 v{AB[0]+4*T}, v3 offset:{64*T}", f"  ds_read_b32 v{AB[0]+4*T+1}, v3 offset:{768+64*T}"]
    else:
        rd += L(f"v_lshlrev_b32 v6, 2, v1\nv_add_u32 v252, s34, v6\nv_lshl_add_u32 v3, v2, 4, s28")
        rd += [f"  ds_read_b32 v{CS+4*t}, v252 offset:{64*t}" for t in range(5)]
        for T in range(6): rd += [f"  ds_read_b128 {vr(AB[0]+4*T)}, v3 offset:{64*T}"]
        for T in range(5): rd += [f"  ds_read_b128 {vr(BB[0]+4*T)}, v3 offset:{768+64*T}"]
        rd += [f"  ds_read_b128 {vr(VX)}, v3 offset:{768+64*5}"]
    su = setup_t() if tr else setup_n()
    e0 = glue(setup_n0()); early = {} if tr else {6 + i: sum(e0[i*len(e0)//6:(i+1)*len(e0)//6], []) for i in range(6)}
    nb = 0; fb, pb = (OPT["flagb"] if tr else OPT["flagb_n"]), OPT["pollb"]; nps = 0
    for k in range(1, 20):
        c = (k - 1)//2
        M = g1_mfma(k & 1, tr, False)
        ls = []
        if k & 1:
            if c == pb and tr: a("k_t_join:")
            if k > 1: a += W(lg=[f"r{k}"] + (["y2"] if k == 19 else []) + (["pr"] if k - 1 == PKR else []))
            a.append(M.pop(0))
            vm = [f"c{c+1}"] if c < 9 else []
            if c == fb: vm += ["cs", "ss"] + (["ps"] if tr else [])
            if k == PKR: vm += ["pk"]
            if c == pb + 1: vm += ["pa"]
            if c == 8: vm += ["aux"]
            if vm: a += W(vm)
            if c == pb + 1: a += check(tg + "_sa", 6, VF)
            a("s_barrier")
            if c == 0: a += stamp("b0")
            if c == 7: a += stamp("tail")
            a += stamp(f"b{c}") if c > 0 else []
            if c == fb: ls.append((flag("s49"), 0, 2))
            if c == pb: ls.append((L(f"v_lshlrev_b32 v6, {OPT['fash']}, v0\nv_add_u32 v6, {FA}, v6") + poll(6, VF, "pa"), 0, 2))
            if OPT["pol"] != "race":
                if c == pb + 1: ls.append((polx, 0, 2))
            else:
                assert OPT["mode"] == "rows"
                if c == 7: ls.append((L(f"v_mov_b32 v{CS+18}, {PW}\nbuffer_load_dword v{CS+19}, v{CS+18}, s[16:19], 0 offen sc1 ;#aux"), 0, 1))
                if c == 8:
                    ls.append((L(f"v_readfirstlane_b32 s3, v{CS+19}\ns_xor_b32 s3, s3, s39"), 19, 20))
                    ls.append((L(f"s_and_b32 s38, s3, {~8192 & 0xffffffff}\ns_cbranch_scc1 {tg}_pw\n{tg}_pwr:"), 21, 21))
                    ls.append((polx, 22, 28))
                    OUTL(f"""
                    {tg}_pw:
                    s_mov_b32 s40, {OPT['spin']}
                    {tg}_pw1:
                    s_sleep 4
                    buffer_load_dword v{CS+19}, v{CS+18}, s[16:19], 0 offen sc1
                    s_waitcnt vmcnt(0)
                    v_readfirstlane_b32 s3, v{CS+19}
                    s_sub_u32 s40, s40, 1
                    s_xor_b32 s3, s3, s39
                    s_and_b32 s38, s3, {~8192 & 0xffffffff}
                    s_cselect_b32 s38, s40, 0
                    s_and_b32 s3, s3, 8192
                    s_cmp_lg_u32 s38, 0
                    s_cbranch_scc1 {tg}_pw1
                    s_branch {tg}_pwr
                    """)
            if c == 7: ls.append(([x for x in aux], 0, 2))
            dx, dw = (dma_next(c+3) + dma_x(c+3), dma_w(c+3)) if c + 3 <= 9 else ([], [])
            if k == PKD: ls += [(pk_d, 0, 9), (dx[:-4], 14, 28)]
            else: ls.append((dx, 1, 27))
            if k == PKR: ls.append((tag(pk_r, "pr"), 10, 26))
            if c == 0: ls.append((cs_st, 12, 27))
            if c == 8: ls.append((y1, 8, 22))
        else:
            a += W(lg=[f"r{k}"] + (["y1"] if c == 8 else []) + (["pr"] if k - 1 == PKR else []))
            if k - 1 == PKD: ls.append((dx[-4:] + dw, 0, 28))
            else: ls.append((dw, 1, 27))
            if c == 6: ls.append((auxa, 17, 28))
            if c == 8: ls.append((y2, 0, 12))
        if PKS.get(k): ls.append((pk_s[nps:nps+PKS[k]], 2, 28 if nps + PKS[k] < len(pk_s) else 18)); nps += PKS[k]
        if k < 19: ls.insert(0, (g1_reads(k+1), 1 if k & 1 else 0, 17))
        else: ls.insert(0, (rd, 0, 22))
        if k == 16: ls.append((su, 18, 28))
        if k in early: ls.append((early[k], 4, 28))
        if k in dfr: ls.append((dfr[k], 0 if k == 2 else 6, 28))
        if k == OPT["cpf2"]:
            ls.append((L(f"v_add_u32 v{CS+8}, s50, v4\nv_min_u32 v{CS+8}, CODE_MAX, v{CS+8}\ns_cmp_gt_u32 s50, CODE_MAX\ns_cbranch_scc1 {tg}_c2\nglobal_load_dwordx4 {vr(CS+12)}, v{CS+8}, s[0:1] ;nocount\n{tg}_c2:"), 29 - (k & 1), 29 - (k & 1)))
        if pf.get(k):
            assert c > pb
            assert all(x[0] == "B" for x in st.items[:pf[k]])
            ls.append((st.take(pf[k]), 3, 28))
        a += place(M, ls)
    a += stamp("lend")
    return a

def stats_math():
    a = A(); src = 8; tmp = 20; ac = 44
    for i in range(12):
        a(f"v_lshlrev_b32 v{tmp+2*i}, 16, v{src+i}\nv_and_b32 v{tmp+2*i+1}, 0xffff0000, v{src+i}")
    a(f"v_pk_add_f32 {vr(ac,2)}, {vr(tmp,2)}, {vr(tmp+2,2)}")
    for i in range(2, 12): a(f"v_pk_add_f32 {vr(ac,2)}, {vr(ac,2)}, {vr(tmp+2*i,2)}")
    def red():
        a(f"v_add_f32 v{ac}, v{ac}, v{ac+1}")
        for r in (8, 4, 2, 1): a(f"v_add_f32_dpp v{ac}, v{ac}, v{ac} row_ror:{r} row_mask:0xf bank_mask:0xf")
        a(f"v_mov_b32 v{ac+1}, v{ac}\nv_permlane16_swap_b32 v{ac}, v{ac+1}\nv_add_f32 v{ac}, v{ac}, v{ac+1}")
    red()
    a(f"v_mul_f32 v46, 0xbacccccd, v{ac}")
    a(f"v_cndmask_b32 v47, 0, v46, s[32:33]")
    for i in range(8): a(f"v_pk_add_f32 {vr(tmp+2*i,2)}, {vr(tmp+2*i,2)}, v[46:47] op_sel_hi:[1,0]")
    for i in range(8, 12): a(f"v_pk_add_f32 {vr(tmp+2*i,2)}, {vr(tmp+2*i,2)}, v[46:47] op_sel:[0,1] op_sel_hi:[1,1]")
    a(f"v_pk_mul_f32 {vr(ac,2)}, {vr(tmp,2)}, {vr(tmp,2)}")
    for i in range(1, 12): a(f"v_pk_fma_f32 {vr(ac,2)}, {vr(tmp+2*i,2)}, {vr(tmp+2*i,2)}, {vr(ac,2)}")
    red()
    a(f"""
    v_mov_b32 v{ac+1}, 0x3727c5ac
    v_fmac_f32 v{ac+1}, 0x3acccccd, v{ac}
    v_rsq_f32 v{ac+1}, v{ac+1}
    v_and_b32 v48, 31, v7
    v_cmp_eq_u32 vcc, 0, v48
    v_lshrrev_b32 v49, 5, v7
    v_lshlrev_b32 v49, 2, v49
    v_cndmask_b32 v46, v{ac+1}, v46, vcc
    v_lshl_add_u32 v49, v48, 13, v49
    v_cmp_gt_u32 vcc, 2, v48
    v_mov_b32 v50, {OOB}
    s_lshl_b32 s28, s48, 3
    s_add_u32 s28, s28, {NEGM}
    v_cndmask_b32 v49, v50, v49, vcc
    buffer_store_dword v46, v49, s[16:19], s28 offen sc1 ;#ss
    """)
    return list(a)

def prologue():
    a = A()
    a += stamp("entry")
    a(f"""
    s_load_dwordx16 s[60:75], s[0:1], 0
    s_load_dwordx2 s[26:27], s[0:1], 64
    s_cmp_ge_u32 s2, 256
    s_cbranch_scc1 k_end
    s_and_b32 s3, s2, 7
    s_lshl_b32 s3, s3, 5
    s_lshr_b32 s21, s2, 3
    s_add_u32 s3, s3, s21                ; lin
    s_mul_i32 s35, {"s3" if OPT["slin"] else "s2"}, 10240
    v_lshrrev_b32 v1, 5, v0
    v_mul_u32_u24 v1, {1280-512}, v1
    v_lshl_add_u32 v52, v0, 4, v1
    v_and_b32 v1, 16, v0
    v_lshl_add_u32 v53, v1, 26, v52      ; lanes whose third piece is past the row: out of range
    s_mov_b32 s10, {S*D*2}
    s_mov_b32 s11, 0x20000
    """)
    ld = L("s_waitcnt lgkmcnt(0)\ns_mov_b32 s8, s60\ns_and_b32 s9, s61, 0xffff") + stamp("karg")
    for j in range(3): ld.append(f"  buffer_load_dwordx4 {vr(8+4*j)}, v{53 if j == 2 else 52}, s[8:11], s35 offen offset:{512*j} ;#sl")
    if OPT["head"] == 0: a += ld
    a(f"""
    s_getpc_b64 s[36:37]
    v_cmp_eq_u32 s[32:33], 0, v1
    v_lshrrev_b32 v1, 6, v0
    v_and_b32 v7, 63, v0                 ; lane
    v_readfirstlane_b32 s20, v1          ; wave
    s_lshr_b32 s23, s3, 5
    s_min_u32 s23, s23, 2
    s_sub_u32 s23, s3, s23
    s_cmp_lt_u32 s3, 118
    s_cselect_b32 s28, 1, 116
    s_cselect_b32 s29, 13108, 10923
    s_cselect_b32 s30, 5, 6
    s_cselect_b32 s31, 0, 5
    s_sub_u32 s28, s23, s28
    s_mul_i32 s22, s28, s29
    s_lshr_b32 s22, s22, 16
    s_mul_i32 s30, s22, s30
    s_sub_u32 s21, s28, s30
    s_add_u32 s21, s21, s31              ; rb
    s_cmp_lt_u32 s2, 3
    s_cselect_b32 s21, 11, s21
    s_min_u32 s54, s21, 9                ; start chunk
    """)
    if OPT.get("lock") == 1: a("s_mov_b32 s54, 0")
    if OPT.get("lock") == 2: a("s_cmp_lt_u32 s21, 6\ns_cselect_b32 s54, 0, 5")
    if OPT.get("lock") == 3: a("s_lshr_b32 s54, s54, 1\ns_lshl_b32 s54, s54, 1")
    a(f"""
    """)
    xa = A()
    xa(f"""
    s_lshl_b32 s28, s21, 2
    s_add_u32 s28, s28, s20
    s_mul_i32 s28, s28, {48*1280}
    v_lshrrev_b32 v1, 3, v7              ; r8
    v_lshrrev_b32 v2, 1, v1
    v_and_b32 v3, 7, v7
    v_xor_b32 v2, v2, v3
    v_mul_u32_u24 v1, 1280, v1
    v_lshl_add_u32 v252, v3, 4, v1
    v_add_u32 v1, s28, v1
    v_lshl_add_u32 v{VX}, v2, 4, v1
    v_xor_b32 v2, 4, v2
    v_lshl_add_u32 v6, v2, 4, v1
    """)
    for j in range(1, 6): xa(f"v_add_u32 v{VX+j}, {j*10240 - 1024*(j%4)}, v{6 if j & 1 else VX}")
    xa("s_mul_i32 s40, s20, 6144\ns_lshl_b32 s42, s54, 7")
    wa = A()
    wa(f"""
    s_sub_u32 s28, 22, s22
    s_cmp_lt_u32 s3, 118
    s_cselect_b32 s22, s22, s28
    s_mul_i32 s28, s22, 43
    s_lshr_b32 s28, s28, 8               ; g = p/6
    s_mul_i32 s29, s28, 6
    s_sub_u32 s29, s22, s29              ; r
    s_mul_i32 s30, s28, 3
    s_add_u32 s30, s30, s29
    s_add_u32 s30, s30, 9                ; w1: 12+3g+r-3
    s_lshl_b32 s31, s28, 1
    s_add_u32 s31, s31, s29
    s_sub_u32 s31, s31, 1                ; kv: 2g+r-1
    s_add_u32 s28, s28, 8                ; q
    s_cmp_lt_u32 s29, 3
    s_cselect_b32 s22, s31, s30
    s_cmp_eq_u32 s29, 0
    s_cselect_b32 s22, s28, s22
    s_cmp_lt_u32 s2, 3
    s_cselect_b32 s22, 12, s22
    s_cmp_lt_u32 s22, 12
    s_cselect_b32 s12, s62, s68
    s_cselect_b32 s13, s63, s69
    s_cselect_b32 s14, {D*3*D*2}, {D*F*2}
    s_cselect_b32 s50, 3840, 3456        ; W row stride
    s_cselect_b32 s28, 8, 12
    s_and_b32 s13, s13, 0xffff
    s_mov_b32 s15, 0x20000
    s_lshl_b32 s45, s50, 6
    s_sub_u32 s23, s22, s28
    s_mul_i32 s29, s23, 320
    s_mul_i32 s30, s22, 160
    s_add_u32 s30, s30, 1280
    s_cmp_lt_u32 s22, 8
    s_cselect_b32 s29, s30, s29
    s_cselect_b32 s30, 1200, 0
    s_cselect_b32 s31, -80, 0
    s_lshl_b32 s28, s20, 4
    s_mul_i32 s28, s28, s50
    s_add_u32 s29, s29, s28
    s_mul_i32 s41, s20, 5120
    s_add_u32 s41, s41, {WOFF}
    s_mul_i32 s43, s54, s45
    s_movk_i32 s28, -20
    v_xor_b32 v54, 2, v7                 ; rows 8..15 swap adjacent 32-byte units
    v_lshrrev_b32 v55, 4, v7
    v_and_b32 v55, 2, v55
    v_xor_b32 v55, v55, v7
    """)
    dw = grp(dma_w(0), 1); wj = []
    for jj in range(5):
        src = 7 if jj < 2 else 55 if jj == 2 else 54
        b = A()
        if jj: b(f"v_add_u32 v1, {64*jj}, v{src}")
        q = 1 if jj else 7
        b(f"""
        v_mul_u32_u24 v2, 3277, v{q}
        v_lshrrev_b32 v2, 16, v2
        v_mad_i32_i24 v3, v2, s28, v{q}
        v_mul_u32_u24 v2, s50, v2
        v_lshl_add_u32 v2, v3, 4, v2
        v_mul_u32_u24 v3, 205, v3
        v_bfe_u32 v1, v3, 10, 1
        v_lshrrev_b32 v3, 11, v3
        v_mad_u32_u24 v2, v1, s30, v2
        v_mad_i32_i24 v2, v3, s31, v2
        v_add_u32 v{VW+jj}, s29, v2
        """)
        if jj < 3: b("s_sub_u32 s29, s29, 1024")
        if jj == 3: b("s_add_u32 s29, s29, 3072")
        wj.append(list(b))
    if OPT["wfirst"]:
        a += wa
        for jj in range(5): a += wj[jj] + dw[jj]
        a += stamp("w0i") + xa
        first = grp(dma_x(0), 1)
    else:
        if OPT["head"] == 0: a += xa + dma_x(0) + wa + sum(wj, [])
        elif OPT["head"] == 1: a += xa + ld + dma_x(0) + wa + sum(wj, [])
        elif OPT["head"] == 2: a += wa[:20] + ld + xa + dma_x(0) + wa[20:] + sum(wj, [])
        elif OPT["head"] == 4: a += wa[:20] + xa + ld + dma_x(0) + wa[20:] + sum(wj, [])
        elif OPT["head"] == 5:
            ptr = [x for x in wa if re.match(r"\s*s_(cselect|and)_b32 s1[23],", x)]
            a += xa + [x for x in wa if x not in ptr] + ld + dma_x(0) + L("s_cmp_lt_u32 s22, 12") + ptr + sum(wj, [])
        elif OPT["head"] == 3: a += xa + ld[:3] + wa + sum(wj, []) + ld[3:] + dma_x(0)
        first = dw
    a(f"""
    s_load_dword s39, s[26:27], 0
    v_lshlrev_b32 v4, 4, v7
    s_lshl_b32 s48, {"s3" if OPT["slin"] else "s2"}, 2
    s_add_u32 s48, s48, s20              ; stats job
    s_and_b32 s36, s36, 0xffffff00
    s_lshr_b32 s28, s2, 3
    s_lshl_b32 s29, s20, 5
    s_add_u32 s28, s28, s29
    s_add_u32 s28, s28, 2
    s_mov_b64 s[0:1], s[36:37]
    s_lshl_b32 s50, s28, 10
    s_cmp_ge_u32 s28, CODE_KB
    s_cbranch_scc1 k_nocp
    v_add_u32 v1, s50, v4
    v_min_u32 v1, CODE_MAX, v1
    global_load_dwordx4 v[128:131], v1, s[0:1] ;nocount
    k_nocp:
    """)
    su = A()
    su += srd(16, 26, WS_USED)
    su(f"""
    s_lshr_b32 s51, s20, 1               ; wr
    s_and_b32 s52, s20, 1                ; wc
    v_lshrrev_b32 v59, 4, v7             ; g
    v_bfe_u32 v56, v7, 2, 2              ; rr
    v_and_b32 v57, 3, v7                 ; c4
    v_and_b32 v58, 1, v59                ; g&1
    v_and_b32 v3, 15, v7                 ; m
    v_lshrrev_b32 v6, 1, v3
    v_xor_b32 v6, v6, v59
    s_mul_i32 s28, s51, 12288
    v_lshl_add_u32 v55, v3, 7, s28
    v_lshl_add_u32 v{LA}, v6, 4, v55
    v_xor_b32 v6, 4, v6
    v_lshl_add_u32 v{LA+1}, v6, 4, v55
    v_lshl_add_u32 v55, v59, 3, v56
    v_mul_u32_u24 v55, 320, v55
    v_lshl_add_u32 v55, v57, 3, v55
    v_add_u32 v55, {WOFF}, v55
    s_cmp_lt_u32 s22, 8
    s_cselect_b32 s34, 5, 6
    s_cselect_b32 s35, 9, 5
    s_cmp_eq_u32 s52, 0
    s_cselect_b32 s34, 0, s34
    s_cselect_b32 s35, 4, s35
    s_add_u32 s30, s34, 1
    """)
    for i, sreg in enumerate((34, 30, 35)):
        su(f"v_xor_b32 v6, s{sreg}, v58\nv_lshl_add_u32 v{LB+i}, v6, 5, v55")
    su(f"""
    v_mov_b32 v6, 0x3f803f80
    v_accvgpr_write_b32 a{ONES}, v6
    v_accvgpr_write_b32 a{ONES+1}, v6
    v_accvgpr_write_b32 a{ONES+2}, v6
    v_accvgpr_write_b32 a{ONES+3}, v6
    """)
    mv = OPT["keep"]
    if OPT["swarm"]:
        w = L(f"""
        s_lshl_b32 s28, s48, 3
        s_add_u32 s28, s28, {NEGM}
        s_load_dword s76, s[26:27], s28
        s_add_u32 s28, s28, {RSTD - NEGM}
        s_load_dword s77, s[26:27], s28
        s_lshl_b32 s28, s2, {OPT['fash']}
        s_add_u32 s28, s28, {FA}
        s_load_dword s78, s[26:27], s28
        """)
        if OPT["swarm"] > 1:
            w += L(f"""
            s_mul_i32 s28, s22, 10
            s_add_u32 s28, s28, s54
            s_mul_i32 s28, s28, 640
            s_mul_i32 s29, s20, 192
            s_add_u32 s28, s28, s29
            s_add_u32 s28, s28, {CSP}
            s_load_dword s79, s[26:27], s28
            s_add_u32 s28, s28, 64
            s_load_dword s80, s[26:27], s28
            s_add_u32 s28, s28, 64
            s_load_dword s81, s[26:27], s28
            """)
        su[:0] = w
    if mv >= 1: su += d_pack_src() + d_cs()
    if mv >= 2: su += d_pack_dst()
    assert mv == 2
    pe = glue(p2_early()); n1 = OPT["pe1"]
    su += sum(pe[:n1], [])
    a += inter(su, first, OPT["sufirst"])
    if OPT["pkd"] == -1:
        a("s_cmp_lt_u32 s22, 8\ns_cbranch_scc1 k_nopk")
        for i in range(5):
            a += [f"  s_add_u32 m0, s53, {896*i}", f"  buffer_load_dwordx4 v252, s[56:59], s55 offen offset:{128*i} {'nt ' if OPT.get('pknt', 1) else ''}lds ;nocount"]
        a("k_nopk:\n;MARK pk")
    a += stamp("c0i")
    a += dma_next(1)
    a += W("sl")
    a += stamp("sl")
    a += inter(sum(pe[n1:], []) + stats_math(), grp(dma_x(1) + dma_w(1), 1))
    a += dma_next(2)
    a("s_waitcnt lgkmcnt(0)\ns_mul_i32 s39, s39, 1664525\ns_add_u32 s39, s39, 1013904223")
    if OPT["touch"] == 2: a += [x.replace(f"v{CS+5}", "v60").replace(f"v{CS+6}", "v61").replace(f"v{CS+7}", "v62") for x in d_touch()]
    a += stamp("pend")
    return a

def d_pack_src():
    return L(f"""
    s_mul_i32 s36, s21, -15
    s_add_u32 s36, s36, s22
    s_add_u32 s36, s36, 142
    s_lshr_b32 s37, s36, 1               ; ks
    s_and_b32 s38, s36, 1
    s_cmp_lt_u32 s37, 54
    s_cselect_b32 s56, s70, s64
    s_cselect_b32 s57, s71, s65
    s_cmp_lt_u32 s37, 54
    s_cselect_b32 s58, {F*D*2}, {D*D*2}
    s_cmp_lt_u32 s37, 54
    s_cselect_b32 s28, 0, 54
    s_and_b32 s57, s57, 0xffff
    s_mov_b32 s59, 0x20000
    s_sub_u32 s28, s37, s28
    s_mul_i32 s28, s28, {32*1280}
    s_mul_i32 s29, s38, 640
    s_add_u32 s55, s28, s29
    s_mul_i32 s29, s20, 10240
    s_add_u32 s55, s55, s29              ; pack src (8 rows per wave)
    s_mul_i32 s53, s20, 5120
    s_add_u32 s53, s53, {PACKL}
    """)
def d_cs():
    return L(f"""
    s_lshl_b32 s34, s34, 6
    s_lshl_b32 s35, s35, 6
    v_lshl_add_u32 v253, v7, 2, s34
    v_lshl_add_u32 v254, v7, 2, s35
    v_and_b32 v6, 48, v7
    v_lshl_add_u32 v254, v6, 22, v254
    s_add_u32 s34, s34, {CSL}
    s_add_u32 s35, s35, {CSL}
    s_mul_i32 s62, s22, 6400
    s_add_u32 s62, s62, {CSP}
    s_mul_i32 s64, s21, 640
    s_add_u32 s64, s64, s62
    s_cmp_ge_u32 s21, 10
    s_cselect_b32 s64, {OOB}, s64
    s_cmp_eq_u32 s51, 1
    s_cselect_b32 s64, {OOB}, s64
    """)
def d_pack_dst():
    return L(f"""
    v_add_u32 v5, 4096, v4
    s_mul_i32 s28, s37, 205
    s_lshr_b32 s28, s28, 10              ; c
    s_mul_i32 s30, s28, 5
    s_sub_u32 s30, s37, s30              ; r
    s_lshl_b32 s29, s30, 3
    s_lshr_b32 s47, 0x01001600, s29      ; r -> 0, 22, -, 1
    s_and_b32 s47, s47, 255
    s_cmp_eq_u32 s30, 4
    s_cselect_b32 s47, 23, s47
    s_lshl_b32 s29, s28, 1
    s_add_u32 s47, s47, s29
    s_add_u32 s28, s28, 43
    s_cmp_eq_u32 s30, 2
    s_cselect_b32 s31, 1, 0
    s_cselect_b32 s47, s28, s47
    s_cmp_ge_u32 s37, 54
    s_cselect_b32 s31, 1, s31
    s_cselect_b32 s47, s37, s47          ; storage index
    s_lshl_b32 s28, 5120, s31            ; per g>>1
    s_mul_i32 s29, s31, 4608
    s_add_u32 s29, s29, 512              ; per g&1
    s_mul_i32 s30, s31, -9728
    s_add_u32 s30, s30, 10240
    v_lshrrev_b32 v3, 5, v7
    v_mul_u32_u24 v1, s28, v3
    v_bfe_u32 v3, v7, 4, 1
    v_mad_u32_u24 v1, v3, s29, v1
    v_bfe_u32 v3, v7, 2, 2
    v_lshl_add_u32 v1, v3, 7, v1
    v_and_b32 v3, 3, v7
    v_lshl_add_u32 v1, v3, 3, v1
    s_mul_i32 s28, s20, 1056
    s_add_u32 s28, s28, {PACKL}
    v_add_u32 v1, s28, v1
    v_add_u32 v2, s30, v1
    s_lshl_b32 s28, s38, 2
    s_add_u32 s28, s28, s20              ; ct
    s_add_u32 s28, s28, {WPP}
    s_lshl_b32 s28, s28, 21
    s_lshl_b32 s29, s47, 14
    s_add_u32 s28, s28, s29
    s_bfe_u32 s29, s47, 0x10001
    s_mul_i32 s29, s29, {3072 + 8192}
    s_add_u32 s28, s28, s29
    s_cmp_ge_u32 s36, 148
    s_cselect_b32 s60, {OOB}, s28
    """)
def d_touch():
    r = CS + 8
    return L(f"""
    s_mul_i32 s28, s22, 11
    s_add_u32 s28, s28, s21
    s_lshl_b32 s28, s28, 2
    s_add_u32 s28, s28, s20              ; index 0..351
    s_not_b32 s30, s39
    s_sub_u32 s29, s28, 96
    s_cmp_lt_u32 s29, 64
    s_cselect_b32 s30, 0, s30
    v_mov_b32 v{r}, s30
    v_mov_b32 v{r+1}, s30
    v_mov_b32 v{r+2}, s30
    v_mov_b32 v{r+3}, s30
    s_lshl_b32 s29, s28, 10
    s_cmp_lt_u32 s28, 64
    s_cselect_b32 s30, {FP}, {FO - 64*1024}
    s_add_u32 s29, s29, s30
    s_lshl_b32 s30, s28, 15
    s_add_u32 s30, s30, {GXP*PG + 3072 - 160*32768}
    s_cmp_lt_u32 s28, 160
    s_cselect_b32 s29, s29, s30
    s_cselect_b32 s30, 0, 3968
    v_lshrrev_b32 v{r-1}, 3, v7
    v_mad_u32_u24 v{r-1}, v{r-1}, s30, v4
    buffer_store_dwordx4 {vr(r)}, v{r-1}, s[16:19], s29 offen sc1 ;#ss
    """)
def d_misc():
    return L(f"""
    s_lshl_b32 s49, s2, {OPT['fash']}
    s_add_u32 s49, s49, {FA}
    s_cmp_eq_u32 s20, 0
    s_cselect_b32 s49, s49, {OOB}        ; A flag (wave 0)
    v_add_u32 v5, 4096, v4
    """) + srd(4, 72, S*D*2) + L(f"""
    s_mul_i32 s74, s22, 6400
    s_add_u32 s74, s74, {CSP}
    s_add_u32 s73, s2, s20
    s_cmp_eq_u32 s73, 0
    s_cselect_b32 s73, 0, {OOB}          ; epoch word (wg0 wave0)
    s_and_b32 s24, s2, 6
    s_lshl_b32 s24, s24, 2
    s_lshr_b32 s28, s2, 5
    s_add_u32 s24, s24, s28              ; row group of phase 2
    s_bfe_u32 s25, s2, 0x20003
    s_and_b32 s28, s2, 1
    s_lshl_b32 s28, s28, 2
    s_add_u32 s25, s25, s28              ; column tile of phase 2
    s_add_u32 s29, s25, {WPP}
    s_lshl_b32 s29, s29, 21
    s_and_b32 s47, s24, 1
    s_lshl_b32 s28, s20, 1
    s_add_u32 s47, s47, s28              ; first storage index of this wave: 2*wave + parity
    s_lshl_b32 s28, s47, 14
    s_add_u32 s46, s29, s28
    s_mul_i32 s28, s52, {3072 + 8192}
    s_add_u32 s46, s46, s28              ; B stream first
    s_lshl_b32 s28, s20, 14
    s_add_u32 s70, s29, s28
    s_mul_i32 s28, s51, {3072 + 8192}
    s_sub_u32 s70, s70, s28
    s_add_u32 s70, s70, {54*16384 + 3072 + 8192} ; wo src
    s_mul_i32 s69, s20, 5120             ; wo lds base
    s_lshl_b32 s72, s20, 10
    s_add_u32 s72, s72, {AUXC}
    s_mul_i32 s65, s21, 768
    s_add_u32 s65, s65, {NEGM - 144*16}
    s_movk_i32 s66, 192
    s_mul_i32 s67, s22, 12
    s_add_u32 s67, s67, s21
    s_lshl_b32 s67, s67, 7
    s_add_u32 s67, s67, {FP}
    s_cmp_eq_u32 s20, 0
    s_cselect_b32 s67, s67, {OOB}
    """)

def zipw(*ls):
    keyed = []
    for li, l in enumerate(ls):
        for j, x in enumerate(l): keyed.append(((j + 0.5)/len(l), li, j, x))
    keyed.sort(key=lambda t: t[:3])
    return [y for k in keyed for y in k[3]]
def epi_t(kind, st):
    RC = AB[0]; PK = AB[1]; TMP = BB[0]
    e = A()
    for T in range(6):
        c = RC + 4*T
        e(f"v_mul_f32 v{c+2}, s83, v{c+1}")
        if kind == "silu": e(f"v_rcp_f32 v{c+3}, v{c+1}")
    blocks = [[(T, i) for T in Ts for i in idx] for idx in ((0, 1, 2, 3), (4, 5, 6, 7)) for Ts in ((0, 1), (2, 3), (4, 5))]
    blocks.append([(T, i) for T in range(6) for i in (8, 9)])
    nxt = lambda T: f"  s_mov_b32 s48, s{81 if T == 1 else 82}" if T in (1, 3) else "  s_add_u32 s48, s48, 1024"
    pend = []
    for bi, blk in enumerate(blocks):
        V = []; n = len(blk)
        u = lambda k: acc(blk[k][0], 0) + 2*blk[k][1]
        c = lambda k: RC + 4*blk[k][0]
        for k in range(n): V.append(f"  v_pk_fma_f32 {vr(u(k),2)}, {vr(CS+2*blk[k][1],2)}, {vr(c(k),2)}, {vr(u(k),2)} op_sel_hi:[1,0,1]")
        for k in range(n): V.append(f"  v_pk_mul_f32 {vr(TMP+2*k,2)}, {vr(u(k),2)}, {vr(c(k)+2,2)} op_sel_hi:[1,0]")
        if kind == "silu":
            for k in range(2*n): V.append(f"  v_exp_f32 v{TMP+k}, v{TMP+k}")
            for k in range(n): V.append(f"  v_pk_fma_f32 {vr(TMP+2*k,2)}, {vr(TMP+2*k,2)}, {vr(c(k)+2,2)}, {vr(c(k)+2,2)} op_sel:[0,1,1] op_sel_hi:[1,1,1]")
            for k in range(2*n): V.append(f"  v_rcp_f32 v{TMP+k}, v{TMP+k}")
            fin = lambda k: f"  v_pk_mul_f32 {vr(u(k),2)}, {vr(u(k),2)}, {vr(TMP+2*k,2)}"
        else:
            for k in range(2*n): V.append(f"  v_exp_f32_e64 v{TMP+k}, v{TMP+k} clamp")
            for k in range(n): V.append(f"  v_pk_fma_f32 {vr(u(k),2)}, {vr(u(k),2)}, {vr(c(k),2)}, 1.0 op_sel:[0,1,0] op_sel_hi:[1,1,0]")
            for k in range(2*n): V.append(f"  v_max_f32 v{u(k//2)+(k&1)}, v{u(k//2)+(k&1)}, v{TMP+k}")
            fin = lambda k: f"  v_pk_add_f32 {vr(u(k),2)}, {vr(u(k),2)}, {vr(VX+4,2)}"
        items = pend + grp(st.take(OPT["epi"][bi]), 1)
        if bi == OPT["f1blk"]: items.insert(len(pend) + OPT["f1pos"], W("sa") + L("s_barrier") + flag("s75") + stamp("f1"))
        ins = {}
        for k, x in enumerate(items): ins[5 + (k*(len(V) - 6)//len(items))//2*2] = x
        for i, v in enumerate(V):
            e.append(v)
            if i in ins: e += ins[i]
        p = PK + 12*(bi & 1); tg = " ;#sa" if bi < 3 else ""
        if bi in (0, 3, 6): e("s_mov_b32 s48, s80")
        pend = []
        for q in range(n//4):
            for k in range(4*q, 4*q + 4): e.append(fin(k))
            for k in range(4*q, 4*q + 4): e(f"v_cvt_pk_bf16_f32 v{p+k}, v{u(k)}, v{u(k)+1}")
            if bi < 6:
                T = blk[4*q][0]
                stv = [f"  buffer_store_dwordx4 {vr(p+4*q)}, v{VX + bi//3}, s[16:19], s48 offen sc1{tg}"]
                if T < 5: stv.append(nxt(T))
                if q == 0: e += stv
                else: pend.append(stv)
            else:
                e(f"v_permlane16_swap_b32 v{p+4*q}, v{p+4*q+2}\nv_permlane16_swap_b32 v{p+4*q+1}, v{p+4*q+3}")
                e(f"buffer_store_dwordx4 {vr(p+4*q)}, v{VX+2}, s[16:19], s48 offen sc1")
                if q < 2: e.append(nxt(2*q+1))
    return resolve(e)

def epi_kv(st):
    a = A()
    NM = AB[0]; TMP = BB[1]; FR = AB[1]; DD = ACC
    def RSf(T): return BB[0] + 4*T if T < 5 else VX
    a(f"""
    v_mov_b32 v{TMP+12}, 0x358637bd
    v_mov_b32 v{TMP+13}, 0x358637bd
    v_mov_b32 v{TMP+14}, 0x3f803f80
    s_waitcnt lgkmcnt(0)
    """)
    def kvm(P): return [f"  v_mfma_f32_16x16x32_bf16 {vr(DD+4*n)}, {vr(FR+4*kx)}, {vr(FR+4*vy)}, {'0' if P == 0 else vr(DD+4*n)}" for n, (kx, vy) in enumerate(PRODS)]
    for P in range(3):
        for h in range(2):
            T = 2*P + h; u0 = acc(T, 0); nm = NM + 4*T; rs = RSf(T); b = A()
            for t in range(5):
                for i in range(2):
                    r = u0 + 4*t + 2*i
                    b(f"v_pk_fma_f32 {vr(r,2)}, {vr(nm+2*i,2)}, {vr(CS+4*t,2)}, {vr(r,2)} op_sel_hi:[1,0,1]")
            for t in range(5):
                for i in range(2):
                    r = u0 + 4*t + 2*i
                    b(f"v_pk_mul_f32 {vr(r,2)}, {vr(r,2)}, {vr(rs+2*i,2)}")
            for i in range(6): b(f"v_pk_mul_f32 {vr(TMP+2*i,2)}, {vr(u0+2*i,2)}, s[30:31]")
            for i in range(12): b(f"v_exp_f32_e64 v{TMP+i}, v{TMP+i} clamp")
            for t in range(2, 5):
                for i in range(2): b(f"v_cvt_pk_bf16_f32 v{FR+4*(t+1)+2*h+i}, v{u0+4*t+2*i}, v{u0+4*t+2*i+1}")
            for i in range(2): b(f"v_cndmask_b32 v{FR+12+2*h+i}, v{FR+12+2*h+i}, v{TMP+14}, s[32:33]")
            for i in range(6): b(f"v_pk_add_f32 {vr(u0+2*i,2)}, {vr(u0+2*i,2)}, 1.0 op_sel_hi:[1,0]")
            for i in range(12): b(f"v_max_f32 v{u0+i}, v{u0+i}, v{TMP+i}")
            for i in range(6): b(f"v_pk_add_f32 {vr(u0+2*i,2)}, {vr(u0+2*i,2)}, {vr(TMP+12,2)}")
            for t in range(3):
                for i in range(2): b(f"v_cvt_pk_bf16_f32 v{FR+4*t+2*h+i}, v{u0+4*t+2*i}, v{u0+4*t+2*i+1}")
            n = OPT["epi_n"][T]
            a += inter(b, grp(st.take(n), 1), 2) if n else b
        if P: a(f"s_cmp_eq_u32 s36, 1\ns_cbranch_scc1 k_kvs{P}")
        for n, (kx, vy) in enumerate(PRODS):
            d = vr(DD + 4*n)
            a(f"v_mfma_f32_16x16x32_bf16 {d}, {vr(FR+4*kx)}, {vr(FR+4*vy)}, {'0' if P == 0 else d}")
        if P: a(f"k_kvs{P}:")
    a += stamp("kvv")
    a(f"""
    s_mul_i32 s28, s51, 1792
    s_add_u32 s37, s37, s28
    s_lshl_b32 s29, s52, 12
    s_add_u32 s28, s28, s29
    s_add_u32 s28, s28, {KVX}
    v_lshlrev_b32 v2, 2, v7
    v_add_u32 v3, s28, v2
    s_cmp_eq_u32 s51, 0
    s_cselect_b32 s28, 64, 8
    v_cmp_gt_u32 vcc, s28, v7
    v_mov_b32 v6, {OOB}
    """)
    for n in range(8): a(f"ds_write_b128 v{KVOF[n]}, {vr(DD+4*n)}")
    a("v_cndmask_b32 v6, v6, v2, vcc\ns_waitcnt lgkmcnt(0)\ns_barrier")
    for n in range(7): a(f"ds_read2st64_b32 {vr(72+2*n,2)}, v3 offset0:{n} offset1:{32+n}")
    for n in range(7):
        a(f"s_waitcnt lgkmcnt({6-n})\nv_add_f32 v{72+2*n}, v{72+2*n}, v{73+2*n}")
        a(f"buffer_atomic_add_f32 v{72+2*n}, v{6 if n == 6 else 2}, s[16:19], s37 offen offset:{256*n}")
    a += stamp("kvs")
    return a

PARK = list(range(168, 184)) + [239, 238, 240, 241, 242, 251, 252, 253]
def p2_early():
    GA = 168; F1A = 239; FW = 238; XA = [251, 252, 253]
    h = L(f"""
    s_and_b32 s21, s2, 3
    s_lshl_b32 s21, s21, 2
    s_bfe_u32 s28, s2, 0x20003
    s_add_u32 s21, s21, s28              ; hp
    s_and_b32 s23, s2, 4
    s_lshl_b32 s23, s23, 1
    s_lshr_b32 s28, s2, 5
    s_add_u32 s23, s23, s28              ; rg
    s_and_b32 s24, s2, 6
    s_lshl_b32 s24, s24, 2
    s_add_u32 s24, s24, s28
    s_mul_i32 s54, s21, 5
    s_lshr_b32 s54, s54, 2
    s_mul_i32 s49, s20, 15360
    s_add_u32 s49, s49, {RED}
    s_and_b32 s28, s24, 30
    s_mul_i32 s35, s28, 21846
    s_lshr_b32 s35, s35, 16
    s_add_u32 s35, s35, 144              ; W1 lines of the first row block: (12+i)*12 + rb, lanes 0..10
    s_add_u32 s28, s28, 1
    s_mul_i32 s28, s28, 21846
    s_lshr_b32 s28, s28, 16
    s_add_u32 s28, s28, 12               ; second row block, lanes 11..21
    s_lshr_b32 s29, s21, 1
    s_mul_i32 s29, s29, 12
    s_sub_u32 s29, s29, 22
    s_lshl_b32 s30, s23, 1
    s_mul_i32 s31, s30, 21846
    s_lshr_b32 s31, s31, 16
    s_add_u32 s30, s30, 1
    s_mul_i32 s30, s30, 21846
    s_lshr_b32 s30, s30, 16
    s_lshr_b32 s34, s21, 2
    s_mul_i32 s34, s34, 12
    s_add_u32 s34, s34, 96
    s_add_u32 s31, s31, s34              ; Q line, first row block (lane 22)
    s_add_u32 s30, s30, s34              ; Q line, second row block (lanes 23..)
    v_min_u32 v1, 21, v7
    v_mad_u32_u24 v2, v1, 12, s35
    v_mad_u32_u24 v3, v1, 12, s28
    v_cmp_le_u32 vcc, 11, v7
    v_cndmask_b32 v2, v2, v3, vcc
    v_lshlrev_b32 v3, 7, v2
    v_add_u32 v{F1A}, {FP + FPD}, v3
    v_add_u32 v3, s29, v7
    v_cmp_le_u32 vcc, 22, v7
    v_cndmask_b32 v2, v2, v3, vcc
    v_mov_b32 v3, s31
    v_cmp_le_u32 vcc, 33, v7
    v_cndmask_b32 v2, v2, v3, vcc
    v_mov_b32 v3, s30
    v_cmp_le_u32 vcc, 34, v7
    v_cndmask_b32 v2, v2, v3, vcc
    v_lshlrev_b32 v2, 7, v2
    v_add_u32 v{FW}, {FP}, v2
    """)
    s2 = A()
    s2(f"""
    v_and_b32 v1, 15, v7                 ; i / m
    v_lshrrev_b32 v2, 4, v7              ; g
    v_lshrrev_b32 v3, 2, v1
    v_and_b32 v212, 3, v1
    v_lshl_add_u32 v6, v3, 3, v212
    v_cmp_le_u32 vcc, 20, v6
    v_cndmask_b32 v216, 0, 5, vcc
    v_lshlrev_b32 v220, 2, v216
    v_sub_u32 v220, v6, v220
    v_add_u32 v6, 4, v6
    v_cmp_le_u32 vcc, 20, v6
    v_cndmask_b32 v217, 0, 5, vcc
    v_lshlrev_b32 v221, 2, v217
    v_sub_u32 v221, v6, v221
    v_cmp_gt_u32 vcc, 8, v1
    v_cndmask_b32 v218, 64, 5, vcc
    v_add_u32 v222, 12, v1
    v_add_u32 v6, v3, v212
    v_cmp_le_u32 vcc, 3, v6
    v_cmp_le_u32 s[34:35], 2, v212
    s_or_b64 vcc, vcc, s[34:35]
    v_cndmask_b32 v219, 0, 5, vcc
    v_mov_b32 v223, 20
    v_mov_b32 v213, 255
    s_mov_b32 s37, {RED}
    """)
    for k in range(2):
        s2(f"""
        s_add_u32 s31, s54, {k}
        s_mul_i32 s32, s31, 205
        s_lshr_b32 s32, s32, 10
        s_mul_i32 s32, s32, 5
        s_sub_u32 s32, s31, s32
        s_cmp_eq_u32 s32, 2
        s_cselect_b32 s33, 1, 0
        s_cselect_b32 s36, 1, 4
        s_lshl_b32 s31, s31, 3
        s_mul_i32 s32, s21, 10
        s_sub_u32 s31, s31, s32
        v_lshlrev_b32 v3, s33, v2
        v_add_u32 v3, s31, v3
        """)
        for j in range(2):
            if j: s2("v_add_u32 v3, s36, v3")
            for tl in range(4):
                s2(f"""
                v_sub_u32 v212, v3, v{216+tl}
                v_cmp_gt_u32 vcc, 5, v212
                v_mad_u32_u24 v212, v3, 21, v{220+tl}
                v_cndmask_b32 v212, v213, v212, vcc
                v_lshl_add_u32 v{GA+tl*4+k*2+j}, v212, 3, s37
                """)
    fs = A()
    for i in range(3):
        fs(f"""
        v_add_u32 v6, {64*i}, v7
        v_mul_u32_u24 v1, 6554, v6
        v_lshrrev_b32 v1, 16, v1
        v_mul_u32_u24 v3, 1120, v1
        v_lshl_add_u32 v3, v6, 4, v3
        v_cmp_gt_u32 vcc, 160, v6
        v_add_u32 v1, v1, v6
        v_mov_b32 v6, {OOB}
        v_lshl_add_u32 v{240+i}, v1, 4, s49
        v_cndmask_b32 v{XA[i]}, v6, v3, vcc
        """)
    smap = {21: 76, 54: 77, 23: 78, 32: 80, 33: 81, 34: 82, 35: 83, 36: 46, 37: 47, 49: 25}
    vmap = {1: 64, 2: 65, 3: 66, 6: 67, 239: 184, 238: 185, 240: 186, 241: 187, 242: 188, 251: 189, 252: 190, 253: 191}
    out = []
    for x in h + s2 + fs:
        x = x.replace("s[34:35]", "s[82:83]")
        x = re.sub(r"\bs(\d+)\b", lambda m: f"s{smap.get(int(m.group(1)), int(m.group(1)))}", x)
        x = re.sub(r"\bv(\d+)\b", lambda m: f"v{vmap.get(int(m.group(1)), int(m.group(1)))}", x)
        out.append(x)
    return out + [f"  v_accvgpr_write_b32 a{204+i}, v{168+i}" for i in range(24)]

def phase2(st):
    a = A()
    G = 8; GR = 88; AR = 140; NA = 4; SA = 208; XB = 228; RP = 148
    AV = [244, 245, 246, 247]; RW = [248, 249, 250]; XA = [251, 252, 253]
    GA = 168; DB = 208; KA = 236; OA = 0; UA = 237; FW = 238
    g1 = OPT["gap1"]; psched = OPT["psched"]; wtr = OPT["wtrail"]; F1A = 239; OB = 235
    s1 = L(f"""
    s_cmp_eq_u32 s20, 0
    s_cselect_b32 s55, 0, {OOB}
    s_cselect_b64 s[56:57], -1, 0
    s_and_b32 s21, s2, 3
    s_lshl_b32 s21, s21, 2
    s_bfe_u32 s28, s2, 0x20003
    s_add_u32 s21, s21, s28              ; hp
    s_and_b32 s23, s2, 4
    s_lshl_b32 s23, s23, 1
    s_lshr_b32 s28, s2, 5
    s_add_u32 s23, s23, s28              ; rg
    v_accvgpr_read_b32 v{F1A}, a220
    v_accvgpr_read_b32 v{FW}, a221
    s_mul_i32 s54, s21, 5
    s_lshr_b32 s54, s54, 2               ; ksA
    s_lshl_b32 s60, s21, 12
    s_add_u32 s60, s60, {KVP}
    v_lshlrev_b32 v3, 4, v0
    v_cmp_gt_u32 vcc, 210, v0
    v_mov_b32 v6, {OOB}
    v_cndmask_b32 v{KA}, v6, v3, vcc
    s_lshl_b32 s76, s23, 1
    s_add_u32 s76, s76, s51
    """) + blk(63, 76, "q", 28, 29) + L(f"""
    s_xor_b32 s63, s63, s3
    s_lshl_b32 s30, s52, 11
    s_add_u32 s63, s63, s30
    s_add_u32 s62, s54, 1
    """) + cell(61, 54, 28) + cell(62, 62, 28) + L(f"""
    s_add_u32 s61, s61, s63
    s_add_u32 s62, s62, s63
    s_add_u32 s63, s63, {QSZ}
    """)
    s2 = A()
    s2(f"v_and_b32 v1, 15, v7\nv_lshrrev_b32 v2, 4, v7\ns_mov_b32 s37, {RED}")
    s2 += [f"  v_accvgpr_read_b32 v{r}, a{204+i}" for i, r in enumerate(PARK) if i not in (16, 17)]
    ol = L(f"buffer_load_dwordx4 v[208:211], v{KA}, s[16:19], s60 offen sc1 ;#P")
    ql = L(f"""
    buffer_load_dwordx4 a[240:243], v4, s[16:19], s61 offen sc1 ;#Q
    buffer_load_dwordx4 a[244:247], v4, s[16:19], s62 offen sc1 ;#Q
    buffer_load_dwordx4 a[248:251], v4, s[16:19], s61 offen offset:1024 sc1 ;#Q
    buffer_load_dwordx4 a[252:255], v4, s[16:19], s62 offen offset:1024 sc1 ;#Q
    """)
    s3 = A()
    s3(f"""
    s_and_b32 s64, s23, 3
    s_lshl_b32 s64, s64, 11
    s_and_b32 s28, s23, 4
    s_lshl_b32 s28, s28, 12
    s_add_u32 s64, s64, s28
    s_and_b32 s28, s23, 8
    s_lshl_b32 s28, s28, 10
    s_xor_b32 s28, s28, s3
    s_add_u32 s64, s64, s28
    s_lshl_b32 s28, s21, 7
    s_add_u32 s64, s64, s28
    s_add_u32 s64, s64, {FO}
    s_add_u32 s64, s64, s55
    s_mul_i32 s28, s21, 5
    v_add_u32 v3, s28, v2
    v_lshrrev_b32 v6, 3, v3
    v_lshlrev_b32 v6, 14, v6
    v_bfe_u32 v212, v3, 2, 1
    v_lshl_add_u32 v6, v212, {13 if OPT["mode"] in ("cols", "none") else 12}, v6
    v_and_b32 v3, 3, v3
    v_lshl_add_u32 v6, v3, 8, v6
    v_lshl_add_u32 v{OB}, v1, 4, v6
    s_add_u32 s28, s28, 4
    s_lshr_b32 s30, s28, 2
    """)
    s3 += cell(30, 30, 29)
    s3(f"""
    s_and_b32 s28, s28, 3
    s_lshl_b32 s28, s28, 8
    s_add_u32 s28, s28, s30
    v_lshl_add_u32 v3, v1, 4, s28
    v_lshl_add_u32 v3, v2, 3, v3
    v_cmp_gt_u32 vcc, 2, v2
    v_mov_b32 v6, {OOB}
    v_lshl_add_u32 v{UA}, v0, 3, s37
    v_cndmask_b32 v{OA}, v6, v3, vcc
    """)
    sA = A()
    sA += blk(40, 24, "h", 28, 29) + cell(30, 47, 29) + L(f"""
    s_xor_b32 s40, s40, s3
    s_add_u32 s44, s40, s30              ; own rows
    s_bitcmp1_b32 s24, 0
    s_cselect_b32 s28, {-HSZ & 0xffffffff}, {HSZ}
    s_add_u32 s45, s44, s28              ; partner rows (other block of the same page)
    """)
    for T in range(4):
        sA(f"s_add_u32 s28, s20, {T}\ns_and_b32 s28, s28, 3\ns_lshl_b32 s28, s28, 10\nv_add_u32 v{AV[T]}, s28, v4")
    osum = W("P") + L(f"v_cvt_pk_bf16_f32 v208, v208, v209\nv_cvt_pk_bf16_f32 v209, v210, v211\nds_write_b64 v{UA}, v[208:209]")
    ogat = [f"  ds_read_b64 {ar(204+2*n,2)}, v{GA+n}" for n in range(16)]
    om = []
    for k in range(2):
        for T in range(2):
            for tl in (3, 0, 1, 2):
                d = vr(DB + 16*T + 4*tl)
                om.append(f"  v_mfma_f32_16x16x32_bf16 {d}, {ar(204+tl*8+k*4)}, {ar(240+T*8+k*4)}, {'0' if k == 0 else d}")
    ofin = []
    for T in range(2):
        o = A(); b = DB + 16*T; z = b + 12; pk = GA + 6*T
        for r in range(3): o(f"v_add_f32 v{z+r}, 0x358637bd, v{z+r}")
        for r in range(3): o(f"v_rcp_f32 v{z+r}, v{z+r}")
        for tl in range(3):
            for r in range(4): o(f"v_mul_f32 v{b+4*tl+r}, v{b+4*tl+r}, v{z+tl}")
        for i in range(6): o(f"v_cvt_pk_bf16_f32 v{pk+i}, v{b+2*i}, v{b+2*i+1}")
        o(f"buffer_store_dwordx4 {vr(pk)}, v2, s[16:19], s63 offen offset:{1024*T} sc1 ;#OS")
        o(f"buffer_store_dwordx2 {vr(pk+4,2)}, v{OA}, s[16:19], s63 offen offset:{1024*T} sc1 ;#OS")
        ofin.append(list(o))
    fs = A()
    fs(f"""
    s_lshl_b32 s42, s24, 2
    s_add_u32 s42, s42, s20
    s_lshr_b32 s30, s24, 1
    s_and_b32 s28, s30, 3
    s_lshl_b32 s28, s28, 11
    s_and_b32 s29, s30, 4
    s_lshl_b32 s29, s29, 12
    s_add_u32 s28, s28, s29
    s_and_b32 s29, s30, 8
    s_lshl_b32 s29, s29, 10
    s_xor_b32 s29, s29, s3
    s_add_u32 s28, s28, s29
    s_add_u32 s28, s28, {FO}
    v_min_u32 v6, 15, v7
    v_lshl_add_u32 v{VF-1}, v6, 7, s28
    s_mul_i32 s48, s42, {16*1280}
    s_mul_i32 s28, s25, 160
    s_add_u32 s48, s48, s28
    """)
    fs += blk(42, 24, "o", 28, 29)
    fs(f"""
    s_xor_b32 s42, s42, s3
    s_lshl_b32 s28, s20, 10
    s_add_u32 s42, s42, s28
    s_mul_i32 s49, s20, 15360
    s_add_u32 s49, s49, {RED}
    v_mul_u32_u24 v243, 176, v1
    v_lshl_add_u32 v243, v2, 3, v243
    v_add_u32 v243, s49, v243            ; result write: row stride 176
    """)
    for T in range(1, 4):
        fs(f"s_add_u32 s28, s20, {T}\ns_and_b32 s28, s28, 3\ns_mul_i32 s28, s28, 15360\ns_add_u32 s28, s28, {RED + (T-1)*5120}\nv_add_u32 v{RW[T-1]}, s28, v4")
    fs(f"""
    v_add_u32 v1, s49, v4
    v_mov_b32 v2, v{OB}
    s_and_b32 s28, s24, 15
    s_lshl_b32 s28, s28, 3
    s_add_u32 s28, s28, s25
    s_lshl_b32 s28, s28, 2
    s_add_u32 s28, s28, s20
    """)
    fs += cell(65, 28, 29)
    fs(f"""
    s_add_u32 s65, s65, {GXP*PG}
    s_lshr_b32 s28, s65, 21
    s_lshr_b32 s29, s24, 4
    s_xor_b32 s28, s28, s29
    s_and_b32 s28, s28, 1
    s_lshl_b32 s28, s28, 13
    s_xor_b32 s28, s28, s3
    s_add_u32 s65, s65, s28
    s_xor_b32 s66, s65, {16*16384}
    s_add_u32 s72, s66, 3072
    s_add_u32 s73, s65, 3072
    """)
    MG = OPT["mg"]
    SL = OPT["slots"]; RL = max(i for i, x in enumerate(SL) if x[0] == "r")
    def areg(s): return 204 if s == 13 else AR + (s % NA)*16
    def ldA(s):
        r_, j = SL[s]
        r = [f"  s_add_u32 s41, s{45 if r_ == 'r' else 44}, {65536*j}"]
        if j == 6: r += L(f"s_cmp_lt_u32 s20, 3\ns_cselect_b32 s41, s41, {OOB}")
        return r + [f"  buffer_load_dwordx4 {ar(areg(s)+4*T)}, v{AV[T]}, s[16:19], s41 offen sc1 ;#A{s}{'abcd'[T]}" for T in ((1, 2, 3, 0) if s >= MG else range(4))]
    a("k_p2:\n;MARK ep")
    for i in range(7): a(f";MARK B{i}")
    for i in range(5): a(f";MARK wo{i}")
    a += stamp("eend")
    gs = grp(st.take(g1), 2)
    gs.insert(len(gs) - OPT["poll_early"], poll(F1A, VF, "p1", "s55"))
    allsu = glue(s1 + sA + s2 + s3 + fs); k1 = OPT["su1"]; k2 = OPT["su2"]
    assert k1 >= len(glue(s1 + sA))
    flat = lambda l: sum(l, [])
    p1at = next(i for i, x in enumerate(allsu) if f"v_accvgpr_read_b32 v{F1A}," in x[0]) + 1
    a += inter(flat(allsu[:k1]), gs, p1at if OPT["poll_early"] >= len(gs) - 2 else 0)
    a += W("ep") + L("s_barrier") + flag("s67", 224) + stamp("flag")
    a += W("p1") + L("s_mov_b64 s[58:59], vcc") + check("k_s1", F1A, VF, True) + L("s_mov_b64 vcc, s[58:59]") + stamp("c1")
    pre = grp(ldA(2), 1)
    if OPT["pp2"] < 0: pre.append(poll(FW, VF, "p2", "s55"))
    a += ldA(0) + ldA(1) + inter(flat(allsu[k1:k2]), pre)
    if min(OPT["xs"]) < OPT["c2"]:
        kx = max(i for i, x in enumerate(allsu) if "s_add_u32 s49, s49," in x[0]); assert kx < k2, (kx, len(allsu))
    late = allsu[k2:]; nl = OPT["c2"]
    late = {i: flat(late[i*len(late)//nl:(i+1)*len(late)//nl]) for i in range(nl)}
    def ldO(i0, n):
        r = []
        for i in range(i0, i0 + n):
            if OPT["mode"] in ("cols", "none"):
                r += [f"  s_add_u32 s43, s42, {8192*i}", f"  buffer_load_dwordx4 {ar(4*i)}, v4, s[16:19], s43 offen sc1 ;#O{i}"]; continue
            if i % 2 == 0 or i == i0: r.append(f"  s_add_u32 s43, s42, {16384*(i//2)}")
            r.append(f"  buffer_load_dwordx4 {ar(4*i)}, v{4 + (i & 1)}, s[16:19], s43 offen sc1 ;#O{i}")
        return r
    ldX = [[f"  s_add_u32 m0, s49, {4096 + 1024*i}", "  s_nop 0", f"  buffer_load_dwordx4 v{XA[i]}, s[8:11], s48 offen lds ;#X"] for i in range(3)]
    rdX = L("v_add_u32 v2, 51200, v4\nv_and_b32 v3, 15, v7\nv_lshlrev_b32 v3, 4, v3\nv_sub_u32 v3, v243, v3") + W("X") + tag([f"  ds_read_b64 {vr(XB+2*t,2)}, v3 offset:{4096+32*t}" for t in range(5)], "xr")
    NB = 3
    def sb(s, t): return vr(GR + 20*(s % NB) + 4*t)
    def rdB(s): return tag([f"  ds_read_b128 {sb(s,t)}, v{4 if s < 10 else 2} offset:{(s%10)*5120+1024*t}" for t in range(5)], f"b{s}")
    wr_ = tag([f"  ds_write_b128 v{RW[T-1]}, {vr(G+(T*5+t)*4)} offset:{1024*t}" for T in range(1, 4) for t in range(5)], "w")
    rd_ = tag([f"  ds_read_b128 {vr(G+20+4*j)}, v1 offset:{1024*j}" for j in range(15)], "r")
    xw = tag([f"  ds_write_b128 v{RW[T-1]}, {vr(GR+(T*5+t)*4)} offset:{1024*t}" for T in range(1, 4) for t in range(5)], "xw")
    xr = tag([f"  ds_read_b128 {vr(GR+20+20*j+4*t)}, v1 offset:{5120*j+1024*t}" for t in range(5) for j in range(3)], "xr")
    xa = []
    for t in range(5):
        xa += [f"  v_add_f32 v{GR+4*t+i}, v{GR+4*t+i}, v{GR+20+20*j+4*t+i}" for j in range(3) for i in range(4)]
        xa += [f"  v_cvt_pk_bf16_f32 v{GA+2*t+i}, v{GR+4*t+2*i}, v{GR+4*t+2*i+1}" for i in range(2)]
        if t in (1, 3): xa.append(f"  buffer_store_dwordx4 {vr(GA+2*t-2)}, v4, s[16:19], s66 offen offset:{512*(t-1)} sc1 ;#XS")
    xa += L(f"v_lshlrev_b32 v0, 3, v7\nbuffer_store_dwordx2 {vr(GA+8,2)}, v0, s[16:19], s66 offen offset:2048 sc1 ;#XS")
    xl = [f"  buffer_load_dwordx4 {vr(GA+4*t)}, v4, s[16:19], s65 offen offset:{1024*t} sc1 ;#XL" for t in range(2)] + [f"  buffer_load_dwordx2 {vr(GA+8,2)}, v0, s[16:19], s65 offen offset:2048 sc1 ;#XL"]
    XF, XP, XC = OPT["xf"], OPT["xp"], OPT["xc"]
    xpoll = L(f"v_mov_b32 v{VF-1}, s73") + poll(VF-1, VF, "xp")
    C2 = OPT["c2"]; plan = OPT["aplan"]; OFS = OPT["ofs"]; PO = OPT["po"]; PC = OPT["pc"]; osched = OPT["osched"]
    no = 0
    XU = 184
    xu = []
    for i in range(10): xu += [f"  v_lshlrev_b32 v{XU+2*i}, 16, v{XB+i}", f"  v_and_b32 v{XU+2*i+1}, 0xffff0000, v{XB+i}"]
    def wdone(g): return ("W", 5*g + 4) not in st.items
    def mf(s, T, rev):
        r_, j = SL[s]; GG = GR if r_ == "r" else G; first = all(x[0] != r_ for x in SL[:s])
        return [f"  v_mfma_f32_16x16x32_bf16 {vr(GG+(T*5+t)*4)}, {breg(j,t)}, {ar(areg(s)+4*T)}, {'0' if first else vr(GG+(T*5+t)*4)}" for t in (range(4, -1, -1) if rev else range(5))]
    nm = 14 - MG; WB = OPT["wb"]
    for s in range(MG + 4):
        if s < MG:
            need = [f"A{s}{c}" for c in "abcd"] + [f"B{SL[s][1]}"]; assert ("B", 5*SL[s][1] + 4) not in st.items
            M = sum((mf(s, T, k & 1) for k, T in enumerate((1, 2, 3, 0) if s == RL else range(4))), [])
            if OPT["xw"] == 2 and s in (RL - 1, RL):
                Ts = (1, 2) if s == RL - 1 else (3, 0)
                need = [f"A{x}{'abcd'[T]}" for x in (RL - 1, RL) for T in Ts] + [f"B{SL[RL][1]}"]
                M = sum((mf(x, T, False) for T in Ts for x in (RL - 1, RL)), [])
        else:
            T = (1, 2, 3, 0)[s - MG]
            need = [f"A{x}{'abcd'[T]}" for x in range(MG, 14)]
            M = sum((mf(x, T, False) for x in range(MG, 14)), [])
        if s == XF: need.append("XS")
        vm = need + (["op"] if s == PC else []) + ([f"wo{g}" for g in range(5) if g not in wtr] if s == WB else []) + (["OS"] if s == OFS else []) + (["p2"] if s == C2 else [])
        if s == WB: assert all(wdone(g) for g in range(5) if g not in wtr)
        OQ = OPT["oq"]; OM = C2 + (1 if OQ else 2)
        XB_ = OFS if OPT["xr"] < OFS else RL
        assert XB_ <= (RL - 1 if OPT["xw"] == 2 else RL)
        a += W(vm, "*" if (s in (XB_, XB_ if OPT["xw"] == 1 else RL + 2) or (s == C2 + 2 and not OQ)) else ())
        a += stamp(f"g{s}")
        if s == C2: a += check("k_sw", FW, VF, True) + stamp("w1")
        if s == PC: a += check("k_so", VF-1, VF, True) + stamp("op")
        if s != PC and s in (OFS, -1 if OQ else C2 + 2, WB, XB_, MG + 1, RL + 2 if OPT["xw"] == 2 else -1): a("s_barrier")
        ls = []; n = len(M)
        for x in plan.get(s, []):
            if OPT["xw"] == 2 and x != 13 and x - NA == RL - 1: assert s > RL
        for x in plan.get(s, []): assert (SL[x][1] < 2 or s >= C2) and (x - s <= 3 or (x == 13 and s > C2 + 3))
        v = sum((ldA(x) for x in plan.get(s, [])), [])
        if s == C2: v = ol + ql + v
        if s == OFS: v = flag("s64") + v
        if s == XF: v = flag("s72") + v
        if s == XP: assert s > PC; v = xpoll + v
        if s == PO: v = poll(VF-1, VF, "op", "s55") + v
        if s == OPT["pp2"]: v = poll(FW, VF, "p2", "s55") + v
        if late.get(s): ls.append((late[s], 0, n - 1))
        if s in OPT["xs"]: v += sum([ldX[i] for i, x in enumerate(OPT["xs"]) if x == s], [])
        if psched.get(s): v += st.take(psched[s])
        if osched.get(s): v += ldO(no, osched[s]); no += osched[s]
        ls.append((v, 0, n - 2))
        if OQ:
            if s == C2 + 1: ls += [(osum, OQ, OQ + 1), (L("s_waitcnt lgkmcnt(0)\ns_barrier"), OQ + 4, OQ + 4), (ogat, OQ + 5, min(OQ + 10, 19))]
        else:
            if s == C2 + 1: ls.append((osum, 16, 19))
            if s == C2 + 2: ls.insert(0, (ogat, 0, 10))
        if s == OM + 1: ls.append((ofin[0] + ofin[1], 1, 19))
        if s == OPT["xr"]: assert s < RL and s != OFS and s > OM + 1; ls.insert(0, (rdX, 0, 8))
        if OPT["xw"] == 0:
            if s == RL: ls += [(xw[:5], 10, 14), (xw[5:10], 15, 19)]
            if s == RL + 1: ls += [(xw[10:], 0, 5), (L("s_waitcnt lgkmcnt(0)\ns_barrier"), 9, 9), (xr, 10, 19)]
            if s == RL + 2: ls.append((xa[:OPT["xcut"]], 0, n - 1))
            if s == RL + 3: ls.append((xa[OPT["xcut"]:], 0, n - 1))
        else:
            if OPT["xw"] == 1:
                if s == RL: ls.append((xw[:4], 9, 19))
                if s == RL + 1: ls.append((xw[4:11], 0, 19))
                if s == RL + 2: ls += [(xw[11:], 0, 9), (L("s_waitcnt lgkmcnt(0)\ns_barrier"), 12, 12), (xr, 13, 19)]
            else:
                if s == RL - 1: ls.append((xw[:3], 12, 19))
                if s == RL: ls.append((xw[3:10], 0, 19))
                if s == RL + 1: ls.append((xw[10:], 0, 14))
                if s == RL + 2: ls.append((xr, 0, 14))
            if s == RL + 3:
                a += L("s_waitcnt lgkmcnt(0)") + [";@align on"] + [f"  v_pk_add_f32 {vr(GR+2*i,2)}, {vr(GR+2*i,2)}, {vr(GR+20+20*j+2*i,2)}" for j in range(3) for i in range(10)] + [";@align off"]
                ls.append(([x for x in xa if "v_add_f32" not in x], 0, n - 1))
        if s > MG: ls.append((wr_[5*(s-MG-1):5*(s-MG)], 2, n - 1))
        if s == OPT["xup"]: assert s >= XB_; ls.append((xu, 0, n - 1))
        if WB <= MG + 2:
            if s >= MG + 2: ls.append((rdB(s - MG - 2), 0, n - 2))
        elif s == MG + 3: ls.append((rdB(0) + rdB(1), 0, n - 2))
        a += place(M, ls)
        if s == OM: a += W("Q", "*") + stamp("om") + place(om, [(st.take(OPT["pom"]), 0, 15)])
    a += stamp("gend")
    E = G + 20
    VB = []
    for j in range(3):
        for i in range(10): VB.append(f"  v_pk_add_f32 {vr(G+2*i,2)}, {vr(G+2*i,2)}, {vr(G+20+20*j+2*i,2)}")
    VC = []
    for i in range(10): VC += [f"  v_lshlrev_b32 v{RP+2*i}, 16, v{GA+i}", f"  v_and_b32 v{RP+2*i+1}, 0xffff0000, v{GA+i}"]
    VC += [f"  v_pk_add_f32 {vr(G+2*i,2)}, {vr(G+2*i,2)}, {vr(RP+2*i,2)}" for i in range(10)]
    VC += [f"  v_pk_mul_f32 {vr(E+2*i,2)}, {vr(G+2*i,2)}, s[30:31]" for i in range(10)]
    VA = [f"  v_add_f32 v{G+i}, v{G+i}, v{G+20+20*j+i}" for j in range(3) for i in range(20)]
    V = []
    V += [f"  v_exp_f32 v{E+i}, v{E+i}" for i in range(20)]
    V += [f"  v_add_f32 v{E+i}, 1.0, v{E+i}" for i in range(20)]
    V += [f"  v_rcp_f32 v{E+i}, v{E+i}" for i in range(20)]
    V += [f"  v_mul_f32 v{G+i}, v{G+i}, v{E+i}" for i in range(20)]
    V0 = OPT["v0"]; RB = OPT["rb"]; LK = NB - 1; P0 = MG + 4
    V1 = OPT["v1"]; pa = -(-60//(V1 - V0))
    cost = [8 if ("exp" in x or "rcp" in x) else 4 for x in V]; tot = sum(cost); parts = [[] for _ in range(20 - V1)]; c_ = 0
    for x, c in zip(V, cost): parts[min(len(parts) - 1, c_*len(parts)//tot)].append(x); c_ += c
    for s in range(20):
        wg = [g for g, st_ in wtr.items() if st_ == s]
        for g in wg: assert s + LK <= 4*g and wdone(g)
        a += W([f"O{s}"] + [f"wo{g}" for g in wg] + (["XS"] if P0 + s == XF else []) + (["xp"] if P0 + s == XC else []) + (["XL"] if s == V1 else []), [f"b{s}"] + (["w"] if s == RB else []) + (["r"] if s == V0 else []))
        if s == RB or wg: a("s_barrier")
        a += stamp(f"s{s}")
        if P0 + s == XC: a += check("k_sx", VF-1, VF) + stamp("xc")
        if s == V1: a += [";@align on"] + VC + [";@align off"]
        M = [f"  v_mfma_f32_16x16x32_bf16 {vr(SA+4*t)}, {sb(s,t)}, {ar(4*s)}, {'0' if s == 0 else vr(SA+4*t)}" for t in range(5)]
        ls = []
        if s + LK < 20: ls.append((rdB(s+LK), 0, 4))
        v = []
        if P0 + s == XF: v += flag("s72")
        if P0 + s == XP: v += xpoll
        if P0 + s == XC: v += xl
        if psched.get(P0 + s): v += st.take(psched[P0 + s])
        if osched.get(P0 + s): v += ldO(no, osched[P0 + s]); no += osched[P0 + s]
        ls.append((v, 0, 4))
        if s == 0: ls.append((L(f"s_mov_b32 s30, {LOG2E|0x80000000}\ns_mov_b32 s31, {LOG2E|0x80000000}"), 0, 4))
        if RB <= s < RB + 3: ls.append((rd_[5*(s-RB):5*(s-RB)+5], 0, 4))
        if V0 <= s < V1: ls.append((VA[(s-V0)*pa:(s-V0+1)*pa], 0, 4))
        if s >= V1: ls.append((parts[s-V1], 0, 4))
        a += place(M, ls)
    assert no == 20 and not st.items, (no, st.items)
    a += stamp("send")
    for t in range(5):
        for i in range(2): a(f"v_pk_fma_f32 {vr(SA+4*t+2*i,2)}, {vr(SA+4*t+2*i,2)}, {vr(G+4*t+2*i,2)}, {vr(XU+4*t+2*i,2)}")
        for i in range(2): a(f"v_cvt_pk_bf16_f32 v{XB+2*t+i}, v{SA+4*t+2*i}, v{SA+4*t+2*i+1}")
        a(f"ds_write_b64 v243, {vr(XB+2*t,2)} offset:{32*t}")
    a(";@align off\ns_waitcnt lgkmcnt(0)")
    for i in range(3): a(f"ds_read_b128 {vr(E+4*i)}, v{240+i}")
    for i in range(3): a(f"s_waitcnt lgkmcnt({2-i})\nbuffer_store_dwordx4 {vr(E+4*i)}, v{XA[i]}, s[4:7], s48 offen")
    a += stamp_out()
    return resolve(a)

HEADER = """; One persistent launch, one workgroup per CU (generated by my own script, fully unrolled).
; phase 1: 192x160 tiles of x @ [wqkv | w1]; LayerNorm is folded into the epilogue (row mean / rstd, column sums);
;          side jobs: row statistics, column sums, repacking of w2 / wo into MFMA fragment order;
;          epilogues: silu -> h, phi -> pq, phi(k)^T [v | 1] -> kv / z (float atomics).
;          out = x + s * silu(gate).
; Hand-offs: write-through stores, wait, then a flag word holding this launch's tag (derived from ws[0]).
; Two spare workgroups race round trips to two 8 KB granules of d_ws to learn which is closer; the answer only
; kernarg: 0 x, 8 wqkv, 16 wo, 24 (unused), 32 w1, 40 w2, 48 out, 56 debug, 64 ws"""
def build():
    OUTL.clear()
    pro = prologue()
    br = L("s_cmp_lt_u32 s22, 8\ns_cbranch_scc1 k_kv")
    if OPT["pol"] == "race":
        br += L("s_cmp_eq_u32 s21, 11\ns_cbranch_scc1 k_race")
        OUTL("k_race:")
        OUTL("s_mov_b64 s[36:37], s[74:75]")
        OUTL.extend(d_misc())
        OUTL("s_waitcnt vmcnt(0)\ns_barrier")
        OUTL.extend(flag("s49"))
        OUTL(f"""
        s_cmp_lg_u32 s20, 0
        s_cbranch_scc1 k_race2
        s_cmp_eq_u32 s2, 2
        s_cbranch_scc1 k_race2
        s_mov_b32 s29, s2
        s_lshl_b32 s28, s29, 13
        s_add_u32 s28, s28, {RACE}
        v_lshlrev_b32 v6, 25, v7
        s_mov_b32 s56, s36
        s_and_b32 s57, s37, 0xffff
        s_mov_b32 s58, 256
        s_mov_b32 s59, 0x20000
        v_mov_b32 v3, 0
        buffer_atomic_add v3, v6, s[16:19], s28 offen sc0
        v_mov_b32 v1, 1
        s_mov_b32 s30, 12
        s_mov_b32 s31, 1
        s_waitcnt vmcnt(0)
        k_race0:
        buffer_atomic_add v1, v6, s[56:59], 0 offen offset:4 sc0
        s_sub_u32 s30, s30, 1
        s_waitcnt vmcnt(0)
        v_readfirstlane_b32 s38, v1
        v_mov_b32 v1, 0
        s_and_b32 s38, s38, 1
        s_cmp_eq_u32 s38, s31                ; first trip: odd = partner is there; later trips: even
        s_cselect_b32 s30, 0, s30
        s_mov_b32 s31, 0
        s_cmp_lg_u32 s30, 0
        s_cbranch_scc1 k_race0
        s_mov_b32 s30, {OPT['trips']}
        k_race1:
        v_mov_b32 v3, 0
        buffer_atomic_add v3, v6, s[16:19], s28 offen sc0
        s_sub_u32 s30, s30, 1
        s_cmp_lg_u32 s30, 0
        s_waitcnt vmcnt(0)
        s_cbranch_scc1 k_race1
        v_mov_b32 v3, 1
        buffer_atomic_add v3, v6, s[56:59], 0 offen sc0
        s_lshl_b32 s29, s29, 13
        s_xor_b32 s29, s29, s39
        s_waitcnt vmcnt(0)
        v_readfirstlane_b32 s30, v3
        v_mov_b32 v3, s29
        s_nop 0
        s_bitcmp0_b32 s30, 0
        s_cselect_b32 s28, {PW}, {OOB}
        buffer_store_dword v3, v6, s[16:19], s28 offen sc1
        k_race2:
        """)
        OUTL.extend((d_cs() if OPT["keep"] < 1 else []) + [f"  s_mov_b32 s{r}, {OOB}" for r in (61, 62, 63, 75, 80, 81, 82, 83)] + [f"  v_add_u32 v{L2B+i}, {2*STAGE}, v{LA+i}" for i in range(5)] + L("s_branch k_t_join"))
    items = [("B", i) for i in range(35)] + [("W", i) for i in range(25)]
    st_t = Stream(items); st_n = Stream(items)
    mt = g1_main("k_t", True, st_t)
    mt += L("s_waitcnt lgkmcnt(0)\ns_cmp_lt_u32 s22, 12\ns_cbranch_scc1 k_q")
    eq = epi_t("phi", Stream(st_t.items)); es = epi_t("silu", st_t)
    mn = g1_main("k_n", False, st_n)
    ek = epi_kv(st_n)
    assert st_n.items == st_t.items
    n0 = len(resolve(pro + br))
    a = resolve(pro + br + mt) + es + phase2(st_t) + L("s_endpgm\nk_q:") + eq + L("s_branch k_p2\nk_kv:") + resolve(pro + br + mn + ek)[n0:] + L("s_branch k_p2")
    a += L("k_end:\ns_endpgm") + OUTL
    body, added = haz.fix(a)
    body, nbytes, nn, npm = align.align([x.replace("CODE_KB", "40").replace("CODE_MAX", "44444") for x in body])
    kb = (nbytes + 1023)//1024; assert kb <= 64
    body = [x.replace("s_cmp_ge_u32 s28, 40", f"s_cmp_ge_u32 s28, {kb if OPT.get('cpf', 1) else 0}").replace("44444", str((nbytes - 16) & ~15)) for x in body]
    body = [re.sub(r"\s*;(#\S+|nocount|C)$", "", x) for x in body]
    print("instrs", len(body), "nops added", added, "bytes", nbytes, "align nops", nn, "promoted", npm, file=sys.stderr)
    if OPT.get("nost"): body = [x for x in body if not ("buffer_store_dwordx4" in x and "s[76:79]" in x)]
    if OPT.get("cyc"): body = [x.replace("s_memrealtime", "s_memtime") for x in body]
    out = ["; @launch grid=(256,1,1) block=(256,1,1) lds=163840", HEADER,
           '.amdgcn_target "amdgcn-amd-amdhsa--gfx950"\n.text', khead(NAME)] + body
    if DIAG: out.append(";ST " + " ".join(OPT["st"][:7]) + "\n;OPTS " + " ".join(x for x in sys.argv[3:] if not x.startswith("st=")))
    out.append('.section .rodata,"a"\n.p2align 6\n' + kd(NAME, 512, 256, 102))
    return "\n".join(out) + "\n"
if __name__ == "__main__":
    for x in sys.argv[2:]:
        if x == "d": DIAG = True
        else:
            k, v = x.split("=", 1); OPT[k] = eval(v)
    src = build()
    open(sys.argv[1], "w").write(src)
```

```python
import sys, re
from asmlib import kd, khead
import haz, align

NAME = "recurrent_scan__linear_attn_block__dense_activation_silu__prompt_kernel"
S, D, F = 2048, 640, 1728
FA = 0x8000
FP = 0xF0000
FPD = 0x9000 - 144*128
FO = 0x38000
NEGM = 0x10000; RSTD = 0x12000
CSP = 0x14000
KVP   = 0x40000
PG = 1 << 21
PW = 0xC8000
RACE = 0xC0000
WPP = 1
HOF = 74*16384; HSZ = 27*16384
QPP = 9; QSZ = 10*16384
GXP = 13
WS_USED = 15*PG
TS = 0x1F00000
def blk(dst, rb, kind, t0, t1):
    sh, pg, msk, sz, of = (1, WPP, 1, HSZ, HOF) if kind == "h" else (2, QPP, 3, 2*QSZ, QSZ if kind == "o" else 0)
    return L(f"""
    s_and_b32 s{t0}, s{rb}, 15
    s_lshr_b32 s{t0}, s{t0}, {sh}
    s_add_u32 s{t0}, s{t0}, {pg}
    s_lshr_b32 s{t1}, s{rb}, 4
    s_xor_b32 s{t1}, s{t1}, s{t0}
    s_and_b32 s{t1}, s{t1}, 1
    s_lshl_b32 s{t1}, s{t1}, {12 if OPT["mode"] in ("cols", "none") else 13}
    s_lshl_b32 s{t0}, s{t0}, 21
    s_add_u32 s{t0}, s{t0}, s{t1}
    s_and_b32 s{t1}, s{rb}, {msk}
    s_mul_i32 s{t1}, s{t1}, {sz}
    s_add_u32 s{t0}, s{t0}, s{t1}
    s_add_u32 s{dst}, s{t0}, {of}
    """)
def cell(dst, idx, t0):
    return L(f"s_lshr_b32 s{t0}, s{idx}, 1\ns_lshl_b32 s{t0}, s{t0}, 14\ns_and_b32 s{dst}, s{idx}, 1\ns_lshl_b32 s{dst}, s{dst}, {13 if OPT['mode'] in ('cols', 'none') else 12}\ns_add_u32 s{dst}, s{dst}, s{t0}")
LOG2E = 0x3fb8aa3b
OOB = 0x40000000
STAGE = 45056; WOFF = 24576; SPARE = 3*STAGE
AUXC = SPARE; AUXM = SPARE + 6400
CSL = SPARE + 8192
PACKL = SPARE
KVX = SPARE + 10240
RED = 102400
DIAG = False
OPT = dict(spin=200000, pkd=1, pkr=3, pks={4: 3, 5: 2}, flagb=3, flagb_n=2, pollb=6,
           pf_t={15:5,16:5,17:5,18:5,19:7}, pf_n={15:4,16:4,17:4,18:5,19:5}, epi_n=[5, 5, 5, 5, 4, 0], kv_first=0,
           epi=[4, 3, 2, 3, 2, 2, 3], oq=9, f1blk=5, f1pos=0, gap1=8, poll_early=1, c2=2, pom=0,
           slots=[("r",0),("r",1),("o",0),("o",1),("r",2),("r",3),("r",4),("r",5),("r",6),("o",2),("o",3),("o",4),("o",5),("o",6)],
           aplan={0:[3],2:[4],3:[5,6],4:[7],5:[8],6:[9],7:[10],8:[11,13],9:[12]},
           mg=11, wb=14, xr=6, rb=1, burst=1, su1=170, su2=372, pp2=0,
           psched={0:1,1:2,10:3}, xs=[1, 1, 1], ofs=7, po=9, pc=12, xcut=44, xf=14, xp=18, xc=22, v1=12,
           osched={12:4,13:4,14:4,15:2,16:2,17:2,19:2}, xw=1, nbuf=3, v0=5, nopk=1, adist=3, p2map=1, su_pre=200, su_pre_n=160, sleep=2, rot=0, snake=1, krot=0, fash=4, wtrail={}, wrow=1, wfirst=0, sufirst=0, keep=2, swarm=0, touch=1, slin=1, head=5, w1first=0, cmaj=0, pol="race", mode="rows", trips=8, cpf2=12,
           st=["eend", "w1", "g11", "op", "gend", "s5", "send"])

class A(list):
    def __call__(self, s):
        for x in s.strip("\n").split("\n"):
            x = x.strip()
            m = re.match(r"s_cselect_b32 (s\d+), (\d+|0x[0-9a-f]+), (\d+|0x[0-9a-f]+)\s*(;.*)?$", x)
            if m and int(m.group(2), 0) > 64 and int(m.group(3), 0) > 64:
                self.append(f"  s_mov_b32 {m.group(1)}, {m.group(3)}")
                x = f"s_cselect_b32 {m.group(1)}, {m.group(2)}, {m.group(1)}"
            if x: self.append(("" if x.endswith(":") else "  ") + x)
        return self
def L(s): return list(A()(s))
def stamp(name):
    if not DIAG: return []
    if name == "entry": i = 0
    elif name in OPT["st"][:7]: i = 1 + OPT["st"].index(name)
    else: return []
    return [f"  s_memrealtime s[{84+2*i}:{85+2*i}]"]
def stamp_out():
    if not DIAG: return []
    if OPT.get("echo") is not None:
        i = OPT["echo"]
        return L(f"""
        s_waitcnt vmcnt(0)
        s_memrealtime s[100:101]
        s_waitcnt lgkmcnt(0)
        s_sub_u32 s28, s{84+2*i}, s84
        s_cmp_gt_u32 s28, 4000
        s_cselect_b32 s28, 0, s28
        s_add_u32 s28, s28, 5000
        k_echo:
        s_memrealtime s[30:31]
        s_waitcnt lgkmcnt(0)
        s_sub_u32 s29, s30, s84
        s_cmp_lt_u32 s29, s28
        s_cbranch_scc1 k_echo
        """)
    r = L(f"""
    s_waitcnt vmcnt(0)
    s_memrealtime s[100:101]
    s_waitcnt lgkmcnt(0)
    s_lshl_b32 s28, s2, 2
    s_add_u32 s28, s28, s20
    s_lshl_b32 s28, s28, 6
    s_add_u32 s28, s28, {TS}
    v_mov_b32 v1, s28
    """)
    for i in range(9): r += [f"  v_mov_b32 v3, s{84+2*i}", f"  global_store_dword v1, v3, s[26:27] offset:{4*i if i < 8 else 48}"]
    r += ["  v_mov_b32 v3, s22", "  global_store_dword v1, v3, s[26:27] offset:60"]
    r += ["  s_getreg_b32 s28, hwreg(HW_REG_XCC_ID)", "  s_and_b32 s28, s28, 15", "  v_mov_b32 v3, s28", "  global_store_dword v1, v3, s[26:27] offset:56"]
    return r
def vr(b, n=4): return f"v[{b}:{b+n-1}]" if n > 1 else f"v{b}"
def ar(b, n=4): return f"a[{b}:{b+n-1}]" if n > 1 else f"a{b}"
def srd(d, lo, nbytes):
    return L(f"s_mov_b32 s{d}, s{lo}\ns_and_b32 s{d+1}, s{lo+1}, 0xffff\ns_mov_b32 s{d+2}, {nbytes}\ns_mov_b32 s{d+3}, 0x20000")
def isvm(x): return x.strip().startswith(("buffer_", "global_"))
def islg(x): return x.strip().startswith("ds_")
def tag(lines, t): return [x + f" ;#{t}" if (isvm(x) or islg(x)) else x for x in lines]
def W(vm=(), lg=()):
    vm = [vm] if isinstance(vm, str) else list(vm); lg = [lg] if isinstance(lg, str) else list(lg)
    return [f"  ;WAIT vm={','.join(vm)} lg={','.join(lg)}"]
def resolve(lines):
    out = []; vm = []; lg = []
    for x in lines:
        t = x.strip()
        if t.startswith(";MARK"):
            nm = t.split()[1]; vm.append(("m", nm)); lg.append(("m", nm)); continue
        if t.startswith(";WAIT"):
            m = re.match(r";WAIT vm=(\S*) lg=(\S*)", t); parts = []
            for names, hist, cn, mx in ((m.group(1), vm, "vmcnt", 63), (m.group(2), lg, "lgkmcnt", 15)):
                if not names: continue
                names = names.split(",")
                if names == ["*"]: parts.append(f"{cn}(0)"); continue
                idx = [i for i, h in enumerate(hist) if h[1] in names]
                for nme in names: assert any(h[1] == nme for h in hist), ("unknown tag", nme)
                n = sum(1 for h in hist[max(idx)+1:] if h[0] == "o")
                parts.append(f"{cn}({min(n, mx)})")
            out.append("  s_waitcnt " + " ".join(parts)); continue
        tg = re.search(r";#(\S+)", t); nm = tg.group(1) if tg else None
        kind = "n" if ";nocount" in t else "o"
        if isvm(x): vm.append((kind, nm))
        elif islg(x): lg.append((kind, nm))
        out.append(x)
    return out
def glue(lines):
    out = []; cur = []
    for x in lines:
        t = x.strip()
        if cur and not t.startswith(("s_cselect", "s_addc", "s_cbranch", "s_mov_b32")) and not t.endswith(":"):
            out.append(cur); cur = []
        if t.startswith(("s_cmp", "s_bitcmp")) or cur or (t.startswith("s_add_u32") and ";C" in t): cur.append(x)
        else: out.append([x])
    if cur: out.append(cur)
    return out
def place(M, lists):
    gaps = [[] for _ in M]
    for items, g0, g1 in lists:
        if not items: continue
        items = glue(items); n = g1 - g0 + 1
        for k, x in enumerate(items): gaps[g0 + k*n//len(items)] += x
    out = []
    for m, g in zip(M, gaps): out += [m] + g
    return out
def inter(main, groups, first=0):
    main = glue(main); out = []; n = len(main); G = len(groups); gi = 0
    for i, x in enumerate(main):
        while gi < G and i >= first + gi*(n - first)//G: out += groups[gi]; gi += 1
        out += x
    while gi < G: out += groups[gi]; gi += 1
    return out
def grp(lines, k):
    out = []; cur = []
    for x in lines:
        if isvm(x) and sum(map(isvm, cur)) == k:
            tail = []
            while cur and not isvm(cur[-1]): tail.insert(0, cur.pop())
            out.append(cur); cur = tail
        cur.append(x)
    if cur: out.append(cur)
    return out
OUTL = A()
def check(tg, vaddr, vdst, lead=False):
    if lead: a = L(f"v_cmp_ne_u32 vcc, s39, v{vdst}\ns_nop 1\ns_and_b64 vcc, vcc, s[56:57]\ns_cbranch_scc1 {tg}_slow\n{tg}_ok:\ns_barrier")
    else: a = L(f"v_cmp_ne_u32 vcc, s39, v{vdst}\ns_nop 1\ns_cmp_lg_u64 vcc, 0\ns_cbranch_scc1 {tg}_slow\n{tg}_ok:")
    OUTL(f"""
    {tg}_slow:
    s_mov_b32 s38, {OPT['spin']}
    {tg}_again:
    s_sleep {OPT.get('sleep', 4)}
    buffer_load_dword v{vdst}, v{vaddr}, s[16:19], 0 offen sc1
    s_sub_u32 s38, s38, 1
    s_cmp_eq_u32 s38, 0
    s_cbranch_scc1 {tg}_ok
    s_waitcnt vmcnt(0)
    v_cmp_ne_u32 vcc, s39, v{vdst}
    s_nop 1
    s_cmp_lg_u64 vcc, 0
    s_cbranch_scc1 {tg}_again
    s_branch {tg}_ok
    """)
    return a
def poll(vaddr, vdst, t, so="0"): return [f"  buffer_load_dword v{vdst}, v{vaddr}, s[16:19], {so} offen sc1 ;#{t}"]
def flag(soff, r=None):
    d, o = (3, 6) if r is None else (r, r + 1)
    return L(f"v_mov_b32 v{d}, s39\nv_lshlrev_b32 v{o}, 25, v7\nbuffer_store_dword v{d}, v{o}, s[16:19], {soff} offen sc1")

ACC = 8; CS = 128; AB = [148, 172]; BB = [196, 216]; VX = 236; VW = 242; LA = 247; LB = 249; VF = 255
L2B = CS
ONES = 240
def acc(T, t): return ACC + (T*5 + t)*4
def g1_mfma(buf, tr, first):
    M = []
    for T in range(6):
        for t in (range(5) if T % 2 == 0 else range(4, -1, -1)):
            x = vr(AB[buf] + 4*T); w = vr(BB[buf] + 4*t); d = vr(acc(T, t))
            p, q = (w, x) if tr else (x, w)
            M.append(f"  v_mfma_f32_16x16x32_bf16 {d}, {p}, {q}, {'0' if first else d}")
    return M
def g1_cs(buf):
    return [f"  v_mfma_f32_16x16x32_bf16 {vr(CS+4*t)}, {ar(ONES)}, {vr(BB[buf]+4*t)}, {'0' if buf == 0 else vr(CS+4*t)}" for t in range(5)]
def g1_reads(k):
    buf = k & 1; st = (k//2) % 3
    la, lb, so = (LA, LB, st*STAGE) if st < 2 else (L2B, L2B + 2, 0)
    R = []
    def b(t):
        u2, h2 = (64, 1280) if OPT["wrow"] else (1024, 256)
        base = lb + (2 if t == 4 else (t & 1)); off = so + buf*10240 + (u2 if t in (2, 3) else 0)
        return [f"  ds_read_b64_tr_b16 {vr(BB[buf]+4*t,2)}, v{base} offset:{off}",
                f"  ds_read_b64_tr_b16 {vr(BB[buf]+4*t+2,2)}, v{base} offset:{off+h2}"]
    def x(T): return [f"  ds_read_b128 {vr(AB[buf]+4*T)}, v{la+buf} offset:{so+T*2048}"]
    R += x(0)
    for t in range(5): R += b(t)
    for T in range(1, 6): R += x(T)
    return tag(R, f"r{k}")
def dma_x(c):
    so = (c % 3)*STAGE; Dm = []
    for j in range(6):
        if j in (0, 4): Dm.append(f"  s_add_u32 m0, s40, {so + 1024*j}")
        Dm.append(f"  buffer_load_dwordx4 v{VX+j}, s[8:11], s42 offen offset:{1024*(j%4)} lds")
    return tag(Dm, f"c{c}")
def dma_w(c):
    so = (c % 3)*STAGE; Dm = []
    for j in range(5):
        if OPT["wrow"]:
            if j in (0, 4): Dm.append(f"  s_add_u32 m0, s41, {so + 1024*j}")
            Dm.append(f"  buffer_load_dwordx4 v{VW+j}, s[12:15], s43 offen offset:{1024*(j%4)}{' nt' if (c == 0 and OPT.get('wnt')) else ''} lds")
            continue
        Dm.append(f"  s_add_u32 m0, s41, {so + 1024*j}")
        Dm.append(f"  buffer_load_dwordx4 v{VW+j}, s[12:15], s43 offen lds")
    return tag(Dm, f"c{c}")
def dma_next(c):
    if OPT.get("lock") == 2:
        return L(f"s_cmp_eq_u32 s54, 0\ns_cselect_b32 s44, {c}, {(c + 5) % 10}\ns_lshl_b32 s42, s44, 7\ns_mul_i32 s43, s44, s45")
    if OPT["krot"]:
        first = "s_mov_b32 s44, s67" if c == 1 else "s_add_u32 s44, s44, 1\ns_cmp_eq_u32 s44, 10\ns_cselect_b32 s44, 0, s44"
        return L(first + f"""
        s_cmp_eq_u32 s44, s54
        s_addc_u32 s44, s44, 0
        s_cmp_eq_u32 s44, 10
        s_cselect_b32 s44, 0, s44
        s_lshl_b32 s42, s44, 7
        s_mul_i32 s43, s44, s45""")
    return L(f"s_cmp_le_u32 s54, {c-1}\ns_cselect_b32 s44, {c}, {c-1}\ns_lshl_b32 s42, s44, 7\ns_mul_i32 s43, s44, s45")
def breg(s, t): return ar(s*20 + 4*t)
def bstream(i0, n):
    out = []
    for i in range(i0, i0 + n):
        s, t = divmod(i, 5)
        if t == 0 or i == i0:
            out.append(f"  s_add_u32 s68, s46, {8*16384*s}")
            if s == 6: out += L(f"s_cmp_lt_u32 s20, 3\ns_cselect_b32 s68, s68, {OOB}")
        if t < 4: out.append(f"  buffer_load_dwordx4 {breg(s,t)}, v4, s[16:19], s68 offen offset:{1024*t} sc1 ;#B{s}")
        else: out.append(f"  buffer_load_dwordx4 {breg(s,t)}, v5, s[16:19], s68 offen sc1 ;#B{s}")
    return out
class Stream:
    def __init__(self, items): self.items = list(items)
    def take(self, n):
        it, self.items = self.items[:n], self.items[n:]
        assert len(it) == n
        out = []; k = 0
        while k < len(it):
            j = k
            while j + 1 < len(it) and it[j+1] == (it[j][0], it[j][1] + 1): j += 1
            out += (bstream if it[k][0] == "B" else wo_dma)(it[k][1], j - k + 1); k = j + 1
        return out
def wo_dma(i0, n):
    out = []
    for i in range(i0, i0 + n):
        j, t = divmod(i, 5)
        if t in (0, 4) or i == i0: out += [f"  s_add_u32 m0, s69, {20480*j + (4096 if t == 4 else 0)}", f"  s_add_u32 s71, s70, {65536*j}"]
        out.append(f"  buffer_load_dwordx4 v{4 if t < 4 else 5}, s[16:19], s71 offen offset:{1024*(t%4)} sc1 lds ;#wo{j}")
    return out
PRODS = [(0,3),(0,4),(1,3),(1,4),(1,5),(2,3),(2,4),(2,5)]
KVOF = [240, 241, 242, 243, 244, 245, 246, 255]

def setup_s():
    return L(f"""
    s_cmp_lt_u32 s22, 12
    s_cselect_b32 s83, {LOG2E}, {LOG2E | 0x80000000}
    s_mul_i32 s76, s21, 3
    s_add_u32 s76, s76, s51
    s_add_u32 s77, s76, 1
    """) + blk(80, 76, "h", 28, 29) + blk(81, 77, "h", 28, 29) + blk(78, 76, "q", 28, 29) + blk(79, 77, "q", 28, 29) + L(f"""
    s_cmp_lt_u32 s22, 12
    s_cselect_b32 s80, s78, s80
    s_cselect_b32 s81, s79, s81
    s_cmp_ge_u32 s76, 32
    s_cselect_b32 s80, {OOB}, s80
    s_cmp_ge_u32 s77, 32
    s_cselect_b32 s81, {OOB}, s81
    s_lshl_b32 s28, s51, 11
    s_add_u32 s82, s81, s28              ; row tile 4
    s_add_u32 s29, s80, 2048
    s_add_u32 s80, s80, s28              ; row tile 0
    s_cmp_eq_u32 s51, 0
    s_cselect_b32 s81, s29, s81          ; row tile 2
    s_mul_i32 s61, s23, 5
    s_mul_i32 s28, s52, 3
    s_add_u32 s62, s61, s28
    s_add_u32 s63, s62, 1
    s_add_u32 s61, s61, 2
    s_lshl_b32 s28, s23, 1
    s_add_u32 s28, s28, s52
    s_add_u32 s29, s28, 22
    s_add_u32 s30, s23, 43
    s_cmp_lt_u32 s22, 12
    s_cselect_b32 s62, s62, s28
    s_cselect_b32 s63, s63, s29
    s_cselect_b32 s61, s61, s30
    s_cselect_b32 s75, {OOB}, {FPD}
    s_cmp_eq_u32 s63, 43
    s_cselect_b32 s63, {OOB >> 13}, s63
    """) + cell(62, 62, 28) + cell(63, 63, 28) + cell(61, 61, 28) + L(f"""
    s_lshl_b32 s28, s52, 9
    s_add_u32 s61, s61, s28
    s_add_u32 s75, s75, s67
    """)
def setup_t():
    return L(f"""
    v_add_u32 v{VX}, s62, v4
    v_add_u32 v{VX+1}, s63, v4
    v_and_b32 v3, 1, v2
    v_lshlrev_b32 v3, 10, v3
    v_lshrrev_b32 v254, 1, v2
    v_lshl_add_u32 v3, v254, 8, v3
    v_lshl_add_u32 v3, v1, 4, v3
    v_add_u32 v{VX+2}, s61, v3
    v_mov_b32 v{VX+4}, 0x358637bd
    v_mov_b32 v{VX+5}, 0x358637bd
    """)
def setup_n0():
    a = A()
    a(f"""
    v_and_b32 v1, 15, v7
    v_lshrrev_b32 v2, 4, v7
    v_cmp_gt_u32 s[32:33], 8, v1
    s_cmp_eq_u32 s21, 10
    s_cselect_b32 s36, s51, 0
    s_lshl_b32 s37, s22, 1
    s_add_u32 s37, s37, s52
    s_lshl_b32 s37, s37, 12
    s_add_u32 s37, s37, {KVP}
    s_lshl_b32 s60, s20, 12
    s_add_u32 s60, s60, {KVX}
    v_and_b32 v254, 31, v7
    v_add_u32 v254, 224, v254
    """)
    for n, (kx, vy) in enumerate(PRODS):
        eoff = {3: -8, 4: 8, 5: 24}[vy]; o = 252
        a(f"""
        v_add_u32 v3, {4*kx}, v2
        v_cmp_le_u32 vcc, 5, v3
        v_add_u32 v{o}, {eoff}, v1
        v_cmp_gt_u32 s[62:63], 10, v3
        v_cndmask_b32 v253, 0, 20, vcc
        v_sub_u32 v{o}, v{o}, v253
        """)
        if vy == 3: a(f"v_cmp_eq_u32 vcc, 0, v1\nv_cndmask_b32 v253, v{o}, 0, vcc\nv_cndmask_b32 v{o}, v{o}, 20, vcc\nv_cmp_gt_u32 vcc, 20, v253")
        else: a(f"v_cmp_gt_u32 vcc, 20, v{o}")
        a(f"""
        v_mad_u32_u24 v{o}, v3, 21, v{o}
        s_and_b64 vcc, vcc, s[62:63]
        v_cndmask_b32 v{o}, v254, v{o}, vcc
        v_lshl_add_u32 v{o}, v{o}, 4, s60
        v_accvgpr_write_b32 a{244+n}, v{o}
        """)
    return list(a)
def setup_n():
    return L(f"s_mov_b32 s30, {LOG2E}\ns_mov_b32 s31, {LOG2E}") + [f"  v_accvgpr_read_b32 v{KVOF[n]}, a{244+n}" for n in range(8)]

def g1_main(tg, tr, st):
    a = A()
    pf = OPT["pf_t"] if tr else OPT["pf_n"]
    a += W("c0"); a("s_barrier"); a += stamp("k0")
    a += g1_reads(0) + W(lg="r0")
    mv = OPT["keep"]
    d0 = [] if mv >= 1 else ((d_pack_src() if tr else []) + d_cs())
    a += place(g1_mfma(0, tr, True) + g1_cs(0), [(g1_reads(1), 0, 17), (dma_x(2) + dma_w(2), 0, 33), (d0, 4, 34)])
    def spread(items, ks):
        g = glue(items); return {k: sum(g[i*len(g)//len(ks):(i+1)*len(g)//len(ks)], []) for i, k in enumerate(ks)}
    if tr:
        dfr = spread(d_misc() + setup_s(), [4, 5, 6, 7, 8, 9, 10, 11, 12])
        if mv < 2: dfr[2] = d_pack_dst()
        if OPT["touch"] == 1: dfr[2] = d_touch() + dfr.get(2, [])
    else: dfr = spread((d_touch() if OPT["touch"] == 1 else []) + d_misc(), [2, 3, 4])
    a += W(lg="r1")
    a += g1_cs(1)
    PKD, PKR, PKS = (OPT["pkd"], OPT["pkr"], OPT["pks"]) if tr else (None, None, {})
    pk_d = []
    for i in range(5):
        pk_d += [f"  s_add_u32 m0, s53, {896*i}", f"  buffer_load_dwordx4 v252, s[56:59], s55 offen offset:{128*i} {'nt ' if OPT.get('pknt', 1) else ''}lds ;#pk"]
    pk_r = []
    for t in range(5):
        if t: pk_r += L(f"s_cmp_eq_u32 s20, {4-t}\ns_cselect_b32 s28, 896, 0\nv_add_u32 v1, s28, v1\nv_add_u32 v2, s28, v2")
        pk_r += [f"  ds_read_b64_tr_b16 {ar(16+4*t,2)}, v1 offset:{32*t}", f"  ds_read_b64_tr_b16 {ar(18+4*t,2)}, v2 offset:{32*t}"]
    pk_s = [f"  buffer_store_dwordx4 {ar(16+4*t)}, v{4 if t < 4 else 5}, s[16:19], s{60 if c == 0 else 53} offen offset:{1024*(t%4)} sc1 ;#ps" for t in range(5) for c in range(2 if OPT["mode"] == "dup" else 1)]
    pk_r.append("  s_add_u32 s53, s60, 8192")
    cs_st = L(f"""
    v_cmp_le_u32 vcc, 16, v7
    v_cmp_le_u32 s[28:29], 32, v7
    v_cmp_le_u32 s[30:31], 48, v7
    v_cndmask_b32 v{CS+17}, v{CS}, v{CS+4}, vcc
    v_cndmask_b32 v{CS+17}, v{CS+17}, v{CS+8}, s[28:29]
    v_cndmask_b32 v{CS+17}, v{CS+17}, v{CS+12}, s[30:31]
    buffer_store_dword v{CS+17}, v253, s[16:19], s64 offen sc1 ;#cs
    buffer_store_dword v{CS+16}, v254, s[16:19], s64 offen sc1 ;#cs
    """) + [f"  v_add_u32 v{L2B+i}, {2*STAGE}, v{LA+i}" for i in range(5)]
    auxa = L(f"""
    v_lshlrev_b32 v3, 4, v0
    v_add_u32 v252, s74, v3
    v_add_u32 v253, 4096, v252
    v_cmp_le_u32 vcc, 144, v0
    v_add_u32 v3, s65, v3
    v_cmp_le_u32 s[28:29], s66, v0
    v_cndmask_b32 v253, v253, v3, vcc
    v_add_u32 v3, {RSTD - NEGM - 768}, v3
    v_cmp_le_u32 vcc, 240, v0
    v_cndmask_b32 v253, v253, v3, s[28:29]
    v_mov_b32 v3, {OOB}
    v_cndmask_b32 v253, v253, v3, vcc
    v_and_b32 v1, 15, v7
    v_lshrrev_b32 v2, 4, v7
    """)
    polx = [f"  s_xor_b32 s{r}, s{r}, s3" for r in ((46, 70, 80, 81, 82) if OPT["mode"] == "dup" else (80, 81, 82))]
    aux = L(f"""
    s_mov_b32 m0, s72
    s_nop 0
    buffer_load_dwordx4 v252, s[16:19], 0 offen sc1 lds ;#aux
    s_add_u32 m0, s72, 4096
    s_nop 0
    buffer_load_dwordx4 v253, s[16:19], 0 offen sc1 lds ;#aux
    """) + flag("s73")
    y1 = L(f"v_lshlrev_b32 v252, 2, v0\nv_add_u32 v252, {AUXC}, v252") + tag([f"  ds_read_b32 v{CS+i}, v252 offset:{640*i}" for i in range(10)], "y1")
    y2 = [f"  v_add_f32 v{CS}, v{CS}, v{CS+i}" for i in range(1, 10)] + [f"  ds_write_b32 v252, v{CS} offset:{CSL-AUXC} ;#y2"]
    rd = L("s_mul_i32 s28, s51, 384\ns_add_u32 s28, s28, %d" % AUXM)
    if tr:
        rd += L(f"v_lshlrev_b32 v6, 4, v2\nv_add_u32 v252, s34, v6\nv_add_u32 v253, s35, v6\nv_lshl_add_u32 v3, v1, 2, s28")
        rd += [f"  ds_read_b128 {vr(CS+4*t)}, v252 offset:{64*t}" for t in range(4)] + [f"  ds_read_b128 {vr(CS+16)}, v253"]
        for T in range(6): rd += [f"  ds_read_b32 v{AB[0]+4*T}, v3 offset:{64*T}", f"  ds_read_b32 v{AB[0]+4*T+1}, v3 offset:{768+64*T}"]
    else:
        rd += L(f"v_lshlrev_b32 v6, 2, v1\nv_add_u32 v252, s34, v6\nv_lshl_add_u32 v3, v2, 4, s28")
        rd += [f"  ds_read_b32 v{CS+4*t}, v252 offset:{64*t}" for t in range(5)]
        for T in range(6): rd += [f"  ds_read_b128 {vr(AB[0]+4*T)}, v3 offset:{64*T}"]
        for T in range(5): rd += [f"  ds_read_b128 {vr(BB[0]+4*T)}, v3 offset:{768+64*T}"]
        rd += [f"  ds_read_b128 {vr(VX)}, v3 offset:{768+64*5}"]
    su = setup_t() if tr else setup_n()
    e0 = glue(setup_n0()); early = {} if tr else {6 + i: sum(e0[i*len(e0)//6:(i+1)*len(e0)//6], []) for i in range(6)}
    nb = 0; fb, pb = (OPT["flagb"] if tr else OPT["flagb_n"]), OPT["pollb"]; nps = 0
    for k in range(1, 20):
        c = (k - 1)//2
        M = g1_mfma(k & 1, tr, False)
        ls = []
        if k & 1:
            if c == pb and tr: a("k_t_join:")
            if k > 1: a += W(lg=[f"r{k}"] + (["y2"] if k == 19 else []) + (["pr"] if k - 1 == PKR else []))
            a.append(M.pop(0))
            vm = [f"c{c+1}"] if c < 9 else []
            if c == fb: vm += ["cs", "ss"] + (["ps"] if tr else [])
            if k == PKR: vm += ["pk"]
            if c == pb + 1: vm += ["pa"]
            if c == 8: vm += ["aux"]
            if vm: a += W(vm)
            if c == pb + 1: a += check(tg + "_sa", 6, VF)
            a("s_barrier")
            if c == 0: a += stamp("b0")
            if c == 7: a += stamp("tail")
            a += stamp(f"b{c}") if c > 0 else []
            if c == fb: ls.append((flag("s49"), 0, 2))
            if c == pb: ls.append((L(f"v_lshlrev_b32 v6, {OPT['fash']}, v0\nv_add_u32 v6, {FA}, v6") + poll(6, VF, "pa"), 0, 2))
            if OPT["pol"] != "race":
                if c == pb + 1: ls.append((polx, 0, 2))
            else:
                assert OPT["mode"] == "rows"
                if c == 7: ls.append((L(f"v_mov_b32 v{CS+18}, {PW}\nbuffer_load_dword v{CS+19}, v{CS+18}, s[16:19], 0 offen sc1 ;#aux"), 0, 1))
                if c == 8:
                    ls.append((L(f"v_readfirstlane_b32 s3, v{CS+19}\ns_xor_b32 s3, s3, s39"), 19, 20))
                    ls.append((L(f"s_and_b32 s38, s3, {~8192 & 0xffffffff}\ns_cbranch_scc1 {tg}_pw\n{tg}_pwr:"), 21, 21))
                    ls.append((polx, 22, 28))
                    OUTL(f"""
                    {tg}_pw:
                    s_mov_b32 s40, {OPT['spin']}
                    {tg}_pw1:
                    s_sleep 4
                    buffer_load_dword v{CS+19}, v{CS+18}, s[16:19], 0 offen sc1
                    s_waitcnt vmcnt(0)
                    v_readfirstlane_b32 s3, v{CS+19}
                    s_sub_u32 s40, s40, 1
                    s_xor_b32 s3, s3, s39
                    s_and_b32 s38, s3, {~8192 & 0xffffffff}
                    s_cselect_b32 s38, s40, 0
                    s_and_b32 s3, s3, 8192
                    s_cmp_lg_u32 s38, 0
                    s_cbranch_scc1 {tg}_pw1
                    s_branch {tg}_pwr
                    """)
            if c == 7: ls.append(([x for x in aux], 0, 2))
            dx, dw = (dma_next(c+3) + dma_x(c+3), dma_w(c+3)) if c + 3 <= 9 else ([], [])
            if k == PKD: ls += [(pk_d, 0, 9), (dx[:-4], 14, 28)]
            else: ls.append((dx, 1, 27))
            if k == PKR: ls.append((tag(pk_r, "pr"), 10, 26))
            if c == 0: ls.append((cs_st, 12, 27))
            if c == 8: ls.append((y1, 8, 22))
        else:
            a += W(lg=[f"r{k}"] + (["y1"] if c == 8 else []) + (["pr"] if k - 1 == PKR else []))
            if k - 1 == PKD: ls.append((dx[-4:] + dw, 0, 28))
            else: ls.append((dw, 1, 27))
            if c == 6: ls.append((auxa, 17, 28))
            if c == 8: ls.append((y2, 0, 12))
        if PKS.get(k): ls.append((pk_s[nps:nps+PKS[k]], 2, 28 if nps + PKS[k] < len(pk_s) else 18)); nps += PKS[k]
        if k < 19: ls.insert(0, (g1_reads(k+1), 1 if k & 1 else 0, 17))
        else: ls.insert(0, (rd, 0, 22))
        if k == 16: ls.append((su, 18, 28))
        if k in early: ls.append((early[k], 4, 28))
        if k in dfr: ls.append((dfr[k], 0 if k == 2 else 6, 28))
        if k == OPT["cpf2"]:
            ls.append((L(f"v_add_u32 v{CS+8}, s50, v4\nv_min_u32 v{CS+8}, CODE_MAX, v{CS+8}\ns_cmp_gt_u32 s50, CODE_MAX\ns_cbranch_scc1 {tg}_c2\nglobal_load_dwordx4 {vr(CS+12)}, v{CS+8}, s[0:1] ;nocount\n{tg}_c2:"), 29 - (k & 1), 29 - (k & 1)))
        if pf.get(k):
            assert c > pb
            assert all(x[0] == "B" for x in st.items[:pf[k]])
            ls.append((st.take(pf[k]), 3, 28))
        a += place(M, ls)
    a += stamp("lend")
    return a

def stats_math():
    a = A(); src = 8; tmp = 20; ac = 44
    for i in range(12):
        a(f"v_lshlrev_b32 v{tmp+2*i}, 16, v{src+i}\nv_and_b32 v{tmp+2*i+1}, 0xffff0000, v{src+i}")
    a(f"v_pk_add_f32 {vr(ac,2)}, {vr(tmp,2)}, {vr(tmp+2,2)}")
    for i in range(2, 12): a(f"v_pk_add_f32 {vr(ac,2)}, {vr(ac,2)}, {vr(tmp+2*i,2)}")
    def red():
        a(f"v_add_f32 v{ac}, v{ac}, v{ac+1}")
        for r in (8, 4, 2, 1): a(f"v_add_f32_dpp v{ac}, v{ac}, v{ac} row_ror:{r} row_mask:0xf bank_mask:0xf")
        a(f"v_mov_b32 v{ac+1}, v{ac}\nv_permlane16_swap_b32 v{ac}, v{ac+1}\nv_add_f32 v{ac}, v{ac}, v{ac+1}")
    red()
    a(f"v_mul_f32 v46, 0xbacccccd, v{ac}")
    a(f"v_cndmask_b32 v47, 0, v46, s[32:33]")
    for i in range(8): a(f"v_pk_add_f32 {vr(tmp+2*i,2)}, {vr(tmp+2*i,2)}, v[46:47] op_sel_hi:[1,0]")
    for i in range(8, 12): a(f"v_pk_add_f32 {vr(tmp+2*i,2)}, {vr(tmp+2*i,2)}, v[46:47] op_sel:[0,1] op_sel_hi:[1,1]")
    a(f"v_pk_mul_f32 {vr(ac,2)}, {vr(tmp,2)}, {vr(tmp,2)}")
    for i in range(1, 12): a(f"v_pk_fma_f32 {vr(ac,2)}, {vr(tmp+2*i,2)}, {vr(tmp+2*i,2)}, {vr(ac,2)}")
    red()
    a(f"""
    v_mov_b32 v{ac+1}, 0x3727c5ac
    v_fmac_f32 v{ac+1}, 0x3acccccd, v{ac}
    v_rsq_f32 v{ac+1}, v{ac+1}
    v_and_b32 v48, 31, v7
    v_cmp_eq_u32 vcc, 0, v48
    v_lshrrev_b32 v49, 5, v7
    v_lshlrev_b32 v49, 2, v49
    v_cndmask_b32 v46, v{ac+1}, v46, vcc
    v_lshl_add_u32 v49, v48, 13, v49
    v_cmp_gt_u32 vcc, 2, v48
    v_mov_b32 v50, {OOB}
    s_lshl_b32 s28, s48, 3
    s_add_u32 s28, s28, {NEGM}
    v_cndmask_b32 v49, v50, v49, vcc
    buffer_store_dword v46, v49, s[16:19], s28 offen sc1 ;#ss
    s_lshl_b32 s28, s2, 8
    s_add_u32 s28, s28, {KVP}
    s_cmp_eq_u32 s20, 1
    s_cselect_b32 s28, s28, {OOB}
    v_lshlrev_b32 v49, 2, v7
    v_mov_b32 v50, 0
    buffer_store_dword v50, v49, s[16:19], s28 offen sc1 ;#ss
    """)
    return list(a)

def prologue():
    a = A()
    a += stamp("entry")
    a(f"""
    s_load_dwordx16 s[60:75], s[0:1], 0
    s_load_dwordx2 s[26:27], s[0:1], 64
    s_cmp_ge_u32 s2, 256
    s_cbranch_scc1 k_end
    s_and_b32 s3, s2, 7
    s_lshl_b32 s3, s3, 5
    s_lshr_b32 s21, s2, 3
    s_add_u32 s3, s3, s21                ; lin
    s_mul_i32 s35, {"s3" if OPT["slin"] else "s2"}, 10240
    v_lshrrev_b32 v1, 5, v0
    v_mul_u32_u24 v1, {1280-512}, v1
    v_lshl_add_u32 v52, v0, 4, v1
    v_and_b32 v1, 16, v0
    v_lshl_add_u32 v53, v1, 26, v52      ; lanes whose third piece is past the row: out of range
    s_mov_b32 s10, {S*D*2}
    s_mov_b32 s11, 0x20000
    """)
    ld = L("s_waitcnt lgkmcnt(0)\ns_mov_b32 s8, s60\ns_and_b32 s9, s61, 0xffff") + stamp("karg")
    for j in range(3): ld.append(f"  buffer_load_dwordx4 {vr(8+4*j)}, v{53 if j == 2 else 52}, s[8:11], s35 offen offset:{512*j} ;#sl")
    if OPT["head"] == 0: a += ld
    a(f"""
    s_getpc_b64 s[36:37]
    v_cmp_eq_u32 s[32:33], 0, v1
    v_lshrrev_b32 v1, 6, v0
    v_and_b32 v7, 63, v0                 ; lane
    v_readfirstlane_b32 s20, v1          ; wave
    s_cmp_lt_u32 s3, 138
    s_cselect_b32 s28, 0, 138
    s_cselect_b32 s29, 10923, 13108
    s_cselect_b32 s30, 6, 5
    s_cselect_b32 s31, 0, 6
    s_sub_u32 s28, s3, s28
    s_mul_i32 s22, s28, s29
    s_lshr_b32 s22, s22, 16
    s_mul_i32 s30, s22, s30
    s_sub_u32 s21, s28, s30
    s_add_u32 s21, s21, s31              ; rb
    s_cmp_ge_u32 s3, 253
    s_cselect_b32 s21, 11, s21
    s_min_u32 s54, s21, 9                ; start chunk
    """)
    if OPT.get("lock") == 1: a("s_mov_b32 s54, 0")
    if OPT.get("lock") == 2: a("s_cmp_lt_u32 s21, 6\ns_cselect_b32 s54, 0, 5")
    if OPT.get("lock") == 3: a("s_lshr_b32 s54, s54, 1\ns_lshl_b32 s54, s54, 1")
    a(f"""
    """)
    xa = A()
    xa(f"""
    s_lshl_b32 s28, s21, 2
    s_add_u32 s28, s28, s20
    s_mul_i32 s28, s28, {48*1280}
    v_lshrrev_b32 v1, 3, v7              ; r8
    v_lshrrev_b32 v2, 1, v1
    v_and_b32 v3, 7, v7
    v_xor_b32 v2, v2, v3
    v_mul_u32_u24 v1, 1280, v1
    v_lshl_add_u32 v252, v3, 4, v1
    v_add_u32 v1, s28, v1
    v_lshl_add_u32 v{VX}, v2, 4, v1
    v_xor_b32 v2, 4, v2
    v_lshl_add_u32 v6, v2, 4, v1
    """)
    for j in range(1, 6): xa(f"v_add_u32 v{VX+j}, {j*10240 - 1024*(j%4)}, v{6 if j & 1 else VX}")
    xa("s_mul_i32 s40, s20, 6144\ns_lshl_b32 s42, s54, 7")
    wa = A()
    wa(f"""
    s_sub_u32 s28, 22, s22
    s_cmp_lt_u32 s3, 138
    s_cselect_b32 s22, s22, s28
    s_mul_i32 s28, s22, 43
    s_lshr_b32 s28, s28, 8               ; g = p/6
    s_mul_i32 s29, s28, 6
    s_sub_u32 s29, s22, s29              ; r
    s_mul_i32 s30, s28, 3
    s_add_u32 s30, s30, s29
    s_add_u32 s30, s30, 9                ; w1: 12+3g+r-3
    s_lshl_b32 s31, s28, 1
    s_add_u32 s31, s31, s29
    s_sub_u32 s31, s31, 1                ; kv: 2g+r-1
    s_add_u32 s28, s28, 8                ; q
    s_cmp_lt_u32 s29, 3
    s_cselect_b32 s22, s31, s30
    s_cmp_eq_u32 s29, 0
    s_cselect_b32 s22, s28, s22
    s_cmp_ge_u32 s3, 253
    s_cselect_b32 s22, 12, s22
    s_cmp_lt_u32 s22, 12
    s_cselect_b32 s12, s62, s68
    s_cselect_b32 s13, s63, s69
    s_cselect_b32 s14, {D*3*D*2}, {D*F*2}
    s_cselect_b32 s50, 3840, 3456        ; W row stride
    s_cselect_b32 s28, 8, 12
    s_and_b32 s13, s13, 0xffff
    s_mov_b32 s15, 0x20000
    s_lshl_b32 s45, s50, 6
    s_sub_u32 s23, s22, s28
    s_mul_i32 s29, s23, 320
    s_mul_i32 s30, s22, 160
    s_add_u32 s30, s30, 1280
    s_cmp_lt_u32 s22, 8
    s_cselect_b32 s29, s30, s29
    s_cselect_b32 s30, 1200, 0
    s_cselect_b32 s31, -80, 0
    s_lshl_b32 s28, s20, 4
    s_mul_i32 s28, s28, s50
    s_add_u32 s29, s29, s28
    s_mul_i32 s41, s20, 5120
    s_add_u32 s41, s41, {WOFF}
    s_mul_i32 s43, s54, s45
    s_movk_i32 s28, -20
    v_xor_b32 v54, 2, v7                 ; rows 8..15 swap adjacent 32-byte units
    v_lshrrev_b32 v55, 4, v7
    v_and_b32 v55, 2, v55
    v_xor_b32 v55, v55, v7
    """)
    dw = grp(dma_w(0), 1); wj = []
    for jj in range(5):
        src = 7 if jj < 2 else 55 if jj == 2 else 54
        b = A()
        if jj: b(f"v_add_u32 v1, {64*jj}, v{src}")
        q = 1 if jj else 7
        b(f"""
        v_mul_u32_u24 v2, 3277, v{q}
        v_lshrrev_b32 v2, 16, v2
        v_mad_i32_i24 v3, v2, s28, v{q}
        v_mul_u32_u24 v2, s50, v2
        v_lshl_add_u32 v2, v3, 4, v2
        v_mul_u32_u24 v3, 205, v3
        v_bfe_u32 v1, v3, 10, 1
        v_lshrrev_b32 v3, 11, v3
        v_mad_u32_u24 v2, v1, s30, v2
        v_mad_i32_i24 v2, v3, s31, v2
        v_add_u32 v{VW+jj}, s29, v2
        """)
        if jj < 3: b("s_sub_u32 s29, s29, 1024")
        if jj == 3: b("s_add_u32 s29, s29, 3072")
        wj.append(list(b))
    if OPT["wfirst"]:
        a += wa
        for jj in range(5): a += wj[jj] + dw[jj]
        a += stamp("w0i") + xa
        first = grp(dma_x(0), 1)
    else:
        if OPT["head"] == 0: a += xa + dma_x(0) + wa + sum(wj, [])
        elif OPT["head"] == 1: a += xa + ld + dma_x(0) + wa + sum(wj, [])
        elif OPT["head"] == 2: a += wa[:20] + ld + xa + dma_x(0) + wa[20:] + sum(wj, [])
        elif OPT["head"] == 4: a += wa[:20] + xa + ld + dma_x(0) + wa[20:] + sum(wj, [])
        elif OPT["head"] == 5:
            ptr = [x for x in wa if re.match(r"\s*s_(cselect|and)_b32 s1[23],", x)]
            a += xa + [x for x in wa if x not in ptr] + ld + dma_x(0) + L("s_cmp_lt_u32 s22, 12") + ptr + sum(wj, [])
        elif OPT["head"] == 3: a += xa + ld[:3] + wa + sum(wj, []) + ld[3:] + dma_x(0)
        first = dw
    a(f"""
    s_load_dword s39, s[26:27], 0
    v_lshlrev_b32 v4, 4, v7
    s_lshl_b32 s48, {"s3" if OPT["slin"] else "s2"}, 2
    s_add_u32 s48, s48, s20              ; stats job
    s_and_b32 s36, s36, 0xffffff00
    s_lshr_b32 s28, s2, 3
    s_lshl_b32 s29, s20, 5
    s_add_u32 s28, s28, s29
    s_add_u32 s28, s28, 2
    s_mov_b64 s[0:1], s[36:37]
    s_lshl_b32 s50, s28, 10
    s_cmp_ge_u32 s28, CODE_KB
    s_cbranch_scc1 k_nocp
    v_add_u32 v1, s50, v4
    v_min_u32 v1, CODE_MAX, v1
    global_load_dwordx4 v[128:131], v1, s[0:1] ;nocount
    k_nocp:
    """)
    su = A()
    su += srd(16, 26, WS_USED)
    su(f"""
    s_lshr_b32 s51, s20, 1               ; wr
    s_and_b32 s52, s20, 1                ; wc
    v_lshrrev_b32 v59, 4, v7             ; g
    v_bfe_u32 v56, v7, 2, 2              ; rr
    v_and_b32 v57, 3, v7                 ; c4
    v_and_b32 v58, 1, v59                ; g&1
    v_and_b32 v3, 15, v7                 ; m
    v_lshrrev_b32 v6, 1, v3
    v_xor_b32 v6, v6, v59
    s_mul_i32 s28, s51, 12288
    v_lshl_add_u32 v55, v3, 7, s28
    v_lshl_add_u32 v{LA}, v6, 4, v55
    v_xor_b32 v6, 4, v6
    v_lshl_add_u32 v{LA+1}, v6, 4, v55
    v_lshl_add_u32 v55, v59, 3, v56
    v_mul_u32_u24 v55, 320, v55
    v_lshl_add_u32 v55, v57, 3, v55
    v_add_u32 v55, {WOFF}, v55
    s_cmp_lt_u32 s22, 8
    s_cselect_b32 s34, 5, 6
    s_cselect_b32 s35, 9, 5
    s_cmp_eq_u32 s52, 0
    s_cselect_b32 s34, 0, s34
    s_cselect_b32 s35, 4, s35
    s_add_u32 s30, s34, 1
    """)
    for i, sreg in enumerate((34, 30, 35)):
        su(f"v_xor_b32 v6, s{sreg}, v58\nv_lshl_add_u32 v{LB+i}, v6, 5, v55")
    su(f"""
    v_mov_b32 v6, 0x3f803f80
    v_accvgpr_write_b32 a{ONES}, v6
    v_accvgpr_write_b32 a{ONES+1}, v6
    v_accvgpr_write_b32 a{ONES+2}, v6
    v_accvgpr_write_b32 a{ONES+3}, v6
    """)
    mv = OPT["keep"]
    if OPT["swarm"]:
        w = L(f"""
        s_lshl_b32 s28, s48, 3
        s_add_u32 s28, s28, {NEGM}
        s_load_dword s76, s[26:27], s28
        s_add_u32 s28, s28, {RSTD - NEGM}
        s_load_dword s77, s[26:27], s28
        s_lshl_b32 s28, s2, {OPT['fash']}
        s_add_u32 s28, s28, {FA}
        s_load_dword s78, s[26:27], s28
        """)
        if OPT["swarm"] > 1:
            w += L(f"""
            s_mul_i32 s28, s22, 10
            s_add_u32 s28, s28, s54
            s_mul_i32 s28, s28, 640
            s_mul_i32 s29, s20, 192
            s_add_u32 s28, s28, s29
            s_add_u32 s28, s28, {CSP}
            s_load_dword s79, s[26:27], s28
            s_add_u32 s28, s28, 64
            s_load_dword s80, s[26:27], s28
            s_add_u32 s28, s28, 64
            s_load_dword s81, s[26:27], s28
            """)
        su[:0] = w
    if mv >= 1: su += d_pack_src() + d_cs()
    if mv >= 2: su += d_pack_dst()
    a += inter(su, first, OPT["sufirst"])
    if OPT["pkd"] == -1:
        a("s_cmp_lt_u32 s22, 8\ns_cbranch_scc1 k_nopk")
        for i in range(5):
            a += [f"  s_add_u32 m0, s53, {896*i}", f"  buffer_load_dwordx4 v252, s[56:59], s55 offen offset:{128*i} {'nt ' if OPT.get('pknt', 1) else ''}lds ;nocount"]
        a("k_nopk:\n;MARK pk")
    a += stamp("c0i")
    a += dma_next(1)
    a += W("sl")
    a += stamp("sl")
    a += inter(stats_math(), grp(dma_x(1) + dma_w(1), 1))
    a += dma_next(2)
    a("s_waitcnt lgkmcnt(0)\ns_mul_i32 s39, s39, 1664525\ns_add_u32 s39, s39, 1013904223")
    if OPT["touch"] == 2: a += [x.replace(f"v{CS+5}", "v60").replace(f"v{CS+6}", "v61").replace(f"v{CS+7}", "v62") for x in d_touch()]
    a += stamp("pend")
    return a

def d_pack_src():
    return L(f"""
    s_sub_u32 s36, s22, 8
    s_mul_i32 s36, s36, 11
    s_add_u32 s36, s36, s21
    s_lshr_b32 s37, s36, 1               ; ks
    s_and_b32 s38, s36, 1
    s_cmp_lt_u32 s37, 54
    s_cselect_b32 s56, s70, s64
    s_cselect_b32 s57, s71, s65
    s_cmp_lt_u32 s37, 54
    s_cselect_b32 s58, {F*D*2}, {D*D*2}
    s_cmp_lt_u32 s37, 54
    s_cselect_b32 s28, 0, 54
    s_and_b32 s57, s57, 0xffff
    s_mov_b32 s59, 0x20000
    s_sub_u32 s28, s37, s28
    s_mul_i32 s28, s28, {32*1280}
    s_mul_i32 s29, s38, 640
    s_add_u32 s55, s28, s29
    s_mul_i32 s29, s20, 10240
    s_add_u32 s55, s55, s29              ; pack src (8 rows per wave)
    s_mul_i32 s53, s20, 5120
    s_add_u32 s53, s53, {PACKL}
    """)
def d_cs():
    return L(f"""
    s_lshl_b32 s34, s34, 6
    s_lshl_b32 s35, s35, 6
    v_lshl_add_u32 v253, v7, 2, s34
    v_lshl_add_u32 v254, v7, 2, s35
    v_and_b32 v6, 48, v7
    v_lshl_add_u32 v254, v6, 22, v254
    s_add_u32 s34, s34, {CSL}
    s_add_u32 s35, s35, {CSL}
    s_mul_i32 s62, s22, 6400
    s_add_u32 s62, s62, {CSP}
    s_mul_i32 s64, s21, 640
    s_add_u32 s64, s64, s62
    s_cmp_ge_u32 s21, 10
    s_cselect_b32 s64, {OOB}, s64
    s_cmp_eq_u32 s51, 1
    s_cselect_b32 s64, {OOB}, s64
    """)
def d_pack_dst():
    return L(f"""
    v_add_u32 v5, 4096, v4
    s_mul_i32 s28, s37, 205
    s_lshr_b32 s28, s28, 10              ; c
    s_mul_i32 s30, s28, 5
    s_sub_u32 s30, s37, s30              ; r
    s_lshl_b32 s29, s30, 3
    s_lshr_b32 s47, 0x01001600, s29      ; r -> 0, 22, -, 1
    s_and_b32 s47, s47, 255
    s_cmp_eq_u32 s30, 4
    s_cselect_b32 s47, 23, s47
    s_lshl_b32 s29, s28, 1
    s_add_u32 s47, s47, s29
    s_add_u32 s28, s28, 43
    s_cmp_eq_u32 s30, 2
    s_cselect_b32 s31, 1, 0
    s_cselect_b32 s47, s28, s47
    s_cmp_ge_u32 s37, 54
    s_cselect_b32 s31, 1, s31
    s_cselect_b32 s47, s37, s47          ; storage index
    s_lshl_b32 s28, 5120, s31            ; per g>>1
    s_mul_i32 s29, s31, 4608
    s_add_u32 s29, s29, 512              ; per g&1
    s_mul_i32 s30, s31, -9728
    s_add_u32 s30, s30, 10240
    v_lshrrev_b32 v3, 5, v7
    v_mul_u32_u24 v1, s28, v3
    v_bfe_u32 v3, v7, 4, 1
    v_mad_u32_u24 v1, v3, s29, v1
    v_bfe_u32 v3, v7, 2, 2
    v_lshl_add_u32 v1, v3, 7, v1
    v_and_b32 v3, 3, v7
    v_lshl_add_u32 v1, v3, 3, v1
    s_mul_i32 s28, s20, 1056
    s_add_u32 s28, s28, {PACKL}
    v_add_u32 v1, s28, v1
    v_add_u32 v2, s30, v1
    s_lshl_b32 s28, s38, 2
    s_add_u32 s28, s28, s20              ; ct
    s_add_u32 s28, s28, {WPP}
    s_lshl_b32 s28, s28, 21
    s_lshl_b32 s29, s47, 14
    s_add_u32 s28, s28, s29
    s_bfe_u32 s29, s47, 0x10001
    s_mul_i32 s29, s29, {3072 + 8192}
    s_add_u32 s28, s28, s29
    s_cmp_ge_u32 s36, 148
    s_cselect_b32 s60, {OOB}, s28
    """)
def d_touch():
    return L(f"""
    s_not_b32 s28, s39
    v_mov_b32 v{CS+6}, s28
    s_lshl_b32 s28, s2, 1
    s_add_u32 s28, s28, s20
    s_lshl_b32 s28, s28, 7
    s_add_u32 s28, s28, {FP}
    s_lshl_b32 s29, s2, 7
    s_add_u32 s29, s29, {FO}
    s_cmp_eq_u32 s20, 2
    s_cselect_b32 s28, s29, s28
    s_cmp_eq_u32 s20, 3
    s_cselect_b32 s28, {OOB}, s28
    v_lshlrev_b32 v{CS+7}, 2, v7
    v_and_b32 v{CS+5}, 32, v7
    v_lshl_add_u32 v{CS+7}, v{CS+5}, 21, v{CS+7}
    buffer_store_dword v{CS+6}, v{CS+7}, s[16:19], s28 offen sc1 ;#ss
    s_lshl_b32 s28, s2, 2
    s_add_u32 s28, s28, s20
    s_lshl_b32 s28, s28, 12
    s_add_u32 s28, s28, {GXP*PG + 3072}
    buffer_store_dword v{CS+6}, v{CS+7}, s[16:19], s28 offen sc1 ;#ss
    """)
def d_misc():
    return L(f"""
    s_lshl_b32 s49, s2, {OPT['fash']}
    s_add_u32 s49, s49, {FA}
    s_cmp_eq_u32 s20, 0
    s_cselect_b32 s49, s49, {OOB}        ; A flag (wave 0)
    v_add_u32 v5, 4096, v4
    """) + srd(4, 72, S*D*2) + L(f"""
    s_mul_i32 s74, s22, 6400
    s_add_u32 s74, s74, {CSP}
    s_add_u32 s73, s2, s20
    s_cmp_eq_u32 s73, 0
    s_cselect_b32 s73, 0, {OOB}          ; epoch word (wg0 wave0)
    s_and_b32 s24, s2, 6
    s_lshl_b32 s24, s24, 2
    s_lshr_b32 s28, s2, 5
    s_add_u32 s24, s24, s28              ; row group of phase 2
    s_bfe_u32 s25, s2, 0x20003
    s_and_b32 s28, s2, 1
    s_lshl_b32 s28, s28, 2
    s_add_u32 s25, s25, s28              ; column tile of phase 2
    s_add_u32 s29, s25, {WPP}
    s_lshl_b32 s29, s29, 21
    s_and_b32 s47, s24, 1
    s_lshl_b32 s28, s20, 1
    s_add_u32 s47, s47, s28              ; first storage index of this wave: 2*wave + parity
    s_lshl_b32 s28, s47, 14
    s_add_u32 s46, s29, s28
    s_mul_i32 s28, s52, {3072 + 8192}
    s_add_u32 s46, s46, s28              ; B stream first
    s_lshl_b32 s28, s20, 14
    s_add_u32 s70, s29, s28
    s_mul_i32 s28, s51, {3072 + 8192}
    s_sub_u32 s70, s70, s28
    s_add_u32 s70, s70, {54*16384 + 3072 + 8192} ; wo src
    s_mul_i32 s69, s20, 5120             ; wo lds base
    s_lshl_b32 s72, s20, 10
    s_add_u32 s72, s72, {AUXC}
    s_mul_i32 s65, s21, 768
    s_add_u32 s65, s65, {NEGM - 144*16}
    s_movk_i32 s66, 192
    s_mul_i32 s67, s22, 12
    s_add_u32 s67, s67, s21
    s_lshl_b32 s67, s67, 7
    s_add_u32 s67, s67, {FP}
    s_cmp_eq_u32 s20, 0
    s_cselect_b32 s67, s67, {OOB}
    """)

def zipw(*ls):
    keyed = []
    for li, l in enumerate(ls):
        for j, x in enumerate(l): keyed.append(((j + 0.5)/len(l), li, j, x))
    keyed.sort(key=lambda t: t[:3])
    return [y for k in keyed for y in k[3]]
def epi_t(kind, st):
    RC = AB[0]; PK = AB[1]; TMP = BB[0]
    e = A()
    for T in range(6):
        c = RC + 4*T
        e(f"v_mul_f32 v{c+2}, s83, v{c+1}")
        if kind == "silu": e(f"v_rcp_f32 v{c+3}, v{c+1}")
    blocks = [[(T, i) for T in Ts for i in idx] for idx in ((0, 1, 2, 3), (4, 5, 6, 7)) for Ts in ((0, 1), (2, 3), (4, 5))]
    blocks.append([(T, i) for T in range(6) for i in (8, 9)])
    nxt = lambda T: f"  s_mov_b32 s48, s{81 if T == 1 else 82}" if T in (1, 3) else "  s_add_u32 s48, s48, 1024"
    pend = []
    for bi, blk in enumerate(blocks):
        V = []; n = len(blk)
        u = lambda k: acc(blk[k][0], 0) + 2*blk[k][1]
        c = lambda k: RC + 4*blk[k][0]
        for k in range(n): V.append(f"  v_pk_fma_f32 {vr(u(k),2)}, {vr(CS+2*blk[k][1],2)}, {vr(c(k),2)}, {vr(u(k),2)} op_sel_hi:[1,0,1]")
        for k in range(n): V.append(f"  v_pk_mul_f32 {vr(TMP+2*k,2)}, {vr(u(k),2)}, {vr(c(k)+2,2)} op_sel_hi:[1,0]")
        if kind == "silu":
            for k in range(2*n): V.append(f"  v_exp_f32 v{TMP+k}, v{TMP+k}")
            for k in range(n): V.append(f"  v_pk_fma_f32 {vr(TMP+2*k,2)}, {vr(TMP+2*k,2)}, {vr(c(k)+2,2)}, {vr(c(k)+2,2)} op_sel:[0,1,1] op_sel_hi:[1,1,1]")
            for k in range(2*n): V.append(f"  v_rcp_f32 v{TMP+k}, v{TMP+k}")
            fin = lambda k: f"  v_pk_mul_f32 {vr(u(k),2)}, {vr(u(k),2)}, {vr(TMP+2*k,2)}"
        else:
            for k in range(2*n): V.append(f"  v_exp_f32_e64 v{TMP+k}, v{TMP+k} clamp")
            for k in range(n): V.append(f"  v_pk_fma_f32 {vr(u(k),2)}, {vr(u(k),2)}, {vr(c(k),2)}, 1.0 op_sel:[0,1,0] op_sel_hi:[1,1,0]")
            for k in range(2*n): V.append(f"  v_max_f32 v{u(k//2)+(k&1)}, v{u(k//2)+(k&1)}, v{TMP+k}")
            fin = lambda k: f"  v_pk_add_f32 {vr(u(k),2)}, {vr(u(k),2)}, {vr(VX+4,2)}"
        items = pend + grp(st.take(OPT["epi"][bi]), 1)
        if bi == OPT["f1blk"]: items.insert(len(pend) + OPT["f1pos"], W("sa") + L("s_barrier") + flag("s75") + stamp("f1"))
        ins = {}
        for k, x in enumerate(items): ins[5 + (k*(len(V) - 6)//len(items))//2*2] = x
        for i, v in enumerate(V):
            e.append(v)
            if i in ins: e += ins[i]
        p = PK + 12*(bi & 1); tg = " ;#sa" if bi < 3 else ""
        if bi in (0, 3, 6): e("s_mov_b32 s48, s80")
        pend = []
        for q in range(n//4):
            for k in range(4*q, 4*q + 4): e.append(fin(k))
            for k in range(4*q, 4*q + 4): e(f"v_cvt_pk_bf16_f32 v{p+k}, v{u(k)}, v{u(k)+1}")
            if bi < 6:
                T = blk[4*q][0]
                stv = [f"  buffer_store_dwordx4 {vr(p+4*q)}, v{VX + bi//3}, s[16:19], s48 offen sc1{tg}"]
                if T < 5: stv.append(nxt(T))
                if q == 0: e += stv
                else: pend.append(stv)
            else:
                e(f"v_permlane16_swap_b32 v{p+4*q}, v{p+4*q+2}\nv_permlane16_swap_b32 v{p+4*q+1}, v{p+4*q+3}")
                e(f"buffer_store_dwordx4 {vr(p+4*q)}, v{VX+2}, s[16:19], s48 offen sc1")
                if q < 2: e.append(nxt(2*q+1))
    return resolve(e)

def epi_kv(st):
    a = A()
    NM = AB[0]; TMP = BB[1]; FR = AB[1]; DD = ACC
    def RSf(T): return BB[0] + 4*T if T < 5 else VX
    a(f"""
    v_mov_b32 v{TMP+12}, 0x358637bd
    v_mov_b32 v{TMP+13}, 0x358637bd
    v_mov_b32 v{TMP+14}, 0x3f803f80
    s_waitcnt lgkmcnt(0)
    """)
    def kvm(P): return [f"  v_mfma_f32_16x16x32_bf16 {vr(DD+4*n)}, {vr(FR+4*kx)}, {vr(FR+4*vy)}, {'0' if P == 0 else vr(DD+4*n)}" for n, (kx, vy) in enumerate(PRODS)]
    for P in range(3):
        for h in range(2):
            T = 2*P + h; u0 = acc(T, 0); nm = NM + 4*T; rs = RSf(T); b = A()
            for t in range(5):
                for i in range(2):
                    r = u0 + 4*t + 2*i
                    b(f"v_pk_fma_f32 {vr(r,2)}, {vr(nm+2*i,2)}, {vr(CS+4*t,2)}, {vr(r,2)} op_sel_hi:[1,0,1]")
            for t in range(5):
                for i in range(2):
                    r = u0 + 4*t + 2*i
                    b(f"v_pk_mul_f32 {vr(r,2)}, {vr(r,2)}, {vr(rs+2*i,2)}")
            for i in range(6): b(f"v_pk_mul_f32 {vr(TMP+2*i,2)}, {vr(u0+2*i,2)}, s[30:31]")
            for i in range(12): b(f"v_exp_f32_e64 v{TMP+i}, v{TMP+i} clamp")
            for t in range(2, 5):
                for i in range(2): b(f"v_cvt_pk_bf16_f32 v{FR+4*(t+1)+2*h+i}, v{u0+4*t+2*i}, v{u0+4*t+2*i+1}")
            for i in range(2): b(f"v_cndmask_b32 v{FR+12+2*h+i}, v{FR+12+2*h+i}, v{TMP+14}, s[32:33]")
            for i in range(6): b(f"v_pk_add_f32 {vr(u0+2*i,2)}, {vr(u0+2*i,2)}, 1.0 op_sel_hi:[1,0]")
            for i in range(12): b(f"v_max_f32 v{u0+i}, v{u0+i}, v{TMP+i}")
            for i in range(6): b(f"v_pk_add_f32 {vr(u0+2*i,2)}, {vr(u0+2*i,2)}, {vr(TMP+12,2)}")
            for t in range(3):
                for i in range(2): b(f"v_cvt_pk_bf16_f32 v{FR+4*t+2*h+i}, v{u0+4*t+2*i}, v{u0+4*t+2*i+1}")
            n = OPT["epi_n"][T]
            a += inter(b, grp(st.take(n), 1), 2) if n else b
        if P: a(f"s_cmp_eq_u32 s36, 1\ns_cbranch_scc1 k_kvs{P}")
        for n, (kx, vy) in enumerate(PRODS):
            d = vr(DD + 4*n)
            a(f"v_mfma_f32_16x16x32_bf16 {d}, {vr(FR+4*kx)}, {vr(FR+4*vy)}, {'0' if P == 0 else d}")
        if P: a(f"k_kvs{P}:")
    a += stamp("kvv")
    a(f"""
    s_mul_i32 s28, s51, 1792
    s_add_u32 s37, s37, s28
    s_lshl_b32 s29, s52, 12
    s_add_u32 s28, s28, s29
    s_add_u32 s28, s28, {KVX}
    v_lshlrev_b32 v2, 2, v7
    v_add_u32 v3, s28, v2
    s_cmp_eq_u32 s51, 0
    s_cselect_b32 s28, 64, 8
    v_cmp_gt_u32 vcc, s28, v7
    v_mov_b32 v6, {OOB}
    """)
    for n in range(8): a(f"ds_write_b128 v{KVOF[n]}, {vr(DD+4*n)}")
    a("v_cndmask_b32 v6, v6, v2, vcc\ns_waitcnt lgkmcnt(0)\ns_barrier")
    for n in range(7): a(f"ds_read2st64_b32 {vr(72+2*n,2)}, v3 offset0:{n} offset1:{32+n}")
    for n in range(7):
        a(f"s_waitcnt lgkmcnt({6-n})\nv_add_f32 v{72+2*n}, v{72+2*n}, v{73+2*n}")
        a(f"buffer_atomic_add_f32 v{72+2*n}, v{6 if n == 6 else 2}, s[16:19], s37 offen offset:{256*n}")
    a += stamp("kvs")
    return a

def phase2(st):
    a = A()
    G = 8; GR = 88; AR = 140; NA = 4; SA = 208; XB = 228; RP = 148
    AV = [244, 245, 246, 247]; RW = [248, 249, 250]; XA = [251, 252, 253]
    GA = 168; DB = 208; KA = 236; OA = 0; UA = 237; FW = 238
    g1 = OPT["gap1"]; psched = OPT["psched"]; wtr = OPT["wtrail"]; F1A = 239; OB = 235
    s1 = L(f"""
    s_cmp_eq_u32 s20, 0
    s_cselect_b32 s55, 0, {OOB}
    s_cselect_b64 s[56:57], -1, 0
    s_and_b32 s21, s2, 3
    s_lshl_b32 s21, s21, 2
    s_bfe_u32 s28, s2, 0x20003
    s_add_u32 s21, s21, s28              ; hp
    s_and_b32 s23, s2, 4
    s_lshl_b32 s23, s23, 1
    s_lshr_b32 s28, s2, 5
    s_add_u32 s23, s23, s28              ; rg
    s_and_b32 s28, s24, 30
    s_mul_i32 s35, s28, 21846
    s_lshr_b32 s35, s35, 16
    s_add_u32 s35, s35, 144              ; W1 lines of the first row block: (12+i)*12 + rb, lanes 0..10
    s_add_u32 s28, s28, 1
    s_mul_i32 s28, s28, 21846
    s_lshr_b32 s28, s28, 16
    s_add_u32 s28, s28, 12               ; second row block, lanes 11..21
    s_lshr_b32 s29, s21, 1
    s_mul_i32 s29, s29, 12
    s_sub_u32 s29, s29, 22               ; KV lines: kvct*12 + (i-22), lanes 22..32
    s_lshl_b32 s30, s23, 1
    s_mul_i32 s31, s30, 21846
    s_lshr_b32 s31, s31, 16
    s_add_u32 s30, s30, 1
    s_mul_i32 s30, s30, 21846
    s_lshr_b32 s30, s30, 16
    s_lshr_b32 s34, s21, 2
    s_mul_i32 s34, s34, 12
    s_add_u32 s34, s34, 96
    s_add_u32 s31, s31, s34              ; Q line, first row block (lane 22)
    s_add_u32 s30, s30, s34              ; Q line, second row block (lanes 23..)
    v_min_u32 v1, 21, v7
    v_mad_u32_u24 v2, v1, 12, s35
    v_mad_u32_u24 v3, v1, 12, s28
    v_cmp_le_u32 vcc, 11, v7
    v_cndmask_b32 v2, v2, v3, vcc
    v_lshlrev_b32 v3, 7, v2
    v_add_u32 v{F1A}, {FP + FPD}, v3
    v_add_u32 v3, s29, v7
    v_cmp_le_u32 vcc, 22, v7
    v_cndmask_b32 v2, v2, v3, vcc
    v_mov_b32 v3, s31
    v_cmp_le_u32 vcc, 33, v7
    v_cndmask_b32 v2, v2, v3, vcc
    v_mov_b32 v3, s30
    v_cmp_le_u32 vcc, 34, v7
    v_cndmask_b32 v2, v2, v3, vcc
    v_lshlrev_b32 v2, 7, v2
    v_add_u32 v{FW}, {FP}, v2
    s_mul_i32 s54, s21, 5
    s_lshr_b32 s54, s54, 2               ; ksA
    s_lshl_b32 s60, s21, 12
    s_add_u32 s60, s60, {KVP}
    v_lshlrev_b32 v3, 4, v0
    v_cmp_gt_u32 vcc, 210, v0
    v_mov_b32 v6, {OOB}
    v_cndmask_b32 v{KA}, v6, v3, vcc
    s_lshl_b32 s76, s23, 1
    s_add_u32 s76, s76, s51
    """) + blk(63, 76, "q", 28, 29) + L(f"""
    s_xor_b32 s63, s63, s3
    s_lshl_b32 s30, s52, 11
    s_add_u32 s63, s63, s30
    s_add_u32 s62, s54, 1
    """) + cell(61, 54, 28) + cell(62, 62, 28) + L(f"""
    s_add_u32 s61, s61, s63
    s_add_u32 s62, s62, s63
    s_add_u32 s63, s63, {QSZ}
    """)
    s2 = A()
    s2(f"""
    v_and_b32 v1, 15, v7                 ; i / m
    v_lshrrev_b32 v2, 4, v7              ; g
    v_lshrrev_b32 v3, 2, v1
    v_and_b32 v212, 3, v1
    v_lshl_add_u32 v6, v3, 3, v212
    v_cmp_le_u32 vcc, 20, v6
    v_cndmask_b32 v216, 0, 5, vcc
    v_lshlrev_b32 v220, 2, v216
    v_sub_u32 v220, v6, v220
    v_add_u32 v6, 4, v6
    v_cmp_le_u32 vcc, 20, v6
    v_cndmask_b32 v217, 0, 5, vcc
    v_lshlrev_b32 v221, 2, v217
    v_sub_u32 v221, v6, v221
    v_cmp_gt_u32 vcc, 8, v1
    v_cndmask_b32 v218, 64, 5, vcc
    v_add_u32 v222, 12, v1
    v_add_u32 v6, v3, v212
    v_cmp_le_u32 vcc, 3, v6
    v_cmp_le_u32 s[34:35], 2, v212
    s_or_b64 vcc, vcc, s[34:35]
    v_cndmask_b32 v219, 0, 5, vcc
    v_mov_b32 v223, 20
    v_mov_b32 v213, 255
    s_mov_b32 s37, {RED}
    """)
    for k in range(2):
        s2(f"""
        s_add_u32 s31, s54, {k}
        s_mul_i32 s32, s31, 205
        s_lshr_b32 s32, s32, 10
        s_mul_i32 s32, s32, 5
        s_sub_u32 s32, s31, s32
        s_cmp_eq_u32 s32, 2
        s_cselect_b32 s33, 1, 0
        s_cselect_b32 s36, 1, 4
        s_lshl_b32 s31, s31, 3
        s_mul_i32 s32, s21, 10
        s_sub_u32 s31, s31, s32
        v_lshlrev_b32 v3, s33, v2
        v_add_u32 v3, s31, v3
        """)
        for j in range(2):
            if j: s2("v_add_u32 v3, s36, v3")
            for tl in range(4):
                s2(f"""
                v_sub_u32 v212, v3, v{216+tl}
                v_cmp_gt_u32 vcc, 5, v212
                v_mad_u32_u24 v212, v3, 21, v{220+tl}
                v_cndmask_b32 v212, v213, v212, vcc
                v_lshl_add_u32 v{GA+tl*4+k*2+j}, v212, 3, s37
                """)
    ol = L(f"buffer_load_dwordx4 v[208:211], v{KA}, s[16:19], s60 offen sc1 ;#P")
    ql = L(f"""
    buffer_load_dwordx4 a[240:243], v4, s[16:19], s61 offen sc1 ;#Q
    buffer_load_dwordx4 a[244:247], v4, s[16:19], s62 offen sc1 ;#Q
    buffer_load_dwordx4 a[248:251], v4, s[16:19], s61 offen offset:1024 sc1 ;#Q
    buffer_load_dwordx4 a[252:255], v4, s[16:19], s62 offen offset:1024 sc1 ;#Q
    """)
    s3 = A()
    s3(f"""
    s_and_b32 s64, s23, 3
    s_lshl_b32 s64, s64, 11
    s_and_b32 s28, s23, 4
    s_lshl_b32 s28, s28, 12
    s_add_u32 s64, s64, s28
    s_and_b32 s28, s23, 8
    s_lshl_b32 s28, s28, 10
    s_xor_b32 s28, s28, s3
    s_add_u32 s64, s64, s28
    s_lshl_b32 s28, s21, 7
    s_add_u32 s64, s64, s28
    s_add_u32 s64, s64, {FO}
    s_add_u32 s64, s64, s55
    s_mul_i32 s28, s21, 5
    v_add_u32 v3, s28, v2
    v_lshrrev_b32 v6, 3, v3
    v_lshlrev_b32 v6, 14, v6
    v_bfe_u32 v212, v3, 2, 1
    v_lshl_add_u32 v6, v212, {13 if OPT["mode"] in ("cols", "none") else 12}, v6
    v_and_b32 v3, 3, v3
    v_lshl_add_u32 v6, v3, 8, v6
    v_lshl_add_u32 v{OB}, v1, 4, v6
    s_add_u32 s28, s28, 4
    s_lshr_b32 s30, s28, 2
    """)
    s3 += cell(30, 30, 29)
    s3(f"""
    s_and_b32 s28, s28, 3
    s_lshl_b32 s28, s28, 8
    s_add_u32 s28, s28, s30
    v_lshl_add_u32 v3, v1, 4, s28
    v_lshl_add_u32 v3, v2, 3, v3
    v_cmp_gt_u32 vcc, 2, v2
    v_mov_b32 v6, {OOB}
    v_lshl_add_u32 v{UA}, v0, 3, s37
    v_cndmask_b32 v{OA}, v6, v3, vcc
    """)
    sA = A()
    sA += blk(40, 24, "h", 28, 29) + cell(30, 47, 29) + L(f"""
    s_xor_b32 s40, s40, s3
    s_add_u32 s44, s40, s30              ; own rows
    s_bitcmp1_b32 s24, 0
    s_cselect_b32 s28, {-HSZ & 0xffffffff}, {HSZ}
    s_add_u32 s45, s44, s28              ; partner rows (other block of the same page)
    """)
    for T in range(4):
        sA(f"s_add_u32 s28, s20, {T}\ns_and_b32 s28, s28, 3\ns_lshl_b32 s28, s28, 10\nv_add_u32 v{AV[T]}, s28, v4")
    osum = W("P") + L(f"v_cvt_pk_bf16_f32 v208, v208, v209\nv_cvt_pk_bf16_f32 v209, v210, v211\nds_write_b64 v{UA}, v[208:209]")
    ogat = [f"  ds_read_b64 {ar(204+2*n,2)}, v{GA+n}" for n in range(16)]
    om = []
    for k in range(2):
        for T in range(2):
            for tl in (3, 0, 1, 2):
                d = vr(DB + 16*T + 4*tl)
                om.append(f"  v_mfma_f32_16x16x32_bf16 {d}, {ar(204+tl*8+k*4)}, {ar(240+T*8+k*4)}, {'0' if k == 0 else d}")
    ofin = []
    for T in range(2):
        o = A(); b = DB + 16*T; z = b + 12; pk = GA + 6*T
        for r in range(3): o(f"v_add_f32 v{z+r}, 0x358637bd, v{z+r}")
        for r in range(3): o(f"v_rcp_f32 v{z+r}, v{z+r}")
        for tl in range(3):
            for r in range(4): o(f"v_mul_f32 v{b+4*tl+r}, v{b+4*tl+r}, v{z+tl}")
        for i in range(6): o(f"v_cvt_pk_bf16_f32 v{pk+i}, v{b+2*i}, v{b+2*i+1}")
        o(f"buffer_store_dwordx4 {vr(pk)}, v2, s[16:19], s63 offen offset:{1024*T} sc1 ;#OS")
        o(f"buffer_store_dwordx2 {vr(pk+4,2)}, v{OA}, s[16:19], s63 offen offset:{1024*T} sc1 ;#OS")
        ofin.append(list(o))
    fs = A()
    fs(f"""
    s_lshl_b32 s42, s24, 2
    s_add_u32 s42, s42, s20
    s_lshr_b32 s30, s24, 1
    s_and_b32 s28, s30, 3
    s_lshl_b32 s28, s28, 11
    s_and_b32 s29, s30, 4
    s_lshl_b32 s29, s29, 12
    s_add_u32 s28, s28, s29
    s_and_b32 s29, s30, 8
    s_lshl_b32 s29, s29, 10
    s_xor_b32 s29, s29, s3
    s_add_u32 s28, s28, s29
    s_add_u32 s28, s28, {FO}
    v_min_u32 v6, 15, v7
    v_lshl_add_u32 v{VF-1}, v6, 7, s28
    s_mul_i32 s48, s42, {16*1280}
    s_mul_i32 s28, s25, 160
    s_add_u32 s48, s48, s28
    """)
    fs += blk(42, 24, "o", 28, 29)
    fs(f"""
    s_xor_b32 s42, s42, s3
    s_lshl_b32 s28, s20, 10
    s_add_u32 s42, s42, s28
    s_mul_i32 s49, s20, 15360
    s_add_u32 s49, s49, {RED}
    v_mul_u32_u24 v243, 176, v1
    v_lshl_add_u32 v243, v2, 3, v243
    v_add_u32 v243, s49, v243            ; result write: row stride 176
    """)
    for i in range(3):
        fs(f"""
        v_add_u32 v6, {64*i}, v7
        v_mul_u32_u24 v1, 6554, v6
        v_lshrrev_b32 v1, 16, v1
        v_mul_u32_u24 v3, 1120, v1
        v_lshl_add_u32 v3, v6, 4, v3
        v_cmp_gt_u32 vcc, 160, v6
        v_add_u32 v1, v1, v6
        v_mov_b32 v6, {OOB}
        v_lshl_add_u32 v{240+i}, v1, 4, s49
        v_cndmask_b32 v{XA[i]}, v6, v3, vcc
        """)
    for T in range(1, 4):
        fs(f"s_add_u32 s28, s20, {T}\ns_and_b32 s28, s28, 3\ns_mul_i32 s28, s28, 15360\ns_add_u32 s28, s28, {RED + (T-1)*5120}\nv_add_u32 v{RW[T-1]}, s28, v4")
    fs(f"""
    v_add_u32 v1, s49, v4
    v_mov_b32 v2, v{OB}
    s_and_b32 s28, s24, 15
    s_lshl_b32 s28, s28, 3
    s_add_u32 s28, s28, s25
    s_lshl_b32 s28, s28, 2
    s_add_u32 s28, s28, s20
    """)
    fs += cell(65, 28, 29)
    fs(f"""
    s_add_u32 s65, s65, {GXP*PG}
    s_lshr_b32 s28, s65, 21
    s_lshr_b32 s29, s24, 4
    s_xor_b32 s28, s28, s29
    s_and_b32 s28, s28, 1
    s_lshl_b32 s28, s28, 13
    s_xor_b32 s28, s28, s3
    s_add_u32 s65, s65, s28
    s_xor_b32 s66, s65, {16*16384}
    s_add_u32 s72, s66, 3072
    s_add_u32 s73, s65, 3072
    """)
    MG = OPT["mg"]
    SL = OPT["slots"]; RL = max(i for i, x in enumerate(SL) if x[0] == "r")
    def areg(s): return 204 if s == 13 else AR + (s % NA)*16
    def ldA(s):
        r_, j = SL[s]
        r = [f"  s_add_u32 s41, s{45 if r_ == 'r' else 44}, {65536*j}"]
        if j == 6: r += L(f"s_cmp_lt_u32 s20, 3\ns_cselect_b32 s41, s41, {OOB}")
        return r + [f"  buffer_load_dwordx4 {ar(areg(s)+4*T)}, v{AV[T]}, s[16:19], s41 offen sc1 ;#A{s}{'abcd'[T]}" for T in ((1, 2, 3, 0) if s >= MG else range(4))]
    a("k_p2:\n;MARK ep")
    for i in range(7): a(f";MARK B{i}")
    for i in range(5): a(f";MARK wo{i}")
    a += stamp("eend")
    gs = grp(st.take(g1), 2)
    gs.insert(len(gs) - OPT["poll_early"], poll(F1A, VF, "p1", "s55"))
    allsu = glue(s1 + sA + s2 + s3 + fs); k1 = OPT["su1"]; k2 = OPT["su2"]
    assert k1 >= len(glue(s1 + sA))
    flat = lambda l: sum(l, [])
    p1at = next(i for i, x in enumerate(allsu) if f"v_add_u32 v{F1A}," in x[0]) + 1
    a += inter(flat(allsu[:k1]), gs, p1at if OPT["poll_early"] >= len(gs) - 2 else 0)
    a += W("ep") + L("s_barrier") + flag("s67", 224) + stamp("flag")
    a += W("p1") + L("s_mov_b64 s[58:59], vcc") + check("k_s1", F1A, VF, True) + L("s_mov_b64 vcc, s[58:59]") + stamp("c1")
    pre = grp(ldA(2), 1)
    if OPT["pp2"] < 0: pre.append(poll(FW, VF, "p2", "s55"))
    a += ldA(0) + ldA(1) + inter(flat(allsu[k1:k2]), pre)
    if min(OPT["xs"]) < OPT["c2"]:
        kx = max(i for i, x in enumerate(allsu) if f"v_cndmask_b32 v{XA[2]}," in x[0]); assert kx < k2, (kx, len(allsu))
    late = allsu[k2:]; nl = OPT["c2"]
    late = {i: flat(late[i*len(late)//nl:(i+1)*len(late)//nl]) for i in range(nl)}
    def ldO(i0, n):
        r = []
        for i in range(i0, i0 + n):
            if OPT["mode"] in ("cols", "none"):
                r += [f"  s_add_u32 s43, s42, {8192*i}", f"  buffer_load_dwordx4 {ar(4*i)}, v4, s[16:19], s43 offen sc1 ;#O{i}"]; continue
            if i % 2 == 0 or i == i0: r.append(f"  s_add_u32 s43, s42, {16384*(i//2)}")
            r.append(f"  buffer_load_dwordx4 {ar(4*i)}, v{4 + (i & 1)}, s[16:19], s43 offen sc1 ;#O{i}")
        return r
    ldX = [[f"  s_add_u32 m0, s49, {4096 + 1024*i}", "  s_nop 0", f"  buffer_load_dwordx4 v{XA[i]}, s[8:11], s48 offen lds ;#X"] for i in range(3)]
    rdX = L("v_add_u32 v2, 51200, v4\nv_and_b32 v3, 15, v7\nv_lshlrev_b32 v3, 4, v3\nv_sub_u32 v3, v243, v3") + W("X") + tag([f"  ds_read_b64 {vr(XB+2*t,2)}, v3 offset:{4096+32*t}" for t in range(5)], "xr")
    NB = 3
    def sb(s, t): return vr(GR + 20*(s % NB) + 4*t)
    def rdB(s): return tag([f"  ds_read_b128 {sb(s,t)}, v{4 if s < 10 else 2} offset:{(s%10)*5120+1024*t}" for t in range(5)], f"b{s}")
    wr_ = tag([f"  ds_write_b128 v{RW[T-1]}, {vr(G+(T*5+t)*4)} offset:{1024*t}" for T in range(1, 4) for t in range(5)], "w")
    rd_ = tag([f"  ds_read_b128 {vr(G+20+4*j)}, v1 offset:{1024*j}" for j in range(15)], "r")
    xw = tag([f"  ds_write_b128 v{RW[T-1]}, {vr(GR+(T*5+t)*4)} offset:{1024*t}" for T in range(1, 4) for t in range(5)], "xw")
    xr = tag([f"  ds_read_b128 {vr(GR+20+20*j+4*t)}, v1 offset:{5120*j+1024*t}" for t in range(5) for j in range(3)], "xr")
    xa = []
    for t in range(5):
        xa += [f"  v_add_f32 v{GR+4*t+i}, v{GR+4*t+i}, v{GR+20+20*j+4*t+i}" for j in range(3) for i in range(4)]
        xa += [f"  v_cvt_pk_bf16_f32 v{GA+2*t+i}, v{GR+4*t+2*i}, v{GR+4*t+2*i+1}" for i in range(2)]
        if t in (1, 3): xa.append(f"  buffer_store_dwordx4 {vr(GA+2*t-2)}, v4, s[16:19], s66 offen offset:{512*(t-1)} sc1 ;#XS")
    xa += L(f"v_lshlrev_b32 v0, 3, v7\nbuffer_store_dwordx2 {vr(GA+8,2)}, v0, s[16:19], s66 offen offset:2048 sc1 ;#XS")
    xl = [f"  buffer_load_dwordx4 {vr(GA+4*t)}, v4, s[16:19], s65 offen offset:{1024*t} sc1 ;#XL" for t in range(2)] + [f"  buffer_load_dwordx2 {vr(GA+8,2)}, v0, s[16:19], s65 offen offset:2048 sc1 ;#XL"]
    XF, XP, XC = OPT["xf"], OPT["xp"], OPT["xc"]
    xpoll = L(f"v_mov_b32 v{VF-1}, s73") + poll(VF-1, VF, "xp")
    C2 = OPT["c2"]; plan = OPT["aplan"]; OFS = OPT["ofs"]; PO = OPT["po"]; PC = OPT["pc"]; osched = OPT["osched"]
    no = 0
    XU = 184
    xu = []
    for i in range(10): xu += [f"  v_lshlrev_b32 v{XU+2*i}, 16, v{XB+i}", f"  v_and_b32 v{XU+2*i+1}, 0xffff0000, v{XB+i}"]
    def wdone(g): return ("W", 5*g + 4) not in st.items
    def mf(s, T, rev):
        r_, j = SL[s]; GG = GR if r_ == "r" else G; first = all(x[0] != r_ for x in SL[:s])
        return [f"  v_mfma_f32_16x16x32_bf16 {vr(GG+(T*5+t)*4)}, {breg(j,t)}, {ar(areg(s)+4*T)}, {'0' if first else vr(GG+(T*5+t)*4)}" for t in (range(4, -1, -1) if rev else range(5))]
    nm = 14 - MG; WB = OPT["wb"]
    for s in range(MG + 4):
        if s < MG:
            need = [f"A{s}{c}" for c in "abcd"] + [f"B{SL[s][1]}"]; assert ("B", 5*SL[s][1] + 4) not in st.items
            M = sum((mf(s, T, k & 1) for k, T in enumerate((1, 2, 3, 0) if s == RL else range(4))), [])
        else:
            T = (1, 2, 3, 0)[s - MG]
            need = [f"A{x}{'abcd'[T]}" for x in range(MG, 14)]
            M = sum((mf(x, T, False) for x in range(MG, 14)), [])
        if s == XF: need.append("XS")
        vm = need + (["op"] if s == PC else []) + ([f"wo{g}" for g in range(5) if g not in wtr] if s == WB else []) + (["OS"] if s == OFS else []) + (["p2"] if s == C2 else [])
        if s == WB: assert all(wdone(g) for g in range(5) if g not in wtr)
        OQ = OPT["oq"]; OM = C2 + (1 if OQ else 2)
        a += W(vm, "*" if (s in (RL, RL if OPT["xw"] else RL + 2) or (s == C2 + 2 and not OQ)) else ())
        a += stamp(f"g{s}")
        if s == C2: a += check("k_sw", FW, VF, True) + stamp("w1")
        if s == PC: a += check("k_so", VF-1, VF, True) + stamp("op")
        if s != PC and s in (OFS, -1 if OQ else C2 + 2, WB, RL, MG + 1): a("s_barrier")
        ls = []; n = len(M)
        for x in plan.get(s, []): assert (SL[x][1] < 2 or s >= C2) and (x - s <= 3 or (x == 13 and s > C2 + 3))
        v = sum((ldA(x) for x in plan.get(s, [])), [])
        if s == C2: v = ol + ql + v
        if s == OFS: v = flag("s64") + v
        if s == XF: v = flag("s72") + v
        if s == XP: assert s > PC; v = xpoll + v
        if s == PO: v = poll(VF-1, VF, "op", "s55") + v
        if s == OPT["pp2"]: v = poll(FW, VF, "p2", "s55") + v
        if late.get(s): ls.append((late[s], 0, n - 1))
        if s in OPT["xs"]: v += sum([ldX[i] for i, x in enumerate(OPT["xs"]) if x == s], [])
        if psched.get(s): v += st.take(psched[s])
        if osched.get(s): v += ldO(no, osched[s]); no += osched[s]
        ls.append((v, 0, n - 2))
        if OQ:
            if s == C2 + 1: ls += [(osum, OQ, OQ + 1), (L("s_waitcnt lgkmcnt(0)\ns_barrier"), OQ + 4, OQ + 4), (ogat, OQ + 5, min(OQ + 10, 19))]
        else:
            if s == C2 + 1: ls.append((osum, 16, 19))
            if s == C2 + 2: ls.insert(0, (ogat, 0, 10))
        if s == OM + 1: ls.append((ofin[0] + ofin[1], 1, 19))
        if s == OPT["xr"]: assert s < RL and s != OFS and s > OM + 1; ls.insert(0, (rdX, 0, 8))
        if OPT["xw"] == 0:
            if s == RL: ls += [(xw[:5], 10, 14), (xw[5:10], 15, 19)]
            if s == RL + 1: ls += [(xw[10:], 0, 5), (L("s_waitcnt lgkmcnt(0)\ns_barrier"), 9, 9), (xr, 10, 19)]
            if s == RL + 2: ls.append((xa[:OPT["xcut"]], 0, n - 1))
            if s == RL + 3: ls.append((xa[OPT["xcut"]:], 0, n - 1))
        else:
            if s == RL: ls.append((xw[:4], 9, 19))
            if s == RL + 1: ls.append((xw[4:11], 0, 19))
            if s == RL + 2: ls += [(xw[11:], 0, 9), (L("s_waitcnt lgkmcnt(0)\ns_barrier"), 12, 12), (xr, 13, 19)]
            if s == RL + 3:
                a += L("s_waitcnt lgkmcnt(0)") + [";@align on"] + [f"  v_pk_add_f32 {vr(GR+2*i,2)}, {vr(GR+2*i,2)}, {vr(GR+20+20*j+2*i,2)}" for j in range(3) for i in range(10)] + [";@align off"]
                ls.append(([x for x in xa if "v_add_f32" not in x], 0, n - 1))
        if s > MG: ls.append((wr_[5*(s-MG-1):5*(s-MG)], 2, n - 1))
        if s == MG + 2: ls.append((xu, 0, n - 1))
        if s == MG + 3: ls.append((rdB(0) + rdB(1), 0, n - 2))
        a += place(M, ls)
        if s == OM: a += W("Q", "*") + stamp("om") + place(om, [(st.take(OPT["pom"]), 0, 15)])
    a += stamp("gend")
    E = G + 20
    VB = []
    for j in range(3):
        for i in range(10): VB.append(f"  v_pk_add_f32 {vr(G+2*i,2)}, {vr(G+2*i,2)}, {vr(G+20+20*j+2*i,2)}")
    VC = []
    for i in range(10): VC += [f"  v_lshlrev_b32 v{RP+2*i}, 16, v{GA+i}", f"  v_and_b32 v{RP+2*i+1}, 0xffff0000, v{GA+i}"]
    VC += [f"  v_pk_add_f32 {vr(G+2*i,2)}, {vr(G+2*i,2)}, {vr(RP+2*i,2)}" for i in range(10)]
    VC += [f"  v_pk_mul_f32 {vr(E+2*i,2)}, {vr(G+2*i,2)}, s[30:31]" for i in range(10)]
    VA = [f"  v_add_f32 v{G+i}, v{G+i}, v{G+20+20*j+i}" for j in range(3) for i in range(20)]
    V = []
    V += [f"  v_exp_f32 v{E+i}, v{E+i}" for i in range(20)]
    V += [f"  v_add_f32 v{E+i}, 1.0, v{E+i}" for i in range(20)]
    V += [f"  v_rcp_f32 v{E+i}, v{E+i}" for i in range(20)]
    V += [f"  v_mul_f32 v{G+i}, v{G+i}, v{E+i}" for i in range(20)]
    V0 = OPT["v0"]; RB = OPT["rb"]; LK = NB - 1; P0 = MG + 4
    V1 = OPT["v1"]; pa = -(-60//(V1 - V0))
    cost = [8 if ("exp" in x or "rcp" in x) else 4 for x in V]; tot = sum(cost); parts = [[] for _ in range(20 - V1)]; c_ = 0
    for x, c in zip(V, cost): parts[min(len(parts) - 1, c_*len(parts)//tot)].append(x); c_ += c
    for s in range(20):
        wg = [g for g, st_ in wtr.items() if st_ == s]
        for g in wg: assert s + LK <= 4*g and wdone(g)
        a += W([f"O{s}"] + [f"wo{g}" for g in wg] + (["XS"] if P0 + s == XF else []) + (["xp"] if P0 + s == XC else []) + (["XL"] if s == V1 else []), [f"b{s}"] + (["w"] if s == RB else []) + (["r"] if s == V0 else []))
        if s == RB or wg: a("s_barrier")
        a += stamp(f"s{s}")
        if P0 + s == XC: a += check("k_sx", VF-1, VF) + stamp("xc")
        if s == V1: a += [";@align on"] + VC + [";@align off"]
        M = [f"  v_mfma_f32_16x16x32_bf16 {vr(SA+4*t)}, {sb(s,t)}, {ar(4*s)}, {'0' if s == 0 else vr(SA+4*t)}" for t in range(5)]
        ls = []
        if s + LK < 20: ls.append((rdB(s+LK), 0, 4))
        v = []
        if P0 + s == XF: v += flag("s72")
        if P0 + s == XP: v += xpoll
        if P0 + s == XC: v += xl
        if psched.get(P0 + s): v += st.take(psched[P0 + s])
        if osched.get(P0 + s): v += ldO(no, osched[P0 + s]); no += osched[P0 + s]
        ls.append((v, 0, 4))
        if s == 0: ls.append((L(f"s_mov_b32 s30, {LOG2E|0x80000000}\ns_mov_b32 s31, {LOG2E|0x80000000}"), 0, 4))
        if RB <= s < RB + 3: ls.append((rd_[5*(s-RB):5*(s-RB)+5], 0, 4))
        if V0 <= s < V1: ls.append((VA[(s-V0)*pa:(s-V0+1)*pa], 0, 4))
        if s >= V1: ls.append((parts[s-V1], 0, 4))
        a += place(M, ls)
    assert no == 20 and not st.items, (no, st.items)
    a += stamp("send")
    for t in range(5):
        for i in range(2): a(f"v_pk_fma_f32 {vr(SA+4*t+2*i,2)}, {vr(SA+4*t+2*i,2)}, {vr(G+4*t+2*i,2)}, {vr(XU+4*t+2*i,2)}")
        for i in range(2): a(f"v_cvt_pk_bf16_f32 v{XB+2*t+i}, v{SA+4*t+2*i}, v{SA+4*t+2*i+1}")
        a(f"ds_write_b64 v243, {vr(XB+2*t,2)} offset:{32*t}")
    a(";@align off\ns_waitcnt lgkmcnt(0)")
    for i in range(3): a(f"ds_read_b128 {vr(E+4*i)}, v{240+i}")
    for i in range(3): a(f"s_waitcnt lgkmcnt({2-i})\nbuffer_store_dwordx4 {vr(E+4*i)}, v{XA[i]}, s[4:7], s48 offen")
    a += stamp_out()
    return resolve(a)

def build():
    OUTL.clear()
    pro = prologue()
    br = L("s_cmp_lt_u32 s22, 8\ns_cbranch_scc1 k_kv")
    if OPT["pol"] == "race":
        br += L("s_cmp_eq_u32 s21, 11\ns_cbranch_scc1 k_race")
        OUTL("k_race:")
        if OPT["touch"] == 1: OUTL.extend(d_touch())
        OUTL("s_mov_b64 s[36:37], s[74:75]")
        OUTL.extend(d_misc())
        OUTL("s_waitcnt vmcnt(0)\ns_barrier")
        OUTL.extend(flag("s49"))
        OUTL(f"""
        s_cmp_lg_u32 s20, 0
        s_cbranch_scc1 k_race2
        s_cmp_eq_u32 s2, 255
        s_cbranch_scc1 k_race2
        s_bfe_u32 s29, s2, 0x10003           ; 239 -> 1, 247 -> 0
        s_lshl_b32 s28, s29, 13
        s_add_u32 s28, s28, {RACE}
        v_lshlrev_b32 v6, 25, v7
        s_mov_b32 s56, s36
        s_and_b32 s57, s37, 0xffff
        s_mov_b32 s58, 256
        s_mov_b32 s59, 0x20000
        v_mov_b32 v3, 0
        buffer_atomic_add v3, v6, s[16:19], s28 offen sc0
        v_mov_b32 v1, 1
        s_mov_b32 s30, 12
        s_mov_b32 s31, 1
        s_waitcnt vmcnt(0)
        k_race0:
        buffer_atomic_add v1, v6, s[56:59], 0 offen offset:4 sc0
        s_sub_u32 s30, s30, 1
        s_waitcnt vmcnt(0)
        v_readfirstlane_b32 s38, v1
        v_mov_b32 v1, 0
        s_and_b32 s38, s38, 1
        s_cmp_eq_u32 s38, s31                ; first trip: odd = partner is there; later trips: even
        s_cselect_b32 s30, 0, s30
        s_mov_b32 s31, 0
        s_cmp_lg_u32 s30, 0
        s_cbranch_scc1 k_race0
        s_mov_b32 s30, {OPT['trips']}
        k_race1:
        v_mov_b32 v3, 0
        buffer_atomic_add v3, v6, s[16:19], s28 offen sc0
        s_sub_u32 s30, s30, 1
        s_cmp_lg_u32 s30, 0
        s_waitcnt vmcnt(0)
        s_cbranch_scc1 k_race1
        v_mov_b32 v3, 1
        buffer_atomic_add v3, v6, s[56:59], 0 offen sc0
        s_xor_b32 s29, s29, 1
        s_lshl_b32 s29, s29, 13
        s_xor_b32 s29, s29, s39
        s_waitcnt vmcnt(0)
        v_readfirstlane_b32 s30, v3
        v_mov_b32 v3, s29
        s_nop 0
        s_bitcmp0_b32 s30, 0
        s_cselect_b32 s28, {PW}, {OOB}
        buffer_store_dword v3, v6, s[16:19], s28 offen sc1
        k_race2:
        """)
        OUTL.extend((d_cs() if OPT["keep"] < 1 else []) + [f"  s_mov_b32 s{r}, {OOB}" for r in (61, 62, 63, 75, 80, 81, 82, 83)] + [f"  v_add_u32 v{L2B+i}, {2*STAGE}, v{LA+i}" for i in range(5)] + L("s_branch k_t_join"))
    items = [("B", i) for i in range(35)] + [("W", i) for i in range(25)]
    st_t = Stream(items); st_n = Stream(items)
    mt = g1_main("k_t", True, st_t)
    mt += L("s_waitcnt lgkmcnt(0)\ns_cmp_lt_u32 s22, 12\ns_cbranch_scc1 k_q")
    eq = epi_t("phi", Stream(st_t.items)); es = epi_t("silu", st_t)
    mn = g1_main("k_n", False, st_n)
    ek = epi_kv(st_n)
    assert st_n.items == st_t.items
    n0 = len(resolve(pro + br))
    a = resolve(pro + br + mt) + es + phase2(st_t) + L("s_endpgm\nk_q:") + eq + L("s_branch k_p2\nk_kv:") + resolve(pro + br + mn + ek)[n0:] + L("s_branch k_p2")
    a += L("k_end:\ns_endpgm") + OUTL
    body, added = haz.fix(a)
    body, nbytes, nn, npm = align.align([x.replace("CODE_KB", "40").replace("CODE_MAX", "44444") for x in body])
    kb = (nbytes + 1023)//1024; assert kb <= 64
    body = [x.replace("s_cmp_ge_u32 s28, 40", f"s_cmp_ge_u32 s28, {kb if OPT.get('cpf', 1) else 0}").replace("44444", str((nbytes - 16) & ~15)) for x in body]
    body = [re.sub(r"\s*;(#\S+|nocount|C)$", "", x) for x in body]
    print("instrs", len(body), "nops added", added, "bytes", nbytes, "align nops", nn, "promoted", npm, file=sys.stderr)
    if OPT.get("nost"): body = [x for x in body if not ("buffer_store_dwordx4" in x and "s[76:79]" in x)]
    if OPT.get("cyc"): body = [x.replace("s_memrealtime", "s_memtime") for x in body]
    out = ["; @launch grid=(256,1,1) block=(256,1,1) lds=163840",
           '.amdgcn_target "amdgcn-amd-amdhsa--gfx950"\n.text', khead(NAME)] + body
    if DIAG: out.append(";ST " + " ".join(OPT["st"][:7]) + "\n;OPTS " + " ".join(x for x in sys.argv[3:] if not x.startswith("st=")))
    out.append('.section .rodata,"a"\n.p2align 6\n' + kd(NAME, 512, 256, 102))
    return "\n".join(out) + "\n"
if __name__ == "__main__":
    for x in sys.argv[2:]:
        if x == "d": DIAG = True
        else:
            k, v = x.split("=", 1); OPT[k] = eval(v)
    src = build()
    open(sys.argv[1], "w").write(src)
```

```python
import sys, re
from asmlib import kd, khead
import haz, align

NAME = "recurrent_scan__linear_attn_block__dense_activation_silu__prompt_kernel"
S, D, F = 2048, 640, 1728
FA = 0x8000
FP = 0xF0000
FPD = 0x9000 - 144*128
FO = 0x38000
NEGM = 0x10000; RSTD = 0x12000
CSP = 0x14000
KVP   = 0x40000
PG = 1 << 21
PW = 0xC8000
RACE = 0xC0000
WPP = 1
HOF = 74*16384; HSZ = 27*16384
QPP = 9; QSZ = 10*16384
GXP = 13
WS_USED = 15*PG
TS = 0x1F00000
def blk(dst, rb, kind, t0, t1):
    sh, pg, msk, sz, of = (1, WPP, 1, HSZ, HOF) if kind == "h" else (2, QPP, 3, 2*QSZ, QSZ if kind == "o" else 0)
    return L(f"""
    s_and_b32 s{t0}, s{rb}, 15
    s_lshr_b32 s{t0}, s{t0}, {sh}
    s_add_u32 s{t0}, s{t0}, {pg}
    s_lshr_b32 s{t1}, s{rb}, 4
    s_xor_b32 s{t1}, s{t1}, s{t0}
    s_and_b32 s{t1}, s{t1}, 1
    s_lshl_b32 s{t1}, s{t1}, {12 if OPT["mode"] in ("cols", "none") else 13}
    s_lshl_b32 s{t0}, s{t0}, 21
    s_add_u32 s{t0}, s{t0}, s{t1}
    s_and_b32 s{t1}, s{rb}, {msk}
    s_mul_i32 s{t1}, s{t1}, {sz}
    s_add_u32 s{t0}, s{t0}, s{t1}
    s_add_u32 s{dst}, s{t0}, {of}
    """)
def cell(dst, idx, t0):
    return L(f"s_lshr_b32 s{t0}, s{idx}, 1\ns_lshl_b32 s{t0}, s{t0}, 14\ns_and_b32 s{dst}, s{idx}, 1\ns_lshl_b32 s{dst}, s{dst}, {13 if OPT['mode'] in ('cols', 'none') else 12}\ns_add_u32 s{dst}, s{dst}, s{t0}")
LOG2E = 0x3fb8aa3b
OOB = 0x40000000
STAGE = 45056; WOFF = 24576; SPARE = 3*STAGE
AUXC = SPARE; AUXM = SPARE + 6400
CSL = SPARE + 8192
PACKL = SPARE
KVX = SPARE + 10240
RED = 102400
DIAG = False
OPT = dict(spin=200000, pkd=1, pkr=3, pks={4: 3, 5: 2}, flagb=3, flagb_n=2, pollb=6,
           pf_t={15:6,16:6,17:6,18:6,19:7}, pf_n={15:5,16:5,17:5,18:5,19:6}, epi_n=[6, 5, 5, 5, 5, 0], kv_first=0,
           epi=[5, 3, 3, 3, 2, 3, 2], oq=9, f1blk=4, f1pos=2, gap1=4, poll_early=1, c2=2, pom=0,
           slots=[("r",0),("r",1),("o",0),("o",1),("r",2),("r",3),("r",4),("r",5),("r",6),("o",2),("o",3),("o",4),("o",5),("o",6)],
           aplan={0:[3],2:[4],3:[5,6],4:[7],5:[8],6:[9],7:[10],8:[13],9:[11,12]},
           mg=11, wb=12, xr=6, rb=1, burst=1, su1=95, su2=200, pe1=260, pp2=0,
           psched={0:2,1:2}, xs=[1, 1, 1], ofs=7, po=10, pc=12, xcut=44, xf=14, xp=17, xc=21, v1=11,
           osched={12:4,13:4,14:4,15:2,16:2,17:2,19:2}, xw=2, xup=9, cpf0=2, mv3=2, nbuf=3, v0=5, nopk=1, adist=3, p2map=1, su_pre=200, su_pre_n=160, sleep=2, rot=0, snake=1, krot=0, fash=4, wtrail={}, wrow=1, wfirst=0, sufirst=0, keep=2, swarm=0, touch=1, slin=0, head=2, w1first=0, cmaj=0, pol="race", mode="rows", trips=8, cpf2=12,
           st=["eend", "w1", "g11", "op", "gend", "s5", "send"])

class A(list):
    def __call__(self, s):
        for x in s.strip("\n").split("\n"):
            x = x.strip()
            m = re.match(r"s_cselect_b32 (s\d+), (\d+|0x[0-9a-f]+), (\d+|0x[0-9a-f]+)\s*(;.*)?$", x)
            if m and int(m.group(2), 0) > 64 and int(m.group(3), 0) > 64:
                self.append(f"  s_mov_b32 {m.group(1)}, {m.group(3)}")
                x = f"s_cselect_b32 {m.group(1)}, {m.group(2)}, {m.group(1)}"
            if x: self.append(("" if x.endswith(":") else "  ") + x)
        return self
def L(s): return list(A()(s))
def stamp(name):
    if not DIAG: return []
    if name == "entry": i = 0
    elif name in OPT["st"][:7]: i = 1 + OPT["st"].index(name)
    else: return []
    return [f"  s_memrealtime s[{84+2*i}:{85+2*i}]"]
def stamp_out():
    if not DIAG: return []
    if OPT.get("echo") is not None:
        i = OPT["echo"]
        return L(f"""
        s_waitcnt vmcnt(0)
        s_memrealtime s[100:101]
        s_waitcnt lgkmcnt(0)
        s_sub_u32 s28, s{84+2*i}, s84
        s_cmp_gt_u32 s28, 4000
        s_cselect_b32 s28, 0, s28
        s_add_u32 s28, s28, 5000
        k_echo:
        s_memrealtime s[30:31]
        s_waitcnt lgkmcnt(0)
        s_sub_u32 s29, s30, s84
        s_cmp_lt_u32 s29, s28
        s_cbranch_scc1 k_echo
        """)
    r = L(f"""
    s_waitcnt vmcnt(0)
    s_memrealtime s[100:101]
    s_waitcnt lgkmcnt(0)
    s_lshl_b32 s28, s2, 2
    s_add_u32 s28, s28, s20
    s_lshl_b32 s28, s28, 6
    s_add_u32 s28, s28, {TS}
    v_mov_b32 v1, s28
    """)
    for i in range(9): r += [f"  v_mov_b32 v3, s{84+2*i}", f"  global_store_dword v1, v3, s[26:27] offset:{4*i if i < 8 else 48}"]
    r += ["  v_mov_b32 v3, s22", "  global_store_dword v1, v3, s[26:27] offset:60"]
    r += ["  s_getreg_b32 s28, hwreg(HW_REG_XCC_ID)", "  s_and_b32 s28, s28, 15", "  v_mov_b32 v3, s28", "  global_store_dword v1, v3, s[26:27] offset:56"]
    return r
def vr(b, n=4): return f"v[{b}:{b+n-1}]" if n > 1 else f"v{b}"
def ar(b, n=4): return f"a[{b}:{b+n-1}]" if n > 1 else f"a{b}"
def srd(d, lo, nbytes):
    return L(f"s_mov_b32 s{d}, s{lo}\ns_and_b32 s{d+1}, s{lo+1}, 0xffff\ns_mov_b32 s{d+2}, {nbytes}\ns_mov_b32 s{d+3}, 0x20000")
def isvm(x): return x.strip().startswith(("buffer_", "global_"))
def islg(x): return x.strip().startswith("ds_")
def tag(lines, t): return [x + f" ;#{t}" if (isvm(x) or islg(x)) else x for x in lines]
def W(vm=(), lg=()):
    vm = [vm] if isinstance(vm, str) else list(vm); lg = [lg] if isinstance(lg, str) else list(lg)
    return [f"  ;WAIT vm={','.join(vm)} lg={','.join(lg)}"]
def resolve(lines):
    out = []; vm = []; lg = []
    for x in lines:
        t = x.strip()
        if t.startswith(";MARK"):
            nm = t.split()[1]; vm.append(("m", nm)); lg.append(("m", nm)); continue
        if t.startswith(";WAIT"):
            m = re.match(r";WAIT vm=(\S*) lg=(\S*)", t); parts = []
            for names, hist, cn, mx in ((m.group(1), vm, "vmcnt", 63), (m.group(2), lg, "lgkmcnt", 15)):
                if not names: continue
                names = names.split(",")
                if names == ["*"]: parts.append(f"{cn}(0)"); continue
                idx = [i for i, h in enumerate(hist) if h[1] in names]
                for nme in names: assert any(h[1] == nme for h in hist), ("unknown tag", nme)
                n = sum(1 for h in hist[max(idx)+1:] if h[0] == "o")
                parts.append(f"{cn}({min(n, mx)})")
            out.append("  s_waitcnt " + " ".join(parts)); continue
        tg = re.search(r";#(\S+)", t); nm = tg.group(1) if tg else None
        kind = "n" if ";nocount" in t else "o"
        if isvm(x): vm.append((kind, nm))
        elif islg(x): lg.append((kind, nm))
        out.append(x)
    return out
def glue(lines):
    out = []; cur = []
    for x in lines:
        t = x.strip()
        if cur and not t.startswith(("s_cselect", "s_addc", "s_cbranch", "s_mov_b32")) and not t.endswith(":"):
            out.append(cur); cur = []
        if t.startswith(("s_cmp", "s_bitcmp")) or cur or (t.startswith("s_add_u32") and ";C" in t): cur.append(x)
        else: out.append([x])
    if cur: out.append(cur)
    return out
def place(M, lists):
    gaps = [[] for _ in M]
    for items, g0, g1 in lists:
        if not items: continue
        items = glue(items); n = g1 - g0 + 1
        for k, x in enumerate(items): gaps[g0 + k*n//len(items)] += x
    out = []
    for m, g in zip(M, gaps): out += [m] + g
    return out
def inter(main, groups, first=0):
    main = glue(main); out = []; n = len(main); G = len(groups); gi = 0
    for i, x in enumerate(main):
        while gi < G and i >= first + gi*(n - first)//G: out += groups[gi]; gi += 1
        out += x
    while gi < G: out += groups[gi]; gi += 1
    return out
def grp(lines, k):
    out = []; cur = []
    for x in lines:
        if isvm(x) and sum(map(isvm, cur)) == k:
            tail = []
            while cur and not isvm(cur[-1]): tail.insert(0, cur.pop())
            out.append(cur); cur = tail
        cur.append(x)
    if cur: out.append(cur)
    return out
OUTL = A()
def check(tg, vaddr, vdst, lead=False):
    if lead: a = L(f"v_cmp_ne_u32 vcc, s39, v{vdst}\ns_nop 1\ns_and_b64 vcc, vcc, s[56:57]\ns_cbranch_scc1 {tg}_slow\n{tg}_ok:\ns_barrier")
    else: a = L(f"v_cmp_ne_u32 vcc, s39, v{vdst}\ns_nop 1\ns_cmp_lg_u64 vcc, 0\ns_cbranch_scc1 {tg}_slow\n{tg}_ok:")
    OUTL(f"""
    {tg}_slow:
    s_mov_b32 s38, {OPT['spin']}
    {tg}_again:
    s_sleep {OPT.get('sleep', 4)}
    buffer_load_dword v{vdst}, v{vaddr}, s[16:19], 0 offen sc1
    s_sub_u32 s38, s38, 1
    s_cmp_eq_u32 s38, 0
    s_cbranch_scc1 {tg}_ok
    s_waitcnt vmcnt(0)
    v_cmp_ne_u32 vcc, s39, v{vdst}
    s_nop 1
    s_cmp_lg_u64 vcc, 0
    s_cbranch_scc1 {tg}_again
    s_branch {tg}_ok
    """)
    return a
def poll(vaddr, vdst, t, so="0"): return [f"  buffer_load_dword v{vdst}, v{vaddr}, s[16:19], {so} offen sc1 ;#{t}"]
def flag(soff, r=None):
    d, o = (3, 6) if r is None else (r, r + 1)
    return L(f"v_mov_b32 v{d}, s39\nv_lshlrev_b32 v{o}, 25, v7\nbuffer_store_dword v{d}, v{o}, s[16:19], {soff} offen sc1")

ACC = 8; CS = 128; AB = [148, 172]; BB = [196, 216]; VX = 236; VW = 242; LA = 247; LB = 249; VF = 255
L2B = CS
ONES = 240
def acc(T, t): return ACC + (T*5 + t)*4
def g1_mfma(buf, tr, first):
    M = []
    for T in range(6):
        for t in (range(5) if T % 2 == 0 else range(4, -1, -1)):
            x = vr(AB[buf] + 4*T); w = vr(BB[buf] + 4*t); d = vr(acc(T, t))
            p, q = (w, x) if tr else (x, w)
            M.append(f"  v_mfma_f32_16x16x32_bf16 {d}, {p}, {q}, {'0' if first else d}")
    return M
def g1_cs(buf):
    return [f"  v_mfma_f32_16x16x32_bf16 {vr(CS+4*t)}, {ar(ONES)}, {vr(BB[buf]+4*t)}, {'0' if buf == 0 else vr(CS+4*t)}" for t in range(5)]
def g1_reads(k):
    buf = k & 1; st = (k//2) % 3
    la, lb, so = (LA, LB, st*STAGE) if st < 2 else (L2B, L2B + 2, 0)
    R = []
    def b(t):
        u2, h2 = (64, 1280) if OPT["wrow"] else (1024, 256)
        base = lb + (2 if t == 4 else (t & 1)); off = so + buf*10240 + (u2 if t in (2, 3) else 0)
        return [f"  ds_read_b64_tr_b16 {vr(BB[buf]+4*t,2)}, v{base} offset:{off}",
                f"  ds_read_b64_tr_b16 {vr(BB[buf]+4*t+2,2)}, v{base} offset:{off+h2}"]
    def x(T): return [f"  ds_read_b128 {vr(AB[buf]+4*T)}, v{la+buf} offset:{so+T*2048}"]
    R += x(0)
    for t in range(5): R += b(t)
    for T in range(1, 6): R += x(T)
    return tag(R, f"r{k}")
def dma_x(c):
    so = (c % 3)*STAGE; Dm = []
    for j in range(6):
        if j in (0, 4): Dm.append(f"  s_add_u32 m0, s40, {so + 1024*j}")
        Dm.append(f"  buffer_load_dwordx4 v{VX+j}, s[8:11], s42 offen offset:{1024*(j%4)} lds")
    return tag(Dm, f"c{c}")
def dma_w(c):
    so = (c % 3)*STAGE; Dm = []
    for j in range(5):
        if OPT["wrow"]:
            if j in (0, 4): Dm.append(f"  s_add_u32 m0, s41, {so + 1024*j}")
            Dm.append(f"  buffer_load_dwordx4 v{VW+j}, s[12:15], s43 offen offset:{1024*(j%4)}{' nt' if (c == 0 and OPT.get('wnt')) else ''} lds")
            continue
        Dm.append(f"  s_add_u32 m0, s41, {so + 1024*j}")
        Dm.append(f"  buffer_load_dwordx4 v{VW+j}, s[12:15], s43 offen lds")
    return tag(Dm, f"c{c}")
def dma_next(c):
    if OPT.get("lock") == 2:
        return L(f"s_cmp_eq_u32 s54, 0\ns_cselect_b32 s44, {c}, {(c + 5) % 10}\ns_lshl_b32 s42, s44, 7\ns_mul_i32 s43, s44, s45")
    if OPT["krot"]:
        first = "s_mov_b32 s44, s67" if c == 1 else "s_add_u32 s44, s44, 1\ns_cmp_eq_u32 s44, 10\ns_cselect_b32 s44, 0, s44"
        return L(first + f"""
        s_cmp_eq_u32 s44, s54
        s_addc_u32 s44, s44, 0
        s_cmp_eq_u32 s44, 10
        s_cselect_b32 s44, 0, s44
        s_lshl_b32 s42, s44, 7
        s_mul_i32 s43, s44, s45""")
    return L(f"s_cmp_le_u32 s54, {c-1}\ns_cselect_b32 s44, {c}, {c-1}\ns_lshl_b32 s42, s44, 7\ns_mul_i32 s43, s44, s45")
def breg(s, t): return ar(s*20 + 4*t)
def bstream(i0, n):
    out = []
    for i in range(i0, i0 + n):
        s, t = divmod(i, 5)
        if t == 0 or i == i0:
            out.append(f"  s_add_u32 s68, s46, {8*16384*s}")
            if s == 6: out += L(f"s_cmp_lt_u32 s20, 3\ns_cselect_b32 s68, s68, {OOB}")
        if t < 4: out.append(f"  buffer_load_dwordx4 {breg(s,t)}, v4, s[16:19], s68 offen offset:{1024*t} sc1 ;#B{s}")
        else: out.append(f"  buffer_load_dwordx4 {breg(s,t)}, v5, s[16:19], s68 offen sc1 ;#B{s}")
    return out
class Stream:
    def __init__(self, items): self.items = list(items)
    def take(self, n):
        it, self.items = self.items[:n], self.items[n:]
        assert len(it) == n
        out = []; k = 0
        while k < len(it):
            j = k
            while j + 1 < len(it) and it[j+1] == (it[j][0], it[j][1] + 1): j += 1
            out += (bstream if it[k][0] == "B" else wo_dma)(it[k][1], j - k + 1); k = j + 1
        return out
def wo_dma(i0, n):
    out = []
    for i in range(i0, i0 + n):
        j, t = divmod(i, 5)
        if t in (0, 4) or i == i0: out += [f"  s_add_u32 m0, s69, {20480*j + (4096 if t == 4 else 0)}", f"  s_add_u32 s71, s70, {65536*j}"]
        out.append(f"  buffer_load_dwordx4 v{4 if t < 4 else 5}, s[16:19], s71 offen offset:{1024*(t%4)} sc1 lds ;#wo{j}")
    return out
PRODS = [(0,3),(0,4),(1,3),(1,4),(1,5),(2,3),(2,4),(2,5)]
KVOF = [240, 241, 242, 243, 244, 245, 246, 255]

def setup_s():
    return L(f"""
    s_cmp_lt_u32 s22, 12
    s_cselect_b32 s83, {LOG2E}, {LOG2E | 0x80000000}
    s_mul_i32 s76, s21, 3
    s_add_u32 s76, s76, s51
    s_add_u32 s77, s76, 1
    """) + blk(80, 76, "h", 28, 29) + blk(81, 77, "h", 28, 29) + blk(78, 76, "q", 28, 29) + blk(79, 77, "q", 28, 29) + L(f"""
    s_cmp_lt_u32 s22, 12
    s_cselect_b32 s80, s78, s80
    s_cselect_b32 s81, s79, s81
    s_cmp_ge_u32 s76, 32
    s_cselect_b32 s80, {OOB}, s80
    s_cmp_ge_u32 s77, 32
    s_cselect_b32 s81, {OOB}, s81
    s_lshl_b32 s28, s51, 11
    s_add_u32 s82, s81, s28              ; row tile 4
    s_add_u32 s29, s80, 2048
    s_add_u32 s80, s80, s28              ; row tile 0
    s_cmp_eq_u32 s51, 0
    s_cselect_b32 s81, s29, s81          ; row tile 2
    s_mul_i32 s61, s23, 5
    s_mul_i32 s28, s52, 3
    s_add_u32 s62, s61, s28
    s_add_u32 s63, s62, 1
    s_add_u32 s61, s61, 2
    s_lshl_b32 s28, s23, 1
    s_add_u32 s28, s28, s52
    s_add_u32 s29, s28, 22
    s_add_u32 s30, s23, 43
    s_cmp_lt_u32 s22, 12
    s_cselect_b32 s62, s62, s28
    s_cselect_b32 s63, s63, s29
    s_cselect_b32 s61, s61, s30
    s_cselect_b32 s75, {OOB}, {FPD}
    s_cmp_eq_u32 s63, 43
    s_cselect_b32 s63, {OOB >> 13}, s63
    """) + cell(62, 62, 28) + cell(63, 63, 28) + cell(61, 61, 28) + L(f"""
    s_lshl_b32 s28, s52, 9
    s_add_u32 s61, s61, s28
    s_add_u32 s75, s75, s67
    """)
def setup_t():
    return L(f"""
    v_add_u32 v{VX}, s62, v4
    v_add_u32 v{VX+1}, s63, v4
    v_and_b32 v3, 1, v2
    v_lshlrev_b32 v3, 10, v3
    v_lshrrev_b32 v254, 1, v2
    v_lshl_add_u32 v3, v254, 8, v3
    v_lshl_add_u32 v3, v1, 4, v3
    v_add_u32 v{VX+2}, s61, v3
    v_mov_b32 v{VX+4}, 0x358637bd
    v_mov_b32 v{VX+5}, 0x358637bd
    """)
def setup_n0():
    a = A()
    a(f"""
    v_and_b32 v1, 15, v7
    v_lshrrev_b32 v2, 4, v7
    v_cmp_gt_u32 s[32:33], 8, v1
    s_cmp_eq_u32 s21, 10
    s_cselect_b32 s36, s51, 0
    s_lshl_b32 s37, s22, 1
    s_add_u32 s37, s37, s52
    s_lshl_b32 s37, s37, 12
    s_add_u32 s37, s37, {KVP}
    s_lshl_b32 s60, s20, 12
    s_add_u32 s60, s60, {KVX}
    v_and_b32 v254, 31, v7
    v_add_u32 v254, 224, v254
    """)
    for n, (kx, vy) in enumerate(PRODS):
        eoff = {3: -8, 4: 8, 5: 24}[vy]; o = 252
        a(f"""
        v_add_u32 v3, {4*kx}, v2
        v_cmp_le_u32 vcc, 5, v3
        v_add_u32 v{o}, {eoff}, v1
        v_cmp_gt_u32 s[62:63], 10, v3
        v_cndmask_b32 v253, 0, 20, vcc
        v_sub_u32 v{o}, v{o}, v253
        """)
        if vy == 3: a(f"v_cmp_eq_u32 vcc, 0, v1\nv_cndmask_b32 v253, v{o}, 0, vcc\nv_cndmask_b32 v{o}, v{o}, 20, vcc\nv_cmp_gt_u32 vcc, 20, v253")
        else: a(f"v_cmp_gt_u32 vcc, 20, v{o}")
        a(f"""
        v_mad_u32_u24 v{o}, v3, 21, v{o}
        s_and_b64 vcc, vcc, s[62:63]
        v_cndmask_b32 v{o}, v254, v{o}, vcc
        v_lshl_add_u32 v{o}, v{o}, 4, s60
        v_accvgpr_write_b32 a{244+n}, v{o}
        """)
    return list(a)
def setup_n():
    return L(f"s_mov_b32 s30, {LOG2E}\ns_mov_b32 s31, {LOG2E}") + [f"  v_accvgpr_read_b32 v{KVOF[n]}, a{244+n}" for n in range(8)]

def g1_main(tg, tr, st):
    a = A()
    pf = OPT["pf_t"] if tr else OPT["pf_n"]
    a += W("c0"); a("s_barrier"); a += stamp("k0")
    a += g1_reads(0) + W(lg="r0")
    mv = OPT["keep"]
    d0 = [] if mv >= 1 else ((d_pack_src() if tr else []) + d_cs())
    a += place(g1_mfma(0, tr, True) + g1_cs(0), [(g1_reads(1), 0, 17), (dma_x(2) + dma_w(2), 0, 33), (d0, 4, 34)])
    def spread(items, ks):
        g = glue(items); return {k: sum(g[i*len(g)//len(ks):(i+1)*len(g)//len(ks)], []) for i, k in enumerate(ks)}
    if tr:
        dfr = spread((d_misc() if OPT["mv3"] < 1 else []) + (setup_s() if OPT["mv3"] < 2 else []), [4, 5, 6, 7, 8, 9, 10, 11, 12] if OPT["mv3"] < 1 else [6, 7, 8, 9, 10, 11, 12])
        if mv < 2: dfr[2] = d_pack_dst()
    else: dfr = spread((d_touch() if OPT["touch"] == 1 else []) + (d_misc() if OPT["mv3"] < 1 else []), [2, 3, 4] if OPT["mv3"] < 1 else [2])
    a += W(lg="r1")
    a += g1_cs(1)
    PKD, PKR, PKS = (OPT["pkd"], OPT["pkr"], OPT["pks"]) if tr else (None, None, {})
    pk_d = []
    for i in range(5):
        pk_d += [f"  s_add_u32 m0, s53, {896*i}", f"  buffer_load_dwordx4 v252, s[56:59], s55 offen offset:{128*i} {'nt ' if OPT.get('pknt', 1) else ''}lds ;#pk"]
    pk_r = []
    for t in range(5):
        if t: pk_r += L(f"s_cmp_eq_u32 s20, {4-t}\ns_cselect_b32 s28, 896, 0\nv_add_u32 v1, s28, v1\nv_add_u32 v2, s28, v2")
        pk_r += [f"  ds_read_b64_tr_b16 {ar(16+4*t,2)}, v1 offset:{32*t}", f"  ds_read_b64_tr_b16 {ar(18+4*t,2)}, v2 offset:{32*t}"]
    pk_s = [f"  buffer_store_dwordx4 {ar(16+4*t)}, v{4 if t < 4 else 5}, s[16:19], s{60 if c == 0 else 53} offen offset:{1024*(t%4)} sc1 ;#ps" for t in range(5) for c in range(2 if OPT["mode"] == "dup" else 1)]
    pk_r.append("  s_add_u32 s53, s60, 8192")
    cs_st = L(f"""
    v_cmp_le_u32 vcc, 16, v7
    v_cmp_le_u32 s[28:29], 32, v7
    v_cmp_le_u32 s[30:31], 48, v7
    v_cndmask_b32 v{CS+17}, v{CS}, v{CS+4}, vcc
    v_cndmask_b32 v{CS+17}, v{CS+17}, v{CS+8}, s[28:29]
    v_cndmask_b32 v{CS+17}, v{CS+17}, v{CS+12}, s[30:31]
    buffer_store_dword v{CS+17}, v253, s[16:19], s64 offen sc1 ;#cs
    buffer_store_dword v{CS+16}, v254, s[16:19], s64 offen sc1 ;#cs
    """) + [f"  v_add_u32 v{L2B+i}, {2*STAGE}, v{LA+i}" for i in range(5)]
    auxa = L(f"""
    v_lshlrev_b32 v3, 4, v0
    v_add_u32 v252, s74, v3
    v_add_u32 v253, 4096, v252
    v_cmp_le_u32 vcc, 144, v0
    v_add_u32 v3, s65, v3
    v_cmp_le_u32 s[28:29], s66, v0
    v_cndmask_b32 v253, v253, v3, vcc
    v_add_u32 v3, {RSTD - NEGM - 768}, v3
    v_cmp_le_u32 vcc, 240, v0
    v_cndmask_b32 v253, v253, v3, s[28:29]
    v_mov_b32 v3, {OOB}
    v_cndmask_b32 v253, v253, v3, vcc
    v_and_b32 v1, 15, v7
    v_lshrrev_b32 v2, 4, v7
    """)
    polx = [f"  s_xor_b32 s{r}, s{r}, s3" for r in ((46, 70, 80, 81, 82) if OPT["mode"] == "dup" else (80, 81, 82))]
    aux = L(f"""
    s_mov_b32 m0, s72
    s_nop 0
    buffer_load_dwordx4 v252, s[16:19], 0 offen sc1 lds ;#aux
    s_add_u32 m0, s72, 4096
    s_nop 0
    buffer_load_dwordx4 v253, s[16:19], 0 offen sc1 lds ;#aux
    """) + flag("s73")
    y1 = L(f"v_lshlrev_b32 v252, 2, v0\nv_add_u32 v252, {AUXC}, v252") + tag([f"  ds_read_b32 v{CS+i}, v252 offset:{640*i}" for i in range(10)], "y1")
    y2 = [f"  v_add_f32 v{CS}, v{CS}, v{CS+i}" for i in range(1, 10)] + [f"  ds_write_b32 v252, v{CS} offset:{CSL-AUXC} ;#y2"]
    rd = L("s_mul_i32 s28, s51, 384\ns_add_u32 s28, s28, %d" % AUXM)
    if tr:
        rd += L(f"v_lshlrev_b32 v6, 4, v2\nv_add_u32 v252, s34, v6\nv_add_u32 v253, s35, v6\nv_lshl_add_u32 v3, v1, 2, s28")
        rd += [f"  ds_read_b128 {vr(CS+4*t)}, v252 offset:{64*t}" for t in range(4)] + [f"  ds_read_b128 {vr(CS+16)}, v253"]
        for T in range(6): rd += [f"  ds_read_b32 v{AB[0]+4*T}, v3 offset:{64*T}", f"  ds_read_b32 v{AB[0]+4*T+1}, v3 offset:{768+64*T}"]
    else:
        rd += L(f"v_lshlrev_b32 v6, 2, v1\nv_add_u32 v252, s34, v6\nv_lshl_add_u32 v3, v2, 4, s28")
        rd += [f"  ds_read_b32 v{CS+4*t}, v252 offset:{64*t}" for t in range(5)]
        for T in range(6): rd += [f"  ds_read_b128 {vr(AB[0]+4*T)}, v3 offset:{64*T}"]
        for T in range(5): rd += [f"  ds_read_b128 {vr(BB[0]+4*T)}, v3 offset:{768+64*T}"]
        rd += [f"  ds_read_b128 {vr(VX)}, v3 offset:{768+64*5}"]
    su = setup_t() if tr else setup_n()
    e0 = glue(setup_n0()); early = {} if tr else {6 + i: sum(e0[i*len(e0)//6:(i+1)*len(e0)//6], []) for i in range(6)}
    nb = 0; fb, pb = (OPT["flagb"] if tr else OPT["flagb_n"]), OPT["pollb"]; nps = 0
    for k in range(1, 20):
        c = (k - 1)//2
        M = g1_mfma(k & 1, tr, False)
        ls = []
        if k & 1:
            if c == pb and tr: a("k_t_join:")
            if k > 1: a += W(lg=[f"r{k}"] + (["y2"] if k == 19 else []) + (["pr"] if k - 1 == PKR else []))
            a.append(M.pop(0))
            vm = [f"c{c+1}"] if c < 9 else []
            if c == fb: vm += ["cs", "ss"] + (["ps"] if tr else [])
            if k == PKR: vm += ["pk"]
            if c == pb + 1: vm += ["pa"]
            if c == 8: vm += ["aux"]
            if vm: a += W(vm)
            if c == pb + 1: a += check(tg + "_sa", 6, VF)
            a("s_barrier")
            if c == 0: a += stamp("b0")
            if c == 7: a += stamp("tail")
            a += stamp(f"b{c}") if c > 0 else []
            if c == fb: ls.append((flag("s49"), 0, 2))
            if c == pb: ls.append((L(f"v_lshlrev_b32 v6, {OPT['fash']}, v0\nv_add_u32 v6, {FA}, v6") + poll(6, VF, "pa"), 0, 2))
            if OPT["pol"] != "race":
                if c == pb + 1: ls.append((polx, 0, 2))
            else:
                assert OPT["mode"] == "rows"
                if c == 7: ls.append((L(f"v_mov_b32 v{CS+18}, {PW}\nbuffer_load_dword v{CS+19}, v{CS+18}, s[16:19], 0 offen sc1 ;#aux"), 0, 1))
                if c == 8:
                    ls.append((L(f"v_readfirstlane_b32 s3, v{CS+19}\ns_xor_b32 s3, s3, s39"), 19, 20))
                    ls.append((L(f"s_and_b32 s38, s3, {~8192 & 0xffffffff}\ns_cbranch_scc1 {tg}_pw\n{tg}_pwr:"), 21, 21))
                    ls.append((polx, 22, 28))
                    OUTL(f"""
                    {tg}_pw:
                    s_mov_b32 s40, {OPT['spin']}
                    {tg}_pw1:
                    s_sleep 4
                    buffer_load_dword v{CS+19}, v{CS+18}, s[16:19], 0 offen sc1
                    s_waitcnt vmcnt(0)
                    v_readfirstlane_b32 s3, v{CS+19}
                    s_sub_u32 s40, s40, 1
                    s_xor_b32 s3, s3, s39
                    s_and_b32 s38, s3, {~8192 & 0xffffffff}
                    s_cselect_b32 s38, s40, 0
                    s_and_b32 s3, s3, 8192
                    s_cmp_lg_u32 s38, 0
                    s_cbranch_scc1 {tg}_pw1
                    s_branch {tg}_pwr
                    """)
            if c == 7: ls.append(([x for x in aux], 0, 2))
            dx, dw = (dma_next(c+3) + dma_x(c+3), dma_w(c+3)) if c + 3 <= 9 else ([], [])
            if k == PKD: ls += [(pk_d, 0, 9), (dx[:-4], 14, 28)]
            else: ls.append((dx, 1, 27))
            if k == PKR: ls.append((tag(pk_r, "pr"), 10, 26))
            if c == 0: ls.append((cs_st, 12, 27))
            if c == 8: ls.append((y1, 8, 22))
        else:
            a += W(lg=[f"r{k}"] + (["y1"] if c == 8 else []) + (["pr"] if k - 1 == PKR else []))
            if k - 1 == PKD: ls.append((dx[-4:] + dw, 0, 28))
            else: ls.append((dw, 1, 27))
            if c == 6: ls.append((auxa, 17, 28))
            if c == 8: ls.append((y2, 0, 12))
        if PKS.get(k): ls.append((pk_s[nps:nps+PKS[k]], 2, 28 if nps + PKS[k] < len(pk_s) else 18)); nps += PKS[k]
        if k < 19: ls.insert(0, (g1_reads(k+1), 1 if k & 1 else 0, 17))
        else: ls.insert(0, (rd, 0, 22))
        if k == 16: ls.append((su, 18, 28))
        if k in early: ls.append((early[k], 4, 28))
        if k in dfr: ls.append((dfr[k], 0 if k == 2 else 6, 28))
        if k == OPT["cpf2"]:
            ls.append((L(f"v_add_u32 v{CS+8}, s50, v4\nv_min_u32 v{CS+8}, CODE_MAX, v{CS+8}\ns_cmp_gt_u32 s50, CODE_MAX\ns_cbranch_scc1 {tg}_c2\nglobal_load_dwordx4 {vr(CS+12)}, v{CS+8}, s[0:1] ;nocount\n{tg}_c2:"), 29 - (k & 1), 29 - (k & 1)))
        if pf.get(k):
            assert c > pb
            assert all(x[0] == "B" for x in st.items[:pf[k]])
            ls.append((st.take(pf[k]), 3, 28))
        a += place(M, ls)
    a += stamp("lend")
    return a

def stats_math():
    a = A(); src = 8; tmp = 20; ac = 44
    for i in range(12):
        a(f"v_lshlrev_b32 v{tmp+2*i}, 16, v{src+i}\nv_and_b32 v{tmp+2*i+1}, 0xffff0000, v{src+i}")
    a(f"v_pk_add_f32 {vr(ac,2)}, {vr(tmp,2)}, {vr(tmp+2,2)}")
    for i in range(2, 12): a(f"v_pk_add_f32 {vr(ac,2)}, {vr(ac,2)}, {vr(tmp+2*i,2)}")
    def red():
        a(f"v_add_f32 v{ac}, v{ac}, v{ac+1}")
        for r in (8, 4, 2, 1): a(f"v_add_f32_dpp v{ac}, v{ac}, v{ac} row_ror:{r} row_mask:0xf bank_mask:0xf")
        a(f"v_mov_b32 v{ac+1}, v{ac}\nv_permlane16_swap_b32 v{ac}, v{ac+1}\nv_add_f32 v{ac}, v{ac}, v{ac+1}")
    red()
    a(f"v_mul_f32 v46, 0xbacccccd, v{ac}")
    a(f"v_cndmask_b32 v47, 0, v46, s[32:33]")
    for i in range(8): a(f"v_pk_add_f32 {vr(tmp+2*i,2)}, {vr(tmp+2*i,2)}, v[46:47] op_sel_hi:[1,0]")
    for i in range(8, 12): a(f"v_pk_add_f32 {vr(tmp+2*i,2)}, {vr(tmp+2*i,2)}, v[46:47] op_sel:[0,1] op_sel_hi:[1,1]")
    a(f"v_pk_mul_f32 {vr(ac,2)}, {vr(tmp,2)}, {vr(tmp,2)}")
    for i in range(1, 12): a(f"v_pk_fma_f32 {vr(ac,2)}, {vr(tmp+2*i,2)}, {vr(tmp+2*i,2)}, {vr(ac,2)}")
    red()
    a(f"""
    v_mov_b32 v{ac+1}, 0x3727c5ac
    v_fmac_f32 v{ac+1}, 0x3acccccd, v{ac}
    v_rsq_f32 v{ac+1}, v{ac+1}
    v_and_b32 v48, 31, v7
    v_cmp_eq_u32 vcc, 0, v48
    v_lshrrev_b32 v49, 5, v7
    v_lshlrev_b32 v49, 2, v49
    v_cndmask_b32 v46, v{ac+1}, v46, vcc
    v_lshl_add_u32 v49, v48, 13, v49
    v_cmp_gt_u32 vcc, 2, v48
    v_mov_b32 v50, {OOB}
    s_lshl_b32 s28, s48, 3
    s_add_u32 s28, s28, {NEGM}
    v_cndmask_b32 v49, v50, v49, vcc
    buffer_store_dword v46, v49, s[16:19], s28 offen sc1 ;#ss
    """)
    return list(a)

def prologue():
    a = A()
    a += stamp("entry")
    a(f"""
    s_load_dwordx16 s[60:75], s[0:1], 0
    s_load_dwordx2 s[26:27], s[0:1], 64
    s_cmp_ge_u32 s2, 256
    s_cbranch_scc1 k_end
    """)
    if OPT.get("cpf0"):
        a(f"""
        s_getpc_b64 s[36:37]
        s_cmp_ge_u32 s2, {8*OPT["cpf0"]}
        s_cbranch_scc1 k_nocp0
        s_lshr_b32 s3, s2, 3
        s_lshl_b32 s3, s3, 12
        v_lshl_add_u32 v1, v0, 4, s3
        global_load_dwordx4 v[132:135], v1, s[36:37] offset:0 ;nocount
        k_nocp0:
        """)
    a(f"""
    s_and_b32 s3, s2, 7
    s_lshl_b32 s3, s3, 5
    s_lshr_b32 s21, s2, 3
    s_add_u32 s3, s3, s21                ; lin
    s_mul_i32 s35, {"s3" if OPT["slin"] else "s2"}, 10240
    v_lshrrev_b32 v1, 5, v0
    v_mul_u32_u24 v1, {1280-512}, v1
    v_lshl_add_u32 v52, v0, 4, v1
    v_and_b32 v1, 16, v0
    v_lshl_add_u32 v53, v1, 26, v52      ; lanes whose third piece is past the row: out of range
    s_mov_b32 s10, {S*D*2}
    s_mov_b32 s11, 0x20000
    """)
    ld = L("s_waitcnt lgkmcnt(0)\ns_mov_b32 s8, s60\ns_and_b32 s9, s61, 0xffff") + stamp("karg")
    for j in range(3): ld.append(f"  buffer_load_dwordx4 {vr(8+4*j)}, v{53 if j == 2 else 52}, s[8:11], s35 offen offset:{512*j} ;#sl")
    if OPT["head"] == 0: a += ld
    a(f"""
    s_getpc_b64 s[36:37]
    v_cmp_eq_u32 s[32:33], 0, v1
    v_lshrrev_b32 v1, 6, v0
    v_and_b32 v7, 63, v0                 ; lane
    v_readfirstlane_b32 s20, v1          ; wave
    s_lshr_b32 s23, s3, 5
    s_min_u32 s23, s23, 2
    s_sub_u32 s23, s3, s23
    s_cmp_lt_u32 s3, 118
    s_cselect_b32 s28, 1, 116
    s_cselect_b32 s29, 13108, 10923
    s_cselect_b32 s30, 5, 6
    s_cselect_b32 s31, 0, 5
    s_sub_u32 s28, s23, s28
    s_mul_i32 s22, s28, s29
    s_lshr_b32 s22, s22, 16
    s_mul_i32 s30, s22, s30
    s_sub_u32 s21, s28, s30
    s_add_u32 s21, s21, s31              ; rb
    s_cmp_lt_u32 s2, 3
    s_cselect_b32 s21, 11, s21
    s_min_u32 s54, s21, 9                ; start chunk
    """)
    if OPT.get("lock") == 1: a("s_mov_b32 s54, 0")
    if OPT.get("lock") == 2: a("s_cmp_lt_u32 s21, 6\ns_cselect_b32 s54, 0, 5")
    if OPT.get("lock") == 3: a("s_lshr_b32 s54, s54, 1\ns_lshl_b32 s54, s54, 1")
    a(f"""
    """)
    xa = A()
    xa(f"""
    s_lshl_b32 s28, s21, 2
    s_add_u32 s28, s28, s20
    s_mul_i32 s28, s28, {48*1280}
    v_lshrrev_b32 v1, 3, v7              ; r8
    v_lshrrev_b32 v2, 1, v1
    v_and_b32 v3, 7, v7
    v_xor_b32 v2, v2, v3
    v_mul_u32_u24 v1, 1280, v1
    v_lshl_add_u32 v252, v3, 4, v1
    v_add_u32 v1, s28, v1
    v_lshl_add_u32 v{VX}, v2, 4, v1
    v_xor_b32 v2, 4, v2
    v_lshl_add_u32 v6, v2, 4, v1
    """)
    for j in range(1, 6): xa(f"v_add_u32 v{VX+j}, {j*10240 - 1024*(j%4)}, v{6 if j & 1 else VX}")
    xa("s_mul_i32 s40, s20, 6144\ns_lshl_b32 s42, s54, 7")
    wa = A()
    wa(f"""
    s_sub_u32 s28, 22, s22
    s_cmp_lt_u32 s3, 118
    s_cselect_b32 s22, s22, s28
    s_mul_i32 s28, s22, 43
    s_lshr_b32 s28, s28, 8               ; g = p/6
    s_mul_i32 s29, s28, 6
    s_sub_u32 s29, s22, s29              ; r
    s_mul_i32 s30, s28, 3
    s_add_u32 s30, s30, s29
    s_add_u32 s30, s30, 9                ; w1: 12+3g+r-3
    s_lshl_b32 s31, s28, 1
    s_add_u32 s31, s31, s29
    s_sub_u32 s31, s31, 1                ; kv: 2g+r-1
    s_add_u32 s28, s28, 8                ; q
    s_cmp_lt_u32 s29, 3
    s_cselect_b32 s22, s31, s30
    s_cmp_eq_u32 s29, 0
    s_cselect_b32 s22, s28, s22
    s_cmp_lt_u32 s2, 3
    s_cselect_b32 s22, 12, s22
    s_cmp_lt_u32 s22, 12
    s_cselect_b32 s12, s62, s68
    s_cselect_b32 s13, s63, s69
    s_cselect_b32 s14, {D*3*D*2}, {D*F*2}
    s_cselect_b32 s50, 3840, 3456        ; W row stride
    s_cselect_b32 s28, 8, 12
    s_and_b32 s13, s13, 0xffff
    s_mov_b32 s15, 0x20000
    s_lshl_b32 s45, s50, 6
    s_sub_u32 s23, s22, s28
    s_mul_i32 s29, s23, 320
    s_mul_i32 s30, s22, 160
    s_add_u32 s30, s30, 1280
    s_cmp_lt_u32 s22, 8
    s_cselect_b32 s29, s30, s29
    s_cselect_b32 s30, 1200, 0
    s_cselect_b32 s31, -80, 0
    s_lshl_b32 s28, s20, 4
    s_mul_i32 s28, s28, s50
    s_add_u32 s29, s29, s28
    s_mul_i32 s41, s20, 5120
    s_add_u32 s41, s41, {WOFF}
    s_mul_i32 s43, s54, s45
    s_movk_i32 s28, -20
    v_xor_b32 v54, 2, v7                 ; rows 8..15 swap adjacent 32-byte units
    v_lshrrev_b32 v55, 4, v7
    v_and_b32 v55, 2, v55
    v_xor_b32 v55, v55, v7
    """)
    dw = grp(dma_w(0), 1); wj = []
    for jj in range(5):
        src = 7 if jj < 2 else 55 if jj == 2 else 54
        b = A()
        if jj: b(f"v_add_u32 v1, {64*jj}, v{src}")
        q = 1 if jj else 7
        b(f"""
        v_mul_u32_u24 v2, 3277, v{q}
        v_lshrrev_b32 v2, 16, v2
        v_mad_i32_i24 v3, v2, s28, v{q}
        v_mul_u32_u24 v2, s50, v2
        v_lshl_add_u32 v2, v3, 4, v2
        v_mul_u32_u24 v3, 205, v3
        v_bfe_u32 v1, v3, 10, 1
        v_lshrrev_b32 v3, 11, v3
        v_mad_u32_u24 v2, v1, s30, v2
        v_mad_i32_i24 v2, v3, s31, v2
        v_add_u32 v{VW+jj}, s29, v2
        """)
        if jj < 3: b("s_sub_u32 s29, s29, 1024")
        if jj == 3: b("s_add_u32 s29, s29, 3072")
        wj.append(list(b))
    if OPT["wfirst"]:
        a += wa
        for jj in range(5): a += wj[jj] + dw[jj]
        a += stamp("w0i") + xa
        first = grp(dma_x(0), 1)
    else:
        if OPT["head"] == 0: a += xa + dma_x(0) + wa + sum(wj, [])
        elif OPT["head"] == 1: a += xa + ld + dma_x(0) + wa + sum(wj, [])
        elif OPT["head"] == 2: a += wa[:20] + ld + xa + dma_x(0) + wa[20:] + sum(wj, [])
        elif OPT["head"] == 4: a += wa[:20] + xa + ld + dma_x(0) + wa[20:] + sum(wj, [])
        elif OPT["head"] == 5:
            ptr = [x for x in wa if re.match(r"\s*s_(cselect|and)_b32 s1[23],", x)]
            a += xa + [x for x in wa if x not in ptr] + ld + dma_x(0) + L("s_cmp_lt_u32 s22, 12") + ptr + sum(wj, [])
        elif OPT["head"] == 3: a += xa + ld[:3] + wa + sum(wj, []) + ld[3:] + dma_x(0)
        first = dw
    a(f"""
    s_load_dword s39, s[26:27], 0
    v_lshlrev_b32 v4, 4, v7
    s_lshl_b32 s48, {"s3" if OPT["slin"] else "s2"}, 2
    s_add_u32 s48, s48, s20              ; stats job
    s_and_b32 s36, s36, 0xffffff00
    s_lshr_b32 s28, s2, 3
    s_lshl_b32 s29, s20, 5
    s_add_u32 s28, s28, s29
    s_add_u32 s28, s28, 2
    s_mov_b64 s[0:1], s[36:37]
    s_lshl_b32 s50, s28, 10
    s_cmp_ge_u32 s28, CODE_KB
    s_cbranch_scc1 k_nocp
    v_add_u32 v1, s50, v4
    v_min_u32 v1, CODE_MAX, v1
    global_load_dwordx4 v[128:131], v1, s[0:1] ;nocount
    k_nocp:
    """)
    su = A()
    su += srd(16, 26, WS_USED)
    su(f"""
    s_lshr_b32 s51, s20, 1               ; wr
    s_and_b32 s52, s20, 1                ; wc
    v_lshrrev_b32 v59, 4, v7             ; g
    v_bfe_u32 v56, v7, 2, 2              ; rr
    v_and_b32 v57, 3, v7                 ; c4
    v_and_b32 v58, 1, v59                ; g&1
    v_and_b32 v3, 15, v7                 ; m
    v_lshrrev_b32 v6, 1, v3
    v_xor_b32 v6, v6, v59
    s_mul_i32 s28, s51, 12288
    v_lshl_add_u32 v55, v3, 7, s28
    v_lshl_add_u32 v{LA}, v6, 4, v55
    v_xor_b32 v6, 4, v6
    v_lshl_add_u32 v{LA+1}, v6, 4, v55
    v_lshl_add_u32 v55, v59, 3, v56
    v_mul_u32_u24 v55, 320, v55
    v_lshl_add_u32 v55, v57, 3, v55
    v_add_u32 v55, {WOFF}, v55
    s_cmp_lt_u32 s22, 8
    s_cselect_b32 s34, 5, 6
    s_cselect_b32 s35, 9, 5
    s_cmp_eq_u32 s52, 0
    s_cselect_b32 s34, 0, s34
    s_cselect_b32 s35, 4, s35
    s_add_u32 s30, s34, 1
    """)
    for i, sreg in enumerate((34, 30, 35)):
        su(f"v_xor_b32 v6, s{sreg}, v58\nv_lshl_add_u32 v{LB+i}, v6, 5, v55")
    su(f"""
    v_mov_b32 v6, 0x3f803f80
    v_accvgpr_write_b32 a{ONES}, v6
    v_accvgpr_write_b32 a{ONES+1}, v6
    v_accvgpr_write_b32 a{ONES+2}, v6
    v_accvgpr_write_b32 a{ONES+3}, v6
    """)
    mv = OPT["keep"]
    if OPT["swarm"]:
        w = L(f"""
        s_lshl_b32 s28, s48, 3
        s_add_u32 s28, s28, {NEGM}
        s_load_dword s76, s[26:27], s28
        s_add_u32 s28, s28, {RSTD - NEGM}
        s_load_dword s77, s[26:27], s28
        s_lshl_b32 s28, s2, {OPT['fash']}
        s_add_u32 s28, s28, {FA}
        s_load_dword s78, s[26:27], s28
        """)
        if OPT["swarm"] > 1:
            w += L(f"""
            s_mul_i32 s28, s22, 10
            s_add_u32 s28, s28, s54
            s_mul_i32 s28, s28, 640
            s_mul_i32 s29, s20, 192
            s_add_u32 s28, s28, s29
            s_add_u32 s28, s28, {CSP}
            s_load_dword s79, s[26:27], s28
            s_add_u32 s28, s28, 64
            s_load_dword s80, s[26:27], s28
            s_add_u32 s28, s28, 64
            s_load_dword s81, s[26:27], s28
            """)
        su[:0] = w
    if mv >= 1: su += d_pack_src() + d_cs()
    if mv >= 2: su += d_pack_dst()
    assert mv == 2
    pe = glue(p2_early() + (L("s_mov_b64 s[36:37], s[74:75]") + d_misc() if OPT["mv3"] >= 1 else []) + (setup_s() if OPT["mv3"] >= 2 else [])); n1 = OPT["pe1"]
    su += sum(pe[:n1], [])
    a += inter(su, first, OPT["sufirst"])
    if OPT["pkd"] == -1:
        a("s_cmp_lt_u32 s22, 8\ns_cbranch_scc1 k_nopk")
        for i in range(5):
            a += [f"  s_add_u32 m0, s53, {896*i}", f"  buffer_load_dwordx4 v252, s[56:59], s55 offen offset:{128*i} {'nt ' if OPT.get('pknt', 1) else ''}lds ;nocount"]
        a("k_nopk:\n;MARK pk")
    a += stamp("c0i")
    a += dma_next(1)
    a += W("sl")
    a += stamp("sl")
    a += inter(sum(pe[n1:], []) + stats_math(), grp(dma_x(1) + dma_w(1), 1))
    a += dma_next(2)
    a("s_waitcnt lgkmcnt(0)\ns_mul_i32 s39, s39, 1664525\ns_add_u32 s39, s39, 1013904223")
    if OPT["touch"] == 2: a += [x.replace(f"v{CS+5}", "v60").replace(f"v{CS+6}", "v61").replace(f"v{CS+7}", "v62") for x in d_touch()]
    a += stamp("pend")
    return a

def d_pack_src():
    return L(f"""
    s_mul_i32 s36, s21, -15
    s_add_u32 s36, s36, s22
    s_add_u32 s36, s36, 142
    s_lshr_b32 s37, s36, 1               ; ks
    s_and_b32 s38, s36, 1
    s_cmp_lt_u32 s37, 54
    s_cselect_b32 s56, s70, s64
    s_cselect_b32 s57, s71, s65
    s_cmp_lt_u32 s37, 54
    s_cselect_b32 s58, {F*D*2}, {D*D*2}
    s_cmp_lt_u32 s37, 54
    s_cselect_b32 s28, 0, 54
    s_and_b32 s57, s57, 0xffff
    s_mov_b32 s59, 0x20000
    s_sub_u32 s28, s37, s28
    s_mul_i32 s28, s28, {32*1280}
    s_mul_i32 s29, s38, 640
    s_add_u32 s55, s28, s29
    s_mul_i32 s29, s20, 10240
    s_add_u32 s55, s55, s29              ; pack src (8 rows per wave)
    s_mul_i32 s53, s20, 5120
    s_add_u32 s53, s53, {PACKL}
    """)
def d_cs():
    return L(f"""
    s_lshl_b32 s34, s34, 6
    s_lshl_b32 s35, s35, 6
    v_lshl_add_u32 v253, v7, 2, s34
    v_lshl_add_u32 v254, v7, 2, s35
    v_and_b32 v6, 48, v7
    v_lshl_add_u32 v254, v6, 22, v254
    s_add_u32 s34, s34, {CSL}
    s_add_u32 s35, s35, {CSL}
    s_mul_i32 s62, s22, 6400
    s_add_u32 s62, s62, {CSP}
    s_mul_i32 s64, s21, 640
    s_add_u32 s64, s64, s62
    s_cmp_ge_u32 s21, 10
    s_cselect_b32 s64, {OOB}, s64
    s_cmp_eq_u32 s51, 1
    s_cselect_b32 s64, {OOB}, s64
    """)
def d_pack_dst():
    return L(f"""
    v_add_u32 v5, 4096, v4
    s_mul_i32 s28, s37, 205
    s_lshr_b32 s28, s28, 10              ; c
    s_mul_i32 s30, s28, 5
    s_sub_u32 s30, s37, s30              ; r
    s_lshl_b32 s29, s30, 3
    s_lshr_b32 s47, 0x01001600, s29      ; r -> 0, 22, -, 1
    s_and_b32 s47, s47, 255
    s_cmp_eq_u32 s30, 4
    s_cselect_b32 s47, 23, s47
    s_lshl_b32 s29, s28, 1
    s_add_u32 s47, s47, s29
    s_add_u32 s28, s28, 43
    s_cmp_eq_u32 s30, 2
    s_cselect_b32 s31, 1, 0
    s_cselect_b32 s47, s28, s47
    s_cmp_ge_u32 s37, 54
    s_cselect_b32 s31, 1, s31
    s_cselect_b32 s47, s37, s47          ; storage index
    s_lshl_b32 s28, 5120, s31            ; per g>>1
    s_mul_i32 s29, s31, 4608
    s_add_u32 s29, s29, 512              ; per g&1
    s_mul_i32 s30, s31, -9728
    s_add_u32 s30, s30, 10240
    v_lshrrev_b32 v3, 5, v7
    v_mul_u32_u24 v1, s28, v3
    v_bfe_u32 v3, v7, 4, 1
    v_mad_u32_u24 v1, v3, s29, v1
    v_bfe_u32 v3, v7, 2, 2
    v_lshl_add_u32 v1, v3, 7, v1
    v_and_b32 v3, 3, v7
    v_lshl_add_u32 v1, v3, 3, v1
    s_mul_i32 s28, s20, 1056
    s_add_u32 s28, s28, {PACKL}
    v_add_u32 v1, s28, v1
    v_add_u32 v2, s30, v1
    s_lshl_b32 s28, s38, 2
    s_add_u32 s28, s28, s20              ; ct
    s_add_u32 s28, s28, {WPP}
    s_lshl_b32 s28, s28, 21
    s_lshl_b32 s29, s47, 14
    s_add_u32 s28, s28, s29
    s_bfe_u32 s29, s47, 0x10001
    s_mul_i32 s29, s29, {3072 + 8192}
    s_add_u32 s28, s28, s29
    s_cmp_ge_u32 s36, 148
    s_cselect_b32 s60, {OOB}, s28
    """)
def d_touch():
    r = CS + 8
    return L(f"""
    s_mul_i32 s28, s22, 11
    s_add_u32 s28, s28, s21
    s_lshl_b32 s28, s28, 2
    s_add_u32 s28, s28, s20              ; index 0..351
    s_not_b32 s30, s39
    s_sub_u32 s29, s28, 96
    s_cmp_lt_u32 s29, 64
    s_cselect_b32 s30, 0, s30
    v_mov_b32 v{r}, s30
    v_mov_b32 v{r+1}, s30
    v_mov_b32 v{r+2}, s30
    v_mov_b32 v{r+3}, s30
    s_lshl_b32 s29, s28, 10
    s_cmp_lt_u32 s28, 64
    s_cselect_b32 s30, {FP}, {FO - 64*1024}
    s_add_u32 s29, s29, s30
    s_lshl_b32 s30, s28, 15
    s_add_u32 s30, s30, {GXP*PG + 3072 - 160*32768}
    s_cmp_lt_u32 s28, 160
    s_cselect_b32 s29, s29, s30
    s_cselect_b32 s30, 0, 3968
    v_lshrrev_b32 v{r-1}, 3, v7
    v_mad_u32_u24 v{r-1}, v{r-1}, s30, v4
    buffer_store_dwordx4 {vr(r)}, v{r-1}, s[16:19], s29 offen sc1 ;#ss
    """)
def d_misc():
    return L(f"""
    s_lshl_b32 s49, s2, {OPT['fash']}
    s_add_u32 s49, s49, {FA}
    s_cmp_eq_u32 s20, 0
    s_cselect_b32 s49, s49, {OOB}        ; A flag (wave 0)
    v_add_u32 v5, 4096, v4
    """) + srd(4, 72, S*D*2) + L(f"""
    s_mul_i32 s74, s22, 6400
    s_add_u32 s74, s74, {CSP}
    s_add_u32 s73, s2, s20
    s_cmp_eq_u32 s73, 0
    s_cselect_b32 s73, 0, {OOB}          ; epoch word (wg0 wave0)
    s_and_b32 s24, s2, 6
    s_lshl_b32 s24, s24, 2
    s_lshr_b32 s28, s2, 5
    s_add_u32 s24, s24, s28              ; row group of phase 2
    s_bfe_u32 s25, s2, 0x20003
    s_and_b32 s28, s2, 1
    s_lshl_b32 s28, s28, 2
    s_add_u32 s25, s25, s28              ; column tile of phase 2
    s_add_u32 s29, s25, {WPP}
    s_lshl_b32 s29, s29, 21
    s_and_b32 s47, s24, 1
    s_lshl_b32 s28, s20, 1
    s_add_u32 s47, s47, s28              ; first storage index of this wave: 2*wave + parity
    s_lshl_b32 s28, s47, 14
    s_add_u32 s46, s29, s28
    s_mul_i32 s28, s52, {3072 + 8192}
    s_add_u32 s46, s46, s28              ; B stream first
    s_lshl_b32 s28, s20, 14
    s_add_u32 s70, s29, s28
    s_mul_i32 s28, s51, {3072 + 8192}
    s_sub_u32 s70, s70, s28
    s_add_u32 s70, s70, {54*16384 + 3072 + 8192} ; wo src
    s_mul_i32 s69, s20, 5120             ; wo lds base
    s_lshl_b32 s72, s20, 10
    s_add_u32 s72, s72, {AUXC}
    s_mul_i32 s65, s21, 768
    s_add_u32 s65, s65, {NEGM - 144*16}
    s_movk_i32 s66, 192
    s_mul_i32 s67, s22, 12
    s_add_u32 s67, s67, s21
    s_lshl_b32 s67, s67, 7
    s_add_u32 s67, s67, {FP}
    s_cmp_eq_u32 s20, 0
    s_cselect_b32 s67, s67, {OOB}
    """)

def zipw(*ls):
    keyed = []
    for li, l in enumerate(ls):
        for j, x in enumerate(l): keyed.append(((j + 0.5)/len(l), li, j, x))
    keyed.sort(key=lambda t: t[:3])
    return [y for k in keyed for y in k[3]]
def epi_t(kind, st):
    RC = AB[0]; PK = AB[1]; TMP = BB[0]
    e = A()
    for T in range(6):
        c = RC + 4*T
        e(f"v_mul_f32 v{c+2}, s83, v{c+1}")
        if kind == "silu": e(f"v_rcp_f32 v{c+3}, v{c+1}")
    blocks = [[(T, i) for T in Ts for i in idx] for idx in ((0, 1, 2, 3), (4, 5, 6, 7)) for Ts in ((0, 1), (2, 3), (4, 5))]
    blocks.append([(T, i) for T in range(6) for i in (8, 9)])
    nxt = lambda T: f"  s_mov_b32 s48, s{81 if T == 1 else 82}" if T in (1, 3) else "  s_add_u32 s48, s48, 1024"
    pend = []
    allld = grp(st.take(sum(OPT["epi"])), 1)
    for bi, blk in enumerate(blocks):
        V = []; n = len(blk)
        u = lambda k: acc(blk[k][0], 0) + 2*blk[k][1]
        c = lambda k: RC + 4*blk[k][0]
        for k in range(n): V.append(f"  v_pk_fma_f32 {vr(u(k),2)}, {vr(CS+2*blk[k][1],2)}, {vr(c(k),2)}, {vr(u(k),2)} op_sel_hi:[1,0,1]")
        for k in range(n): V.append(f"  v_pk_mul_f32 {vr(TMP+2*k,2)}, {vr(u(k),2)}, {vr(c(k)+2,2)} op_sel_hi:[1,0]")
        if kind == "silu":
            for k in range(2*n): V.append(f"  v_exp_f32 v{TMP+k}, v{TMP+k}")
            for k in range(n): V.append(f"  v_pk_fma_f32 {vr(TMP+2*k,2)}, {vr(TMP+2*k,2)}, {vr(c(k)+2,2)}, {vr(c(k)+2,2)} op_sel:[0,1,1] op_sel_hi:[1,1,1]")
            for k in range(2*n): V.append(f"  v_rcp_f32 v{TMP+k}, v{TMP+k}")
            fin = lambda k: f"  v_pk_mul_f32 {vr(u(k),2)}, {vr(u(k),2)}, {vr(TMP+2*k,2)}"
        else:
            for k in range(2*n): V.append(f"  v_exp_f32_e64 v{TMP+k}, v{TMP+k} clamp")
            for k in range(n): V.append(f"  v_pk_fma_f32 {vr(u(k),2)}, {vr(u(k),2)}, {vr(c(k),2)}, 1.0 op_sel:[0,1,0] op_sel_hi:[1,1,0]")
            for k in range(2*n): V.append(f"  v_max_f32 v{u(k//2)+(k&1)}, v{u(k//2)+(k&1)}, v{TMP+k}")
            fin = lambda k: f"  v_pk_add_f32 {vr(u(k),2)}, {vr(u(k),2)}, {vr(VX+4,2)}"
        items = pend + allld[sum(OPT["epi"][:bi]):sum(OPT["epi"][:bi+1])]
        if bi == OPT["f1blk"]: items.insert(len(pend) + OPT["f1pos"], W("sa") + L("s_barrier") + flag("s75") + stamp("f1"))
        ins = {}
        for k, x in enumerate(items): ins[5 + (k*(len(V) - 6)//len(items))//2*2] = x
        for i, v in enumerate(V):
            e.append(v)
            if i in ins: e += ins[i]
        p = PK + 12*(bi & 1); tg = " ;#sa" if bi < 3 else ""
        pend = []
        for q in range(n//4):
            for k in range(4*q, 4*q + 4): e.append(fin(k))
            for k in range(4*q, 4*q + 4): e(f"v_cvt_pk_bf16_f32 v{p+k}, v{u(k)}, v{u(k)+1}")
            if bi < 6:
                T = blk[4*q][0]
                stv = [f"  buffer_store_dwordx4 {vr(p+4*q)}, v{VX + bi//3}, s[16:19], s{80 + T//2} offen offset:{1024*(T & 1)} sc1{tg}"]
                if q == 0: e += stv
                else: pend.append(stv)
            else:
                e(f"v_permlane16_swap_b32 v{p+4*q}, v{p+4*q+2}\nv_permlane16_swap_b32 v{p+4*q+1}, v{p+4*q+3}")
                e(f"buffer_store_dwordx4 {vr(p+4*q)}, v{VX+2}, s[16:19], s{80 + q} offen sc1")
    return resolve(e)

def epi_kv(st):
    a = A()
    NM = AB[0]; TMP = BB[1]; FR = AB[1]; DD = ACC
    def RSf(T): return BB[0] + 4*T if T < 5 else VX
    a(f"""
    v_mov_b32 v{TMP+12}, 0x358637bd
    v_mov_b32 v{TMP+13}, 0x358637bd
    v_mov_b32 v{TMP+14}, 0x3f803f80
    s_waitcnt lgkmcnt(0)
    """)
    allld = grp(st.take(sum(OPT["epi_n"])), 1)
    def kvm(P): return [f"  v_mfma_f32_16x16x32_bf16 {vr(DD+4*n)}, {vr(FR+4*kx)}, {vr(FR+4*vy)}, {'0' if P == 0 else vr(DD+4*n)}" for n, (kx, vy) in enumerate(PRODS)]
    for P in range(3):
        for h in range(2):
            T = 2*P + h; u0 = acc(T, 0); nm = NM + 4*T; rs = RSf(T); b = A()
            for t in range(5):
                for i in range(2):
                    r = u0 + 4*t + 2*i
                    b(f"v_pk_fma_f32 {vr(r,2)}, {vr(nm+2*i,2)}, {vr(CS+4*t,2)}, {vr(r,2)} op_sel_hi:[1,0,1]")
            for t in range(5):
                for i in range(2):
                    r = u0 + 4*t + 2*i
                    b(f"v_pk_mul_f32 {vr(r,2)}, {vr(r,2)}, {vr(rs+2*i,2)}")
            for i in range(6): b(f"v_pk_mul_f32 {vr(TMP+2*i,2)}, {vr(u0+2*i,2)}, s[30:31]")
            for i in range(12): b(f"v_exp_f32_e64 v{TMP+i}, v{TMP+i} clamp")
            for t in range(2, 5):
                for i in range(2): b(f"v_cvt_pk_bf16_f32 v{FR+4*(t+1)+2*h+i}, v{u0+4*t+2*i}, v{u0+4*t+2*i+1}")
            for i in range(2): b(f"v_cndmask_b32 v{FR+12+2*h+i}, v{FR+12+2*h+i}, v{TMP+14}, s[32:33]")
            for i in range(6): b(f"v_pk_add_f32 {vr(u0+2*i,2)}, {vr(u0+2*i,2)}, 1.0 op_sel_hi:[1,0]")
            for i in range(12): b(f"v_max_f32 v{u0+i}, v{u0+i}, v{TMP+i}")
            for i in range(6): b(f"v_pk_add_f32 {vr(u0+2*i,2)}, {vr(u0+2*i,2)}, {vr(TMP+12,2)}")
            for t in range(3):
                for i in range(2): b(f"v_cvt_pk_bf16_f32 v{FR+4*t+2*h+i}, v{u0+4*t+2*i}, v{u0+4*t+2*i+1}")
            n = OPT["epi_n"][T]
            a += inter(b, allld[sum(OPT["epi_n"][:T]):sum(OPT["epi_n"][:T+1])], 2) if n else b
        if P: a(f"s_cmp_eq_u32 s36, 1\ns_cbranch_scc1 k_kvs{P}")
        for n, (kx, vy) in enumerate(PRODS):
            d = vr(DD + 4*n)
            a(f"v_mfma_f32_16x16x32_bf16 {d}, {vr(FR+4*kx)}, {vr(FR+4*vy)}, {'0' if P == 0 else d}")
        if P: a(f"k_kvs{P}:")
    a += stamp("kvv")
    a(f"""
    s_mul_i32 s28, s51, 1792
    s_add_u32 s37, s37, s28
    s_lshl_b32 s29, s52, 12
    s_add_u32 s28, s28, s29
    s_add_u32 s28, s28, {KVX}
    v_lshlrev_b32 v2, 2, v7
    v_add_u32 v3, s28, v2
    s_cmp_eq_u32 s51, 0
    s_cselect_b32 s28, 64, 8
    v_cmp_gt_u32 vcc, s28, v7
    v_mov_b32 v6, {OOB}
    """)
    for n in range(8): a(f"ds_write_b128 v{KVOF[n]}, {vr(DD+4*n)}")
    a("v_cndmask_b32 v6, v6, v2, vcc\ns_waitcnt lgkmcnt(0)\ns_barrier")
    for n in range(7): a(f"ds_read2st64_b32 {vr(72+2*n,2)}, v3 offset0:{n} offset1:{32+n}")
    for n in range(7):
        a(f"s_waitcnt lgkmcnt({6-n})\nv_add_f32 v{72+2*n}, v{72+2*n}, v{73+2*n}")
        a(f"buffer_atomic_add_f32 v{72+2*n}, v{6 if n == 6 else 2}, s[16:19], s37 offen offset:{256*n}")
    a += stamp("kvs")
    return a

PARK = list(range(168, 184)) + [239, 238, 240, 241, 242, 251, 252, 253]
def p2_early():
    GA = 168; F1A = 239; FW = 238; XA = [251, 252, 253]
    h = L(f"""
    s_and_b32 s21, s2, 3
    s_lshl_b32 s21, s21, 2
    s_bfe_u32 s28, s2, 0x20003
    s_add_u32 s21, s21, s28              ; hp
    s_and_b32 s23, s2, 4
    s_lshl_b32 s23, s23, 1
    s_lshr_b32 s28, s2, 5
    s_add_u32 s23, s23, s28              ; rg
    s_and_b32 s24, s2, 6
    s_lshl_b32 s24, s24, 2
    s_add_u32 s24, s24, s28
    s_mul_i32 s54, s21, 5
    s_lshr_b32 s54, s54, 2
    s_mul_i32 s49, s20, 15360
    s_add_u32 s49, s49, {RED}
    s_and_b32 s28, s24, 30
    s_mul_i32 s35, s28, 21846
    s_lshr_b32 s35, s35, 16
    s_add_u32 s35, s35, 144              ; W1 lines of the first row block: (12+i)*12 + rb, lanes 0..10
    s_add_u32 s28, s28, 1
    s_mul_i32 s28, s28, 21846
    s_lshr_b32 s28, s28, 16
    s_add_u32 s28, s28, 12               ; second row block, lanes 11..21
    s_lshr_b32 s29, s21, 1
    s_mul_i32 s29, s29, 12
    s_sub_u32 s29, s29, 22
    s_lshl_b32 s30, s23, 1
    s_mul_i32 s31, s30, 21846
    s_lshr_b32 s31, s31, 16
    s_add_u32 s30, s30, 1
    s_mul_i32 s30, s30, 21846
    s_lshr_b32 s30, s30, 16
    s_lshr_b32 s34, s21, 2
    s_mul_i32 s34, s34, 12
    s_add_u32 s34, s34, 96
    s_add_u32 s31, s31, s34              ; Q line, first row block (lane 22)
    s_add_u32 s30, s30, s34              ; Q line, second row block (lanes 23..)
    v_min_u32 v1, 21, v7
    v_mad_u32_u24 v2, v1, 12, s35
    v_mad_u32_u24 v3, v1, 12, s28
    v_cmp_le_u32 vcc, 11, v7
    v_cndmask_b32 v2, v2, v3, vcc
    v_lshlrev_b32 v3, 7, v2
    v_add_u32 v{F1A}, {FP + FPD}, v3
    v_add_u32 v3, s29, v7
    v_cmp_le_u32 vcc, 22, v7
    v_cndmask_b32 v2, v2, v3, vcc
    v_mov_b32 v3, s31
    v_cmp_le_u32 vcc, 33, v7
    v_cndmask_b32 v2, v2, v3, vcc
    v_mov_b32 v3, s30
    v_cmp_le_u32 vcc, 34, v7
    v_cndmask_b32 v2, v2, v3, vcc
    v_lshlrev_b32 v2, 7, v2
    v_add_u32 v{FW}, {FP}, v2
    """)
    s2 = A()
    s2(f"""
    v_and_b32 v1, 15, v7                 ; i / m
    v_lshrrev_b32 v2, 4, v7              ; g
    v_lshrrev_b32 v3, 2, v1
    v_and_b32 v212, 3, v1
    v_lshl_add_u32 v6, v3, 3, v212
    v_cmp_le_u32 vcc, 20, v6
    v_cndmask_b32 v216, 0, 5, vcc
    v_lshlrev_b32 v220, 2, v216
    v_sub_u32 v220, v6, v220
    v_add_u32 v6, 4, v6
    v_cmp_le_u32 vcc, 20, v6
    v_cndmask_b32 v217, 0, 5, vcc
    v_lshlrev_b32 v221, 2, v217
    v_sub_u32 v221, v6, v221
    v_cmp_gt_u32 vcc, 8, v1
    v_cndmask_b32 v218, 64, 5, vcc
    v_add_u32 v222, 12, v1
    v_add_u32 v6, v3, v212
    v_cmp_le_u32 vcc, 3, v6
    v_cmp_le_u32 s[34:35], 2, v212
    s_or_b64 vcc, vcc, s[34:35]
    v_cndmask_b32 v219, 0, 5, vcc
    v_mov_b32 v223, 20
    v_mov_b32 v213, 255
    s_mov_b32 s37, {RED}
    """)
    for k in range(2):
        s2(f"""
        s_add_u32 s31, s54, {k}
        s_mul_i32 s32, s31, 205
        s_lshr_b32 s32, s32, 10
        s_mul_i32 s32, s32, 5
        s_sub_u32 s32, s31, s32
        s_cmp_eq_u32 s32, 2
        s_cselect_b32 s33, 1, 0
        s_cselect_b32 s36, 1, 4
        s_lshl_b32 s31, s31, 3
        s_mul_i32 s32, s21, 10
        s_sub_u32 s31, s31, s32
        v_lshlrev_b32 v3, s33, v2
        v_add_u32 v3, s31, v3
        """)
        for j in range(2):
            if j: s2("v_add_u32 v3, s36, v3")
            for tl in range(4):
                s2(f"""
                v_sub_u32 v212, v3, v{216+tl}
                v_cmp_gt_u32 vcc, 5, v212
                v_mad_u32_u24 v212, v3, 21, v{220+tl}
                v_cndmask_b32 v212, v213, v212, vcc
                v_lshl_add_u32 v{GA+tl*4+k*2+j}, v212, 3, s37
                """)
    fs = A()
    for i in range(3):
        fs(f"""
        v_add_u32 v6, {64*i}, v7
        v_mul_u32_u24 v1, 6554, v6
        v_lshrrev_b32 v1, 16, v1
        v_mul_u32_u24 v3, 1120, v1
        v_lshl_add_u32 v3, v6, 4, v3
        v_cmp_gt_u32 vcc, 160, v6
        v_add_u32 v1, v1, v6
        v_mov_b32 v6, {OOB}
        v_lshl_add_u32 v{240+i}, v1, 4, s49
        v_cndmask_b32 v{XA[i]}, v6, v3, vcc
        """)
    smap = {21: 76, 54: 77, 23: 78, 32: 80, 33: 81, 34: 82, 35: 83, 36: 46, 37: 47, 49: 25}
    vmap = {1: 64, 2: 65, 3: 66, 6: 67, 239: 184, 238: 185, 240: 186, 241: 187, 242: 188, 251: 189, 252: 190, 253: 191}
    out = []
    for x in h + s2 + fs:
        x = x.replace("s[34:35]", "s[82:83]")
        x = re.sub(r"\bs(\d+)\b", lambda m: f"s{smap.get(int(m.group(1)), int(m.group(1)))}", x)
        x = re.sub(r"\bv(\d+)\b", lambda m: f"v{vmap.get(int(m.group(1)), int(m.group(1)))}", x)
        out.append(x)
    return out + [f"  v_accvgpr_write_b32 a{204+i}, v{168+i}" for i in range(24)]

def phase2(st):
    a = A()
    G = 8; GR = 88; AR = 140; NA = 4; SA = 208; XB = 228; RP = 148
    AV = [244, 245, 246, 247]; RW = [248, 249, 250]; XA = [251, 252, 253]
    GA = 168; DB = 208; KA = 236; OA = 0; UA = 237; FW = 238
    g1 = OPT["gap1"]; psched = OPT["psched"]; wtr = OPT["wtrail"]; F1A = 239; OB = 235
    s1 = L(f"""
    s_cmp_eq_u32 s20, 0
    s_cselect_b32 s55, 0, {OOB}
    s_cselect_b64 s[56:57], -1, 0
    s_and_b32 s21, s2, 3
    s_lshl_b32 s21, s21, 2
    s_bfe_u32 s28, s2, 0x20003
    s_add_u32 s21, s21, s28              ; hp
    s_and_b32 s23, s2, 4
    s_lshl_b32 s23, s23, 1
    s_lshr_b32 s28, s2, 5
    s_add_u32 s23, s23, s28              ; rg
    v_accvgpr_read_b32 v{F1A}, a220
    v_accvgpr_read_b32 v{FW}, a221
    s_mul_i32 s54, s21, 5
    s_lshr_b32 s54, s54, 2               ; ksA
    s_lshl_b32 s60, s21, 12
    s_add_u32 s60, s60, {KVP}
    v_lshlrev_b32 v3, 4, v0
    v_cmp_gt_u32 vcc, 210, v0
    v_mov_b32 v6, {OOB}
    v_cndmask_b32 v{KA}, v6, v3, vcc
    s_lshl_b32 s76, s23, 1
    s_add_u32 s76, s76, s51
    """) + blk(63, 76, "q", 28, 29) + L(f"""
    s_xor_b32 s63, s63, s3
    s_lshl_b32 s30, s52, 11
    s_add_u32 s63, s63, s30
    s_add_u32 s62, s54, 1
    """) + cell(61, 54, 28) + cell(62, 62, 28) + L(f"""
    s_add_u32 s61, s61, s63
    s_add_u32 s62, s62, s63
    s_add_u32 s63, s63, {QSZ}
    """)
    s2 = A()
    s2(f"v_and_b32 v1, 15, v7\nv_lshrrev_b32 v2, 4, v7\ns_mov_b32 s37, {RED}")
    s2 += [f"  v_accvgpr_read_b32 v{r}, a{204+i}" for i, r in enumerate(PARK) if i not in (16, 17)]
    ol = L(f"buffer_load_dwordx4 v[208:211], v{KA}, s[16:19], s60 offen sc1 ;#P")
    ql = L(f"""
    buffer_load_dwordx4 a[240:243], v4, s[16:19], s61 offen sc1 ;#Q
    buffer_load_dwordx4 a[244:247], v4, s[16:19], s62 offen sc1 ;#Q
    buffer_load_dwordx4 a[248:251], v4, s[16:19], s61 offen offset:1024 sc1 ;#Q
    buffer_load_dwordx4 a[252:255], v4, s[16:19], s62 offen offset:1024 sc1 ;#Q
    """)
    s3 = A()
    s3(f"""
    s_and_b32 s64, s23, 3
    s_lshl_b32 s64, s64, 11
    s_and_b32 s28, s23, 4
    s_lshl_b32 s28, s28, 12
    s_add_u32 s64, s64, s28
    s_and_b32 s28, s23, 8
    s_lshl_b32 s28, s28, 10
    s_xor_b32 s28, s28, s3
    s_add_u32 s64, s64, s28
    s_lshl_b32 s28, s21, 7
    s_add_u32 s64, s64, s28
    s_add_u32 s64, s64, {FO}
    s_add_u32 s64, s64, s55
    s_mul_i32 s28, s21, 5
    v_add_u32 v3, s28, v2
    v_lshrrev_b32 v6, 3, v3
    v_lshlrev_b32 v6, 14, v6
    v_bfe_u32 v212, v3, 2, 1
    v_lshl_add_u32 v6, v212, {13 if OPT["mode"] in ("cols", "none") else 12}, v6
    v_and_b32 v3, 3, v3
    v_lshl_add_u32 v6, v3, 8, v6
    v_lshl_add_u32 v{OB}, v1, 4, v6
    s_add_u32 s28, s28, 4
    s_lshr_b32 s30, s28, 2
    """)
    s3 += cell(30, 30, 29)
    s3(f"""
    s_and_b32 s28, s28, 3
    s_lshl_b32 s28, s28, 8
    s_add_u32 s28, s28, s30
    v_lshl_add_u32 v3, v1, 4, s28
    v_lshl_add_u32 v3, v2, 3, v3
    v_cmp_gt_u32 vcc, 2, v2
    v_mov_b32 v6, {OOB}
    v_lshl_add_u32 v{UA}, v0, 3, s37
    v_cndmask_b32 v{OA}, v6, v3, vcc
    """)
    sA = A()
    sA += blk(40, 24, "h", 28, 29) + cell(30, 47, 29) + L(f"""
    s_xor_b32 s40, s40, s3
    s_add_u32 s44, s40, s30              ; own rows
    s_bitcmp1_b32 s24, 0
    s_cselect_b32 s28, {-HSZ & 0xffffffff}, {HSZ}
    s_add_u32 s45, s44, s28              ; partner rows (other block of the same page)
    """)
    for T in range(4):
        sA(f"s_add_u32 s28, s20, {T}\ns_and_b32 s28, s28, 3\ns_lshl_b32 s28, s28, 10\nv_add_u32 v{AV[T]}, s28, v4")
    osum = W("P") + L(f"v_cvt_pk_bf16_f32 v208, v208, v209\nv_cvt_pk_bf16_f32 v209, v210, v211\nds_write_b64 v{UA}, v[208:209]")
    ogat = [f"  ds_read_b64 {ar(204+2*n,2)}, v{GA+n}" for n in range(16)]
    om = []
    for k in range(2):
        for T in range(2):
            for tl in (3, 0, 1, 2):
                d = vr(DB + 16*T + 4*tl)
                om.append(f"  v_mfma_f32_16x16x32_bf16 {d}, {ar(204+tl*8+k*4)}, {ar(240+T*8+k*4)}, {'0' if k == 0 else d}")
    ofin = []
    for T in range(2):
        o = A(); b = DB + 16*T; z = b + 12; pk = GA + 6*T
        for r in range(3): o(f"v_add_f32 v{z+r}, 0x358637bd, v{z+r}")
        for r in range(3): o(f"v_rcp_f32 v{z+r}, v{z+r}")
        for tl in range(3):
            for r in range(4): o(f"v_mul_f32 v{b+4*tl+r}, v{b+4*tl+r}, v{z+tl}")
        for i in range(6): o(f"v_cvt_pk_bf16_f32 v{pk+i}, v{b+2*i}, v{b+2*i+1}")
        o(f"buffer_store_dwordx4 {vr(pk)}, v2, s[16:19], s63 offen offset:{1024*T} sc1 ;#OS")
        o(f"buffer_store_dwordx2 {vr(pk+4,2)}, v{OA}, s[16:19], s63 offen offset:{1024*T} sc1 ;#OS")
        ofin.append(list(o))
    fs = A()
    fs(f"""
    s_lshl_b32 s42, s24, 2
    s_add_u32 s42, s42, s20
    s_lshr_b32 s30, s24, 1
    s_and_b32 s28, s30, 3
    s_lshl_b32 s28, s28, 11
    s_and_b32 s29, s30, 4
    s_lshl_b32 s29, s29, 12
    s_add_u32 s28, s28, s29
    s_and_b32 s29, s30, 8
    s_lshl_b32 s29, s29, 10
    s_xor_b32 s29, s29, s3
    s_add_u32 s28, s28, s29
    s_add_u32 s28, s28, {FO}
    v_min_u32 v6, 15, v7
    v_lshl_add_u32 v{VF-1}, v6, 7, s28
    s_mul_i32 s48, s42, {16*1280}
    s_mul_i32 s28, s25, 160
    s_add_u32 s48, s48, s28
    """)
    fs += blk(42, 24, "o", 28, 29)
    fs(f"""
    s_xor_b32 s42, s42, s3
    s_lshl_b32 s28, s20, 10
    s_add_u32 s42, s42, s28
    s_mul_i32 s49, s20, 15360
    s_add_u32 s49, s49, {RED}
    v_mul_u32_u24 v243, 176, v1
    v_lshl_add_u32 v243, v2, 3, v243
    v_add_u32 v243, s49, v243            ; result write: row stride 176
    """)
    for T in range(1, 4):
        fs(f"s_add_u32 s28, s20, {T}\ns_and_b32 s28, s28, 3\ns_mul_i32 s28, s28, 15360\ns_add_u32 s28, s28, {RED + (T-1)*5120}\nv_add_u32 v{RW[T-1]}, s28, v4")
    fs(f"""
    v_add_u32 v1, s49, v4
    v_mov_b32 v2, v{OB}
    s_and_b32 s28, s24, 15
    s_lshl_b32 s28, s28, 3
    s_add_u32 s28, s28, s25
    s_lshl_b32 s28, s28, 2
    s_add_u32 s28, s28, s20
    """)
    fs += cell(65, 28, 29)
    fs(f"""
    s_add_u32 s65, s65, {GXP*PG}
    s_lshr_b32 s28, s65, 21
    s_lshr_b32 s29, s24, 4
    s_xor_b32 s28, s28, s29
    s_and_b32 s28, s28, 1
    s_lshl_b32 s28, s28, 13
    s_xor_b32 s28, s28, s3
    s_add_u32 s65, s65, s28
    s_xor_b32 s66, s65, {16*16384}
    s_add_u32 s72, s66, 3072
    s_add_u32 s73, s65, 3072
    """)
    MG = OPT["mg"]
    SL = OPT["slots"]; RL = max(i for i, x in enumerate(SL) if x[0] == "r")
    def areg(s): return 204 if s == 13 else AR + (s % NA)*16
    def ldA(s):
        r_, j = SL[s]
        r = [f"  s_add_u32 s41, s{45 if r_ == 'r' else 44}, {65536*j}"]
        if j == 6: r += L(f"s_cmp_lt_u32 s20, 3\ns_cselect_b32 s41, s41, {OOB}")
        return r + [f"  buffer_load_dwordx4 {ar(areg(s)+4*T)}, v{AV[T]}, s[16:19], s41 offen sc1 ;#A{s}{'abcd'[T]}" for T in ((1, 2, 3, 0) if s >= MG else range(4))]
    a("k_p2:\n;MARK ep")
    for i in range(7): a(f";MARK B{i}")
    for i in range(5): a(f";MARK wo{i}")
    a += stamp("eend")
    gs = grp(st.take(g1), 2)
    gs.insert(len(gs) - OPT["poll_early"], poll(F1A, VF, "p1", "s55"))
    allsu = glue(s1 + sA + s2 + s3 + fs); k1 = OPT["su1"]; k2 = OPT["su2"]
    assert k1 >= len(glue(s1 + sA))
    flat = lambda l: sum(l, [])
    p1at = next(i for i, x in enumerate(allsu) if f"v_accvgpr_read_b32 v{F1A}," in x[0]) + 1
    a += inter(flat(allsu[:k1]), gs, p1at if OPT["poll_early"] >= len(gs) - 2 else 0)
    a += W("ep") + L("s_barrier") + flag("s67", 224) + stamp("flag")
    a += W("p1") + L("s_mov_b64 s[58:59], vcc") + check("k_s1", F1A, VF, True) + L("s_mov_b64 vcc, s[58:59]") + stamp("c1")
    pre = grp(ldA(2), 1)
    if OPT["pp2"] < 0: pre.append(poll(FW, VF, "p2", "s55"))
    a += ldA(0) + ldA(1) + inter(flat(allsu[k1:k2]), pre)
    if min(OPT["xs"]) < OPT["c2"]:
        kx = max(i for i, x in enumerate(allsu) if "s_add_u32 s49, s49," in x[0]); assert kx < k2, (kx, len(allsu))
    late = allsu[k2:]; nl = OPT["c2"]
    late = {i: flat(late[i*len(late)//nl:(i+1)*len(late)//nl]) for i in range(nl)}
    def ldO(i0, n):
        r = []
        for i in range(i0, i0 + n):
            if OPT["mode"] in ("cols", "none"):
                r += [f"  s_add_u32 s43, s42, {8192*i}", f"  buffer_load_dwordx4 {ar(4*i)}, v4, s[16:19], s43 offen sc1 ;#O{i}"]; continue
            if i % 2 == 0 or i == i0: r.append(f"  s_add_u32 s43, s42, {16384*(i//2)}")
            r.append(f"  buffer_load_dwordx4 {ar(4*i)}, v{4 + (i & 1)}, s[16:19], s43 offen sc1 ;#O{i}")
        return r
    ldX = [[f"  s_add_u32 m0, s49, {4096 + 1024*i}", "  s_nop 0", f"  buffer_load_dwordx4 v{XA[i]}, s[8:11], s48 offen lds ;#X"] for i in range(3)]
    rdX = L("v_add_u32 v2, 51200, v4\nv_and_b32 v3, 15, v7\nv_lshlrev_b32 v3, 4, v3\nv_sub_u32 v3, v243, v3") + W("X") + tag([f"  ds_read_b64 {vr(XB+2*t,2)}, v3 offset:{4096+32*t}" for t in range(5)], "xr")
    NB = 3
    def sb(s, t): return vr(GR + 20*(s % NB) + 4*t)
    def rdB(s): return tag([f"  ds_read_b128 {sb(s,t)}, v{4 if s < 10 else 2} offset:{(s%10)*5120+1024*t}" for t in range(5)], f"b{s}")
    wr_ = tag([f"  ds_write_b128 v{RW[T-1]}, {vr(G+(T*5+t)*4)} offset:{1024*t}" for T in range(1, 4) for t in range(5)], "w")
    rd_ = tag([f"  ds_read_b128 {vr(G+20+4*j)}, v1 offset:{1024*j}" for j in range(15)], "r")
    xw = tag([f"  ds_write_b128 v{RW[T-1]}, {vr(GR+(T*5+t)*4)} offset:{1024*t}" for T in range(1, 4) for t in range(5)], "xw")
    xr = tag([f"  ds_read_b128 {vr(GR+20+20*j+4*t)}, v1 offset:{5120*j+1024*t}" for t in range(5) for j in range(3)], "xr")
    xa = []
    for t in range(5):
        xa += [f"  v_add_f32 v{GR+4*t+i}, v{GR+4*t+i}, v{GR+20+20*j+4*t+i}" for j in range(3) for i in range(4)]
        xa += [f"  v_cvt_pk_bf16_f32 v{GA+2*t+i}, v{GR+4*t+2*i}, v{GR+4*t+2*i+1}" for i in range(2)]
        if t in (1, 3): xa.append(f"  buffer_store_dwordx4 {vr(GA+2*t-2)}, v4, s[16:19], s66 offen offset:{512*(t-1)} sc1 ;#XS")
    xa += L(f"v_lshlrev_b32 v0, 3, v7\nbuffer_store_dwordx2 {vr(GA+8,2)}, v0, s[16:19], s66 offen offset:2048 sc1 ;#XS")
    xl = [f"  buffer_load_dwordx4 {vr(GA+4*t)}, v4, s[16:19], s65 offen offset:{1024*t} sc1 ;#XL" for t in range(2)] + [f"  buffer_load_dwordx2 {vr(GA+8,2)}, v0, s[16:19], s65 offen offset:2048 sc1 ;#XL"]
    XF, XP, XC = OPT["xf"], OPT["xp"], OPT["xc"]
    xpoll = L(f"v_mov_b32 v{VF-1}, s73") + poll(VF-1, VF, "xp")
    C2 = OPT["c2"]; plan = OPT["aplan"]; OFS = OPT["ofs"]; PO = OPT["po"]; PC = OPT["pc"]; osched = OPT["osched"]
    no = 0
    XU = 184
    xu = []
    for i in range(10): xu += [f"  v_lshlrev_b32 v{XU+2*i}, 16, v{XB+i}", f"  v_and_b32 v{XU+2*i+1}, 0xffff0000, v{XB+i}"]
    def wdone(g): return ("W", 5*g + 4) not in st.items
    def mf(s, T, rev):
        r_, j = SL[s]; GG = GR if r_ == "r" else G; first = all(x[0] != r_ for x in SL[:s])
        return [f"  v_mfma_f32_16x16x32_bf16 {vr(GG+(T*5+t)*4)}, {breg(j,t)}, {ar(areg(s)+4*T)}, {'0' if first else vr(GG+(T*5+t)*4)}" for t in (range(4, -1, -1) if rev else range(5))]
    nm = 14 - MG; WB = OPT["wb"]
    for s in range(MG + 4):
        if s < MG:
            need = [f"A{s}{c}" for c in "abcd"] + [f"B{SL[s][1]}"]; assert ("B", 5*SL[s][1] + 4) not in st.items
            M = sum((mf(s, T, k & 1) for k, T in enumerate((1, 2, 3, 0) if s == RL else range(4))), [])
            if OPT["xw"] == 2 and s in (RL - 1, RL):
                Ts = (1, 2) if s == RL - 1 else (3, 0)
                need = [f"A{x}{'abcd'[T]}" for x in (RL - 1, RL) for T in Ts] + [f"B{SL[RL][1]}"]
                M = sum((mf(x, T, False) for T in Ts for x in (RL - 1, RL)), [])
        else:
            T = (1, 2, 3, 0)[s - MG]
            need = [f"A{x}{'abcd'[T]}" for x in range(MG, 14)]
            M = sum((mf(x, T, False) for x in range(MG, 14)), [])
        if s == XF: need.append("XS")
        vm = need + (["op"] if s == PC else []) + ([f"wo{g}" for g in range(5) if g not in wtr] if s == WB else []) + (["OS"] if s == OFS else []) + (["p2"] if s == C2 else [])
        if s == WB: assert all(wdone(g) for g in range(5) if g not in wtr)
        OQ = OPT["oq"]; OM = C2 + (1 if OQ else 2)
        XB_ = OFS if OPT["xr"] < OFS else RL
        assert XB_ <= (RL - 1 if OPT["xw"] == 2 else RL)
        a += W(vm, "*" if (s in (XB_, XB_ if OPT["xw"] == 1 else RL + 2) or (s == C2 + 2 and not OQ)) else ())
        a += stamp(f"g{s}")
        if s == C2: a += check("k_sw", FW, VF, True) + stamp("w1")
        if s == PC: a += check("k_so", VF-1, VF, True) + stamp("op")
        if s != PC and s in (OFS, -1 if OQ else C2 + 2, WB, XB_, MG + 1, RL + 2 if OPT["xw"] == 2 else -1): a("s_barrier")
        ls = []; n = len(M)
        for x in plan.get(s, []):
            if OPT["xw"] == 2 and x != 13 and x - NA == RL - 1: assert s > RL
        for x in plan.get(s, []): assert (SL[x][1] < 2 or s >= C2) and (x - s <= 3 or (x == 13 and s > C2 + 3))
        v = sum((ldA(x) for x in plan.get(s, [])), [])
        if s == C2: v = ol + ql + v
        if s == OFS: v = flag("s64") + v
        if s == XF: v = flag("s72") + v
        if s == XP: assert s > PC; v = xpoll + v
        if s == PO: v = poll(VF-1, VF, "op", "s55") + v
        if s == OPT["pp2"]: v = poll(FW, VF, "p2", "s55") + v
        if late.get(s): ls.append((late[s], 0, n - 1))
        if s in OPT["xs"]: v += sum([ldX[i] for i, x in enumerate(OPT["xs"]) if x == s], [])
        if psched.get(s): v += st.take(psched[s])
        if osched.get(s): v += ldO(no, osched[s]); no += osched[s]
        ls.append((v, 0, n - 2))
        if OQ:
            if s == C2 + 1: ls += [(osum, OQ, OQ + 1), (L("s_waitcnt lgkmcnt(0)\ns_barrier"), OQ + 4, OQ + 4), (ogat, OQ + 5, min(OQ + 10, 19))]
        else:
            if s == C2 + 1: ls.append((osum, 16, 19))
            if s == C2 + 2: ls.insert(0, (ogat, 0, 10))
        if s == OM + 1: ls.append((ofin[0] + ofin[1], 1, 19))
        if s == OPT["xr"]: assert s < RL and s != OFS and s > OM + 1; ls.insert(0, (rdX, 0, 8))
        if OPT["xw"] == 0:
            if s == RL: ls += [(xw[:5], 10, 14), (xw[5:10], 15, 19)]
            if s == RL + 1: ls += [(xw[10:], 0, 5), (L("s_waitcnt lgkmcnt(0)\ns_barrier"), 9, 9), (xr, 10, 19)]
            if s == RL + 2: ls.append((xa[:OPT["xcut"]], 0, n - 1))
            if s == RL + 3: ls.append((xa[OPT["xcut"]:], 0, n - 1))
        else:
            if OPT["xw"] == 1:
                if s == RL: ls.append((xw[:4], 9, 19))
                if s == RL + 1: ls.append((xw[4:11], 0, 19))
                if s == RL + 2: ls += [(xw[11:], 0, 9), (L("s_waitcnt lgkmcnt(0)\ns_barrier"), 12, 12), (xr, 13, 19)]
            else:
                if s == RL - 1: ls.append((xw[:3], 12, 19))
                if s == RL: ls.append((xw[3:10], 0, 19))
                if s == RL + 1: ls.append((xw[10:], 0, 14))
                if s == RL + 2: ls.append((xr, 0, 14))
            if s == RL + 3:
                a += L("s_waitcnt lgkmcnt(0)") + [";@align on"] + [f"  v_pk_add_f32 {vr(GR+2*i,2)}, {vr(GR+2*i,2)}, {vr(GR+20+20*j+2*i,2)}" for j in range(3) for i in range(10)] + [";@align off"]
                ls.append(([x for x in xa if "v_add_f32" not in x], 0, n - 1))
        if s > MG: ls.append((wr_[5*(s-MG-1):5*(s-MG)], 2, n - 1))
        if s == OPT["xup"]: assert s >= XB_; ls.append((xu, 0, n - 1))
        if WB <= MG + 2:
            if s >= MG + 2: ls.append((rdB(s - MG - 2), 0, n - 2))
        elif s == MG + 3: ls.append((rdB(0) + rdB(1), 0, n - 2))
        a += place(M, ls)
        if s == OM: a += W("Q", "*") + stamp("om") + place(om, [(st.take(OPT["pom"]), 0, 15)])
    a += stamp("gend")
    E = G + 20
    VB = []
    for j in range(3):
        for i in range(10): VB.append(f"  v_pk_add_f32 {vr(G+2*i,2)}, {vr(G+2*i,2)}, {vr(G+20+20*j+2*i,2)}")
    VC = []
    for i in range(10): VC += [f"  v_lshlrev_b32 v{RP+2*i}, 16, v{GA+i}", f"  v_and_b32 v{RP+2*i+1}, 0xffff0000, v{GA+i}"]
    VC += [f"  v_pk_add_f32 {vr(G+2*i,2)}, {vr(G+2*i,2)}, {vr(RP+2*i,2)}" for i in range(10)]
    VC += [f"  v_pk_mul_f32 {vr(E+2*i,2)}, {vr(G+2*i,2)}, s[30:31]" for i in range(10)]
    VA = [f"  v_add_f32 v{G+i}, v{G+i}, v{G+20+20*j+i}" for j in range(3) for i in range(20)]
    V = []
    V += [f"  v_exp_f32 v{E+i}, v{E+i}" for i in range(20)]
    V += [f"  v_add_f32 v{E+i}, 1.0, v{E+i}" for i in range(20)]
    V += [f"  v_rcp_f32 v{E+i}, v{E+i}" for i in range(20)]
    V += [f"  v_mul_f32 v{G+i}, v{G+i}, v{E+i}" for i in range(20)]
    V0 = OPT["v0"]; RB = OPT["rb"]; LK = NB - 1; P0 = MG + 4
    V1 = OPT["v1"]; pa = -(-60//(V1 - V0))
    cost = [8 if ("exp" in x or "rcp" in x) else 4 for x in V]; tot = sum(cost); parts = [[] for _ in range(20 - V1)]; c_ = 0
    for x, c in zip(V, cost): parts[min(len(parts) - 1, c_*len(parts)//tot)].append(x); c_ += c
    for s in range(20):
        wg = [g for g, st_ in wtr.items() if st_ == s]
        for g in wg: assert s + LK <= 4*g and wdone(g)
        a += W([f"O{s}"] + [f"wo{g}" for g in wg] + (["XS"] if P0 + s == XF else []) + (["xp"] if P0 + s == XC else []) + (["XL"] if s == V1 else []), [f"b{s}"] + (["w"] if s == RB else []) + (["r"] if s == V0 else []))
        if s == RB or wg: a("s_barrier")
        a += stamp(f"s{s}")
        if P0 + s == XC: a += check("k_sx", VF-1, VF) + stamp("xc")
        if s == V1: a += [";@align on"] + VC + [";@align off"]
        M = [f"  v_mfma_f32_16x16x32_bf16 {vr(SA+4*t)}, {sb(s,t)}, {ar(4*s)}, {'0' if s == 0 else vr(SA+4*t)}" for t in range(5)]
        ls = []
        if s + LK < 20: ls.append((rdB(s+LK), 0, 4))
        v = []
        if P0 + s == XF: v += flag("s72")
        if P0 + s == XP: v += xpoll
        if P0 + s == XC: v += xl
        if psched.get(P0 + s): v += st.take(psched[P0 + s])
        if osched.get(P0 + s): v += ldO(no, osched[P0 + s]); no += osched[P0 + s]
        ls.append((v, 0, 4))
        if s == 0: ls.append((L(f"s_mov_b32 s30, {LOG2E|0x80000000}\ns_mov_b32 s31, {LOG2E|0x80000000}"), 0, 4))
        if RB <= s < RB + 3: ls.append((rd_[5*(s-RB):5*(s-RB)+5], 0, 4))
        if V0 <= s < V1: ls.append((VA[(s-V0)*pa:(s-V0+1)*pa], 0, 4))
        if s >= V1: ls.append((parts[s-V1], 0, 4))
        a += place(M, ls)
    assert no == 20 and not st.items, (no, st.items)
    a += stamp("send")
    for t in range(5):
        for i in range(2): a(f"v_pk_fma_f32 {vr(SA+4*t+2*i,2)}, {vr(SA+4*t+2*i,2)}, {vr(G+4*t+2*i,2)}, {vr(XU+4*t+2*i,2)}")
        for i in range(2): a(f"v_cvt_pk_bf16_f32 v{XB+2*t+i}, v{SA+4*t+2*i}, v{SA+4*t+2*i+1}")
        a(f"ds_write_b64 v243, {vr(XB+2*t,2)} offset:{32*t}")
    a(";@align off\ns_waitcnt lgkmcnt(0)")
    for i in range(3): a(f"ds_read_b128 {vr(E+4*i)}, v{240+i}")
    for i in range(3): a(f"s_waitcnt lgkmcnt({2-i})\nbuffer_store_dwordx4 {vr(E+4*i)}, v{XA[i]}, s[4:7], s48 offen")
    a += stamp_out()
    return resolve(a)

HEADER = """; One persistent launch, one workgroup per CU (generated by my own script, fully unrolled).
; phase 1: 192x160 tiles of x @ [wqkv | w1]; LayerNorm is folded into the epilogue (row mean / rstd, column sums);
;          side jobs: row statistics, column sums, repacking of w2 / wo into MFMA fragment order;
;          epilogues: silu -> h, phi -> pq, phi(k)^T [v | 1] -> kv / z (float atomics).
;          out = x + s * silu(gate).
; Hand-offs: write-through stores, wait, then a flag word holding this launch's tag (derived from ws[0]).
; Two spare workgroups race round trips to two 8 KB granules of d_ws to learn which is closer; the answer only
; kernarg: 0 x, 8 wqkv, 16 wo, 24 (unused), 32 w1, 40 w2, 48 out, 56 debug, 64 ws"""
def build():
    OUTL.clear()
    pro = prologue()
    br = L("s_cmp_lt_u32 s22, 8\ns_cbranch_scc1 k_kv")
    if OPT["pol"] == "race":
        br += L("s_cmp_eq_u32 s21, 11\ns_cbranch_scc1 k_race")
        OUTL("k_race:")
        if OPT["mv3"] < 1:
            OUTL("s_mov_b64 s[36:37], s[74:75]")
            OUTL.extend(d_misc())
        OUTL("s_waitcnt vmcnt(0)\ns_barrier")
        OUTL.extend(flag("s49"))
        OUTL(f"""
        s_cmp_lg_u32 s20, 0
        s_cbranch_scc1 k_race2
        s_cmp_eq_u32 s2, 2
        s_cbranch_scc1 k_race2
        s_mov_b32 s29, s2
        s_lshl_b32 s28, s29, 13
        s_add_u32 s28, s28, {RACE}
        v_lshlrev_b32 v6, 25, v7
        s_mov_b32 s56, s36
        s_and_b32 s57, s37, 0xffff
        s_mov_b32 s58, 256
        s_mov_b32 s59, 0x20000
        v_mov_b32 v3, 0
        buffer_atomic_add v3, v6, s[16:19], s28 offen sc0
        v_mov_b32 v1, 1
        s_mov_b32 s30, 12
        s_mov_b32 s31, 1
        s_waitcnt vmcnt(0)
        k_race0:
        buffer_atomic_add v1, v6, s[56:59], 0 offen offset:4 sc0
        s_sub_u32 s30, s30, 1
        s_waitcnt vmcnt(0)
        v_readfirstlane_b32 s38, v1
        v_mov_b32 v1, 0
        s_and_b32 s38, s38, 1
        s_cmp_eq_u32 s38, s31                ; first trip: odd = partner is there; later trips: even
        s_cselect_b32 s30, 0, s30
        s_mov_b32 s31, 0
        s_cmp_lg_u32 s30, 0
        s_cbranch_scc1 k_race0
        s_mov_b32 s30, {OPT['trips']}
        k_race1:
        v_mov_b32 v3, 0
        buffer_atomic_add v3, v6, s[16:19], s28 offen sc0
        s_sub_u32 s30, s30, 1
        s_cmp_lg_u32 s30, 0
        s_waitcnt vmcnt(0)
        s_cbranch_scc1 k_race1
        v_mov_b32 v3, 1
        buffer_atomic_add v3, v6, s[56:59], 0 offen sc0
        s_lshl_b32 s29, s29, 13
        s_xor_b32 s29, s29, s39
        s_waitcnt vmcnt(0)
        v_readfirstlane_b32 s30, v3
        v_mov_b32 v3, s29
        s_nop 0
        s_bitcmp0_b32 s30, 0
        s_cselect_b32 s28, {PW}, {OOB}
        buffer_store_dword v3, v6, s[16:19], s28 offen sc1
        k_race2:
        """)
        OUTL.extend((d_cs() if OPT["keep"] < 1 else []) + [f"  s_mov_b32 s{r}, {OOB}" for r in (61, 62, 63, 75, 80, 81, 82, 83)] + [f"  v_add_u32 v{L2B+i}, {2*STAGE}, v{LA+i}" for i in range(5)] + L("s_branch k_t_join"))
    items = [("B", i) for i in range(35)] + [("W", i) for i in range(25)]
    st_t = Stream(items); st_n = Stream(items)
    mt = g1_main("k_t", True, st_t)
    mt += L("s_waitcnt lgkmcnt(0)\ns_cmp_lt_u32 s22, 12\ns_cbranch_scc1 k_q")
    eq = epi_t("phi", Stream(st_t.items)); es = epi_t("silu", st_t)
    mn = g1_main("k_n", False, st_n)
    ek = epi_kv(st_n)
    assert st_n.items == st_t.items
    n0 = len(resolve(pro + br))
    a = resolve(pro + br + mt) + es + phase2(st_t) + L("s_endpgm\nk_q:") + eq + L("s_branch k_p2\nk_kv:") + resolve(pro + br + mn + ek)[n0:] + L("s_branch k_p2")
    a += L("k_end:\ns_endpgm") + OUTL
    body, added = haz.fix(a)
    body, nbytes, nn, npm = align.align([x.replace("CODE_KB", "40").replace("CODE_MAX", "44444") for x in body])
    kb = (nbytes + 1023)//1024; assert kb <= 64
    body = [x.replace("s_cmp_ge_u32 s28, 40", f"s_cmp_ge_u32 s28, {kb if OPT.get('cpf', 1) else 0}").replace("44444", str((nbytes - 16) & ~15)) for x in body]
    body = [re.sub(r"\s*;(#\S+|nocount|C)$", "", x) for x in body]
    print("instrs", len(body), "nops added", added, "bytes", nbytes, "align nops", nn, "promoted", npm, file=sys.stderr)
    if OPT.get("nost"): body = [x for x in body if not ("buffer_store_dwordx4" in x and "s[76:79]" in x)]
    if OPT.get("cyc"): body = [x.replace("s_memrealtime", "s_memtime") for x in body]
    out = ["; @launch grid=(256,1,1) block=(256,1,1) lds=163840", HEADER,
           '.amdgcn_target "amdgcn-amd-amdhsa--gfx950"\n.text', khead(NAME)] + body
    if DIAG: out.append(";ST " + " ".join(OPT["st"][:7]) + "\n;OPTS " + " ".join(x for x in sys.argv[3:] if not x.startswith("st=")))
    out.append('.section .rodata,"a"\n.p2align 6\n' + kd(NAME, 512, 256, 102))
    return "\n".join(out) + "\n"
if __name__ == "__main__":
    for x in sys.argv[2:]:
        if x == "d": DIAG = True
        else:
            k, v = x.split("=", 1); OPT[k] = eval(v)
    src = build()
    open(sys.argv[1], "w").write(src)
```

```python
import sys, re
from asmlib import kd, khead
import haz, align

NAME = "recurrent_scan__linear_attn_block__dense_activation_silu__prompt_kernel"
S, D, F = 2048, 640, 1728
FA = 0x8000
FP = 0xF0000
FPD = 0x9000 - 144*128
FO = 0x38000
NEGM = 0x10000; RSTD = 0x12000
CSP = 0x14000
KVP   = 0x40000
PG = 1 << 21
PW = 0xC8000
RACE = 0xC0000
WPP = 1
HOF = 74*16384; HSZ = 27*16384
QPP = 9; QSZ = 10*16384
GXP = 13
WS_USED = 15*PG
TS = 0x1F00000
def blk(dst, rb, kind, t0, t1):
    sh, pg, msk, sz, of = (1, WPP, 1, HSZ, HOF) if kind == "h" else (2, QPP, 3, 2*QSZ, QSZ if kind == "o" else 0)
    return L(f"""
    s_and_b32 s{t0}, s{rb}, 15
    s_lshr_b32 s{t0}, s{t0}, {sh}
    s_add_u32 s{t0}, s{t0}, {pg}
    s_lshr_b32 s{t1}, s{rb}, 4
    s_xor_b32 s{t1}, s{t1}, s{t0}
    s_and_b32 s{t1}, s{t1}, 1
    s_lshl_b32 s{t1}, s{t1}, {12 if OPT["mode"] in ("cols", "none") else 13}
    s_lshl_b32 s{t0}, s{t0}, 21
    s_add_u32 s{t0}, s{t0}, s{t1}
    s_and_b32 s{t1}, s{rb}, {msk}
    s_mul_i32 s{t1}, s{t1}, {sz}
    s_add_u32 s{t0}, s{t0}, s{t1}
    s_add_u32 s{dst}, s{t0}, {of}
    """)
def cell(dst, idx, t0):
    return L(f"s_lshr_b32 s{t0}, s{idx}, 1\ns_lshl_b32 s{t0}, s{t0}, 14\ns_and_b32 s{dst}, s{idx}, 1\ns_lshl_b32 s{dst}, s{dst}, {13 if OPT['mode'] in ('cols', 'none') else 12}\ns_add_u32 s{dst}, s{dst}, s{t0}")
LOG2E = 0x3fb8aa3b
OOB = 0x40000000
STAGE = 45056; WOFF = 24576; SPARE = 3*STAGE
AUXC = SPARE; AUXM = SPARE + 6400
CSL = SPARE + 8192
PACKL = SPARE
KVX = SPARE + 10240
RED = 102400
DIAG = False
OPT = dict(spin=200000, pkd=0, pkr=4, pks={5: 2, 6: 3}, flagb=4, nodd=4, dfirst=4, d1st=4, dlast=54, flagb_n=2, pollb=6,
           pf_t={15:5,16:7,17:5,18:7,19:7}, pf_n={15:4,16:6,17:4,18:6,19:6}, epi_n=[6, 5, 5, 5, 5, 0], kv_first=0,
           epi=[5, 3, 3, 3, 2, 3, 2], oq=9, f1blk=4, f1pos=2, gap1=4, poll_early=1, c2=2, pom=0,
           slots=[("r",0),("r",1),("o",0),("o",1),("r",2),("r",3),("r",4),("r",5),("r",6),("o",2),("o",3),("o",4),("o",5),("o",6)],
           aplan={0:[3],2:[4],3:[5,6],4:[7],5:[8],6:[9],7:[10],8:[11,13],9:[12]},
           mg=11, wb=12, xr=6, rb=1, burst=1, su1=95, su2=200, pe1=260, pp2=0,
           psched={0:2,1:2}, xs=[1, 1, 1], ofs=7, po=10, pc=12, xcut=44, xf=14, xp=17, xc=21, v1=11,
           osched={12:4,13:4,14:4,15:2,16:2,17:2,19:2}, xw=2, xup=9, pairs=[0, 2, 4, 7, 9], ch2=1, cpf0=2, mv3=2, nbuf=3, v0=5, nopk=1, adist=3, p2map=1, su_pre=200, su_pre_n=160, sleep=2, rot=0, snake=1, krot=0, fash=4, wtrail={}, wrow=1, wfirst=0, sufirst=0, keep=2, swarm=0, touch=1, slin=0, head=2, w1first=0, cmaj=0, pol="race", mode="rows", trips=8, cpf2=12,
           st=["eend", "w1", "g11", "op", "gend", "s5", "send"])

class A(list):
    def __call__(self, s):
        for x in s.strip("\n").split("\n"):
            x = x.strip()
            m = re.match(r"s_cselect_b32 (s\d+), (\d+|0x[0-9a-f]+), (\d+|0x[0-9a-f]+)\s*(;.*)?$", x)
            if m and int(m.group(2), 0) > 64 and int(m.group(3), 0) > 64:
                self.append(f"  s_mov_b32 {m.group(1)}, {m.group(3)}")
                x = f"s_cselect_b32 {m.group(1)}, {m.group(2)}, {m.group(1)}"
            if x: self.append(("" if x.endswith(":") else "  ") + x)
        return self
def L(s): return list(A()(s))
def stamp(name):
    if not DIAG: return []
    if name == "entry": i = 0
    elif name in OPT["st"][:7]: i = 1 + OPT["st"].index(name)
    else: return []
    return [f"  s_memrealtime s[{84+2*i}:{85+2*i}]"]
def stamp_out():
    if not DIAG: return []
    if OPT.get("echo") is not None:
        i = OPT["echo"]
        return L(f"""
        s_waitcnt vmcnt(0)
        s_memrealtime s[100:101]
        s_waitcnt lgkmcnt(0)
        s_sub_u32 s28, s{84+2*i}, s84
        s_cmp_gt_u32 s28, 4000
        s_cselect_b32 s28, 0, s28
        s_add_u32 s28, s28, 5000
        k_echo:
        s_memrealtime s[30:31]
        s_waitcnt lgkmcnt(0)
        s_sub_u32 s29, s30, s84
        s_cmp_lt_u32 s29, s28
        s_cbranch_scc1 k_echo
        """)
    r = L(f"""
    s_waitcnt vmcnt(0)
    s_memrealtime s[100:101]
    s_waitcnt lgkmcnt(0)
    s_lshl_b32 s28, s2, 2
    s_add_u32 s28, s28, s20
    s_lshl_b32 s28, s28, 6
    s_add_u32 s28, s28, {TS}
    v_mov_b32 v1, s28
    """)
    for i in range(9): r += [f"  v_mov_b32 v3, s{84+2*i}", f"  global_store_dword v1, v3, s[26:27] offset:{4*i if i < 8 else 48}"]
    r += ["  v_mov_b32 v3, s22", "  global_store_dword v1, v3, s[26:27] offset:60"]
    r += ["  s_getreg_b32 s28, hwreg(HW_REG_XCC_ID)", "  s_and_b32 s28, s28, 15", "  v_mov_b32 v3, s28", "  global_store_dword v1, v3, s[26:27] offset:56"]
    return r
def vr(b, n=4): return f"v[{b}:{b+n-1}]" if n > 1 else f"v{b}"
def ar(b, n=4): return f"a[{b}:{b+n-1}]" if n > 1 else f"a{b}"
def srd(d, lo, nbytes):
    return L(f"s_mov_b32 s{d}, s{lo}\ns_and_b32 s{d+1}, s{lo+1}, 0xffff\ns_mov_b32 s{d+2}, {nbytes}\ns_mov_b32 s{d+3}, 0x20000")
def isvm(x): return x.strip().startswith(("buffer_", "global_"))
def islg(x): return x.strip().startswith("ds_")
def tag(lines, t): return [x + f" ;#{t}" if (isvm(x) or islg(x)) else x for x in lines]
def W(vm=(), lg=()):
    vm = [vm] if isinstance(vm, str) else list(vm); lg = [lg] if isinstance(lg, str) else list(lg)
    return [f"  ;WAIT vm={','.join(vm)} lg={','.join(lg)}"]
def resolve(lines):
    out = []; vm = []; lg = []
    for x in lines:
        t = x.strip()
        if t.startswith(";MARK"):
            nm = t.split()[1]; vm.append(("m", nm)); lg.append(("m", nm)); continue
        if t.startswith(";WAIT"):
            m = re.match(r";WAIT vm=(\S*) lg=(\S*)", t); parts = []
            for names, hist, cn, mx in ((m.group(1), vm, "vmcnt", 63), (m.group(2), lg, "lgkmcnt", 15)):
                if not names: continue
                names = names.split(",")
                if names == ["*"]: parts.append(f"{cn}(0)"); continue
                idx = [i for i, h in enumerate(hist) if h[1] in names]
                for nme in names: assert any(h[1] == nme for h in hist), ("unknown tag", nme)
                n = sum(1 for h in hist[max(idx)+1:] if h[0] == "o")
                parts.append(f"{cn}({min(n, mx)})")
            out.append("  s_waitcnt " + " ".join(parts)); continue
        tg = re.search(r";#(\S+)", t); nm = tg.group(1) if tg else None
        kind = "n" if ";nocount" in t else "o"
        if isvm(x): vm.append((kind, nm))
        elif islg(x): lg.append((kind, nm))
        out.append(x)
    return out
def glue(lines):
    out = []; cur = []
    for x in lines:
        t = x.strip()
        if cur and not t.startswith(("s_cselect", "s_addc", "s_cbranch", "s_mov_b32")) and not t.endswith(":"):
            out.append(cur); cur = []
        if t.startswith(("s_cmp", "s_bitcmp")) or cur or (t.startswith("s_add_u32") and ";C" in t): cur.append(x)
        else: out.append([x])
    if cur: out.append(cur)
    return out
def place(M, lists):
    gaps = [[] for _ in M]
    for items, g0, g1 in lists:
        if not items: continue
        items = glue(items); n = g1 - g0 + 1
        for k, x in enumerate(items): gaps[g0 + k*n//len(items)] += x
    out = []
    for m, g in zip(M, gaps): out += [m] + g
    return out
def inter(main, groups, first=0):
    main = glue(main); out = []; n = len(main); G = len(groups); gi = 0
    for i, x in enumerate(main):
        while gi < G and i >= first + gi*(n - first)//G: out += groups[gi]; gi += 1
        out += x
    while gi < G: out += groups[gi]; gi += 1
    return out
def grp(lines, k):
    out = []; cur = []
    for x in lines:
        if isvm(x) and sum(map(isvm, cur)) == k:
            tail = []
            while cur and not isvm(cur[-1]): tail.insert(0, cur.pop())
            out.append(cur); cur = tail
        cur.append(x)
    if cur: out.append(cur)
    return out
OUTL = A()
def check(tg, vaddr, vdst, lead=False):
    if lead: a = L(f"v_cmp_ne_u32 vcc, s39, v{vdst}\ns_nop 1\ns_and_b64 vcc, vcc, s[56:57]\ns_cbranch_scc1 {tg}_slow\n{tg}_ok:\ns_barrier")
    else: a = L(f"v_cmp_ne_u32 vcc, s39, v{vdst}\ns_nop 1\ns_cmp_lg_u64 vcc, 0\ns_cbranch_scc1 {tg}_slow\n{tg}_ok:")
    OUTL(f"""
    {tg}_slow:
    s_mov_b32 s38, {OPT['spin']}
    {tg}_again:
    s_sleep {OPT.get('sleep', 4)}
    buffer_load_dword v{vdst}, v{vaddr}, s[16:19], 0 offen sc1
    s_sub_u32 s38, s38, 1
    s_cmp_eq_u32 s38, 0
    s_cbranch_scc1 {tg}_ok
    s_waitcnt vmcnt(0)
    v_cmp_ne_u32 vcc, s39, v{vdst}
    s_nop 1
    s_cmp_lg_u64 vcc, 0
    s_cbranch_scc1 {tg}_again
    s_branch {tg}_ok
    """)
    return a
def poll(vaddr, vdst, t, so="0"): return [f"  buffer_load_dword v{vdst}, v{vaddr}, s[16:19], {so} offen sc1 ;#{t}"]
def flag(soff, r=None):
    d, o = (3, 6) if r is None else (r, r + 1)
    return L(f"v_mov_b32 v{d}, s39\nv_lshlrev_b32 v{o}, 25, v7\nbuffer_store_dword v{d}, v{o}, s[16:19], {soff} offen sc1")

ACC = 8; CS = 128; AB = [148, 172]; BB = [196, 216]; VX = 236; VW = 242; LA = 247; LB = 249; VF = 255
L2B = CS
ONES = 240
def acc(T, t): return ACC + (T*5 + t)*4
def bw(c, ks, t, n=4, o=0):
    return vr(BB[ks] + 4*t + o, n) if c % 2 == 0 else ar(140 + 20*ks + 4*t + o, n)
def g1_mfma(k, tr):
    M = []; c = k//2; i = 0
    for T in range(3*(k & 1), 3*(k & 1) + 3):
        for t in (range(5) if T % 2 == 0 else range(4, -1, -1)):
            for n, ks in enumerate((0, 1) if i % 2 == 0 else (1, 0)):
                x = vr(AB[ks] + 4*T); w = bw(c, ks, t); d = vr(acc(T, t))
                p, q = (w, x) if tr else (x, w)
                M.append(f"  v_mfma_f32_16x16x32_bf16 {d}, {p}, {q}, {'0' if (c == 0 and n == 0) else d}")
            i += 1
    return M
def g1_cs():
    return [f"  v_mfma_f32_16x16x32_bf16 {vr(CS+4*t)}, {ar(ONES)}, {bw(0, ks, t)}, {'0' if ks == 0 else vr(CS+4*t)}" for t in range(5) for ks in range(2)]
def rd_w(c):
    st = c % 3; lb, so = (LB, st*STAGE) if st < 2 else (L2B + 2, 0); R = []
    for t in range(5):
        for ks in range(2):
            base = lb + (2 if t == 4 else (t & 1)); off = so + ks*10240 + (64 if t in (2, 3) else 0)
            R += [f"  ds_read_b64_tr_b16 {bw(c,ks,t,2)}, v{base} offset:{off}", f"  ds_read_b64_tr_b16 {bw(c,ks,t,2,2)}, v{base} offset:{off+1280}"]
    return tag(R, f"w{c}")
def rd_x(c, T):
    st = c % 3; la, so = (LA, st*STAGE) if st < 2 else (L2B, 0)
    return tag([f"  ds_read_b128 {vr(AB[ks]+4*T)}, v{la+ks} offset:{so+T*2048}" for ks in range(2)], f"x{c}_{T}")
def dma_x(c):
    so = (c % 3)*STAGE; Dm = []
    for j in range(6):
        if j in (0, 4): Dm.append(f"  s_add_u32 m0, s40, {so + 1024*j}")
        Dm.append(f"  buffer_load_dwordx4 v{VX+j}, s[8:11], s42 offen offset:{1024*(j%4)} lds")
    return tag(Dm, f"c{c}")
def dma_w(c):
    so = (c % 3)*STAGE; Dm = []
    for j in range(5):
        if OPT["wrow"]:
            if j in (0, 4): Dm.append(f"  s_add_u32 m0, s41, {so + 1024*j}")
            Dm.append(f"  buffer_load_dwordx4 v{VW+j}, s[12:15], s43 offen offset:{1024*(j%4)}{' nt' if (c == 0 and OPT.get('wnt')) else ''} lds")
            continue
        Dm.append(f"  s_add_u32 m0, s41, {so + 1024*j}")
        Dm.append(f"  buffer_load_dwordx4 v{VW+j}, s[12:15], s43 offen lds")
    return tag(Dm, f"c{c}")
def dma_next(c):
    if OPT.get("lock") == 2:
        return L(f"s_cmp_eq_u32 s54, 0\ns_cselect_b32 s44, {c}, {(c + 5) % 10}\ns_lshl_b32 s42, s44, 7\ns_mul_i32 s43, s44, s45")
    if OPT["krot"]:
        first = "s_mov_b32 s44, s67" if c == 1 else "s_add_u32 s44, s44, 1\ns_cmp_eq_u32 s44, 10\ns_cselect_b32 s44, 0, s44"
        return L(first + f"""
        s_cmp_eq_u32 s44, s54
        s_addc_u32 s44, s44, 0
        s_cmp_eq_u32 s44, 10
        s_cselect_b32 s44, 0, s44
        s_lshl_b32 s42, s44, 7
        s_mul_i32 s43, s44, s45""")
    return L(f"s_cmp_le_u32 s54, {c-1}\ns_cselect_b32 s44, {c}, {c-1}\ns_lshl_b32 s42, s44, 7\ns_mul_i32 s43, s44, s45")
def breg(s, t): return ar(s*20 + 4*t)
def bstream(i0, n):
    out = []
    for i in range(i0, i0 + n):
        s, t = divmod(i, 5)
        if t == 0 or i == i0:
            out.append(f"  s_add_u32 s68, s46, {8*16384*s}")
            if s == 6: out += L(f"s_cmp_lt_u32 s20, 3\ns_cselect_b32 s68, s68, {OOB}")
        if t < 4: out.append(f"  buffer_load_dwordx4 {breg(s,t)}, v4, s[16:19], s68 offen offset:{1024*t} sc1 ;#B{s}")
        else: out.append(f"  buffer_load_dwordx4 {breg(s,t)}, v5, s[16:19], s68 offen sc1 ;#B{s}")
    return out
class Stream:
    def __init__(self, items): self.items = list(items)
    def take(self, n):
        it, self.items = self.items[:n], self.items[n:]
        assert len(it) == n
        out = []; k = 0
        while k < len(it):
            j = k
            while j + 1 < len(it) and it[j+1] == (it[j][0], it[j][1] + 1): j += 1
            out += (bstream if it[k][0] == "B" else wo_dma)(it[k][1], j - k + 1); k = j + 1
        return out
def wo_dma(i0, n):
    out = []
    for i in range(i0, i0 + n):
        j, t = divmod(i, 5)
        if t in (0, 4) or i == i0: out += [f"  s_add_u32 m0, s69, {20480*j + (4096 if t == 4 else 0)}", f"  s_add_u32 s71, s70, {65536*j}"]
        out.append(f"  buffer_load_dwordx4 v{4 if t < 4 else 5}, s[16:19], s71 offen offset:{1024*(t%4)} sc1 lds ;#wo{j}")
    return out
PRODS = [(0,3),(0,4),(1,3),(1,4),(1,5),(2,3),(2,4),(2,5)]
KVOF = [240, 241, 242, 243, 244, 245, 246, 255]

def setup_s():
    return L(f"""
    s_cmp_lt_u32 s22, 12
    s_cselect_b32 s83, {LOG2E}, {LOG2E | 0x80000000}
    s_mul_i32 s76, s21, 3
    s_add_u32 s76, s76, s51
    s_add_u32 s77, s76, 1
    """) + blk(80, 76, "h", 28, 29) + blk(81, 77, "h", 28, 29) + blk(78, 76, "q", 28, 29) + blk(79, 77, "q", 28, 29) + L(f"""
    s_cmp_lt_u32 s22, 12
    s_cselect_b32 s80, s78, s80
    s_cselect_b32 s81, s79, s81
    s_cmp_ge_u32 s76, 32
    s_cselect_b32 s80, {OOB}, s80
    s_cmp_ge_u32 s77, 32
    s_cselect_b32 s81, {OOB}, s81
    s_lshl_b32 s28, s51, 11
    s_add_u32 s82, s81, s28              ; row tile 4
    s_add_u32 s29, s80, 2048
    s_add_u32 s80, s80, s28              ; row tile 0
    s_cmp_eq_u32 s51, 0
    s_cselect_b32 s81, s29, s81          ; row tile 2
    s_mul_i32 s61, s23, 5
    s_mul_i32 s28, s52, 3
    s_add_u32 s62, s61, s28
    s_add_u32 s63, s62, 1
    s_add_u32 s61, s61, 2
    s_lshl_b32 s28, s23, 1
    s_add_u32 s28, s28, s52
    s_add_u32 s29, s28, 22
    s_add_u32 s30, s23, 43
    s_cmp_lt_u32 s22, 12
    s_cselect_b32 s62, s62, s28
    s_cselect_b32 s63, s63, s29
    s_cselect_b32 s61, s61, s30
    s_cselect_b32 s75, {OOB}, {FPD}
    s_cmp_eq_u32 s63, 43
    s_cselect_b32 s63, {OOB >> 13}, s63
    """) + cell(62, 62, 28) + cell(63, 63, 28) + cell(61, 61, 28) + L(f"""
    s_lshl_b32 s28, s52, 9
    s_add_u32 s61, s61, s28
    s_add_u32 s75, s75, s67
    """)
def setup_t():
    return L(f"""
    v_add_u32 v{VX}, s62, v4
    v_add_u32 v{VX+1}, s63, v4
    v_and_b32 v3, 1, v2
    v_lshlrev_b32 v3, 10, v3
    v_lshrrev_b32 v254, 1, v2
    v_lshl_add_u32 v3, v254, 8, v3
    v_lshl_add_u32 v3, v1, 4, v3
    v_add_u32 v{VX+2}, s61, v3
    v_mov_b32 v{VX+4}, 0x358637bd
    v_mov_b32 v{VX+5}, 0x358637bd
    """)
def setup_n0():
    a = A()
    a(f"""
    v_and_b32 v1, 15, v7
    v_lshrrev_b32 v2, 4, v7
    v_cmp_gt_u32 s[32:33], 8, v1
    s_cmp_eq_u32 s21, 10
    s_cselect_b32 s36, s51, 0
    s_lshl_b32 s37, s22, 1
    s_add_u32 s37, s37, s52
    s_lshl_b32 s37, s37, 12
    s_add_u32 s37, s37, {KVP}
    s_lshl_b32 s60, s20, 12
    s_add_u32 s60, s60, {KVX}
    v_and_b32 v254, 31, v7
    v_add_u32 v254, 224, v254
    """)
    for n, (kx, vy) in enumerate(PRODS):
        eoff = {3: -8, 4: 8, 5: 24}[vy]; o = 252
        a(f"""
        v_add_u32 v3, {4*kx}, v2
        v_cmp_le_u32 vcc, 5, v3
        v_add_u32 v{o}, {eoff}, v1
        v_cmp_gt_u32 s[62:63], 10, v3
        v_cndmask_b32 v253, 0, 20, vcc
        v_sub_u32 v{o}, v{o}, v253
        """)
        if vy == 3: a(f"v_cmp_eq_u32 vcc, 0, v1\nv_cndmask_b32 v253, v{o}, 0, vcc\nv_cndmask_b32 v{o}, v{o}, 20, vcc\nv_cmp_gt_u32 vcc, 20, v253")
        else: a(f"v_cmp_gt_u32 vcc, 20, v{o}")
        a(f"""
        v_mad_u32_u24 v{o}, v3, 21, v{o}
        s_and_b64 vcc, vcc, s[62:63]
        v_cndmask_b32 v{o}, v254, v{o}, vcc
        v_lshl_add_u32 v{o}, v{o}, 4, s60
        v_accvgpr_write_b32 a{244+n}, v{o}
        """)
    return list(a)
def setup_n():
    return L(f"s_mov_b32 s30, {LOG2E}\ns_mov_b32 s31, {LOG2E}") + [f"  v_accvgpr_read_b32 v{KVOF[n]}, a{244+n}" for n in range(8)]

def g1_main(tg, tr, st):
    a = A()
    pf = OPT["pf_t"] if tr else OPT["pf_n"]
    a += W("c0"); a("s_barrier"); a += stamp("k0")
    mv = OPT["keep"]; assert mv == 2 and OPT["mv3"] == 2
    def spread(items, ks):
        g = glue(items); return {k: sum(g[i*len(g)//len(ks):(i+1)*len(g)//len(ks)], []) for i, k in enumerate(ks)}
    if tr:
        dfr = spread((d_misc() if OPT["mv3"] < 1 else []) + (setup_s() if OPT["mv3"] < 2 else []), [4, 5, 6, 7, 8, 9, 10, 11, 12] if OPT["mv3"] < 1 else [6, 7, 8, 9, 10, 11, 12])
        if mv < 2: dfr[2] = d_pack_dst()
    else: dfr = spread((d_touch() if OPT["touch"] == 1 else []) + (d_misc() if OPT["mv3"] < 1 else []), [2, 3, 4] if OPT["mv3"] < 1 else [2])
    PKD, PKR, PKS = (OPT["pkd"], OPT["pkr"], OPT["pks"]) if tr else (None, None, {})
    pk_d = []
    for i in range(5):
        pk_d += [f"  s_add_u32 m0, s53, {896*i}", f"  buffer_load_dwordx4 v252, s[56:59], s55 offen offset:{128*i} {'nt ' if OPT.get('pknt', 1) else ''}lds ;#pk"]
    pk_r = []
    for t in range(5):
        if t: pk_r += L(f"s_cmp_eq_u32 s20, {4-t}\ns_cselect_b32 s28, 896, 0\nv_add_u32 v1, s28, v1\nv_add_u32 v2, s28, v2")
        pk_r += [f"  ds_read_b64_tr_b16 {ar(16+4*t,2)}, v1 offset:{32*t}", f"  ds_read_b64_tr_b16 {ar(18+4*t,2)}, v2 offset:{32*t}"]
    pk_s = [f"  buffer_store_dwordx4 {ar(16+4*t)}, v{4 if t < 4 else 5}, s[16:19], s{60 if c == 0 else 53} offen offset:{1024*(t%4)} sc1 ;#ps" for t in range(5) for c in range(2 if OPT["mode"] == "dup" else 1)]
    pk_r.append("  s_add_u32 s53, s60, 8192")
    cs_st = L(f"""
    v_cmp_le_u32 vcc, 16, v7
    v_cmp_le_u32 s[28:29], 32, v7
    v_cmp_le_u32 s[30:31], 48, v7
    v_cndmask_b32 v{CS+17}, v{CS}, v{CS+4}, vcc
    v_cndmask_b32 v{CS+17}, v{CS+17}, v{CS+8}, s[28:29]
    v_cndmask_b32 v{CS+17}, v{CS+17}, v{CS+12}, s[30:31]
    buffer_store_dword v{CS+17}, v253, s[16:19], s64 offen sc1 ;#cs
    buffer_store_dword v{CS+16}, v254, s[16:19], s64 offen sc1 ;#cs
    """) + [f"  v_add_u32 v{L2B+i}, {2*STAGE}, v{LA+i}" for i in range(5)]
    auxa = L(f"""
    v_lshlrev_b32 v3, 4, v0
    v_add_u32 v252, s74, v3
    v_add_u32 v253, 4096, v252
    v_cmp_le_u32 vcc, 144, v0
    v_add_u32 v3, s65, v3
    v_cmp_le_u32 s[28:29], s66, v0
    v_cndmask_b32 v253, v253, v3, vcc
    v_add_u32 v3, {RSTD - NEGM - 768}, v3
    v_cmp_le_u32 vcc, 240, v0
    v_cndmask_b32 v253, v253, v3, s[28:29]
    v_mov_b32 v3, {OOB}
    v_cndmask_b32 v253, v253, v3, vcc
    v_and_b32 v1, 15, v7
    v_lshrrev_b32 v2, 4, v7
    """)
    polx = [f"  s_xor_b32 s{r}, s{r}, s3" for r in ((46, 70, 80, 81, 82) if OPT["mode"] == "dup" else (80, 81, 82))]
    aux = L(f"""
    s_mov_b32 m0, s72
    s_nop 0
    buffer_load_dwordx4 v252, s[16:19], 0 offen sc1 lds ;#aux
    s_add_u32 m0, s72, 4096
    s_nop 0
    buffer_load_dwordx4 v253, s[16:19], 0 offen sc1 lds ;#aux
    """) + flag("s73")
    y1 = L(f"v_lshlrev_b32 v252, 2, v0\nv_add_u32 v252, {AUXC}, v252") + tag([f"  ds_read_b32 v{CS+i}, v252 offset:{640*i}" for i in range(10)], "y1")
    y2 = [f"  v_add_f32 v{CS}, v{CS}, v{CS+i}" for i in range(1, 10)] + [f"  ds_write_b32 v252, v{CS} offset:{CSL-AUXC} ;#y2"]
    rd = L("s_mul_i32 s28, s51, 384\ns_add_u32 s28, s28, %d" % AUXM)
    if tr:
        rd += L(f"v_lshlrev_b32 v6, 4, v2\nv_add_u32 v252, s34, v6\nv_add_u32 v253, s35, v6\nv_lshl_add_u32 v3, v1, 2, s28")
        rd += [f"  ds_read_b128 {vr(CS+4*t)}, v252 offset:{64*t}" for t in range(4)] + [f"  ds_read_b128 {vr(CS+16)}, v253"]
        for T in range(6): rd += [f"  ds_read_b32 v{212+4*T}, v3 offset:{64*T}", f"  ds_read_b32 v{212+4*T+1}, v3 offset:{768+64*T}"]
    else:
        rd += L(f"v_lshlrev_b32 v6, 2, v1\nv_add_u32 v252, s34, v6\nv_lshl_add_u32 v3, v2, 4, s28")
        rd += [f"  ds_read_b32 v{CS+4*t}, v252 offset:{64*t}" for t in range(5)]
        for T in range(6): rd += [f"  ds_read_b128 {vr(196+4*T)}, v3 offset:{64*T}"]
        for T in range(6): rd += [f"  ds_read_b128 {vr(220+4*T if T < 5 else AB[0])}, v3 offset:{768+64*T}"]
    su = setup_t() if tr else setup_n()
    e0 = glue(setup_n0()); early = {} if tr else {6 + 2*i: sum(e0[i*len(e0)//4:(i+1)*len(e0)//4], []) for i in range(4)}
    nb = 0; fb, pb = (OPT["flagb"] if tr else OPT["flagb_n"]), OPT["pollb"]; nps = 0
    def xrows(c, off):
        return [(sum((rd_x(c, T) for T in range(1, 6)), []), 0, off + 13), (W(lg=f"x{c}_1"), off + 9, off + 9), (W(lg=f"x{c}_2"), off + 19, off + 19)]
    a += rd_w(0) + rd_x(0, 0) + W(lg="w0")
    a += place(g1_cs() + g1_mfma(0, tr), xrows(0, 10) + [(W(lg="x0_0"), 9, 9), (dma_x(2) + dma_w(2) + (pk_d if tr else []), 0, 38), (cs_st, 24, 38), (dma_next(3), 39, 39)])
    NO = OPT["nodd"]
    for k in range(1, 20):
        c = (k - 1)//2
        M = g1_mfma(k, tr)
        ls = []
        if k & 1:
            if c == pb and tr: a("k_t_join:")
            a += W(lg=[f"x{c}_5"] + (["y2"] if k == 19 else []) + (["pr"] if k - 1 == PKR else []))
            a += [M.pop(0), M.pop(0)]
            vm = [f"c{c+1}"] if c < 9 else []
            if c == fb: vm += ["cs", "ss"] + (["ps"] if tr else [])
            if k + 1 == PKR: vm += ["pk"]
            if c == pb + 1: vm += ["pa"]
            if c == 8: vm += ["aux"]
            if vm: a += W(vm)
            if c == pb + 1: a += check(tg + "_sa", 6, VF)
            a("s_barrier")
            if c == 0: a += stamp("b0")
            if c == 7: a += stamp("tail")
            a += stamp(f"b{c}") if c > 0 else []
            if c == fb: ls.append((flag("s49"), 0, 2))
            if c == pb: ls.append((L(f"v_lshlrev_b32 v6, {OPT['fash']}, v0\nv_add_u32 v6, {FA}, v6") + poll(6, VF, "pa"), 0, 2))
            if OPT["pol"] != "race":
                if c == pb + 1: ls.append((polx, 0, 2))
            else:
                assert OPT["mode"] == "rows"
                if c == 7: ls.append((L(f"v_mov_b32 v{CS+18}, {PW}\nbuffer_load_dword v{CS+19}, v{CS+18}, s[16:19], 0 offen sc1 ;#aux"), 0, 1))
                if c == 8:
                    pwl = [(L(f"v_readfirstlane_b32 s3, v{CS+19}\ns_xor_b32 s3, s3, s39"), 22, 23),
                           (L(f"s_and_b32 s38, s3, {~8192 & 0xffffffff}\ns_cbranch_scc1 {tg}_pw\n{tg}_pwr:"), 24, 24), (polx, 25, 27)]
                    ls += pwl
                    OUTL(f"""
                    {tg}_pw:
                    s_mov_b32 s40, {OPT['spin']}
                    {tg}_pw1:
                    s_sleep 4
                    buffer_load_dword v{CS+19}, v{CS+18}, s[16:19], 0 offen sc1
                    s_waitcnt vmcnt(0)
                    v_readfirstlane_b32 s3, v{CS+19}
                    s_sub_u32 s40, s40, 1
                    s_xor_b32 s3, s3, s39
                    s_and_b32 s38, s3, {~8192 & 0xffffffff}
                    s_cselect_b32 s38, s40, 0
                    s_and_b32 s3, s3, 8192
                    s_cmp_lg_u32 s38, 0
                    s_cbranch_scc1 {tg}_pw1
                    s_branch {tg}_pwr
                    """)
            if c == 7: ls.append(([x for x in aux], 0, 2))
            pos = []
            if c + 3 <= 9:
                g0 = OPT["d1st"] if (tr and k == 1) else OPT["dfirst"]
                for i, g in enumerate(grp(dma_x(c+3) + dma_w(c+3), 1)):
                    p = g0 + i*(OPT["dlast"] - g0)//10
                    if len(g) > 1: pos.append((g[:-1], p - 1))
                    pos.append((g[-1:], p))
            ls += [(x, p, p) for x, p in pos if p < 28]
            if k < 19: ls.insert(0, (rd_x(c + 1, 0) + rd_w(c + 1), 0, 21))
            else: ls.insert(0, (rd, 0, 22))
        else:
            a += W(lg=[f"w{c+1}"])
            ls += xrows(c + 1, 0)
            ls += [(x, p - 28, p - 28) for x, p in pos if p >= 28]
            if c + 4 <= 9: ls.append((dma_next(c + 4), 27, 29))
            if k == PKR: ls.append((tag(pk_r, "pr"), 8, 26))
            if c == 6: ls.append((auxa, 15, 28))
            if c == 8: ls += [(y1, 0, 9), (W(lg="y1") + y2, 15, 25)]
        if PKS.get(k): ls.append((pk_s[nps:nps+PKS[k]], 2, 27 if nps + PKS[k] < len(pk_s) else 18)); nps += PKS[k]
        if k == 16: ls.append((su, 18, 28))
        if k in early: ls.append((early[k], 4, 28))
        if k in dfr: ls.append((dfr[k], 0 if k == 2 else 6, 28))
        if k == OPT["cpf2"]:
            ls.append((L(f"v_add_u32 v{CS+8}, s50, v4\nv_min_u32 v{CS+8}, CODE_MAX, v{CS+8}\ns_cmp_gt_u32 s50, CODE_MAX\ns_cbranch_scc1 {tg}_c2\nglobal_load_dwordx4 {vr(CS+12)}, v{CS+8}, s[0:1] ;nocount\n{tg}_c2:"), 29 - (k & 1), 29 - (k & 1)))
        if pf.get(k):
            assert c > pb
            assert all(x[0] == "B" for x in st.items[:pf[k]])
            ls.append((st.take(pf[k]), 3, 27))
        a += place(M, ls)
    a += stamp("lend")
    return a

def stats_math():
    a = A(); src = 8; tmp = 20; ac = 44
    for i in range(12):
        a(f"v_lshlrev_b32 v{tmp+2*i}, 16, v{src+i}\nv_and_b32 v{tmp+2*i+1}, 0xffff0000, v{src+i}")
    a(f"v_pk_add_f32 {vr(ac,2)}, {vr(tmp,2)}, {vr(tmp+2,2)}")
    for i in range(2, 12): a(f"v_pk_add_f32 {vr(ac,2)}, {vr(ac,2)}, {vr(tmp+2*i,2)}")
    def red():
        a(f"v_add_f32 v{ac}, v{ac}, v{ac+1}")
        for r in (8, 4, 2, 1): a(f"v_add_f32_dpp v{ac}, v{ac}, v{ac} row_ror:{r} row_mask:0xf bank_mask:0xf")
        a(f"v_mov_b32 v{ac+1}, v{ac}\nv_permlane16_swap_b32 v{ac}, v{ac+1}\nv_add_f32 v{ac}, v{ac}, v{ac+1}")
    red()
    a(f"v_mul_f32 v46, 0xbacccccd, v{ac}")
    a(f"v_cndmask_b32 v47, 0, v46, s[32:33]")
    for i in range(8): a(f"v_pk_add_f32 {vr(tmp+2*i,2)}, {vr(tmp+2*i,2)}, v[46:47] op_sel_hi:[1,0]")
    for i in range(8, 12): a(f"v_pk_add_f32 {vr(tmp+2*i,2)}, {vr(tmp+2*i,2)}, v[46:47] op_sel:[0,1] op_sel_hi:[1,1]")
    a(f"v_pk_mul_f32 {vr(ac,2)}, {vr(tmp,2)}, {vr(tmp,2)}")
    for i in range(1, 12): a(f"v_pk_fma_f32 {vr(ac,2)}, {vr(tmp+2*i,2)}, {vr(tmp+2*i,2)}, {vr(ac,2)}")
    red()
    a(f"""
    v_mov_b32 v{ac+1}, 0x3727c5ac
    v_fmac_f32 v{ac+1}, 0x3acccccd, v{ac}
    v_rsq_f32 v{ac+1}, v{ac+1}
    v_and_b32 v48, 31, v7
    v_cmp_eq_u32 vcc, 0, v48
    v_lshrrev_b32 v49, 5, v7
    v_lshlrev_b32 v49, 2, v49
    v_cndmask_b32 v46, v{ac+1}, v46, vcc
    v_lshl_add_u32 v49, v48, 13, v49
    v_cmp_gt_u32 vcc, 2, v48
    v_mov_b32 v50, {OOB}
    s_lshl_b32 s28, s48, 3
    s_add_u32 s28, s28, {NEGM}
    v_cndmask_b32 v49, v50, v49, vcc
    buffer_store_dword v46, v49, s[16:19], s28 offen sc1 ;#ss
    """)
    return list(a)

def prologue():
    a = A()
    a += stamp("entry")
    a(f"""
    s_load_dwordx16 s[60:75], s[0:1], 0
    s_load_dwordx2 s[26:27], s[0:1], 64
    s_cmp_ge_u32 s2, 256
    s_cbranch_scc1 k_end
    """)
    if OPT.get("cpf0"):
        a(f"""
        s_getpc_b64 s[36:37]
        s_cmp_ge_u32 s2, {8*OPT["cpf0"]}
        s_cbranch_scc1 k_nocp0
        s_lshr_b32 s3, s2, 3
        s_lshl_b32 s3, s3, 12
        v_lshl_add_u32 v1, v0, 4, s3
        global_load_dwordx4 v[132:135], v1, s[36:37] offset:0 ;nocount
        k_nocp0:
        """)
    a(f"""
    s_and_b32 s3, s2, 7
    s_lshl_b32 s3, s3, 5
    s_lshr_b32 s21, s2, 3
    s_add_u32 s3, s3, s21                ; lin
    s_mul_i32 s35, {"s3" if OPT["slin"] else "s2"}, 10240
    v_lshrrev_b32 v1, 5, v0
    v_mul_u32_u24 v1, {1280-512}, v1
    v_lshl_add_u32 v52, v0, 4, v1
    v_and_b32 v1, 16, v0
    v_lshl_add_u32 v53, v1, 26, v52      ; lanes whose third piece is past the row: out of range
    s_mov_b32 s10, {S*D*2}
    s_mov_b32 s11, 0x20000
    """)
    ld = L("s_waitcnt lgkmcnt(0)\ns_mov_b32 s8, s60\ns_and_b32 s9, s61, 0xffff") + stamp("karg")
    for j in range(3): ld.append(f"  buffer_load_dwordx4 {vr(8+4*j)}, v{53 if j == 2 else 52}, s[8:11], s35 offen offset:{512*j} ;#sl")
    if OPT["head"] == 0: a += ld
    a(f"""
    s_getpc_b64 s[36:37]
    v_cmp_eq_u32 s[32:33], 0, v1
    v_lshrrev_b32 v1, 6, v0
    v_and_b32 v7, 63, v0                 ; lane
    v_readfirstlane_b32 s20, v1          ; wave
    s_lshr_b32 s23, s3, 5
    s_min_u32 s23, s23, 2
    s_sub_u32 s23, s3, s23
    s_cmp_lt_u32 s3, 118
    s_cselect_b32 s28, 1, 116
    s_cselect_b32 s29, 13108, 10923
    s_cselect_b32 s30, 5, 6
    s_cselect_b32 s31, 0, 5
    s_sub_u32 s28, s23, s28
    s_mul_i32 s22, s28, s29
    s_lshr_b32 s22, s22, 16
    s_mul_i32 s30, s22, s30
    s_sub_u32 s21, s28, s30
    s_add_u32 s21, s21, s31              ; rb
    s_cmp_lt_u32 s2, 3
    s_cselect_b32 s21, 11, s21
    s_min_u32 s54, s21, 9                ; start chunk
    """)
    if OPT.get("lock") == 1: a("s_mov_b32 s54, 0")
    if OPT.get("lock") == 2: a("s_cmp_lt_u32 s21, 6\ns_cselect_b32 s54, 0, 5")
    if OPT.get("lock") == 3: a("s_lshr_b32 s54, s54, 1\ns_lshl_b32 s54, s54, 1")
    a(f"""
    """)
    xa = A()
    xa(f"""
    s_lshl_b32 s28, s21, 2
    s_add_u32 s28, s28, s20
    s_mul_i32 s28, s28, {48*1280}
    v_lshrrev_b32 v1, 3, v7              ; r8
    v_lshrrev_b32 v2, 1, v1
    v_and_b32 v3, 7, v7
    v_xor_b32 v2, v2, v3
    v_mul_u32_u24 v1, 1280, v1
    v_lshl_add_u32 v252, v3, 4, v1
    v_add_u32 v1, s28, v1
    v_lshl_add_u32 v{VX}, v2, 4, v1
    v_xor_b32 v2, 4, v2
    v_lshl_add_u32 v6, v2, 4, v1
    """)
    for j in range(1, 6): xa(f"v_add_u32 v{VX+j}, {j*10240 - 1024*(j%4)}, v{6 if j & 1 else VX}")
    xa("s_mul_i32 s40, s20, 6144\ns_lshl_b32 s42, s54, 7")
    wa = A()
    wa(f"""
    s_sub_u32 s28, 22, s22
    s_cmp_lt_u32 s3, 118
    s_cselect_b32 s22, s22, s28
    s_mul_i32 s28, s22, 43
    s_lshr_b32 s28, s28, 8               ; g = p/6
    s_mul_i32 s29, s28, 6
    s_sub_u32 s29, s22, s29              ; r
    s_mul_i32 s30, s28, 3
    s_add_u32 s30, s30, s29
    s_add_u32 s30, s30, 9                ; w1: 12+3g+r-3
    s_lshl_b32 s31, s28, 1
    s_add_u32 s31, s31, s29
    s_sub_u32 s31, s31, 1                ; kv: 2g+r-1
    s_add_u32 s28, s28, 8                ; q
    s_cmp_lt_u32 s29, 3
    s_cselect_b32 s22, s31, s30
    s_cmp_eq_u32 s29, 0
    s_cselect_b32 s22, s28, s22
    s_cmp_lt_u32 s2, 3
    s_cselect_b32 s22, 12, s22
    s_cmp_lt_u32 s22, 12
    s_cselect_b32 s12, s62, s68
    s_cselect_b32 s13, s63, s69
    s_cselect_b32 s14, {D*3*D*2}, {D*F*2}
    s_cselect_b32 s50, 3840, 3456        ; W row stride
    s_cselect_b32 s28, 8, 12
    s_and_b32 s13, s13, 0xffff
    s_mov_b32 s15, 0x20000
    s_lshl_b32 s45, s50, 6
    s_sub_u32 s23, s22, s28
    s_mul_i32 s29, s23, 320
    s_mul_i32 s30, s22, 160
    s_add_u32 s30, s30, 1280
    s_cmp_lt_u32 s22, 8
    s_cselect_b32 s29, s30, s29
    s_cselect_b32 s30, 1200, 0
    s_cselect_b32 s31, -80, 0
    s_lshl_b32 s28, s20, 4
    s_mul_i32 s28, s28, s50
    s_add_u32 s29, s29, s28
    s_mul_i32 s41, s20, 5120
    s_add_u32 s41, s41, {WOFF}
    s_mul_i32 s43, s54, s45
    s_movk_i32 s28, -20
    v_xor_b32 v54, 2, v7                 ; rows 8..15 swap adjacent 32-byte units
    v_lshrrev_b32 v55, 4, v7
    v_and_b32 v55, 2, v55
    v_xor_b32 v55, v55, v7
    """)
    dw = grp(dma_w(0), 1); wj = []
    for jj in range(5):
        src = 7 if jj < 2 else 55 if jj == 2 else 54
        b = A()
        if jj: b(f"v_add_u32 v1, {64*jj}, v{src}")
        q = 1 if jj else 7
        b(f"""
        v_mul_u32_u24 v2, 3277, v{q}
        v_lshrrev_b32 v2, 16, v2
        v_mad_i32_i24 v3, v2, s28, v{q}
        v_mul_u32_u24 v2, s50, v2
        v_lshl_add_u32 v2, v3, 4, v2
        v_mul_u32_u24 v3, 205, v3
        v_bfe_u32 v1, v3, 10, 1
        v_lshrrev_b32 v3, 11, v3
        v_mad_u32_u24 v2, v1, s30, v2
        v_mad_i32_i24 v2, v3, s31, v2
        v_add_u32 v{VW+jj}, s29, v2
        """)
        if jj < 3: b("s_sub_u32 s29, s29, 1024")
        if jj == 3: b("s_add_u32 s29, s29, 3072")
        wj.append(list(b))
    if OPT["wfirst"]:
        a += wa
        for jj in range(5): a += wj[jj] + dw[jj]
        a += stamp("w0i") + xa
        first = grp(dma_x(0), 1)
    else:
        if OPT["head"] == 0: a += xa + dma_x(0) + wa + sum(wj, [])
        elif OPT["head"] == 1: a += xa + ld + dma_x(0) + wa + sum(wj, [])
        elif OPT["head"] == 2: a += wa[:20] + ld + xa + dma_x(0) + wa[20:] + sum(wj, [])
        elif OPT["head"] == 4: a += wa[:20] + xa + ld + dma_x(0) + wa[20:] + sum(wj, [])
        elif OPT["head"] == 5:
            ptr = [x for x in wa if re.match(r"\s*s_(cselect|and)_b32 s1[23],", x)]
            a += xa + [x for x in wa if x not in ptr] + ld + dma_x(0) + L("s_cmp_lt_u32 s22, 12") + ptr + sum(wj, [])
        elif OPT["head"] == 3: a += xa + ld[:3] + wa + sum(wj, []) + ld[3:] + dma_x(0)
        first = dw
    a(f"""
    s_load_dword s39, s[26:27], 0
    v_lshlrev_b32 v4, 4, v7
    s_lshl_b32 s48, {"s3" if OPT["slin"] else "s2"}, 2
    s_add_u32 s48, s48, s20              ; stats job
    s_and_b32 s36, s36, 0xffffff00
    s_lshr_b32 s28, s2, 3
    s_lshl_b32 s29, s20, 5
    s_add_u32 s28, s28, s29
    s_add_u32 s28, s28, 2
    s_mov_b64 s[0:1], s[36:37]
    s_lshl_b32 s50, s28, 10
    s_cmp_ge_u32 s28, CODE_KB
    s_cbranch_scc1 k_nocp
    v_add_u32 v1, s50, v4
    v_min_u32 v1, CODE_MAX, v1
    global_load_dwordx4 v[128:131], v1, s[0:1] ;nocount
    k_nocp:
    """)
    su = A()
    su += srd(16, 26, WS_USED)
    su(f"""
    s_lshr_b32 s51, s20, 1               ; wr
    s_and_b32 s52, s20, 1                ; wc
    v_lshrrev_b32 v59, 4, v7             ; g
    v_bfe_u32 v56, v7, 2, 2              ; rr
    v_and_b32 v57, 3, v7                 ; c4
    v_and_b32 v58, 1, v59                ; g&1
    v_and_b32 v3, 15, v7                 ; m
    v_lshrrev_b32 v6, 1, v3
    v_xor_b32 v6, v6, v59
    s_mul_i32 s28, s51, 12288
    v_lshl_add_u32 v55, v3, 7, s28
    v_lshl_add_u32 v{LA}, v6, 4, v55
    v_xor_b32 v6, 4, v6
    v_lshl_add_u32 v{LA+1}, v6, 4, v55
    v_lshl_add_u32 v55, v59, 3, v56
    v_mul_u32_u24 v55, 320, v55
    v_lshl_add_u32 v55, v57, 3, v55
    v_add_u32 v55, {WOFF}, v55
    s_cmp_lt_u32 s22, 8
    s_cselect_b32 s34, 5, 6
    s_cselect_b32 s35, 9, 5
    s_cmp_eq_u32 s52, 0
    s_cselect_b32 s34, 0, s34
    s_cselect_b32 s35, 4, s35
    s_add_u32 s30, s34, 1
    """)
    for i, sreg in enumerate((34, 30, 35)):
        su(f"v_xor_b32 v6, s{sreg}, v58\nv_lshl_add_u32 v{LB+i}, v6, 5, v55")
    su(f"""
    v_mov_b32 v6, 0x3f803f80
    v_accvgpr_write_b32 a{ONES}, v6
    v_accvgpr_write_b32 a{ONES+1}, v6
    v_accvgpr_write_b32 a{ONES+2}, v6
    v_accvgpr_write_b32 a{ONES+3}, v6
    """)
    mv = OPT["keep"]
    if OPT["swarm"]:
        w = L(f"""
        s_lshl_b32 s28, s48, 3
        s_add_u32 s28, s28, {NEGM}
        s_load_dword s76, s[26:27], s28
        s_add_u32 s28, s28, {RSTD - NEGM}
        s_load_dword s77, s[26:27], s28
        s_lshl_b32 s28, s2, {OPT['fash']}
        s_add_u32 s28, s28, {FA}
        s_load_dword s78, s[26:27], s28
        """)
        if OPT["swarm"] > 1:
            w += L(f"""
            s_mul_i32 s28, s22, 10
            s_add_u32 s28, s28, s54
            s_mul_i32 s28, s28, 640
            s_mul_i32 s29, s20, 192
            s_add_u32 s28, s28, s29
            s_add_u32 s28, s28, {CSP}
            s_load_dword s79, s[26:27], s28
            s_add_u32 s28, s28, 64
            s_load_dword s80, s[26:27], s28
            s_add_u32 s28, s28, 64
            s_load_dword s81, s[26:27], s28
            """)
        su[:0] = w
    if mv >= 1: su += d_pack_src() + d_cs()
    if mv >= 2: su += d_pack_dst()
    assert mv == 2
    pe = glue(p2_early() + (L("s_mov_b64 s[36:37], s[74:75]") + d_misc() if OPT["mv3"] >= 1 else []) + (setup_s() if OPT["mv3"] >= 2 else [])); n1 = OPT["pe1"]
    su += sum(pe[:n1], [])
    a += inter(su, first, OPT["sufirst"])
    if OPT["pkd"] == -1:
        a("s_cmp_lt_u32 s22, 8\ns_cbranch_scc1 k_nopk")
        for i in range(5):
            a += [f"  s_add_u32 m0, s53, {896*i}", f"  buffer_load_dwordx4 v252, s[56:59], s55 offen offset:{128*i} {'nt ' if OPT.get('pknt', 1) else ''}lds ;nocount"]
        a("k_nopk:\n;MARK pk")
    a += stamp("c0i")
    a += dma_next(1)
    a += W("sl")
    a += stamp("sl")
    a += inter(sum(pe[n1:], []) + stats_math(), grp(dma_x(1) + dma_w(1), 1))
    a += dma_next(2)
    a("s_waitcnt lgkmcnt(0)\ns_mul_i32 s39, s39, 1664525\ns_add_u32 s39, s39, 1013904223")
    if OPT["touch"] == 2: a += [x.replace(f"v{CS+5}", "v60").replace(f"v{CS+6}", "v61").replace(f"v{CS+7}", "v62") for x in d_touch()]
    a += stamp("pend")
    return a

def d_pack_src():
    return L(f"""
    s_mul_i32 s36, s21, -15
    s_add_u32 s36, s36, s22
    s_add_u32 s36, s36, 142
    s_lshr_b32 s37, s36, 1               ; ks
    s_and_b32 s38, s36, 1
    s_cmp_lt_u32 s37, 54
    s_cselect_b32 s56, s70, s64
    s_cselect_b32 s57, s71, s65
    s_cmp_lt_u32 s37, 54
    s_cselect_b32 s58, {F*D*2}, {D*D*2}
    s_cmp_lt_u32 s37, 54
    s_cselect_b32 s28, 0, 54
    s_and_b32 s57, s57, 0xffff
    s_mov_b32 s59, 0x20000
    s_sub_u32 s28, s37, s28
    s_mul_i32 s28, s28, {32*1280}
    s_mul_i32 s29, s38, 640
    s_add_u32 s55, s28, s29
    s_mul_i32 s29, s20, 10240
    s_add_u32 s55, s55, s29              ; pack src (8 rows per wave)
    s_mul_i32 s53, s20, 5120
    s_add_u32 s53, s53, {PACKL}
    """)
def d_cs():
    return L(f"""
    s_lshl_b32 s34, s34, 6
    s_lshl_b32 s35, s35, 6
    v_lshl_add_u32 v253, v7, 2, s34
    v_lshl_add_u32 v254, v7, 2, s35
    v_and_b32 v6, 48, v7
    v_lshl_add_u32 v254, v6, 22, v254
    s_add_u32 s34, s34, {CSL}
    s_add_u32 s35, s35, {CSL}
    s_mul_i32 s62, s22, 6400
    s_add_u32 s62, s62, {CSP}
    s_mul_i32 s64, s21, 640
    s_add_u32 s64, s64, s62
    s_cmp_ge_u32 s21, 10
    s_cselect_b32 s64, {OOB}, s64
    s_cmp_eq_u32 s51, 1
    s_cselect_b32 s64, {OOB}, s64
    """)
def d_pack_dst():
    return L(f"""
    v_add_u32 v5, 4096, v4
    s_mul_i32 s28, s37, 205
    s_lshr_b32 s28, s28, 10              ; c
    s_mul_i32 s30, s28, 5
    s_sub_u32 s30, s37, s30              ; r
    s_lshl_b32 s29, s30, 3
    s_lshr_b32 s47, 0x01001600, s29      ; r -> 0, 22, -, 1
    s_and_b32 s47, s47, 255
    s_cmp_eq_u32 s30, 4
    s_cselect_b32 s47, 23, s47
    s_lshl_b32 s29, s28, 1
    s_add_u32 s47, s47, s29
    s_add_u32 s28, s28, 43
    s_cmp_eq_u32 s30, 2
    s_cselect_b32 s31, 1, 0
    s_cselect_b32 s47, s28, s47
    s_cmp_ge_u32 s37, 54
    s_cselect_b32 s31, 1, s31
    s_cselect_b32 s47, s37, s47          ; storage index
    s_lshl_b32 s28, 5120, s31            ; per g>>1
    s_mul_i32 s29, s31, 4608
    s_add_u32 s29, s29, 512              ; per g&1
    s_mul_i32 s30, s31, -9728
    s_add_u32 s30, s30, 10240
    v_lshrrev_b32 v3, 5, v7
    v_mul_u32_u24 v1, s28, v3
    v_bfe_u32 v3, v7, 4, 1
    v_mad_u32_u24 v1, v3, s29, v1
    v_bfe_u32 v3, v7, 2, 2
    v_lshl_add_u32 v1, v3, 7, v1
    v_and_b32 v3, 3, v7
    v_lshl_add_u32 v1, v3, 3, v1
    s_mul_i32 s28, s20, 1056
    s_add_u32 s28, s28, {PACKL}
    v_add_u32 v1, s28, v1
    v_add_u32 v2, s30, v1
    s_lshl_b32 s28, s38, 2
    s_add_u32 s28, s28, s20              ; ct
    s_add_u32 s28, s28, {WPP}
    s_lshl_b32 s28, s28, 21
    s_lshl_b32 s29, s47, 14
    s_add_u32 s28, s28, s29
    s_bfe_u32 s29, s47, 0x10001
    s_mul_i32 s29, s29, {3072 + 8192}
    s_add_u32 s28, s28, s29
    s_cmp_ge_u32 s36, 148
    s_cselect_b32 s60, {OOB}, s28
    """)
def d_touch():
    r = CS + 8
    return L(f"""
    s_mul_i32 s28, s22, 11
    s_add_u32 s28, s28, s21
    s_lshl_b32 s28, s28, 2
    s_add_u32 s28, s28, s20              ; index 0..351
    s_not_b32 s30, s39
    s_sub_u32 s29, s28, 96
    s_cmp_lt_u32 s29, 64
    s_cselect_b32 s30, 0, s30
    v_mov_b32 v{r}, s30
    v_mov_b32 v{r+1}, s30
    v_mov_b32 v{r+2}, s30
    v_mov_b32 v{r+3}, s30
    s_lshl_b32 s29, s28, 10
    s_cmp_lt_u32 s28, 64
    s_cselect_b32 s30, {FP}, {FO - 64*1024}
    s_add_u32 s29, s29, s30
    s_lshl_b32 s30, s28, 15
    s_add_u32 s30, s30, {GXP*PG + 3072 - 160*32768}
    s_cmp_lt_u32 s28, 160
    s_cselect_b32 s29, s29, s30
    s_cselect_b32 s30, 0, 3968
    v_lshrrev_b32 v{r-1}, 3, v7
    v_mad_u32_u24 v{r-1}, v{r-1}, s30, v4
    buffer_store_dwordx4 {vr(r)}, v{r-1}, s[16:19], s29 offen sc1 ;#ss
    """)
def d_misc():
    return L(f"""
    s_lshl_b32 s49, s2, {OPT['fash']}
    s_add_u32 s49, s49, {FA}
    s_cmp_eq_u32 s20, 0
    s_cselect_b32 s49, s49, {OOB}        ; A flag (wave 0)
    v_add_u32 v5, 4096, v4
    """) + srd(4, 72, S*D*2) + L(f"""
    s_mul_i32 s74, s22, 6400
    s_add_u32 s74, s74, {CSP}
    s_add_u32 s73, s2, s20
    s_cmp_eq_u32 s73, 0
    s_cselect_b32 s73, 0, {OOB}          ; epoch word (wg0 wave0)
    s_and_b32 s24, s2, 6
    s_lshl_b32 s24, s24, 2
    s_lshr_b32 s28, s2, 5
    s_add_u32 s24, s24, s28              ; row group of phase 2
    s_bfe_u32 s25, s2, 0x20003
    s_and_b32 s28, s2, 1
    s_lshl_b32 s28, s28, 2
    s_add_u32 s25, s25, s28              ; column tile of phase 2
    s_add_u32 s29, s25, {WPP}
    s_lshl_b32 s29, s29, 21
    s_and_b32 s47, s24, 1
    s_lshl_b32 s28, s20, 1
    s_add_u32 s47, s47, s28              ; first storage index of this wave: 2*wave + parity
    s_lshl_b32 s28, s47, 14
    s_add_u32 s46, s29, s28
    s_mul_i32 s28, s52, {3072 + 8192}
    s_add_u32 s46, s46, s28              ; B stream first
    s_lshl_b32 s28, s20, 14
    s_add_u32 s70, s29, s28
    s_mul_i32 s28, s51, {3072 + 8192}
    s_sub_u32 s70, s70, s28
    s_add_u32 s70, s70, {54*16384 + 3072 + 8192} ; wo src
    s_mul_i32 s69, s20, 5120             ; wo lds base
    s_lshl_b32 s72, s20, 10
    s_add_u32 s72, s72, {AUXC}
    s_mul_i32 s65, s21, 768
    s_add_u32 s65, s65, {NEGM - 144*16}
    s_movk_i32 s66, 192
    s_mul_i32 s67, s22, 12
    s_add_u32 s67, s67, s21
    s_lshl_b32 s67, s67, 7
    s_add_u32 s67, s67, {FP}
    s_cmp_eq_u32 s20, 0
    s_cselect_b32 s67, s67, {OOB}
    """)

def zipw(*ls):
    keyed = []
    for li, l in enumerate(ls):
        for j, x in enumerate(l): keyed.append(((j + 0.5)/len(l), li, j, x))
    keyed.sort(key=lambda t: t[:3])
    return [y for k in keyed for y in k[3]]
def epi_t(kind, st):
    RC = 212; PK = AB[1]; TMP = AB[0]
    e = A()
    for T in range(6):
        c = RC + 4*T
        e(f"v_mul_f32 v{c+2}, s83, v{c+1}")
        if kind == "silu": e(f"v_rcp_f32 v{c+3}, v{c+1}")
    blocks = [[(T, i) for T in Ts for i in idx] for idx in ((0, 1, 2, 3), (4, 5, 6, 7)) for Ts in ((0, 1), (2, 3), (4, 5))]
    blocks.append([(T, i) for T in range(6) for i in (8, 9)])
    nxt = lambda T: f"  s_mov_b32 s48, s{81 if T == 1 else 82}" if T in (1, 3) else "  s_add_u32 s48, s48, 1024"
    pend = []
    allld = grp(st.take(sum(OPT["epi"])), 1)
    for bi, blk in enumerate(blocks):
        V = []; n = len(blk)
        u = lambda k: acc(blk[k][0], 0) + 2*blk[k][1]
        c = lambda k: RC + 4*blk[k][0]
        for k in range(n): V.append(f"  v_pk_fma_f32 {vr(u(k),2)}, {vr(CS+2*blk[k][1],2)}, {vr(c(k),2)}, {vr(u(k),2)} op_sel_hi:[1,0,1]")
        for k in range(n): V.append(f"  v_pk_mul_f32 {vr(TMP+2*k,2)}, {vr(u(k),2)}, {vr(c(k)+2,2)} op_sel_hi:[1,0]")
        if kind == "silu":
            for k in range(2*n): V.append(f"  v_exp_f32 v{TMP+k}, v{TMP+k}")
            for k in range(n): V.append(f"  v_pk_fma_f32 {vr(TMP+2*k,2)}, {vr(TMP+2*k,2)}, {vr(c(k)+2,2)}, {vr(c(k)+2,2)} op_sel:[0,1,1] op_sel_hi:[1,1,1]")
            for k in range(2*n): V.append(f"  v_rcp_f32 v{TMP+k}, v{TMP+k}")
            fin = lambda k: f"  v_pk_mul_f32 {vr(u(k),2)}, {vr(u(k),2)}, {vr(TMP+2*k,2)}"
        else:
            for k in range(2*n): V.append(f"  v_exp_f32_e64 v{TMP+k}, v{TMP+k} clamp")
            for k in range(n): V.append(f"  v_pk_fma_f32 {vr(u(k),2)}, {vr(u(k),2)}, {vr(c(k),2)}, 1.0 op_sel:[0,1,0] op_sel_hi:[1,1,0]")
            for k in range(2*n): V.append(f"  v_max_f32 v{u(k//2)+(k&1)}, v{u(k//2)+(k&1)}, v{TMP+k}")
            fin = lambda k: f"  v_pk_add_f32 {vr(u(k),2)}, {vr(u(k),2)}, {vr(VX+4,2)}"
        items = pend + allld[sum(OPT["epi"][:bi]):sum(OPT["epi"][:bi+1])]
        if bi == OPT["f1blk"]: items.insert(len(pend) + OPT["f1pos"], W("sa") + L("s_barrier") + flag("s75") + stamp("f1"))
        ins = {}
        for k, x in enumerate(items): ins[5 + (k*(len(V) - 6)//len(items))//2*2] = x
        for i, v in enumerate(V):
            e.append(v)
            if i in ins: e += ins[i]
        p = PK + 12*(bi & 1); tg = " ;#sa" if bi < 3 else ""
        pend = []
        for q in range(n//4):
            for k in range(4*q, 4*q + 4): e.append(fin(k))
            for k in range(4*q, 4*q + 4): e(f"v_cvt_pk_bf16_f32 v{p+k}, v{u(k)}, v{u(k)+1}")
            if bi < 6:
                T = blk[4*q][0]
                stv = [f"  buffer_store_dwordx4 {vr(p+4*q)}, v{VX + bi//3}, s[16:19], s{80 + T//2} offen offset:{1024*(T & 1)} sc1{tg}"]
                if q == 0: e += stv
                else: pend.append(stv)
            else:
                e(f"v_permlane16_swap_b32 v{p+4*q}, v{p+4*q+2}\nv_permlane16_swap_b32 v{p+4*q+1}, v{p+4*q+3}")
                e(f"buffer_store_dwordx4 {vr(p+4*q)}, v{VX+2}, s[16:19], s{80 + q} offen sc1")
    return resolve(e)

def epi_kv(st):
    a = A()
    NM = 196; TMP = AB[0] + 4; FR = AB[1]; DD = ACC
    def RSf(T): return 220 + 4*T if T < 5 else AB[0]
    a(f"""
    v_mov_b32 v{TMP+12}, 0x358637bd
    v_mov_b32 v{TMP+13}, 0x358637bd
    v_mov_b32 v{TMP+14}, 0x3f803f80
    s_waitcnt lgkmcnt(0)
    """)
    allld = grp(st.take(sum(OPT["epi_n"])), 1)
    def kvm(P): return [f"  v_mfma_f32_16x16x32_bf16 {vr(DD+4*n)}, {vr(FR+4*kx)}, {vr(FR+4*vy)}, {'0' if P == 0 else vr(DD+4*n)}" for n, (kx, vy) in enumerate(PRODS)]
    for P in range(3):
        for h in range(2):
            T = 2*P + h; u0 = acc(T, 0); nm = NM + 4*T; rs = RSf(T); b = A()
            for t in range(5):
                for i in range(2):
                    r = u0 + 4*t + 2*i
                    b(f"v_pk_fma_f32 {vr(r,2)}, {vr(nm+2*i,2)}, {vr(CS+4*t,2)}, {vr(r,2)} op_sel_hi:[1,0,1]")
            for t in range(5):
                for i in range(2):
                    r = u0 + 4*t + 2*i
                    b(f"v_pk_mul_f32 {vr(r,2)}, {vr(r,2)}, {vr(rs+2*i,2)}")
            for i in range(6): b(f"v_pk_mul_f32 {vr(TMP+2*i,2)}, {vr(u0+2*i,2)}, s[30:31]")
            for i in range(12): b(f"v_exp_f32_e64 v{TMP+i}, v{TMP+i} clamp")
            for t in range(2, 5):
                for i in range(2): b(f"v_cvt_pk_bf16_f32 v{FR+4*(t+1)+2*h+i}, v{u0+4*t+2*i}, v{u0+4*t+2*i+1}")
            for i in range(2): b(f"v_cndmask_b32 v{FR+12+2*h+i}, v{FR+12+2*h+i}, v{TMP+14}, s[32:33]")
            for i in range(6): b(f"v_pk_add_f32 {vr(u0+2*i,2)}, {vr(u0+2*i,2)}, 1.0 op_sel_hi:[1,0]")
            for i in range(12): b(f"v_max_f32 v{u0+i}, v{u0+i}, v{TMP+i}")
            for i in range(6): b(f"v_pk_add_f32 {vr(u0+2*i,2)}, {vr(u0+2*i,2)}, {vr(TMP+12,2)}")
            for t in range(3):
                for i in range(2): b(f"v_cvt_pk_bf16_f32 v{FR+4*t+2*h+i}, v{u0+4*t+2*i}, v{u0+4*t+2*i+1}")
            n = OPT["epi_n"][T]
            a += inter(b, allld[sum(OPT["epi_n"][:T]):sum(OPT["epi_n"][:T+1])], 2) if n else b
        if P: a(f"s_cmp_eq_u32 s36, 1\ns_cbranch_scc1 k_kvs{P}")
        for n, (kx, vy) in enumerate(PRODS):
            d = vr(DD + 4*n)
            a(f"v_mfma_f32_16x16x32_bf16 {d}, {vr(FR+4*kx)}, {vr(FR+4*vy)}, {'0' if P == 0 else d}")
        if P: a(f"k_kvs{P}:")
    a += stamp("kvv")
    a(f"""
    s_mul_i32 s28, s51, 1792
    s_add_u32 s37, s37, s28
    s_lshl_b32 s29, s52, 12
    s_add_u32 s28, s28, s29
    s_add_u32 s28, s28, {KVX}
    v_lshlrev_b32 v2, 2, v7
    v_add_u32 v3, s28, v2
    s_cmp_eq_u32 s51, 0
    s_cselect_b32 s28, 64, 8
    v_cmp_gt_u32 vcc, s28, v7
    v_mov_b32 v6, {OOB}
    """)
    for n in range(8): a(f"ds_write_b128 v{KVOF[n]}, {vr(DD+4*n)}")
    a("v_cndmask_b32 v6, v6, v2, vcc\ns_waitcnt lgkmcnt(0)\ns_barrier")
    for n in range(7): a(f"ds_read2st64_b32 {vr(72+2*n,2)}, v3 offset0:{n} offset1:{32+n}")
    for n in range(7):
        a(f"s_waitcnt lgkmcnt({6-n})\nv_add_f32 v{72+2*n}, v{72+2*n}, v{73+2*n}")
        a(f"buffer_atomic_add_f32 v{72+2*n}, v{6 if n == 6 else 2}, s[16:19], s37 offen offset:{256*n}")
    a += stamp("kvs")
    return a

PARK = list(range(168, 184)) + [239, 238, 240, 241, 242, 251, 252, 253]
def p2_early():
    GA = 168; F1A = 239; FW = 238; XA = [251, 252, 253]
    h = L(f"""
    s_and_b32 s21, s2, 3
    s_lshl_b32 s21, s21, 2
    s_bfe_u32 s28, s2, 0x20003
    s_add_u32 s21, s21, s28              ; hp
    s_and_b32 s23, s2, 4
    s_lshl_b32 s23, s23, 1
    s_lshr_b32 s28, s2, 5
    s_add_u32 s23, s23, s28              ; rg
    s_and_b32 s24, s2, 6
    s_lshl_b32 s24, s24, 2
    s_add_u32 s24, s24, s28
    s_mul_i32 s54, s21, 5
    s_lshr_b32 s54, s54, 2
    s_mul_i32 s49, s20, 15360
    s_add_u32 s49, s49, {RED}
    s_and_b32 s28, s24, 30
    s_mul_i32 s35, s28, 21846
    s_lshr_b32 s35, s35, 16
    s_add_u32 s35, s35, 144              ; W1 lines of the first row block: (12+i)*12 + rb, lanes 0..10
    s_add_u32 s28, s28, 1
    s_mul_i32 s28, s28, 21846
    s_lshr_b32 s28, s28, 16
    s_add_u32 s28, s28, 12               ; second row block, lanes 11..21
    s_lshr_b32 s29, s21, 1
    s_mul_i32 s29, s29, 12
    s_sub_u32 s29, s29, 22
    s_lshl_b32 s30, s23, 1
    s_mul_i32 s31, s30, 21846
    s_lshr_b32 s31, s31, 16
    s_add_u32 s30, s30, 1
    s_mul_i32 s30, s30, 21846
    s_lshr_b32 s30, s30, 16
    s_lshr_b32 s34, s21, 2
    s_mul_i32 s34, s34, 12
    s_add_u32 s34, s34, 96
    s_add_u32 s31, s31, s34              ; Q line, first row block (lane 22)
    s_add_u32 s30, s30, s34              ; Q line, second row block (lanes 23..)
    v_min_u32 v1, 21, v7
    v_mad_u32_u24 v2, v1, 12, s35
    v_mad_u32_u24 v3, v1, 12, s28
    v_cmp_le_u32 vcc, 11, v7
    v_cndmask_b32 v2, v2, v3, vcc
    v_lshlrev_b32 v3, 7, v2
    v_add_u32 v{F1A}, {FP + FPD}, v3
    v_add_u32 v3, s29, v7
    v_cmp_le_u32 vcc, 22, v7
    v_cndmask_b32 v2, v2, v3, vcc
    v_mov_b32 v3, s31
    v_cmp_le_u32 vcc, 33, v7
    v_cndmask_b32 v2, v2, v3, vcc
    v_mov_b32 v3, s30
    v_cmp_le_u32 vcc, 34, v7
    v_cndmask_b32 v2, v2, v3, vcc
    v_lshlrev_b32 v2, 7, v2
    v_add_u32 v{FW}, {FP}, v2
    """)
    s2 = A()
    s2(f"""
    v_and_b32 v1, 15, v7                 ; i / m
    v_lshrrev_b32 v2, 4, v7              ; g
    v_lshrrev_b32 v3, 2, v1
    v_and_b32 v212, 3, v1
    v_lshl_add_u32 v6, v3, 3, v212
    v_cmp_le_u32 vcc, 20, v6
    v_cndmask_b32 v216, 0, 5, vcc
    v_lshlrev_b32 v220, 2, v216
    v_sub_u32 v220, v6, v220
    v_add_u32 v6, 4, v6
    v_cmp_le_u32 vcc, 20, v6
    v_cndmask_b32 v217, 0, 5, vcc
    v_lshlrev_b32 v221, 2, v217
    v_sub_u32 v221, v6, v221
    v_cmp_gt_u32 vcc, 8, v1
    v_cndmask_b32 v218, 64, 5, vcc
    v_add_u32 v222, 12, v1
    v_add_u32 v6, v3, v212
    v_cmp_le_u32 vcc, 3, v6
    v_cmp_le_u32 s[34:35], 2, v212
    s_or_b64 vcc, vcc, s[34:35]
    v_cndmask_b32 v219, 0, 5, vcc
    v_mov_b32 v223, 20
    v_mov_b32 v213, 255
    s_mov_b32 s37, {RED}
    """)
    for k in range(2):
        s2(f"""
        s_add_u32 s31, s54, {k}
        s_mul_i32 s32, s31, 205
        s_lshr_b32 s32, s32, 10
        s_mul_i32 s32, s32, 5
        s_sub_u32 s32, s31, s32
        s_cmp_eq_u32 s32, 2
        s_cselect_b32 s33, 1, 0
        s_cselect_b32 s36, 1, 4
        s_lshl_b32 s31, s31, 3
        s_mul_i32 s32, s21, 10
        s_sub_u32 s31, s31, s32
        v_lshlrev_b32 v3, s33, v2
        v_add_u32 v3, s31, v3
        """)
        for j in range(2):
            if j: s2("v_add_u32 v3, s36, v3")
            for tl in range(4):
                s2(f"""
                v_sub_u32 v212, v3, v{216+tl}
                v_cmp_gt_u32 vcc, 5, v212
                v_mad_u32_u24 v212, v3, 21, v{220+tl}
                v_cndmask_b32 v212, v213, v212, vcc
                v_lshl_add_u32 v{GA+tl*4+k*2+j}, v212, 3, s37
                """)
    fs = A()
    for i in range(3):
        fs(f"""
        v_add_u32 v6, {64*i}, v7
        v_mul_u32_u24 v1, 6554, v6
        v_lshrrev_b32 v1, 16, v1
        v_mul_u32_u24 v3, 1120, v1
        v_lshl_add_u32 v3, v6, 4, v3
        v_cmp_gt_u32 vcc, 160, v6
        v_add_u32 v1, v1, v6
        v_mov_b32 v6, {OOB}
        v_lshl_add_u32 v{240+i}, v1, 4, s49
        v_cndmask_b32 v{XA[i]}, v6, v3, vcc
        """)
    smap = {21: 76, 54: 77, 23: 78, 32: 80, 33: 81, 34: 82, 35: 83, 36: 46, 37: 47, 49: 25}
    vmap = {1: 64, 2: 65, 3: 66, 6: 67, 239: 184, 238: 185, 240: 186, 241: 187, 242: 188, 251: 189, 252: 190, 253: 191}
    out = []
    for x in h + s2 + fs:
        x = x.replace("s[34:35]", "s[82:83]")
        x = re.sub(r"\bs(\d+)\b", lambda m: f"s{smap.get(int(m.group(1)), int(m.group(1)))}", x)
        x = re.sub(r"\bv(\d+)\b", lambda m: f"v{vmap.get(int(m.group(1)), int(m.group(1)))}", x)
        out.append(x)
    return out + [f"  v_accvgpr_write_b32 a{204+i}, v{168+i}" for i in range(24)]

def phase2(st):
    a = A()
    G = 8; GR = 88; AR = 140; NA = 4; SA = 208; XB = 228; RP = 148
    AV = [244, 245, 246, 247]; RW = [248, 249, 250]; XA = [251, 252, 253]
    GA = 168; DB = 208; KA = 236; OA = 0; UA = 237; FW = 238
    g1 = OPT["gap1"]; psched = OPT["psched"]; wtr = OPT["wtrail"]; F1A = 239; OB = 235
    s1 = L(f"""
    s_cmp_eq_u32 s20, 0
    s_cselect_b32 s55, 0, {OOB}
    s_cselect_b64 s[56:57], -1, 0
    s_and_b32 s21, s2, 3
    s_lshl_b32 s21, s21, 2
    s_bfe_u32 s28, s2, 0x20003
    s_add_u32 s21, s21, s28              ; hp
    s_and_b32 s23, s2, 4
    s_lshl_b32 s23, s23, 1
    s_lshr_b32 s28, s2, 5
    s_add_u32 s23, s23, s28              ; rg
    v_accvgpr_read_b32 v{F1A}, a220
    v_accvgpr_read_b32 v{FW}, a221
    s_mul_i32 s54, s21, 5
    s_lshr_b32 s54, s54, 2               ; ksA
    s_lshl_b32 s60, s21, 12
    s_add_u32 s60, s60, {KVP}
    v_lshlrev_b32 v3, 4, v0
    v_cmp_gt_u32 vcc, 210, v0
    v_mov_b32 v6, {OOB}
    v_cndmask_b32 v{KA}, v6, v3, vcc
    s_lshl_b32 s76, s23, 1
    s_add_u32 s76, s76, s51
    """) + blk(63, 76, "q", 28, 29) + L(f"""
    s_xor_b32 s63, s63, s3
    s_lshl_b32 s30, s52, 11
    s_add_u32 s63, s63, s30
    s_add_u32 s62, s54, 1
    """) + cell(61, 54, 28) + cell(62, 62, 28) + L(f"""
    s_add_u32 s61, s61, s63
    s_add_u32 s62, s62, s63
    s_add_u32 s63, s63, {QSZ}
    """)
    s2 = A()
    s2(f"v_and_b32 v1, 15, v7\nv_lshrrev_b32 v2, 4, v7\ns_mov_b32 s37, {RED}")
    s2 += [f"  v_accvgpr_read_b32 v{r}, a{204+i}" for i, r in enumerate(PARK) if i not in (16, 17)]
    ol = L(f"buffer_load_dwordx4 v[208:211], v{KA}, s[16:19], s60 offen sc1 ;#P")
    ql = L(f"""
    buffer_load_dwordx4 a[240:243], v4, s[16:19], s61 offen sc1 ;#Q
    buffer_load_dwordx4 a[244:247], v4, s[16:19], s62 offen sc1 ;#Q
    buffer_load_dwordx4 a[248:251], v4, s[16:19], s61 offen offset:1024 sc1 ;#Q
    buffer_load_dwordx4 a[252:255], v4, s[16:19], s62 offen offset:1024 sc1 ;#Q
    """)
    s3 = A()
    s3(f"""
    s_and_b32 s64, s23, 3
    s_lshl_b32 s64, s64, 11
    s_and_b32 s28, s23, 4
    s_lshl_b32 s28, s28, 12
    s_add_u32 s64, s64, s28
    s_and_b32 s28, s23, 8
    s_lshl_b32 s28, s28, 10
    s_xor_b32 s28, s28, s3
    s_add_u32 s64, s64, s28
    s_lshl_b32 s28, s21, 7
    s_add_u32 s64, s64, s28
    s_add_u32 s64, s64, {FO}
    s_add_u32 s64, s64, s55
    s_mul_i32 s28, s21, 5
    v_add_u32 v3, s28, v2
    v_lshrrev_b32 v6, 3, v3
    v_lshlrev_b32 v6, 14, v6
    v_bfe_u32 v212, v3, 2, 1
    v_lshl_add_u32 v6, v212, {13 if OPT["mode"] in ("cols", "none") else 12}, v6
    v_and_b32 v3, 3, v3
    v_lshl_add_u32 v6, v3, 8, v6
    v_lshl_add_u32 v{OB}, v1, 4, v6
    s_add_u32 s28, s28, 4
    s_lshr_b32 s30, s28, 2
    """)
    s3 += cell(30, 30, 29)
    s3(f"""
    s_and_b32 s28, s28, 3
    s_lshl_b32 s28, s28, 8
    s_add_u32 s28, s28, s30
    v_lshl_add_u32 v3, v1, 4, s28
    v_lshl_add_u32 v3, v2, 3, v3
    v_cmp_gt_u32 vcc, 2, v2
    v_mov_b32 v6, {OOB}
    v_lshl_add_u32 v{UA}, v0, 3, s37
    v_cndmask_b32 v{OA}, v6, v3, vcc
    """)
    sA = A()
    sA += blk(40, 24, "h", 28, 29) + cell(30, 47, 29) + L(f"""
    s_xor_b32 s40, s40, s3
    s_add_u32 s44, s40, s30              ; own rows
    s_bitcmp1_b32 s24, 0
    s_cselect_b32 s28, {-HSZ & 0xffffffff}, {HSZ}
    s_add_u32 s45, s44, s28              ; partner rows (other block of the same page)
    """)
    for T in range(4):
        sA(f"s_add_u32 s28, s20, {T}\ns_and_b32 s28, s28, 3\ns_lshl_b32 s28, s28, 10\nv_add_u32 v{AV[T]}, s28, v4")
    osum = W("P") + L(f"v_cvt_pk_bf16_f32 v208, v208, v209\nv_cvt_pk_bf16_f32 v209, v210, v211\nds_write_b64 v{UA}, v[208:209]")
    ogat = [f"  ds_read_b64 {ar(204+2*n,2)}, v{GA+n}" for n in range(16)]
    om = []
    for T in range(2):
        for tl in (3, 0, 1, 2):
            for k in range(2):
                d = vr(DB + 16*T + 4*tl)
                om.append(f"  v_mfma_f32_16x16x32_bf16 {d}, {ar(204+tl*8+k*4)}, {ar(240+T*8+k*4)}, {'0' if k == 0 else d}")
    ofin = []
    for T in range(2):
        o = A(); b = DB + 16*T; z = b + 12; pk = GA + 6*T
        for r in range(3): o(f"v_add_f32 v{z+r}, 0x358637bd, v{z+r}")
        for r in range(3): o(f"v_rcp_f32 v{z+r}, v{z+r}")
        for tl in range(3):
            for r in range(4): o(f"v_mul_f32 v{b+4*tl+r}, v{b+4*tl+r}, v{z+tl}")
        for i in range(6): o(f"v_cvt_pk_bf16_f32 v{pk+i}, v{b+2*i}, v{b+2*i+1}")
        o(f"buffer_store_dwordx4 {vr(pk)}, v2, s[16:19], s63 offen offset:{1024*T} sc1 ;#OS")
        o(f"buffer_store_dwordx2 {vr(pk+4,2)}, v{OA}, s[16:19], s63 offen offset:{1024*T} sc1 ;#OS")
        ofin.append(list(o))
    fs = A()
    fs(f"""
    s_lshl_b32 s42, s24, 2
    s_add_u32 s42, s42, s20
    s_lshr_b32 s30, s24, 1
    s_and_b32 s28, s30, 3
    s_lshl_b32 s28, s28, 11
    s_and_b32 s29, s30, 4
    s_lshl_b32 s29, s29, 12
    s_add_u32 s28, s28, s29
    s_and_b32 s29, s30, 8
    s_lshl_b32 s29, s29, 10
    s_xor_b32 s29, s29, s3
    s_add_u32 s28, s28, s29
    s_add_u32 s28, s28, {FO}
    v_min_u32 v6, 15, v7
    v_lshl_add_u32 v{VF-1}, v6, 7, s28
    s_mul_i32 s48, s42, {16*1280}
    s_mul_i32 s28, s25, 160
    s_add_u32 s48, s48, s28
    """)
    fs += blk(42, 24, "o", 28, 29)
    fs(f"""
    s_xor_b32 s42, s42, s3
    s_lshl_b32 s28, s20, 10
    s_add_u32 s42, s42, s28
    s_mul_i32 s49, s20, 15360
    s_add_u32 s49, s49, {RED}
    v_mul_u32_u24 v243, 176, v1
    v_lshl_add_u32 v243, v2, 3, v243
    v_add_u32 v243, s49, v243            ; result write: row stride 176
    """)
    for T in range(1, 4):
        fs(f"s_add_u32 s28, s20, {T}\ns_and_b32 s28, s28, 3\ns_mul_i32 s28, s28, 15360\ns_add_u32 s28, s28, {RED + (T-1)*5120}\nv_add_u32 v{RW[T-1]}, s28, v4")
    fs(f"""
    v_add_u32 v1, s49, v4
    v_mov_b32 v2, v{OB}
    s_and_b32 s28, s24, 15
    s_lshl_b32 s28, s28, 3
    s_add_u32 s28, s28, s25
    s_lshl_b32 s28, s28, 2
    s_add_u32 s28, s28, s20
    """)
    fs += cell(65, 28, 29)
    fs(f"""
    s_add_u32 s65, s65, {GXP*PG}
    s_lshr_b32 s28, s65, 21
    s_lshr_b32 s29, s24, 4
    s_xor_b32 s28, s28, s29
    s_and_b32 s28, s28, 1
    s_lshl_b32 s28, s28, 13
    s_xor_b32 s28, s28, s3
    s_add_u32 s65, s65, s28
    s_xor_b32 s66, s65, {16*16384}
    s_add_u32 s72, s66, 3072
    s_add_u32 s73, s65, 3072
    """)
    MG = OPT["mg"]
    SL = OPT["slots"]; RL = max(i for i, x in enumerate(SL) if x[0] == "r")
    def areg(s): return 204 if s == 13 else AR + (s % NA)*16
    PAIR = {}
    for p in OPT["pairs"]:
        o = (1, 2, 3, 0) if p + 1 == RL else (0, 1, 2, 3)
        assert SL[p][0] == SL[p+1][0]
        PAIR[p] = [(p, o[0]), (p, o[1]), (p+1, o[0]), (p+1, o[1])]; PAIR[p+1] = [(p, o[2]), (p, o[3]), (p+1, o[2]), (p+1, o[3])]
    def quads(s): return PAIR.get(s, [(s, T) for T in ((1, 2, 3, 0) if s >= MG else range(4))])
    QR = {}
    for s_ in range(14):
        for n_, q_ in enumerate(quads(s_)): QR[q_] = areg(s_) + 4*(n_ if s_ in PAIR else q_[1])
    def ldA(s):
        r = []; cur = None
        for x, T in quads(s):
            if x != cur:
                cur = x; r_, j = SL[x]
                r.append(f"  s_add_u32 s41, s{45 if r_ == 'r' else 44}, {65536*j}")
                if j == 6: r += L(f"s_cmp_lt_u32 s20, 3\ns_cselect_b32 s41, s41, {OOB}")
            r.append(f"  buffer_load_dwordx4 {ar(QR[(x, T)])}, v{AV[T]}, s[16:19], s41 offen sc1 ;#A{x}{'abcd'[T]}")
        return r
    a("k_p2:\n;MARK ep")
    for i in range(7): a(f";MARK B{i}")
    for i in range(5): a(f";MARK wo{i}")
    a += stamp("eend")
    gs = grp(st.take(g1), 2)
    gs.insert(len(gs) - OPT["poll_early"], poll(F1A, VF, "p1", "s55"))
    allsu = glue(s1 + sA + s2 + s3 + fs); k1 = OPT["su1"]; k2 = OPT["su2"]
    assert k1 >= len(glue(s1 + sA))
    flat = lambda l: sum(l, [])
    p1at = next(i for i, x in enumerate(allsu) if f"v_accvgpr_read_b32 v{F1A}," in x[0]) + 1
    a += inter(flat(allsu[:k1]), gs, p1at if OPT["poll_early"] >= len(gs) - 2 else 0)
    a += W("ep") + L("s_barrier") + flag("s67", 224) + stamp("flag")
    a += W("p1") + L("s_mov_b64 s[58:59], vcc") + check("k_s1", F1A, VF, True) + L("s_mov_b64 vcc, s[58:59]") + stamp("c1")
    pre = grp(ldA(2), 1)
    if OPT["pp2"] < 0: pre.append(poll(FW, VF, "p2", "s55"))
    a += ldA(0) + ldA(1) + inter(flat(allsu[k1:k2]), pre)
    if min(OPT["xs"]) < OPT["c2"]:
        kx = max(i for i, x in enumerate(allsu) if "s_add_u32 s49, s49," in x[0]); assert kx < k2, (kx, len(allsu))
    late = allsu[k2:]; nl = OPT["c2"]
    late = {i: flat(late[i*len(late)//nl:(i+1)*len(late)//nl]) for i in range(nl)}
    def ldO(i0, n):
        r = []
        for i in range(i0, i0 + n):
            if OPT["mode"] in ("cols", "none"):
                r += [f"  s_add_u32 s43, s42, {8192*i}", f"  buffer_load_dwordx4 {ar(4*i)}, v4, s[16:19], s43 offen sc1 ;#O{i}"]; continue
            if i % 2 == 0 or i == i0: r.append(f"  s_add_u32 s43, s42, {16384*(i//2)}")
            r.append(f"  buffer_load_dwordx4 {ar(4*i)}, v{4 + (i & 1)}, s[16:19], s43 offen sc1 ;#O{i}")
        return r
    ldX = [[f"  s_add_u32 m0, s49, {4096 + 1024*i}", "  s_nop 0", f"  buffer_load_dwordx4 v{XA[i]}, s[8:11], s48 offen lds ;#X"] for i in range(3)]
    rdX = L("v_add_u32 v2, 51200, v4\nv_and_b32 v3, 15, v7\nv_lshlrev_b32 v3, 4, v3\nv_sub_u32 v3, v243, v3") + W("X") + tag([f"  ds_read_b64 {vr(XB+2*t,2)}, v3 offset:{4096+32*t}" for t in range(5)], "xr")
    def sb(s, t): return vr(GR + 20*(s % 4) + 4*t) if s % 4 < 3 else ar(80 + 4*t)
    def rdB(s): return tag([f"  ds_read_b128 {sb(s,t)}, v{4 if s < 10 else 2} offset:{(s%10)*5120+1024*t}" for t in range(5)], f"b{s}")
    def rdP(s):
        s0 = s & ~1
        return tag([f"  ds_read_b128 {sb(x,t)}, v{4 if x < 10 else 2} offset:{(x%10)*5120+1024*t}" for t in ((0, 1) if s == s0 else (2, 3, 4)) for x in (s0, s0 + 1)], f"b{s}")
    wr_ = tag([f"  ds_write_b128 v{RW[T-1]}, {vr(G+(T*5+t)*4)} offset:{1024*t}" for T in range(1, 4) for t in range(5)], "w")
    rd_ = tag([f"  ds_read_b128 {vr(G+20+4*j)}, v1 offset:{1024*j}" for j in range(15)], "r")
    xw = tag([f"  ds_write_b128 v{RW[T-1]}, {vr(GR+(T*5+t)*4)} offset:{1024*t}" for T in range(1, 4) for t in range(5)], "xw")
    xr = tag([f"  ds_read_b128 {vr(GR+20+20*j+4*t)}, v1 offset:{5120*j+1024*t}" for t in range(5) for j in range(3)], "xr")
    xa = []
    for t in range(5):
        xa += [f"  v_add_f32 v{GR+4*t+i}, v{GR+4*t+i}, v{GR+20+20*j+4*t+i}" for j in range(3) for i in range(4)]
        xa += [f"  v_cvt_pk_bf16_f32 v{GA+2*t+i}, v{GR+4*t+2*i}, v{GR+4*t+2*i+1}" for i in range(2)]
        if t in (1, 3): xa.append(f"  buffer_store_dwordx4 {vr(GA+2*t-2)}, v4, s[16:19], s66 offen offset:{512*(t-1)} sc1 ;#XS")
    xa += L(f"v_lshlrev_b32 v0, 3, v7\nbuffer_store_dwordx2 {vr(GA+8,2)}, v0, s[16:19], s66 offen offset:2048 sc1 ;#XS")
    xl = [f"  buffer_load_dwordx4 {vr(GA+4*t)}, v4, s[16:19], s65 offen offset:{1024*t} sc1 ;#XL" for t in range(2)] + [f"  buffer_load_dwordx2 {vr(GA+8,2)}, v0, s[16:19], s65 offen offset:2048 sc1 ;#XL"]
    XF, XP, XC = OPT["xf"], OPT["xp"], OPT["xc"]
    xpoll = L(f"v_mov_b32 v{VF-1}, s73") + poll(VF-1, VF, "xp")
    C2 = OPT["c2"]; plan = OPT["aplan"]; OFS = OPT["ofs"]; PO = OPT["po"]; PC = OPT["pc"]; osched = OPT["osched"]
    no = 0
    XU = 184
    xu = []
    for i in range(10): xu += [f"  v_lshlrev_b32 v{XU+2*i}, 16, v{XB+i}", f"  v_and_b32 v{XU+2*i+1}, 0xffff0000, v{XB+i}"]
    def wdone(g): return ("W", 5*g + 4) not in st.items
    def mf(s, T, rev):
        r_, j = SL[s]; GG = GR if r_ == "r" else G; first = all(x[0] != r_ for x in SL[:s])
        return [f"  v_mfma_f32_16x16x32_bf16 {vr(GG+(T*5+t)*4)}, {breg(j,t)}, {ar(QR[(s, T)])}, {'0' if first else vr(GG+(T*5+t)*4)}" for t in (range(4, -1, -1) if rev else range(5))]
    def chain(ms, ph=0):
        out = []
        for t in range(5):
            g = [m[t] for m in (ms if (t + ph) % 2 == 0 else ms[::-1])]
            if any(x.endswith(", 0") for x in g):
                d = g[0].split()[1].rstrip(",")
                g = [x.rsplit(", ", 1)[0] + (", 0" if n == 0 else ", " + d) for n, x in enumerate(g)]
            out += g
        return out
    nm = 14 - MG; WB = OPT["wb"]
    for s in range(MG + 4):
        if s < MG:
            need = [f"A{s}{c}" for c in "abcd"] + [f"B{SL[s][1]}"]; assert ("B", 5*SL[s][1] + 4) not in st.items
            M = sum((mf(s, T, k & 1) for k, T in enumerate((1, 2, 3, 0) if s == RL else range(4))), [])
            if s in PAIR:
                q = PAIR[s]; p = q[0][0]
                need = [f"A{x}{'abcd'[T]}" for x, T in q] + [f"B{SL[p+1][1]}"]; assert ("B", 5*SL[p+1][1] + 4) not in st.items
                M = sum((chain([mf(x, T, n_ & 1) for x in (p, p + 1)], n_) for n_, T in enumerate((q[0][1], q[1][1]))), [])
        else:
            T = (1, 2, 3, 0)[s - MG]
            need = [f"A{x}{'abcd'[T]}" for x in range(MG, 14)]
            M = chain([mf(x, T, False) for x in range(MG, 14)])
        if s == XF: need.append("XS")
        vm = need + (["op"] if s == PC else []) + ([f"wo{g}" for g in range(5) if g not in wtr] if s == WB else []) + (["OS"] if s == OFS else []) + (["p2"] if s == C2 else [])
        if s == WB: assert all(wdone(g) for g in range(5) if g not in wtr)
        OQ = OPT["oq"]; OM = C2 + (1 if OQ else 2)
        XB_ = OFS if OPT["xr"] < OFS else RL
        assert XB_ <= (RL - 1 if OPT["xw"] == 2 else RL)
        a += W(vm, "*" if (s in (XB_, XB_ if OPT["xw"] == 1 else RL + 2) or (s == C2 + 2 and not OQ)) else ())
        a += stamp(f"g{s}")
        if s == C2: a += check("k_sw", FW, VF, True) + stamp("w1")
        if s == PC: a += check("k_so", VF-1, VF, True) + stamp("op")
        if s != PC and s in (OFS, -1 if OQ else C2 + 2, WB, XB_, MG + 1, RL + 2 if OPT["xw"] == 2 else -1): a("s_barrier")
        ls = []; n = len(M)
        for x in plan.get(s, []): assert (SL[x][1] < 2 or s >= C2) and (x - s <= 3 or (x == 13 and s > C2 + 3))
        v = sum((ldA(x) for x in plan.get(s, [])), [])
        if s == C2: v = ol + ql + v
        if s == OFS: v = flag("s64") + v
        if s == XF: v = flag("s72") + v
        if s == XP: assert s > PC; v = xpoll + v
        if s == PO: v = poll(VF-1, VF, "op", "s55") + v
        if s == OPT["pp2"]: v = poll(FW, VF, "p2", "s55") + v
        if late.get(s): ls.append((late[s], 0, n - 1))
        if s in OPT["xs"]: v += sum([ldX[i] for i, x in enumerate(OPT["xs"]) if x == s], [])
        if psched.get(s): v += st.take(psched[s])
        if osched.get(s): v += ldO(no, osched[s]); no += osched[s]
        ls.append((v, 0, n - 2))
        if OQ:
            if s == C2 + 1: ls += [(osum, OQ, OQ + 1), (L("s_waitcnt lgkmcnt(0)\ns_barrier"), OQ + 4, OQ + 4), (ogat, OQ + 5, min(OQ + 10, 19))]
        else:
            if s == C2 + 1: ls.append((osum, 16, 19))
            if s == C2 + 2: ls.insert(0, (ogat, 0, 10))
        if s == OM + 1: ls.append((ofin[0] + ofin[1], 1, 19))
        if s == OPT["xr"]: assert s < RL and s != OFS and s > OM + 1; ls.insert(0, (rdX, 0, 8))
        if OPT["xw"] == 0:
            if s == RL: ls += [(xw[:5], 10, 14), (xw[5:10], 15, 19)]
            if s == RL + 1: ls += [(xw[10:], 0, 5), (L("s_waitcnt lgkmcnt(0)\ns_barrier"), 9, 9), (xr, 10, 19)]
            if s == RL + 2: ls.append((xa[:OPT["xcut"]], 0, n - 1))
            if s == RL + 3: ls.append((xa[OPT["xcut"]:], 0, n - 1))
        else:
            if OPT["xw"] == 1:
                if s == RL: ls.append((xw[:4], 9, 19))
                if s == RL + 1: ls.append((xw[4:11], 0, 19))
                if s == RL + 2: ls += [(xw[11:], 0, 9), (L("s_waitcnt lgkmcnt(0)\ns_barrier"), 12, 12), (xr, 13, 19)]
            else:
                if s == RL - 1: ls.append((xw[:3], 12, 19))
                if s == RL: ls.append((xw[3:10], 0, 19))
                if s == RL + 1: ls.append((xw[10:], 0, 14))
                if s == RL + 2: ls.append((xr, 0, 14))
            if s == RL + 3:
                a += L("s_waitcnt lgkmcnt(0)") + [";@align on"] + [f"  v_pk_add_f32 {vr(GR+2*i,2)}, {vr(GR+2*i,2)}, {vr(GR+20+20*j+2*i,2)}" for j in range(3) for i in range(10)] + [";@align off"]
                ls.append(([x for x in xa if "v_add_f32" not in x], 0, n - 1))
        if s > MG: ls.append((wr_[5*(s-MG-1):5*(s-MG)], 2, n - 1))
        if s == OPT["xup"]: assert s >= XB_; ls.append((xu, 0, n - 1))
        if WB <= MG + 2:
            if s >= MG + 2: ls.append((rdP(s - MG - 2), 0, n - 2))
        elif s == MG + 3: ls.append((rdB(0) + rdB(1), 0, n - 2))
        a += place(M, ls)
        if s == OM: a += W("Q", "*") + stamp("om") + place(om, [(st.take(OPT["pom"]), 0, 15)])
    a += stamp("gend")
    E = G + 20
    VB = []
    for j in range(3):
        for i in range(10): VB.append(f"  v_pk_add_f32 {vr(G+2*i,2)}, {vr(G+2*i,2)}, {vr(G+20+20*j+2*i,2)}")
    VC = []
    for i in range(10): VC += [f"  v_lshlrev_b32 v{RP+2*i}, 16, v{GA+i}", f"  v_and_b32 v{RP+2*i+1}, 0xffff0000, v{GA+i}"]
    VC += [f"  v_pk_add_f32 {vr(G+2*i,2)}, {vr(G+2*i,2)}, {vr(RP+2*i,2)}" for i in range(10)]
    VC += [f"  v_pk_mul_f32 {vr(E+2*i,2)}, {vr(G+2*i,2)}, s[30:31]" for i in range(10)]
    VA = [f"  v_add_f32 v{G+i}, v{G+i}, v{G+20+20*j+i}" for j in range(3) for i in range(20)]
    V = []
    V += [f"  v_exp_f32 v{E+i}, v{E+i}" for i in range(20)]
    V += [f"  v_add_f32 v{E+i}, 1.0, v{E+i}" for i in range(20)]
    V += [f"  v_rcp_f32 v{E+i}, v{E+i}" for i in range(20)]
    V += [f"  v_mul_f32 v{G+i}, v{G+i}, v{E+i}" for i in range(20)]
    V0 = OPT["v0"]; RB = OPT["rb"]; P0 = MG + 4; V1 = OPT["v1"]
    def split(Vl, a0, a1):
        w = [4 if x % 2 == 0 else 6 for x in range(a0, a1)]; cum = [sum(w[:i+1])/sum(w) for i in range(len(w))]
        cost = [8 if ("exp" in x or "rcp" in x) else 4 for x in Vl]; tot = sum(cost); out = [[] for _ in w]; c_ = 0
        for x, c in zip(Vl, cost): out[next(i for i, y in enumerate(cum) if (c_ + 0.5)/tot <= y)].append(x); c_ += c
        return out
    VAp = split(VA, V0, V1); parts = split(V, V1, 20)
    assert not wtr
    for s in range(20):
        s0 = s & ~1
        a += W(([f"O{s+1}"] if s == s0 else []) + (["XS"] if P0 + s == XF else []) + (["xp"] if P0 + s == XC else []) + (["XL"] if s == V1 else []),
               [f"b{s}"] + (["w"] if s == RB else []) + (["r"] if s == V0 else []))
        if s == RB: a("s_barrier")
        a += stamp(f"s{s}")
        if P0 + s == XC: a += check("k_sx", VF-1, VF) + stamp("xc")
        if s == V1: a += [";@align on"] + VC + [";@align off"]
        MM = chain([[f"  v_mfma_f32_16x16x32_bf16 {vr(SA+4*t)}, {sb(x,t)}, {ar(4*x)}, {'0' if x == 0 else vr(SA+4*t)}" for t in range(5)] for x in (s0, s0 + 1)], (s0//2) & 1)
        M = MM[:4] if s == s0 else MM[4:]; e_ = len(M) - 1
        ls = []
        if s + 2 < 20: ls.append((rdP(s + 2), 0, e_))
        v = []
        if P0 + s == XF: v += flag("s72")
        if P0 + s == XP: v += xpoll
        if P0 + s == XC: v += xl
        if osched.get(P0 + s): v += ldO(no, osched[P0 + s]); no += osched[P0 + s]
        ls.append((v, 0, e_))
        if s == 0: ls.append((L(f"s_mov_b32 s30, {LOG2E|0x80000000}\ns_mov_b32 s31, {LOG2E|0x80000000}"), 0, e_))
        if RB <= s < RB + 3: ls.append((rd_[5*(s-RB):5*(s-RB)+5], 0, e_))
        if V0 <= s < V1: ls.append((VAp[s-V0], 0, e_))
        if s >= V1: ls.append((parts[s-V1], 0, e_))
        a += place(M, ls)
    assert no == 20 and not st.items, (no, st.items)
    a += stamp("send")
    for t in range(5):
        for i in range(2): a(f"v_pk_fma_f32 {vr(SA+4*t+2*i,2)}, {vr(SA+4*t+2*i,2)}, {vr(G+4*t+2*i,2)}, {vr(XU+4*t+2*i,2)}")
        for i in range(2): a(f"v_cvt_pk_bf16_f32 v{XB+2*t+i}, v{SA+4*t+2*i}, v{SA+4*t+2*i+1}")
        a(f"ds_write_b64 v243, {vr(XB+2*t,2)} offset:{32*t}")
    a(";@align off\ns_waitcnt lgkmcnt(0)")
    for i in range(3): a(f"ds_read_b128 {vr(E+4*i)}, v{240+i}")
    for i in range(3): a(f"s_waitcnt lgkmcnt({2-i})\nbuffer_store_dwordx4 {vr(E+4*i)}, v{XA[i]}, s[4:7], s48 offen")
    a += stamp_out()
    return resolve(a)

HEADER = """; One persistent launch, one workgroup per CU (generated by my own script, fully unrolled).
; phase 1: 192x160 tiles of x @ [wqkv | w1]; LayerNorm is folded into the epilogue (row mean / rstd, column sums);
;          side jobs: row statistics, column sums, repacking of w2 / wo into MFMA fragment order;
;          epilogues: silu -> h, phi -> pq, phi(k)^T [v | 1] -> kv / z (float atomics).
;          out = x + s * silu(gate).
; Hand-offs: write-through stores, wait, then a flag word holding this launch's tag (derived from ws[0]).
; Two spare workgroups race round trips to two 8 KB granules of d_ws to learn which is closer; the answer only
; kernarg: 0 x, 8 wqkv, 16 wo, 24 (unused), 32 w1, 40 w2, 48 out, 56 debug, 64 ws"""
def build():
    OUTL.clear()
    pro = prologue()
    br = L("s_cmp_lt_u32 s22, 8\ns_cbranch_scc1 k_kv")
    if OPT["pol"] == "race":
        br += L("s_cmp_eq_u32 s21, 11\ns_cbranch_scc1 k_race")
        OUTL("k_race:")
        if OPT["mv3"] < 1:
            OUTL("s_mov_b64 s[36:37], s[74:75]")
            OUTL.extend(d_misc())
        OUTL("s_waitcnt vmcnt(0)\ns_barrier")
        OUTL.extend(flag("s49"))
        OUTL(f"""
        s_cmp_lg_u32 s20, 0
        s_cbranch_scc1 k_race2
        s_cmp_eq_u32 s2, 2
        s_cbranch_scc1 k_race2
        s_mov_b32 s29, s2
        s_lshl_b32 s28, s29, 13
        s_add_u32 s28, s28, {RACE}
        v_lshlrev_b32 v6, 25, v7
        s_mov_b32 s56, s36
        s_and_b32 s57, s37, 0xffff
        s_mov_b32 s58, 256
        s_mov_b32 s59, 0x20000
        v_mov_b32 v3, 0
        buffer_atomic_add v3, v6, s[16:19], s28 offen sc0
        v_mov_b32 v1, 1
        s_mov_b32 s30, 12
        s_mov_b32 s31, 1
        s_waitcnt vmcnt(0)
        k_race0:
        buffer_atomic_add v1, v6, s[56:59], 0 offen offset:4 sc0
        s_sub_u32 s30, s30, 1
        s_waitcnt vmcnt(0)
        v_readfirstlane_b32 s38, v1
        v_mov_b32 v1, 0
        s_and_b32 s38, s38, 1
        s_cmp_eq_u32 s38, s31                ; first trip: odd = partner is there; later trips: even
        s_cselect_b32 s30, 0, s30
        s_mov_b32 s31, 0
        s_cmp_lg_u32 s30, 0
        s_cbranch_scc1 k_race0
        s_mov_b32 s30, {OPT['trips']}
        k_race1:
        v_mov_b32 v3, 0
        buffer_atomic_add v3, v6, s[16:19], s28 offen sc0
        s_sub_u32 s30, s30, 1
        s_cmp_lg_u32 s30, 0
        s_waitcnt vmcnt(0)
        s_cbranch_scc1 k_race1
        v_mov_b32 v3, 1
        buffer_atomic_add v3, v6, s[56:59], 0 offen sc0
        s_lshl_b32 s29, s29, 13
        s_xor_b32 s29, s29, s39
        s_waitcnt vmcnt(0)
        v_readfirstlane_b32 s30, v3
        v_mov_b32 v3, s29
        s_nop 0
        s_bitcmp0_b32 s30, 0
        s_cselect_b32 s28, {PW}, {OOB}
        buffer_store_dword v3, v6, s[16:19], s28 offen sc1
        k_race2:
        """)
        OUTL.extend((d_cs() if OPT["keep"] < 1 else []) + [f"  s_mov_b32 s{r}, {OOB}" for r in (61, 62, 63, 75, 80, 81, 82, 83)] + [f"  v_add_u32 v{L2B+i}, {2*STAGE}, v{LA+i}" for i in range(5)] + dma_next(9) + L("s_branch k_t_join"))
    items = [("B", i) for i in range(35)] + [("W", i) for i in range(25)]
    st_t = Stream(items); st_n = Stream(items)
    mt = g1_main("k_t", True, st_t)
    mt += L("s_waitcnt lgkmcnt(0)\ns_cmp_lt_u32 s22, 12\ns_cbranch_scc1 k_q")
    eq = epi_t("phi", Stream(st_t.items)); es = epi_t("silu", st_t)
    mn = g1_main("k_n", False, st_n)
    ek = epi_kv(st_n)
    assert st_n.items == st_t.items
    n0 = len(resolve(pro + br))
    a = resolve(pro + br + mt) + es + phase2(st_t) + L("s_endpgm\nk_q:") + eq + L("s_branch k_p2\nk_kv:") + resolve(pro + br + mn + ek)[n0:] + L("s_branch k_p2")
    a += L("k_end:\ns_endpgm") + OUTL
    body, added = haz.fix(a)
    body, nbytes, nn, npm = align.align([x.replace("CODE_KB", "40").replace("CODE_MAX", "44444") for x in body])
    kb = (nbytes + 1023)//1024; assert kb <= 64
    body = [x.replace("s_cmp_ge_u32 s28, 40", f"s_cmp_ge_u32 s28, {kb if OPT.get('cpf', 1) else 0}").replace("44444", str((nbytes - 16) & ~15)) for x in body]
    body = [re.sub(r"\s*;(#\S+|nocount|C)$", "", x) for x in body]
    print("instrs", len(body), "nops added", added, "bytes", nbytes, "align nops", nn, "promoted", npm, file=sys.stderr)
    if OPT.get("nost"): body = [x for x in body if not ("buffer_store_dwordx4" in x and "s[76:79]" in x)]
    if OPT.get("cyc"): body = [x.replace("s_memrealtime", "s_memtime") for x in body]
    out = ["; @launch grid=(256,1,1) block=(256,1,1) lds=163840", HEADER,
           '.amdgcn_target "amdgcn-amd-amdhsa--gfx950"\n.text', khead(NAME)] + body
    if DIAG: out.append(";ST " + " ".join(OPT["st"][:7]) + "\n;OPTS " + " ".join(x for x in sys.argv[3:] if not x.startswith("st=")))
    out.append('.section .rodata,"a"\n.p2align 6\n' + kd(NAME, 512, 256, 102))
    return "\n".join(out) + "\n"
if __name__ == "__main__":
    for x in sys.argv[2:]:
        if x == "d": DIAG = True
        else:
            k, v = x.split("=", 1); OPT[k] = eval(v)
    src = build()
    open(sys.argv[1], "w").write(src)
```

```python
import sys, re
from asmlib import kd, khead
import haz, align

NAME = "recurrent_scan__linear_attn_block__dense_activation_silu__prompt_kernel"
S, D, F = 2048, 640, 1728
FA = 0x8000
FP = 0xF0000
FPD = 0x9000 - 144*128
FO = 0x38000
NEGM = 0x10000; RSTD = 0x12000
CSP = 0x14000
KVP   = 0x40000
PG = 1 << 21
PW = 0xC8000
RACE = 0xC0000
WPP = 1
HOF = 74*16384; HSZ = 27*16384
QPP = 9; QSZ = 10*16384
GXP = 13
WS_USED = 15*PG
TS = 0x1F00000
def blk(dst, rb, kind, t0, t1):
    sh, pg, msk, sz, of = (1, WPP, 1, HSZ, HOF) if kind == "h" else (2, QPP, 3, 2*QSZ, QSZ if kind == "o" else 0)
    return L(f"""
    s_and_b32 s{t0}, s{rb}, 15
    s_lshr_b32 s{t0}, s{t0}, {sh}
    s_add_u32 s{t0}, s{t0}, {pg}
    s_lshr_b32 s{t1}, s{rb}, 4
    s_xor_b32 s{t1}, s{t1}, s{t0}
    s_and_b32 s{t1}, s{t1}, 1
    s_lshl_b32 s{t1}, s{t1}, {12 if OPT["mode"] in ("cols", "none") else 13}
    s_lshl_b32 s{t0}, s{t0}, 21
    s_add_u32 s{t0}, s{t0}, s{t1}
    s_and_b32 s{t1}, s{rb}, {msk}
    s_mul_i32 s{t1}, s{t1}, {sz}
    s_add_u32 s{t0}, s{t0}, s{t1}
    s_add_u32 s{dst}, s{t0}, {of}
    """)
def cell(dst, idx, t0):
    return L(f"s_lshr_b32 s{t0}, s{idx}, 1\ns_lshl_b32 s{t0}, s{t0}, 14\ns_and_b32 s{dst}, s{idx}, 1\ns_lshl_b32 s{dst}, s{dst}, {13 if OPT['mode'] in ('cols', 'none') else 12}\ns_add_u32 s{dst}, s{dst}, s{t0}")
LOG2E = 0x3fb8aa3b
OOB = 0x40000000
STAGE = 45056; WOFF = 24576; SPARE = 3*STAGE
AUXC = SPARE; AUXM = SPARE + 6400
CSL = SPARE + 8192
PACKL = SPARE
KVX = SPARE + 10240
RED = 102400
DIAG = False
OPT = dict(spin=200000, pkd=0, pkr=4, pks={4: 3, 5: 2}, flagb=3, nodd=4, dfirst=4, d1st=4, dlast=54, flagb_n=2, pollb=6,
           pf_t={15:5,16:7,17:5,18:7,19:7}, pf_n={15:4,16:6,17:4,18:6,19:6}, epi_n=[6, 5, 5, 5, 5, 0], kv_first=0,
           epi=[5, 3, 3, 3, 2, 3, 2], oq=9, f1blk=4, f1pos=2, gap1=4, poll_early=1, c2=2, pom=0,
           slots=[("r",0),("r",1),("o",0),("o",1),("r",2),("r",3),("r",4),("r",5),("r",6),("o",2),("o",3),("o",4),("o",5),("o",6)],
           aplan={0:[3],2:[4],3:[5,6],4:[7],5:[8],6:[9],7:[10],8:[11,13],9:[12]},
           mg=11, wb=12, xr=6, rb=1, burst=1, su1=95, su2=200, pe1=260, pp2=0,
           psched={0:2,1:2}, xs=[1, 1, 1], ofs=7, po=10, pc=12, xcut=44, xf=14, xp=17, xc=21, v1=11,
           osched={12:4,13:4,14:4,15:2,16:2,17:2,19:2}, xw=2, xup=9, pairs=[0, 2, 4, 7, 9], ch2=1, cpf0=2, mv3=2, nbuf=3, v0=5, nopk=1, adist=3, p2map=1, su_pre=200, su_pre_n=160, sleep=2, rot=0, snake=1, krot=0, fash=4, wtrail={}, wrow=1, wfirst=0, sufirst=0, keep=2, swarm=0, touch=1, slin=0, head=2, w1first=0, cmaj=0, pol="race", mode="rows", trips=8, cpf2=12,
           st=["eend", "w1", "g11", "op", "gend", "s5", "send"])

class A(list):
    def __call__(self, s):
        for x in s.strip("\n").split("\n"):
            x = x.strip()
            m = re.match(r"s_cselect_b32 (s\d+), (\d+|0x[0-9a-f]+), (\d+|0x[0-9a-f]+)\s*(;.*)?$", x)
            if m and int(m.group(2), 0) > 64 and int(m.group(3), 0) > 64:
                self.append(f"  s_mov_b32 {m.group(1)}, {m.group(3)}")
                x = f"s_cselect_b32 {m.group(1)}, {m.group(2)}, {m.group(1)}"
            if x: self.append(("" if x.endswith(":") else "  ") + x)
        return self
def L(s): return list(A()(s))
def stamp(name):
    if not DIAG: return []
    if name == "entry": i = 0
    elif name in OPT["st"][:7]: i = 1 + OPT["st"].index(name)
    else: return []
    return [f"  s_memrealtime s[{84+2*i}:{85+2*i}]"]
def stamp_out():
    if not DIAG: return []
    if OPT.get("echo") is not None:
        i = OPT["echo"]
        return L(f"""
        s_waitcnt vmcnt(0)
        s_memrealtime s[100:101]
        s_waitcnt lgkmcnt(0)
        s_sub_u32 s28, s{84+2*i}, s84
        s_cmp_gt_u32 s28, 4000
        s_cselect_b32 s28, 0, s28
        s_add_u32 s28, s28, 5000
        k_echo:
        s_memrealtime s[30:31]
        s_waitcnt lgkmcnt(0)
        s_sub_u32 s29, s30, s84
        s_cmp_lt_u32 s29, s28
        s_cbranch_scc1 k_echo
        """)
    r = L(f"""
    s_waitcnt vmcnt(0)
    s_memrealtime s[100:101]
    s_waitcnt lgkmcnt(0)
    s_lshl_b32 s28, s2, 2
    s_add_u32 s28, s28, s20
    s_lshl_b32 s28, s28, 6
    s_add_u32 s28, s28, {TS}
    v_mov_b32 v1, s28
    """)
    for i in range(9): r += [f"  v_mov_b32 v3, s{84+2*i}", f"  global_store_dword v1, v3, s[26:27] offset:{4*i if i < 8 else 48}"]
    r += ["  v_mov_b32 v3, s22", "  global_store_dword v1, v3, s[26:27] offset:60"]
    r += ["  s_getreg_b32 s28, hwreg(HW_REG_XCC_ID)", "  s_and_b32 s28, s28, 15", "  v_mov_b32 v3, s28", "  global_store_dword v1, v3, s[26:27] offset:56"]
    return r
def vr(b, n=4): return f"v[{b}:{b+n-1}]" if n > 1 else f"v{b}"
def ar(b, n=4): return f"a[{b}:{b+n-1}]" if n > 1 else f"a{b}"
def srd(d, lo, nbytes):
    return L(f"s_mov_b32 s{d}, s{lo}\ns_and_b32 s{d+1}, s{lo+1}, 0xffff\ns_mov_b32 s{d+2}, {nbytes}\ns_mov_b32 s{d+3}, 0x20000")
def isvm(x): return x.strip().startswith(("buffer_", "global_"))
def islg(x): return x.strip().startswith("ds_")
def tag(lines, t): return [x + f" ;#{t}" if (isvm(x) or islg(x)) else x for x in lines]
def W(vm=(), lg=()):
    vm = [vm] if isinstance(vm, str) else list(vm); lg = [lg] if isinstance(lg, str) else list(lg)
    return [f"  ;WAIT vm={','.join(vm)} lg={','.join(lg)}"]
def resolve(lines):
    out = []; vm = []; lg = []
    for x in lines:
        t = x.strip()
        if t.startswith(";MARK"):
            nm = t.split()[1]; vm.append(("m", nm)); lg.append(("m", nm)); continue
        if t.startswith(";WAIT"):
            m = re.match(r";WAIT vm=(\S*) lg=(\S*)", t); parts = []
            for names, hist, cn, mx in ((m.group(1), vm, "vmcnt", 63), (m.group(2), lg, "lgkmcnt", 15)):
                if not names: continue
                names = names.split(",")
                if names == ["*"]: parts.append(f"{cn}(0)"); continue
                idx = [i for i, h in enumerate(hist) if h[1] in names]
                for nme in names: assert any(h[1] == nme for h in hist), ("unknown tag", nme)
                n = sum(1 for h in hist[max(idx)+1:] if h[0] == "o")
                parts.append(f"{cn}({min(n, mx)})")
            out.append("  s_waitcnt " + " ".join(parts)); continue
        tg = re.search(r";#(\S+)", t); nm = tg.group(1) if tg else None
        kind = "n" if ";nocount" in t else "o"
        if isvm(x): vm.append((kind, nm))
        elif islg(x): lg.append((kind, nm))
        out.append(x)
    return out
def glue(lines):
    out = []; cur = []
    for x in lines:
        t = x.strip()
        if cur and not t.startswith(("s_cselect", "s_addc", "s_cbranch", "s_mov_b32")) and not t.endswith(":"):
            out.append(cur); cur = []
        if t.startswith(("s_cmp", "s_bitcmp")) or cur or (t.startswith("s_add_u32") and ";C" in t): cur.append(x)
        else: out.append([x])
    if cur: out.append(cur)
    return out
def place(M, lists):
    gaps = [[] for _ in M]
    for items, g0, g1 in lists:
        if not items: continue
        items = glue(items); n = g1 - g0 + 1
        for k, x in enumerate(items): gaps[g0 + k*n//len(items)] += x
    out = []
    for m, g in zip(M, gaps): out += [m] + g
    return out
def inter(main, groups, first=0):
    main = glue(main); out = []; n = len(main); G = len(groups); gi = 0
    for i, x in enumerate(main):
        while gi < G and i >= first + gi*(n - first)//G: out += groups[gi]; gi += 1
        out += x
    while gi < G: out += groups[gi]; gi += 1
    return out
def grp(lines, k):
    out = []; cur = []
    for x in lines:
        if isvm(x) and sum(map(isvm, cur)) == k:
            tail = []
            while cur and not isvm(cur[-1]): tail.insert(0, cur.pop())
            out.append(cur); cur = tail
        cur.append(x)
    if cur: out.append(cur)
    return out
OUTL = A()
def check(tg, vaddr, vdst, lead=False):
    if lead: a = L(f"v_cmp_ne_u32 vcc, s39, v{vdst}\ns_nop 1\ns_and_b64 vcc, vcc, s[56:57]\ns_cbranch_scc1 {tg}_slow\n{tg}_ok:\ns_barrier")
    else: a = L(f"v_cmp_ne_u32 vcc, s39, v{vdst}\ns_nop 1\ns_cmp_lg_u64 vcc, 0\ns_cbranch_scc1 {tg}_slow\n{tg}_ok:")
    OUTL(f"""
    {tg}_slow:
    s_mov_b32 s38, {OPT['spin']}
    {tg}_again:
    s_sleep {OPT.get('sleep', 4)}
    buffer_load_dword v{vdst}, v{vaddr}, s[16:19], 0 offen sc1
    s_sub_u32 s38, s38, 1
    s_cmp_eq_u32 s38, 0
    s_cbranch_scc1 {tg}_ok
    s_waitcnt vmcnt(0)
    v_cmp_ne_u32 vcc, s39, v{vdst}
    s_nop 1
    s_cmp_lg_u64 vcc, 0
    s_cbranch_scc1 {tg}_again
    s_branch {tg}_ok
    """)
    return a
def poll(vaddr, vdst, t, so="0"): return [f"  buffer_load_dword v{vdst}, v{vaddr}, s[16:19], {so} offen sc1 ;#{t}"]
def flag(soff, r=None):
    d, o = (3, 6) if r is None else (r, r + 1)
    return L(f"v_mov_b32 v{d}, s39\nv_lshlrev_b32 v{o}, 25, v7\nbuffer_store_dword v{d}, v{o}, s[16:19], {soff} offen sc1")

ACC = 8; CS = 128; AB = [148, 172]; BB = [196, 216]; VX = 236; VW = 242; LA = 247; LB = 249; VF = 255
L2B = CS
ONES = 240
def acc(T, t): return ACC + (T*5 + t)*4
def bw(c, ks, t, n=4, o=0):
    return vr(BB[ks] + 4*t + o, n) if c % 2 == 0 else ar(140 + 20*ks + 4*t + o, n)
def g1_mfma(k, tr):
    M = []; c = k//2; i = 0
    for T in range(3*(k & 1), 3*(k & 1) + 3):
        for t in (range(5) if T % 2 == 0 else range(4, -1, -1)):
            for n, ks in enumerate((0, 1) if i % 2 == 0 else (1, 0)):
                x = vr(AB[ks] + 4*T); w = bw(c, ks, t); d = vr(acc(T, t))
                p, q = (w, x) if tr else (x, w)
                M.append(f"  v_mfma_f32_16x16x32_bf16 {d}, {p}, {q}, {'0' if (c == 0 and n == 0) else d}")
            i += 1
    return M
def g1_cs():
    return [f"  v_mfma_f32_16x16x32_bf16 {vr(CS+4*t)}, {ar(ONES)}, {bw(0, ks, t)}, {'0' if ks == 0 else vr(CS+4*t)}" for t in range(5) for ks in range(2)]
def rd_w(c):
    st = c % 3; lb, so = (LB, st*STAGE) if st < 2 else (L2B + 2, 0); R = []
    for t in range(5):
        for ks in range(2):
            base = lb + (2 if t == 4 else (t & 1)); off = so + ks*10240 + (64 if t in (2, 3) else 0)
            R += [f"  ds_read_b64_tr_b16 {bw(c,ks,t,2)}, v{base} offset:{off}", f"  ds_read_b64_tr_b16 {bw(c,ks,t,2,2)}, v{base} offset:{off+1280}"]
    return tag(R, f"w{c}")
def rd_x(c, T):
    st = c % 3; la, so = (LA, st*STAGE) if st < 2 else (L2B, 0)
    return tag([f"  ds_read_b128 {vr(AB[ks]+4*T)}, v{la+ks} offset:{so+T*2048}" for ks in range(2)], f"x{c}_{T}")
def dma_x(c):
    so = (c % 3)*STAGE; Dm = []
    for j in range(6):
        if j in (0, 4): Dm.append(f"  s_add_u32 m0, s40, {so + 1024*j}")
        Dm.append(f"  buffer_load_dwordx4 v{VX+j}, s[8:11], s42 offen offset:{1024*(j%4)} lds")
    return tag(Dm, f"c{c}")
def dma_w(c):
    so = (c % 3)*STAGE; Dm = []
    for j in range(5):
        if OPT["wrow"]:
            if j in (0, 4): Dm.append(f"  s_add_u32 m0, s41, {so + 1024*j}")
            Dm.append(f"  buffer_load_dwordx4 v{VW+j}, s[12:15], s43 offen offset:{1024*(j%4)}{' nt' if (c == 0 and OPT.get('wnt')) else ''} lds")
            continue
        Dm.append(f"  s_add_u32 m0, s41, {so + 1024*j}")
        Dm.append(f"  buffer_load_dwordx4 v{VW+j}, s[12:15], s43 offen lds")
    return tag(Dm, f"c{c}")
def dma_next(c):
    if OPT.get("lock") == 2:
        return L(f"s_cmp_eq_u32 s54, 0\ns_cselect_b32 s44, {c}, {(c + 5) % 10}\ns_lshl_b32 s42, s44, 7\ns_mul_i32 s43, s44, s45")
    if OPT["krot"]:
        first = "s_mov_b32 s44, s67" if c == 1 else "s_add_u32 s44, s44, 1\ns_cmp_eq_u32 s44, 10\ns_cselect_b32 s44, 0, s44"
        return L(first + f"""
        s_cmp_eq_u32 s44, s54
        s_addc_u32 s44, s44, 0
        s_cmp_eq_u32 s44, 10
        s_cselect_b32 s44, 0, s44
        s_lshl_b32 s42, s44, 7
        s_mul_i32 s43, s44, s45""")
    return L(f"s_cmp_le_u32 s54, {c-1}\ns_cselect_b32 s44, {c}, {c-1}\ns_lshl_b32 s42, s44, 7\ns_mul_i32 s43, s44, s45")
def breg(s, t): return ar(s*20 + 4*t)
def bstream(i0, n):
    out = []
    for i in range(i0, i0 + n):
        s, t = divmod(i, 5)
        if t == 0 or i == i0:
            out.append(f"  s_add_u32 s68, s46, {8*16384*s}")
            if s == 6: out += L(f"s_cmp_lt_u32 s20, 3\ns_cselect_b32 s68, s68, {OOB}")
        if t < 4: out.append(f"  buffer_load_dwordx4 {breg(s,t)}, v4, s[16:19], s68 offen offset:{1024*t} sc1 ;#B{s}")
        else: out.append(f"  buffer_load_dwordx4 {breg(s,t)}, v5, s[16:19], s68 offen sc1 ;#B{s}")
    return out
class Stream:
    def __init__(self, items): self.items = list(items)
    def take(self, n):
        it, self.items = self.items[:n], self.items[n:]
        assert len(it) == n
        out = []; k = 0
        while k < len(it):
            j = k
            while j + 1 < len(it) and it[j+1] == (it[j][0], it[j][1] + 1): j += 1
            out += (bstream if it[k][0] == "B" else wo_dma)(it[k][1], j - k + 1); k = j + 1
        return out
def wo_dma(i0, n):
    out = []
    for i in range(i0, i0 + n):
        j, t = divmod(i, 5)
        if t in (0, 4) or i == i0: out += [f"  s_add_u32 m0, s69, {20480*j + (4096 if t == 4 else 0)}", f"  s_add_u32 s71, s70, {65536*j}"]
        out.append(f"  buffer_load_dwordx4 v{4 if t < 4 else 5}, s[16:19], s71 offen offset:{1024*(t%4)} sc1 lds ;#wo{j}")
    return out
PRODS = [(0,3),(0,4),(1,3),(1,4),(1,5),(2,3),(2,4),(2,5)]
KVOF = [240, 241, 242, 243, 244, 245, 246, 255]

def setup_s():
    return L(f"""
    s_cmp_lt_u32 s22, 12
    s_cselect_b32 s83, {LOG2E}, {LOG2E | 0x80000000}
    s_mul_i32 s76, s21, 3
    s_add_u32 s76, s76, s51
    s_add_u32 s77, s76, 1
    """) + blk(80, 76, "h", 28, 29) + blk(81, 77, "h", 28, 29) + blk(78, 76, "q", 28, 29) + blk(79, 77, "q", 28, 29) + L(f"""
    s_cmp_lt_u32 s22, 12
    s_cselect_b32 s80, s78, s80
    s_cselect_b32 s81, s79, s81
    s_cmp_ge_u32 s76, 32
    s_cselect_b32 s80, {OOB}, s80
    s_cmp_ge_u32 s77, 32
    s_cselect_b32 s81, {OOB}, s81
    s_lshl_b32 s28, s51, 11
    s_add_u32 s82, s81, s28              ; row tile 4
    s_add_u32 s29, s80, 2048
    s_add_u32 s80, s80, s28              ; row tile 0
    s_cmp_eq_u32 s51, 0
    s_cselect_b32 s81, s29, s81          ; row tile 2
    s_mul_i32 s61, s23, 5
    s_mul_i32 s28, s52, 3
    s_add_u32 s62, s61, s28
    s_add_u32 s63, s62, 1
    s_add_u32 s61, s61, 2
    s_lshl_b32 s28, s23, 1
    s_add_u32 s28, s28, s52
    s_add_u32 s29, s28, 22
    s_add_u32 s30, s23, 43
    s_cmp_lt_u32 s22, 12
    s_cselect_b32 s62, s62, s28
    s_cselect_b32 s63, s63, s29
    s_cselect_b32 s61, s61, s30
    s_cselect_b32 s75, {OOB}, {FPD}
    s_cmp_eq_u32 s63, 43
    s_cselect_b32 s63, {OOB >> 13}, s63
    """) + cell(62, 62, 28) + cell(63, 63, 28) + cell(61, 61, 28) + L(f"""
    s_lshl_b32 s28, s52, 9
    s_add_u32 s61, s61, s28
    s_add_u32 s75, s75, s67
    """)
def setup_t():
    return L(f"""
    v_add_u32 v{VX}, s62, v4
    v_add_u32 v{VX+1}, s63, v4
    v_and_b32 v3, 1, v2
    v_lshlrev_b32 v3, 10, v3
    v_lshrrev_b32 v254, 1, v2
    v_lshl_add_u32 v3, v254, 8, v3
    v_lshl_add_u32 v3, v1, 4, v3
    v_add_u32 v{VX+2}, s61, v3
    v_mov_b32 v{VX+4}, 0x358637bd
    v_mov_b32 v{VX+5}, 0x358637bd
    """)
def setup_n0():
    a = A()
    a(f"""
    v_and_b32 v1, 15, v7
    v_lshrrev_b32 v2, 4, v7
    v_cmp_gt_u32 s[32:33], 8, v1
    s_cmp_eq_u32 s21, 10
    s_cselect_b32 s36, s51, 0
    s_lshl_b32 s37, s22, 1
    s_add_u32 s37, s37, s52
    s_lshl_b32 s37, s37, 12
    s_add_u32 s37, s37, {KVP}
    s_lshl_b32 s60, s20, 12
    s_add_u32 s60, s60, {KVX}
    v_and_b32 v254, 31, v7
    v_add_u32 v254, 224, v254
    """)
    for n, (kx, vy) in enumerate(PRODS):
        eoff = {3: -8, 4: 8, 5: 24}[vy]; o = 252
        a(f"""
        v_add_u32 v3, {4*kx}, v2
        v_cmp_le_u32 vcc, 5, v3
        v_add_u32 v{o}, {eoff}, v1
        v_cmp_gt_u32 s[62:63], 10, v3
        v_cndmask_b32 v253, 0, 20, vcc
        v_sub_u32 v{o}, v{o}, v253
        """)
        if vy == 3: a(f"v_cmp_eq_u32 vcc, 0, v1\nv_cndmask_b32 v253, v{o}, 0, vcc\nv_cndmask_b32 v{o}, v{o}, 20, vcc\nv_cmp_gt_u32 vcc, 20, v253")
        else: a(f"v_cmp_gt_u32 vcc, 20, v{o}")
        a(f"""
        v_mad_u32_u24 v{o}, v3, 21, v{o}
        s_and_b64 vcc, vcc, s[62:63]
        v_cndmask_b32 v{o}, v254, v{o}, vcc
        v_lshl_add_u32 v{o}, v{o}, 4, s60
        v_accvgpr_write_b32 a{244+n}, v{o}
        """)
    return list(a)
def setup_n():
    return L(f"s_mov_b32 s30, {LOG2E}\ns_mov_b32 s31, {LOG2E}") + [f"  v_accvgpr_read_b32 v{KVOF[n]}, a{244+n}" for n in range(8)]

def g1_main(tg, tr, st):
    a = A()
    pf = OPT["pf_t"] if tr else OPT["pf_n"]
    a += W("c0"); a("s_barrier"); a += stamp("k0")
    mv = OPT["keep"]; assert mv == 2 and OPT["mv3"] == 2
    def spread(items, ks):
        g = glue(items); return {k: sum(g[i*len(g)//len(ks):(i+1)*len(g)//len(ks)], []) for i, k in enumerate(ks)}
    if tr:
        dfr = spread((d_misc() if OPT["mv3"] < 1 else []) + (setup_s() if OPT["mv3"] < 2 else []), [4, 5, 6, 7, 8, 9, 10, 11, 12] if OPT["mv3"] < 1 else [6, 7, 8, 9, 10, 11, 12])
        if mv < 2: dfr[2] = d_pack_dst()
    else: dfr = spread((d_touch() if OPT["touch"] == 1 else []) + (d_misc() if OPT["mv3"] < 1 else []), [2, 3, 4] if OPT["mv3"] < 1 else [2])
    PKD, PKR, PKS = (OPT["pkd"], OPT["pkr"], OPT["pks"]) if tr else (None, None, {})
    pk_d = []
    for i in range(5):
        pk_d += [f"  s_add_u32 m0, s53, {896*i}", f"  buffer_load_dwordx4 v252, s[56:59], s55 offen offset:{128*i} {'nt ' if OPT.get('pknt', 1) else ''}lds ;#pk"]
    pk_r = []
    for t in range(5):
        if t: pk_r += L(f"s_cmp_eq_u32 s20, {4-t}\ns_cselect_b32 s28, 896, 0\nv_add_u32 v1, s28, v1\nv_add_u32 v2, s28, v2")
        pk_r += [f"  ds_read_b64_tr_b16 {ar(16+4*t,2)}, v1 offset:{32*t}", f"  ds_read_b64_tr_b16 {ar(18+4*t,2)}, v2 offset:{32*t}"]
    pk_s = [f"  buffer_store_dwordx4 {ar(16+4*t)}, v{4 if t < 4 else 5}, s[16:19], s{60 if c == 0 else 53} offen offset:{1024*(t%4)} sc1 ;#ps" for t in range(5) for c in range(2 if OPT["mode"] == "dup" else 1)]
    pk_r.append("  s_add_u32 s53, s60, 8192")
    cs_st = L(f"""
    v_cmp_le_u32 vcc, 16, v7
    v_cmp_le_u32 s[28:29], 32, v7
    v_cmp_le_u32 s[30:31], 48, v7
    v_cndmask_b32 v{CS+17}, v{CS}, v{CS+4}, vcc
    v_cndmask_b32 v{CS+17}, v{CS+17}, v{CS+8}, s[28:29]
    v_cndmask_b32 v{CS+17}, v{CS+17}, v{CS+12}, s[30:31]
    buffer_store_dword v{CS+17}, v253, s[16:19], s64 offen sc1 ;#cs
    buffer_store_dword v{CS+16}, v254, s[16:19], s64 offen sc1 ;#cs
    """) + [f"  v_add_u32 v{L2B+i}, {2*STAGE}, v{LA+i}" for i in range(5)]
    auxa = L(f"""
    v_lshlrev_b32 v3, 4, v0
    v_add_u32 v252, s74, v3
    v_add_u32 v253, 4096, v252
    v_cmp_le_u32 vcc, 144, v0
    v_add_u32 v3, s65, v3
    v_cmp_le_u32 s[28:29], s66, v0
    v_cndmask_b32 v253, v253, v3, vcc
    v_add_u32 v3, {RSTD - NEGM - 768}, v3
    v_cmp_le_u32 vcc, 240, v0
    v_cndmask_b32 v253, v253, v3, s[28:29]
    v_mov_b32 v3, {OOB}
    v_cndmask_b32 v253, v253, v3, vcc
    v_and_b32 v1, 15, v7
    v_lshrrev_b32 v2, 4, v7
    """)
    polx = [f"  s_xor_b32 s{r}, s{r}, s3" for r in ((46, 70, 80, 81, 82) if OPT["mode"] == "dup" else (80, 81, 82))]
    aux = L(f"""
    s_mov_b32 m0, s72
    s_nop 0
    buffer_load_dwordx4 v252, s[16:19], 0 offen sc1 lds ;#aux
    s_add_u32 m0, s72, 4096
    s_nop 0
    buffer_load_dwordx4 v253, s[16:19], 0 offen sc1 lds ;#aux
    """) + flag("s73")
    y1 = L(f"v_lshlrev_b32 v252, 2, v0\nv_add_u32 v252, {AUXC}, v252") + tag([f"  ds_read_b32 v{CS+i}, v252 offset:{640*i}" for i in range(10)], "y1")
    y2 = [f"  v_add_f32 v{CS}, v{CS}, v{CS+i}" for i in range(1, 10)] + [f"  ds_write_b32 v252, v{CS} offset:{CSL-AUXC} ;#y2"]
    rd = L("s_mul_i32 s28, s51, 384\ns_add_u32 s28, s28, %d" % AUXM)
    if tr:
        rd += L(f"v_lshlrev_b32 v6, 4, v2\nv_add_u32 v252, s34, v6\nv_add_u32 v253, s35, v6\nv_lshl_add_u32 v3, v1, 2, s28")
        rd += [f"  ds_read_b128 {vr(CS+4*t)}, v252 offset:{64*t}" for t in range(4)] + [f"  ds_read_b128 {vr(CS+16)}, v253"]
        for T in range(6): rd += [f"  ds_read_b32 v{212+4*T}, v3 offset:{64*T}", f"  ds_read_b32 v{212+4*T+1}, v3 offset:{768+64*T}"]
    else:
        rd += L(f"v_lshlrev_b32 v6, 2, v1\nv_add_u32 v252, s34, v6\nv_lshl_add_u32 v3, v2, 4, s28")
        rd += [f"  ds_read_b32 v{CS+4*t}, v252 offset:{64*t}" for t in range(5)]
        for T in range(6): rd += [f"  ds_read_b128 {vr(196+4*T)}, v3 offset:{64*T}"]
        for T in range(6): rd += [f"  ds_read_b128 {vr(220+4*T if T < 5 else AB[0])}, v3 offset:{768+64*T}"]
    su = setup_t() if tr else setup_n()
    e0 = glue(setup_n0()); early = {} if tr else {6 + 2*i: sum(e0[i*len(e0)//4:(i+1)*len(e0)//4], []) for i in range(4)}
    nb = 0; fb, pb = (OPT["flagb"] if tr else OPT["flagb_n"]), OPT["pollb"]; nps = 0
    def xrows(c, off):
        return [(sum((rd_x(c, T) for T in range(1, 6)), []), 0, off + 13), (W(lg=f"x{c}_1"), off + 9, off + 9), (W(lg=f"x{c}_2"), off + 19, off + 19)]
    a += rd_w(0) + rd_x(0, 0) + W(lg="w0")
    a += place(g1_cs() + g1_mfma(0, tr), xrows(0, 10) + [(W(lg="x0_0"), 9, 9), (dma_x(2) + dma_w(2) + (pk_d if tr else []), 0, 38), (cs_st, 24, 38), (dma_next(3), 39, 39)])
    NO = OPT["nodd"]
    for k in range(1, 20):
        c = (k - 1)//2
        M = g1_mfma(k, tr)
        ls = []
        if k & 1:
            if c == pb and tr: a("k_t_join:")
            a += W(lg=[f"x{c}_5"] + (["y2"] if k == 19 else []) + (["pr"] if k - 1 == PKR else []))
            a += [M.pop(0), M.pop(0)]
            vm = [f"c{c+1}"] if c < 9 else []
            if c == fb: vm += ["cs", "ss"] + (["ps"] if tr else [])
            if k + 1 == PKR: vm += ["pk"]
            if c == pb + 1: vm += ["pa"]
            if c == 8: vm += ["aux"]
            if vm: a += W(vm)
            if c == pb + 1: a += check(tg + "_sa", 6, VF)
            a("s_barrier")
            if c == 0: a += stamp("b0")
            if c == 7: a += stamp("tail")
            a += stamp(f"b{c}") if c > 0 else []
            if c == fb: ls.append((flag("s49"), 0, 2))
            if c == pb: ls.append((L(f"v_lshlrev_b32 v6, {OPT['fash']}, v0\nv_add_u32 v6, {FA}, v6") + poll(6, VF, "pa"), 0, 2))
            if OPT["pol"] != "race":
                if c == pb + 1: ls.append((polx, 0, 2))
            else:
                assert OPT["mode"] == "rows"
                if c == 7: ls.append((L(f"v_mov_b32 v{CS+18}, {PW}\nbuffer_load_dword v{CS+19}, v{CS+18}, s[16:19], 0 offen sc1 ;#aux"), 0, 1))
                if c == 8:
                    pwl = [(L(f"v_readfirstlane_b32 s3, v{CS+19}\ns_xor_b32 s3, s3, s39"), 22, 23),
                           (L(f"s_and_b32 s38, s3, {~8192 & 0xffffffff}\ns_cbranch_scc1 {tg}_pw\n{tg}_pwr:"), 24, 24), (polx, 25, 27)]
                    ls += pwl
                    OUTL(f"""
                    {tg}_pw:
                    s_mov_b32 s40, {OPT['spin']}
                    {tg}_pw1:
                    s_sleep 4
                    buffer_load_dword v{CS+19}, v{CS+18}, s[16:19], 0 offen sc1
                    s_waitcnt vmcnt(0)
                    v_readfirstlane_b32 s3, v{CS+19}
                    s_sub_u32 s40, s40, 1
                    s_xor_b32 s3, s3, s39
                    s_and_b32 s38, s3, {~8192 & 0xffffffff}
                    s_cselect_b32 s38, s40, 0
                    s_and_b32 s3, s3, 8192
                    s_cmp_lg_u32 s38, 0
                    s_cbranch_scc1 {tg}_pw1
                    s_branch {tg}_pwr
                    """)
            if c == 7: ls.append(([x for x in aux], 0, 2))
            pos = []
            if c + 3 <= 9:
                g0 = OPT["d1st"] if (tr and k == 1) else OPT["dfirst"]
                for i, g in enumerate(grp(dma_x(c+3) + dma_w(c+3), 1)):
                    p = g0 + i*(OPT["dlast"] - g0)//10
                    if len(g) > 1: pos.append((g[:-1], p - 1))
                    pos.append((g[-1:], p))
            ls += [(x, p, p) for x, p in pos if p < 28]
            if k < 19: ls.insert(0, (rd_x(c + 1, 0) + rd_w(c + 1), 0, 21))
            else: ls.insert(0, (rd, 0, 22))
        else:
            a += W(lg=[f"w{c+1}"])
            ls += xrows(c + 1, 0)
            ls += [(x, p - 28, p - 28) for x, p in pos if p >= 28]
            if c + 4 <= 9: ls.append((dma_next(c + 4), 27, 29))
            if k == PKR:
                if PKS.get(k): ls += [(tag(pk_r, "pr"), 2, 14), (W(lg="pr") + pk_s[:PKS[k]], 18, 29)]; nps = PKS[k]
                else: ls.append((tag(pk_r, "pr"), 8, 26))
            if c == 6: ls.append((auxa, 15, 28))
            if c == 8: ls += [(y1, 0, 9), (W(lg="y1") + y2, 15, 25)]
        if PKS.get(k) and k != PKR: ls.append((pk_s[nps:nps+PKS[k]], 2, 27 if nps + PKS[k] < len(pk_s) else 18)); nps += PKS[k]
        if k == 16: ls.append((su, 18, 28))
        if k in early: ls.append((early[k], 4, 28))
        if k in dfr: ls.append((dfr[k], 0 if k == 2 else 6, 28))
        if k == OPT["cpf2"]:
            ls.append((L(f"v_add_u32 v{CS+8}, s50, v4\nv_min_u32 v{CS+8}, CODE_MAX, v{CS+8}\ns_cmp_gt_u32 s50, CODE_MAX\ns_cbranch_scc1 {tg}_c2\nglobal_load_dwordx4 {vr(CS+12)}, v{CS+8}, s[0:1] ;nocount\n{tg}_c2:"), 29 - (k & 1), 29 - (k & 1)))
        if pf.get(k):
            assert c > pb
            assert all(x[0] == "B" for x in st.items[:pf[k]])
            ls.append((st.take(pf[k]), 3, 27))
        a += place(M, ls)
    a += stamp("lend")
    return a

def stats_math():
    a = A(); src = 8; tmp = 20; ac = 44
    for i in range(12):
        a(f"v_lshlrev_b32 v{tmp+2*i}, 16, v{src+i}\nv_and_b32 v{tmp+2*i+1}, 0xffff0000, v{src+i}")
    a(f"v_pk_add_f32 {vr(ac,2)}, {vr(tmp,2)}, {vr(tmp+2,2)}")
    for i in range(2, 12): a(f"v_pk_add_f32 {vr(ac,2)}, {vr(ac,2)}, {vr(tmp+2*i,2)}")
    def red():
        a(f"v_add_f32 v{ac}, v{ac}, v{ac+1}")
        for r in (8, 4, 2, 1): a(f"v_add_f32_dpp v{ac}, v{ac}, v{ac} row_ror:{r} row_mask:0xf bank_mask:0xf")
        a(f"v_mov_b32 v{ac+1}, v{ac}\nv_permlane16_swap_b32 v{ac}, v{ac+1}\nv_add_f32 v{ac}, v{ac}, v{ac+1}")
    red()
    a(f"v_mul_f32 v46, 0xbacccccd, v{ac}")
    a(f"v_cndmask_b32 v47, 0, v46, s[32:33]")
    for i in range(8): a(f"v_pk_add_f32 {vr(tmp+2*i,2)}, {vr(tmp+2*i,2)}, v[46:47] op_sel_hi:[1,0]")
    for i in range(8, 12): a(f"v_pk_add_f32 {vr(tmp+2*i,2)}, {vr(tmp+2*i,2)}, v[46:47] op_sel:[0,1] op_sel_hi:[1,1]")
    a(f"v_pk_mul_f32 {vr(ac,2)}, {vr(tmp,2)}, {vr(tmp,2)}")
    for i in range(1, 12): a(f"v_pk_fma_f32 {vr(ac,2)}, {vr(tmp+2*i,2)}, {vr(tmp+2*i,2)}, {vr(ac,2)}")
    red()
    a(f"""
    v_mov_b32 v{ac+1}, 0x3727c5ac
    v_fmac_f32 v{ac+1}, 0x3acccccd, v{ac}
    v_rsq_f32 v{ac+1}, v{ac+1}
    v_and_b32 v48, 31, v7
    v_cmp_eq_u32 vcc, 0, v48
    v_lshrrev_b32 v49, 5, v7
    v_lshlrev_b32 v49, 2, v49
    v_cndmask_b32 v46, v{ac+1}, v46, vcc
    v_lshl_add_u32 v49, v48, 13, v49
    v_cmp_gt_u32 vcc, 2, v48
    v_mov_b32 v50, {OOB}
    s_lshl_b32 s28, s48, 3
    s_add_u32 s28, s28, {NEGM}
    v_cndmask_b32 v49, v50, v49, vcc
    buffer_store_dword v46, v49, s[16:19], s28 offen sc1 ;#ss
    """)
    return list(a)

def prologue():
    a = A()
    a += stamp("entry")
    a(f"""
    s_load_dwordx16 s[60:75], s[0:1], 0
    s_load_dwordx2 s[26:27], s[0:1], 64
    s_cmp_ge_u32 s2, 256
    s_cbranch_scc1 k_end
    """)
    if OPT.get("cpf0"):
        a(f"""
        s_getpc_b64 s[36:37]
        s_cmp_ge_u32 s2, {8*OPT["cpf0"]}
        s_cbranch_scc1 k_nocp0
        s_lshr_b32 s3, s2, 3
        s_lshl_b32 s3, s3, 12
        v_lshl_add_u32 v1, v0, 4, s3
        global_load_dwordx4 v[132:135], v1, s[36:37] offset:0 ;nocount
        k_nocp0:
        """)
    a(f"""
    s_and_b32 s3, s2, 7
    s_lshl_b32 s3, s3, 5
    s_lshr_b32 s21, s2, 3
    s_add_u32 s3, s3, s21                ; lin
    s_mul_i32 s35, {"s3" if OPT["slin"] else "s2"}, 10240
    v_lshrrev_b32 v1, 5, v0
    v_mul_u32_u24 v1, {1280-512}, v1
    v_lshl_add_u32 v52, v0, 4, v1
    v_and_b32 v1, 16, v0
    v_lshl_add_u32 v53, v1, 26, v52      ; lanes whose third piece is past the row: out of range
    s_mov_b32 s10, {S*D*2}
    s_mov_b32 s11, 0x20000
    """)
    ld = L("s_waitcnt lgkmcnt(0)\ns_mov_b32 s8, s60\ns_and_b32 s9, s61, 0xffff") + stamp("karg")
    for j in range(3): ld.append(f"  buffer_load_dwordx4 {vr(8+4*j)}, v{53 if j == 2 else 52}, s[8:11], s35 offen offset:{512*j} ;#sl")
    if OPT["head"] == 0: a += ld
    a(f"""
    s_getpc_b64 s[36:37]
    v_cmp_eq_u32 s[32:33], 0, v1
    v_lshrrev_b32 v1, 6, v0
    v_and_b32 v7, 63, v0                 ; lane
    v_readfirstlane_b32 s20, v1          ; wave
    s_lshr_b32 s23, s3, 5
    s_min_u32 s23, s23, 2
    s_sub_u32 s23, s3, s23
    s_cmp_lt_u32 s3, 118
    s_cselect_b32 s28, 1, 116
    s_cselect_b32 s29, 13108, 10923
    s_cselect_b32 s30, 5, 6
    s_cselect_b32 s31, 0, 5
    s_sub_u32 s28, s23, s28
    s_mul_i32 s22, s28, s29
    s_lshr_b32 s22, s22, 16
    s_mul_i32 s30, s22, s30
    s_sub_u32 s21, s28, s30
    s_add_u32 s21, s21, s31              ; rb
    s_cmp_lt_u32 s2, 3
    s_cselect_b32 s21, 11, s21
    s_min_u32 s54, s21, 9                ; start chunk
    """)
    if OPT.get("lock") == 1: a("s_mov_b32 s54, 0")
    if OPT.get("lock") == 2: a("s_cmp_lt_u32 s21, 6\ns_cselect_b32 s54, 0, 5")
    if OPT.get("lock") == 3: a("s_lshr_b32 s54, s54, 1\ns_lshl_b32 s54, s54, 1")
    a(f"""
    """)
    xa = A()
    xa(f"""
    s_lshl_b32 s28, s21, 2
    s_add_u32 s28, s28, s20
    s_mul_i32 s28, s28, {48*1280}
    v_lshrrev_b32 v1, 3, v7              ; r8
    v_lshrrev_b32 v2, 1, v1
    v_and_b32 v3, 7, v7
    v_xor_b32 v2, v2, v3
    v_mul_u32_u24 v1, 1280, v1
    v_lshl_add_u32 v252, v3, 4, v1
    v_add_u32 v1, s28, v1
    v_lshl_add_u32 v{VX}, v2, 4, v1
    v_xor_b32 v2, 4, v2
    v_lshl_add_u32 v6, v2, 4, v1
    """)
    for j in range(1, 6): xa(f"v_add_u32 v{VX+j}, {j*10240 - 1024*(j%4)}, v{6 if j & 1 else VX}")
    xa("s_mul_i32 s40, s20, 6144\ns_lshl_b32 s42, s54, 7")
    wa = A()
    wa(f"""
    s_sub_u32 s28, 22, s22
    s_cmp_lt_u32 s3, 118
    s_cselect_b32 s22, s22, s28
    s_mul_i32 s28, s22, 43
    s_lshr_b32 s28, s28, 8               ; g = p/6
    s_mul_i32 s29, s28, 6
    s_sub_u32 s29, s22, s29              ; r
    s_mul_i32 s30, s28, 3
    s_add_u32 s30, s30, s29
    s_add_u32 s30, s30, 9                ; w1: 12+3g+r-3
    s_lshl_b32 s31, s28, 1
    s_add_u32 s31, s31, s29
    s_sub_u32 s31, s31, 1                ; kv: 2g+r-1
    s_add_u32 s28, s28, 8                ; q
    s_cmp_lt_u32 s29, 3
    s_cselect_b32 s22, s31, s30
    s_cmp_eq_u32 s29, 0
    s_cselect_b32 s22, s28, s22
    s_cmp_lt_u32 s2, 3
    s_cselect_b32 s22, 12, s22
    s_cmp_lt_u32 s22, 12
    s_cselect_b32 s12, s62, s68
    s_cselect_b32 s13, s63, s69
    s_cselect_b32 s14, {D*3*D*2}, {D*F*2}
    s_cselect_b32 s50, 3840, 3456        ; W row stride
    s_cselect_b32 s28, 8, 12
    s_and_b32 s13, s13, 0xffff
    s_mov_b32 s15, 0x20000
    s_lshl_b32 s45, s50, 6
    s_sub_u32 s23, s22, s28
    s_mul_i32 s29, s23, 320
    s_mul_i32 s30, s22, 160
    s_add_u32 s30, s30, 1280
    s_cmp_lt_u32 s22, 8
    s_cselect_b32 s29, s30, s29
    s_cselect_b32 s30, 1200, 0
    s_cselect_b32 s31, -80, 0
    s_lshl_b32 s28, s20, 4
    s_mul_i32 s28, s28, s50
    s_add_u32 s29, s29, s28
    s_mul_i32 s41, s20, 5120
    s_add_u32 s41, s41, {WOFF}
    s_mul_i32 s43, s54, s45
    s_movk_i32 s28, -20
    v_xor_b32 v54, 2, v7                 ; rows 8..15 swap adjacent 32-byte units
    v_lshrrev_b32 v55, 4, v7
    v_and_b32 v55, 2, v55
    v_xor_b32 v55, v55, v7
    """)
    dw = grp(dma_w(0), 1); wj = []
    for jj in range(5):
        src = 7 if jj < 2 else 55 if jj == 2 else 54
        b = A()
        if jj: b(f"v_add_u32 v1, {64*jj}, v{src}")
        q = 1 if jj else 7
        b(f"""
        v_mul_u32_u24 v2, 3277, v{q}
        v_lshrrev_b32 v2, 16, v2
        v_mad_i32_i24 v3, v2, s28, v{q}
        v_mul_u32_u24 v2, s50, v2
        v_lshl_add_u32 v2, v3, 4, v2
        v_mul_u32_u24 v3, 205, v3
        v_bfe_u32 v1, v3, 10, 1
        v_lshrrev_b32 v3, 11, v3
        v_mad_u32_u24 v2, v1, s30, v2
        v_mad_i32_i24 v2, v3, s31, v2
        v_add_u32 v{VW+jj}, s29, v2
        """)
        if jj < 3: b("s_sub_u32 s29, s29, 1024")
        if jj == 3: b("s_add_u32 s29, s29, 3072")
        wj.append(list(b))
    if OPT["wfirst"]:
        a += wa
        for jj in range(5): a += wj[jj] + dw[jj]
        a += stamp("w0i") + xa
        first = grp(dma_x(0), 1)
    else:
        if OPT["head"] == 0: a += xa + dma_x(0) + wa + sum(wj, [])
        elif OPT["head"] == 1: a += xa + ld + dma_x(0) + wa + sum(wj, [])
        elif OPT["head"] == 2: a += wa[:20] + ld + xa + dma_x(0) + wa[20:] + sum(wj, [])
        elif OPT["head"] == 4: a += wa[:20] + xa + ld + dma_x(0) + wa[20:] + sum(wj, [])
        elif OPT["head"] == 5:
            ptr = [x for x in wa if re.match(r"\s*s_(cselect|and)_b32 s1[23],", x)]
            a += xa + [x for x in wa if x not in ptr] + ld + dma_x(0) + L("s_cmp_lt_u32 s22, 12") + ptr + sum(wj, [])
        elif OPT["head"] == 3: a += xa + ld[:3] + wa + sum(wj, []) + ld[3:] + dma_x(0)
        first = dw
    a(f"""
    s_load_dword s39, s[26:27], 0
    v_lshlrev_b32 v4, 4, v7
    s_lshl_b32 s48, {"s3" if OPT["slin"] else "s2"}, 2
    s_add_u32 s48, s48, s20              ; stats job
    s_and_b32 s36, s36, 0xffffff00
    s_lshr_b32 s28, s2, 3
    s_lshl_b32 s29, s20, 5
    s_add_u32 s28, s28, s29
    s_add_u32 s28, s28, 2
    s_mov_b64 s[0:1], s[36:37]
    s_lshl_b32 s50, s28, 10
    s_cmp_ge_u32 s28, CODE_KB
    s_cbranch_scc1 k_nocp
    v_add_u32 v1, s50, v4
    v_min_u32 v1, CODE_MAX, v1
    global_load_dwordx4 v[128:131], v1, s[0:1] ;nocount
    k_nocp:
    """)
    su = A()
    su += srd(16, 26, WS_USED)
    su(f"""
    s_lshr_b32 s51, s20, 1               ; wr
    s_and_b32 s52, s20, 1                ; wc
    v_lshrrev_b32 v59, 4, v7             ; g
    v_bfe_u32 v56, v7, 2, 2              ; rr
    v_and_b32 v57, 3, v7                 ; c4
    v_and_b32 v58, 1, v59                ; g&1
    v_and_b32 v3, 15, v7                 ; m
    v_lshrrev_b32 v6, 1, v3
    v_xor_b32 v6, v6, v59
    s_mul_i32 s28, s51, 12288
    v_lshl_add_u32 v55, v3, 7, s28
    v_lshl_add_u32 v{LA}, v6, 4, v55
    v_xor_b32 v6, 4, v6
    v_lshl_add_u32 v{LA+1}, v6, 4, v55
    v_lshl_add_u32 v55, v59, 3, v56
    v_mul_u32_u24 v55, 320, v55
    v_lshl_add_u32 v55, v57, 3, v55
    v_add_u32 v55, {WOFF}, v55
    s_cmp_lt_u32 s22, 8
    s_cselect_b32 s34, 5, 6
    s_cselect_b32 s35, 9, 5
    s_cmp_eq_u32 s52, 0
    s_cselect_b32 s34, 0, s34
    s_cselect_b32 s35, 4, s35
    s_add_u32 s30, s34, 1
    """)
    for i, sreg in enumerate((34, 30, 35)):
        su(f"v_xor_b32 v6, s{sreg}, v58\nv_lshl_add_u32 v{LB+i}, v6, 5, v55")
    su(f"""
    v_mov_b32 v6, 0x3f803f80
    v_accvgpr_write_b32 a{ONES}, v6
    v_accvgpr_write_b32 a{ONES+1}, v6
    v_accvgpr_write_b32 a{ONES+2}, v6
    v_accvgpr_write_b32 a{ONES+3}, v6
    """)
    mv = OPT["keep"]
    if OPT["swarm"]:
        w = L(f"""
        s_lshl_b32 s28, s48, 3
        s_add_u32 s28, s28, {NEGM}
        s_load_dword s76, s[26:27], s28
        s_add_u32 s28, s28, {RSTD - NEGM}
        s_load_dword s77, s[26:27], s28
        s_lshl_b32 s28, s2, {OPT['fash']}
        s_add_u32 s28, s28, {FA}
        s_load_dword s78, s[26:27], s28
        """)
        if OPT["swarm"] > 1:
            w += L(f"""
            s_mul_i32 s28, s22, 10
            s_add_u32 s28, s28, s54
            s_mul_i32 s28, s28, 640
            s_mul_i32 s29, s20, 192
            s_add_u32 s28, s28, s29
            s_add_u32 s28, s28, {CSP}
            s_load_dword s79, s[26:27], s28
            s_add_u32 s28, s28, 64
            s_load_dword s80, s[26:27], s28
            s_add_u32 s28, s28, 64
            s_load_dword s81, s[26:27], s28
            """)
        su[:0] = w
    if mv >= 1: su += d_pack_src() + d_cs()
    if mv >= 2: su += d_pack_dst()
    assert mv == 2
    pe = glue(p2_early() + (L("s_mov_b64 s[36:37], s[74:75]") + d_misc() if OPT["mv3"] >= 1 else []) + (setup_s() if OPT["mv3"] >= 2 else [])); n1 = OPT["pe1"]
    su += sum(pe[:n1], [])
    a += inter(su, first, OPT["sufirst"])
    if OPT["pkd"] == -1:
        a("s_cmp_lt_u32 s22, 8\ns_cbranch_scc1 k_nopk")
        for i in range(5):
            a += [f"  s_add_u32 m0, s53, {896*i}", f"  buffer_load_dwordx4 v252, s[56:59], s55 offen offset:{128*i} {'nt ' if OPT.get('pknt', 1) else ''}lds ;nocount"]
        a("k_nopk:\n;MARK pk")
    a += stamp("c0i")
    a += dma_next(1)
    a += W("sl")
    a += stamp("sl")
    a += inter(sum(pe[n1:], []) + stats_math(), grp(dma_x(1) + dma_w(1), 1))
    a += dma_next(2)
    a("s_waitcnt lgkmcnt(0)\ns_mul_i32 s39, s39, 1664525\ns_add_u32 s39, s39, 1013904223")
    if OPT["touch"] == 2: a += [x.replace(f"v{CS+5}", "v60").replace(f"v{CS+6}", "v61").replace(f"v{CS+7}", "v62") for x in d_touch()]
    a += stamp("pend")
    return a

def d_pack_src():
    return L(f"""
    s_mul_i32 s36, s21, -15
    s_add_u32 s36, s36, s22
    s_add_u32 s36, s36, 142
    s_lshr_b32 s37, s36, 1               ; ks
    s_and_b32 s38, s36, 1
    s_cmp_lt_u32 s37, 54
    s_cselect_b32 s56, s70, s64
    s_cselect_b32 s57, s71, s65
    s_cmp_lt_u32 s37, 54
    s_cselect_b32 s58, {F*D*2}, {D*D*2}
    s_cmp_lt_u32 s37, 54
    s_cselect_b32 s28, 0, 54
    s_and_b32 s57, s57, 0xffff
    s_mov_b32 s59, 0x20000
    s_sub_u32 s28, s37, s28
    s_mul_i32 s28, s28, {32*1280}
    s_mul_i32 s29, s38, 640
    s_add_u32 s55, s28, s29
    s_mul_i32 s29, s20, 10240
    s_add_u32 s55, s55, s29              ; pack src (8 rows per wave)
    s_mul_i32 s53, s20, 5120
    s_add_u32 s53, s53, {PACKL}
    """)
def d_cs():
    return L(f"""
    s_lshl_b32 s34, s34, 6
    s_lshl_b32 s35, s35, 6
    v_lshl_add_u32 v253, v7, 2, s34
    v_lshl_add_u32 v254, v7, 2, s35
    v_and_b32 v6, 48, v7
    v_lshl_add_u32 v254, v6, 22, v254
    s_add_u32 s34, s34, {CSL}
    s_add_u32 s35, s35, {CSL}
    s_mul_i32 s62, s22, 6400
    s_add_u32 s62, s62, {CSP}
    s_mul_i32 s64, s21, 640
    s_add_u32 s64, s64, s62
    s_cmp_ge_u32 s21, 10
    s_cselect_b32 s64, {OOB}, s64
    s_cmp_eq_u32 s51, 1
    s_cselect_b32 s64, {OOB}, s64
    """)
def d_pack_dst():
    return L(f"""
    v_add_u32 v5, 4096, v4
    s_mul_i32 s28, s37, 205
    s_lshr_b32 s28, s28, 10              ; c
    s_mul_i32 s30, s28, 5
    s_sub_u32 s30, s37, s30              ; r
    s_lshl_b32 s29, s30, 3
    s_lshr_b32 s47, 0x01001600, s29      ; r -> 0, 22, -, 1
    s_and_b32 s47, s47, 255
    s_cmp_eq_u32 s30, 4
    s_cselect_b32 s47, 23, s47
    s_lshl_b32 s29, s28, 1
    s_add_u32 s47, s47, s29
    s_add_u32 s28, s28, 43
    s_cmp_eq_u32 s30, 2
    s_cselect_b32 s31, 1, 0
    s_cselect_b32 s47, s28, s47
    s_cmp_ge_u32 s37, 54
    s_cselect_b32 s31, 1, s31
    s_cselect_b32 s47, s37, s47          ; storage index
    s_lshl_b32 s28, 5120, s31            ; per g>>1
    s_mul_i32 s29, s31, 4608
    s_add_u32 s29, s29, 512              ; per g&1
    s_mul_i32 s30, s31, -9728
    s_add_u32 s30, s30, 10240
    v_lshrrev_b32 v3, 5, v7
    v_mul_u32_u24 v1, s28, v3
    v_bfe_u32 v3, v7, 4, 1
    v_mad_u32_u24 v1, v3, s29, v1
    v_bfe_u32 v3, v7, 2, 2
    v_lshl_add_u32 v1, v3, 7, v1
    v_and_b32 v3, 3, v7
    v_lshl_add_u32 v1, v3, 3, v1
    s_mul_i32 s28, s20, 1056
    s_add_u32 s28, s28, {PACKL}
    v_add_u32 v1, s28, v1
    v_add_u32 v2, s30, v1
    s_lshl_b32 s28, s38, 2
    s_add_u32 s28, s28, s20              ; ct
    s_add_u32 s28, s28, {WPP}
    s_lshl_b32 s28, s28, 21
    s_lshl_b32 s29, s47, 14
    s_add_u32 s28, s28, s29
    s_bfe_u32 s29, s47, 0x10001
    s_mul_i32 s29, s29, {3072 + 8192}
    s_add_u32 s28, s28, s29
    s_cmp_ge_u32 s36, 148
    s_cselect_b32 s60, {OOB}, s28
    """)
def d_touch():
    r = CS + 8
    return L(f"""
    s_mul_i32 s28, s22, 11
    s_add_u32 s28, s28, s21
    s_lshl_b32 s28, s28, 2
    s_add_u32 s28, s28, s20              ; index 0..351
    s_not_b32 s30, s39
    s_sub_u32 s29, s28, 96
    s_cmp_lt_u32 s29, 64
    s_cselect_b32 s30, 0, s30
    v_mov_b32 v{r}, s30
    v_mov_b32 v{r+1}, s30
    v_mov_b32 v{r+2}, s30
    v_mov_b32 v{r+3}, s30
    s_lshl_b32 s29, s28, 10
    s_cmp_lt_u32 s28, 64
    s_cselect_b32 s30, {FP}, {FO - 64*1024}
    s_add_u32 s29, s29, s30
    s_lshl_b32 s30, s28, 15
    s_add_u32 s30, s30, {GXP*PG + 3072 - 160*32768}
    s_cmp_lt_u32 s28, 160
    s_cselect_b32 s29, s29, s30
    s_cselect_b32 s30, 0, 3968
    v_lshrrev_b32 v{r-1}, 3, v7
    v_mad_u32_u24 v{r-1}, v{r-1}, s30, v4
    buffer_store_dwordx4 {vr(r)}, v{r-1}, s[16:19], s29 offen sc1 ;#ss
    """)
def d_misc():
    return L(f"""
    s_lshl_b32 s49, s2, {OPT['fash']}
    s_add_u32 s49, s49, {FA}
    s_cmp_eq_u32 s20, 0
    s_cselect_b32 s49, s49, {OOB}        ; A flag (wave 0)
    v_add_u32 v5, 4096, v4
    """) + srd(4, 72, S*D*2) + L(f"""
    s_mul_i32 s74, s22, 6400
    s_add_u32 s74, s74, {CSP}
    s_add_u32 s73, s2, s20
    s_cmp_eq_u32 s73, 0
    s_cselect_b32 s73, 0, {OOB}          ; epoch word (wg0 wave0)
    s_and_b32 s24, s2, 6
    s_lshl_b32 s24, s24, 2
    s_lshr_b32 s28, s2, 5
    s_add_u32 s24, s24, s28              ; row group of phase 2
    s_bfe_u32 s25, s2, 0x20003
    s_and_b32 s28, s2, 1
    s_lshl_b32 s28, s28, 2
    s_add_u32 s25, s25, s28              ; column tile of phase 2
    s_add_u32 s29, s25, {WPP}
    s_lshl_b32 s29, s29, 21
    s_and_b32 s47, s24, 1
    s_lshl_b32 s28, s20, 1
    s_add_u32 s47, s47, s28              ; first storage index of this wave: 2*wave + parity
    s_lshl_b32 s28, s47, 14
    s_add_u32 s46, s29, s28
    s_mul_i32 s28, s52, {3072 + 8192}
    s_add_u32 s46, s46, s28              ; B stream first
    s_lshl_b32 s28, s20, 14
    s_add_u32 s70, s29, s28
    s_mul_i32 s28, s51, {3072 + 8192}
    s_sub_u32 s70, s70, s28
    s_add_u32 s70, s70, {54*16384 + 3072 + 8192} ; wo src
    s_mul_i32 s69, s20, 5120             ; wo lds base
    s_lshl_b32 s72, s20, 10
    s_add_u32 s72, s72, {AUXC}
    s_mul_i32 s65, s21, 768
    s_add_u32 s65, s65, {NEGM - 144*16}
    s_movk_i32 s66, 192
    s_mul_i32 s67, s22, 12
    s_add_u32 s67, s67, s21
    s_lshl_b32 s67, s67, 7
    s_add_u32 s67, s67, {FP}
    s_cmp_eq_u32 s20, 0
    s_cselect_b32 s67, s67, {OOB}
    """)

def zipw(*ls):
    keyed = []
    for li, l in enumerate(ls):
        for j, x in enumerate(l): keyed.append(((j + 0.5)/len(l), li, j, x))
    keyed.sort(key=lambda t: t[:3])
    return [y for k in keyed for y in k[3]]
def epi_t(kind, st):
    RC = 212; PK = AB[1]; TMP = AB[0]
    e = A()
    for T in range(6):
        c = RC + 4*T
        e(f"v_mul_f32 v{c+2}, s83, v{c+1}")
        if kind == "silu": e(f"v_rcp_f32 v{c+3}, v{c+1}")
    blocks = [[(T, i) for T in Ts for i in idx] for idx in ((0, 1, 2, 3), (4, 5, 6, 7)) for Ts in ((0, 1), (2, 3), (4, 5))]
    blocks.append([(T, i) for T in range(6) for i in (8, 9)])
    nxt = lambda T: f"  s_mov_b32 s48, s{81 if T == 1 else 82}" if T in (1, 3) else "  s_add_u32 s48, s48, 1024"
    pend = []
    allld = grp(st.take(sum(OPT["epi"])), 1)
    for bi, blk in enumerate(blocks):
        V = []; n = len(blk)
        u = lambda k: acc(blk[k][0], 0) + 2*blk[k][1]
        c = lambda k: RC + 4*blk[k][0]
        for k in range(n): V.append(f"  v_pk_fma_f32 {vr(u(k),2)}, {vr(CS+2*blk[k][1],2)}, {vr(c(k),2)}, {vr(u(k),2)} op_sel_hi:[1,0,1]")
        for k in range(n): V.append(f"  v_pk_mul_f32 {vr(TMP+2*k,2)}, {vr(u(k),2)}, {vr(c(k)+2,2)} op_sel_hi:[1,0]")
        if kind == "silu":
            for k in range(2*n): V.append(f"  v_exp_f32 v{TMP+k}, v{TMP+k}")
            for k in range(n): V.append(f"  v_pk_fma_f32 {vr(TMP+2*k,2)}, {vr(TMP+2*k,2)}, {vr(c(k)+2,2)}, {vr(c(k)+2,2)} op_sel:[0,1,1] op_sel_hi:[1,1,1]")
            for k in range(2*n): V.append(f"  v_rcp_f32 v{TMP+k}, v{TMP+k}")
            fin = lambda k: f"  v_pk_mul_f32 {vr(u(k),2)}, {vr(u(k),2)}, {vr(TMP+2*k,2)}"
        else:
            for k in range(2*n): V.append(f"  v_exp_f32_e64 v{TMP+k}, v{TMP+k} clamp")
            for k in range(n): V.append(f"  v_pk_fma_f32 {vr(u(k),2)}, {vr(u(k),2)}, {vr(c(k),2)}, 1.0 op_sel:[0,1,0] op_sel_hi:[1,1,0]")
            for k in range(2*n): V.append(f"  v_max_f32 v{u(k//2)+(k&1)}, v{u(k//2)+(k&1)}, v{TMP+k}")
            fin = lambda k: f"  v_pk_add_f32 {vr(u(k),2)}, {vr(u(k),2)}, {vr(VX+4,2)}"
        items = pend + allld[sum(OPT["epi"][:bi]):sum(OPT["epi"][:bi+1])]
        if bi == OPT["f1blk"]: items.insert(len(pend) + OPT["f1pos"], W("sa") + L("s_barrier") + flag("s75") + stamp("f1"))
        ins = {}
        for k, x in enumerate(items): ins[5 + (k*(len(V) - 6)//len(items))//2*2] = x
        for i, v in enumerate(V):
            e.append(v)
            if i in ins: e += ins[i]
        p = PK + 12*(bi & 1); tg = " ;#sa" if bi < 3 else ""
        pend = []
        for q in range(n//4):
            for k in range(4*q, 4*q + 4): e.append(fin(k))
            for k in range(4*q, 4*q + 4): e(f"v_cvt_pk_bf16_f32 v{p+k}, v{u(k)}, v{u(k)+1}")
            if bi < 6:
                T = blk[4*q][0]
                stv = [f"  buffer_store_dwordx4 {vr(p+4*q)}, v{VX + bi//3}, s[16:19], s{80 + T//2} offen offset:{1024*(T & 1)} sc1{tg}"]
                if q == 0: e += stv
                else: pend.append(stv)
            else:
                e(f"v_permlane16_swap_b32 v{p+4*q}, v{p+4*q+2}\nv_permlane16_swap_b32 v{p+4*q+1}, v{p+4*q+3}")
                e(f"buffer_store_dwordx4 {vr(p+4*q)}, v{VX+2}, s[16:19], s{80 + q} offen sc1")
    return resolve(e)

def epi_kv(st):
    a = A()
    NM = 196; TMP = AB[0] + 4; FR = AB[1]; DD = ACC
    def RSf(T): return 220 + 4*T if T < 5 else AB[0]
    a(f"""
    v_mov_b32 v{TMP+12}, 0x358637bd
    v_mov_b32 v{TMP+13}, 0x358637bd
    v_mov_b32 v{TMP+14}, 0x3f803f80
    s_waitcnt lgkmcnt(0)
    """)
    allld = grp(st.take(sum(OPT["epi_n"])), 1)
    def kvm(P): return [f"  v_mfma_f32_16x16x32_bf16 {vr(DD+4*n)}, {vr(FR+4*kx)}, {vr(FR+4*vy)}, {'0' if P == 0 else vr(DD+4*n)}" for n, (kx, vy) in enumerate(PRODS)]
    for P in range(3):
        for h in range(2):
            T = 2*P + h; u0 = acc(T, 0); nm = NM + 4*T; rs = RSf(T); b = A()
            for t in range(5):
                for i in range(2):
                    r = u0 + 4*t + 2*i
                    b(f"v_pk_fma_f32 {vr(r,2)}, {vr(nm+2*i,2)}, {vr(CS+4*t,2)}, {vr(r,2)} op_sel_hi:[1,0,1]")
            for t in range(5):
                for i in range(2):
                    r = u0 + 4*t + 2*i
                    b(f"v_pk_mul_f32 {vr(r,2)}, {vr(r,2)}, {vr(rs+2*i,2)}")
            for i in range(6): b(f"v_pk_mul_f32 {vr(TMP+2*i,2)}, {vr(u0+2*i,2)}, s[30:31]")
            for i in range(12): b(f"v_exp_f32_e64 v{TMP+i}, v{TMP+i} clamp")
            for t in range(2, 5):
                for i in range(2): b(f"v_cvt_pk_bf16_f32 v{FR+4*(t+1)+2*h+i}, v{u0+4*t+2*i}, v{u0+4*t+2*i+1}")
            for i in range(2): b(f"v_cndmask_b32 v{FR+12+2*h+i}, v{FR+12+2*h+i}, v{TMP+14}, s[32:33]")
            for i in range(6): b(f"v_pk_add_f32 {vr(u0+2*i,2)}, {vr(u0+2*i,2)}, 1.0 op_sel_hi:[1,0]")
            for i in range(12): b(f"v_max_f32 v{u0+i}, v{u0+i}, v{TMP+i}")
            for i in range(6): b(f"v_pk_add_f32 {vr(u0+2*i,2)}, {vr(u0+2*i,2)}, {vr(TMP+12,2)}")
            for t in range(3):
                for i in range(2): b(f"v_cvt_pk_bf16_f32 v{FR+4*t+2*h+i}, v{u0+4*t+2*i}, v{u0+4*t+2*i+1}")
            n = OPT["epi_n"][T]
            a += inter(b, allld[sum(OPT["epi_n"][:T]):sum(OPT["epi_n"][:T+1])], 2) if n else b
        if P: a(f"s_cmp_eq_u32 s36, 1\ns_cbranch_scc1 k_kvs{P}")
        for n, (kx, vy) in enumerate(PRODS):
            d = vr(DD + 4*n)
            a(f"v_mfma_f32_16x16x32_bf16 {d}, {vr(FR+4*kx)}, {vr(FR+4*vy)}, {'0' if P == 0 else d}")
        if P: a(f"k_kvs{P}:")
    a += stamp("kvv")
    a(f"""
    s_mul_i32 s28, s51, 1792
    s_add_u32 s37, s37, s28
    s_lshl_b32 s29, s52, 12
    s_add_u32 s28, s28, s29
    s_add_u32 s28, s28, {KVX}
    v_lshlrev_b32 v2, 2, v7
    v_add_u32 v3, s28, v2
    s_cmp_eq_u32 s51, 0
    s_cselect_b32 s28, 64, 8
    v_cmp_gt_u32 vcc, s28, v7
    v_mov_b32 v6, {OOB}
    """)
    for n in range(8): a(f"ds_write_b128 v{KVOF[n]}, {vr(DD+4*n)}")
    a("v_cndmask_b32 v6, v6, v2, vcc\ns_waitcnt lgkmcnt(0)\ns_barrier")
    for n in range(7): a(f"ds_read2st64_b32 {vr(72+2*n,2)}, v3 offset0:{n} offset1:{32+n}")
    for n in range(7):
        a(f"s_waitcnt lgkmcnt({6-n})\nv_add_f32 v{72+2*n}, v{72+2*n}, v{73+2*n}")
        a(f"buffer_atomic_add_f32 v{72+2*n}, v{6 if n == 6 else 2}, s[16:19], s37 offen offset:{256*n}")
    a += stamp("kvs")
    return a

PARK = list(range(168, 184)) + [239, 238, 240, 241, 242, 251, 252, 253]
def p2_early():
    GA = 168; F1A = 239; FW = 238; XA = [251, 252, 253]
    h = L(f"""
    s_and_b32 s21, s2, 3
    s_lshl_b32 s21, s21, 2
    s_bfe_u32 s28, s2, 0x20003
    s_add_u32 s21, s21, s28              ; hp
    s_and_b32 s23, s2, 4
    s_lshl_b32 s23, s23, 1
    s_lshr_b32 s28, s2, 5
    s_add_u32 s23, s23, s28              ; rg
    s_and_b32 s24, s2, 6
    s_lshl_b32 s24, s24, 2
    s_add_u32 s24, s24, s28
    s_mul_i32 s54, s21, 5
    s_lshr_b32 s54, s54, 2
    s_mul_i32 s49, s20, 15360
    s_add_u32 s49, s49, {RED}
    s_and_b32 s28, s24, 30
    s_mul_i32 s35, s28, 21846
    s_lshr_b32 s35, s35, 16
    s_add_u32 s35, s35, 144              ; W1 lines of the first row block: (12+i)*12 + rb, lanes 0..10
    s_add_u32 s28, s28, 1
    s_mul_i32 s28, s28, 21846
    s_lshr_b32 s28, s28, 16
    s_add_u32 s28, s28, 12               ; second row block, lanes 11..21
    s_lshr_b32 s29, s21, 1
    s_mul_i32 s29, s29, 12
    s_sub_u32 s29, s29, 22
    s_lshl_b32 s30, s23, 1
    s_mul_i32 s31, s30, 21846
    s_lshr_b32 s31, s31, 16
    s_add_u32 s30, s30, 1
    s_mul_i32 s30, s30, 21846
    s_lshr_b32 s30, s30, 16
    s_lshr_b32 s34, s21, 2
    s_mul_i32 s34, s34, 12
    s_add_u32 s34, s34, 96
    s_add_u32 s31, s31, s34              ; Q line, first row block (lane 22)
    s_add_u32 s30, s30, s34              ; Q line, second row block (lanes 23..)
    v_min_u32 v1, 21, v7
    v_mad_u32_u24 v2, v1, 12, s35
    v_mad_u32_u24 v3, v1, 12, s28
    v_cmp_le_u32 vcc, 11, v7
    v_cndmask_b32 v2, v2, v3, vcc
    v_lshlrev_b32 v3, 7, v2
    v_add_u32 v{F1A}, {FP + FPD}, v3
    v_add_u32 v3, s29, v7
    v_cmp_le_u32 vcc, 22, v7
    v_cndmask_b32 v2, v2, v3, vcc
    v_mov_b32 v3, s31
    v_cmp_le_u32 vcc, 33, v7
    v_cndmask_b32 v2, v2, v3, vcc
    v_mov_b32 v3, s30
    v_cmp_le_u32 vcc, 34, v7
    v_cndmask_b32 v2, v2, v3, vcc
    v_lshlrev_b32 v2, 7, v2
    v_add_u32 v{FW}, {FP}, v2
    """)
    s2 = A()
    s2(f"""
    v_and_b32 v1, 15, v7                 ; i / m
    v_lshrrev_b32 v2, 4, v7              ; g
    v_lshrrev_b32 v3, 2, v1
    v_and_b32 v212, 3, v1
    v_lshl_add_u32 v6, v3, 3, v212
    v_cmp_le_u32 vcc, 20, v6
    v_cndmask_b32 v216, 0, 5, vcc
    v_lshlrev_b32 v220, 2, v216
    v_sub_u32 v220, v6, v220
    v_add_u32 v6, 4, v6
    v_cmp_le_u32 vcc, 20, v6
    v_cndmask_b32 v217, 0, 5, vcc
    v_lshlrev_b32 v221, 2, v217
    v_sub_u32 v221, v6, v221
    v_cmp_gt_u32 vcc, 8, v1
    v_cndmask_b32 v218, 64, 5, vcc
    v_add_u32 v222, 12, v1
    v_add_u32 v6, v3, v212
    v_cmp_le_u32 vcc, 3, v6
    v_cmp_le_u32 s[34:35], 2, v212
    s_or_b64 vcc, vcc, s[34:35]
    v_cndmask_b32 v219, 0, 5, vcc
    v_mov_b32 v223, 20
    v_mov_b32 v213, 255
    s_mov_b32 s37, {RED}
    """)
    for k in range(2):
        s2(f"""
        s_add_u32 s31, s54, {k}
        s_mul_i32 s32, s31, 205
        s_lshr_b32 s32, s32, 10
        s_mul_i32 s32, s32, 5
        s_sub_u32 s32, s31, s32
        s_cmp_eq_u32 s32, 2
        s_cselect_b32 s33, 1, 0
        s_cselect_b32 s36, 1, 4
        s_lshl_b32 s31, s31, 3
        s_mul_i32 s32, s21, 10
        s_sub_u32 s31, s31, s32
        v_lshlrev_b32 v3, s33, v2
        v_add_u32 v3, s31, v3
        """)
        for j in range(2):
            if j: s2("v_add_u32 v3, s36, v3")
            for tl in range(4):
                s2(f"""
                v_sub_u32 v212, v3, v{216+tl}
                v_cmp_gt_u32 vcc, 5, v212
                v_mad_u32_u24 v212, v3, 21, v{220+tl}
                v_cndmask_b32 v212, v213, v212, vcc
                v_lshl_add_u32 v{GA+tl*4+k*2+j}, v212, 3, s37
                """)
    fs = A()
    for i in range(3):
        fs(f"""
        v_add_u32 v6, {64*i}, v7
        v_mul_u32_u24 v1, 6554, v6
        v_lshrrev_b32 v1, 16, v1
        v_mul_u32_u24 v3, 1120, v1
        v_lshl_add_u32 v3, v6, 4, v3
        v_cmp_gt_u32 vcc, 160, v6
        v_add_u32 v1, v1, v6
        v_mov_b32 v6, {OOB}
        v_lshl_add_u32 v{240+i}, v1, 4, s49
        v_cndmask_b32 v{XA[i]}, v6, v3, vcc
        """)
    smap = {21: 76, 54: 77, 23: 78, 32: 80, 33: 81, 34: 82, 35: 83, 36: 46, 37: 47, 49: 25}
    vmap = {1: 64, 2: 65, 3: 66, 6: 67, 239: 184, 238: 185, 240: 186, 241: 187, 242: 188, 251: 189, 252: 190, 253: 191}
    out = []
    for x in h + s2 + fs:
        x = x.replace("s[34:35]", "s[82:83]")
        x = re.sub(r"\bs(\d+)\b", lambda m: f"s{smap.get(int(m.group(1)), int(m.group(1)))}", x)
        x = re.sub(r"\bv(\d+)\b", lambda m: f"v{vmap.get(int(m.group(1)), int(m.group(1)))}", x)
        out.append(x)
    return out + [f"  v_accvgpr_write_b32 a{204+i}, v{168+i}" for i in range(24)]

def phase2(st):
    a = A()
    G = 8; GR = 88; AR = 140; NA = 4; SA = 208; XB = 228; RP = 148
    AV = [244, 245, 246, 247]; RW = [248, 249, 250]; XA = [251, 252, 253]
    GA = 168; DB = 208; KA = 236; OA = 0; UA = 237; FW = 238
    g1 = OPT["gap1"]; psched = OPT["psched"]; wtr = OPT["wtrail"]; F1A = 239; OB = 235
    s1 = L(f"""
    s_cmp_eq_u32 s20, 0
    s_cselect_b32 s55, 0, {OOB}
    s_cselect_b64 s[56:57], -1, 0
    s_and_b32 s21, s2, 3
    s_lshl_b32 s21, s21, 2
    s_bfe_u32 s28, s2, 0x20003
    s_add_u32 s21, s21, s28              ; hp
    s_and_b32 s23, s2, 4
    s_lshl_b32 s23, s23, 1
    s_lshr_b32 s28, s2, 5
    s_add_u32 s23, s23, s28              ; rg
    v_accvgpr_read_b32 v{F1A}, a220
    v_accvgpr_read_b32 v{FW}, a221
    s_mul_i32 s54, s21, 5
    s_lshr_b32 s54, s54, 2               ; ksA
    s_lshl_b32 s60, s21, 12
    s_add_u32 s60, s60, {KVP}
    v_lshlrev_b32 v3, 4, v0
    v_cmp_gt_u32 vcc, 210, v0
    v_mov_b32 v6, {OOB}
    v_cndmask_b32 v{KA}, v6, v3, vcc
    s_lshl_b32 s76, s23, 1
    s_add_u32 s76, s76, s51
    """) + blk(63, 76, "q", 28, 29) + L(f"""
    s_xor_b32 s63, s63, s3
    s_lshl_b32 s30, s52, 11
    s_add_u32 s63, s63, s30
    s_add_u32 s62, s54, 1
    """) + cell(61, 54, 28) + cell(62, 62, 28) + L(f"""
    s_add_u32 s61, s61, s63
    s_add_u32 s62, s62, s63
    s_add_u32 s63, s63, {QSZ}
    """)
    s2 = A()
    s2(f"v_and_b32 v1, 15, v7\nv_lshrrev_b32 v2, 4, v7\ns_mov_b32 s37, {RED}")
    s2 += [f"  v_accvgpr_read_b32 v{r}, a{204+i}" for i, r in enumerate(PARK) if i not in (16, 17)]
    ol = L(f"buffer_load_dwordx4 v[208:211], v{KA}, s[16:19], s60 offen sc1 ;#P")
    ql = L(f"""
    buffer_load_dwordx4 a[240:243], v4, s[16:19], s61 offen sc1 ;#Q
    buffer_load_dwordx4 a[244:247], v4, s[16:19], s62 offen sc1 ;#Q
    buffer_load_dwordx4 a[248:251], v4, s[16:19], s61 offen offset:1024 sc1 ;#Q
    buffer_load_dwordx4 a[252:255], v4, s[16:19], s62 offen offset:1024 sc1 ;#Q
    """)
    s3 = A()
    s3(f"""
    s_and_b32 s64, s23, 3
    s_lshl_b32 s64, s64, 11
    s_and_b32 s28, s23, 4
    s_lshl_b32 s28, s28, 12
    s_add_u32 s64, s64, s28
    s_and_b32 s28, s23, 8
    s_lshl_b32 s28, s28, 10
    s_xor_b32 s28, s28, s3
    s_add_u32 s64, s64, s28
    s_lshl_b32 s28, s21, 7
    s_add_u32 s64, s64, s28
    s_add_u32 s64, s64, {FO}
    s_add_u32 s64, s64, s55
    s_mul_i32 s28, s21, 5
    v_add_u32 v3, s28, v2
    v_lshrrev_b32 v6, 3, v3
    v_lshlrev_b32 v6, 14, v6
    v_bfe_u32 v212, v3, 2, 1
    v_lshl_add_u32 v6, v212, {13 if OPT["mode"] in ("cols", "none") else 12}, v6
    v_and_b32 v3, 3, v3
    v_lshl_add_u32 v6, v3, 8, v6
    v_lshl_add_u32 v{OB}, v1, 4, v6
    s_add_u32 s28, s28, 4
    s_lshr_b32 s30, s28, 2
    """)
    s3 += cell(30, 30, 29)
    s3(f"""
    s_and_b32 s28, s28, 3
    s_lshl_b32 s28, s28, 8
    s_add_u32 s28, s28, s30
    v_lshl_add_u32 v3, v1, 4, s28
    v_lshl_add_u32 v3, v2, 3, v3
    v_cmp_gt_u32 vcc, 2, v2
    v_mov_b32 v6, {OOB}
    v_lshl_add_u32 v{UA}, v0, 3, s37
    v_cndmask_b32 v{OA}, v6, v3, vcc
    """)
    sA = A()
    sA += blk(40, 24, "h", 28, 29) + cell(30, 47, 29) + L(f"""
    s_xor_b32 s40, s40, s3
    s_add_u32 s44, s40, s30              ; own rows
    s_bitcmp1_b32 s24, 0
    s_cselect_b32 s28, {-HSZ & 0xffffffff}, {HSZ}
    s_add_u32 s45, s44, s28              ; partner rows (other block of the same page)
    """)
    for T in range(4):
        sA(f"s_add_u32 s28, s20, {T}\ns_and_b32 s28, s28, 3\ns_lshl_b32 s28, s28, 10\nv_add_u32 v{AV[T]}, s28, v4")
    osum = W("P") + L(f"v_cvt_pk_bf16_f32 v208, v208, v209\nv_cvt_pk_bf16_f32 v209, v210, v211\nds_write_b64 v{UA}, v[208:209]")
    ogat = [f"  ds_read_b64 {ar(204+2*n,2)}, v{GA+n}" for n in range(16)]
    om = []
    for T in range(2):
        for tl in (3, 0, 1, 2):
            for k in range(2):
                d = vr(DB + 16*T + 4*tl)
                om.append(f"  v_mfma_f32_16x16x32_bf16 {d}, {ar(204+tl*8+k*4)}, {ar(240+T*8+k*4)}, {'0' if k == 0 else d}")
    ofin = []
    for T in range(2):
        o = A(); b = DB + 16*T; z = b + 12; pk = GA + 6*T
        for r in range(3): o(f"v_add_f32 v{z+r}, 0x358637bd, v{z+r}")
        for r in range(3): o(f"v_rcp_f32 v{z+r}, v{z+r}")
        for tl in range(3):
            for r in range(4): o(f"v_mul_f32 v{b+4*tl+r}, v{b+4*tl+r}, v{z+tl}")
        for i in range(6): o(f"v_cvt_pk_bf16_f32 v{pk+i}, v{b+2*i}, v{b+2*i+1}")
        o(f"buffer_store_dwordx4 {vr(pk)}, v2, s[16:19], s63 offen offset:{1024*T} sc1 ;#OS")
        o(f"buffer_store_dwordx2 {vr(pk+4,2)}, v{OA}, s[16:19], s63 offen offset:{1024*T} sc1 ;#OS")
        ofin.append(list(o))
    fs = A()
    fs(f"""
    s_lshl_b32 s42, s24, 2
    s_add_u32 s42, s42, s20
    s_lshr_b32 s30, s24, 1
    s_and_b32 s28, s30, 3
    s_lshl_b32 s28, s28, 11
    s_and_b32 s29, s30, 4
    s_lshl_b32 s29, s29, 12
    s_add_u32 s28, s28, s29
    s_and_b32 s29, s30, 8
    s_lshl_b32 s29, s29, 10
    s_xor_b32 s29, s29, s3
    s_add_u32 s28, s28, s29
    s_add_u32 s28, s28, {FO}
    v_min_u32 v6, 15, v7
    v_lshl_add_u32 v{VF-1}, v6, 7, s28
    s_mul_i32 s48, s42, {16*1280}
    s_mul_i32 s28, s25, 160
    s_add_u32 s48, s48, s28
    """)
    fs += blk(42, 24, "o", 28, 29)
    fs(f"""
    s_xor_b32 s42, s42, s3
    s_lshl_b32 s28, s20, 10
    s_add_u32 s42, s42, s28
    s_mul_i32 s49, s20, 15360
    s_add_u32 s49, s49, {RED}
    v_mul_u32_u24 v243, 176, v1
    v_lshl_add_u32 v243, v2, 3, v243
    v_add_u32 v243, s49, v243            ; result write: row stride 176
    """)
    for T in range(1, 4):
        fs(f"s_add_u32 s28, s20, {T}\ns_and_b32 s28, s28, 3\ns_mul_i32 s28, s28, 15360\ns_add_u32 s28, s28, {RED + (T-1)*5120}\nv_add_u32 v{RW[T-1]}, s28, v4")
    fs(f"""
    v_add_u32 v1, s49, v4
    v_mov_b32 v2, v{OB}
    s_and_b32 s28, s24, 15
    s_lshl_b32 s28, s28, 3
    s_add_u32 s28, s28, s25
    s_lshl_b32 s28, s28, 2
    s_add_u32 s28, s28, s20
    """)
    fs += cell(65, 28, 29)
    fs(f"""
    s_add_u32 s65, s65, {GXP*PG}
    s_lshr_b32 s28, s65, 21
    s_lshr_b32 s29, s24, 4
    s_xor_b32 s28, s28, s29
    s_and_b32 s28, s28, 1
    s_lshl_b32 s28, s28, 13
    s_xor_b32 s28, s28, s3
    s_add_u32 s65, s65, s28
    s_xor_b32 s66, s65, {16*16384}
    s_add_u32 s72, s66, 3072
    s_add_u32 s73, s65, 3072
    """)
    MG = OPT["mg"]
    SL = OPT["slots"]; RL = max(i for i, x in enumerate(SL) if x[0] == "r")
    def areg(s): return 204 if s == 13 else AR + (s % NA)*16
    PAIR = {}
    for p in OPT["pairs"]:
        o = (1, 2, 3, 0) if p + 1 == RL else (0, 1, 2, 3)
        assert SL[p][0] == SL[p+1][0]
        PAIR[p] = [(p, o[0]), (p, o[1]), (p+1, o[0]), (p+1, o[1])]; PAIR[p+1] = [(p, o[2]), (p, o[3]), (p+1, o[2]), (p+1, o[3])]
    def quads(s): return PAIR.get(s, [(s, T) for T in ((1, 2, 3, 0) if s >= MG else range(4))])
    QR = {}
    for s_ in range(14):
        for n_, q_ in enumerate(quads(s_)): QR[q_] = areg(s_) + 4*(n_ if s_ in PAIR else q_[1])
    def ldA(s):
        r = []; cur = None
        for x, T in quads(s):
            if x != cur:
                cur = x; r_, j = SL[x]
                r.append(f"  s_add_u32 s41, s{45 if r_ == 'r' else 44}, {65536*j}")
                if j == 6: r += L(f"s_cmp_lt_u32 s20, 3\ns_cselect_b32 s41, s41, {OOB}")
            r.append(f"  buffer_load_dwordx4 {ar(QR[(x, T)])}, v{AV[T]}, s[16:19], s41 offen sc1 ;#A{x}{'abcd'[T]}")
        return r
    a("k_p2:\n;MARK ep")
    for i in range(7): a(f";MARK B{i}")
    for i in range(5): a(f";MARK wo{i}")
    a += stamp("eend")
    gs = grp(st.take(g1), 2)
    gs.insert(len(gs) - OPT["poll_early"], poll(F1A, VF, "p1", "s55"))
    allsu = glue(s1 + sA + s2 + s3 + fs); k1 = OPT["su1"]; k2 = OPT["su2"]
    assert k1 >= len(glue(s1 + sA))
    flat = lambda l: sum(l, [])
    p1at = next(i for i, x in enumerate(allsu) if f"v_accvgpr_read_b32 v{F1A}," in x[0]) + 1
    a += inter(flat(allsu[:k1]), gs, p1at if OPT["poll_early"] >= len(gs) - 2 else 0)
    a += W("ep") + L("s_barrier") + flag("s67", 224) + stamp("flag")
    a += W("p1") + L("s_mov_b64 s[58:59], vcc") + check("k_s1", F1A, VF, True) + L("s_mov_b64 vcc, s[58:59]") + stamp("c1")
    pre = grp(ldA(2), 1)
    if OPT["pp2"] < 0: pre.append(poll(FW, VF, "p2", "s55"))
    a += ldA(0) + ldA(1) + inter(flat(allsu[k1:k2]), pre)
    if min(OPT["xs"]) < OPT["c2"]:
        kx = max(i for i, x in enumerate(allsu) if "s_add_u32 s49, s49," in x[0]); assert kx < k2, (kx, len(allsu))
    late = allsu[k2:]; nl = OPT["c2"]
    late = {i: flat(late[i*len(late)//nl:(i+1)*len(late)//nl]) for i in range(nl)}
    def ldO(i0, n):
        r = []
        for i in range(i0, i0 + n):
            if OPT["mode"] in ("cols", "none"):
                r += [f"  s_add_u32 s43, s42, {8192*i}", f"  buffer_load_dwordx4 {ar(4*i)}, v4, s[16:19], s43 offen sc1 ;#O{i}"]; continue
            if i % 2 == 0 or i == i0: r.append(f"  s_add_u32 s43, s42, {16384*(i//2)}")
            r.append(f"  buffer_load_dwordx4 {ar(4*i)}, v{4 + (i & 1)}, s[16:19], s43 offen sc1 ;#O{i}")
        return r
    ldX = [[f"  s_add_u32 m0, s49, {4096 + 1024*i}", "  s_nop 0", f"  buffer_load_dwordx4 v{XA[i]}, s[8:11], s48 offen lds ;#X"] for i in range(3)]
    rdX = L("v_add_u32 v2, 51200, v4\nv_and_b32 v3, 15, v7\nv_lshlrev_b32 v3, 4, v3\nv_sub_u32 v3, v243, v3") + W("X") + tag([f"  ds_read_b64 {vr(XB+2*t,2)}, v3 offset:{4096+32*t}" for t in range(5)], "xr")
    def sb(s, t): return vr(GR + 20*(s % 4) + 4*t) if s % 4 < 3 else ar(80 + 4*t)
    def rdB(s): return tag([f"  ds_read_b128 {sb(s,t)}, v{4 if s < 10 else 2} offset:{(s%10)*5120+1024*t}" for t in range(5)], f"b{s}")
    def rdP(s):
        s0 = s & ~1
        return tag([f"  ds_read_b128 {sb(x,t)}, v{4 if x < 10 else 2} offset:{(x%10)*5120+1024*t}" for t in ((0, 1) if s == s0 else (2, 3, 4)) for x in (s0, s0 + 1)], f"b{s}")
    wr_ = tag([f"  ds_write_b128 v{RW[T-1]}, {vr(G+(T*5+t)*4)} offset:{1024*t}" for T in range(1, 4) for t in range(5)], "w")
    rd_ = tag([f"  ds_read_b128 {vr(G+20+4*j)}, v1 offset:{1024*j}" for j in range(15)], "r")
    xw = tag([f"  ds_write_b128 v{RW[T-1]}, {vr(GR+(T*5+t)*4)} offset:{1024*t}" for T in range(1, 4) for t in range(5)], "xw")
    xr = tag([f"  ds_read_b128 {vr(GR+20+20*j+4*t)}, v1 offset:{5120*j+1024*t}" for t in range(5) for j in range(3)], "xr")
    xa = []
    for t in range(5):
        xa += [f"  v_add_f32 v{GR+4*t+i}, v{GR+4*t+i}, v{GR+20+20*j+4*t+i}" for j in range(3) for i in range(4)]
        xa += [f"  v_cvt_pk_bf16_f32 v{GA+2*t+i}, v{GR+4*t+2*i}, v{GR+4*t+2*i+1}" for i in range(2)]
        if t in (1, 3): xa.append(f"  buffer_store_dwordx4 {vr(GA+2*t-2)}, v4, s[16:19], s66 offen offset:{512*(t-1)} sc1 ;#XS")
    xa += L(f"v_lshlrev_b32 v0, 3, v7\nbuffer_store_dwordx2 {vr(GA+8,2)}, v0, s[16:19], s66 offen offset:2048 sc1 ;#XS")
    xl = [f"  buffer_load_dwordx4 {vr(GA+4*t)}, v4, s[16:19], s65 offen offset:{1024*t} sc1 ;#XL" for t in range(2)] + [f"  buffer_load_dwordx2 {vr(GA+8,2)}, v0, s[16:19], s65 offen offset:2048 sc1 ;#XL"]
    XF, XP, XC = OPT["xf"], OPT["xp"], OPT["xc"]
    xpoll = L(f"v_mov_b32 v{VF-1}, s73") + poll(VF-1, VF, "xp")
    C2 = OPT["c2"]; plan = OPT["aplan"]; OFS = OPT["ofs"]; PO = OPT["po"]; PC = OPT["pc"]; osched = OPT["osched"]
    no = 0
    XU = 184
    xu = []
    for i in range(10): xu += [f"  v_lshlrev_b32 v{XU+2*i}, 16, v{XB+i}", f"  v_and_b32 v{XU+2*i+1}, 0xffff0000, v{XB+i}"]
    def wdone(g): return ("W", 5*g + 4) not in st.items
    def mf(s, T, rev):
        r_, j = SL[s]; GG = GR if r_ == "r" else G; first = all(x[0] != r_ for x in SL[:s])
        return [f"  v_mfma_f32_16x16x32_bf16 {vr(GG+(T*5+t)*4)}, {breg(j,t)}, {ar(QR[(s, T)])}, {'0' if first else vr(GG+(T*5+t)*4)}" for t in (range(4, -1, -1) if rev else range(5))]
    def chain(ms, ph=0):
        out = []
        for t in range(5):
            g = [m[t] for m in (ms if (t + ph) % 2 == 0 else ms[::-1])]
            if any(x.endswith(", 0") for x in g):
                d = g[0].split()[1].rstrip(",")
                g = [x.rsplit(", ", 1)[0] + (", 0" if n == 0 else ", " + d) for n, x in enumerate(g)]
            out += g
        return out
    nm = 14 - MG; WB = OPT["wb"]
    for s in range(MG + 4):
        if s < MG:
            need = [f"A{s}{c}" for c in "abcd"] + [f"B{SL[s][1]}"]; assert ("B", 5*SL[s][1] + 4) not in st.items
            M = sum((mf(s, T, k & 1) for k, T in enumerate((1, 2, 3, 0) if s == RL else range(4))), [])
            if s in PAIR:
                q = PAIR[s]; p = q[0][0]
                need = [f"A{x}{'abcd'[T]}" for x, T in q] + [f"B{SL[p+1][1]}"]; assert ("B", 5*SL[p+1][1] + 4) not in st.items
                M = sum((chain([mf(x, T, n_ & 1) for x in (p, p + 1)], n_) for n_, T in enumerate((q[0][1], q[1][1]))), [])
        else:
            T = (1, 2, 3, 0)[s - MG]
            need = [f"A{x}{'abcd'[T]}" for x in range(MG, 14)]
            M = chain([mf(x, T, False) for x in range(MG, 14)])
        if s == XF: need.append("XS")
        vm = need + (["op"] if s == PC else []) + ([f"wo{g}" for g in range(5) if g not in wtr] if s == WB else []) + (["OS"] if s == OFS else []) + (["p2"] if s == C2 else [])
        if s == WB: assert all(wdone(g) for g in range(5) if g not in wtr)
        OQ = OPT["oq"]; OM = C2 + (1 if OQ else 2)
        XB_ = OFS if OPT["xr"] < OFS else RL
        assert XB_ <= (RL - 1 if OPT["xw"] == 2 else RL)
        a += W(vm, "*" if (s in (XB_, XB_ if OPT["xw"] == 1 else RL + 2) or (s == C2 + 2 and not OQ)) else ())
        a += stamp(f"g{s}")
        if s == C2: a += check("k_sw", FW, VF, True) + stamp("w1")
        if s == PC: a += check("k_so", VF-1, VF, True) + stamp("op")
        if s != PC and s in (OFS, -1 if OQ else C2 + 2, WB, XB_, MG + 1, RL + 2 if OPT["xw"] == 2 else -1): a("s_barrier")
        ls = []; n = len(M)
        for x in plan.get(s, []): assert (SL[x][1] < 2 or s >= C2) and (x - s <= 3 or (x == 13 and s > C2 + 3))
        v = sum((ldA(x) for x in plan.get(s, [])), [])
        if s == C2: v = ol + ql + v
        if s == OFS: v = flag("s64") + v
        if s == XF: v = flag("s72") + v
        if s == XP: assert s > PC; v = xpoll + v
        if s == PO: v = poll(VF-1, VF, "op", "s55") + v
        if s == OPT["pp2"]: v = poll(FW, VF, "p2", "s55") + v
        if late.get(s): ls.append((late[s], 0, n - 1))
        if s in OPT["xs"]: v += sum([ldX[i] for i, x in enumerate(OPT["xs"]) if x == s], [])
        if psched.get(s): v += st.take(psched[s])
        if osched.get(s): v += ldO(no, osched[s]); no += osched[s]
        ls.append((v, 0, n - 2))
        if OQ:
            if s == C2 + 1: ls += [(osum, OQ, OQ + 1), (L("s_waitcnt lgkmcnt(0)\ns_barrier"), OQ + 4, OQ + 4), (ogat, OQ + 5, min(OQ + 10, 19))]
        else:
            if s == C2 + 1: ls.append((osum, 16, 19))
            if s == C2 + 2: ls.insert(0, (ogat, 0, 10))
        if s == OM + 1: ls.append((ofin[0] + ofin[1], 1, 19))
        if s == OPT["xr"]: assert s < RL and s != OFS and s > OM + 1; ls.insert(0, (rdX, 0, 8))
        if OPT["xw"] == 0:
            if s == RL: ls += [(xw[:5], 10, 14), (xw[5:10], 15, 19)]
            if s == RL + 1: ls += [(xw[10:], 0, 5), (L("s_waitcnt lgkmcnt(0)\ns_barrier"), 9, 9), (xr, 10, 19)]
            if s == RL + 2: ls.append((xa[:OPT["xcut"]], 0, n - 1))
            if s == RL + 3: ls.append((xa[OPT["xcut"]:], 0, n - 1))
        else:
            if OPT["xw"] == 1:
                if s == RL: ls.append((xw[:4], 9, 19))
                if s == RL + 1: ls.append((xw[4:11], 0, 19))
                if s == RL + 2: ls += [(xw[11:], 0, 9), (L("s_waitcnt lgkmcnt(0)\ns_barrier"), 12, 12), (xr, 13, 19)]
            else:
                if s == RL - 1: ls.append((xw[:3], 12, 19))
                if s == RL: ls.append((xw[3:10], 0, 19))
                if s == RL + 1: ls.append((xw[10:], 0, 14))
                if s == RL + 2: ls.append((xr, 0, 14))
            if s == RL + 3:
                a += L("s_waitcnt lgkmcnt(0)") + [";@align on"] + [f"  v_pk_add_f32 {vr(GR+2*i,2)}, {vr(GR+2*i,2)}, {vr(GR+20+20*j+2*i,2)}" for j in range(3) for i in range(10)] + [";@align off"]
                ls.append(([x for x in xa if "v_add_f32" not in x], 0, n - 1))
        if s > MG: ls.append((wr_[5*(s-MG-1):5*(s-MG)], 2, n - 1))
        if s == OPT["xup"]: assert s >= XB_; ls.append((xu, 0, n - 1))
        if WB <= MG + 2:
            if s >= MG + 2: ls.append((rdP(s - MG - 2), 0, n - 2))
        elif s == MG + 3: ls.append((rdB(0) + rdB(1), 0, n - 2))
        a += place(M, ls)
        if s == OM: a += W("Q", "*") + stamp("om") + place(om, [(st.take(OPT["pom"]), 0, 15)])
    a += stamp("gend")
    E = G + 20
    VB = []
    for j in range(3):
        for i in range(10): VB.append(f"  v_pk_add_f32 {vr(G+2*i,2)}, {vr(G+2*i,2)}, {vr(G+20+20*j+2*i,2)}")
    VC = []
    for i in range(10): VC += [f"  v_lshlrev_b32 v{RP+2*i}, 16, v{GA+i}", f"  v_and_b32 v{RP+2*i+1}, 0xffff0000, v{GA+i}"]
    VC += [f"  v_pk_add_f32 {vr(G+2*i,2)}, {vr(G+2*i,2)}, {vr(RP+2*i,2)}" for i in range(10)]
    VC += [f"  v_pk_mul_f32 {vr(E+2*i,2)}, {vr(G+2*i,2)}, s[30:31]" for i in range(10)]
    VA = [f"  v_add_f32 v{G+i}, v{G+i}, v{G+20+20*j+i}" for j in range(3) for i in range(20)]
    V = []
    V += [f"  v_exp_f32 v{E+i}, v{E+i}" for i in range(20)]
    V += [f"  v_add_f32 v{E+i}, 1.0, v{E+i}" for i in range(20)]
    V += [f"  v_rcp_f32 v{E+i}, v{E+i}" for i in range(20)]
    V += [f"  v_mul_f32 v{G+i}, v{G+i}, v{E+i}" for i in range(20)]
    V0 = OPT["v0"]; RB = OPT["rb"]; P0 = MG + 4; V1 = OPT["v1"]
    def split(Vl, a0, a1):
        w = [4 if x % 2 == 0 else 6 for x in range(a0, a1)]; cum = [sum(w[:i+1])/sum(w) for i in range(len(w))]
        cost = [8 if ("exp" in x or "rcp" in x) else 4 for x in Vl]; tot = sum(cost); out = [[] for _ in w]; c_ = 0
        for x, c in zip(Vl, cost): out[next(i for i, y in enumerate(cum) if (c_ + 0.5)/tot <= y)].append(x); c_ += c
        return out
    VAp = split(VA, V0, V1); parts = split(V, V1, 20)
    assert not wtr
    for s in range(20):
        s0 = s & ~1
        a += W(([f"O{s+1}"] if s == s0 else []) + (["XS"] if P0 + s == XF else []) + (["xp"] if P0 + s == XC else []) + (["XL"] if s == V1 else []),
               [f"b{s}"] + (["w"] if s == RB else []) + (["r"] if s == V0 else []))
        if s == RB: a("s_barrier")
        a += stamp(f"s{s}")
        if P0 + s == XC: a += check("k_sx", VF-1, VF) + stamp("xc")
        if s == V1: a += [";@align on"] + VC + [";@align off"]
        MM = chain([[f"  v_mfma_f32_16x16x32_bf16 {vr(SA+4*t)}, {sb(x,t)}, {ar(4*x)}, {'0' if x == 0 else vr(SA+4*t)}" for t in range(5)] for x in (s0, s0 + 1)], (s0//2) & 1)
        M = MM[:4] if s == s0 else MM[4:]; e_ = len(M) - 1
        ls = []
        if s + 2 < 20: ls.append((rdP(s + 2), 0, e_))
        v = []
        if P0 + s == XF: v += flag("s72")
        if P0 + s == XP: v += xpoll
        if P0 + s == XC: v += xl
        if osched.get(P0 + s): v += ldO(no, osched[P0 + s]); no += osched[P0 + s]
        ls.append((v, 0, e_))
        if s == 0: ls.append((L(f"s_mov_b32 s30, {LOG2E|0x80000000}\ns_mov_b32 s31, {LOG2E|0x80000000}"), 0, e_))
        if RB <= s < RB + 3: ls.append((rd_[5*(s-RB):5*(s-RB)+5], 0, e_))
        if V0 <= s < V1: ls.append((VAp[s-V0], 0, e_))
        if s >= V1: ls.append((parts[s-V1], 0, e_))
        a += place(M, ls)
    assert no == 20 and not st.items, (no, st.items)
    a += stamp("send")
    for t in range(5):
        for i in range(2): a(f"v_pk_fma_f32 {vr(SA+4*t+2*i,2)}, {vr(SA+4*t+2*i,2)}, {vr(G+4*t+2*i,2)}, {vr(XU+4*t+2*i,2)}")
        for i in range(2): a(f"v_cvt_pk_bf16_f32 v{XB+2*t+i}, v{SA+4*t+2*i}, v{SA+4*t+2*i+1}")
        a(f"ds_write_b64 v243, {vr(XB+2*t,2)} offset:{32*t}")
    a(";@align off\ns_waitcnt lgkmcnt(0)")
    for i in range(3): a(f"ds_read_b128 {vr(E+4*i)}, v{240+i}")
    for i in range(3): a(f"s_waitcnt lgkmcnt({2-i})\nbuffer_store_dwordx4 {vr(E+4*i)}, v{XA[i]}, s[4:7], s48 offen")
    a += stamp_out()
    return resolve(a)

HEADER = """; One persistent launch, one workgroup per CU (generated by my own script, fully unrolled).
; phase 1: 192x160 tiles of x @ [wqkv | w1]; LayerNorm is folded into the epilogue (row mean / rstd, column sums);
;          side jobs: row statistics, column sums, repacking of w2 / wo into MFMA fragment order;
;          epilogues: silu -> h, phi -> pq, phi(k)^T [v | 1] -> kv / z (float atomics).
;          out = x + s * silu(gate).
; Hand-offs: write-through stores, wait, then a flag word holding this launch's tag (derived from ws[0]).
; Two spare workgroups race round trips to two 8 KB granules of d_ws to learn which is closer; the answer only
; kernarg: 0 x, 8 wqkv, 16 wo, 24 (unused), 32 w1, 40 w2, 48 out, 56 debug, 64 ws"""
def build():
    OUTL.clear()
    pro = prologue()
    br = L("s_cmp_lt_u32 s22, 8\ns_cbranch_scc1 k_kv")
    if OPT["pol"] == "race":
        br += L("s_cmp_eq_u32 s21, 11\ns_cbranch_scc1 k_race")
        OUTL("k_race:")
        if OPT["mv3"] < 1:
            OUTL("s_mov_b64 s[36:37], s[74:75]")
            OUTL.extend(d_misc())
        OUTL("s_waitcnt vmcnt(0)\ns_barrier")
        OUTL.extend(flag("s49"))
        OUTL(f"""
        s_cmp_lg_u32 s20, 0
        s_cbranch_scc1 k_race2
        s_cmp_eq_u32 s2, 2
        s_cbranch_scc1 k_race2
        s_mov_b32 s29, s2
        s_lshl_b32 s28, s29, 13
        s_add_u32 s28, s28, {RACE}
        v_lshlrev_b32 v6, 25, v7
        s_mov_b32 s56, s36
        s_and_b32 s57, s37, 0xffff
        s_mov_b32 s58, 256
        s_mov_b32 s59, 0x20000
        v_mov_b32 v3, 0
        buffer_atomic_add v3, v6, s[16:19], s28 offen sc0
        v_mov_b32 v1, 1
        s_mov_b32 s30, 12
        s_mov_b32 s31, 1
        s_waitcnt vmcnt(0)
        k_race0:
        buffer_atomic_add v1, v6, s[56:59], 0 offen offset:4 sc0
        s_sub_u32 s30, s30, 1
        s_waitcnt vmcnt(0)
        v_readfirstlane_b32 s38, v1
        v_mov_b32 v1, 0
        s_and_b32 s38, s38, 1
        s_cmp_eq_u32 s38, s31                ; first trip: odd = partner is there; later trips: even
        s_cselect_b32 s30, 0, s30
        s_mov_b32 s31, 0
        s_cmp_lg_u32 s30, 0
        s_cbranch_scc1 k_race0
        s_mov_b32 s30, {OPT['trips']}
        k_race1:
        v_mov_b32 v3, 0
        buffer_atomic_add v3, v6, s[16:19], s28 offen sc0
        s_sub_u32 s30, s30, 1
        s_cmp_lg_u32 s30, 0
        s_waitcnt vmcnt(0)
        s_cbranch_scc1 k_race1
        v_mov_b32 v3, 1
        buffer_atomic_add v3, v6, s[56:59], 0 offen sc0
        s_lshl_b32 s29, s29, 13
        s_xor_b32 s29, s29, s39
        s_waitcnt vmcnt(0)
        v_readfirstlane_b32 s30, v3
        v_mov_b32 v3, s29
        s_nop 0
        s_bitcmp0_b32 s30, 0
        s_cselect_b32 s28, {PW}, {OOB}
        buffer_store_dword v3, v6, s[16:19], s28 offen sc1
        k_race2:
        """)
        OUTL.extend((d_cs() if OPT["keep"] < 1 else []) + [f"  s_mov_b32 s{r}, {OOB}" for r in (61, 62, 63, 75, 80, 81, 82, 83)] + [f"  v_add_u32 v{L2B+i}, {2*STAGE}, v{LA+i}" for i in range(5)] + dma_next(9) + L("s_branch k_t_join"))
    items = [("B", i) for i in range(35)] + [("W", i) for i in range(25)]
    st_t = Stream(items); st_n = Stream(items)
    mt = g1_main("k_t", True, st_t)
    mt += L("s_waitcnt lgkmcnt(0)\ns_cmp_lt_u32 s22, 12\ns_cbranch_scc1 k_q")
    eq = epi_t("phi", Stream(st_t.items)); es = epi_t("silu", st_t)
    mn = g1_main("k_n", False, st_n)
    ek = epi_kv(st_n)
    assert st_n.items == st_t.items
    n0 = len(resolve(pro + br))
    a = resolve(pro + br + mt) + es + phase2(st_t) + L("s_endpgm\nk_q:") + eq + L("s_branch k_p2\nk_kv:") + resolve(pro + br + mn + ek)[n0:] + L("s_branch k_p2")
    a += L("k_end:\ns_endpgm") + OUTL
    body, added = haz.fix(a)
    body, nbytes, nn, npm = align.align([x.replace("CODE_KB", "40").replace("CODE_MAX", "44444") for x in body])
    kb = (nbytes + 1023)//1024; assert kb <= 64
    body = [x.replace("s_cmp_ge_u32 s28, 40", f"s_cmp_ge_u32 s28, {kb if OPT.get('cpf', 1) else 0}").replace("44444", str((nbytes - 16) & ~15)) for x in body]
    body = [re.sub(r"\s*;(#\S+|nocount|C)$", "", x) for x in body]
    print("instrs", len(body), "nops added", added, "bytes", nbytes, "align nops", nn, "promoted", npm, file=sys.stderr)
    if OPT.get("nost"): body = [x for x in body if not ("buffer_store_dwordx4" in x and "s[76:79]" in x)]
    if OPT.get("cyc"): body = [x.replace("s_memrealtime", "s_memtime") for x in body]
    out = ["; @launch grid=(256,1,1) block=(256,1,1) lds=163840", HEADER,
           '.amdgcn_target "amdgcn-amd-amdhsa--gfx950"\n.text', khead(NAME)] + body
    if DIAG: out.append(";ST " + " ".join(OPT["st"][:7]) + "\n;OPTS " + " ".join(x for x in sys.argv[3:] if not x.startswith("st=")))
    out.append('.section .rodata,"a"\n.p2align 6\n' + kd(NAME, 512, 256, 102))
    return "\n".join(out) + "\n"
if __name__ == "__main__":
    for x in sys.argv[2:]:
        if x == "d": DIAG = True
        else:
            k, v = x.split("=", 1); OPT[k] = eval(v)
    src = build()
    open(sys.argv[1], "w").write(src)
```
